```python
import torch

def _softmax(x, axis=-1):
    return torch.softmax(x, dim=axis)
def _gelu(x):
    return torch.nn.functional.gelu(x, approximate="tanh")
def _silu(x):
    return torch.nn.functional.silu(x)
def _sigmoid(x):
    return torch.sigmoid(x)
def _layernorm(x, axis=-1, eps=1e-5):
    m = x.mean(dim=axis, keepdim=True)
    v = x.var(dim=axis, keepdim=True, unbiased=False)
    return (x - m) / torch.sqrt(v + eps)
def _scatter_add(tgt, idx, src, axis=0):
    return tgt.clone().index_add_(axis, idx, src)
def _segment_sum(src, seg, n):
    out = torch.zeros((n,) + src.shape[1:], dtype=src.dtype)
    return out.index_add_(0, seg, src)
def _pad(x, pw):
    flat = tuple(v for pair in reversed(pw) for v in pair)
    return torch.nn.functional.pad(x, flat)

kernel_name = 'parallel_sum__grouped_kv_mqa__glu_gated_reglu__prompt'

def setup_inputs():

    _w = (lambda a: (lambda t: t.to(torch.bfloat16) if t.is_floating_point() else t)(torch.as_tensor(a)))
    def _A_setup():
        B, S, D, H = 1, 2048, 1024, 32
        Dh = D // H
        return {
            "x": _w((lambda *s: torch.randn(*s, dtype=torch.bfloat16) * 0.05)(B, S, D)),
            "wq": _w((lambda *s: torch.randn(*s, dtype=torch.bfloat16) * 0.05)(D, H * Dh)),
            "wk": _w((lambda *s: torch.randn(*s, dtype=torch.bfloat16) * 0.05)(D, Dh)),
            "wv": _w((lambda *s: torch.randn(*s, dtype=torch.bfloat16) * 0.05)(D, Dh)),
            "wo": _w((lambda *s: torch.randn(*s, dtype=torch.bfloat16) * 0.05)(H * Dh, D)),
        }
    _A_in = _A_setup()

    def _B_setup():
        B, S, D, F = 1, 2048, 1024, 3584
        return {
            "x": _w((lambda *s: torch.randn(*s, dtype=torch.bfloat16) * 0.05)(B, S, D)),
            "W_gate": _w((lambda *s: torch.randn(*s, dtype=torch.bfloat16) * 0.8)(D, F) * (2.0 / D) ** 0.5),
            "W_up": _w((lambda *s: torch.randn(*s, dtype=torch.bfloat16) * 0.8)(D, F) * (2.0 / D) ** 0.5),
            "W_down": _w((lambda *s: torch.randn(*s, dtype=torch.bfloat16) * 0.8)(F, D) * (1.0 / F) ** 0.5),
        }
    _B_in = _B_setup()

    return {
        "A_x": _A_in["x"],
        "A_wq": _A_in["wq"],
        "A_wk": _A_in["wk"],
        "A_wv": _A_in["wv"],
        "A_wo": _A_in["wo"],
        "B_x": _B_in["x"],
        "B_W_gate": _B_in["W_gate"],
        "B_W_up": _B_in["W_up"],
        "B_W_down": _B_in["W_down"],
    }

def reference(A_x, A_wq, A_wk, A_wv, A_wo, B_x, B_W_gate, B_W_up, B_W_down):
    def _A_ref(x, wq, wk, wv, wo):
        B, S, D = x.shape
        H = 32
        Dh = D // H
        q = (lambda x, *d: x.permute(*d))((x @ wq).reshape(B, S, H, Dh), 0, 2, 1, 3)
        k = x @ wk
        v = x @ wv
        scores = torch.einsum("bhqd,bkd->bhqk", q, k) * (Dh ** -0.5)
        p = _softmax(scores, axis=-1)
        o = torch.einsum("bhqk,bkd->bhqd", p, v)
        return (lambda x, *d: x.permute(*d))(o, 0, 2, 1, 3).reshape(B, S, H * Dh) @ wo

    def _B_ref(x, W_gate, W_up, W_down):
        gate = torch.einsum("bsd,df->bsf", x, W_gate)
        up = torch.einsum("bsd,df->bsf", x, W_up)
        gate = gate * (lambda x, dt: x.to(dt))(gate > 0, gate.dtype)
        h = gate * up
        return torch.einsum("bsf,fd->bsd", h, W_down)

    x = A_x
    xn = _layernorm(x, axis=-1)
    return x + _A_ref(xn, A_wq, A_wk, A_wv, A_wo) + _B_ref(xn, B_W_gate, B_W_up, B_W_down)
```

```python
import re

TRANS = ("v_exp_f32", "v_log_f32", "v_rcp_f32", "v_rsq_f32", "v_sqrt_f32", "v_sin_f32", "v_cos_f32",
         "v_exp_f16", "v_rcp_iflag_f32")

def regs_of(op):
    op = op.strip()
    neg = op.lstrip("-")
    m = re.fullmatch(r"abs\((.*)\)", neg) or re.fullmatch(r"\|(.*)\|", neg)
    if m: neg = m.group(1)
    m = re.fullmatch(r"([vsa])\[(\d+):(\d+)\]", neg)
    if m: return [f"{m.group(1)}{i}" for i in range(int(m.group(2)), int(m.group(3)) + 1)]
    m = re.fullmatch(r"([vsa])(\d+)", neg)
    if m: return [neg]
    if neg in ("vcc", "vcc_lo", "vcc_hi"): return ["vcc"]
    if neg in ("exec", "exec_lo", "exec_hi"): return ["exec"]
    if neg == "m0": return ["m0"]
    if neg == "scc": return ["scc"]
    return []

class Ins:
    __slots__ = ("text", "mn", "ops", "kind", "wr", "rd", "srcC", "srcAB", "passes", "label", "target", "ws", "dpp", "storedata", "lds_dma", "comment")
    def __init__(self, text):
        self.text = text
        self.label = None; self.target = None; self.srcC = []; self.srcAB = []; self.passes = 0
        self.dpp = False; self.storedata = []; self.lds_dma = False
        body = text.split(";")[0].strip()
        if body.endswith(":"):
            self.label = body[:-1]; self.kind = "label"; self.mn = ""; self.wr = []; self.rd = []; self.ws = 0; return
        if body.startswith(".") or body == "":
            self.kind = "dir"; self.mn = body; self.wr = []; self.rd = []; self.ws = 0; return
        parts = body.split(None, 1)
        mn = parts[0]; rest = parts[1] if len(parts) > 1 else ""
        self.mn = mn
        ops = []; depth = 0; cur = ""
        for ch in rest:
            if ch in "[(": depth += 1
            if ch in "])": depth -= 1
            if ch == "," and depth == 0: ops.append(cur.strip()); cur = ""
            else: cur += ch
        if cur.strip(): ops.append(cur.strip())
        mods = ""
        if ops:
            lp = ops[-1].split(None, 1)
            if len(lp) > 1 and not ops[-1].startswith("hwreg") and not mn.startswith("s_waitcnt"):
                ops[-1] = lp[0]; mods = lp[1]
        self.ops = ops
        self.ws = 1
        R = lambda i: regs_of(ops[i]) if i < len(ops) else []
        allfrom = lambda i: [r for o in ops[i:] for r in regs_of(o)]
        wr = []; rd = []
        if mn == "s_nop":
            self.kind = "nop"; self.ws = int(ops[0], 0) + 1
        elif mn.startswith("v_smfmac"):
            self.kind = "mfma"; wr = R(0); self.srcAB = R(1) + R(2) + R(3); self.srcC = R(0); rd = self.srcAB + self.srcC
            self.passes = 8
        elif mn.startswith("v_mfma"):
            self.kind = "mfma"; wr = R(0); self.srcAB = R(1) + R(2); self.srcC = R(3); rd = self.srcAB + self.srcC
            self.passes = 8 if "32x32x16" in mn else 4 if "16x16x32" in mn else None
            assert self.passes, mn
        elif mn.startswith("v_"):
            self.kind = "trans" if mn.replace("_e32", "").replace("_e64", "") in TRANS else "valu"
            if "dpp" in mn or re.search(r"(row_|quad_perm|wave_|bcast)", mods): self.dpp = True
            if mn.startswith("v_cmp"):
                wr = R(0); rd = allfrom(1)
                if mn.startswith("v_cmpx"): wr = wr + ["exec"]
            elif mn.startswith("v_readfirstlane") or mn.startswith("v_readlane"):
                wr = R(0); rd = allfrom(1)
            elif mn.startswith("v_permlane") and "swap" in mn:
                wr = R(0) + R(1); rd = R(0) + R(1)
            elif re.match(r"v_(add|sub|subrev|addc|subb|subbrev)_co_u32", mn):
                wr = R(0) + R(1); rd = allfrom(2)
            elif mn.startswith("v_fmac") or mn.startswith("v_dot2c") or mn.startswith("v_pk_fmac"):
                wr = R(0); rd = allfrom(0)
            elif mn.startswith("v_cndmask"):
                wr = R(0); rd = allfrom(1)
                if len(ops) < 4: rd = rd + ["vcc"]
            elif mn.startswith("v_nop"):
                pass
            else:
                wr = R(0); rd = allfrom(1)
                if self.dpp and "bound_ctrl" not in mods: rd = rd + R(0)
        elif mn.startswith("ds_"):
            self.kind = "ds"
            if mn.startswith("ds_read") or mn.startswith("ds_bpermute") or mn.startswith("ds_swizzle") or mn.startswith("ds_permute"):
                wr = R(0); rd = allfrom(1)
            else:
                rd = allfrom(0)
        elif mn.startswith("buffer_") or mn.startswith("global_"):
            self.kind = "vmem"
            toks = mods.split()
            if "lds" in toks or "_lds_" in mn:
                self.lds_dma = True; rd = allfrom(0) + ["m0"]
            elif "load" in mn:
                wr = R(0); rd = allfrom(1)
            elif "store" in mn:
                rd = allfrom(0)
                if mn.startswith("buffer_"): data = R(0)
                else: data = R(1)
                if len(data) >= 3: self.storedata = data
            elif "atomic" in mn:
                rd = allfrom(0)
                if "sc0" in toks: wr = R(0)
            else:
                rd = allfrom(0)
        elif mn.startswith("s_"):
            self.kind = "salu"
            if mn.startswith("s_cbranch") or mn == "s_branch":
                self.kind = "branch"; self.target = ops[0]
            elif mn.startswith("s_load") or mn.startswith("s_buffer_load") or mn in ("s_memtime", "s_memrealtime"):
                self.kind = "smem"; wr = R(0); rd = allfrom(1)
            elif mn.startswith("s_cmp") or mn.startswith("s_bitcmp"):
                rd = allfrom(0); wr = ["scc"]
            elif mn in ("s_waitcnt", "s_barrier", "s_endpgm", "s_setprio", "s_sleep", "s_sethalt"):
                pass
            elif "saveexec" in mn:
                wr = R(0) + ["exec"]; rd = allfrom(1) + ["exec"]
            else:
                wr = R(0); rd = allfrom(1)
        else:
            raise ValueError("unknown instr: " + text)
        self.wr = wr; self.rd = rd

def isv(r): return r[0] in "va" and r != "vcc"
def iss(r): return (r[0] == "s" and r != "scc") or r == "vcc"

def need(p, c):
    n = 0
    pw = set(p.wr); cr = set(c.rd); cw = set(c.wr)
    pv = p.kind in ("valu", "trans")
    cv = c.kind in ("valu", "trans")
    if pv:
        vw = {r for r in pw if isv(r)}
        sw = {r for r in pw if iss(r)}
        if c.kind == "mfma" and vw & cr: n = max(n, 2)
        if cv and vw & cr:
            if c.mn.startswith("v_readlane") or c.mn.startswith("v_readfirstlane"): n = max(n, 1)
            if c.dpp: n = max(n, 2)
            if c.mn.startswith("v_permlane"): n = max(n, 2)
            if p.kind == "trans": n = max(n, 1)
        if p.kind == "trans" and c.kind in ("ds", "vmem") and vw & cr: n = max(n, 1)
        if sw & cr:
            if cv:
                n = max(n, 4 if (c.mn.startswith("v_readlane") or c.mn.startswith("v_writelane")) else 2)
            if c.kind == "vmem": n = max(n, 5)
            if c.kind in ("salu", "smem", "branch"): n = max(n, 1)
        if "exec" in pw:
            if c.kind == "mfma": n = max(n, 4)
            if cv and (c.dpp): n = max(n, 5)
            if cv and (c.mn.startswith("v_read") or c.mn.startswith("v_permlane") or c.mn.startswith("v_writelane")): n = max(n, 4)
        if "vcc" in pw and c.kind == "branch" and "vcc" in c.mn: n = max(n, 1)
    if p.kind == "mfma":
        big = 12 if p.passes == 8 else 8
        if c.kind == "mfma":
            if pw & set(c.srcAB): n = max(n, big)
            if pw & set(c.srcC):
                if list(p.wr) == list(c.srcC) and p.passes == c.passes: pass
                else: n = max(n, big - 2)
            if pw & cw and not (pw & set(c.srcC)):
                if list(p.wr) != list(c.wr) or p.passes != c.passes: n = max(n, big - 2)
        elif cv or c.kind in ("ds", "vmem"):
            if pw & (cr | cw): n = max(n, big)
        if cv and set(p.srcC) & cw: n = max(n, 7 if p.passes == 8 else 3)
    if p.kind == "salu" and "m0" in pw and c.lds_dma: n = max(n, 1)
    if p.storedata and set(p.storedata) & cw: n = max(n, 2 if cv else 1)
    return n

class Asm:
    def __init__(self):
        self.items = []
    def I(self, *texts):
        for t in texts:
            for line in t.split("\n"):
                if line.strip(): self.items.append(Ins(line.strip()))
    def L(self, name): self.items.append(Ins(name + ":"))
    def extend(self, lst):
        for t in lst: self.I(t)
    def fix(self, verbose=True, name=""):
        W = 20
        inserted = 0
        changed = True
        while changed:
            changed = False
            items = self.items
            lab = {it.label: i for i, it in enumerate(items) if it.label}
            br_to = {}
            for i, it in enumerate(items):
                if it.kind == "branch": br_to.setdefault(lab[it.target], []).append(i)
            def preds(i):
                res = []
                if i > 0:
                    p = items[i - 1]
                    if not (p.mn in ("s_branch", "s_endpgm")): res.append(i - 1)
                res += br_to.get(i, [])
                return res
            for i, c in enumerate(items):
                if c.kind in ("label", "dir", "nop"): continue
                worst = 0; who = None
                stack = [(j, 0) for j in preds(i)]
                seen = {}
                while stack:
                    j, d = stack.pop()
                    if d >= W: continue
                    if seen.get(j, 99) <= d: continue
                    seen[j] = d
                    p = items[j]
                    if p.kind not in ("label", "dir", "nop"):
                        r = need(p, c) - d
                        if r > worst: worst = r; who = p
                    nd = d + p.ws
                    for k in preds(j): stack.append((k, nd))
                if worst > 0:
                    if verbose: print(f"[{name}] nop {worst} before '{c.text}' (after '{who.text}')")
                    items.insert(i, Ins(f"s_nop {worst - 1}"))
                    inserted += 1; changed = True
                    break
        return inserted
    def text(self):
        out = []
        for it in self.items:
            out.append(it.text if it.kind == "label" else "  " + it.text)
        return "\n".join(out) + "\n"

def interleave(main, fill, pattern=None):
    out = []; n = len(main); fi = 0
    for i, m in enumerate(main):
        out.append(m)
        k = pattern[i] if pattern else (len(fill) * (i + 1)) // n - (len(fill) * i) // n
        out += fill[fi:fi + k]; fi += k
    out += fill[fi:]
    return out
```

```python
import sys, struct, math
from asmlib import *

NAME = "parallel_sum__grouped_kv_mqa__glu_gated_reglu__prompt"
KA_X, KA_WQ, KA_WK, KA_WV, KA_WO, KA_BX, KA_WG, KA_WU, KA_WD, KA_OUT, KA_DBG, KA_WS = [8 * i for i in range(12)]
WS_XN = 0x0000000
WS_KV = 0x0400000
WS_Q  = 0x0500000
WS_O  = 0x0900000
WS_H  = 0x1000000
WS_P  = 0x2000000
WS_SIZE = 0x4000000

def f32(x): return "0x%08x" % struct.unpack("<I", struct.pack("<f", x))[0]
def vr(a, n=1): return f"v{a}" if n == 1 else f"v[{a}:{a+n-1}]"
def sr(a, n=1): return f"s{a}" if n == 1 else f"s[{a}:{a+n-1}]"

def srd(a, dst, base, size):
    a.I(f"s_mov_b32 s{dst}, s{base}", f"s_mov_b32 s{dst+1}, s{base+1}",
        f"s_mov_b32 s{dst+2}, {size:#x}", f"s_mov_b32 s{dst+3}, 0x20000")

def mfma32(d, A, B, C=None):
    c = vr(d, 16) if C is None else (C if isinstance(C, str) else vr(C, 16))
    return f"v_mfma_f32_32x32x16_bf16 {vr(d,16)}, {vr(A,4)}, {vr(B,4)}, {c}"
def mfma16(d, A, B, C=None):
    c = vr(d, 4) if C is None else (C if isinstance(C, str) else vr(C, 4))
    return f"v_mfma_f32_16x16x32_bf16 {vr(d,4)}, {vr(A,4)}, {vr(B,4)}, {c}"

STAMPS = False
TL = False
def tl_start(a):
    if TL: a.I("s_memrealtime s[96:97]")
def tl_end(a, kidx, wave_sgpr=20, ws_srd=32):
    if not TL: return
    lab = f"TLE{kidx}_{len(a.items)}"
    a.I("s_waitcnt vmcnt(0)", "s_memrealtime s[98:99]", "s_waitcnt lgkmcnt(0)",
        f"s_lshl_b32 s100, s2, 3", f"s_add_u32 s100, s100, s{wave_sgpr}", "s_lshl_b32 s100, s100, 3",
        f"s_add_u32 s100, s100, {0x3F00000 + kidx * 0x10000}",
        "v_mov_b32 v2, s96", "v_mov_b32 v3, s98", "v_mov_b32 v1, 0", "s_mov_b64 exec, 1",
        f"buffer_store_dwordx2 v[2:3], v1, s[{ws_srd}:{ws_srd+3}], s100 offen")
FINE = False
def stamp(a, i):
    if STAMPS and (i == 0 or not FINE):
        a.I(f"s_memtime s[{64+2*i}:{65+2*i}]")
        if i == 0: a.I("s_memrealtime s[84:85]")
def stamp_dump(a, n, wave_sgpr=20, wgs=(0, 100)):
    if not STAMPS: return
    lab = f"STD{len(a.items)}"
    a.I("s_memrealtime s[86:87]", f"s_load_dwordx2 s[88:89], s[0:1], {KA_DBG}", "s_waitcnt vmcnt(0) lgkmcnt(0)")
    a.I("s_mov_b32 s92, s88", "s_mov_b32 s93, s89", "s_mov_b32 s94, 256", "s_mov_b32 s95, 0x20000")
    a.I(f"s_and_b32 s90, s{wave_sgpr}, 3", "s_cmp_lg_u32 s90, 0", f"s_cbranch_scc1 {lab}")
    a.I(f"s_mov_b32 s91, 0", f"s_cmp_eq_u32 s2, {wgs[0]}", f"s_cbranch_scc1 {lab}_W",
        f"s_mov_b32 s91, 128", f"s_cmp_eq_u32 s2, {wgs[1]}", f"s_cbranch_scc0 {lab}")
    a.L(lab + "_W")
    a.I(f"s_lshl_b32 s90, s{wave_sgpr}, 4", "s_add_u32 s91, s91, s90", "v_mov_b32 v1, 0")
    for i in range(n):
        a.I(f"s_sub_u32 s90, s{64+2*i}, s64") if i else a.I("s_mov_b32 s90, s64")
        a.I("v_mov_b32 v2, s90", f"buffer_store_dword v2, v1, s[92:95], s91 offen offset:{4*i}")
    a.I("s_sub_u32 s90, s86, s84", "v_mov_b32 v2, s90", f"buffer_store_dword v2, v1, s[92:95], s91 offen offset:{4*n}")
    a.I("v_mov_b32 v2, s84", f"buffer_store_dword v2, v1, s[92:95], s91 offen offset:{4*n+4}")
    a.L(lab)


def k1():
    a = Asm()
    LW, LX, LR = 0, 65536, 98304
    tl_start(a)
    a.I("s_cmp_ge_u32 s2, 256", "s_cbranch_scc1 K1_END",
        f"s_load_dwordx2 s[4:5], s[0:1], {KA_X}",
        f"s_load_dwordx4 s[8:11], s[0:1], {KA_WK}",
        f"s_load_dwordx2 s[6:7], s[0:1], {KA_WS}",
        "v_lshrrev_b32 v2, 6, v0", "v_and_b32 v1, 63, v0",
        "v_readfirstlane_b32 s20, v2",
        "s_lshr_b32 s21, s2, 1",
        "s_and_b32 s22, s2, 1",
        "v_lshlrev_b32 v3, 4, v1",
        "s_lshl_b32 s23, s21, 15",
        "s_lshl_b32 s16, s20, 12",
        "s_add_u32 s19, s23, s16",
        "s_waitcnt lgkmcnt(0)")
    srd(a, 24, 4, 2048 * 2048)
    a.I("s_cmp_eq_u32 s22, 0", "s_cselect_b64 s[12:13], s[8:9], s[10:11]")
    for i in range(4):
        a.I(f"buffer_load_dwordx4 {vr(8+4*i,4)}, v3, s[24:27], s19 offen offset:{i*1024}")
    srd(a, 28, 12, 65536)
    srd(a, 32, 6, WS_SIZE)
    a.I("s_lshl_b32 s17, s20, 13", "s_mov_b32 m0, s17", "s_add_u32 s18, s17, 4096")
    for i in range(4):
        a.I(f"buffer_load_dwordx4 v3, s[28:31], s17 offen offset:{i*1024} lds")
    a.I("s_mov_b32 m0, s18", "s_nop 0")
    for i in range(4):
        a.I(f"buffer_load_dwordx4 v3, s[28:31], s18 offen offset:{i*1024} lds")
    a.I("s_mov_b32 s36, 0xffff0000")
    a.I("s_waitcnt vmcnt(8)")
    for r in range(2):
        for d in range(8):
            src = 8 + 8 * r + d
            a.I(f"v_lshlrev_b32 v{32+16*r+2*d}, 16, v{src}", f"v_and_b32 v{33+16*r+2*d}, s36, v{src}")
    def tree(dst, base, sq):
        t = 64 + (dst - 24) * 8
        for i in range(8):
            if sq:
                a.I(f"v_mul_f32 v{t+i}, v{base+2*i}, v{base+2*i}", f"v_fmac_f32 v{t+i}, v{base+2*i+1}, v{base+2*i+1}")
            else:
                a.I(f"v_add_f32 v{t+i}, v{base+2*i}, v{base+2*i+1}")
        for s in (4, 2):
            for i in range(s): a.I(f"v_add_f32 v{t+i}, v{t+i}, v{t+i+s}")
        a.I(f"v_add_f32 v{dst}, v{t}, v{t+1}")
    def wavered(rs, ss):
        for mod in ("row_shr:1 row_mask:0xf bank_mask:0xf bound_ctrl:0", "row_shr:2 row_mask:0xf bank_mask:0xf bound_ctrl:0",
                    "row_shr:4 row_mask:0xf bank_mask:0xf bound_ctrl:0", "row_shr:8 row_mask:0xf bank_mask:0xf bound_ctrl:0",
                    "row_bcast:15 row_mask:0xa bank_mask:0xf", "row_bcast:31 row_mask:0xc bank_mask:0xf"):
            for r in rs: a.I(f"v_add_f32_dpp v{r}, v{r}, v{r} {mod}")
        for r, s in zip(rs, ss): a.I(f"v_readlane_b32 s{s}, v{r}, 63")
    tree(24, 32, False); tree(25, 48, False)
    wavered((24, 25), (40, 41))
    a.I(f"s_mov_b32 s37, {f32(1.0/1024)}")
    a.I("v_mov_b32 v26, s40", "v_mov_b32 v27, s41", "v_mul_f32 v26, s37, v26", "v_mul_f32 v27, s37, v27")
    for r in range(2):
        for i in range(16): a.I(f"v_sub_f32 v{80+16*r+i}, v{32+16*r+i}, v{26+r}")
    tree(24, 80, True); tree(25, 96, True)
    wavered((24, 25), (42, 43))
    a.I("v_mov_b32 v28, s42", "v_mov_b32 v29, s43", "v_mul_f32 v28, s37, v28", "v_mul_f32 v29, s37, v29")
    def rnd(r): a.I(f"v_cvt_pk_bf16_f32 v{r}, v{r}, v{r}", f"v_lshlrev_b32 v{r}, 16, v{r}")
    a.I(f"s_mov_b32 s38, {f32(1e-5)}")
    for r in range(2):
        rnd(26 + r); rnd(28 + r)
        a.I(f"v_add_f32 v{28+r}, s38, v{28+r}"); rnd(28 + r)
        a.I(f"v_sqrt_f32 v{28+r}, v{28+r}"); rnd(28 + r)
        a.I(f"v_rcp_f32 v{28+r}, v{28+r}")
    for r in range(2):
        for d in range(8):
            b = 32 + 16 * r + 2 * d
            a.I(f"v_sub_f32 v{b}, v{b}, v{26+r}", f"v_sub_f32 v{b+1}, v{b+1}, v{26+r}",
                f"v_cvt_pk_bf16_f32 v{b}, v{b}, v{b+1}",
                f"v_and_b32 v{b+1}, s36, v{b}", f"v_lshlrev_b32 v{b}, 16, v{b}",
                f"v_mul_f32 v{b}, v{b}, v{28+r}", f"v_mul_f32 v{b+1}, v{b+1}, v{28+r}",
                f"v_cvt_pk_bf16_f32 v{8+8*r+d}, v{b}, v{b+1}")
    a.I("s_lshl_b32 s16, s20, 5", f"s_add_u32 s16, s16, {LX}", "v_lshlrev_b32 v4, 8, v1", "v_add_u32 v4, s16, v4")
    for r in range(2):
        for p in range(2):
            a.I(f"ds_write_b128 v4, {vr(8+8*r+4*p,4)} offset:{p*16384+r*16}")
    a.I("v_lshrrev_b32 v5, 4, v1",
        "s_lshl_b32 s16, s20, 12", f"s_add_u32 s16, s16, {LX}", "v_add_u32 v30, s16, v3",
        "v_lshlrev_b32 v31, 9, v5", "v_bfe_u32 v2, v1, 2, 2", "v_lshl_add_u32 v31, v2, 6, v31",
        "v_and_b32 v2, 3, v1", "v_lshl_add_u32 v31, v2, 3, v31", "v_add_u32 v31, s17, v31",
        "s_lshl_b32 s16, s22, 14", "s_lshl_b32 s18, s20, 11", "s_add_u32 s16, s16, s18",
        "s_add_u32 s39, s23, s16", f"s_add_u32 s16, s16, {LX}", "v_add_u32 v24, s16, v3",
        "s_waitcnt vmcnt(0) lgkmcnt(0)", "s_barrier")
    a.I("ds_read_b128 v[8:11], v24", "ds_read_b128 v[12:15], v24 offset:1024")
    for j in range(4):
        a.I(f"ds_read_b128 {vr(32+4*j,4)}, v30 offset:{j*1024}")
        for d in range(2):
            for rd in range(2):
                a.I(f"ds_read_b64_tr_b16 {vr(64+8*j+4*d+2*rd,2)}, v31 offset:{j*2048+rd*256+d*32}")
    a.I("s_waitcnt lgkmcnt(0)")
    a.I(f"buffer_store_dwordx4 v[8:11], v3, s[32:35], s39 offen offset:{WS_XN}",
        f"buffer_store_dwordx4 v[12:15], v3, s[32:35], s39 offen offset:{WS_XN+1024}")
    a.I("s_cmp_eq_u32 s22, 0", "s_cbranch_scc0 K1_V")
    for j in range(4):
        for d in range(2): a.I(mfma16(96 + 4 * d, 64 + 8 * j + 4 * d, 32 + 4 * j, "0" if j == 0 else None))
    a.I("s_branch K1_R")
    a.L("K1_V")
    for j in range(4):
        for d in range(2): a.I(mfma16(96 + 4 * d, 32 + 4 * j, 64 + 8 * j + 4 * d, "0" if j == 0 else None))
    a.L("K1_R")
    a.I("s_lshl_b32 s16, s20, 11", f"s_add_u32 s16, s16, {LR}", "v_add_u32 v4, s16, v3")
    for d in range(2): a.I(f"ds_write_b128 v4, {vr(96+4*d,4)} offset:{d*1024}")
    a.I("s_waitcnt lgkmcnt(0)", "s_barrier")
    a.I("s_cmp_lg_u32 s20, 0", "s_cbranch_scc1 K1_FIN")
    a.I(f"v_add_u32 v4, {LR}, v3")
    for w in range(8):
        a.I(f"ds_read_b128 {vr(32+8*w,4)}, v4 offset:{w*2048}", f"ds_read_b128 {vr(36+8*w,4)}, v4 offset:{w*2048+1024}")
    a.I("s_waitcnt lgkmcnt(0)")
    for s in (4, 2, 1):
        for w in range(s):
            for i in range(8): a.I(f"v_add_f32 v{32+8*w+i}, v{32+8*w+i}, v{32+8*(w+s)+i}")
    for d in range(4): a.I(f"v_cvt_pk_bf16_f32 v{8+d}, v{32+2*d}, v{33+2*d}")
    a.I("s_lshr_b32 s16, s21, 1", "s_lshl_b32 s18, s16, 12", f"s_add_u32 s18, s18, {WS_KV}",
        "s_and_b32 s16, s21, 1", "s_lshl_b32 s16, s16, 10", "s_add_u32 s18, s18, s16",
        "s_cmp_eq_u32 s22, 0", "s_cbranch_scc0 K1_SV",
        "buffer_store_dwordx4 v[8:11], v3, s[32:35], s18 offen",
        "s_branch K1_FIN")
    a.L("K1_SV")
    a.I("v_and_b32 v2, 1, v5", "v_lshlrev_b32 v4, 9, v2", "v_and_b32 v2, 15, v1", "v_lshl_add_u32 v4, v2, 4, v4",
        "v_lshrrev_b32 v2, 1, v5", "v_lshl_add_u32 v4, v2, 3, v4",
        "buffer_store_dwordx2 v[8:9], v4, s[32:35], s18 offen offset:2048",
        "buffer_store_dwordx2 v[10:11], v4, s[32:35], s18 offen offset:2304")
    a.L("K1_FIN")
    tl_end(a, 0)
    a.L("K1_END")
    a.I("s_endpgm")
    return a, dict(grid=256, block=512, lds=114688, vgpr=112)

QSCALE = (32 ** -0.5) * math.log2(math.e)

def k2(R=5, exp=''):
    a = Asm()
    NST = 32
    SLOT = 32768
    ACC = 128; FA = 64; FW = 96
    def acc(h, u, t): return ACC + (t * 4 + h * 2 + u) * 4
    stamp(a, 0)
    tl_start(a)
    a.I("s_cmp_ge_u32 s2, 256", "s_cbranch_scc1 K2_END",
        f"s_load_dwordx2 s[4:5], s[0:1], {KA_WQ}",
        f"s_load_dwordx4 s[8:11], s[0:1], {KA_WG}",
        f"s_load_dwordx2 s[6:7], s[0:1], {KA_WS}",
        "v_lshrrev_b32 v2, 6, v0", "v_and_b32 v1, 63, v0",
        "v_readfirstlane_b32 s20, v2",
        "s_and_b32 s16, s2, 7", "s_lshl_b32 s16, s16, 2", "s_bfe_u32 s17, s2, 0x20003", "s_add_u32 s21, s16, s17",
        "s_lshr_b32 s22, s2, 5",
        "s_and_b32 s23, s20, 3",
        "v_lshlrev_b32 v3, 4, v1",
        "v_add_u32 v10, 31744, v3",
        "s_lshl_b32 s16, s22, 4", "s_lshl_b32 s17, s20, 1", "s_add_u32 s16, s16, s17", "s_lshl_b32 s44, s16, 15",
        "s_lshl_b32 s45, s20, 11",
        "s_mov_b32 s47, 0",
        "s_mov_b32 s50, 0",
        "s_waitcnt lgkmcnt(0)")
    srd(a, 32, 6, WS_SIZE)
    def adv(reg): return [f"s_add_u32 s{reg}, s{reg}, {SLOT}", f"s_cmp_eq_u32 s{reg}, {SLOT*R}", f"s_cselect_b32 s{reg}, 0, s{reg}"]
    def dma_act():
        return ["s_add_u32 m0, s47, s45", "s_nop 0",
                f"buffer_load_dwordx4 v3, s[32:35], s44 offen lds",
                f"buffer_load_dwordx4 v10, s[32:35], s44 offen offset:1024 lds",
                "s_add_u32 s44, s44, 1024"]
    def dma_w(h):
        srdw = "s[24:27]" if h == 0 else "s[28:31]"
        so = 48 + h
        return [f"s_add_u32 s16, s47, s46" if h == 0 else "s_add_u32 s16, s16, 8192", "s_mov_b32 m0, s16", "s_nop 0",
                f"buffer_load_dwordx4 v4, {srdw}, s{so} offen lds",
                f"buffer_load_dwordx4 v5, {srdw}, s{so} offen offset:1024 lds",
                f"s_add_u32 s{so}, s{so}, s43"]
    def rdaddr():
        return ["s_lshr_b32 s17, s20, 2", "s_lshl_b32 s16, s17, 13", "v_add_u32 v6, s16, v3",
                "v_lshrrev_b32 v2, 4, v1", "v_lshlrev_b32 v7, 11, v2",
                "v_and_b32 v2, 1, v2", "v_lshlrev_b32 v12, 2, v2",
                "v_bfe_u32 v2, v1, 2, 2", "v_lshl_add_u32 v7, v2, 8, v7",
                "v_add_u32 v12, v12, v2", "s_lshl_b32 s16, s23, 1", "v_xor_b32 v12, s16, v12",
                "v_lshl_add_u32 v7, v12, 5, v7", "v_and_b32 v2, 3, v1", "v_lshl_add_u32 v7, v2, 3, v7",
                "v_add_u32 v7, 16384, v7", "v_xor_b32 v11, 32, v7"]
    def reads():
        o = ["v_add_u32 v8, s50, v6", "v_add_u32 v9, s50, v7", "v_add_u32 v13, s50, v11"]
        for h in range(2):
            for u in range(2):
                for rd in range(2):
                    o.append(f"ds_read_b64_tr_b16 {vr(FW+(h*2+u)*4+2*rd,2)}, v{9 if u == 0 else 13} offset:{h*8192+rd*1024}")
        for t in range(8):
            o.append(f"ds_read_b128 {vr(FA+t*4,4)}, v8 offset:{t*1024}")
        if "nords" in exp: o = o[:3]
        return o + adv(50)
    def mm(first):
        o = []
        for t in range(8):
            for h in range(2):
                for u in range(2):
                    o.append(mfma16(acc(h, u, t), FW + (h * 2 + u) * 4, FA + t * 4, "0" if first else None))
        if "nomm" in exp: o = o[:1]
        return o
    a.I("s_cmp_ge_u32 s21, 28", "s_cbranch_scc1 K2_QSET")
    srd(a, 24, 8, 1024 * 3584 * 2); srd(a, 28, 10, 1024 * 3584 * 2)
    a.I("s_mov_b32 s40, 7168", "s_lshl_b32 s41, s21, 8", "s_mov_b32 s49, 0", "s_branch K2_SET")
    a.L("K2_QSET")
    srd(a, 24, 4, 1024 * 1024 * 2); srd(a, 28, 4, 1024 * 1024 * 2)
    a.I("s_mov_b32 s40, 2048", "s_sub_u32 s41, s21, 28", "s_lshl_b32 s41, s41, 9", "s_mov_b32 s49, 256")
    a.L("K2_SET")
    a.I("v_lshrrev_b32 v2, 4, v1", "s_lshl_b32 s16, s23, 3", "v_add_u32 v4, s16, v2", "v_mul_lo_u32 v4, v4, s40",
        "s_and_b32 s16, s23, 1", "s_lshl_b32 s16, s16, 2", "v_add_u32 v2, s16, v2",
        "v_bfe_u32 v5, v1, 1, 3", "v_xor_b32 v2, v2, v5", "v_lshl_add_u32 v4, v2, 5, v4",
        "v_and_b32 v2, 1, v1", "v_lshl_add_u32 v4, v2, 4, v4", "v_add_u32 v4, s41, v4",
        "s_lshl_b32 s16, s40, 2", "s_sub_u32 s16, s16, 1024", "v_add_u32 v5, s16, v4",
        "s_lshl_b32 s43, s40, 5",
        "s_lshl_b32 s46, s23, 11", "s_add_u32 s46, s46, 16384",
        "s_mov_b32 s48, 0", "s_mov_b32 s52, 0")
    SPLIT = "split" in exp
    PRIO = "prio" in exp
    hi = ["s_setprio 1"] if PRIO else []
    lo = ["s_setprio 0"] if PRIO else []
    def dma_wx(h, slotreg):
        srdw = "s[24:27]" if h == 0 else "s[28:31]"
        so = 48 + h
        return [f"s_add_u32 s16, s{slotreg}, s46"] + ([f"s_add_u32 s16, s16, 8192"] if h else []) + ["s_mov_b32 m0, s16", "s_nop 0",
                f"buffer_load_dwordx4 v4, {srdw}, s{so} offen lds",
                f"buffer_load_dwordx4 v5, {srdw}, s{so} offen offset:1024 lds",
                f"s_add_u32 s{so}, s{so}, s43"]
    def mixmem(rd, dm):
        if "nomix" in exp or not rd or not dm: return rd + dm
        groups = []; cur = []
        for x in dm:
            cur.append(x)
            if x.startswith("buffer"): groups.append(cur); cur = []
        groups[-1] += cur
        pre = [x for x in rd if x.startswith("v_")]; ds = [x for x in rd if x.startswith("ds_")]; post = [x for x in rd if x.startswith("s_")]
        o = list(pre); n = len(groups); per = len(ds) // n
        for g in range(n):
            o += groups[g] + ds[g * per:(g + 1) * per if g < n - 1 else len(ds)]
        return o + post
    def st(i, on): return [f"s_memtime s[{64+2*i}:{65+2*i}]"] if (on and STAMPS and "fine" in exp) else []
    a.I("s_cmp_ge_u32 s20, 4", "s_cbranch_scc1 K2_B")
    logA = []
    def issueA(kind, stage):
        if stage >= NST: return []
        logA.append((kind, stage))
        return (dma_act() + adv(47)) if kind == "a" else (dma_wx(1, 52) + adv(52))
    def cnt(log, stage):
        last = max([i for i, (k, s_) in enumerate(log) if s_ <= stage], default=-1)
        return 2 * (len(log) - 1 - last)
    for j in range(R):
        if SPLIT and j < R - 1: a.extend(issueA("w", j))
        a.extend(issueA("a", j))
    a.extend(rdaddr())
    a.I(f"s_waitcnt vmcnt({cnt(logA, 0)})", "s_barrier")
    a.extend(reads())
    a.I(f"s_waitcnt vmcnt({cnt(logA, 1)}) lgkmcnt(0)", "s_barrier")
    def bodyA(k, first=False, fs=False):
        o = st(1, fs) + lo + mm(first) + hi + st(2, fs)
        rd = reads() if k + 1 < NST else []
        dm = (issueA("w", k - 1 + R) if SPLIT else []) + issueA("a", k + R)
        o += mixmem(rd, dm) + st(3, fs) + st(4, fs)
        if k + 1 < NST:
            o += [f"s_waitcnt vmcnt({cnt(logA, k + 2)}) lgkmcnt(0)"] + st(5, fs) + ["s_barrier"] + st(6, fs)
        return o
    stamp(a, 1)
    a.extend(bodyA(0, True))
    stamp(a, 2)
    a.I(f"s_mov_b32 s51, {NST-R-1}")
    a.L("K2_A_LOOP")
    body = bodyA(1, fs=True)
    for k in range(2, NST - R): assert bodyA(k, fs=True) == body
    a.extend(body)
    a.I("s_sub_u32 s51, s51, 1", "s_cmp_lg_u32 s51, 0", "s_cbranch_scc1 K2_A_LOOP")
    stamp(a, 3)
    for k in range(NST - R, NST): a.extend(bodyA(k))
    a.I("s_branch K2_EPI")
    a.L("K2_B")
    logB = []
    def dmaB(stage):
        if stage >= NST: return []
        o = dma_wx(0, 47) + ([] if SPLIT else dma_wx(1, 47)) + dma_act() + adv(47)
        for _ in range(2 if SPLIT else 3): logB.append(("x", stage))
        if "nodma" in exp: o = [x for x in o if not x.startswith("buffer")]
        return o
    for j in range(R - 1): a.extend(dmaB(j))
    a.extend(rdaddr())
    a.I(f"s_waitcnt vmcnt({cnt(logB, 0)})", "s_barrier")
    a.I(f"s_waitcnt vmcnt({cnt(logB, 1)})", "s_barrier")
    def bodyB(k, first=False, fs=False):
        o = st(1, fs) + hi + mixmem(reads(), dmaB(k - 1 + R)) + st(2, fs)
        o += st(3, fs) + ["s_waitcnt lgkmcnt(0)"] + st(4, fs)
        o += lo + mm(first) + st(5, fs)
        if k + 1 < NST:
            o += [f"s_waitcnt vmcnt({cnt(logB, k + 2)})", "s_barrier"] + st(6, fs)
        return o
    stamp(a, 1)
    a.extend(bodyB(0, True))
    stamp(a, 2)
    a.I(f"s_mov_b32 s51, {NST-R}")
    a.L("K2_B_LOOP")
    body = bodyB(1, fs=True)
    for k in range(2, NST - R + 1): assert bodyB(k, fs=True) == body
    a.extend(body)
    a.I("s_sub_u32 s51, s51, 1", "s_cmp_lg_u32 s51, 0", "s_cbranch_scc1 K2_B_LOOP")
    stamp(a, 3)
    for k in range(NST - R + 1, NST): a.extend(bodyB(k))
    a.L("K2_EPI")
    stamp(a, 4)
    a.I("s_lshl_b32 s16, s22, 4", "s_lshr_b32 s17, s20, 2", "s_lshl_b32 s17, s17, 3", "s_add_u32 s16, s16, s17",
        "s_cmp_ge_u32 s21, 28", "s_cbranch_scc1 K2_EPQ")
    a.I("s_mul_i32 s17, s16, 112", "s_lshl_b32 s18, s21, 2", "s_add_u32 s17, s17, s18",
        "s_add_u32 s17, s17, s23", "s_lshl_b32 s17, s17, 10", f"s_add_u32 s17, s17, {WS_H}")
    for t in range(8):
        g, u = acc(0, 0, t), acc(1, 0, t)
        for i in range(8): a.I(f"v_max_f32 v{g+i}, 0, v{g+i}")
        for i in range(8): a.I(f"v_mul_f32 v{g+i}, v{g+i}, v{u+i}")
        for d in range(4): a.I(f"v_cvt_pk_bf16_f32 v{FA+4*t+d}, v{g+2*d}, v{g+2*d+1}")
        a.I(f"buffer_store_dwordx4 {vr(FA+4*t,4)}, v3, s[32:35], s17 offen", f"s_add_u32 s17, s17, {112*1024}")
    stamp(a, 5)
    if STAMPS: a.I("s_waitcnt vmcnt(0)")
    stamp(a, 6)
    stamp_dump(a, 7)
    tl_end(a, 1)
    a.I("s_endpgm")
    a.L("K2_EPQ")
    a.I("s_sub_u32 s17, s21, 28", "s_lshl_b32 s17, s17, 3", "s_add_u32 s17, s17, s23", "s_lshl_b32 s17, s17, 7",
        "s_add_u32 s17, s17, s16", "s_lshl_b32 s17, s17, 10", f"s_add_u32 s17, s17, {WS_Q}",
        f"s_add_u32 s19, s17, {4*128*1024}",
        f"s_mov_b32 s18, {f32(QSCALE)}")
    for t in range(8):
        for h in range(2):
            g = acc(h, 0, t)
            for i in range(8): a.I(f"v_mul_f32 v{g+i}, s18, v{g+i}")
            for d in range(4): a.I(f"v_cvt_pk_bf16_f32 v{g+d}, v{g+2*d}, v{g+2*d+1}")
            a.I(f"buffer_store_dwordx4 {vr(g,4)}, v3, s[32:35], s{17+2*h} offen offset:{(t&3)*1024}")
        if t == 3: a.I("s_add_u32 s17, s17, 4096", "s_add_u32 s19, s19, 4096")
    tl_end(a, 1)
    a.L("K2_END")
    a.I("s_endpgm")
    return a, dict(grid=256, block=512, lds=SLOT * R, vgpr=256)

def k3(exp=''):
    a = Asm()
    tl_start(a)
    stamp(a, 0)
    a.I("s_cmp_ge_u32 s2, 512", "s_cbranch_scc1 K3_END",
        f"s_load_dwordx2 s[6:7], s[0:1], {KA_WS}",
        f"s_load_dwordx2 s[8:9], s[0:1], {KA_WD}",
        "v_lshrrev_b32 v2, 6, v0", "v_and_b32 v1, 63, v0",
        "v_readfirstlane_b32 s20, v2",
        "v_lshlrev_b32 v3, 4, v1",
        "s_waitcnt lgkmcnt(0)")
    srd(a, 32, 6, WS_SIZE)
    a.I("s_cmp_ge_u32 s2, 256", "s_cbranch_scc1 K3_DOWN")
    attention(a, exp)
    a.L("K3_DOWN")
    down(a, exp)
    a.L("K3_END")
    a.I("s_endpgm")
    return a, dict(grid=512, block=256, lds=81920, vgpr=256)

def attention(a, exp):
    QR = [16, 24]; KB = [32, 48]; VB = [40, 56]; P = 64; SEL = 72; Lr = [76, 80]; S = [96, 112]; O = [128, 144]; C = [160, 176]
    if "noatt" in exp:
        a.I("s_endpgm"); return
    a.I("s_lshr_b32 s21, s2, 2", "s_and_b32 s22, s2, 3", "s_lshl_b32 s22, s22, 3", "s_lshl_b32 s16, s20, 1", "s_add_u32 s22, s22, s16",
        "v_bfe_u32 v2, v1, 4, 1", "v_lshlrev_b32 v4, 10, v2", "v_lshrrev_b32 v2, 5, v1", "v_lshl_add_u32 v4, v2, 8, v4",
        "v_and_b32 v2, 15, v1", "v_lshl_add_u32 v4, v2, 4, v4",
        "s_lshl_b32 s23, s20, 13", f"s_add_u32 s24, s23, {WS_KV}", "s_mov_b32 s25, s23")
    def dma_stage():
        o = []
        for g in range(2):
            o += [f"s_add_u32 m0, s25, {g*4096}", f"s_add_u32 s16, s24, {g*4096}"]
            o += [f"buffer_load_dwordx4 v3, s[32:35], s16 offen offset:{i*1024} lds" for i in range(4)]
        o += ["s_add_u32 s24, s24, 32768", "s_xor_b32 s25, s25, 32768"]
        return o
    a.I("s_lshl_b32 s16, s22, 7", "s_lshl_b32 s17, s21, 1", "s_add_u32 s16, s16, s17", "s_lshl_b32 s16, s16, 10",
        f"s_add_u32 s26, s16, {WS_Q}", f"s_add_u32 s27, s26, {128*1024}")
    a.extend(dma_stage())
    for b in range(2):
        for ks in range(2):
            a.I(f"buffer_load_dwordx4 {vr(QR[b]+4*ks,4)}, v4, s[32:35], s{26+b} offen offset:{ks*512}")
    a.extend(dma_stage())
    a.I("v_lshrrev_b32 v2, 2, v1", "v_lshrrev_b32 v5, 4, v1", "v_xor_b32 v2, v2, v5", "v_and_b32 v2, 1, v2",
        "v_cmp_eq_u32 vcc, 0, v2", "v_mov_b32 v5, 0x3f803f80", f"v_cndmask_b32 v{SEL}, 0, v5, vcc")
    for i in range(1, 4): a.I(f"v_mov_b32 v{SEL+i}, v{SEL}")
    for b in range(2):
        for i in range(16): a.I(f"v_mov_b32 v{O[b]+i}, 0")
        for i in range(4): a.I(f"v_mov_b32 v{Lr[b]+i}, 0")
    for i in range(4): a.I(f"v_mov_b32 v{P+4+i}, 0", f"v_mov_b32 v{VB[1]+4+i}, 0")
    a.I("v_mov_b32 v6, v4", "v_add_u32 v7, 2048, v3", "s_mov_b32 s28, 0")
    a.I("s_waitcnt vmcnt(8)", "s_barrier")
    def rdK(buf, off): return [f"ds_read_b128 {vr(KB[buf]+4*ks,4)}, v6 offset:{off+ks*512}" for ks in range(2)]
    def rdV(buf, off): return [f"ds_read_b128 {vr(VB[buf]+4*ks,4)}, v7 offset:{off+ks*1024}" for ks in range(2)]
    a.extend(rdK(0, 0) + rdV(0, 0))
    a.I("s_waitcnt lgkmcnt(0)")
    for b in range(2):
        a.I(mfma32(S[b], KB[0], QR[b], "0"), mfma32(S[b], KB[0] + 4, QR[b] + 4))
    for b in range(2):
        s0 = S[b]
        a.I(f"v_max3_f32 v8, v{s0}, v{s0+1}, v{s0+2}")
        for i in range(3, 15, 2): a.I(f"v_max3_f32 v8, v8, v{s0+i}, v{s0+i+1}")
        a.I(f"v_max_f32 v8, v8, v{s0+15}", "v_mov_b32 v9, v8", "v_permlane32_swap_b32 v8, v9", "v_max_f32 v8, v8, v9",
            f"v_sub_f32 v{C[b]}, 0, v8")
        for i in range(1, 16): a.I(f"v_mov_b32 v{C[b]+i}, v{C[b]}")
    a.I(mfma32(S[0], KB[0], QR[0], C[0]), mfma32(S[0], KB[0] + 4, QR[0] + 4))
    stamp(a, 1)
    def tile(b, kbuf_next, vbuf, vprev, extra):
        nb = 1 - b; s0 = S[b]
        ex = [f"v_exp_f32 v{s0+i}, v{s0+i}" for i in range(16)]
        cv = [f"v_cvt_pk_bf16_f32 v{P+d}, v{s0+2*d}, v{s0+2*d+1}" for d in range(8)]
        e = list(extra) + [None] * 4
        o = [mfma32(S[nb], KB[kbuf_next], QR[nb], C[nb])] + ex[0:3]
        o += [mfma32(O[nb], VB[vprev] + 4, P + 4)] + ex[3:6]
        o += [mfma16(Lr[nb], SEL, P + 4)] + ex[6:8] + [e[0]]
        o += [mfma32(S[nb], KB[kbuf_next] + 4, QR[nb] + 4), cv[0], cv[1], ex[8], e[1], cv[2], cv[3], ex[9], ex[10]]
        o += [mfma32(O[b], VB[vbuf], P)] + ex[11:14] + [e[2]]
        o += [mfma16(Lr[b], SEL, P), ex[14], ex[15], e[3]] + cv[4:8]
        return [x for x in o if x]
    a.I("s_nop 11")
    a.L("K3A_LOOP")
    a.extend(tile(0, 0, 0, 1, rdK(1, 4096) + rdV(1, 4096)))
    a.I("s_waitcnt lgkmcnt(0)")
    a.extend(tile(1, 1, 0, 0, []))
    a.I("s_and_b32 s16, s28, 3", "s_cmp_lg_u32 s16, 3", "s_cbranch_scc1 K3A_NOBAR",
        "s_cmp_eq_u32 s28, 31", "s_cbranch_scc1 K3A_NOBAR",
        "s_waitcnt vmcnt(0)", "s_barrier",
        "s_cmp_ge_u32 s28, 24", "s_cbranch_scc1 K3A_NOBAR")
    a.extend(dma_stage())
    a.L("K3A_NOBAR")
    a.I("v_add_u32 v6, 8192, v6", "v_add_u32 v7, 8192, v7", "v_and_b32 v6, 0xffff, v6", "v_and_b32 v7, 0xffff, v7")
    a.extend(tile(0, 1, 1, 0, rdK(0, 0) + rdV(0, 0)))
    a.I("s_waitcnt lgkmcnt(0)")
    a.extend(tile(1, 0, 1, 1, []))
    a.I("s_add_u32 s28, s28, 1", "s_cmp_lg_u32 s28, 32", "s_cbranch_scc1 K3A_LOOP")
    a.I(mfma32(O[1], VB[1] + 4, P + 4), mfma16(Lr[1], SEL, P + 4))
    stamp(a, 2)
    a.I(f"s_mov_b32 s16, {f32(2.0**100)}", "s_nop 7")
    a.I(f"v_max_f32 v8, v{Lr[0]}, v{Lr[1]}")
    for b in range(2):
        for i in range(0, 16, 2): a.I(f"v_max3_f32 v8, v8, abs(v{O[b]+i}), abs(v{O[b]+i+1})")
    a.I(f"v_add_f32 v9, v{Lr[0]}, v{Lr[1]}")
    for b in range(2):
        for i in range(16): a.I(f"v_add_f32 v9, v9, v{O[b]+i}")
    a.I("v_cmp_nlt_f32 vcc, v8, s16", "v_cmp_u_f32 s[18:19], v9, v9", "s_or_b64 vcc, vcc, s[18:19]")
    if "force" in exp: a.I("s_mov_b64 vcc, -1")
    a.I("s_cbranch_vccz K3A_FIN")
    for b in range(2):
        M = 10; AL = 11
        for i in range(16): a.I(f"v_mov_b32 v{O[b]+i}, 0")
        for i in range(4): a.I(f"v_mov_b32 v{Lr[b]+i}, 0")
        a.I(f"v_mov_b32 v{M}, {f32(-3.0e38)}", f"s_mov_b32 s29, {WS_KV}")
        a.L(f"K3A_FB{b}")
        for ks in range(2):
            a.I(f"buffer_load_dwordx4 {vr(KB[0]+4*ks,4)}, v4, s[32:35], s29 offen offset:{ks*512}",
                f"buffer_load_dwordx4 {vr(VB[0]+4*ks,4)}, v3, s[32:35], s29 offen offset:{2048+ks*1024}")
        a.I("s_waitcnt vmcnt(0)")
        s0 = S[0]
        a.I(mfma32(s0, KB[0], QR[b], "0"), mfma32(s0, KB[0] + 4, QR[b] + 4))
        a.I(f"v_max3_f32 v8, v{s0}, v{s0+1}, v{M}")
        for i in range(2, 16, 2): a.I(f"v_max3_f32 v8, v8, v{s0+i}, v{s0+i+1}")
        a.I("v_mov_b32 v9, v8", "v_permlane32_swap_b32 v8, v9", "v_max_f32 v8, v8, v9",
            f"v_sub_f32 v{AL}, v{M}, v8", f"v_exp_f32 v{AL}, v{AL}", f"v_mov_b32 v{M}, v8")
        for i in range(16): a.I(f"v_sub_f32 v{s0+i}, v{s0+i}, v8")
        for i in range(16): a.I(f"v_exp_f32 v{s0+i}, v{s0+i}")
        for i in range(16): a.I(f"v_mul_f32 v{O[b]+i}, v{O[b]+i}, v{AL}")
        for i in range(4): a.I(f"v_mul_f32 v{Lr[b]+i}, v{Lr[b]+i}, v{AL}")
        for d in range(8): a.I(f"v_cvt_pk_bf16_f32 v{P+d}, v{s0+2*d}, v{s0+2*d+1}")
        a.I(mfma32(O[b], VB[0], P), mfma16(Lr[b], SEL, P), mfma32(O[b], VB[0] + 4, P + 4), mfma16(Lr[b], SEL, P + 4))
        a.I("s_add_u32 s29, s29, 4096", f"s_cmp_lg_u32 s29, {WS_KV + 64*4096}", f"s_cbranch_scc1 K3A_FB{b}")
    a.L("K3A_FIN")
    a.I("v_bfe_u32 v2, v1, 4, 1", "v_lshlrev_b32 v5, 15, v2", "v_lshrrev_b32 v2, 5, v1", "v_lshl_add_u32 v5, v2, 8, v5",
        "v_and_b32 v2, 15, v1", "v_lshl_add_u32 v5, v2, 4, v5",
        "s_lshl_b32 s16, s21, 6", "s_add_u32 s16, s16, s22", "s_lshl_b32 s16, s16, 10", f"s_add_u32 s16, s16, {WS_O}")
    for b in range(2):
        a.I(f"v_rcp_f32 v{8+b}, v{Lr[b]}")
    for b in range(2):
        for i in range(16): a.I(f"v_mul_f32 v{O[b]+i}, v{O[b]+i}, v{8+b}")
        for d in range(8): a.I(f"v_cvt_pk_bf16_f32 v{S[b]+d}, v{O[b]+2*d}, v{O[b]+2*d+1}")
        for ks in range(2):
            a.I(f"buffer_store_dwordx4 {vr(S[b]+4*ks,4)}, v5, s[32:35], s16 offen offset:{b*1024+ks*512}")
    stamp(a, 3)
    stamp_dump(a, 4, wgs=(0, 100))
    tl_end(a, 2)
    a.I("s_endpgm")

def ring_gemm(a, pfx, NST, R, SLOT, ndma, dma_fn, read_fn, mm_fn, exp, first_zero=True):
    for j in range(R - 1): a.extend(dma_fn())
    a.I(f"s_waitcnt vmcnt({ndma*(R-2)})", "s_barrier")
    a.extend(read_fn(0))
    issued = R - 1
    def body(k, first):
        nonlocal issued
        o = []
        buf = k & 1
        if k + 1 < NST:
            o += [f"s_waitcnt vmcnt({ndma*max(0, min(issued, NST) - 1 - (k + 1))}) lgkmcnt(0)", "s_barrier"]
            dm = dma_fn() if issued < NST else []
            issued += 1
            fill = mix2(read_fn(1 - buf), dm)
        else:
            o += ["s_waitcnt lgkmcnt(0)"]; fill = []
        m = mm_fn(buf, first)
        o += interleave(m, fill, front_pattern(len(m), len(fill)))
        return o
    a.extend(body(0, first_zero)); a.extend(body(1, False))
    nloop = (NST - R - 1) // 2
    b2 = body(2, False) + body(3, False)
    for k in range(4, 2 + 2 * nloop, 2): assert body(k, False) + body(k + 1, False) == b2
    a.I(f"s_mov_b32 s51, {nloop}")
    a.L(pfx + "_LOOP")
    a.extend(b2)
    a.I("s_sub_u32 s51, s51, 1", "s_cmp_lg_u32 s51, 0", f"s_cbranch_scc1 {pfx}_LOOP")
    for k in range(2 + 2 * nloop, NST): a.extend(body(k, False))

def mix2(rd, dm):
    if not dm: return rd
    groups = []; cur = []
    for x in dm:
        cur.append(x)
        if x.startswith("buffer"): groups.append(cur); cur = []
    groups[-1] += cur
    pre = [x for x in rd if x.startswith("v_")]; ds = [x for x in rd if x.startswith("ds_")]; post = [x for x in rd if x.startswith("s_")]
    o = list(pre); n = len(groups); per = len(ds) // n
    for g in range(n):
        o += ds[g * per:(g + 1) * per if g < n - 1 else len(ds)] + groups[g]
    return o + post

def front_pattern(n, f):
    m = max(1, (3 * n) // 4)
    return [(f * (i + 1)) // m - (f * i) // m if i < m else 0 for i in range(n)]

def down(a, exp):
    if "nodown" in exp:
        a.I("s_endpgm"); return
    R = 5; SLOT = 16384; NST = 56
    FA = [64, 96]; FW = [80, 112]; ACC = 128
    M32 = "d32" in exp
    if "dprio" in exp: a.I("s_setprio 1")
    srd(a, 24, 8, 3584 * 1024 * 2)
    a.I("s_and_b32 s21, s2, 1",
        "s_bfe_u32 s16, s2, 0x10001", "s_lshl_b32 s16, s16, 3", "s_bfe_u32 s17, s2, 0x30003", "s_add_u32 s22, s16, s17",
        "s_bfe_u32 s16, s2, 0x10002", "s_lshl_b32 s16, s16, 2", "s_bfe_u32 s17, s2, 0x20006", "s_add_u32 s23, s16, s17",
        "s_lshl_b32 s16, s22, 3", "s_lshl_b32 s17, s20, 1", "s_add_u32 s16, s16, s17", "s_mul_i32 s16, s16, 112",
        "s_mul_i32 s17, s21, 56", "s_add_u32 s16, s16, s17", "s_lshl_b32 s44, s16, 10", f"s_add_u32 s44, s44, {WS_H}",
        f"v_add_u32 v10, {112*1024-1024}, v3",
        "s_lshl_b32 s45, s20, 11",
        "s_add_u32 s46, s45, 8192",
        "v_lshrrev_b32 v2, 4, v1", "s_lshl_b32 s16, s20, 3", "v_add_u32 v4, s16, v2", "v_lshlrev_b32 v4, 11, v4",
        "v_bfe_u32 v5, v1, 1, 3")
    if M32:
        a.I("v_lshlrev_b32 v6, 1, v2", "v_xor_b32 v6, v6, v5", "v_mov_b32 v7, v6")
    else:
        a.I("v_xor_b32 v6, v2, v5", "v_xor_b32 v7, 4, v6")
    a.I("v_and_b32 v2, 1, v1", "v_lshl_add_u32 v4, v2, 4, v4", "s_lshl_b32 s16, s23, 8", "v_add_u32 v4, s16, v4",
        f"v_add_u32 v5, {4*2048-1024}, v4",
        "v_lshl_add_u32 v4, v6, 5, v4", "v_lshl_add_u32 v5, v7, 5, v5",
        "s_mul_i32 s48, s21, %d" % (1792 * 2048),
        "s_mov_b32 s47, 0", "s_mov_b32 s50, 0",
        "s_and_b32 s40, s20, 1", "s_lshr_b32 s41, s20, 1")
    if M32:
        a.I("v_bfe_u32 v2, v1, 4, 1", "v_lshlrev_b32 v6, 10, v2", "v_lshrrev_b32 v8, 5, v1", "v_lshl_add_u32 v6, v8, 8, v6",
            "v_and_b32 v9, 15, v1", "v_lshl_add_u32 v6, v9, 4, v6", "s_lshl_b32 s16, s41, 12", "v_add_u32 v6, s16, v6",
            "v_lshlrev_b32 v7, 10, v8", "v_bfe_u32 v9, v1, 2, 2", "v_lshl_add_u32 v7, v9, 8, v7",
            "v_lshlrev_b32 v9, 1, v9", "s_lshl_b32 s16, s40, 2", "v_xor_b32 v9, s16, v9", "v_xor_b32 v9, v9, v2",
            "v_lshl_add_u32 v7, v9, 5, v7", "v_and_b32 v9, 3, v1", "v_lshl_add_u32 v7, v9, 3, v7", "v_add_u32 v7, 8192, v7",
            "v_xor_b32 v11, 64, v7")
    else:
        a.I("s_lshl_b32 s16, s41, 12", "v_add_u32 v6, s16, v3",
            "v_lshrrev_b32 v2, 4, v1", "v_lshlrev_b32 v7, 10, v2", "v_bfe_u32 v9, v1, 2, 2", "v_lshl_add_u32 v7, v9, 8, v7",
            "v_bfe_u32 v8, v1, 2, 3", "s_lshl_b32 s16, s40, 2", "v_xor_b32 v8, s16, v8",
            "v_lshl_add_u32 v7, v8, 5, v7", "v_and_b32 v9, 3, v1", "v_lshl_add_u32 v7, v9, 3, v7", "v_add_u32 v7, 8192, v7")
    def adv(reg): return [f"s_add_u32 s{reg}, s{reg}, {SLOT}", f"s_cmp_eq_u32 s{reg}, {SLOT*R}", f"s_cselect_b32 s{reg}, 0, s{reg}"]
    def dma():
        return ["s_add_u32 m0, s47, s46", "s_nop 0",
                "buffer_load_dwordx4 v4, s[24:27], s48 offen lds", "buffer_load_dwordx4 v5, s[24:27], s48 offen offset:1024 lds",
                "s_add_u32 s48, s48, 65536", "s_add_u32 m0, s47, s45", "s_nop 0",
                "buffer_load_dwordx4 v3, s[32:35], s44 offen lds", "buffer_load_dwordx4 v10, s[32:35], s44 offen offset:1024 lds",
                "s_add_u32 s44, s44, 1024"] + adv(47)
    if M32:
        def reads(buf):
            o = ["v_add_u32 v12, s50, v6", "v_add_u32 v13, s50, v7", "v_add_u32 v14, s50, v11"]
            for ks in range(2):
                for nb in range(2):
                    for rd in range(2):
                        o.append(f"ds_read_b64_tr_b16 {vr(FW[buf]+(ks*2+nb)*4+2*rd,2)}, v{13+nb} offset:{ks*2048+rd*4096}")
                for tb in range(2):
                    o.append(f"ds_read_b128 {vr(FA[buf]+(ks*2+tb)*4,4)}, v12 offset:{tb*2048+ks*512}")
            return o + adv(50)
        def mm(buf, first):
            return [mfma32(ACC + (tb * 2 + nb) * 16, FW[buf] + (ks * 2 + nb) * 4, FA[buf] + (ks * 2 + tb) * 4, "0" if (first and ks == 0) else None)
                    for ks in range(2) for tb in range(2) for nb in range(2)]
    else:
        def reads(buf):
            o = ["v_add_u32 v12, s50, v6", "v_add_u32 v13, s50, v7", "v_xor_b32 v14, 32, v13", "v_xor_b32 v15, 64, v13", "v_xor_b32 v16, 96, v13"]
            for u in range(4):
                for rd in range(2):
                    o.append(f"ds_read_b64_tr_b16 {vr(FW[buf]+u*4+2*rd,2)}, v{13+u} offset:{rd*4096}")
            for t in range(4):
                o.append(f"ds_read_b128 {vr(FA[buf]+t*4,4)}, v12 offset:{t*1024}")
            return o + adv(50)
        def mm(buf, first):
            return [mfma16(ACC + (t * 4 + u) * 4, FW[buf] + u * 4, FA[buf] + t * 4, "0" if first else None) for t in range(4) for u in range(4)]
    stamp(a, 1)
    ring_gemm(a, "K3D", NST, R, SLOT, 4, dma, reads, mm, exp)
    stamp(a, 2)
    a.I("s_lshl_b32 s16, s22, 3", "s_lshl_b32 s17, s41, 2", "s_add_u32 s16, s16, s17", "s_lshl_b32 s16, s16, 5",
        "s_lshl_b32 s17, s23, 2", "s_add_u32 s16, s16, s17", "s_lshl_b32 s17, s40, 1", "s_add_u32 s16, s16, s17",
        "s_lshl_b32 s16, s16, 10", "s_lshl_b32 s17, s21, 22", "s_add_u32 s16, s16, s17", f"s_add_u32 s16, s16, {WS_P}")
    if M32:
        a.I("v_bfe_u32 v2, v1, 4, 1", "v_lshlrev_b32 v5, 15, v2", "v_lshrrev_b32 v2, 5, v1", "v_lshl_add_u32 v5, v2, 8, v5",
            "v_and_b32 v2, 15, v1", "v_lshl_add_u32 v5, v2, 4, v5")
        for tb in range(2):
            for nb in range(2):
                g = ACC + (tb * 2 + nb) * 16; pk = 64 + (tb * 2 + nb) * 8
                for e in range(2):
                    a.I(f"v_cvt_pk_bf16_f32 v{pk+4*e}, v{g+4*e}, v{g+4*e+1}", f"v_cvt_pk_bf16_f32 v{pk+4*e+1}, v{g+4*e+2}, v{g+4*e+3}",
                        f"v_cvt_pk_bf16_f32 v{pk+4*e+2}, v{g+8+4*e}, v{g+8+4*e+1}", f"v_cvt_pk_bf16_f32 v{pk+4*e+3}, v{g+8+4*e+2}, v{g+8+4*e+3}",
                        f"buffer_store_dwordx4 {vr(pk+4*e,4)}, v5, s[32:35], s16 offen offset:{nb*1024+e*512}")
            a.I("s_add_u32 s16, s16, 65536")
    else:
        for t in range(4):
            for nb in range(2):
                g = ACC + (t * 4 + nb * 2) * 4; pk = 64 + (t * 2 + nb) * 4
                for d in range(4): a.I(f"v_cvt_pk_bf16_f32 v{pk+d}, v{g+2*d}, v{g+2*d+1}")
                a.I(f"buffer_store_dwordx4 {vr(pk,4)}, v3, s[32:35], s16 offen offset:{nb*1024}")
            a.I("s_add_u32 s16, s16, 32768")
    stamp(a, 3)
    stamp_dump(a, 4, wgs=(256, 356)) if False else None
    tl_end(a, 2)

def k4(exp=''):
    a = Asm()
    R = 6; SLOT = 24576; NST = 16
    FA = [64, 112]; FW = [96, 144]; ACC = 160
    tl_start(a)
    a.I("s_cmp_ge_u32 s2, 256", "s_cbranch_scc1 K4_END",
        f"s_load_dwordx2 s[6:7], s[0:1], {KA_WS}", f"s_load_dwordx2 s[8:9], s[0:1], {KA_WO}",
        f"s_load_dwordx2 s[10:11], s[0:1], {KA_X}", f"s_load_dwordx2 s[12:13], s[0:1], {KA_OUT}",
        "v_lshrrev_b32 v2, 6, v0", "v_and_b32 v1, 63, v0", "v_readfirstlane_b32 s20, v2", "v_lshlrev_b32 v3, 4, v1",
        "s_bfe_u32 s16, s2, 0x20001", "s_lshl_b32 s16, s16, 2", "s_bfe_u32 s17, s2, 0x20003", "s_add_u32 s22, s16, s17",
        "s_and_b32 s16, s2, 1", "s_lshl_b32 s16, s16, 3", "s_lshr_b32 s17, s2, 5", "s_add_u32 s23, s16, s17",
        "s_lshl_b32 s16, s22, 3", "s_lshl_b32 s17, s20, 1", "s_add_u32 s16, s16, s17", "s_lshl_b32 s44, s16, 15",
        f"s_add_u32 s44, s44, {WS_O}", f"v_add_u32 v10, {32768-2048}, v3",
        "s_lshl_b32 s45, s20, 12",
        "s_lshl_b32 s46, s20, 11", "s_add_u32 s46, s46, 16384",
        "v_lshrrev_b32 v2, 3, v1", "s_lshl_b32 s16, s20, 4", "v_add_u32 v4, s16, v2", "v_lshlrev_b32 v4, 11, v4",
        "v_lshrrev_b32 v2, 4, v1", "v_bfe_u32 v5, v1, 1, 2", "v_xor_b32 v2, v2, v5", "v_lshl_add_u32 v4, v2, 5, v4",
        "v_and_b32 v2, 1, v1", "v_lshl_add_u32 v4, v2, 4, v4", "s_lshl_b32 s16, s23, 7", "v_add_u32 v4, s16, v4",
        f"v_add_u32 v5, {8*2048-1024}, v4",
        "s_mov_b32 s48, 0", "s_mov_b32 s47, 0", "s_mov_b32 s50, 0",
        "s_and_b32 s40, s20, 1", "s_lshr_b32 s41, s20, 1",
        "s_waitcnt lgkmcnt(0)")
    srd(a, 32, 6, WS_SIZE); srd(a, 24, 8, 1024 * 1024 * 2)
    def adv(reg): return [f"s_add_u32 s{reg}, s{reg}, {SLOT}", f"s_cmp_eq_u32 s{reg}, {SLOT*R}", f"s_cselect_b32 s{reg}, 0, s{reg}"]
    def dma():
        return ["s_add_u32 m0, s47, s46", "s_nop 0",
                "buffer_load_dwordx4 v4, s[24:27], s48 offen lds", "buffer_load_dwordx4 v5, s[24:27], s48 offen offset:1024 lds",
                f"s_add_u32 s48, s48, {64*2048}", "s_add_u32 m0, s47, s45", "s_nop 0",
                "buffer_load_dwordx4 v3, s[32:35], s44 offen lds", "buffer_load_dwordx4 v3, s[32:35], s44 offen offset:1024 lds",
                "buffer_load_dwordx4 v10, s[32:35], s44 offen offset:2048 lds", "buffer_load_dwordx4 v10, s[32:35], s44 offen offset:3072 lds",
                "s_add_u32 s44, s44, 2048"] + adv(47)
    srd(a, 28, 10, 2048 * 2048); srd(a, 36, 12, 2048 * 2048)
    a.I("v_and_b32 v2, 15, v1", "v_lshlrev_b32 v17, 11, v2", "v_bfe_u32 v2, v1, 4, 1", "v_lshl_add_u32 v17, v2, 5, v17",
        "v_lshrrev_b32 v2, 5, v1", "v_lshl_add_u32 v17, v2, 4, v17",
        "s_lshl_b32 s16, s22, 1", "s_add_u32 s16, s16, s41", "s_lshl_b32 s42, s16, 17",
        "s_lshl_b32 s16, s23, 1", "s_add_u32 s16, s16, s40", "s_lshl_b32 s17, s16, 6", "s_add_u32 s42, s42, s17",
        "s_lshl_b32 s17, s22, 3", "s_lshl_b32 s18, s41, 2", "s_add_u32 s17, s17, s18", "s_lshl_b32 s17, s17, 5",
        "s_add_u32 s17, s17, s16", "s_lshl_b32 s43, s17, 10", f"s_add_u32 s43, s43, {WS_P}")
    XR, P0, P1 = 192, 208, 224
    a.extend(dma())
    for t in range(4):
        a.I(f"s_add_u32 s16, s42, {t*32768}", f"s_add_u32 s17, s43, {t*32768}", f"s_add_u32 s18, s17, {4<<20}",
            f"buffer_load_dwordx4 {vr(XR+4*t,4)}, v17, s[28:31], s16 offen",
            f"buffer_load_dwordx4 {vr(P0+4*t,4)}, v3, s[32:35], s17 offen",
            f"buffer_load_dwordx4 {vr(P1+4*t,4)}, v3, s[32:35], s18 offen")
    a.I("s_lshl_b32 s16, s41, 13", "v_add_u32 v6, s16, v3",
        "v_lshrrev_b32 v2, 5, v1", "v_lshlrev_b32 v7, 11, v2", "v_bfe_u32 v8, v1, 2, 3", "v_lshl_add_u32 v7, v8, 7, v7",
        "v_lshrrev_b32 v8, 1, v8", "s_lshl_b32 s16, s40, 1", "v_xor_b32 v8, s16, v8", "v_lshl_add_u32 v7, v8, 5, v7",
        "v_and_b32 v8, 3, v1", "v_lshl_add_u32 v7, v8, 3, v7", "v_add_u32 v7, 16384, v7",
        "s_mov_b32 s19, 0xffff0000")
    def reads(buf):
        o = ["v_add_u32 v12, s50, v6", "v_add_u32 v13, s50, v7", "v_xor_b32 v14, 32, v13"]
        for kb in range(2):
            for u in range(2):
                for rd in range(2):
                    o.append(f"ds_read_b64_tr_b16 {vr(FW[buf]+(kb*2+u)*4+2*rd,2)}, v{13+u} offset:{kb*4096+rd*1024}")
            for t in range(4):
                o.append(f"ds_read_b128 {vr(FA[buf]+(kb*4+t)*4,4)}, v12 offset:{t*2048+kb*1024}")
        return o + adv(50)
    def mm(buf, first):
        return [mfma16(ACC + (t * 2 + u) * 4, FW[buf] + (kb * 2 + u) * 4, FA[buf] + (kb * 4 + t) * 4)
                for kb in range(2) for t in range(4) for u in range(2)]
    class Hook:
        n = 0
    def dma2():
        Hook.n += 1
        if Hook.n == 1: return []
        o = dma()
        if Hook.n == R - 1:
            o = o + [f"s_waitcnt vmcnt({6*(R-2)})"]
            for t in range(4):
                o += [f"v_permlane16_swap_b32 v{XR+4*t}, v{XR+4*t+2}", f"v_permlane16_swap_b32 v{XR+4*t+1}, v{XR+4*t+3}"]
            for t in range(4):
                for d in range(4):
                    g = ACC + t * 8 + 2 * d
                    o += [f"v_lshlrev_b32 v{g}, 16, v{XR+4*t+d}", f"v_and_b32 v{g+1}, s19, v{XR+4*t+d}",
                          f"v_lshlrev_b32 v18, 16, v{P0+4*t+d}", f"v_and_b32 v19, s19, v{P0+4*t+d}",
                          f"v_lshlrev_b32 v20, 16, v{P1+4*t+d}", f"v_and_b32 v21, s19, v{P1+4*t+d}",
                          f"v_add_f32 v18, v18, v20", f"v_add_f32 v19, v19, v21",
                          f"v_add_f32 v{g}, v{g}, v18", f"v_add_f32 v{g+1}, v{g+1}, v19"]
        return o
    ring_gemm(a, "K4", NST, R, SLOT, 6, dma2, reads, mm, exp, first_zero=False)
    for t in range(4):
        g = ACC + t * 8; pk = 64 + 4 * t
        for d in range(4): a.I(f"v_cvt_pk_bf16_f32 v{pk+d}, v{g+2*d}, v{g+2*d+1}")
        a.I(f"v_permlane16_swap_b32 v{pk}, v{pk+2}", f"v_permlane16_swap_b32 v{pk+1}, v{pk+3}",
            f"buffer_store_dwordx4 {vr(pk,4)}, v17, s[36:39], s42 offen", "s_add_u32 s42, s42, 32768")
    tl_end(a, 3)
    a.L("K4_END")
    a.I("s_endpgm")
    return a, dict(grid=256, block=256, lds=SLOT * R, vgpr=240)

def build(kernels, path):
    hdr = open("cdna_kernels/" + NAME + ".s.ref").read().split("; Override launch")[0]
    out = hdr
    for nm, (a, p) in kernels:
        out += f"; @launch kernel={nm}_kernel grid=({p['grid']},1,1) block=({p['block']},1,1) lds={p['lds']}\n"
    out += '.amdgcn_target "amdgcn-amd-amdhsa--gfx950"\n.text\n'
    for nm, (a, p) in kernels:
        a.fix(name=nm, verbose=VERB)
        out += f".globl {nm}_kernel\n.p2align 8\n.type {nm}_kernel,@function\n{nm}_kernel:\n" + a.text()
    out += '.section .rodata,"a"\n'
    for nm, (a, p) in kernels:
        v = p["vgpr"]
        out += f""".p2align 6
.amdhsa_kernel {nm}_kernel
  .amdhsa_next_free_vgpr {v}
  .amdhsa_next_free_sgpr 102
  .amdhsa_accum_offset {(v+3)//4*4}
  .amdhsa_group_segment_fixed_size 0
  .amdhsa_kernarg_size 96
  .amdhsa_user_sgpr_count 2
  .amdhsa_user_sgpr_kernarg_segment_ptr 1
  .amdhsa_system_sgpr_workgroup_id_x 1
.end_amdhsa_kernel
"""
    open(path, "w").write(out)

VERB = True
if __name__ == "__main__":
    path = sys.argv[1] if len(sys.argv) > 1 else "cdna_kernels/" + NAME + ".s"
    opts = dict(o.split("=") for o in sys.argv[2:])
    STAMPS = bool(int(opts.get("stamps", 0)))
    VERB = bool(int(opts.get("verb", 0)))
    FINE = "fine" in opts.get("exp", "")
    TL = bool(int(opts.get("tl", 0)))
    ex = opts.get("exp", "")
    ks = [("ln_kv", k1()), ("gemm1", k2(R=int(opts.get("R", 5)), exp=ex)), ("attn_down", k3(ex)), ("wo_out", k4(ex))]
    build(ks, path)
```

```python
import sys, struct, math
from asmlib import *

NAME = "parallel_sum__grouped_kv_mqa__glu_gated_reglu__prompt"
KA_X, KA_WQ, KA_WK, KA_WV, KA_WO, KA_BX, KA_WG, KA_WU, KA_WD, KA_OUT, KA_DBG, KA_WS = [8 * i for i in range(12)]
WS_XN = 0x0000000
WS_KV = 0x0400000
WS_Q  = 0x0500000
WS_O  = 0x0900000
WS_H  = 0x1000000
WS_P  = 0x2000000
WS_SIZE = 0x4000000

def f32(x): return "0x%08x" % struct.unpack("<I", struct.pack("<f", x))[0]
def vr(a, n=1): return f"v{a}" if n == 1 else f"v[{a}:{a+n-1}]"
def sr(a, n=1): return f"s{a}" if n == 1 else f"s[{a}:{a+n-1}]"

def srd(a, dst, base, size):
    a.I(f"s_mov_b32 s{dst}, s{base}", f"s_mov_b32 s{dst+1}, s{base+1}",
        f"s_mov_b32 s{dst+2}, {size:#x}", f"s_mov_b32 s{dst+3}, 0x20000")

def mfma32(d, A, B, C=None):
    c = vr(d, 16) if C is None else (C if isinstance(C, str) else vr(C, 16))
    return f"v_mfma_f32_32x32x16_bf16 {vr(d,16)}, {vr(A,4)}, {vr(B,4)}, {c}"
def mfma16(d, A, B, C=None):
    c = vr(d, 4) if C is None else (C if isinstance(C, str) else vr(C, 4))
    return f"v_mfma_f32_16x16x32_bf16 {vr(d,4)}, {vr(A,4)}, {vr(B,4)}, {c}"

STAMPS = False
TL = False
def tl_start(a):
    if TL: a.I("s_memrealtime s[96:97]")
def tl_end(a, kidx, wave_sgpr=20, ws_srd=32):
    if not TL: return
    lab = f"TLE{kidx}_{len(a.items)}"
    a.I("s_waitcnt vmcnt(0)", "s_memrealtime s[98:99]", "s_waitcnt lgkmcnt(0)",
        f"s_lshl_b32 s100, s2, 3", f"s_add_u32 s100, s100, s{wave_sgpr}", "s_lshl_b32 s100, s100, 3",
        f"s_add_u32 s100, s100, {0x3F00000 + kidx * 0x10000}",
        "v_mov_b32 v2, s96", "v_mov_b32 v3, s98", "v_mov_b32 v1, 0", "s_mov_b64 exec, 1",
        f"buffer_store_dwordx2 v[2:3], v1, s[{ws_srd}:{ws_srd+3}], s100 offen")
FINE = False
def stamp(a, i):
    if STAMPS and (i == 0 or not FINE):
        a.I(f"s_memtime s[{64+2*i}:{65+2*i}]")
        if i == 0: a.I("s_memrealtime s[84:85]")
def stamp_dump(a, n, wave_sgpr=20, wgs=(0, 100)):
    if not STAMPS: return
    lab = f"STD{len(a.items)}"
    a.I("s_memrealtime s[86:87]", f"s_load_dwordx2 s[88:89], s[0:1], {KA_DBG}", "s_waitcnt vmcnt(0) lgkmcnt(0)")
    a.I("s_mov_b32 s92, s88", "s_mov_b32 s93, s89", "s_mov_b32 s94, 256", "s_mov_b32 s95, 0x20000")
    a.I(f"s_and_b32 s90, s{wave_sgpr}, 3", "s_cmp_lg_u32 s90, 0", f"s_cbranch_scc1 {lab}")
    a.I(f"s_mov_b32 s91, {0 if wgs[0] < 256 else 128}", f"s_cmp_eq_u32 s2, {wgs[0]}", f"s_cbranch_scc1 {lab}_W",
        f"s_mov_b32 s91, 128", f"s_cmp_eq_u32 s2, {wgs[1]}", f"s_cbranch_scc0 {lab}")
    a.L(lab + "_W")
    a.I(f"s_lshl_b32 s90, s{wave_sgpr}, 4", "s_add_u32 s91, s91, s90", "v_mov_b32 v1, 0")
    for i in range(n):
        a.I(f"s_sub_u32 s90, s{64+2*i}, s64") if i else a.I("s_mov_b32 s90, s64")
        a.I("v_mov_b32 v2, s90", f"buffer_store_dword v2, v1, s[92:95], s91 offen offset:{4*i}")
    a.I("s_sub_u32 s90, s86, s84", "v_mov_b32 v2, s90", f"buffer_store_dword v2, v1, s[92:95], s91 offen offset:{4*n}")
    a.I("v_mov_b32 v2, s84", f"buffer_store_dword v2, v1, s[92:95], s91 offen offset:{4*n+4}")
    a.L(lab)


def k1(exp=""):
    a = Asm()
    if "k1delay" in exp:
        a.I("s_sleep 64", "s_sleep 16")
    LW, LX, LR = 0, 65536, 98304
    tl_start(a)
    a.I("s_cmp_ge_u32 s2, 256", "s_cbranch_scc1 K1_END",
        f"s_load_dwordx2 s[4:5], s[0:1], {KA_X}",
        f"s_load_dwordx4 s[8:11], s[0:1], {KA_WK}",
        f"s_load_dwordx2 s[6:7], s[0:1], {KA_WS}",
        "v_lshrrev_b32 v2, 6, v0", "v_and_b32 v1, 63, v0",
        "v_readfirstlane_b32 s20, v2",
        "s_lshr_b32 s21, s2, 1",
        "s_and_b32 s22, s2, 1",
        "v_lshlrev_b32 v3, 4, v1",
        "s_lshl_b32 s23, s21, 15",
        "s_lshl_b32 s16, s20, 12",
        "s_add_u32 s19, s23, s16",
        "s_waitcnt lgkmcnt(0)")
    srd(a, 24, 4, 2048 * 2048)
    a.I("s_cmp_eq_u32 s22, 0", "s_cselect_b64 s[12:13], s[8:9], s[10:11]")
    for i in range(4):
        a.I(f"buffer_load_dwordx4 {vr(8+4*i,4)}, v3, s[24:27], s19 offen offset:{i*1024}")
    srd(a, 28, 12, 65536)
    srd(a, 32, 6, WS_SIZE)
    a.I("s_lshl_b32 s17, s20, 13", "s_mov_b32 m0, s17", "s_add_u32 s18, s17, 4096")
    for i in range(4):
        a.I(f"buffer_load_dwordx4 v3, s[28:31], s17 offen offset:{i*1024} lds")
    a.I("s_mov_b32 m0, s18", "s_nop 0")
    for i in range(4):
        a.I(f"buffer_load_dwordx4 v3, s[28:31], s18 offen offset:{i*1024} lds")
    a.I("s_mov_b32 s36, 0xffff0000")
    a.I("s_waitcnt vmcnt(8)")
    for r in range(2):
        for d in range(8):
            src = 8 + 8 * r + d
            a.I(f"v_lshlrev_b32 v{32+16*r+2*d}, 16, v{src}", f"v_and_b32 v{33+16*r+2*d}, s36, v{src}")
    def tree(dst, base, sq):
        t = 64 + (dst - 24) * 8
        for i in range(8):
            if sq:
                a.I(f"v_mul_f32 v{t+i}, v{base+2*i}, v{base+2*i}", f"v_fmac_f32 v{t+i}, v{base+2*i+1}, v{base+2*i+1}")
            else:
                a.I(f"v_add_f32 v{t+i}, v{base+2*i}, v{base+2*i+1}")
        for s in (4, 2):
            for i in range(s): a.I(f"v_add_f32 v{t+i}, v{t+i}, v{t+i+s}")
        a.I(f"v_add_f32 v{dst}, v{t}, v{t+1}")
    def wavered(rs, ss):
        for mod in ("row_shr:1 row_mask:0xf bank_mask:0xf bound_ctrl:0", "row_shr:2 row_mask:0xf bank_mask:0xf bound_ctrl:0",
                    "row_shr:4 row_mask:0xf bank_mask:0xf bound_ctrl:0", "row_shr:8 row_mask:0xf bank_mask:0xf bound_ctrl:0",
                    "row_bcast:15 row_mask:0xa bank_mask:0xf", "row_bcast:31 row_mask:0xc bank_mask:0xf"):
            for r in rs: a.I(f"v_add_f32_dpp v{r}, v{r}, v{r} {mod}")
        for r, s in zip(rs, ss): a.I(f"v_readlane_b32 s{s}, v{r}, 63")
    tree(24, 32, False); tree(25, 48, False)
    wavered((24, 25), (40, 41))
    a.I(f"s_mov_b32 s37, {f32(1.0/1024)}")
    a.I("v_mov_b32 v26, s40", "v_mov_b32 v27, s41", "v_mul_f32 v26, s37, v26", "v_mul_f32 v27, s37, v27")
    for r in range(2):
        for i in range(16): a.I(f"v_sub_f32 v{80+16*r+i}, v{32+16*r+i}, v{26+r}")
    tree(24, 80, True); tree(25, 96, True)
    wavered((24, 25), (42, 43))
    a.I("v_mov_b32 v28, s42", "v_mov_b32 v29, s43", "v_mul_f32 v28, s37, v28", "v_mul_f32 v29, s37, v29")
    def rnd(r): a.I(f"v_cvt_pk_bf16_f32 v{r}, v{r}, v{r}", f"v_lshlrev_b32 v{r}, 16, v{r}")
    a.I(f"s_mov_b32 s38, {f32(1e-5)}")
    for r in range(2):
        rnd(26 + r); rnd(28 + r)
        a.I(f"v_add_f32 v{28+r}, s38, v{28+r}"); rnd(28 + r)
        a.I(f"v_sqrt_f32 v{28+r}, v{28+r}"); rnd(28 + r)
        a.I(f"v_rcp_f32 v{28+r}, v{28+r}")
    for r in range(2):
        for d in range(8):
            b = 32 + 16 * r + 2 * d
            a.I(f"v_sub_f32 v{b}, v{b}, v{26+r}", f"v_sub_f32 v{b+1}, v{b+1}, v{26+r}",
                f"v_cvt_pk_bf16_f32 v{b}, v{b}, v{b+1}",
                f"v_and_b32 v{b+1}, s36, v{b}", f"v_lshlrev_b32 v{b}, 16, v{b}",
                f"v_mul_f32 v{b}, v{b}, v{28+r}", f"v_mul_f32 v{b+1}, v{b+1}, v{28+r}",
                f"v_cvt_pk_bf16_f32 v{8+8*r+d}, v{b}, v{b+1}")
    a.I("s_lshl_b32 s16, s20, 5", f"s_add_u32 s16, s16, {LX}", "v_lshlrev_b32 v4, 8, v1", "v_add_u32 v4, s16, v4")
    for r in range(2):
        for p in range(2):
            a.I(f"ds_write_b128 v4, {vr(8+8*r+4*p,4)} offset:{p*16384+r*16}")
    a.I("v_lshrrev_b32 v5, 4, v1",
        "s_lshl_b32 s16, s20, 12", f"s_add_u32 s16, s16, {LX}", "v_add_u32 v30, s16, v3",
        "v_lshlrev_b32 v31, 9, v5", "v_bfe_u32 v2, v1, 2, 2", "v_lshl_add_u32 v31, v2, 6, v31",
        "v_and_b32 v2, 3, v1", "v_lshl_add_u32 v31, v2, 3, v31", "v_add_u32 v31, s17, v31",
        "s_lshl_b32 s16, s22, 14", "s_lshl_b32 s18, s20, 11", "s_add_u32 s16, s16, s18",
        "s_add_u32 s39, s23, s16", f"s_add_u32 s16, s16, {LX}", "v_add_u32 v24, s16, v3",
        "s_waitcnt vmcnt(0) lgkmcnt(0)", "s_barrier")
    a.I("ds_read_b128 v[8:11], v24", "ds_read_b128 v[12:15], v24 offset:1024")
    for j in range(4):
        a.I(f"ds_read_b128 {vr(32+4*j,4)}, v30 offset:{j*1024}")
        for d in range(2):
            for rd in range(2):
                a.I(f"ds_read_b64_tr_b16 {vr(64+8*j+4*d+2*rd,2)}, v31 offset:{j*2048+rd*256+d*32}")
    a.I("s_waitcnt lgkmcnt(0)")
    a.I(f"buffer_store_dwordx4 v[8:11], v3, s[32:35], s39 offen offset:{WS_XN}",
        f"buffer_store_dwordx4 v[12:15], v3, s[32:35], s39 offen offset:{WS_XN+1024}")
    a.I("s_cmp_eq_u32 s22, 0", "s_cbranch_scc0 K1_V")
    for j in range(4):
        for d in range(2): a.I(mfma16(96 + 4 * d, 64 + 8 * j + 4 * d, 32 + 4 * j, "0" if j == 0 else None))
    a.I("s_branch K1_R")
    a.L("K1_V")
    for j in range(4):
        for d in range(2): a.I(mfma16(96 + 4 * d, 32 + 4 * j, 64 + 8 * j + 4 * d, "0" if j == 0 else None))
    a.L("K1_R")
    a.I("s_lshl_b32 s16, s20, 11", f"s_add_u32 s16, s16, {LR}", "v_add_u32 v4, s16, v3")
    for d in range(2): a.I(f"ds_write_b128 v4, {vr(96+4*d,4)} offset:{d*1024}")
    a.I("s_waitcnt lgkmcnt(0)", "s_barrier")
    a.I("s_cmp_lg_u32 s20, 0", "s_cbranch_scc1 K1_FIN")
    a.I(f"v_add_u32 v4, {LR}, v3")
    for w in range(8):
        a.I(f"ds_read_b128 {vr(32+8*w,4)}, v4 offset:{w*2048}", f"ds_read_b128 {vr(36+8*w,4)}, v4 offset:{w*2048+1024}")
    a.I("s_waitcnt lgkmcnt(0)")
    for s in (4, 2, 1):
        for w in range(s):
            for i in range(8): a.I(f"v_add_f32 v{32+8*w+i}, v{32+8*w+i}, v{32+8*(w+s)+i}")
    for d in range(4): a.I(f"v_cvt_pk_bf16_f32 v{8+d}, v{32+2*d}, v{33+2*d}")
    a.I("s_lshr_b32 s16, s21, 1", "s_lshl_b32 s18, s16, 12", f"s_add_u32 s18, s18, {WS_KV}",
        "s_and_b32 s16, s21, 1", "s_lshl_b32 s16, s16, 10", "s_add_u32 s18, s18, s16",
        "s_cmp_eq_u32 s22, 0", "s_cbranch_scc0 K1_SV",
        "buffer_store_dwordx4 v[8:11], v3, s[32:35], s18 offen",
        "s_branch K1_FIN")
    a.L("K1_SV")
    a.I("v_and_b32 v2, 1, v5", "v_lshlrev_b32 v4, 9, v2", "v_and_b32 v2, 15, v1", "v_lshl_add_u32 v4, v2, 4, v4",
        "v_lshrrev_b32 v2, 1, v5", "v_lshl_add_u32 v4, v2, 3, v4",
        "buffer_store_dwordx2 v[8:9], v4, s[32:35], s18 offen offset:2048",
        "buffer_store_dwordx2 v[10:11], v4, s[32:35], s18 offen offset:2304")
    a.L("K1_FIN")
    tl_end(a, 0)
    a.L("K1_END")
    a.I("s_endpgm")
    return a, dict(grid=256, block=512, lds=114688, vgpr=112)

QSCALE = (32 ** -0.5) * math.log2(math.e)

def k2(R=5, exp=''):
    a = Asm()
    NST = 32
    SLOT = 32768
    ACC = 128; FA = 64; FW = 96
    def acc(h, u, t): return ACC + (t * 4 + h * 2 + u) * 4
    stamp(a, 0)
    tl_start(a)
    a.I("s_cmp_ge_u32 s2, 256", "s_cbranch_scc1 K2_END",
        f"s_load_dwordx2 s[4:5], s[0:1], {KA_WQ}",
        f"s_load_dwordx4 s[8:11], s[0:1], {KA_WG}",
        f"s_load_dwordx2 s[6:7], s[0:1], {KA_WS}",
        "v_lshrrev_b32 v2, 6, v0", "v_and_b32 v1, 63, v0",
        "v_readfirstlane_b32 s20, v2",
        "s_and_b32 s16, s2, 7", "s_lshl_b32 s16, s16, 2", "s_bfe_u32 s17, s2, 0x20003", "s_add_u32 s21, s16, s17",
        "s_lshr_b32 s22, s2, 5",
        "s_and_b32 s23, s20, 3",
        "v_lshlrev_b32 v3, 4, v1",
        "v_add_u32 v10, 31744, v3",
        "s_lshl_b32 s16, s22, 4", "s_lshl_b32 s17, s20, 1", "s_add_u32 s16, s16, s17", "s_lshl_b32 s44, s16, 15",
        "s_lshl_b32 s45, s20, 11",
        "s_mov_b32 s47, 0",
        "s_mov_b32 s50, 0",
        "s_waitcnt lgkmcnt(0)")
    srd(a, 32, 6, WS_SIZE)
    def adv(reg): return [f"s_add_u32 s{reg}, s{reg}, {SLOT}", f"s_cmp_eq_u32 s{reg}, {SLOT*R}", f"s_cselect_b32 s{reg}, 0, s{reg}"]
    def dma_act():
        return ["s_add_u32 m0, s47, s45", "s_nop 0",
                f"buffer_load_dwordx4 v3, s[32:35], s44 offen lds",
                f"buffer_load_dwordx4 v10, s[32:35], s44 offen offset:1024 lds",
                "s_add_u32 s44, s44, 1024"]
    def dma_w(h):
        srdw = "s[24:27]" if h == 0 else "s[28:31]"
        so = 48 + h
        return [f"s_add_u32 s16, s47, s46" if h == 0 else "s_add_u32 s16, s16, 8192", "s_mov_b32 m0, s16", "s_nop 0",
                f"buffer_load_dwordx4 v4, {srdw}, s{so} offen lds",
                f"buffer_load_dwordx4 v5, {srdw}, s{so} offen offset:1024 lds",
                f"s_add_u32 s{so}, s{so}, s43"]
    def rdaddr():
        return ["s_lshr_b32 s17, s20, 2", "s_lshl_b32 s16, s17, 13", "v_add_u32 v6, s16, v3",
                "v_lshrrev_b32 v2, 4, v1", "v_lshlrev_b32 v7, 11, v2",
                "v_and_b32 v2, 1, v2", "v_lshlrev_b32 v12, 2, v2",
                "v_bfe_u32 v2, v1, 2, 2", "v_lshl_add_u32 v7, v2, 8, v7",
                "v_add_u32 v12, v12, v2", "s_lshl_b32 s16, s23, 1", "v_xor_b32 v12, s16, v12",
                "v_lshl_add_u32 v7, v12, 5, v7", "v_and_b32 v2, 3, v1", "v_lshl_add_u32 v7, v2, 3, v7",
                "v_add_u32 v7, 16384, v7", "v_xor_b32 v11, 32, v7"]
    def reads():
        o = ["v_add_u32 v8, s50, v6", "v_add_u32 v9, s50, v7", "v_add_u32 v13, s50, v11"]
        for h in range(2):
            for u in range(2):
                for rd in range(2):
                    o.append(f"ds_read_b64_tr_b16 {vr(FW+(h*2+u)*4+2*rd,2)}, v{9 if u == 0 else 13} offset:{h*8192+rd*1024}")
        for t in range(8):
            o.append(f"ds_read_b128 {vr(FA+t*4,4)}, v8 offset:{t*1024}")
        if "nords" in exp: o = o[:3]
        return o + adv(50)
    def mm(first):
        o = []
        for t in range(8):
            for h in range(2):
                for u in range(2):
                    o.append(mfma16(acc(h, u, t), FW + (h * 2 + u) * 4, FA + t * 4, "0" if first else None))
        if "nomm" in exp: o = o[:1]
        return o
    a.I("s_cmp_ge_u32 s21, 28", "s_cbranch_scc1 K2_QSET")
    srd(a, 24, 8, 1024 * 3584 * 2); srd(a, 28, 10, 1024 * 3584 * 2)
    a.I("s_mov_b32 s40, 7168", "s_lshl_b32 s41, s21, 8", "s_mov_b32 s49, 0", "s_branch K2_SET")
    a.L("K2_QSET")
    srd(a, 24, 4, 1024 * 1024 * 2); srd(a, 28, 4, 1024 * 1024 * 2)
    a.I("s_mov_b32 s40, 2048", "s_sub_u32 s41, s21, 28", "s_lshl_b32 s41, s41, 9", "s_mov_b32 s49, 256")
    a.L("K2_SET")
    a.I("v_lshrrev_b32 v2, 4, v1", "s_lshl_b32 s16, s23, 3", "v_add_u32 v4, s16, v2", "v_mul_lo_u32 v4, v4, s40",
        "s_and_b32 s16, s23, 1", "s_lshl_b32 s16, s16, 2", "v_add_u32 v2, s16, v2",
        "v_bfe_u32 v5, v1, 1, 3", "v_xor_b32 v2, v2, v5", "v_lshl_add_u32 v4, v2, 5, v4",
        "v_and_b32 v2, 1, v1", "v_lshl_add_u32 v4, v2, 4, v4", "v_add_u32 v4, s41, v4",
        "s_lshl_b32 s16, s40, 2", "s_sub_u32 s16, s16, 1024", "v_add_u32 v5, s16, v4",
        "s_lshl_b32 s43, s40, 5",
        "s_lshl_b32 s46, s23, 11", "s_add_u32 s46, s46, 16384",
        "s_mov_b32 s48, 0", "s_mov_b32 s52, 0")
    SPLIT = "split" in exp
    PRIO = "prio" in exp
    hi = ["s_setprio 1"] if PRIO else []
    lo = ["s_setprio 0"] if PRIO else []
    def dma_wx(h, slotreg):
        srdw = "s[24:27]" if h == 0 else "s[28:31]"
        so = 48 + h
        return [f"s_add_u32 s16, s{slotreg}, s46"] + ([f"s_add_u32 s16, s16, 8192"] if h else []) + ["s_mov_b32 m0, s16", "s_nop 0",
                f"buffer_load_dwordx4 v4, {srdw}, s{so} offen lds",
                f"buffer_load_dwordx4 v5, {srdw}, s{so} offen offset:1024 lds",
                f"s_add_u32 s{so}, s{so}, s43"]
    def mixmem(rd, dm):
        if "nomix" in exp or not rd or not dm: return rd + dm
        groups = []; cur = []
        for x in dm:
            cur.append(x)
            if x.startswith("buffer"): groups.append(cur); cur = []
        groups[-1] += cur
        pre = [x for x in rd if x.startswith("v_")]; ds = [x for x in rd if x.startswith("ds_")]; post = [x for x in rd if x.startswith("s_")]
        o = list(pre); n = len(groups); per = len(ds) // n
        for g in range(n):
            o += groups[g] + ds[g * per:(g + 1) * per if g < n - 1 else len(ds)]
        return o + post
    def st(i, on): return [f"s_memtime s[{64+2*i}:{65+2*i}]"] if (on and STAMPS and "fine" in exp) else []
    a.I("s_cmp_ge_u32 s20, 4", "s_cbranch_scc1 K2_B")
    logA = []
    def issueA(kind, stage):
        if stage >= NST: return []
        logA.append((kind, stage))
        return (dma_act() + adv(47)) if kind == "a" else (dma_wx(1, 52) + adv(52))
    def cnt(log, stage):
        last = max([i for i, (k, s_) in enumerate(log) if s_ <= stage], default=-1)
        return 2 * (len(log) - 1 - last)
    for j in range(R):
        if SPLIT and j < R - 1: a.extend(issueA("w", j))
        a.extend(issueA("a", j))
    a.extend(rdaddr())
    a.I(f"s_waitcnt vmcnt({cnt(logA, 0)})", "s_barrier")
    a.extend(reads())
    a.I(f"s_waitcnt vmcnt({cnt(logA, 1)}) lgkmcnt(0)", "s_barrier")
    def bodyA(k, first=False, fs=False):
        o = st(1, fs) + lo + mm(first) + hi + st(2, fs)
        rd = reads() if k + 1 < NST else []
        dm = (issueA("w", k - 1 + R) if SPLIT else []) + issueA("a", k + R)
        o += mixmem(rd, dm) + st(3, fs) + st(4, fs)
        if k + 1 < NST:
            o += [f"s_waitcnt vmcnt({cnt(logA, k + 2)}) lgkmcnt(0)"] + st(5, fs) + ["s_barrier"] + st(6, fs)
        return o
    stamp(a, 1)
    a.extend(bodyA(0, True))
    stamp(a, 2)
    a.I(f"s_mov_b32 s51, {NST-R-1}")
    a.L("K2_A_LOOP")
    body = bodyA(1, fs=True)
    for k in range(2, NST - R): assert bodyA(k, fs=True) == body
    a.extend(body)
    a.I("s_sub_u32 s51, s51, 1", "s_cmp_lg_u32 s51, 0", "s_cbranch_scc1 K2_A_LOOP")
    stamp(a, 3)
    for k in range(NST - R, NST): a.extend(bodyA(k))
    a.I("s_branch K2_EPI")
    a.L("K2_B")
    logB = []
    def dmaB(stage):
        if stage >= NST: return []
        o = dma_wx(0, 47) + ([] if SPLIT else dma_wx(1, 47)) + dma_act() + adv(47)
        for _ in range(2 if SPLIT else 3): logB.append(("x", stage))
        if "nodma" in exp: o = [x for x in o if not x.startswith("buffer")]
        return o
    for j in range(R - 1): a.extend(dmaB(j))
    a.extend(rdaddr())
    a.I(f"s_waitcnt vmcnt({cnt(logB, 0)})", "s_barrier")
    a.I(f"s_waitcnt vmcnt({cnt(logB, 1)})", "s_barrier")
    def bodyB(k, first=False, fs=False):
        o = st(1, fs) + hi + mixmem(reads(), dmaB(k - 1 + R)) + st(2, fs)
        o += st(3, fs) + ["s_waitcnt lgkmcnt(0)"] + st(4, fs)
        o += lo + mm(first) + st(5, fs)
        if k + 1 < NST:
            o += [f"s_waitcnt vmcnt({cnt(logB, k + 2)})", "s_barrier"] + st(6, fs)
        return o
    stamp(a, 1)
    a.extend(bodyB(0, True))
    stamp(a, 2)
    a.I(f"s_mov_b32 s51, {NST-R}")
    a.L("K2_B_LOOP")
    body = bodyB(1, fs=True)
    for k in range(2, NST - R + 1): assert bodyB(k, fs=True) == body
    a.extend(body)
    a.I("s_sub_u32 s51, s51, 1", "s_cmp_lg_u32 s51, 0", "s_cbranch_scc1 K2_B_LOOP")
    stamp(a, 3)
    for k in range(NST - R + 1, NST): a.extend(bodyB(k))
    a.L("K2_EPI")
    stamp(a, 4)
    a.I("s_lshl_b32 s16, s22, 4", "s_lshr_b32 s17, s20, 2", "s_lshl_b32 s17, s17, 3", "s_add_u32 s16, s16, s17",
        "s_cmp_ge_u32 s21, 28", "s_cbranch_scc1 K2_EPQ")
    a.I("s_mul_i32 s17, s16, 112", "s_lshl_b32 s18, s21, 2", "s_add_u32 s17, s17, s18",
        "s_add_u32 s17, s17, s23", "s_lshl_b32 s17, s17, 10", f"s_add_u32 s17, s17, {WS_H}")
    for t in range(8):
        g, u = acc(0, 0, t), acc(1, 0, t)
        for i in range(8): a.I(f"v_max_f32 v{g+i}, 0, v{g+i}")
        for i in range(8): a.I(f"v_mul_f32 v{g+i}, v{g+i}, v{u+i}")
        for d in range(4): a.I(f"v_cvt_pk_bf16_f32 v{FA+4*t+d}, v{g+2*d}, v{g+2*d+1}")
        a.I(f"buffer_store_dwordx4 {vr(FA+4*t,4)}, v3, s[32:35], s17 offen", f"s_add_u32 s17, s17, {112*1024}")
    stamp(a, 5)
    if STAMPS: a.I("s_waitcnt vmcnt(0)")
    stamp(a, 6)
    stamp_dump(a, 7)
    tl_end(a, 1)
    a.I("s_endpgm")
    a.L("K2_EPQ")
    a.I("s_sub_u32 s17, s21, 28", "s_lshl_b32 s17, s17, 3", "s_add_u32 s17, s17, s23", "s_lshl_b32 s17, s17, 7",
        "s_add_u32 s17, s17, s16", "s_lshl_b32 s17, s17, 10", f"s_add_u32 s17, s17, {WS_Q}",
        f"s_add_u32 s19, s17, {4*128*1024}",
        f"s_mov_b32 s18, {f32(QSCALE)}")
    for t in range(8):
        for h in range(2):
            g = acc(h, 0, t)
            for i in range(8): a.I(f"v_mul_f32 v{g+i}, s18, v{g+i}")
            for d in range(4): a.I(f"v_cvt_pk_bf16_f32 v{g+d}, v{g+2*d}, v{g+2*d+1}")
            a.I(f"buffer_store_dwordx4 {vr(g,4)}, v3, s[32:35], s{17+2*h} offen offset:{(t&3)*1024}")
        if t == 3: a.I("s_add_u32 s17, s17, 4096", "s_add_u32 s19, s19, 4096")
    tl_end(a, 1)
    a.L("K2_END")
    a.I("s_endpgm")
    return a, dict(grid=256, block=512, lds=SLOT * R, vgpr=256)

def k3(exp=''):
    a = Asm()
    tl_start(a)
    stamp(a, 0)
    a.I("s_cmp_ge_u32 s2, 512", "s_cbranch_scc1 K3_END",
        f"s_load_dwordx2 s[6:7], s[0:1], {KA_WS}",
        f"s_load_dwordx2 s[8:9], s[0:1], {KA_WD}",
        "v_lshrrev_b32 v2, 6, v0", "v_and_b32 v1, 63, v0",
        "v_readfirstlane_b32 s20, v2",
        "v_lshlrev_b32 v3, 4, v1",
        "s_waitcnt lgkmcnt(0)")
    srd(a, 32, 6, WS_SIZE)
    a.I("s_cmp_ge_u32 s2, 256", "s_cbranch_scc1 K3_DOWN")
    attention(a, exp)
    a.L("K3_DOWN")
    down(a, exp)
    a.L("K3_END")
    a.I("s_endpgm")
    return a, dict(grid=512, block=256, lds=81920, vgpr=256)

def attention(a, exp):
    QR = [16, 24]; KB = [32, 48]; VB = [40, 56]; P = 64; SEL = 72; Lr = [76, 80]; S = [96, 112]; O = [128, 144]; C = [160, 176]
    if "noatt" in exp:
        a.I("s_endpgm"); return
    a.I("s_lshr_b32 s21, s2, 2", "s_and_b32 s22, s2, 3", "s_lshl_b32 s22, s22, 3", "s_lshl_b32 s16, s20, 1", "s_add_u32 s22, s22, s16",
        "v_bfe_u32 v2, v1, 4, 1", "v_lshlrev_b32 v4, 10, v2", "v_lshrrev_b32 v2, 5, v1", "v_lshl_add_u32 v4, v2, 8, v4",
        "v_and_b32 v2, 15, v1", "v_lshl_add_u32 v4, v2, 4, v4",
        "s_lshl_b32 s23, s20, 13", f"s_add_u32 s24, s23, {WS_KV}", "s_mov_b32 s25, s23")
    def dma_stage():
        o = []
        for g in range(2):
            o += [f"s_add_u32 m0, s25, {g*4096}", f"s_add_u32 s16, s24, {g*4096}"]
            o += [f"buffer_load_dwordx4 v3, s[32:35], s16 offen offset:{i*1024} lds" for i in range(4)]
        o += ["s_add_u32 s24, s24, 32768", "s_xor_b32 s25, s25, 32768"]
        return o
    a.I("s_lshl_b32 s16, s22, 7", "s_lshl_b32 s17, s21, 1", "s_add_u32 s16, s16, s17", "s_lshl_b32 s16, s16, 10",
        f"s_add_u32 s26, s16, {WS_Q}", f"s_add_u32 s27, s26, {128*1024}")
    a.extend(dma_stage())
    for b in range(2):
        for ks in range(2):
            a.I(f"buffer_load_dwordx4 {vr(QR[b]+4*ks,4)}, v4, s[32:35], s{26+b} offen offset:{ks*512}")
    a.extend(dma_stage())
    a.I("v_lshrrev_b32 v2, 2, v1", "v_lshrrev_b32 v5, 4, v1", "v_xor_b32 v2, v2, v5", "v_and_b32 v2, 1, v2",
        "v_cmp_eq_u32 vcc, 0, v2", "v_mov_b32 v5, 0x3f803f80", f"v_cndmask_b32 v{SEL}, 0, v5, vcc")
    for i in range(1, 4): a.I(f"v_mov_b32 v{SEL+i}, v{SEL}")
    for b in range(2):
        for i in range(16): a.I(f"v_mov_b32 v{O[b]+i}, 0")
        for i in range(4): a.I(f"v_mov_b32 v{Lr[b]+i}, 0")
    for i in range(4): a.I(f"v_mov_b32 v{P+4+i}, 0", f"v_mov_b32 v{VB[1]+4+i}, 0")
    a.I("v_mov_b32 v6, v4", "v_add_u32 v7, 2048, v3", "s_mov_b32 s28, 0")
    a.I("s_waitcnt vmcnt(8)", "s_barrier")
    def rdK(buf, off): return [f"ds_read_b128 {vr(KB[buf]+4*ks,4)}, v6 offset:{off+ks*512}" for ks in range(2)]
    def rdV(buf, off): return [f"ds_read_b128 {vr(VB[buf]+4*ks,4)}, v7 offset:{off+ks*1024}" for ks in range(2)]
    a.extend(rdK(0, 0) + rdV(0, 0))
    a.I("s_waitcnt lgkmcnt(0)")
    for b in range(2):
        a.I(mfma32(S[b], KB[0], QR[b], "0"), mfma32(S[b], KB[0] + 4, QR[b] + 4))
    for b in range(2):
        s0 = S[b]
        a.I(f"v_max3_f32 v8, v{s0}, v{s0+1}, v{s0+2}")
        for i in range(3, 15, 2): a.I(f"v_max3_f32 v8, v8, v{s0+i}, v{s0+i+1}")
        a.I(f"v_max_f32 v8, v8, v{s0+15}", "v_mov_b32 v9, v8", "v_permlane32_swap_b32 v8, v9", "v_max_f32 v8, v8, v9",
            f"v_sub_f32 v{C[b]}, 0, v8")
        for i in range(1, 16): a.I(f"v_mov_b32 v{C[b]+i}, v{C[b]}")
    a.I(mfma32(S[0], KB[0], QR[0], C[0]), mfma32(S[0], KB[0] + 4, QR[0] + 4))
    stamp(a, 1)
    def tile(b, kbuf_next, vbuf, vprev, extra):
        nb = 1 - b; s0 = S[b]
        ex = [f"v_exp_f32 v{s0+i}, v{s0+i}" for i in range(16)]
        cv = [f"v_cvt_pk_bf16_f32 v{P+d}, v{s0+2*d}, v{s0+2*d+1}" for d in range(8)]
        e = list(extra) + [None] * 4
        o = [mfma32(S[nb], KB[kbuf_next], QR[nb], C[nb]), e[0]] + ex[0:3]
        o += [mfma32(O[nb], VB[vprev] + 4, P + 4), e[1]] + ex[3:6]
        o += [mfma16(Lr[nb], SEL, P + 4)] + ex[6:8]
        o += [mfma32(S[nb], KB[kbuf_next] + 4, QR[nb] + 4), e[2], cv[0], cv[1], ex[8], cv[2], cv[3], ex[9], ex[10]]
        o += [mfma32(O[b], VB[vbuf], P), e[3]] + ex[11:14]
        o += [mfma16(Lr[b], SEL, P), ex[14], ex[15]] + cv[4:8]
        return [x for x in o if x]
    a.I("s_nop 11")
    a.L("K3A_LOOP")
    a.extend(tile(0, 0, 0, 1, rdK(1, 4096) + rdV(1, 4096)))
    a.I("s_waitcnt lgkmcnt(2)")
    a.extend(tile(1, 1, 0, 0, []))
    a.I("s_waitcnt lgkmcnt(0)")
    a.I("s_and_b32 s16, s28, 3", "s_cmp_lg_u32 s16, 3", "s_cbranch_scc1 K3A_NOBAR",
        "s_cmp_eq_u32 s28, 31", "s_cbranch_scc1 K3A_NOBAR",
        "s_waitcnt vmcnt(0)", "s_barrier",
        "s_cmp_ge_u32 s28, 24", "s_cbranch_scc1 K3A_NOBAR")
    a.extend(dma_stage())
    a.L("K3A_NOBAR")
    a.I("v_add_u32 v6, 8192, v6", "v_add_u32 v7, 8192, v7", "v_and_b32 v6, 0xffff, v6", "v_and_b32 v7, 0xffff, v7")
    a.extend(tile(0, 1, 1, 0, rdK(0, 0) + rdV(0, 0)))
    a.I("s_waitcnt lgkmcnt(2)")
    a.extend(tile(1, 0, 1, 1, []))
    a.I("s_waitcnt lgkmcnt(0)")
    a.I("s_add_u32 s28, s28, 1", "s_cmp_lg_u32 s28, 32", "s_cbranch_scc1 K3A_LOOP")
    a.I(mfma32(O[1], VB[1] + 4, P + 4), mfma16(Lr[1], SEL, P + 4))
    stamp(a, 2)
    a.I(f"s_mov_b32 s16, {f32(2.0**100)}", "s_nop 7")
    a.I(f"v_max_f32 v8, v{Lr[0]}, v{Lr[1]}")
    for b in range(2):
        for i in range(0, 16, 2): a.I(f"v_max3_f32 v8, v8, abs(v{O[b]+i}), abs(v{O[b]+i+1})")
    a.I(f"v_add_f32 v9, v{Lr[0]}, v{Lr[1]}")
    for b in range(2):
        for i in range(16): a.I(f"v_add_f32 v9, v9, v{O[b]+i}")
    a.I("v_cmp_nlt_f32 vcc, v8, s16", "v_cmp_u_f32 s[18:19], v9, v9", "s_or_b64 vcc, vcc, s[18:19]")
    if "force" in exp: a.I("s_mov_b64 vcc, -1")
    a.I("s_cbranch_vccz K3A_FIN")
    for b in range(2):
        M = 10; AL = 11
        for i in range(16): a.I(f"v_mov_b32 v{O[b]+i}, 0")
        for i in range(4): a.I(f"v_mov_b32 v{Lr[b]+i}, 0")
        a.I(f"v_mov_b32 v{M}, {f32(-3.0e38)}", f"s_mov_b32 s29, {WS_KV}")
        a.L(f"K3A_FB{b}")
        for ks in range(2):
            a.I(f"buffer_load_dwordx4 {vr(KB[0]+4*ks,4)}, v4, s[32:35], s29 offen offset:{ks*512}",
                f"buffer_load_dwordx4 {vr(VB[0]+4*ks,4)}, v3, s[32:35], s29 offen offset:{2048+ks*1024}")
        a.I("s_waitcnt vmcnt(0)")
        s0 = S[0]
        a.I(mfma32(s0, KB[0], QR[b], "0"), mfma32(s0, KB[0] + 4, QR[b] + 4))
        a.I(f"v_max3_f32 v8, v{s0}, v{s0+1}, v{M}")
        for i in range(2, 16, 2): a.I(f"v_max3_f32 v8, v8, v{s0+i}, v{s0+i+1}")
        a.I("v_mov_b32 v9, v8", "v_permlane32_swap_b32 v8, v9", "v_max_f32 v8, v8, v9",
            f"v_sub_f32 v{AL}, v{M}, v8", f"v_exp_f32 v{AL}, v{AL}", f"v_mov_b32 v{M}, v8")
        for i in range(16): a.I(f"v_sub_f32 v{s0+i}, v{s0+i}, v8")
        for i in range(16): a.I(f"v_exp_f32 v{s0+i}, v{s0+i}")
        for i in range(16): a.I(f"v_mul_f32 v{O[b]+i}, v{O[b]+i}, v{AL}")
        for i in range(4): a.I(f"v_mul_f32 v{Lr[b]+i}, v{Lr[b]+i}, v{AL}")
        for d in range(8): a.I(f"v_cvt_pk_bf16_f32 v{P+d}, v{s0+2*d}, v{s0+2*d+1}")
        a.I(mfma32(O[b], VB[0], P), mfma16(Lr[b], SEL, P), mfma32(O[b], VB[0] + 4, P + 4), mfma16(Lr[b], SEL, P + 4))
        a.I("s_add_u32 s29, s29, 4096", f"s_cmp_lg_u32 s29, {WS_KV + 64*4096}", f"s_cbranch_scc1 K3A_FB{b}")
    a.L("K3A_FIN")
    a.I("v_bfe_u32 v2, v1, 4, 1", "v_lshlrev_b32 v5, 15, v2", "v_lshrrev_b32 v2, 5, v1", "v_lshl_add_u32 v5, v2, 8, v5",
        "v_and_b32 v2, 15, v1", "v_lshl_add_u32 v5, v2, 4, v5",
        "s_lshl_b32 s16, s21, 6", "s_add_u32 s16, s16, s22", "s_lshl_b32 s16, s16, 10", f"s_add_u32 s16, s16, {WS_O}")
    for b in range(2):
        a.I(f"v_rcp_f32 v{8+b}, v{Lr[b]}")
    for b in range(2):
        for i in range(16): a.I(f"v_mul_f32 v{O[b]+i}, v{O[b]+i}, v{8+b}")
        for d in range(8): a.I(f"v_cvt_pk_bf16_f32 v{S[b]+d}, v{O[b]+2*d}, v{O[b]+2*d+1}")
        for ks in range(2):
            a.I(f"buffer_store_dwordx4 {vr(S[b]+4*ks,4)}, v5, s[32:35], s16 offen offset:{b*1024+ks*512}")
    stamp(a, 3)
    stamp_dump(a, 4, wgs=(0, 0))
    tl_end(a, 2)
    a.I("s_endpgm")

def ring_gemm(a, pfx, NST, R, SLOT, ndma, dma_fn, read_fn, mm_fn, exp, first_zero=True):
    for j in range(R - 1): a.extend(dma_fn())
    a.I(f"s_waitcnt vmcnt({ndma*(R-2)})", "s_barrier")
    if pfx == "K4": stamp(a, 2)
    a.extend(read_fn(0))
    issued = R - 1
    def body(k, first):
        nonlocal issued
        o = []
        buf = k & 1
        if k + 1 < NST:
            o += [f"s_waitcnt vmcnt({ndma*max(0, min(issued, NST) - 1 - (k + 1))}) lgkmcnt(0)", "s_barrier"]
            dm = dma_fn() if issued < NST else []
            issued += 1
            fill = mix2(read_fn(1 - buf), dm)
        else:
            o += ["s_waitcnt lgkmcnt(0)"]; fill = []
        m = mm_fn(buf, first)
        o += interleave(m, fill, front_pattern(len(m), len(fill)))
        return o
    a.extend(body(0, first_zero)); a.extend(body(1, False))
    nloop = (NST - R - 1) // 2
    b2 = body(2, False) + body(3, False)
    for k in range(4, 2 + 2 * nloop, 2): assert body(k, False) + body(k + 1, False) == b2
    if pfx == "K4": stamp(a, 3)
    a.I(f"s_mov_b32 s51, {nloop}")
    a.L(pfx + "_LOOP")
    a.extend(b2)
    a.I("s_sub_u32 s51, s51, 1", "s_cmp_lg_u32 s51, 0", f"s_cbranch_scc1 {pfx}_LOOP")
    for k in range(2 + 2 * nloop, NST): a.extend(body(k, False))

def mix2(rd, dm):
    if not dm: return rd
    groups = []; cur = []
    for x in dm:
        cur.append(x)
        if x.startswith("buffer"): groups.append(cur); cur = []
    groups[-1] += cur
    pre = [x for x in rd if x.startswith("v_")]; ds = [x for x in rd if x.startswith("ds_")]; post = [x for x in rd if x.startswith("s_")]
    o = list(pre); n = len(groups); per = len(ds) // n
    for g in range(n):
        o += ds[g * per:(g + 1) * per if g < n - 1 else len(ds)] + groups[g]
    return o + post

def front_pattern(n, f):
    m = max(1, (3 * n) // 4)
    return [(f * (i + 1)) // m - (f * i) // m if i < m else 0 for i in range(n)]

def down(a, exp):
    if "nodown" in exp:
        a.I("s_endpgm"); return
    R = 5; SLOT = 16384; NST = 56
    FA = [64, 96]; FW = [80, 112]; ACC = 128
    M32 = "d32" in exp
    if "dprio" in exp: a.I("s_setprio 1")
    srd(a, 24, 8, 3584 * 1024 * 2)
    a.I("s_and_b32 s21, s2, 1",
        "s_bfe_u32 s16, s2, 0x10001", "s_lshl_b32 s16, s16, 3", "s_bfe_u32 s17, s2, 0x30003", "s_add_u32 s22, s16, s17",
        "s_bfe_u32 s16, s2, 0x10002", "s_lshl_b32 s16, s16, 2", "s_bfe_u32 s17, s2, 0x20006", "s_add_u32 s23, s16, s17",
        "s_lshl_b32 s16, s22, 3", "s_lshl_b32 s17, s20, 1", "s_add_u32 s16, s16, s17", "s_mul_i32 s16, s16, 112",
        "s_mul_i32 s17, s21, 56", "s_add_u32 s16, s16, s17", "s_lshl_b32 s44, s16, 10", f"s_add_u32 s44, s44, {WS_H}",
        f"v_add_u32 v10, {112*1024-1024}, v3",
        "s_lshl_b32 s45, s20, 11",
        "s_add_u32 s46, s45, 8192",
        "v_lshrrev_b32 v2, 4, v1", "s_lshl_b32 s16, s20, 3", "v_add_u32 v4, s16, v2", "v_lshlrev_b32 v4, 11, v4",
        "v_bfe_u32 v5, v1, 1, 3")
    if M32:
        a.I("v_lshlrev_b32 v6, 1, v2", "v_xor_b32 v6, v6, v5", "v_mov_b32 v7, v6")
    else:
        a.I("v_xor_b32 v6, v2, v5", "v_xor_b32 v7, 4, v6")
    a.I("v_and_b32 v2, 1, v1", "v_lshl_add_u32 v4, v2, 4, v4", "s_lshl_b32 s16, s23, 8", "v_add_u32 v4, s16, v4",
        f"v_add_u32 v5, {4*2048-1024}, v4",
        "v_lshl_add_u32 v4, v6, 5, v4", "v_lshl_add_u32 v5, v7, 5, v5",
        "s_mul_i32 s48, s21, %d" % (1792 * 2048),
        "s_mov_b32 s47, 0", "s_mov_b32 s50, 0",
        "s_and_b32 s40, s20, 1", "s_lshr_b32 s41, s20, 1")
    if M32:
        a.I("v_bfe_u32 v2, v1, 4, 1", "v_lshlrev_b32 v6, 10, v2", "v_lshrrev_b32 v8, 5, v1", "v_lshl_add_u32 v6, v8, 8, v6",
            "v_and_b32 v9, 15, v1", "v_lshl_add_u32 v6, v9, 4, v6", "s_lshl_b32 s16, s41, 12", "v_add_u32 v6, s16, v6",
            "v_lshlrev_b32 v7, 10, v8", "v_bfe_u32 v9, v1, 2, 2", "v_lshl_add_u32 v7, v9, 8, v7",
            "v_lshlrev_b32 v9, 1, v9", "s_lshl_b32 s16, s40, 2", "v_xor_b32 v9, s16, v9", "v_xor_b32 v9, v9, v2",
            "v_lshl_add_u32 v7, v9, 5, v7", "v_and_b32 v9, 3, v1", "v_lshl_add_u32 v7, v9, 3, v7", "v_add_u32 v7, 8192, v7",
            "v_xor_b32 v11, 64, v7")
    else:
        a.I("s_lshl_b32 s16, s41, 12", "v_add_u32 v6, s16, v3",
            "v_lshrrev_b32 v2, 4, v1", "v_lshlrev_b32 v7, 10, v2", "v_bfe_u32 v9, v1, 2, 2", "v_lshl_add_u32 v7, v9, 8, v7",
            "v_bfe_u32 v8, v1, 2, 3", "s_lshl_b32 s16, s40, 2", "v_xor_b32 v8, s16, v8",
            "v_lshl_add_u32 v7, v8, 5, v7", "v_and_b32 v9, 3, v1", "v_lshl_add_u32 v7, v9, 3, v7", "v_add_u32 v7, 8192, v7")
    def adv(reg): return [f"s_add_u32 s{reg}, s{reg}, {SLOT}", f"s_cmp_eq_u32 s{reg}, {SLOT*R}", f"s_cselect_b32 s{reg}, 0, s{reg}"]
    def dma():
        return ["s_add_u32 m0, s47, s46", "s_nop 0",
                "buffer_load_dwordx4 v4, s[24:27], s48 offen lds", "buffer_load_dwordx4 v5, s[24:27], s48 offen offset:1024 lds",
                "s_add_u32 s48, s48, 65536", "s_add_u32 m0, s47, s45", "s_nop 0",
                "buffer_load_dwordx4 v3, s[32:35], s44 offen lds", "buffer_load_dwordx4 v10, s[32:35], s44 offen offset:1024 lds",
                "s_add_u32 s44, s44, 1024"] + adv(47)
    if M32:
        def reads(buf):
            o = ["v_add_u32 v12, s50, v6", "v_add_u32 v13, s50, v7", "v_add_u32 v14, s50, v11"]
            for ks in range(2):
                for nb in range(2):
                    for rd in range(2):
                        o.append(f"ds_read_b64_tr_b16 {vr(FW[buf]+(ks*2+nb)*4+2*rd,2)}, v{13+nb} offset:{ks*2048+rd*4096}")
                for tb in range(2):
                    o.append(f"ds_read_b128 {vr(FA[buf]+(ks*2+tb)*4,4)}, v12 offset:{tb*2048+ks*512}")
            return o + adv(50)
        def mm(buf, first):
            return [mfma32(ACC + (tb * 2 + nb) * 16, FW[buf] + (ks * 2 + nb) * 4, FA[buf] + (ks * 2 + tb) * 4, "0" if (first and ks == 0) else None)
                    for ks in range(2) for tb in range(2) for nb in range(2)]
    else:
        def reads(buf):
            o = ["v_add_u32 v12, s50, v6", "v_add_u32 v13, s50, v7", "v_xor_b32 v14, 32, v13", "v_xor_b32 v15, 64, v13", "v_xor_b32 v16, 96, v13"]
            for u in range(4):
                for rd in range(2):
                    o.append(f"ds_read_b64_tr_b16 {vr(FW[buf]+u*4+2*rd,2)}, v{13+u} offset:{rd*4096}")
            for t in range(4):
                o.append(f"ds_read_b128 {vr(FA[buf]+t*4,4)}, v12 offset:{t*1024}")
            return o + adv(50)
        def mm(buf, first):
            return [mfma16(ACC + (t * 4 + u) * 4, FW[buf] + u * 4, FA[buf] + t * 4, "0" if first else None) for t in range(4) for u in range(4)]
    stamp(a, 1)
    ring_gemm(a, "K3D", NST, R, SLOT, 4, dma, reads, mm, exp)
    stamp(a, 2)
    a.I("s_lshl_b32 s16, s22, 3", "s_lshl_b32 s17, s41, 2", "s_add_u32 s16, s16, s17", "s_lshl_b32 s16, s16, 5",
        "s_lshl_b32 s17, s23, 2", "s_add_u32 s16, s16, s17", "s_lshl_b32 s17, s40, 1", "s_add_u32 s16, s16, s17",
        "s_lshl_b32 s16, s16, 10", "s_lshl_b32 s17, s21, 22", "s_add_u32 s16, s16, s17", f"s_add_u32 s16, s16, {WS_P}")
    if M32:
        a.I("v_bfe_u32 v2, v1, 4, 1", "v_lshlrev_b32 v5, 15, v2", "v_lshrrev_b32 v2, 5, v1", "v_lshl_add_u32 v5, v2, 8, v5",
            "v_and_b32 v2, 15, v1", "v_lshl_add_u32 v5, v2, 4, v5")
        for tb in range(2):
            for nb in range(2):
                g = ACC + (tb * 2 + nb) * 16; pk = 64 + (tb * 2 + nb) * 8
                for e in range(2):
                    a.I(f"v_cvt_pk_bf16_f32 v{pk+4*e}, v{g+4*e}, v{g+4*e+1}", f"v_cvt_pk_bf16_f32 v{pk+4*e+1}, v{g+4*e+2}, v{g+4*e+3}",
                        f"v_cvt_pk_bf16_f32 v{pk+4*e+2}, v{g+8+4*e}, v{g+8+4*e+1}", f"v_cvt_pk_bf16_f32 v{pk+4*e+3}, v{g+8+4*e+2}, v{g+8+4*e+3}",
                        f"buffer_store_dwordx4 {vr(pk+4*e,4)}, v5, s[32:35], s16 offen offset:{nb*1024+e*512}")
            a.I("s_add_u32 s16, s16, 65536")
    else:
        for t in range(4):
            for nb in range(2):
                g = ACC + (t * 4 + nb * 2) * 4; pk = 64 + (t * 2 + nb) * 4
                for d in range(4): a.I(f"v_cvt_pk_bf16_f32 v{pk+d}, v{g+2*d}, v{g+2*d+1}")
                a.I(f"buffer_store_dwordx4 {vr(pk,4)}, v3, s[32:35], s16 offen offset:{nb*1024}")
            a.I("s_add_u32 s16, s16, 32768")
    stamp(a, 3)
    stamp_dump(a, 4, wgs=(356, 356))
    tl_end(a, 2)

def k4(exp=''):
    a = Asm()
    R = 6; SLOT = 24576; NST = 16
    FA = [64, 112]; FW = [96, 144]; ACC = 160
    tl_start(a)
    stamp(a, 0)
    a.I("s_cmp_ge_u32 s2, 256", "s_cbranch_scc1 K4_END",
        f"s_load_dwordx2 s[6:7], s[0:1], {KA_WS}", f"s_load_dwordx2 s[8:9], s[0:1], {KA_WO}",
        f"s_load_dwordx2 s[10:11], s[0:1], {KA_X}", f"s_load_dwordx2 s[12:13], s[0:1], {KA_OUT}",
        "v_lshrrev_b32 v2, 6, v0", "v_and_b32 v1, 63, v0", "v_readfirstlane_b32 s20, v2", "v_lshlrev_b32 v3, 4, v1",
        "s_bfe_u32 s16, s2, 0x20001", "s_lshl_b32 s16, s16, 2", "s_bfe_u32 s17, s2, 0x20003", "s_add_u32 s22, s16, s17",
        "s_and_b32 s16, s2, 1", "s_lshl_b32 s16, s16, 3", "s_lshr_b32 s17, s2, 5", "s_add_u32 s23, s16, s17",
        "s_lshl_b32 s16, s22, 3", "s_lshl_b32 s17, s20, 1", "s_add_u32 s16, s16, s17", "s_lshl_b32 s44, s16, 15",
        f"s_add_u32 s44, s44, {WS_O}", f"v_add_u32 v10, {32768-2048}, v3",
        "s_lshl_b32 s45, s20, 12",
        "s_lshl_b32 s46, s20, 11", "s_add_u32 s46, s46, 16384",
        "v_lshrrev_b32 v2, 3, v1", "s_lshl_b32 s16, s20, 4", "v_add_u32 v4, s16, v2", "v_lshlrev_b32 v4, 11, v4",
        "v_lshrrev_b32 v2, 4, v1", "v_bfe_u32 v5, v1, 1, 2", "v_xor_b32 v2, v2, v5", "v_lshl_add_u32 v4, v2, 5, v4",
        "v_and_b32 v2, 1, v1", "v_lshl_add_u32 v4, v2, 4, v4", "s_lshl_b32 s16, s23, 7", "v_add_u32 v4, s16, v4",
        f"v_add_u32 v5, {8*2048-1024}, v4",
        "s_mov_b32 s48, 0", "s_mov_b32 s47, 0", "s_mov_b32 s50, 0",
        "s_and_b32 s40, s20, 1", "s_lshr_b32 s41, s20, 1",
        "s_waitcnt lgkmcnt(0)")
    srd(a, 32, 6, WS_SIZE); srd(a, 24, 8, 1024 * 1024 * 2)
    def adv(reg): return [f"s_add_u32 s{reg}, s{reg}, {SLOT}", f"s_cmp_eq_u32 s{reg}, {SLOT*R}", f"s_cselect_b32 s{reg}, 0, s{reg}"]
    def dma():
        return ["s_add_u32 m0, s47, s46", "s_nop 0",
                "buffer_load_dwordx4 v4, s[24:27], s48 offen lds", "buffer_load_dwordx4 v5, s[24:27], s48 offen offset:1024 lds",
                f"s_add_u32 s48, s48, {64*2048}", "s_add_u32 m0, s47, s45", "s_nop 0",
                "buffer_load_dwordx4 v3, s[32:35], s44 offen lds", "buffer_load_dwordx4 v3, s[32:35], s44 offen offset:1024 lds",
                "buffer_load_dwordx4 v10, s[32:35], s44 offen offset:2048 lds", "buffer_load_dwordx4 v10, s[32:35], s44 offen offset:3072 lds",
                "s_add_u32 s44, s44, 2048"] + adv(47)
    srd(a, 28, 10, 2048 * 2048); srd(a, 36, 12, 2048 * 2048)
    a.I("v_and_b32 v2, 15, v1", "v_lshlrev_b32 v17, 11, v2", "v_bfe_u32 v2, v1, 4, 1", "v_lshl_add_u32 v17, v2, 5, v17",
        "v_lshrrev_b32 v2, 5, v1", "v_lshl_add_u32 v17, v2, 4, v17",
        "s_lshl_b32 s16, s22, 1", "s_add_u32 s16, s16, s41", "s_lshl_b32 s42, s16, 17",
        "s_lshl_b32 s16, s23, 1", "s_add_u32 s16, s16, s40", "s_lshl_b32 s17, s16, 6", "s_add_u32 s42, s42, s17",
        "s_lshl_b32 s17, s22, 3", "s_lshl_b32 s18, s41, 2", "s_add_u32 s17, s17, s18", "s_lshl_b32 s17, s17, 5",
        "s_add_u32 s17, s17, s16", "s_lshl_b32 s43, s17, 10", f"s_add_u32 s43, s43, {WS_P}")
    XR, P0, P1 = 192, 208, 224
    a.extend(dma())
    for t in range(4):
        a.I(f"s_add_u32 s16, s42, {t*32768}", f"s_add_u32 s17, s43, {t*32768}", f"s_add_u32 s18, s17, {4<<20}",
            f"buffer_load_dwordx4 {vr(XR+4*t,4)}, v17, s[28:31], s16 offen",
            f"buffer_load_dwordx4 {vr(P0+4*t,4)}, v3, s[32:35], s17 offen",
            f"buffer_load_dwordx4 {vr(P1+4*t,4)}, v3, s[32:35], s18 offen")
    a.I("s_lshl_b32 s16, s41, 13", "v_add_u32 v6, s16, v3",
        "v_lshrrev_b32 v2, 5, v1", "v_lshlrev_b32 v7, 11, v2", "v_bfe_u32 v8, v1, 2, 3", "v_lshl_add_u32 v7, v8, 7, v7",
        "v_lshrrev_b32 v8, 1, v8", "s_lshl_b32 s16, s40, 1", "v_xor_b32 v8, s16, v8", "v_lshl_add_u32 v7, v8, 5, v7",
        "v_and_b32 v8, 3, v1", "v_lshl_add_u32 v7, v8, 3, v7", "v_add_u32 v7, 16384, v7",
        "s_mov_b32 s19, 0xffff0000")
    def reads(buf):
        o = ["v_add_u32 v12, s50, v6", "v_add_u32 v13, s50, v7", "v_xor_b32 v14, 32, v13"]
        for kb in range(2):
            for u in range(2):
                for rd in range(2):
                    o.append(f"ds_read_b64_tr_b16 {vr(FW[buf]+(kb*2+u)*4+2*rd,2)}, v{13+u} offset:{kb*4096+rd*1024}")
            for t in range(4):
                o.append(f"ds_read_b128 {vr(FA[buf]+(kb*4+t)*4,4)}, v12 offset:{t*2048+kb*1024}")
        return o + adv(50)
    def mm(buf, first):
        return [mfma16(ACC + (t * 2 + u) * 4, FW[buf] + (kb * 2 + u) * 4, FA[buf] + (kb * 4 + t) * 4)
                for kb in range(2) for t in range(4) for u in range(2)]
    class Hook:
        n = 0
    def dma2():
        Hook.n += 1
        if Hook.n == 1: return []
        o = dma()
        if Hook.n == R - 1:
            o = o + [f"s_waitcnt vmcnt({6*(R-2)})"]
            for t in range(4):
                o += [f"v_permlane16_swap_b32 v{XR+4*t}, v{XR+4*t+2}", f"v_permlane16_swap_b32 v{XR+4*t+1}, v{XR+4*t+3}"]
            for t in range(4):
                for d in range(4):
                    g = ACC + t * 8 + 2 * d
                    o += [f"v_lshlrev_b32 v{g}, 16, v{XR+4*t+d}", f"v_and_b32 v{g+1}, s19, v{XR+4*t+d}",
                          f"v_lshlrev_b32 v18, 16, v{P0+4*t+d}", f"v_and_b32 v19, s19, v{P0+4*t+d}",
                          f"v_lshlrev_b32 v20, 16, v{P1+4*t+d}", f"v_and_b32 v21, s19, v{P1+4*t+d}",
                          f"v_add_f32 v18, v18, v20", f"v_add_f32 v19, v19, v21",
                          f"v_add_f32 v{g}, v{g}, v18", f"v_add_f32 v{g+1}, v{g+1}, v19"]
        return o
    stamp(a, 1)
    ring_gemm(a, "K4", NST, R, SLOT, 6, dma2, reads, mm, exp, first_zero=False)
    stamp(a, 4)
    for t in range(4):
        g = ACC + t * 8; pk = 64 + 4 * t
        for d in range(4): a.I(f"v_cvt_pk_bf16_f32 v{pk+d}, v{g+2*d}, v{g+2*d+1}")
        a.I(f"v_permlane16_swap_b32 v{pk}, v{pk+2}", f"v_permlane16_swap_b32 v{pk+1}, v{pk+3}",
            f"buffer_store_dwordx4 {vr(pk,4)}, v17, s[36:39], s42 offen", "s_add_u32 s42, s42, 32768")
    stamp(a, 5)
    if STAMPS: a.I("s_waitcnt vmcnt(0)")
    stamp(a, 6)
    stamp_dump(a, 7)
    tl_end(a, 3)
    a.L("K4_END")
    a.I("s_endpgm")
    return a, dict(grid=256, block=256, lds=SLOT * R, vgpr=240)

def build(kernels, path):
    hdr = open("cdna_kernels/" + NAME + ".s.ref").read().split("; Override launch")[0]
    out = hdr
    for nm, (a, p) in kernels:
        out += f"; @launch kernel={nm}_kernel grid=({p['grid']},1,1) block=({p['block']},1,1) lds={p['lds']}\n"
    out += '.amdgcn_target "amdgcn-amd-amdhsa--gfx950"\n.text\n'
    for nm, (a, p) in kernels:
        a.fix(name=nm, verbose=VERB)
        out += f".globl {nm}_kernel\n.p2align 8\n.type {nm}_kernel,@function\n{nm}_kernel:\n" + a.text()
    out += '.section .rodata,"a"\n'
    for nm, (a, p) in kernels:
        v = p["vgpr"]
        out += f""".p2align 6
.amdhsa_kernel {nm}_kernel
  .amdhsa_next_free_vgpr {v}
  .amdhsa_next_free_sgpr 102
  .amdhsa_accum_offset {(v+3)//4*4}
  .amdhsa_group_segment_fixed_size 0
  .amdhsa_kernarg_size 96
  .amdhsa_user_sgpr_count 2
  .amdhsa_user_sgpr_kernarg_segment_ptr 1
  .amdhsa_system_sgpr_workgroup_id_x 1
.end_amdhsa_kernel
"""
    open(path, "w").write(out)

VERB = True
if __name__ == "__main__":
    path = sys.argv[1] if len(sys.argv) > 1 else "cdna_kernels/" + NAME + ".s"
    opts = dict(o.split("=") for o in sys.argv[2:])
    STAMPS = bool(int(opts.get("stamps", 0)))
    VERB = bool(int(opts.get("verb", 0)))
    FINE = "fine" in opts.get("exp", "")
    TL = bool(int(opts.get("tl", 0)))
    ex = opts.get("exp", "")
    ks = [("ln_kv", k1(ex)), ("gemm1", k2(R=int(opts.get("R", 5)), exp=ex)), ("attn_down", k3(ex)), ("wo_out", k4(ex))]
    def empty(nm):
        a = Asm(); a.I("s_endpgm"); return (nm, (a, dict(grid=256, block=64, lds=0, vgpr=8)))
    if "emptyend" in ex: ks = ks + [empty("e1")]
    if "emptyfront" in ex: ks = [empty("e0")] + ks
    if "emptymid" in ex: ks = ks[:2] + [empty("e2")] + ks[2:]
    build(ks, path)
```

```python
import sys, struct, math
from asmlib import *

NAME = "parallel_sum__grouped_kv_mqa__glu_gated_reglu__prompt"
KA_X, KA_WQ, KA_WK, KA_WV, KA_WO, KA_BX, KA_WG, KA_WU, KA_WD, KA_OUT, KA_DBG, KA_WS = [8 * i for i in range(12)]
WS_XN = 0x0000000
WS_KV = 0x0400000
WS_Q  = 0x0500000
WS_O  = 0x0900000
WS_H  = 0x1000000
WS_P  = 0x2000000
WS_SIZE = 0x4000000

def f32(x): return "0x%08x" % struct.unpack("<I", struct.pack("<f", x))[0]
def vr(a, n=1): return f"v{a}" if n == 1 else f"v[{a}:{a+n-1}]"
def sr(a, n=1): return f"s{a}" if n == 1 else f"s[{a}:{a+n-1}]"

def srd(a, dst, base, size):
    a.I(f"s_mov_b32 s{dst}, s{base}", f"s_mov_b32 s{dst+1}, s{base+1}",
        f"s_mov_b32 s{dst+2}, {size:#x}", f"s_mov_b32 s{dst+3}, 0x20000")

def mfma32(d, A, B, C=None):
    c = vr(d, 16) if C is None else (C if isinstance(C, str) else vr(C, 16))
    return f"v_mfma_f32_32x32x16_bf16 {vr(d,16)}, {vr(A,4)}, {vr(B,4)}, {c}"
def mfma16(d, A, B, C=None):
    c = vr(d, 4) if C is None else (C if isinstance(C, str) else vr(C, 4))
    return f"v_mfma_f32_16x16x32_bf16 {vr(d,4)}, {vr(A,4)}, {vr(B,4)}, {c}"

STAMPS = False
SC = ''
TL = False
def tl_start(a):
    if TL: a.I("s_memrealtime s[96:97]")
def tl_end(a, kidx, wave_sgpr=20, ws_srd=32):
    if not TL: return
    lab = f"TLE{kidx}_{len(a.items)}"
    a.I("s_waitcnt vmcnt(0)", "s_memrealtime s[98:99]", "s_waitcnt lgkmcnt(0)",
        f"s_lshl_b32 s100, s2, 3", f"s_add_u32 s100, s100, s{wave_sgpr}", "s_lshl_b32 s100, s100, 3",
        f"s_add_u32 s100, s100, {0x3F00000 + kidx * 0x10000}",
        "v_mov_b32 v2, s96", "v_mov_b32 v3, s98", "v_mov_b32 v1, 0", "s_mov_b64 exec, 1",
        f"buffer_store_dwordx2 v[2:3], v1, s[{ws_srd}:{ws_srd+3}], s100 offen")
FINE = False
def stamp(a, i):
    if STAMPS and (i == 0 or not FINE):
        a.I(f"s_memtime s[{64+2*i}:{65+2*i}]")
        if i == 0: a.I("s_memrealtime s[84:85]")
def stamp_dump(a, n, wave_sgpr=20, wgs=(0, 100)):
    if not STAMPS: return
    lab = f"STD{len(a.items)}"
    a.I("s_memrealtime s[86:87]", f"s_load_dwordx2 s[88:89], s[0:1], {KA_DBG}", "s_waitcnt vmcnt(0) lgkmcnt(0)")
    a.I("s_mov_b32 s92, s88", "s_mov_b32 s93, s89", "s_mov_b32 s94, 256", "s_mov_b32 s95, 0x20000")
    a.I(f"s_and_b32 s90, s{wave_sgpr}, 3", "s_cmp_lg_u32 s90, 0", f"s_cbranch_scc1 {lab}")
    a.I(f"s_mov_b32 s91, {0 if wgs[0] < 256 else 128}", f"s_cmp_eq_u32 s2, {wgs[0]}", f"s_cbranch_scc1 {lab}_W",
        f"s_mov_b32 s91, 128", f"s_cmp_eq_u32 s2, {wgs[1]}", f"s_cbranch_scc0 {lab}")
    a.L(lab + "_W")
    a.I(f"s_lshl_b32 s90, s{wave_sgpr}, 4", "s_add_u32 s91, s91, s90", "v_mov_b32 v1, 0")
    for i in range(n):
        a.I(f"s_sub_u32 s90, s{64+2*i}, s64") if i else a.I("s_mov_b32 s90, s64")
        a.I("v_mov_b32 v2, s90", f"buffer_store_dword v2, v1, s[92:95], s91 offen offset:{4*i}")
    a.I("s_sub_u32 s90, s86, s84", "v_mov_b32 v2, s90", f"buffer_store_dword v2, v1, s[92:95], s91 offen offset:{4*n}")
    a.I("v_mov_b32 v2, s84", f"buffer_store_dword v2, v1, s[92:95], s91 offen offset:{4*n+4}")
    a.L(lab)


def k1(exp=""):
    a = Asm()
    if "k1delay" in exp:
        a.I("s_sleep 64", "s_sleep 16")
    LW, LX, LR = 0, 65536, 98304
    tl_start(a)
    a.I("s_cmp_ge_u32 s2, 256", "s_cbranch_scc1 K1_END",
        f"s_load_dwordx2 s[4:5], s[0:1], {KA_X}",
        f"s_load_dwordx4 s[8:11], s[0:1], {KA_WK}",
        f"s_load_dwordx2 s[6:7], s[0:1], {KA_WS}",
        "v_lshrrev_b32 v2, 6, v0", "v_and_b32 v1, 63, v0",
        "v_readfirstlane_b32 s20, v2",
        "s_lshr_b32 s21, s2, 1",
        "s_and_b32 s22, s2, 1",
        "v_lshlrev_b32 v3, 4, v1",
        "s_lshl_b32 s23, s21, 15",
        "s_lshl_b32 s16, s20, 12",
        "s_add_u32 s19, s23, s16",
        "s_waitcnt lgkmcnt(0)")
    srd(a, 24, 4, 2048 * 2048)
    a.I("s_cmp_eq_u32 s22, 0", "s_cselect_b64 s[12:13], s[8:9], s[10:11]")
    for i in range(4):
        a.I(f"buffer_load_dwordx4 {vr(8+4*i,4)}, v3, s[24:27], s19 offen offset:{i*1024}")
    srd(a, 28, 12, 65536)
    srd(a, 32, 6, WS_SIZE)
    a.I("s_lshl_b32 s17, s20, 13", "s_mov_b32 m0, s17", "s_add_u32 s18, s17, 4096")
    for i in range(4):
        a.I(f"buffer_load_dwordx4 v3, s[28:31], s17 offen offset:{i*1024} lds")
    a.I("s_mov_b32 m0, s18", "s_nop 0")
    for i in range(4):
        a.I(f"buffer_load_dwordx4 v3, s[28:31], s18 offen offset:{i*1024} lds")
    a.I("s_mov_b32 s36, 0xffff0000")
    a.I("s_waitcnt vmcnt(8)")
    for r in range(2):
        for d in range(8):
            src = 8 + 8 * r + d
            a.I(f"v_lshlrev_b32 v{32+16*r+2*d}, 16, v{src}", f"v_and_b32 v{33+16*r+2*d}, s36, v{src}")
    def tree(dst, base, sq):
        t = 64 + (dst - 24) * 8
        for i in range(8):
            if sq:
                a.I(f"v_mul_f32 v{t+i}, v{base+2*i}, v{base+2*i}", f"v_fmac_f32 v{t+i}, v{base+2*i+1}, v{base+2*i+1}")
            else:
                a.I(f"v_add_f32 v{t+i}, v{base+2*i}, v{base+2*i+1}")
        for s in (4, 2):
            for i in range(s): a.I(f"v_add_f32 v{t+i}, v{t+i}, v{t+i+s}")
        a.I(f"v_add_f32 v{dst}, v{t}, v{t+1}")
    def wavered(rs, ss):
        for mod in ("row_shr:1 row_mask:0xf bank_mask:0xf bound_ctrl:0", "row_shr:2 row_mask:0xf bank_mask:0xf bound_ctrl:0",
                    "row_shr:4 row_mask:0xf bank_mask:0xf bound_ctrl:0", "row_shr:8 row_mask:0xf bank_mask:0xf bound_ctrl:0",
                    "row_bcast:15 row_mask:0xa bank_mask:0xf", "row_bcast:31 row_mask:0xc bank_mask:0xf"):
            for r in rs: a.I(f"v_add_f32_dpp v{r}, v{r}, v{r} {mod}")
        for r, s in zip(rs, ss): a.I(f"v_readlane_b32 s{s}, v{r}, 63")
    tree(24, 32, False); tree(25, 48, False)
    wavered((24, 25), (40, 41))
    a.I(f"s_mov_b32 s37, {f32(1.0/1024)}")
    a.I("v_mov_b32 v26, s40", "v_mov_b32 v27, s41", "v_mul_f32 v26, s37, v26", "v_mul_f32 v27, s37, v27")
    for r in range(2):
        for i in range(16): a.I(f"v_sub_f32 v{80+16*r+i}, v{32+16*r+i}, v{26+r}")
    tree(24, 80, True); tree(25, 96, True)
    wavered((24, 25), (42, 43))
    a.I("v_mov_b32 v28, s42", "v_mov_b32 v29, s43", "v_mul_f32 v28, s37, v28", "v_mul_f32 v29, s37, v29")
    def rnd(r): a.I(f"v_cvt_pk_bf16_f32 v{r}, v{r}, v{r}", f"v_lshlrev_b32 v{r}, 16, v{r}")
    a.I(f"s_mov_b32 s38, {f32(1e-5)}")
    for r in range(2):
        rnd(26 + r); rnd(28 + r)
        a.I(f"v_add_f32 v{28+r}, s38, v{28+r}"); rnd(28 + r)
        a.I(f"v_sqrt_f32 v{28+r}, v{28+r}"); rnd(28 + r)
        a.I(f"v_rcp_f32 v{28+r}, v{28+r}")
    for r in range(2):
        for d in range(8):
            b = 32 + 16 * r + 2 * d
            a.I(f"v_sub_f32 v{b}, v{b}, v{26+r}", f"v_sub_f32 v{b+1}, v{b+1}, v{26+r}",
                f"v_cvt_pk_bf16_f32 v{b}, v{b}, v{b+1}",
                f"v_and_b32 v{b+1}, s36, v{b}", f"v_lshlrev_b32 v{b}, 16, v{b}",
                f"v_mul_f32 v{b}, v{b}, v{28+r}", f"v_mul_f32 v{b+1}, v{b+1}, v{28+r}",
                f"v_cvt_pk_bf16_f32 v{8+8*r+d}, v{b}, v{b+1}")
    a.I("s_lshl_b32 s16, s20, 5", f"s_add_u32 s16, s16, {LX}", "v_lshlrev_b32 v4, 8, v1", "v_add_u32 v4, s16, v4")
    for r in range(2):
        for p in range(2):
            a.I(f"ds_write_b128 v4, {vr(8+8*r+4*p,4)} offset:{p*16384+r*16}")
    a.I("v_lshrrev_b32 v5, 4, v1",
        "s_lshl_b32 s16, s20, 12", f"s_add_u32 s16, s16, {LX}", "v_add_u32 v30, s16, v3",
        "v_lshlrev_b32 v31, 9, v5", "v_bfe_u32 v2, v1, 2, 2", "v_lshl_add_u32 v31, v2, 6, v31",
        "v_and_b32 v2, 3, v1", "v_lshl_add_u32 v31, v2, 3, v31", "v_add_u32 v31, s17, v31",
        "s_lshl_b32 s16, s22, 14", "s_lshl_b32 s18, s20, 11", "s_add_u32 s16, s16, s18",
        "s_add_u32 s39, s23, s16", f"s_add_u32 s16, s16, {LX}", "v_add_u32 v24, s16, v3",
        "s_waitcnt vmcnt(0) lgkmcnt(0)", "s_barrier")
    a.I("ds_read_b128 v[8:11], v24", "ds_read_b128 v[12:15], v24 offset:1024")
    for j in range(4):
        a.I(f"ds_read_b128 {vr(32+4*j,4)}, v30 offset:{j*1024}")
        for d in range(2):
            for rd in range(2):
                a.I(f"ds_read_b64_tr_b16 {vr(64+8*j+4*d+2*rd,2)}, v31 offset:{j*2048+rd*256+d*32}")
    a.I("s_waitcnt lgkmcnt(0)")
    a.I(f"buffer_store_dwordx4 v[8:11], v3, s[32:35], s39 offen offset:{WS_XN}",
        f"buffer_store_dwordx4 v[12:15], v3, s[32:35], s39 offen offset:{WS_XN+1024}")
    a.I("s_cmp_eq_u32 s22, 0", "s_cbranch_scc0 K1_V")
    for j in range(4):
        for d in range(2): a.I(mfma16(96 + 4 * d, 64 + 8 * j + 4 * d, 32 + 4 * j, "0" if j == 0 else None))
    a.I("s_branch K1_R")
    a.L("K1_V")
    for j in range(4):
        for d in range(2): a.I(mfma16(96 + 4 * d, 32 + 4 * j, 64 + 8 * j + 4 * d, "0" if j == 0 else None))
    a.L("K1_R")
    a.I("s_lshl_b32 s16, s20, 11", f"s_add_u32 s16, s16, {LR}", "v_add_u32 v4, s16, v3")
    for d in range(2): a.I(f"ds_write_b128 v4, {vr(96+4*d,4)} offset:{d*1024}")
    a.I("s_waitcnt lgkmcnt(0)", "s_barrier")
    a.I("s_cmp_lg_u32 s20, 0", "s_cbranch_scc1 K1_FIN")
    a.I(f"v_add_u32 v4, {LR}, v3")
    for w in range(8):
        a.I(f"ds_read_b128 {vr(32+8*w,4)}, v4 offset:{w*2048}", f"ds_read_b128 {vr(36+8*w,4)}, v4 offset:{w*2048+1024}")
    a.I("s_waitcnt lgkmcnt(0)")
    for s in (4, 2, 1):
        for w in range(s):
            for i in range(8): a.I(f"v_add_f32 v{32+8*w+i}, v{32+8*w+i}, v{32+8*(w+s)+i}")
    for d in range(4): a.I(f"v_cvt_pk_bf16_f32 v{8+d}, v{32+2*d}, v{33+2*d}")
    a.I("s_lshr_b32 s16, s21, 1", "s_lshl_b32 s18, s16, 12", f"s_add_u32 s18, s18, {WS_KV}",
        "s_and_b32 s16, s21, 1", "s_lshl_b32 s16, s16, 10", "s_add_u32 s18, s18, s16",
        "s_cmp_eq_u32 s22, 0", "s_cbranch_scc0 K1_SV",
        "buffer_store_dwordx4 v[8:11], v3, s[32:35], s18 offen",
        "s_branch K1_FIN")
    a.L("K1_SV")
    a.I("v_and_b32 v2, 1, v5", "v_lshlrev_b32 v4, 9, v2", "v_and_b32 v2, 15, v1", "v_lshl_add_u32 v4, v2, 4, v4",
        "v_lshrrev_b32 v2, 1, v5", "v_lshl_add_u32 v4, v2, 3, v4",
        "buffer_store_dwordx2 v[8:9], v4, s[32:35], s18 offen offset:2048",
        "buffer_store_dwordx2 v[10:11], v4, s[32:35], s18 offen offset:2304")
    a.L("K1_FIN")
    tl_end(a, 0)
    a.L("K1_END")
    a.I("s_endpgm")
    return a, dict(grid=256, block=512, lds=114688, vgpr=112)

QSCALE = (32 ** -0.5) * math.log2(math.e)

def k2(R=5, exp=''):
    a = Asm()
    NST = 32
    SLOT = 32768
    ACC = 128; FA = 64; FW = 96
    def acc(h, u, t): return ACC + (t * 4 + h * 2 + u) * 4
    stamp(a, 0)
    tl_start(a)
    a.I("s_cmp_ge_u32 s2, 256", "s_cbranch_scc1 K2_END",
        f"s_load_dwordx2 s[4:5], s[0:1], {KA_WQ}",
        f"s_load_dwordx4 s[8:11], s[0:1], {KA_WG}",
        f"s_load_dwordx2 s[6:7], s[0:1], {KA_WS}",
        "v_lshrrev_b32 v2, 6, v0", "v_and_b32 v1, 63, v0",
        "v_readfirstlane_b32 s20, v2",
        "s_and_b32 s16, s2, 7", "s_lshl_b32 s16, s16, 2", "s_bfe_u32 s17, s2, 0x20003", "s_add_u32 s21, s16, s17",
        "s_lshr_b32 s22, s2, 5",
        "s_and_b32 s23, s20, 3",
        "v_lshlrev_b32 v3, 4, v1",
        "v_add_u32 v10, 31744, v3",
        "s_lshl_b32 s16, s22, 4", "s_lshl_b32 s17, s20, 1", "s_add_u32 s16, s16, s17", "s_lshl_b32 s44, s16, 15",
        "s_lshl_b32 s45, s20, 11",
        "s_mov_b32 s47, 0",
        "s_mov_b32 s50, 0",
        "s_waitcnt lgkmcnt(0)")
    srd(a, 32, 6, WS_SIZE)
    def adv(reg): return [f"s_add_u32 s{reg}, s{reg}, {SLOT}", f"s_cmp_eq_u32 s{reg}, {SLOT*R}", f"s_cselect_b32 s{reg}, 0, s{reg}"]
    def dma_act():
        return ["s_add_u32 m0, s47, s45", "s_nop 0",
                f"buffer_load_dwordx4 v3, s[32:35], s44 offen lds",
                f"buffer_load_dwordx4 v10, s[32:35], s44 offen offset:1024 lds",
                "s_add_u32 s44, s44, 1024"]
    def dma_w(h):
        srdw = "s[24:27]" if h == 0 else "s[28:31]"
        so = 48 + h
        return [f"s_add_u32 s16, s47, s46" if h == 0 else "s_add_u32 s16, s16, 8192", "s_mov_b32 m0, s16", "s_nop 0",
                f"buffer_load_dwordx4 v4, {srdw}, s{so} offen lds",
                f"buffer_load_dwordx4 v5, {srdw}, s{so} offen offset:1024 lds",
                f"s_add_u32 s{so}, s{so}, s43"]
    def rdaddr():
        return ["s_lshr_b32 s17, s20, 2", "s_lshl_b32 s16, s17, 13", "v_add_u32 v6, s16, v3",
                "v_lshrrev_b32 v2, 4, v1", "v_lshlrev_b32 v7, 11, v2",
                "v_and_b32 v2, 1, v2", "v_lshlrev_b32 v12, 2, v2",
                "v_bfe_u32 v2, v1, 2, 2", "v_lshl_add_u32 v7, v2, 8, v7",
                "v_add_u32 v12, v12, v2", "s_lshl_b32 s16, s23, 1", "v_xor_b32 v12, s16, v12",
                "v_lshl_add_u32 v7, v12, 5, v7", "v_and_b32 v2, 3, v1", "v_lshl_add_u32 v7, v2, 3, v7",
                "v_add_u32 v7, 16384, v7", "v_xor_b32 v11, 32, v7"]
    def reads():
        o = ["v_add_u32 v8, s50, v6", "v_add_u32 v9, s50, v7", "v_add_u32 v13, s50, v11"]
        for h in range(2):
            for u in range(2):
                for rd in range(2):
                    o.append(f"ds_read_b64_tr_b16 {vr(FW+(h*2+u)*4+2*rd,2)}, v{9 if u == 0 else 13} offset:{h*8192+rd*1024}")
        for t in range(8):
            o.append(f"ds_read_b128 {vr(FA+t*4,4)}, v8 offset:{t*1024}")
        if "nords" in exp: o = o[:3]
        return o + adv(50)
    def mm(first):
        o = []
        for t in range(8):
            for h in range(2):
                for u in range(2):
                    o.append(mfma16(acc(h, u, t), FW + (h * 2 + u) * 4, FA + t * 4, "0" if first else None))
        if "nomm" in exp: o = o[:1]
        return o
    a.I("s_cmp_ge_u32 s21, 28", "s_cbranch_scc1 K2_QSET")
    srd(a, 24, 8, 1024 * 3584 * 2); srd(a, 28, 10, 1024 * 3584 * 2)
    a.I("s_mov_b32 s40, 7168", "s_lshl_b32 s41, s21, 8", "s_mov_b32 s49, 0", "s_branch K2_SET")
    a.L("K2_QSET")
    srd(a, 24, 4, 1024 * 1024 * 2); srd(a, 28, 4, 1024 * 1024 * 2)
    a.I("s_mov_b32 s40, 2048", "s_sub_u32 s41, s21, 28", "s_lshl_b32 s41, s41, 9", "s_mov_b32 s49, 256")
    a.L("K2_SET")
    a.I("v_lshrrev_b32 v2, 4, v1", "s_lshl_b32 s16, s23, 3", "v_add_u32 v4, s16, v2", "v_mul_lo_u32 v4, v4, s40",
        "s_and_b32 s16, s23, 1", "s_lshl_b32 s16, s16, 2", "v_add_u32 v2, s16, v2",
        "v_bfe_u32 v5, v1, 1, 3", "v_xor_b32 v2, v2, v5", "v_lshl_add_u32 v4, v2, 5, v4",
        "v_and_b32 v2, 1, v1", "v_lshl_add_u32 v4, v2, 4, v4", "v_add_u32 v4, s41, v4",
        "s_lshl_b32 s16, s40, 2", "s_sub_u32 s16, s16, 1024", "v_add_u32 v5, s16, v4",
        "s_lshl_b32 s43, s40, 5",
        "s_lshl_b32 s46, s23, 11", "s_add_u32 s46, s46, 16384",
        "s_mov_b32 s48, 0", "s_mov_b32 s52, 0")
    SPLIT = "split" in exp
    PRIO = "prio" in exp
    hi = ["s_setprio 1"] if PRIO else []
    lo = ["s_setprio 0"] if PRIO else []
    def dma_wx(h, slotreg):
        srdw = "s[24:27]" if h == 0 else "s[28:31]"
        so = 48 + h
        return [f"s_add_u32 s16, s{slotreg}, s46"] + ([f"s_add_u32 s16, s16, 8192"] if h else []) + ["s_mov_b32 m0, s16", "s_nop 0",
                f"buffer_load_dwordx4 v4, {srdw}, s{so} offen lds",
                f"buffer_load_dwordx4 v5, {srdw}, s{so} offen offset:1024 lds",
                f"s_add_u32 s{so}, s{so}, s43"]
    def mixmem(rd, dm):
        if "nomix" in exp or not rd or not dm: return rd + dm
        groups = []; cur = []
        for x in dm:
            cur.append(x)
            if x.startswith("buffer"): groups.append(cur); cur = []
        groups[-1] += cur
        pre = [x for x in rd if x.startswith("v_")]; ds = [x for x in rd if x.startswith("ds_")]; post = [x for x in rd if x.startswith("s_")]
        o = list(pre); n = len(groups); per = len(ds) // n
        for g in range(n):
            o += groups[g] + ds[g * per:(g + 1) * per if g < n - 1 else len(ds)]
        return o + post
    def st(i, on): return [f"s_memtime s[{64+2*i}:{65+2*i}]"] if (on and STAMPS and "fine" in exp) else []
    a.I("s_cmp_ge_u32 s20, 4", "s_cbranch_scc1 K2_B")
    logA = []
    def issueA(kind, stage):
        if stage >= NST: return []
        logA.append((kind, stage))
        return (dma_act() + adv(47)) if kind == "a" else (dma_wx(1, 52) + adv(52))
    def cnt(log, stage):
        last = max([i for i, (k, s_) in enumerate(log) if s_ <= stage], default=-1)
        return 2 * (len(log) - 1 - last)
    for j in range(R):
        if SPLIT and j < R - 1: a.extend(issueA("w", j))
        a.extend(issueA("a", j))
    a.extend(rdaddr())
    a.I(f"s_waitcnt vmcnt({cnt(logA, 0)})", "s_barrier")
    a.extend(reads())
    a.I(f"s_waitcnt vmcnt({cnt(logA, 1)}) lgkmcnt(0)", "s_barrier")
    def bodyA(k, first=False, fs=False):
        o = st(1, fs) + lo + mm(first) + hi + st(2, fs)
        rd = reads() if k + 1 < NST else []
        dm = (issueA("w", k - 1 + R) if SPLIT else []) + issueA("a", k + R)
        o += mixmem(rd, dm) + st(3, fs) + st(4, fs)
        if k + 1 < NST:
            o += [f"s_waitcnt vmcnt({cnt(logA, k + 2)}) lgkmcnt(0)"] + st(5, fs) + ["s_barrier"] + st(6, fs)
        return o
    stamp(a, 1)
    a.extend(bodyA(0, True))
    stamp(a, 2)
    a.I(f"s_mov_b32 s51, {NST-R-1}")
    a.L("K2_A_LOOP")
    body = bodyA(1, fs=True)
    for k in range(2, NST - R): assert bodyA(k, fs=True) == body
    a.extend(body)
    a.I("s_sub_u32 s51, s51, 1", "s_cmp_lg_u32 s51, 0", "s_cbranch_scc1 K2_A_LOOP")
    stamp(a, 3)
    for k in range(NST - R, NST): a.extend(bodyA(k))
    a.I("s_branch K2_EPI")
    a.L("K2_B")
    logB = []
    def dmaB(stage):
        if stage >= NST: return []
        o = dma_wx(0, 47) + ([] if SPLIT else dma_wx(1, 47)) + dma_act() + adv(47)
        for _ in range(2 if SPLIT else 3): logB.append(("x", stage))
        if "nodma" in exp: o = [x for x in o if not x.startswith("buffer")]
        return o
    for j in range(R - 1): a.extend(dmaB(j))
    a.extend(rdaddr())
    a.I(f"s_waitcnt vmcnt({cnt(logB, 0)})", "s_barrier")
    a.I(f"s_waitcnt vmcnt({cnt(logB, 1)})", "s_barrier")
    def bodyB(k, first=False, fs=False):
        o = st(1, fs) + hi + mixmem(reads(), dmaB(k - 1 + R)) + st(2, fs)
        o += st(3, fs) + ["s_waitcnt lgkmcnt(0)"] + st(4, fs)
        o += lo + mm(first) + st(5, fs)
        if k + 1 < NST:
            o += [f"s_waitcnt vmcnt({cnt(logB, k + 2)})", "s_barrier"] + st(6, fs)
        return o
    stamp(a, 1)
    a.extend(bodyB(0, True))
    stamp(a, 2)
    a.I(f"s_mov_b32 s51, {NST-R}")
    a.L("K2_B_LOOP")
    body = bodyB(1, fs=True)
    for k in range(2, NST - R + 1): assert bodyB(k, fs=True) == body
    a.extend(body)
    a.I("s_sub_u32 s51, s51, 1", "s_cmp_lg_u32 s51, 0", "s_cbranch_scc1 K2_B_LOOP")
    stamp(a, 3)
    for k in range(NST - R + 1, NST): a.extend(bodyB(k))
    a.L("K2_EPI")
    stamp(a, 4)
    a.I("s_lshl_b32 s16, s22, 4", "s_lshr_b32 s17, s20, 2", "s_lshl_b32 s17, s17, 3", "s_add_u32 s16, s16, s17",
        "s_cmp_ge_u32 s21, 28", "s_cbranch_scc1 K2_EPQ")
    a.I("s_mul_i32 s17, s16, 112", "s_lshl_b32 s18, s21, 2", "s_add_u32 s17, s17, s18",
        "s_add_u32 s17, s17, s23", "s_lshl_b32 s17, s17, 10", f"s_add_u32 s17, s17, {WS_H}")
    for t in range(8):
        g, u = acc(0, 0, t), acc(1, 0, t)
        for i in range(8): a.I(f"v_max_f32 v{g+i}, 0, v{g+i}")
        for i in range(8): a.I(f"v_mul_f32 v{g+i}, v{g+i}, v{u+i}")
        for d in range(4): a.I(f"v_cvt_pk_bf16_f32 v{FA+4*t+d}, v{g+2*d}, v{g+2*d+1}")
        a.I(f"buffer_store_dwordx4 {vr(FA+4*t,4)}, v3, s[32:35], s17 offen", f"s_add_u32 s17, s17, {112*1024}")
    stamp(a, 5)
    if STAMPS: a.I("s_waitcnt vmcnt(0)")
    stamp(a, 6)
    stamp_dump(a, 7)
    tl_end(a, 1)
    a.I("s_endpgm")
    a.L("K2_EPQ")
    a.I("s_sub_u32 s17, s21, 28", "s_lshl_b32 s17, s17, 3", "s_add_u32 s17, s17, s23", "s_lshl_b32 s17, s17, 7",
        "s_add_u32 s17, s17, s16", "s_lshl_b32 s17, s17, 10", f"s_add_u32 s17, s17, {WS_Q}",
        f"s_add_u32 s19, s17, {4*128*1024}",
        f"s_mov_b32 s18, {f32(QSCALE)}")
    for t in range(8):
        for h in range(2):
            g = acc(h, 0, t)
            for i in range(8): a.I(f"v_mul_f32 v{g+i}, s18, v{g+i}")
            for d in range(4): a.I(f"v_cvt_pk_bf16_f32 v{g+d}, v{g+2*d}, v{g+2*d+1}")
            a.I(f"buffer_store_dwordx4 {vr(g,4)}, v3, s[32:35], s{17+2*h} offen offset:{(t&3)*1024}")
        if t == 3: a.I("s_add_u32 s17, s17, 4096", "s_add_u32 s19, s19, 4096")
    tl_end(a, 1)
    a.L("K2_END")
    a.I("s_endpgm")
    return a, dict(grid=256, block=512, lds=SLOT * R, vgpr=256)

def k2b(exp=''):
    a = Asm()
    NST = 32; R = 3; SLOT = 24576
    ACC = 128; FA = 64; FW = 96
    def acc(h, u, t): return ACC + (t * 4 + h * 2 + u) * 4
    stamp(a, 0); tl_start(a)
    a.I("s_cmp_ge_u32 s2, 512", "s_cbranch_scc1 K2_END",
        f"s_load_dwordx2 s[4:5], s[0:1], {KA_WQ}",
        f"s_load_dwordx4 s[8:11], s[0:1], {KA_WG}",
        f"s_load_dwordx2 s[6:7], s[0:1], {KA_WS}",
        "v_lshrrev_b32 v2, 6, v0", "v_and_b32 v1, 63, v0",
        "v_readfirstlane_b32 s20, v2",
        "s_and_b32 s16, s2, 7", "s_lshl_b32 s16, s16, 2", "s_bfe_u32 s17, s2, 0x20003", "s_add_u32 s21, s16, s17",
        "s_bfe_u32 s22, s2, 0x30005", "s_lshl_b32 s22, s22, 1", "s_lshr_b32 s16, s2, 8", "s_add_u32 s22, s22, s16",
        "s_mov_b32 s23, s20",
        "v_lshlrev_b32 v3, 4, v1", "v_add_u32 v10, 31744, v3",
        "s_lshl_b32 s16, s22, 3", "s_lshl_b32 s17, s20, 1", "s_add_u32 s16, s16, s17", "s_lshl_b32 s44, s16, 15",
        "s_lshl_b32 s45, s20, 11", "s_add_u32 s46, s45, 8192", "s_add_u32 s47, s45, 16384",
        "s_waitcnt lgkmcnt(0)")
    srd(a, 32, 6, WS_SIZE)
    a.I("s_cmp_ge_u32 s21, 28", "s_cbranch_scc1 K2_QSET")
    srd(a, 24, 8, 1024 * 3584 * 2); srd(a, 28, 10, 1024 * 3584 * 2)
    a.I("s_mov_b32 s40, 7168", "s_lshl_b32 s41, s21, 8", "s_mov_b32 s49, 0", "s_branch K2_SET")
    a.L("K2_QSET")
    srd(a, 24, 4, 1024 * 1024 * 2); srd(a, 28, 4, 1024 * 1024 * 2)
    a.I("s_mov_b32 s40, 2048", "s_sub_u32 s41, s21, 28", "s_lshl_b32 s41, s41, 9", "s_mov_b32 s49, 256")
    a.L("K2_SET")
    a.I("v_lshrrev_b32 v2, 4, v1", "s_lshl_b32 s16, s23, 3", "v_add_u32 v4, s16, v2", "v_mul_lo_u32 v4, v4, s40",
        "s_and_b32 s16, s23, 1", "s_lshl_b32 s16, s16, 2", "v_add_u32 v2, s16, v2",
        "v_bfe_u32 v5, v1, 1, 3", "v_xor_b32 v2, v2, v5", "v_lshl_add_u32 v4, v2, 5, v4",
        "v_and_b32 v2, 1, v1", "v_lshl_add_u32 v4, v2, 4, v4", "v_add_u32 v4, s41, v4",
        "s_lshl_b32 s16, s40, 2", "s_sub_u32 s16, s16, 1024", "v_add_u32 v5, s16, v4",
        "s_lshl_b32 s43, s40, 5", "s_mov_b32 s48, 0")
    def dma(st):
        sl = (st % R) * SLOT
        return [f"s_add_u32 m0, s46, {sl}", "s_nop 0",
                "buffer_load_dwordx4 v4, s[24:27], s48 offen lds",
                "buffer_load_dwordx4 v5, s[24:27], s48 offen offset:1024 lds",
                f"s_add_u32 m0, s47, {sl}", "s_add_u32 s48, s48, s43",
                "buffer_load_dwordx4 v4, s[28:31], s49 offen lds",
                "buffer_load_dwordx4 v5, s[28:31], s49 offen offset:1024 lds",
                f"s_add_u32 m0, s45, {sl}", "s_add_u32 s49, s49, s43",
                "buffer_load_dwordx4 v3, s[32:35], s44 offen lds",
                "buffer_load_dwordx4 v10, s[32:35], s44 offen offset:1024 lds", "s_add_u32 s44, s44, 1024"]
    for j in range(R - 1): a.extend(dma(j))
    a.I("v_mov_b32 v12, v3",
        "v_lshrrev_b32 v2, 4, v1", "v_lshlrev_b32 v13, 11, v2", "v_and_b32 v2, 1, v2", "v_lshlrev_b32 v8, 2, v2",
        "v_bfe_u32 v2, v1, 2, 2", "v_lshl_add_u32 v13, v2, 8, v13", "v_add_u32 v8, v8, v2", "s_lshl_b32 s16, s23, 1",
        "v_xor_b32 v8, s16, v8", "v_lshl_add_u32 v13, v8, 5, v13", "v_and_b32 v2, 3, v1", "v_lshl_add_u32 v13, v2, 3, v13",
        "v_add_u32 v13, 8192, v13", "v_xor_b32 v14, 32, v13")
    for i in range(3): a.I(f"v_add_u32 v{15+i}, {2*SLOT}, v{12+i}")
    def reads(st):
        sl = st % R; vb = 12 if sl < 2 else 15; so = sl * SLOT if sl < 2 else 0
        o = []
        for h in range(2):
            for u in range(2):
                for rd in range(2):
                    o.append(f"ds_read_b64_tr_b16 {vr(FW+(h*2+u)*4+2*rd,2)}, v{vb+1+u} offset:{so+h*8192+rd*1024}")
        for t in range(8): o.append(f"ds_read_b128 {vr(FA+t*4,4)}, v{vb} offset:{so+t*1024}")
        return o
    def mm(first):
        o = [mfma16(acc(h, u, t), FW + (h * 2 + u) * 4, FA + t * 4, "0" if first else None) for t in range(8) for h in range(2) for u in range(2)]
        if "dot" in exp:
            d = [f"v_dot2_f32_bf16 v{20+(i&7)}, v{FW+i}, v30, v{20+(i&7)}" for i in range(16)] + \
                [f"v_dot2_f32_bf16 v{32+(i&7)}, v{FA+i}, v{30 if i&1 else FA+i}, v{32+(i&7)}" for i in range(16)]
            o = interleave(o, d)
        return o
    def body(k):
        o = [f"s_waitcnt vmcnt({6*max(0, min(k + R - 2, NST - 1) - k)})", "s_barrier"]
        if "bprio" in exp: o += ["s_setprio 1"]
        o += mix2(reads(k), dma(k + R - 1) if k + R - 1 < NST else [])
        o += ["s_waitcnt lgkmcnt(0)"]
        if "bprio" in exp: o += ["s_setprio 0"]
        return o + mm(k == 0)
    stamp(a, 1)
    a.extend(body(0) + body(1) + body(2))
    stamp(a, 2)
    b3 = body(3) + body(4) + body(5)
    for k0 in range(6, 30, 3): assert body(k0) + body(k0 + 1) + body(k0 + 2) == b3
    a.I("s_mov_b32 s51, 9")
    a.L("K2_LOOP")
    a.extend(b3)
    a.I("s_sub_u32 s51, s51, 1", "s_cmp_lg_u32 s51, 0", "s_cbranch_scc1 K2_LOOP")
    stamp(a, 3)
    a.extend(body(30) + body(31))
    stamp(a, 4)
    a.I("s_lshl_b32 s16, s22, 3", "s_cmp_ge_u32 s21, 28", "s_cbranch_scc1 K2_EPQ")
    a.I("s_mul_i32 s17, s16, 112", "s_lshl_b32 s18, s21, 2", "s_add_u32 s17, s17, s18",
        "s_add_u32 s17, s17, s23", "s_lshl_b32 s17, s17, 10", f"s_add_u32 s17, s17, {WS_H}")
    for t in range(8):
        g, u = acc(0, 0, t), acc(1, 0, t)
        for i in range(8): a.I(f"v_max_f32 v{g+i}, 0, v{g+i}")
        for i in range(8): a.I(f"v_mul_f32 v{g+i}, v{g+i}, v{u+i}")
        for d in range(4): a.I(f"v_cvt_pk_bf16_f32 v{FA+4*t+d}, v{g+2*d}, v{g+2*d+1}")
        a.I(f"buffer_store_dwordx4 {vr(FA+4*t,4)}, v3, s[32:35], s17 offen{SC}", f"s_add_u32 s17, s17, {112*1024}")
    stamp(a, 5)
    if STAMPS: a.I("s_waitcnt vmcnt(0)")
    stamp(a, 6)
    stamp_dump(a, 7, wgs=(0, 256))
    tl_end(a, 1)
    a.I("s_endpgm")
    a.L("K2_EPQ")
    a.I("s_sub_u32 s17, s21, 28", "s_lshl_b32 s17, s17, 3", "s_add_u32 s17, s17, s23", "s_lshl_b32 s17, s17, 7",
        "s_add_u32 s17, s17, s16", "s_lshl_b32 s17, s17, 10", f"s_add_u32 s17, s17, {WS_Q}",
        f"s_add_u32 s19, s17, {4*128*1024}", f"s_mov_b32 s18, {f32(QSCALE)}")
    for t in range(8):
        for h in range(2):
            g = acc(h, 0, t)
            for i in range(8): a.I(f"v_mul_f32 v{g+i}, s18, v{g+i}")
            for d in range(4): a.I(f"v_cvt_pk_bf16_f32 v{g+d}, v{g+2*d}, v{g+2*d+1}")
            a.I(f"buffer_store_dwordx4 {vr(g,4)}, v3, s[32:35], s{17+2*h} offen offset:{(t&3)*1024}{SC}")
        if t == 3: a.I("s_add_u32 s17, s17, 4096", "s_add_u32 s19, s19, 4096")
    tl_end(a, 1)
    a.L("K2_END")
    a.I("s_endpgm")
    return a, dict(grid=512, block=256, lds=SLOT * R, vgpr=256)

def k3(exp=''):
    a = Asm()
    tl_start(a)
    stamp(a, 0)
    a.I("s_cmp_ge_u32 s2, 512", "s_cbranch_scc1 K3_END",
        f"s_load_dwordx2 s[6:7], s[0:1], {KA_WS}",
        f"s_load_dwordx2 s[8:9], s[0:1], {KA_WD}",
        "v_lshrrev_b32 v2, 6, v0", "v_and_b32 v1, 63, v0",
        "v_readfirstlane_b32 s20, v2",
        "v_lshlrev_b32 v3, 4, v1",
        "s_waitcnt lgkmcnt(0)")
    srd(a, 32, 6, WS_SIZE)
    a.I("s_cmp_ge_u32 s2, 256", "s_cbranch_scc1 K3_DOWN")
    attention(a, exp)
    a.L("K3_DOWN")
    down(a, exp)
    a.L("K3_END")
    a.I("s_endpgm")
    return a, dict(grid=512, block=256, lds=81920, vgpr=256)

def attention(a, exp):
    QR = [16, 24]; KB = [32, 48]; VB = [40, 56]; P = 64; SEL = 72; Lr = [76, 80]; S = [96, 112]; O = [128, 144]; C = [160, 176]
    if "noatt" in exp:
        a.I("s_endpgm"); return
    a.I("s_lshr_b32 s21, s2, 2", "s_and_b32 s22, s2, 3", "s_lshl_b32 s22, s22, 3", "s_lshl_b32 s16, s20, 1", "s_add_u32 s22, s22, s16",
        "v_bfe_u32 v2, v1, 4, 1", "v_lshlrev_b32 v4, 10, v2", "v_lshrrev_b32 v2, 5, v1", "v_lshl_add_u32 v4, v2, 8, v4",
        "v_and_b32 v2, 15, v1", "v_lshl_add_u32 v4, v2, 4, v4",
        "s_lshl_b32 s24, s20, 13", "s_mov_b32 s25, s24",
        f"s_add_u32 s36, s6, {WS_KV}", "s_addc_u32 s37, s7, 0", "s_mov_b32 s38, 0x40000", "s_mov_b32 s39, 0x20000")
    def dma_groups():
        gs = []
        for g in range(2):
            for i in range(4):
                o = [f"s_add_u32 m0, s25, {g*4096}", f"s_add_u32 s23, s24, {g*4096}"] if i == 0 else []
                o += [f"buffer_load_dwordx4 v3, s[36:39], s23 offen offset:{i*1024} lds"]
                gs.append(o)
        gs[-1] += ["s_add_u32 s24, s24, 32768", "s_xor_b32 s25, s25, 32768"]
        return gs
    def dma_stage(): return [x for g in dma_groups() for x in g]
    a.I("s_lshl_b32 s16, s22, 7", "s_lshl_b32 s17, s21, 1", "s_add_u32 s16, s16, s17", "s_lshl_b32 s16, s16, 10",
        f"s_add_u32 s26, s16, {WS_Q}", f"s_add_u32 s27, s26, {128*1024}")
    a.extend(dma_stage())
    for b in range(2):
        for ks in range(2):
            a.I(f"buffer_load_dwordx4 {vr(QR[b]+4*ks,4)}, v4, s[32:35], s{26+b} offen offset:{ks*512}")
    a.extend(dma_groups()[0] + dma_groups()[1])
    a.I("v_lshrrev_b32 v2, 2, v1", "v_lshrrev_b32 v5, 4, v1", "v_xor_b32 v2, v2, v5", "v_and_b32 v2, 1, v2",
        "v_cmp_eq_u32 vcc, 0, v2", "v_mov_b32 v5, 0x3f803f80", f"v_cndmask_b32 v{SEL}, 0, v5, vcc")
    for i in range(1, 4): a.I(f"v_mov_b32 v{SEL+i}, v{SEL}")
    for b in range(2):
        for i in range(16): a.I(f"v_mov_b32 v{O[b]+i}, 0")
        for i in range(4): a.I(f"v_mov_b32 v{Lr[b]+i}, 0")
    for i in range(4): a.I(f"v_mov_b32 v{P+4+i}, 0", f"v_mov_b32 v{VB[1]+4+i}, 0")
    a.I("v_mov_b32 v6, v4", "v_add_u32 v7, 2048, v3", "s_mov_b32 s28, 0")
    a.I("s_waitcnt vmcnt(2)", "s_barrier")
    def rdK(buf, off): return [f"ds_read_b128 {vr(KB[buf]+4*ks,4)}, v6 offset:{off+ks*512}" for ks in range(2)]
    def rdV(buf, off): return [f"ds_read_b128 {vr(VB[buf]+4*ks,4)}, v7 offset:{off+ks*1024}" for ks in range(2)]
    a.extend(rdK(0, 0) + rdV(0, 0))
    a.I("s_waitcnt lgkmcnt(0)")
    for b in range(2):
        a.I(mfma32(S[b], KB[0], QR[b], "0"), mfma32(S[b], KB[0] + 4, QR[b] + 4))
    for b in range(2):
        s0 = S[b]
        a.I(f"v_max3_f32 v8, v{s0}, v{s0+1}, v{s0+2}")
        for i in range(3, 15, 2): a.I(f"v_max3_f32 v8, v8, v{s0+i}, v{s0+i+1}")
        a.I(f"v_max_f32 v8, v8, v{s0+15}", "v_mov_b32 v9, v8", "v_permlane32_swap_b32 v8, v9", "v_max_f32 v8, v8, v9",
            f"v_sub_f32 v{C[b]}, 0, v8")
        for i in range(1, 16): a.I(f"v_mov_b32 v{C[b]+i}, v{C[b]}")
    a.I(mfma32(S[0], KB[0], QR[0], C[0]), mfma32(S[0], KB[0] + 4, QR[0] + 4))
    stamp(a, 1)
    def tile(b, kbuf_next, vbuf, vprev, extra):
        nb = 1 - b; s0 = S[b]
        ex = [f"v_exp_f32 v{s0+i}, v{s0+i}" for i in range(16)]
        cv = [f"v_cvt_pk_bf16_f32 v{P+d}, v{s0+2*d}, v{s0+2*d+1}" for d in range(8)]
        e = list(extra) + [None] * 4
        o = [mfma32(S[nb], KB[kbuf_next], QR[nb], C[nb]), e[0]] + ex[0:3]
        o += [mfma32(O[nb], VB[vprev] + 4, P + 4), e[1]] + ex[3:6]
        o += [mfma16(Lr[nb], SEL, P + 4)] + ex[6:8]
        o += [mfma32(S[nb], KB[kbuf_next] + 4, QR[nb] + 4), e[2], cv[0], cv[1], ex[8], cv[2], cv[3], ex[9], ex[10]]
        o += [mfma32(O[b], VB[vbuf], P), e[3]] + ex[11:14]
        o += [mfma16(Lr[b], SEL, P), ex[14], ex[15]] + cv[4:8]
        return [x for x in o if x]
    a.I("s_nop 11")
    def tile2(b, kn, vb, vp, rds, dg):
        o = tile(b, kn, vb, vp, rds)
        if dg:
            idx = max(i for i, x in enumerate(o) if x.startswith("v_mfma"))
            o = o[:idx + 1] + dg + o[idx + 1:]
        return o
    a.L("K3A_LOOP")
    dg = dma_groups()
    for kb in range(8):
        cur = kb & 1; nxt = 1 - cur
        if kb == 7:
            a.I("s_waitcnt vmcnt(0)", "s_barrier", "v_xor_b32 v6, 0x8000, v6", "v_xor_b32 v7, 0x8000, v7")
        off = ((kb + 1) & 7) * 4096
        order = {7: (0, 1), 0: (2, 3), 1: (4, 5), 2: (6, 7)}.get(kb)
        a.extend(tile2(0, cur, cur, nxt, rdK(nxt, off) + rdV(nxt, off), dg[order[0]] if order else None))
        a.I("s_waitcnt lgkmcnt(2)")
        a.extend(tile2(1, nxt, cur, cur, [], dg[order[1]] if order else None))
        if kb == 7: a.I("s_add_u32 s28, s28, 1", "s_cmp_lg_u32 s28, 8")
        a.I("s_waitcnt lgkmcnt(0)")
    a.I("s_cbranch_scc1 K3A_LOOP")
    a.I(mfma32(O[1], VB[1] + 4, P + 4), mfma16(Lr[1], SEL, P + 4))
    stamp(a, 2)
    a.I(f"s_mov_b32 s16, {f32(2.0**100)}", "s_waitcnt vmcnt(0)")
    a.I(f"v_max_f32 v8, v{Lr[0]}, v{Lr[1]}")
    for b in range(2):
        for i in range(0, 16, 2): a.I(f"v_max3_f32 v8, v8, abs(v{O[b]+i}), abs(v{O[b]+i+1})")
    a.I(f"v_add_f32 v9, v{Lr[0]}, v{Lr[1]}")
    for b in range(2):
        for i in range(16): a.I(f"v_add_f32 v9, v9, v{O[b]+i}")
    a.I("v_cmp_nlt_f32 vcc, v8, s16", "v_cmp_u_f32 s[18:19], v9, v9", "s_or_b64 vcc, vcc, s[18:19]")
    if "force" in exp: a.I("s_mov_b64 vcc, -1")
    a.I("s_cbranch_vccz K3A_FIN")
    for b in range(2):
        M = 10; AL = 11
        for i in range(16): a.I(f"v_mov_b32 v{O[b]+i}, 0")
        for i in range(4): a.I(f"v_mov_b32 v{Lr[b]+i}, 0")
        a.I(f"v_mov_b32 v{M}, {f32(-3.0e38)}", f"s_mov_b32 s29, 0")
        a.L(f"K3A_FB{b}")
        for ks in range(2):
            a.I(f"buffer_load_dwordx4 {vr(KB[0]+4*ks,4)}, v4, s[36:39], s29 offen offset:{ks*512}",
                f"buffer_load_dwordx4 {vr(VB[0]+4*ks,4)}, v3, s[36:39], s29 offen offset:{2048+ks*1024}")
        a.I("s_waitcnt vmcnt(0)")
        s0 = S[0]
        a.I(mfma32(s0, KB[0], QR[b], "0"), mfma32(s0, KB[0] + 4, QR[b] + 4))
        a.I(f"v_max3_f32 v8, v{s0}, v{s0+1}, v{M}")
        for i in range(2, 16, 2): a.I(f"v_max3_f32 v8, v8, v{s0+i}, v{s0+i+1}")
        a.I("v_mov_b32 v9, v8", "v_permlane32_swap_b32 v8, v9", "v_max_f32 v8, v8, v9",
            f"v_sub_f32 v{AL}, v{M}, v8", f"v_exp_f32 v{AL}, v{AL}", f"v_mov_b32 v{M}, v8")
        for i in range(16): a.I(f"v_sub_f32 v{s0+i}, v{s0+i}, v8")
        for i in range(16): a.I(f"v_exp_f32 v{s0+i}, v{s0+i}")
        for i in range(16): a.I(f"v_mul_f32 v{O[b]+i}, v{O[b]+i}, v{AL}")
        for i in range(4): a.I(f"v_mul_f32 v{Lr[b]+i}, v{Lr[b]+i}, v{AL}")
        for d in range(8): a.I(f"v_cvt_pk_bf16_f32 v{P+d}, v{s0+2*d}, v{s0+2*d+1}")
        a.I(mfma32(O[b], VB[0], P), mfma16(Lr[b], SEL, P), mfma32(O[b], VB[0] + 4, P + 4), mfma16(Lr[b], SEL, P + 4))
        a.I("s_add_u32 s29, s29, 4096", f"s_cmp_lg_u32 s29, {64*4096}", f"s_cbranch_scc1 K3A_FB{b}")
    a.L("K3A_FIN")
    a.I("v_bfe_u32 v2, v1, 4, 1", "v_lshlrev_b32 v5, 15, v2", "v_lshrrev_b32 v2, 5, v1", "v_lshl_add_u32 v5, v2, 8, v5",
        "v_and_b32 v2, 15, v1", "v_lshl_add_u32 v5, v2, 4, v5",
        "s_lshl_b32 s16, s21, 6", "s_add_u32 s16, s16, s22", "s_lshl_b32 s16, s16, 10", f"s_add_u32 s16, s16, {WS_O}")
    for b in range(2):
        a.I(f"v_rcp_f32 v{8+b}, v{Lr[b]}")
    for b in range(2):
        for i in range(16): a.I(f"v_mul_f32 v{O[b]+i}, v{O[b]+i}, v{8+b}")
        for d in range(8): a.I(f"v_cvt_pk_bf16_f32 v{S[b]+d}, v{O[b]+2*d}, v{O[b]+2*d+1}")
        for ks in range(2):
            a.I(f"buffer_store_dwordx4 {vr(S[b]+4*ks,4)}, v5, s[32:35], s16 offen offset:{b*1024+ks*512}")
    stamp(a, 3)
    stamp_dump(a, 4, wgs=(0, 0))
    tl_end(a, 2)
    a.I("s_endpgm")

def ring_gemm(a, pfx, NST, R, SLOT, ndma, dma_fn, read_fn, mm_fn, exp, first_zero=True, tail_loads=()):
    for j in range(R - 1): a.extend(dma_fn())
    a.I(f"s_waitcnt vmcnt({ndma*(R-2)})", "s_barrier")
    if pfx == "K4": stamp(a, 2)
    a.extend(read_fn(0))
    issued = R - 1
    def body(k, first):
        nonlocal issued
        o = []
        buf = k & 1
        if k + 1 < NST:
            ntl = sum(x.startswith("buffer") for x in tail_loads) if issued > NST else 0
            o += [f"s_waitcnt vmcnt({ndma*max(0, min(issued, NST) - 1 - (k + 1)) + ntl}) lgkmcnt(0)", "s_barrier"]
            dm = dma_fn() if issued < NST else (list(tail_loads) if issued == NST else [])
            issued += 1
            fill = mix2(read_fn(1 - buf), dm)
        else:
            o += ["s_waitcnt lgkmcnt(0)"]; fill = []
        m = mm_fn(buf, first)
        o += interleave(m, fill, front_pattern(len(m), len(fill)))
        return o
    a.extend(body(0, first_zero)); a.extend(body(1, False))
    nloop = (NST - R - 1) // 2
    b2 = body(2, False) + body(3, False)
    for k in range(4, 2 + 2 * nloop, 2): assert body(k, False) + body(k + 1, False) == b2
    if pfx == "K4": stamp(a, 3)
    a.I(f"s_mov_b32 s51, {nloop}")
    a.L(pfx + "_LOOP")
    a.extend(b2)
    a.I("s_sub_u32 s51, s51, 1", "s_cmp_lg_u32 s51, 0", f"s_cbranch_scc1 {pfx}_LOOP")
    for k in range(2 + 2 * nloop, NST): a.extend(body(k, False))

def mix2(rd, dm):
    if not dm: return rd
    groups = []; cur = []
    for x in dm:
        cur.append(x)
        if x.startswith("buffer"): groups.append(cur); cur = []
    groups[-1] += cur
    pre = [x for x in rd if x.startswith("v_")]; ds = [x for x in rd if x.startswith("ds_")]; post = [x for x in rd if x.startswith("s_")]
    o = list(pre); n = len(groups); per = len(ds) // n
    for g in range(n):
        o += ds[g * per:(g + 1) * per if g < n - 1 else len(ds)] + groups[g]
    return o + post

def front_pattern(n, f):
    m = max(1, (3 * n) // 4)
    return [(f * (i + 1)) // m - (f * i) // m if i < m else 0 for i in range(n)]

def down(a, exp):
    if "nodown" in exp:
        a.I("s_endpgm"); return
    R = 5; SLOT = 16384; NST = 56
    FA = [64, 96]; FW = [80, 112]; ACC = 128
    M32 = "d32" in exp
    if "dprio" in exp: a.I("s_setprio 1")
    srd(a, 24, 8, 3584 * 1024 * 2)
    a.I("s_and_b32 s21, s2, 1",
        "s_bfe_u32 s16, s2, 0x10001", "s_lshl_b32 s16, s16, 3", "s_bfe_u32 s17, s2, 0x30003", "s_add_u32 s22, s16, s17",
        "s_bfe_u32 s16, s2, 0x10002", "s_lshl_b32 s16, s16, 2", "s_bfe_u32 s17, s2, 0x20006", "s_add_u32 s23, s16, s17",
        "s_lshl_b32 s16, s22, 3", "s_lshl_b32 s17, s20, 1", "s_add_u32 s16, s16, s17", "s_mul_i32 s16, s16, 112",
        "s_mul_i32 s17, s21, 56", "s_add_u32 s16, s16, s17", "s_lshl_b32 s44, s16, 10", f"s_add_u32 s44, s44, {WS_H}",
        f"v_add_u32 v10, {112*1024-1024}, v3",
        "s_lshl_b32 s45, s20, 11",
        "s_add_u32 s46, s45, 8192",
        "v_lshrrev_b32 v2, 4, v1", "s_lshl_b32 s16, s20, 3", "v_add_u32 v4, s16, v2", "v_lshlrev_b32 v4, 11, v4",
        "v_bfe_u32 v5, v1, 1, 3")
    if M32:
        a.I("v_lshlrev_b32 v6, 1, v2", "v_xor_b32 v6, v6, v5", "v_mov_b32 v7, v6")
    else:
        a.I("v_xor_b32 v6, v2, v5", "v_xor_b32 v7, 4, v6")
    a.I("v_and_b32 v2, 1, v1", "v_lshl_add_u32 v4, v2, 4, v4", "s_lshl_b32 s16, s23, 8", "v_add_u32 v4, s16, v4",
        f"v_add_u32 v5, {4*2048-1024}, v4",
        "v_lshl_add_u32 v4, v6, 5, v4", "v_lshl_add_u32 v5, v7, 5, v5",
        "s_mul_i32 s48, s21, %d" % (1792 * 2048),
        "s_mov_b32 s47, 0", "s_mov_b32 s50, 0",
        "s_and_b32 s40, s20, 1", "s_lshr_b32 s41, s20, 1")
    if M32:
        a.I("v_bfe_u32 v2, v1, 4, 1", "v_lshlrev_b32 v6, 10, v2", "v_lshrrev_b32 v8, 5, v1", "v_lshl_add_u32 v6, v8, 8, v6",
            "v_and_b32 v9, 15, v1", "v_lshl_add_u32 v6, v9, 4, v6", "s_lshl_b32 s16, s41, 12", "v_add_u32 v6, s16, v6",
            "v_lshlrev_b32 v7, 10, v8", "v_bfe_u32 v9, v1, 2, 2", "v_lshl_add_u32 v7, v9, 8, v7",
            "v_lshlrev_b32 v9, 1, v9", "s_lshl_b32 s16, s40, 2", "v_xor_b32 v9, s16, v9", "v_xor_b32 v9, v9, v2",
            "v_lshl_add_u32 v7, v9, 5, v7", "v_and_b32 v9, 3, v1", "v_lshl_add_u32 v7, v9, 3, v7", "v_add_u32 v7, 8192, v7",
            "v_xor_b32 v11, 64, v7")
    else:
        a.I("s_lshl_b32 s16, s41, 12", "v_add_u32 v6, s16, v3",
            "v_lshrrev_b32 v2, 4, v1", "v_lshlrev_b32 v7, 10, v2", "v_bfe_u32 v9, v1, 2, 2", "v_lshl_add_u32 v7, v9, 8, v7",
            "v_bfe_u32 v8, v1, 2, 3", "s_lshl_b32 s16, s40, 2", "v_xor_b32 v8, s16, v8",
            "v_lshl_add_u32 v7, v8, 5, v7", "v_and_b32 v9, 3, v1", "v_lshl_add_u32 v7, v9, 3, v7", "v_add_u32 v7, 8192, v7")
    if M32:
        a.I("v_mov_b32 v12, v6", "v_mov_b32 v13, v7", "v_mov_b32 v14, v11")
    else:
        a.I("v_mov_b32 v12, v6", "v_mov_b32 v13, v7", "v_xor_b32 v14, 32, v7", "v_xor_b32 v15, 64, v7", "v_xor_b32 v16, 96, v7")
    for i in range(5): a.I(f"v_add_u32 v{17+i}, 0x10000, v{12+i}")
    def dma(st):
        sl = (st % R) * SLOT
        return [f"s_add_u32 m0, s46, {sl}", "s_add_u32 s49, s48, 0",
                "buffer_load_dwordx4 v4, s[24:27], s49 offen lds", "s_add_u32 s48, s48, 65536",
                "buffer_load_dwordx4 v5, s[24:27], s49 offen offset:1024 lds",
                f"s_add_u32 m0, s45, {sl}", "s_add_u32 s43, s44, 0",
                "buffer_load_dwordx4 v3, s[32:35], s43 offen lds", "s_add_u32 s44, s44, 1024",
                "buffer_load_dwordx4 v10, s[32:35], s43 offen offset:1024 lds"]
    def reads(st):
        buf = st & 1; sl = st % R
        vb = 12 if sl < 4 else 17; so = sl * SLOT if sl < 4 else 0
        o = []
        if M32:
            for ks in range(2):
                for nb in range(2):
                    for rd in range(2):
                        o.append(f"ds_read_b64_tr_b16 {vr(FW[buf]+(ks*2+nb)*4+2*rd,2)}, v{vb+1+nb} offset:{so+ks*2048+rd*4096}")
                for tb in range(2):
                    o.append(f"ds_read_b128 {vr(FA[buf]+(ks*2+tb)*4,4)}, v{vb} offset:{so+tb*2048+ks*512}")
        else:
            for u in range(4):
                for rd in range(2):
                    o.append(f"ds_read_b64_tr_b16 {vr(FW[buf]+u*4+2*rd,2)}, v{vb+1+u} offset:{so+rd*4096}")
            for t in range(4):
                o.append(f"ds_read_b128 {vr(FA[buf]+t*4,4)}, v{vb} offset:{so+t*1024}")
        return o
    def mm(buf, first):
        if M32:
            return [mfma32(ACC + (tb * 2 + nb) * 16, FW[buf] + (ks * 2 + nb) * 4, FA[buf] + (ks * 2 + tb) * 4, "0" if (first and ks == 0) else None)
                    for ks in range(2) for tb in range(2) for nb in range(2)]
        return [mfma16(ACC + (t * 4 + u) * 4, FW[buf] + u * 4, FA[buf] + t * 4, "0" if first else None) for t in range(4) for u in range(4)]
    stamp(a, 1)
    PH = "dphase" in exp
    for j in range(R - 1): a.extend(dma(j))
    a.I(f"s_waitcnt vmcnt({4*(R-2)})", "s_barrier")
    a.extend(reads(0))
    def body(k):
        o = []
        if k + 1 < NST:
            o += (["s_setprio 1"] if PH else [])
            o += [f"s_waitcnt vmcnt({4*max(0, min(k + R - 1, NST) - 1 - (k + 1))}) lgkmcnt(0)", "s_barrier"]
            fill = mix2(reads(k + 1), dma(k + R - 1) if k + R - 1 < NST else [])
        else:
            o += ["s_waitcnt lgkmcnt(0)"]; fill = []
        m = mm(k & 1, k == 0)
        if PH: o += fill + ["s_setprio 0"] + m
        else: o += interleave(m, fill, front_pattern(len(m), len(fill)))
        return o
    a.extend(body(0) + body(1))
    b10 = [x for k in range(2, 12) for x in body(k)]
    for k0 in range(12, 52, 10): assert [x for k in range(k0, k0 + 10) for x in body(k)] == b10
    a.I("s_mov_b32 s51, 5")
    a.L("K3D_LOOP")
    a.extend(b10)
    a.I("s_sub_u32 s51, s51, 1", "s_cmp_lg_u32 s51, 0", "s_cbranch_scc1 K3D_LOOP")
    for k in range(52, NST): a.extend(body(k))
    stamp(a, 2)
    a.I("s_lshl_b32 s16, s22, 3", "s_lshl_b32 s17, s41, 2", "s_add_u32 s16, s16, s17", "s_lshl_b32 s16, s16, 5",
        "s_lshl_b32 s17, s23, 2", "s_add_u32 s16, s16, s17", "s_lshl_b32 s17, s40, 1", "s_add_u32 s16, s16, s17",
        "s_lshl_b32 s16, s16, 10", "s_lshl_b32 s17, s21, 22", "s_add_u32 s16, s16, s17", f"s_add_u32 s16, s16, {WS_P}")
    if M32:
        a.I("v_bfe_u32 v2, v1, 4, 1", "v_lshlrev_b32 v5, 15, v2", "v_lshrrev_b32 v2, 5, v1", "v_lshl_add_u32 v5, v2, 8, v5",
            "v_and_b32 v2, 15, v1", "v_lshl_add_u32 v5, v2, 4, v5")
        for tb in range(2):
            for nb in range(2):
                g = ACC + (tb * 2 + nb) * 16; pk = 64 + (tb * 2 + nb) * 8
                for e in range(2):
                    a.I(f"v_cvt_pk_bf16_f32 v{pk+4*e}, v{g+4*e}, v{g+4*e+1}", f"v_cvt_pk_bf16_f32 v{pk+4*e+1}, v{g+4*e+2}, v{g+4*e+3}",
                        f"v_cvt_pk_bf16_f32 v{pk+4*e+2}, v{g+8+4*e}, v{g+8+4*e+1}", f"v_cvt_pk_bf16_f32 v{pk+4*e+3}, v{g+8+4*e+2}, v{g+8+4*e+3}",
                        f"buffer_store_dwordx4 {vr(pk+4*e,4)}, v5, s[32:35], s16 offen offset:{nb*1024+e*512}")
            a.I("s_add_u32 s16, s16, 65536")
    else:
        for t in range(4):
            for nb in range(2):
                g = ACC + (t * 4 + nb * 2) * 4; pk = 64 + (t * 2 + nb) * 4
                for d in range(4): a.I(f"v_cvt_pk_bf16_f32 v{pk+d}, v{g+2*d}, v{g+2*d+1}")
                a.I(f"buffer_store_dwordx4 {vr(pk,4)}, v3, s[32:35], s16 offen offset:{nb*1024}")
            a.I("s_add_u32 s16, s16, 32768")
    stamp(a, 3)
    stamp_dump(a, 4, wgs=(356, 356))
    tl_end(a, 2)

def k4(exp=''):
    a = Asm()
    R = 6; SLOT = 24576; NST = 16
    FA = [64, 112]; FW = [96, 144]; ACC = 160
    tl_start(a)
    stamp(a, 0)
    a.I("s_cmp_ge_u32 s2, 256", "s_cbranch_scc1 K4_END",
        f"s_load_dwordx2 s[6:7], s[0:1], {KA_WS}", f"s_load_dwordx2 s[8:9], s[0:1], {KA_WO}",
        f"s_load_dwordx2 s[10:11], s[0:1], {KA_X}", f"s_load_dwordx2 s[12:13], s[0:1], {KA_OUT}",
        "v_lshrrev_b32 v2, 6, v0", "v_and_b32 v1, 63, v0", "v_readfirstlane_b32 s20, v2", "v_lshlrev_b32 v3, 4, v1",
        "s_bfe_u32 s16, s2, 0x20001", "s_lshl_b32 s16, s16, 2", "s_bfe_u32 s17, s2, 0x20003", "s_add_u32 s22, s16, s17",
        "s_and_b32 s16, s2, 1", "s_lshl_b32 s16, s16, 3", "s_lshr_b32 s17, s2, 5", "s_add_u32 s23, s16, s17",
        "s_lshl_b32 s16, s22, 3", "s_lshl_b32 s17, s20, 1", "s_add_u32 s16, s16, s17", "s_lshl_b32 s44, s16, 15",
        f"s_add_u32 s44, s44, {WS_O}", f"v_add_u32 v10, {32768-2048}, v3",
        "s_lshl_b32 s45, s20, 12",
        "s_lshl_b32 s46, s20, 11", "s_add_u32 s46, s46, 16384",
        "v_lshrrev_b32 v2, 3, v1", "s_lshl_b32 s16, s20, 4", "v_add_u32 v4, s16, v2", "v_lshlrev_b32 v4, 11, v4",
        "v_lshrrev_b32 v2, 4, v1", "v_bfe_u32 v5, v1, 1, 2", "v_xor_b32 v2, v2, v5", "v_lshl_add_u32 v4, v2, 5, v4",
        "v_and_b32 v2, 1, v1", "v_lshl_add_u32 v4, v2, 4, v4", "s_lshl_b32 s16, s23, 7", "v_add_u32 v4, s16, v4",
        f"v_add_u32 v5, {8*2048-1024}, v4",
        "s_mov_b32 s48, 0", "s_mov_b32 s47, 0", "s_mov_b32 s50, 0",
        "s_and_b32 s40, s20, 1", "s_lshr_b32 s41, s20, 1",
        "s_waitcnt lgkmcnt(0)")
    srd(a, 32, 6, WS_SIZE); srd(a, 24, 8, 1024 * 1024 * 2)
    def adv(reg): return [f"s_add_u32 s{reg}, s{reg}, {SLOT}", f"s_cmp_eq_u32 s{reg}, {SLOT*R}", f"s_cselect_b32 s{reg}, 0, s{reg}"]
    def dma():
        return ["s_add_u32 m0, s47, s46", "s_nop 0",
                "buffer_load_dwordx4 v4, s[24:27], s48 offen lds", "buffer_load_dwordx4 v5, s[24:27], s48 offen offset:1024 lds",
                f"s_add_u32 s48, s48, {64*2048}", "s_add_u32 m0, s47, s45", "s_nop 0",
                "buffer_load_dwordx4 v3, s[32:35], s44 offen lds", "buffer_load_dwordx4 v3, s[32:35], s44 offen offset:1024 lds",
                "buffer_load_dwordx4 v10, s[32:35], s44 offen offset:2048 lds", "buffer_load_dwordx4 v10, s[32:35], s44 offen offset:3072 lds",
                "s_add_u32 s44, s44, 2048"] + adv(47)
    srd(a, 28, 10, 2048 * 2048); srd(a, 36, 12, 2048 * 2048)
    a.I("v_and_b32 v2, 15, v1", "v_lshlrev_b32 v17, 11, v2", "v_bfe_u32 v2, v1, 4, 1", "v_lshl_add_u32 v17, v2, 5, v17",
        "v_lshrrev_b32 v2, 5, v1", "v_lshl_add_u32 v17, v2, 4, v17",
        "s_lshl_b32 s16, s22, 1", "s_add_u32 s16, s16, s41", "s_lshl_b32 s42, s16, 17",
        "s_lshl_b32 s16, s23, 1", "s_add_u32 s16, s16, s40", "s_lshl_b32 s17, s16, 6", "s_add_u32 s42, s42, s17",
        "s_lshl_b32 s17, s22, 3", "s_lshl_b32 s18, s41, 2", "s_add_u32 s17, s17, s18", "s_lshl_b32 s17, s17, 5",
        "s_add_u32 s17, s17, s16", "s_lshl_b32 s43, s17, 10", f"s_add_u32 s43, s43, {WS_P}")
    XR, P0, P1 = 192, 208, 224
    def seeds():
        o = []
        for t in range(4):
            o += [f"s_add_u32 s16, s42, {t*32768}", f"s_add_u32 s17, s43, {t*32768}", f"s_add_u32 s18, s17, {4<<20}",
                f"buffer_load_dwordx4 {vr(XR+4*t,4)}, v17, s[28:31], s16 offen",
                f"buffer_load_dwordx4 {vr(P0+4*t,4)}, v3, s[32:35], s17 offen",
                f"buffer_load_dwordx4 {vr(P1+4*t,4)}, v3, s[32:35], s18 offen"]
        return o
    a.I("s_lshl_b32 s16, s41, 13", "v_add_u32 v6, s16, v3",
        "v_lshrrev_b32 v2, 5, v1", "v_lshlrev_b32 v7, 11, v2", "v_bfe_u32 v8, v1, 2, 3", "v_lshl_add_u32 v7, v8, 7, v7",
        "v_lshrrev_b32 v8, 1, v8", "s_lshl_b32 s16, s40, 1", "v_xor_b32 v8, s16, v8", "v_lshl_add_u32 v7, v8, 5, v7",
        "v_and_b32 v8, 3, v1", "v_lshl_add_u32 v7, v8, 3, v7", "v_add_u32 v7, 16384, v7",
        "s_mov_b32 s19, 0xffff0000")
    def reads(buf):
        o = ["v_add_u32 v12, s50, v6", "v_add_u32 v13, s50, v7", "v_xor_b32 v14, 32, v13"]
        for kb in range(2):
            for u in range(2):
                for rd in range(2):
                    o.append(f"ds_read_b64_tr_b16 {vr(FW[buf]+(kb*2+u)*4+2*rd,2)}, v{13+u} offset:{kb*4096+rd*1024}")
            for t in range(4):
                o.append(f"ds_read_b128 {vr(FA[buf]+(kb*4+t)*4,4)}, v12 offset:{t*2048+kb*1024}")
        return o + adv(50)
    def mm(buf, first):
        return [mfma16(ACC + (t * 2 + u) * 4, FW[buf] + (kb * 2 + u) * 4, FA[buf] + (kb * 4 + t) * 4, "0" if (first and kb == 0) else None)
                for kb in range(2) for t in range(4) for u in range(2)]
    stamp(a, 1)
    ring_gemm(a, "K4", NST, R, SLOT, 6, dma, reads, mm, exp, tail_loads=seeds())
    stamp(a, 4)
    a.I("s_waitcnt vmcnt(0)")
    for t in range(4):
        a.I(f"v_permlane16_swap_b32 v{XR+4*t}, v{XR+4*t+2}", f"v_permlane16_swap_b32 v{XR+4*t+1}, v{XR+4*t+3}")
    for t in range(4):
        for d in range(4):
            g = ACC + t * 8 + 2 * d
            a.I(f"v_lshlrev_b32 v22, 16, v{XR+4*t+d}", f"v_and_b32 v23, s19, v{XR+4*t+d}",
                f"v_lshlrev_b32 v18, 16, v{P0+4*t+d}", f"v_and_b32 v19, s19, v{P0+4*t+d}",
                f"v_lshlrev_b32 v20, 16, v{P1+4*t+d}", f"v_and_b32 v21, s19, v{P1+4*t+d}",
                f"v_add_f32 v18, v18, v20", f"v_add_f32 v19, v19, v21",
                f"v_add_f32 v{g}, v{g}, v22", f"v_add_f32 v{g+1}, v{g+1}, v23",
                f"v_add_f32 v{g}, v{g}, v18", f"v_add_f32 v{g+1}, v{g+1}, v19")
    for t in range(4):
        g = ACC + t * 8; pk = 64 + 4 * t
        for d in range(4): a.I(f"v_cvt_pk_bf16_f32 v{pk+d}, v{g+2*d}, v{g+2*d+1}")
        a.I(f"v_permlane16_swap_b32 v{pk}, v{pk+2}", f"v_permlane16_swap_b32 v{pk+1}, v{pk+3}",
            f"buffer_store_dwordx4 {vr(pk,4)}, v17, s[36:39], s42 offen", "s_add_u32 s42, s42, 32768")
    stamp(a, 5)
    if STAMPS: a.I("s_waitcnt vmcnt(0)")
    stamp(a, 6)
    stamp_dump(a, 7)
    tl_end(a, 3)
    a.L("K4_END")
    a.I("s_endpgm")
    return a, dict(grid=256, block=256, lds=SLOT * R, vgpr=240)

def build(kernels, path):
    hdr = open("cdna_kernels/" + NAME + ".s.ref").read().split("; Override launch")[0]
    out = hdr
    for nm, (a, p) in kernels:
        out += f"; @launch kernel={nm}_kernel grid=({p['grid']},1,1) block=({p['block']},1,1) lds={p['lds']}\n"
    out += '.amdgcn_target "amdgcn-amd-amdhsa--gfx950"\n.text\n'
    for nm, (a, p) in kernels:
        a.fix(name=nm, verbose=VERB)
        out += f".globl {nm}_kernel\n.p2align 8\n.type {nm}_kernel,@function\n{nm}_kernel:\n" + a.text()
    out += '.section .rodata,"a"\n'
    for nm, (a, p) in kernels:
        v = p["vgpr"]
        out += f""".p2align 6
.amdhsa_kernel {nm}_kernel
  .amdhsa_next_free_vgpr {v}
  .amdhsa_next_free_sgpr 102
  .amdhsa_accum_offset {(v+3)//4*4}
  .amdhsa_group_segment_fixed_size 0
  .amdhsa_kernarg_size 96
  .amdhsa_user_sgpr_count 2
  .amdhsa_user_sgpr_kernarg_segment_ptr 1
  .amdhsa_system_sgpr_workgroup_id_x 1
.end_amdhsa_kernel
"""
    open(path, "w").write(out)

VERB = True
if __name__ == "__main__":
    path = sys.argv[1] if len(sys.argv) > 1 else "cdna_kernels/" + NAME + ".s"
    opts = dict(o.split("=") for o in sys.argv[2:])
    STAMPS = bool(int(opts.get("stamps", 0)))
    VERB = bool(int(opts.get("verb", 0)))
    FINE = "fine" in opts.get("exp", "")
    TL = bool(int(opts.get("tl", 0)))
    ex = opts.get("exp", "")
    SC = " sc1" if "sc1" in ex else (" sc0 sc1" if "sc01" in ex else (" nt" if "nt" in ex.split("_") else ""))
    ks = [("ln_kv", k1(ex)), ("gemm1", k2b(ex) if "k2b" in ex else k2(R=int(opts.get("R", 5)), exp=ex)), ("attn_down", k3(ex)), ("wo_out", k4(ex))]
    def empty(nm):
        a = Asm(); a.I("s_endpgm"); return (nm, (a, dict(grid=256, block=64, lds=0, vgpr=8)))
    if "emptyend" in ex: ks = ks + [empty("e1")]
    if "emptyfront" in ex: ks = [empty("e0")] + ks
    if "emptymid" in ex: ks = ks[:2] + [empty("e2")] + ks[2:]
    build(ks, path)
```

```python
import sys, struct, math
from asmlib import *

NAME = "parallel_sum__grouped_kv_mqa__glu_gated_reglu__prompt"
KA_X, KA_WQ, KA_WK, KA_WV, KA_WO, KA_BX, KA_WG, KA_WU, KA_WD, KA_OUT, KA_DBG, KA_WS = [8 * i for i in range(12)]
WS_XN = 0x0000000
WS_KV = 0x0400000
WS_Q  = 0x0500000
WS_O  = 0x0900000
WS_H  = 0x1000000
WS_P  = 0x2000000
WS_SIZE = 0x4000000

def f32(x): return "0x%08x" % struct.unpack("<I", struct.pack("<f", x))[0]
def vr(a, n=1): return f"v{a}" if n == 1 else f"v[{a}:{a+n-1}]"
def sr(a, n=1): return f"s{a}" if n == 1 else f"s[{a}:{a+n-1}]"

def srd(a, dst, base, size):
    a.I(f"s_mov_b32 s{dst}, s{base}", f"s_mov_b32 s{dst+1}, s{base+1}",
        f"s_mov_b32 s{dst+2}, {size:#x}", f"s_mov_b32 s{dst+3}, 0x20000")

def mfma32(d, A, B, C=None):
    c = vr(d, 16) if C is None else (C if isinstance(C, str) else vr(C, 16))
    return f"v_mfma_f32_32x32x16_bf16 {vr(d,16)}, {vr(A,4)}, {vr(B,4)}, {c}"
def mfma16(d, A, B, C=None):
    c = vr(d, 4) if C is None else (C if isinstance(C, str) else vr(C, 4))
    return f"v_mfma_f32_16x16x32_bf16 {vr(d,4)}, {vr(A,4)}, {vr(B,4)}, {c}"

STAMPS = False
SC = ''
TL = False
def tl_start(a):
    if TL or HD: a.I("s_memrealtime s[96:97]")
HD = False
def tl_end(a, kidx, wave_sgpr=20, ws_srd=32):
    if HD:
        lab = f"HDE{kidx}_{len(a.items)}"
        a.I("s_waitcnt vmcnt(0)", "s_memrealtime s[98:99]", f"s_load_dwordx2 s[88:89], s[0:1], {KA_DBG}", "s_waitcnt lgkmcnt(0)",
            f"s_cmp_lg_u32 s{wave_sgpr}, 0", f"s_cbranch_scc1 {lab}", "s_and_b32 s100, s2, 255", "s_cmp_lg_u32 s100, 7", f"s_cbranch_scc1 {lab}",
            f"s_add_u32 s92, s88, {512*(3-kidx)}", "s_addc_u32 s93, s89, 0", "s_mov_b32 s94, 256", "s_mov_b32 s95, 0x20000",
            "s_lshr_b32 s100, s2, 8", "s_lshl_b32 s100, s100, 3", f"s_add_u32 s100, s100, {16*kidx}",
            "v_mov_b32 v2, s96", "v_mov_b32 v3, s98", "v_mov_b32 v1, 0", "s_mov_b64 exec, 1",
            "buffer_store_dwordx2 v[2:3], v1, s[92:95], s100 offen")
        a.L(lab)
        return
    if not TL: return
    lab = f"TLE{kidx}_{len(a.items)}"
    a.I("s_waitcnt vmcnt(0)", "s_memrealtime s[98:99]", "s_waitcnt lgkmcnt(0)",
        f"s_lshl_b32 s100, s2, 3", f"s_add_u32 s100, s100, s{wave_sgpr}", "s_lshl_b32 s100, s100, 3",
        f"s_add_u32 s100, s100, {0x3F00000 + kidx * 0x10000}",
        "v_mov_b32 v2, s96", "v_mov_b32 v3, s98", "v_mov_b32 v1, 0", "s_mov_b64 exec, 1",
        f"buffer_store_dwordx2 v[2:3], v1, s[{ws_srd}:{ws_srd+3}], s100 offen")
FINE = False
def stamp(a, i):
    if STAMPS and (i == 0 or not FINE):
        a.I(f"s_memtime s[{64+2*i}:{65+2*i}]")
        if i == 0: a.I("s_memrealtime s[84:85]")
def stamp_dump(a, n, wave_sgpr=20, wgs=(0, 100)):
    if not STAMPS: return
    lab = f"STD{len(a.items)}"
    a.I("s_memrealtime s[86:87]", f"s_load_dwordx2 s[88:89], s[0:1], {KA_DBG}", "s_waitcnt vmcnt(0) lgkmcnt(0)")
    a.I("s_mov_b32 s92, s88", "s_mov_b32 s93, s89", "s_mov_b32 s94, 256", "s_mov_b32 s95, 0x20000")
    a.I(f"s_and_b32 s90, s{wave_sgpr}, 3", "s_cmp_lg_u32 s90, 0", f"s_cbranch_scc1 {lab}")
    a.I(f"s_mov_b32 s91, {0 if wgs[0] < 256 else 128}", f"s_cmp_eq_u32 s2, {wgs[0]}", f"s_cbranch_scc1 {lab}_W",
        f"s_mov_b32 s91, 128", f"s_cmp_eq_u32 s2, {wgs[1]}", f"s_cbranch_scc0 {lab}")
    a.L(lab + "_W")
    a.I(f"s_lshl_b32 s90, s{wave_sgpr}, 4", "s_add_u32 s91, s91, s90", "v_mov_b32 v1, 0")
    for i in range(n):
        a.I(f"s_sub_u32 s90, s{64+2*i}, s64") if i else a.I("s_mov_b32 s90, s64")
        a.I("v_mov_b32 v2, s90", f"buffer_store_dword v2, v1, s[92:95], s91 offen offset:{4*i}")
    a.I("s_sub_u32 s90, s86, s84", "v_mov_b32 v2, s90", f"buffer_store_dword v2, v1, s[92:95], s91 offen offset:{4*n}")
    a.I("v_mov_b32 v2, s84", f"buffer_store_dword v2, v1, s[92:95], s91 offen offset:{4*n+4}")
    a.L(lab)


def k1(exp=""):
    a = Asm()
    if "k1delay" in exp:
        a.I("s_sleep 64", "s_sleep 16")
    LW, LX, LR = 0, 65536, 98304
    tl_start(a)
    a.I("s_cmp_ge_u32 s2, 256", "s_cbranch_scc1 K1_END",
        f"s_load_dwordx2 s[4:5], s[0:1], {KA_X}",
        f"s_load_dwordx4 s[8:11], s[0:1], {KA_WK}",
        f"s_load_dwordx2 s[6:7], s[0:1], {KA_WS}",
        "v_lshrrev_b32 v2, 6, v0", "v_and_b32 v1, 63, v0",
        "v_readfirstlane_b32 s20, v2",
        "s_lshr_b32 s21, s2, 1",
        "s_and_b32 s22, s2, 1",
        "v_lshlrev_b32 v3, 4, v1",
        "s_lshl_b32 s23, s21, 15",
        "s_lshl_b32 s16, s20, 12",
        "s_add_u32 s19, s23, s16",
        "s_waitcnt lgkmcnt(0)")
    srd(a, 24, 4, 2048 * 2048)
    a.I("s_cmp_eq_u32 s22, 0", "s_cselect_b64 s[12:13], s[8:9], s[10:11]")
    for i in range(4):
        a.I(f"buffer_load_dwordx4 {vr(8+4*i,4)}, v3, s[24:27], s19 offen offset:{i*1024}")
    srd(a, 28, 12, 65536)
    srd(a, 32, 6, WS_SIZE)
    a.I("s_lshl_b32 s17, s20, 13", "s_mov_b32 m0, s17", "s_add_u32 s18, s17, 4096")
    for i in range(4):
        a.I(f"buffer_load_dwordx4 v3, s[28:31], s17 offen offset:{i*1024} lds")
    a.I("s_mov_b32 m0, s18", "s_nop 0")
    for i in range(4):
        a.I(f"buffer_load_dwordx4 v3, s[28:31], s18 offen offset:{i*1024} lds")
    a.I("s_mov_b32 s36, 0xffff0000")
    a.I("s_waitcnt vmcnt(8)")
    for r in range(2):
        for d in range(8):
            src = 8 + 8 * r + d
            a.I(f"v_lshlrev_b32 v{32+16*r+2*d}, 16, v{src}", f"v_and_b32 v{33+16*r+2*d}, s36, v{src}")
    def tree(dst, base, sq):
        t = 64 + (dst - 24) * 8
        for i in range(8):
            if sq:
                a.I(f"v_mul_f32 v{t+i}, v{base+2*i}, v{base+2*i}", f"v_fmac_f32 v{t+i}, v{base+2*i+1}, v{base+2*i+1}")
            else:
                a.I(f"v_add_f32 v{t+i}, v{base+2*i}, v{base+2*i+1}")
        for s in (4, 2):
            for i in range(s): a.I(f"v_add_f32 v{t+i}, v{t+i}, v{t+i+s}")
        a.I(f"v_add_f32 v{dst}, v{t}, v{t+1}")
    def wavered(rs, ss):
        for mod in ("row_shr:1 row_mask:0xf bank_mask:0xf bound_ctrl:0", "row_shr:2 row_mask:0xf bank_mask:0xf bound_ctrl:0",
                    "row_shr:4 row_mask:0xf bank_mask:0xf bound_ctrl:0", "row_shr:8 row_mask:0xf bank_mask:0xf bound_ctrl:0",
                    "row_bcast:15 row_mask:0xa bank_mask:0xf", "row_bcast:31 row_mask:0xc bank_mask:0xf"):
            for r in rs: a.I(f"v_add_f32_dpp v{r}, v{r}, v{r} {mod}")
        for r, s in zip(rs, ss): a.I(f"v_readlane_b32 s{s}, v{r}, 63")
    tree(24, 32, False); tree(25, 48, False)
    wavered((24, 25), (40, 41))
    a.I(f"s_mov_b32 s37, {f32(1.0/1024)}")
    a.I("v_mov_b32 v26, s40", "v_mov_b32 v27, s41", "v_mul_f32 v26, s37, v26", "v_mul_f32 v27, s37, v27")
    for r in range(2):
        for i in range(16): a.I(f"v_sub_f32 v{80+16*r+i}, v{32+16*r+i}, v{26+r}")
    tree(24, 80, True); tree(25, 96, True)
    wavered((24, 25), (42, 43))
    a.I("v_mov_b32 v28, s42", "v_mov_b32 v29, s43", "v_mul_f32 v28, s37, v28", "v_mul_f32 v29, s37, v29")
    def rnd(r): a.I(f"v_cvt_pk_bf16_f32 v{r}, v{r}, v{r}", f"v_lshlrev_b32 v{r}, 16, v{r}")
    a.I(f"s_mov_b32 s38, {f32(1e-5)}")
    for r in range(2):
        rnd(26 + r); rnd(28 + r)
        a.I(f"v_add_f32 v{28+r}, s38, v{28+r}"); rnd(28 + r)
        a.I(f"v_sqrt_f32 v{28+r}, v{28+r}"); rnd(28 + r)
        a.I(f"v_rcp_f32 v{28+r}, v{28+r}")
    for r in range(2):
        for d in range(8):
            b = 32 + 16 * r + 2 * d
            a.I(f"v_sub_f32 v{b}, v{b}, v{26+r}", f"v_sub_f32 v{b+1}, v{b+1}, v{26+r}",
                f"v_cvt_pk_bf16_f32 v{b}, v{b}, v{b+1}",
                f"v_and_b32 v{b+1}, s36, v{b}", f"v_lshlrev_b32 v{b}, 16, v{b}",
                f"v_mul_f32 v{b}, v{b}, v{28+r}", f"v_mul_f32 v{b+1}, v{b+1}, v{28+r}",
                f"v_cvt_pk_bf16_f32 v{8+8*r+d}, v{b}, v{b+1}")
    a.I("s_lshl_b32 s16, s20, 5", f"s_add_u32 s16, s16, {LX}", "v_lshlrev_b32 v4, 8, v1", "v_add_u32 v4, s16, v4")
    for r in range(2):
        for p in range(2):
            a.I(f"ds_write_b128 v4, {vr(8+8*r+4*p,4)} offset:{p*16384+r*16}")
    a.I("v_lshrrev_b32 v5, 4, v1",
        "s_lshl_b32 s16, s20, 12", f"s_add_u32 s16, s16, {LX}", "v_add_u32 v30, s16, v3",
        "v_lshlrev_b32 v31, 9, v5", "v_bfe_u32 v2, v1, 2, 2", "v_lshl_add_u32 v31, v2, 6, v31",
        "v_and_b32 v2, 3, v1", "v_lshl_add_u32 v31, v2, 3, v31", "v_add_u32 v31, s17, v31",
        "s_lshl_b32 s16, s22, 14", "s_lshl_b32 s18, s20, 11", "s_add_u32 s16, s16, s18",
        "s_add_u32 s39, s23, s16", f"s_add_u32 s16, s16, {LX}", "v_add_u32 v24, s16, v3",
        "s_waitcnt vmcnt(0) lgkmcnt(0)", "s_barrier")
    a.I("ds_read_b128 v[8:11], v24", "ds_read_b128 v[12:15], v24 offset:1024")
    for j in range(4):
        a.I(f"ds_read_b128 {vr(32+4*j,4)}, v30 offset:{j*1024}")
        for d in range(2):
            for rd in range(2):
                a.I(f"ds_read_b64_tr_b16 {vr(64+8*j+4*d+2*rd,2)}, v31 offset:{j*2048+rd*256+d*32}")
    a.I("s_waitcnt lgkmcnt(0)")
    a.I(f"buffer_store_dwordx4 v[8:11], v3, s[32:35], s39 offen offset:{WS_XN}",
        f"buffer_store_dwordx4 v[12:15], v3, s[32:35], s39 offen offset:{WS_XN+1024}")
    a.I("s_cmp_eq_u32 s22, 0", "s_cbranch_scc0 K1_V")
    for j in range(4):
        for d in range(2): a.I(mfma16(96 + 4 * d, 64 + 8 * j + 4 * d, 32 + 4 * j, "0" if j == 0 else None))
    a.I("s_branch K1_R")
    a.L("K1_V")
    for j in range(4):
        for d in range(2): a.I(mfma16(96 + 4 * d, 32 + 4 * j, 64 + 8 * j + 4 * d, "0" if j == 0 else None))
    a.L("K1_R")
    a.I("s_lshl_b32 s16, s20, 11", f"s_add_u32 s16, s16, {LR}", "v_add_u32 v4, s16, v3")
    for d in range(2): a.I(f"ds_write_b128 v4, {vr(96+4*d,4)} offset:{d*1024}")
    a.I("s_waitcnt lgkmcnt(0)", "s_barrier")
    a.I("s_cmp_lg_u32 s20, 0", "s_cbranch_scc1 K1_FIN")
    a.I(f"v_add_u32 v4, {LR}, v3")
    for w in range(8):
        a.I(f"ds_read_b128 {vr(32+8*w,4)}, v4 offset:{w*2048}", f"ds_read_b128 {vr(36+8*w,4)}, v4 offset:{w*2048+1024}")
    a.I("s_waitcnt lgkmcnt(0)")
    for s in (4, 2, 1):
        for w in range(s):
            for i in range(8): a.I(f"v_add_f32 v{32+8*w+i}, v{32+8*w+i}, v{32+8*(w+s)+i}")
    for d in range(4): a.I(f"v_cvt_pk_bf16_f32 v{8+d}, v{32+2*d}, v{33+2*d}")
    a.I("s_lshr_b32 s16, s21, 1", "s_lshl_b32 s18, s16, 12", f"s_add_u32 s18, s18, {WS_KV}",
        "s_and_b32 s16, s21, 1", "s_lshl_b32 s16, s16, 10", "s_add_u32 s18, s18, s16",
        "s_cmp_eq_u32 s22, 0", "s_cbranch_scc0 K1_SV",
        "buffer_store_dwordx4 v[8:11], v3, s[32:35], s18 offen",
        "s_branch K1_FIN")
    a.L("K1_SV")
    a.I("v_and_b32 v2, 1, v5", "v_lshlrev_b32 v4, 9, v2", "v_and_b32 v2, 15, v1", "v_lshl_add_u32 v4, v2, 4, v4",
        "v_lshrrev_b32 v2, 1, v5", "v_lshl_add_u32 v4, v2, 3, v4",
        "buffer_store_dwordx2 v[8:9], v4, s[32:35], s18 offen offset:2048",
        "buffer_store_dwordx2 v[10:11], v4, s[32:35], s18 offen offset:2304")
    a.L("K1_FIN")
    tl_end(a, 0)
    a.L("K1_END")
    a.I("s_endpgm")
    return a, dict(grid=256, block=512, lds=114688, vgpr=112)

QSCALE = (32 ** -0.5) * math.log2(math.e)

def k2(R=5, exp=''):
    a = Asm()
    NST = 32
    SLOT = 32768
    ACC = 128; FA = 64; FW = 96
    def acc(h, u, t): return ACC + (t * 4 + h * 2 + u) * 4
    stamp(a, 0)
    tl_start(a)
    a.I("s_cmp_ge_u32 s2, 256", "s_cbranch_scc1 K2_END",
        f"s_load_dwordx2 s[4:5], s[0:1], {KA_WQ}",
        f"s_load_dwordx4 s[8:11], s[0:1], {KA_WG}",
        f"s_load_dwordx2 s[6:7], s[0:1], {KA_WS}",
        "v_lshrrev_b32 v2, 6, v0", "v_and_b32 v1, 63, v0",
        "v_readfirstlane_b32 s20, v2",
        "s_and_b32 s16, s2, 7", "s_lshl_b32 s16, s16, 2", "s_bfe_u32 s17, s2, 0x20003", "s_add_u32 s21, s16, s17",
        "s_lshr_b32 s22, s2, 5",
        "s_and_b32 s23, s20, 3",
        "v_lshlrev_b32 v3, 4, v1",
        "v_add_u32 v10, 31744, v3",
        "s_lshl_b32 s16, s22, 4", "s_lshl_b32 s17, s20, 1", "s_add_u32 s16, s16, s17", "s_lshl_b32 s44, s16, 15",
        "s_lshl_b32 s45, s20, 11",
        "s_mov_b32 s47, 0",
        "s_mov_b32 s50, 0",
        "s_waitcnt lgkmcnt(0)")
    srd(a, 32, 6, WS_SIZE)
    def adv(reg): return [f"s_add_u32 s{reg}, s{reg}, {SLOT}", f"s_cmp_eq_u32 s{reg}, {SLOT*R}", f"s_cselect_b32 s{reg}, 0, s{reg}"]
    def dma_act():
        return ["s_add_u32 m0, s47, s45", "s_nop 0",
                f"buffer_load_dwordx4 v3, s[32:35], s44 offen lds",
                f"buffer_load_dwordx4 v10, s[32:35], s44 offen offset:1024 lds",
                "s_add_u32 s44, s44, 1024"]
    def dma_w(h):
        srdw = "s[24:27]" if h == 0 else "s[28:31]"
        so = 48 + h
        return [f"s_add_u32 s16, s47, s46" if h == 0 else "s_add_u32 s16, s16, 8192", "s_mov_b32 m0, s16", "s_nop 0",
                f"buffer_load_dwordx4 v4, {srdw}, s{so} offen lds",
                f"buffer_load_dwordx4 v5, {srdw}, s{so} offen offset:1024 lds",
                f"s_add_u32 s{so}, s{so}, s43"]
    def rdaddr():
        return ["s_lshr_b32 s17, s20, 2", "s_lshl_b32 s16, s17, 13", "v_add_u32 v6, s16, v3",
                "v_lshrrev_b32 v2, 4, v1", "v_lshlrev_b32 v7, 11, v2",
                "v_and_b32 v2, 1, v2", "v_lshlrev_b32 v12, 2, v2",
                "v_bfe_u32 v2, v1, 2, 2", "v_lshl_add_u32 v7, v2, 8, v7",
                "v_add_u32 v12, v12, v2", "s_lshl_b32 s16, s23, 1", "v_xor_b32 v12, s16, v12",
                "v_lshl_add_u32 v7, v12, 5, v7", "v_and_b32 v2, 3, v1", "v_lshl_add_u32 v7, v2, 3, v7",
                "v_add_u32 v7, 16384, v7", "v_xor_b32 v11, 32, v7"]
    def reads():
        o = ["v_add_u32 v8, s50, v6", "v_add_u32 v9, s50, v7", "v_add_u32 v13, s50, v11"]
        for h in range(2):
            for u in range(2):
                for rd in range(2):
                    o.append(f"ds_read_b64_tr_b16 {vr(FW+(h*2+u)*4+2*rd,2)}, v{9 if u == 0 else 13} offset:{h*8192+rd*1024}")
        for t in range(8):
            o.append(f"ds_read_b128 {vr(FA+t*4,4)}, v8 offset:{t*1024}")
        if "nords" in exp: o = o[:3]
        return o + adv(50)
    def mm(first):
        o = []
        for t in range(8):
            for h in range(2):
                for u in range(2):
                    o.append(mfma16(acc(h, u, t), FW + (h * 2 + u) * 4, FA + t * 4, "0" if first else None))
        if "nomm" in exp: o = o[:1]
        return o
    a.I("s_cmp_ge_u32 s21, 28", "s_cbranch_scc1 K2_QSET")
    srd(a, 24, 8, 1024 * 3584 * 2); srd(a, 28, 10, 1024 * 3584 * 2)
    a.I("s_mov_b32 s40, 7168", "s_lshl_b32 s41, s21, 8", "s_mov_b32 s49, 0", "s_branch K2_SET")
    a.L("K2_QSET")
    srd(a, 24, 4, 1024 * 1024 * 2); srd(a, 28, 4, 1024 * 1024 * 2)
    a.I("s_mov_b32 s40, 2048", "s_sub_u32 s41, s21, 28", "s_lshl_b32 s41, s41, 9", "s_mov_b32 s49, 256")
    a.L("K2_SET")
    a.I("v_lshrrev_b32 v2, 4, v1", "s_lshl_b32 s16, s23, 3", "v_add_u32 v4, s16, v2", "v_mul_lo_u32 v4, v4, s40",
        "s_and_b32 s16, s23, 1", "s_lshl_b32 s16, s16, 2", "v_add_u32 v2, s16, v2",
        "v_bfe_u32 v5, v1, 1, 3", "v_xor_b32 v2, v2, v5", "v_lshl_add_u32 v4, v2, 5, v4",
        "v_and_b32 v2, 1, v1", "v_lshl_add_u32 v4, v2, 4, v4", "v_add_u32 v4, s41, v4",
        "s_lshl_b32 s16, s40, 2", "s_sub_u32 s16, s16, 1024", "v_add_u32 v5, s16, v4",
        "s_lshl_b32 s43, s40, 5",
        "s_lshl_b32 s46, s23, 11", "s_add_u32 s46, s46, 16384",
        "s_mov_b32 s48, 0", "s_mov_b32 s52, 0")
    SPLIT = "split" in exp
    PRIO = "prio" in exp
    hi = ["s_setprio 1"] if PRIO else []
    lo = ["s_setprio 0"] if PRIO else []
    def dma_wx(h, slotreg):
        srdw = "s[24:27]" if h == 0 else "s[28:31]"
        so = 48 + h
        return [f"s_add_u32 s16, s{slotreg}, s46"] + ([f"s_add_u32 s16, s16, 8192"] if h else []) + ["s_mov_b32 m0, s16", "s_nop 0",
                f"buffer_load_dwordx4 v4, {srdw}, s{so} offen lds",
                f"buffer_load_dwordx4 v5, {srdw}, s{so} offen offset:1024 lds",
                f"s_add_u32 s{so}, s{so}, s43"]
    def mixmem(rd, dm):
        if "nomix" in exp or not rd or not dm: return rd + dm
        groups = []; cur = []
        for x in dm:
            cur.append(x)
            if x.startswith("buffer"): groups.append(cur); cur = []
        groups[-1] += cur
        pre = [x for x in rd if x.startswith("v_")]; ds = [x for x in rd if x.startswith("ds_")]; post = [x for x in rd if x.startswith("s_")]
        o = list(pre); n = len(groups); per = len(ds) // n
        for g in range(n):
            o += groups[g] + ds[g * per:(g + 1) * per if g < n - 1 else len(ds)]
        return o + post
    def st(i, on): return [f"s_memtime s[{64+2*i}:{65+2*i}]"] if (on and STAMPS and "fine" in exp) else []
    a.I("s_cmp_ge_u32 s20, 4", "s_cbranch_scc1 K2_B")
    logA = []
    def issueA(kind, stage):
        if stage >= NST: return []
        logA.append((kind, stage))
        return (dma_act() + adv(47)) if kind == "a" else (dma_wx(1, 52) + adv(52))
    def cnt(log, stage):
        last = max([i for i, (k, s_) in enumerate(log) if s_ <= stage], default=-1)
        return 2 * (len(log) - 1 - last)
    for j in range(R):
        if SPLIT and j < R - 1: a.extend(issueA("w", j))
        a.extend(issueA("a", j))
    a.extend(rdaddr())
    a.I(f"s_waitcnt vmcnt({cnt(logA, 0)})", "s_barrier")
    a.extend(reads())
    a.I(f"s_waitcnt vmcnt({cnt(logA, 1)}) lgkmcnt(0)", "s_barrier")
    def bodyA(k, first=False, fs=False):
        o = st(1, fs) + lo + mm(first) + hi + st(2, fs)
        rd = reads() if k + 1 < NST else []
        dm = (issueA("w", k - 1 + R) if SPLIT else []) + issueA("a", k + R)
        o += mixmem(rd, dm) + st(3, fs) + st(4, fs)
        if k + 1 < NST:
            o += [f"s_waitcnt vmcnt({cnt(logA, k + 2)}) lgkmcnt(0)"] + st(5, fs) + ["s_barrier"] + st(6, fs)
        return o
    stamp(a, 1)
    a.extend(bodyA(0, True))
    stamp(a, 2)
    a.I(f"s_mov_b32 s51, {NST-R-1}")
    a.L("K2_A_LOOP")
    body = bodyA(1, fs=True)
    for k in range(2, NST - R): assert bodyA(k, fs=True) == body
    a.extend(body)
    a.I("s_sub_u32 s51, s51, 1", "s_cmp_lg_u32 s51, 0", "s_cbranch_scc1 K2_A_LOOP")
    stamp(a, 3)
    for k in range(NST - R, NST): a.extend(bodyA(k))
    a.I("s_branch K2_EPI")
    a.L("K2_B")
    logB = []
    def dmaB(stage):
        if stage >= NST: return []
        o = dma_wx(0, 47) + ([] if SPLIT else dma_wx(1, 47)) + dma_act() + adv(47)
        for _ in range(2 if SPLIT else 3): logB.append(("x", stage))
        if "nodma" in exp: o = [x for x in o if not x.startswith("buffer")]
        return o
    for j in range(R - 1): a.extend(dmaB(j))
    a.extend(rdaddr())
    a.I(f"s_waitcnt vmcnt({cnt(logB, 0)})", "s_barrier")
    a.I(f"s_waitcnt vmcnt({cnt(logB, 1)})", "s_barrier")
    def bodyB(k, first=False, fs=False):
        o = st(1, fs) + hi + mixmem(reads(), dmaB(k - 1 + R)) + st(2, fs)
        o += st(3, fs) + ["s_waitcnt lgkmcnt(0)"] + st(4, fs)
        o += lo + mm(first) + st(5, fs)
        if k + 1 < NST:
            o += [f"s_waitcnt vmcnt({cnt(logB, k + 2)})", "s_barrier"] + st(6, fs)
        return o
    stamp(a, 1)
    a.extend(bodyB(0, True))
    stamp(a, 2)
    a.I(f"s_mov_b32 s51, {NST-R}")
    a.L("K2_B_LOOP")
    body = bodyB(1, fs=True)
    for k in range(2, NST - R + 1): assert bodyB(k, fs=True) == body
    a.extend(body)
    a.I("s_sub_u32 s51, s51, 1", "s_cmp_lg_u32 s51, 0", "s_cbranch_scc1 K2_B_LOOP")
    stamp(a, 3)
    for k in range(NST - R + 1, NST): a.extend(bodyB(k))
    a.L("K2_EPI")
    stamp(a, 4)
    a.I("s_lshl_b32 s16, s22, 4", "s_lshr_b32 s17, s20, 2", "s_lshl_b32 s17, s17, 3", "s_add_u32 s16, s16, s17",
        "s_cmp_ge_u32 s21, 28", "s_cbranch_scc1 K2_EPQ")
    a.I("s_mul_i32 s17, s16, 112", "s_lshl_b32 s18, s21, 2", "s_add_u32 s17, s17, s18",
        "s_add_u32 s17, s17, s23", "s_lshl_b32 s17, s17, 10", f"s_add_u32 s17, s17, {WS_H}")
    for t in range(8):
        g, u = acc(0, 0, t), acc(1, 0, t)
        for i in range(8): a.I(f"v_max_f32 v{g+i}, 0, v{g+i}")
        for i in range(8): a.I(f"v_mul_f32 v{g+i}, v{g+i}, v{u+i}")
        for d in range(4): a.I(f"v_cvt_pk_bf16_f32 v{FA+4*t+d}, v{g+2*d}, v{g+2*d+1}")
        a.I(f"buffer_store_dwordx4 {vr(FA+4*t,4)}, v3, s[32:35], s17 offen", f"s_add_u32 s17, s17, {112*1024}")
    stamp(a, 5)
    if STAMPS: a.I("s_waitcnt vmcnt(0)")
    stamp(a, 6)
    stamp_dump(a, 7)
    tl_end(a, 1)
    a.I("s_endpgm")
    a.L("K2_EPQ")
    a.I("s_sub_u32 s17, s21, 28", "s_lshl_b32 s17, s17, 3", "s_add_u32 s17, s17, s23", "s_lshl_b32 s17, s17, 7",
        "s_add_u32 s17, s17, s16", "s_lshl_b32 s17, s17, 10", f"s_add_u32 s17, s17, {WS_Q}",
        f"s_add_u32 s19, s17, {4*128*1024}",
        f"s_mov_b32 s18, {f32(QSCALE)}")
    for t in range(8):
        for h in range(2):
            g = acc(h, 0, t)
            for i in range(8): a.I(f"v_mul_f32 v{g+i}, s18, v{g+i}")
            for d in range(4): a.I(f"v_cvt_pk_bf16_f32 v{g+d}, v{g+2*d}, v{g+2*d+1}")
            a.I(f"buffer_store_dwordx4 {vr(g,4)}, v3, s[32:35], s{17+2*h} offen offset:{(t&3)*1024}")
        if t == 3: a.I("s_add_u32 s17, s17, 4096", "s_add_u32 s19, s19, 4096")
    tl_end(a, 1)
    a.L("K2_END")
    a.I("s_endpgm")
    return a, dict(grid=256, block=512, lds=SLOT * R, vgpr=256)

def k2b(exp=''):
    a = Asm()
    NST = 32; R = 3; SLOT = 24576
    ACC = 128; FA = 64; FW = 96
    def acc(h, u, t): return ACC + (t * 4 + h * 2 + u) * 4
    stamp(a, 0); tl_start(a)
    a.I("s_cmp_ge_u32 s2, 512", "s_cbranch_scc1 K2_END",
        f"s_load_dwordx2 s[4:5], s[0:1], {KA_WQ}",
        f"s_load_dwordx4 s[8:11], s[0:1], {KA_WG}",
        f"s_load_dwordx2 s[6:7], s[0:1], {KA_WS}",
        "v_lshrrev_b32 v2, 6, v0", "v_and_b32 v1, 63, v0",
        "v_readfirstlane_b32 s20, v2",
        "s_and_b32 s16, s2, 7", "s_lshl_b32 s16, s16, 2", "s_bfe_u32 s17, s2, 0x20003", "s_add_u32 s21, s16, s17",
        "s_bfe_u32 s22, s2, 0x30005", "s_lshl_b32 s22, s22, 1", "s_lshr_b32 s16, s2, 8", "s_add_u32 s22, s22, s16",
        "s_mov_b32 s23, s20",
        "v_lshlrev_b32 v3, 4, v1", "v_add_u32 v10, 31744, v3",
        "s_lshl_b32 s16, s22, 3", "s_lshl_b32 s17, s20, 1", "s_add_u32 s16, s16, s17", "s_lshl_b32 s44, s16, 15",
        "s_lshl_b32 s45, s20, 11", "s_add_u32 s46, s45, 8192", "s_add_u32 s47, s45, 16384",
        "s_waitcnt lgkmcnt(0)")
    srd(a, 32, 6, WS_SIZE)
    a.I("s_cmp_ge_u32 s21, 28", "s_cbranch_scc1 K2_QSET")
    srd(a, 24, 8, 1024 * 3584 * 2); srd(a, 28, 10, 1024 * 3584 * 2)
    a.I("s_mov_b32 s40, 7168", "s_lshl_b32 s41, s21, 8", "s_mov_b32 s49, 0", "s_branch K2_SET")
    a.L("K2_QSET")
    srd(a, 24, 4, 1024 * 1024 * 2); srd(a, 28, 4, 1024 * 1024 * 2)
    a.I("s_mov_b32 s40, 2048", "s_sub_u32 s41, s21, 28", "s_lshl_b32 s41, s41, 9", "s_mov_b32 s49, 256")
    a.L("K2_SET")
    a.I("v_lshrrev_b32 v2, 4, v1", "s_lshl_b32 s16, s23, 3", "v_add_u32 v4, s16, v2", "v_mul_lo_u32 v4, v4, s40",
        "s_and_b32 s16, s23, 1", "s_lshl_b32 s16, s16, 2", "v_add_u32 v2, s16, v2",
        "v_bfe_u32 v5, v1, 1, 3", "v_xor_b32 v2, v2, v5", "v_lshl_add_u32 v4, v2, 5, v4",
        "v_and_b32 v2, 1, v1", "v_lshl_add_u32 v4, v2, 4, v4", "v_add_u32 v4, s41, v4",
        "s_lshl_b32 s16, s40, 2", "s_sub_u32 s16, s16, 1024", "v_add_u32 v5, s16, v4",
        "s_lshl_b32 s43, s40, 5", "s_mov_b32 s48, 0")
    def dma(st):
        sl = (st % R) * SLOT
        return [f"s_add_u32 m0, s46, {sl}", "s_nop 0",
                "buffer_load_dwordx4 v4, s[24:27], s48 offen lds",
                "buffer_load_dwordx4 v5, s[24:27], s48 offen offset:1024 lds",
                f"s_add_u32 m0, s47, {sl}", "s_add_u32 s48, s48, s43",
                "buffer_load_dwordx4 v4, s[28:31], s49 offen lds",
                "buffer_load_dwordx4 v5, s[28:31], s49 offen offset:1024 lds",
                f"s_add_u32 m0, s45, {sl}", "s_add_u32 s49, s49, s43",
                "buffer_load_dwordx4 v3, s[32:35], s44 offen lds",
                "buffer_load_dwordx4 v10, s[32:35], s44 offen offset:1024 lds", "s_add_u32 s44, s44, 1024"]
    for j in range(R - 1): a.extend(dma(j))
    a.I("v_mov_b32 v12, v3",
        "v_lshrrev_b32 v2, 4, v1", "v_lshlrev_b32 v13, 11, v2", "v_and_b32 v2, 1, v2", "v_lshlrev_b32 v8, 2, v2",
        "v_bfe_u32 v2, v1, 2, 2", "v_lshl_add_u32 v13, v2, 8, v13", "v_add_u32 v8, v8, v2", "s_lshl_b32 s16, s23, 1",
        "v_xor_b32 v8, s16, v8", "v_lshl_add_u32 v13, v8, 5, v13", "v_and_b32 v2, 3, v1", "v_lshl_add_u32 v13, v2, 3, v13",
        "v_add_u32 v13, 8192, v13", "v_xor_b32 v14, 32, v13")
    for i in range(3): a.I(f"v_add_u32 v{15+i}, {2*SLOT}, v{12+i}")
    def reads(st):
        sl = st % R; vb = 12 if sl < 2 else 15; so = sl * SLOT if sl < 2 else 0
        o = []
        for h in range(2):
            for u in range(2):
                for rd in range(2):
                    o.append(f"ds_read_b64_tr_b16 {vr(FW+(h*2+u)*4+2*rd,2)}, v{vb+1+u} offset:{so+h*8192+rd*1024}")
        for t in range(8): o.append(f"ds_read_b128 {vr(FA+t*4,4)}, v{vb} offset:{so+t*1024}")
        return o
    def mm(first):
        o = [mfma16(acc(h, u, t), FW + (h * 2 + u) * 4, FA + t * 4, "0" if first else None) for t in range(8) for h in range(2) for u in range(2)]
        if "dot" in exp:
            d = [f"v_dot2_f32_bf16 v{20+(i&7)}, v{FW+i}, v30, v{20+(i&7)}" for i in range(16)] + \
                [f"v_dot2_f32_bf16 v{32+(i&7)}, v{FA+i}, v{30 if i&1 else FA+i}, v{32+(i&7)}" for i in range(16)]
            o = interleave(o, d)
        return o
    def body(k):
        o = [f"s_waitcnt vmcnt({6*max(0, min(k + R - 2, NST - 1) - k)})", "s_barrier"]
        if "bprio" in exp: o += ["s_setprio 1"]
        o += mix2(reads(k), dma(k + R - 1) if k + R - 1 < NST else [])
        o += ["s_waitcnt lgkmcnt(0)"]
        if "bprio" in exp: o += ["s_setprio 0"]
        return o + mm(k == 0)
    stamp(a, 1)
    a.extend(body(0) + body(1) + body(2))
    stamp(a, 2)
    b3 = body(3) + body(4) + body(5)
    for k0 in range(6, 30, 3): assert body(k0) + body(k0 + 1) + body(k0 + 2) == b3
    a.I("s_mov_b32 s51, 9")
    a.L("K2_LOOP")
    a.extend(b3)
    a.I("s_sub_u32 s51, s51, 1", "s_cmp_lg_u32 s51, 0", "s_cbranch_scc1 K2_LOOP")
    stamp(a, 3)
    a.extend(body(30) + body(31))
    stamp(a, 4)
    a.I("s_lshl_b32 s16, s22, 3", "s_cmp_ge_u32 s21, 28", "s_cbranch_scc1 K2_EPQ")
    a.I("s_mul_i32 s17, s16, 112", "s_lshl_b32 s18, s21, 2", "s_add_u32 s17, s17, s18",
        "s_add_u32 s17, s17, s23", "s_lshl_b32 s17, s17, 10", f"s_add_u32 s17, s17, {WS_H}")
    for t in range(8):
        g, u = acc(0, 0, t), acc(1, 0, t)
        for i in range(8): a.I(f"v_max_f32 v{g+i}, 0, v{g+i}")
        for i in range(8): a.I(f"v_mul_f32 v{g+i}, v{g+i}, v{u+i}")
        for d in range(4): a.I(f"v_cvt_pk_bf16_f32 v{FA+4*t+d}, v{g+2*d}, v{g+2*d+1}")
        a.I(f"buffer_store_dwordx4 {vr(FA+4*t,4)}, v3, s[32:35], s17 offen{SC}", f"s_add_u32 s17, s17, {112*1024}")
    stamp(a, 5)
    if STAMPS: a.I("s_waitcnt vmcnt(0)")
    stamp(a, 6)
    stamp_dump(a, 7, wgs=(0, 256))
    tl_end(a, 1)
    a.I("s_endpgm")
    a.L("K2_EPQ")
    a.I("s_sub_u32 s17, s21, 28", "s_lshl_b32 s17, s17, 3", "s_add_u32 s17, s17, s23", "s_lshl_b32 s17, s17, 7",
        "s_add_u32 s17, s17, s16", "s_lshl_b32 s17, s17, 10", f"s_add_u32 s17, s17, {WS_Q}",
        f"s_add_u32 s19, s17, {4*128*1024}", f"s_mov_b32 s18, {f32(QSCALE)}")
    for t in range(8):
        for h in range(2):
            g = acc(h, 0, t)
            for i in range(8): a.I(f"v_mul_f32 v{g+i}, s18, v{g+i}")
            for d in range(4): a.I(f"v_cvt_pk_bf16_f32 v{g+d}, v{g+2*d}, v{g+2*d+1}")
            a.I(f"buffer_store_dwordx4 {vr(g,4)}, v3, s[32:35], s{17+2*h} offen offset:{(t&3)*1024}{SC}")
        if t == 3: a.I("s_add_u32 s17, s17, 4096", "s_add_u32 s19, s19, 4096")
    tl_end(a, 1)
    a.L("K2_END")
    a.I("s_endpgm")
    return a, dict(grid=512, block=256, lds=SLOT * R, vgpr=256)

def k3(exp=''):
    a = Asm()
    tl_start(a)
    stamp(a, 0)
    a.I("s_cmp_ge_u32 s2, 512", "s_cbranch_scc1 K3_END",
        f"s_load_dwordx2 s[6:7], s[0:1], {KA_WS}",
        f"s_load_dwordx2 s[8:9], s[0:1], {KA_WD}",
        "v_lshrrev_b32 v2, 6, v0", "v_and_b32 v1, 63, v0",
        "v_readfirstlane_b32 s20, v2",
        "v_lshlrev_b32 v3, 4, v1",
        "s_waitcnt lgkmcnt(0)")
    srd(a, 32, 6, WS_SIZE)
    a.I("s_cmp_ge_u32 s2, 256", "s_cbranch_scc1 K3_DOWN")
    attention(a, exp)
    a.L("K3_DOWN")
    down(a, exp)
    a.L("K3_END")
    a.I("s_endpgm")
    return a, dict(grid=512, block=256, lds=81920, vgpr=256)

def attention(a, exp):
    QR = [16, 24]; KB = [32, 48]; VB = [40, 56]; P = 64; SEL = 72; Lr = [76, 80]; S = [96, 112]; O = [128, 144]; C = [160, 176]
    if "noatt" in exp:
        a.I("s_endpgm"); return
    a.I("s_lshr_b32 s21, s2, 2", "s_and_b32 s22, s2, 3", "s_lshl_b32 s22, s22, 3", "s_lshl_b32 s16, s20, 1", "s_add_u32 s22, s22, s16",
        "v_bfe_u32 v2, v1, 4, 1", "v_lshlrev_b32 v4, 10, v2", "v_lshrrev_b32 v2, 5, v1", "v_lshl_add_u32 v4, v2, 8, v4",
        "v_and_b32 v2, 15, v1", "v_lshl_add_u32 v4, v2, 4, v4",
        "s_lshl_b32 s24, s20, 13", "s_mov_b32 s25, s24",
        f"s_add_u32 s36, s6, {WS_KV}", "s_addc_u32 s37, s7, 0", "s_mov_b32 s38, 0x40000", "s_mov_b32 s39, 0x20000")
    def dma_groups():
        gs = []
        for g in range(2):
            for i in range(4):
                o = [f"s_add_u32 m0, s25, {g*4096}", f"s_add_u32 s23, s24, {g*4096}"] if i == 0 else []
                o += [f"buffer_load_dwordx4 v3, s[36:39], s23 offen offset:{i*1024} lds"]
                gs.append(o)
        gs[-1] += ["s_add_u32 s24, s24, 32768", "s_xor_b32 s25, s25, 32768"]
        return gs
    def dma_stage(): return [x for g in dma_groups() for x in g]
    a.I("s_lshl_b32 s16, s22, 7", "s_lshl_b32 s17, s21, 1", "s_add_u32 s16, s16, s17", "s_lshl_b32 s16, s16, 10",
        f"s_add_u32 s26, s16, {WS_Q}", f"s_add_u32 s27, s26, {128*1024}")
    a.extend(dma_stage())
    for b in range(2):
        for ks in range(2):
            a.I(f"buffer_load_dwordx4 {vr(QR[b]+4*ks,4)}, v4, s[32:35], s{26+b} offen offset:{ks*512}")
    a.extend(dma_groups()[0] + dma_groups()[1])
    a.I("v_lshrrev_b32 v2, 2, v1", "v_lshrrev_b32 v5, 4, v1", "v_xor_b32 v2, v2, v5", "v_and_b32 v2, 1, v2",
        "v_cmp_eq_u32 vcc, 0, v2", "v_mov_b32 v5, 0x3f803f80", f"v_cndmask_b32 v{SEL}, 0, v5, vcc")
    for i in range(1, 4): a.I(f"v_mov_b32 v{SEL+i}, v{SEL}")
    for b in range(2):
        for i in range(16): a.I(f"v_mov_b32 v{O[b]+i}, 0")
        for i in range(4): a.I(f"v_mov_b32 v{Lr[b]+i}, 0")
    for i in range(4): a.I(f"v_mov_b32 v{P+4+i}, 0", f"v_mov_b32 v{VB[1]+4+i}, 0")
    a.I("v_mov_b32 v6, v4", "v_add_u32 v7, 2048, v3", "s_mov_b32 s28, 0")
    a.I("s_waitcnt vmcnt(2)", "s_barrier")
    def rdK(buf, off): return [f"ds_read_b128 {vr(KB[buf]+4*ks,4)}, v6 offset:{off+ks*512}" for ks in range(2)]
    def rdV(buf, off): return [f"ds_read_b128 {vr(VB[buf]+4*ks,4)}, v7 offset:{off+ks*1024}" for ks in range(2)]
    a.extend(rdK(0, 0) + rdV(0, 0))
    a.I("s_waitcnt lgkmcnt(0)")
    for b in range(2):
        a.I(mfma32(S[b], KB[0], QR[b], "0"), mfma32(S[b], KB[0] + 4, QR[b] + 4))
    for b in range(2):
        s0 = S[b]
        a.I(f"v_max3_f32 v8, v{s0}, v{s0+1}, v{s0+2}")
        for i in range(3, 15, 2): a.I(f"v_max3_f32 v8, v8, v{s0+i}, v{s0+i+1}")
        a.I(f"v_max_f32 v8, v8, v{s0+15}", "v_mov_b32 v9, v8", "v_permlane32_swap_b32 v8, v9", "v_max_f32 v8, v8, v9",
            f"v_sub_f32 v{C[b]}, 0, v8")
        for i in range(1, 16): a.I(f"v_mov_b32 v{C[b]+i}, v{C[b]}")
    a.I(mfma32(S[0], KB[0], QR[0], C[0]), mfma32(S[0], KB[0] + 4, QR[0] + 4))
    stamp(a, 1)
    def tile(b, kbuf_next, vbuf, vprev, extra):
        nb = 1 - b; s0 = S[b]
        ex = [f"v_exp_f32 v{s0+i}, v{s0+i}" for i in range(16)]
        cv = [f"v_cvt_pk_bf16_f32 v{P+d}, v{s0+2*d}, v{s0+2*d+1}" for d in range(8)]
        e = list(extra) + [None] * 4
        o = [mfma32(S[nb], KB[kbuf_next], QR[nb], C[nb]), e[0]] + ex[0:3]
        o += [mfma32(O[nb], VB[vprev] + 4, P + 4), e[1]] + ex[3:6]
        o += [mfma16(Lr[nb], SEL, P + 4)] + ex[6:8]
        o += [mfma32(S[nb], KB[kbuf_next] + 4, QR[nb] + 4), e[2], cv[0], cv[1], ex[8], cv[2], cv[3], ex[9], ex[10]]
        o += [mfma32(O[b], VB[vbuf], P), e[3]] + ex[11:14]
        o += [mfma16(Lr[b], SEL, P), ex[14], ex[15]] + cv[4:8]
        return [x for x in o if x]
    a.I("s_nop 11")
    def tile2(b, kn, vb, vp, rds, dg):
        o = tile(b, kn, vb, vp, rds)
        if dg:
            idx = max(i for i, x in enumerate(o) if x.startswith("v_mfma"))
            o = o[:idx + 1] + dg + o[idx + 1:]
        return o
    a.L("K3A_LOOP")
    dg = dma_groups()
    for kb in range(8):
        cur = kb & 1; nxt = 1 - cur
        if kb == 7:
            a.I("s_waitcnt vmcnt(0)", "s_barrier", "v_xor_b32 v6, 0x8000, v6", "v_xor_b32 v7, 0x8000, v7")
        off = ((kb + 1) & 7) * 4096
        order = {7: (0, 1), 0: (2, 3), 1: (4, 5), 2: (6, 7)}.get(kb)
        a.extend(tile2(0, cur, cur, nxt, rdK(nxt, off) + rdV(nxt, off), dg[order[0]] if order else None))
        a.I("s_waitcnt lgkmcnt(2)")
        a.extend(tile2(1, nxt, cur, cur, [], dg[order[1]] if order else None))
        if kb == 7: a.I("s_add_u32 s28, s28, 1", "s_cmp_lg_u32 s28, 8")
        a.I("s_waitcnt lgkmcnt(0)")
    a.I("s_cbranch_scc1 K3A_LOOP")
    a.I(mfma32(O[1], VB[1] + 4, P + 4), mfma16(Lr[1], SEL, P + 4))
    stamp(a, 2)
    a.I(f"s_mov_b32 s16, {f32(2.0**100)}", "s_waitcnt vmcnt(0)")
    a.I(f"v_max_f32 v8, v{Lr[0]}, v{Lr[1]}")
    for b in range(2):
        for i in range(0, 16, 2): a.I(f"v_max3_f32 v8, v8, abs(v{O[b]+i}), abs(v{O[b]+i+1})")
    a.I(f"v_add_f32 v9, v{Lr[0]}, v{Lr[1]}")
    for b in range(2):
        for i in range(16): a.I(f"v_add_f32 v9, v9, v{O[b]+i}")
    a.I("v_cmp_nlt_f32 vcc, v8, s16", "v_cmp_u_f32 s[18:19], v9, v9", "s_or_b64 vcc, vcc, s[18:19]")
    if "force" in exp: a.I("s_mov_b64 vcc, -1")
    a.I("s_cbranch_vccz K3A_FIN")
    for b in range(2):
        M = 10; AL = 11
        for i in range(16): a.I(f"v_mov_b32 v{O[b]+i}, 0")
        for i in range(4): a.I(f"v_mov_b32 v{Lr[b]+i}, 0")
        a.I(f"v_mov_b32 v{M}, {f32(-3.0e38)}", f"s_mov_b32 s29, 0")
        a.L(f"K3A_FB{b}")
        for ks in range(2):
            a.I(f"buffer_load_dwordx4 {vr(KB[0]+4*ks,4)}, v4, s[36:39], s29 offen offset:{ks*512}",
                f"buffer_load_dwordx4 {vr(VB[0]+4*ks,4)}, v3, s[36:39], s29 offen offset:{2048+ks*1024}")
        a.I("s_waitcnt vmcnt(0)")
        s0 = S[0]
        a.I(mfma32(s0, KB[0], QR[b], "0"), mfma32(s0, KB[0] + 4, QR[b] + 4))
        a.I(f"v_max3_f32 v8, v{s0}, v{s0+1}, v{M}")
        for i in range(2, 16, 2): a.I(f"v_max3_f32 v8, v8, v{s0+i}, v{s0+i+1}")
        a.I("v_mov_b32 v9, v8", "v_permlane32_swap_b32 v8, v9", "v_max_f32 v8, v8, v9",
            f"v_sub_f32 v{AL}, v{M}, v8", f"v_exp_f32 v{AL}, v{AL}", f"v_mov_b32 v{M}, v8")
        for i in range(16): a.I(f"v_sub_f32 v{s0+i}, v{s0+i}, v8")
        for i in range(16): a.I(f"v_exp_f32 v{s0+i}, v{s0+i}")
        for i in range(16): a.I(f"v_mul_f32 v{O[b]+i}, v{O[b]+i}, v{AL}")
        for i in range(4): a.I(f"v_mul_f32 v{Lr[b]+i}, v{Lr[b]+i}, v{AL}")
        for d in range(8): a.I(f"v_cvt_pk_bf16_f32 v{P+d}, v{s0+2*d}, v{s0+2*d+1}")
        a.I(mfma32(O[b], VB[0], P), mfma16(Lr[b], SEL, P), mfma32(O[b], VB[0] + 4, P + 4), mfma16(Lr[b], SEL, P + 4))
        a.I("s_add_u32 s29, s29, 4096", f"s_cmp_lg_u32 s29, {64*4096}", f"s_cbranch_scc1 K3A_FB{b}")
    a.L("K3A_FIN")
    a.I("v_bfe_u32 v2, v1, 4, 1", "v_lshlrev_b32 v5, 15, v2", "v_lshrrev_b32 v2, 5, v1", "v_lshl_add_u32 v5, v2, 8, v5",
        "v_and_b32 v2, 15, v1", "v_lshl_add_u32 v5, v2, 4, v5",
        "s_lshl_b32 s16, s21, 6", "s_add_u32 s16, s16, s22", "s_lshl_b32 s16, s16, 10", f"s_add_u32 s16, s16, {WS_O}")
    for b in range(2):
        a.I(f"v_rcp_f32 v{8+b}, v{Lr[b]}")
    for b in range(2):
        for i in range(16): a.I(f"v_mul_f32 v{O[b]+i}, v{O[b]+i}, v{8+b}")
        for d in range(8): a.I(f"v_cvt_pk_bf16_f32 v{S[b]+d}, v{O[b]+2*d}, v{O[b]+2*d+1}")
        for ks in range(2):
            a.I(f"buffer_store_dwordx4 {vr(S[b]+4*ks,4)}, v5, s[32:35], s16 offen offset:{b*1024+ks*512}")
    stamp(a, 3)
    stamp_dump(a, 4, wgs=(0, 0))
    tl_end(a, 2)
    a.I("s_endpgm")

def ring_gemm(a, pfx, NST, R, SLOT, ndma, dma_fn, read_fn, mm_fn, exp, first_zero=True, tail_loads=()):
    for j in range(R - 1): a.extend(dma_fn())
    a.I(f"s_waitcnt vmcnt({ndma*(R-2)})", "s_barrier")
    if pfx == "K4": stamp(a, 2)
    a.extend(read_fn(0))
    issued = R - 1
    def body(k, first):
        nonlocal issued
        o = []
        buf = k & 1
        if k + 1 < NST:
            ntl = sum(x.startswith("buffer") for x in tail_loads) if issued > NST else 0
            o += [f"s_waitcnt vmcnt({ndma*max(0, min(issued, NST) - 1 - (k + 1)) + ntl}) lgkmcnt(0)", "s_barrier"]
            dm = dma_fn() if issued < NST else (list(tail_loads) if issued == NST else [])
            issued += 1
            fill = mix2(read_fn(1 - buf), dm)
        else:
            o += ["s_waitcnt lgkmcnt(0)"]; fill = []
        m = mm_fn(buf, first)
        o += interleave(m, fill, front_pattern(len(m), len(fill)))
        return o
    a.extend(body(0, first_zero)); a.extend(body(1, False))
    nloop = (NST - R - 1) // 2
    b2 = body(2, False) + body(3, False)
    for k in range(4, 2 + 2 * nloop, 2): assert body(k, False) + body(k + 1, False) == b2
    if pfx == "K4": stamp(a, 3)
    a.I(f"s_mov_b32 s51, {nloop}")
    a.L(pfx + "_LOOP")
    a.extend(b2)
    a.I("s_sub_u32 s51, s51, 1", "s_cmp_lg_u32 s51, 0", f"s_cbranch_scc1 {pfx}_LOOP")
    for k in range(2 + 2 * nloop, NST): a.extend(body(k, False))

def mix2(rd, dm):
    if not dm: return rd
    groups = []; cur = []
    for x in dm:
        cur.append(x)
        if x.startswith("buffer"): groups.append(cur); cur = []
    groups[-1] += cur
    pre = [x for x in rd if x.startswith("v_")]; ds = [x for x in rd if x.startswith("ds_")]; post = [x for x in rd if x.startswith("s_")]
    o = list(pre); n = len(groups); per = len(ds) // n
    for g in range(n):
        o += ds[g * per:(g + 1) * per if g < n - 1 else len(ds)] + groups[g]
    return o + post

def front_pattern(n, f):
    m = max(1, (3 * n) // 4)
    return [(f * (i + 1)) // m - (f * i) // m if i < m else 0 for i in range(n)]

def down(a, exp):
    if "nodown" in exp:
        a.I("s_endpgm"); return
    R = 5; SLOT = 16384; NST = 56
    FA = [64, 96]; FW = [80, 112]; ACC = 128
    M32 = "d32" in exp
    if "dprio" in exp: a.I("s_setprio 1")
    srd(a, 24, 8, 3584 * 1024 * 2)
    a.I("s_and_b32 s21, s2, 1",
        "s_bfe_u32 s16, s2, 0x10001", "s_lshl_b32 s16, s16, 3", "s_bfe_u32 s17, s2, 0x30003", "s_add_u32 s22, s16, s17",
        "s_bfe_u32 s16, s2, 0x10002", "s_lshl_b32 s16, s16, 2", "s_bfe_u32 s17, s2, 0x20006", "s_add_u32 s23, s16, s17",
        "s_lshl_b32 s16, s22, 3", "s_lshl_b32 s17, s20, 1", "s_add_u32 s16, s16, s17", "s_mul_i32 s16, s16, 112",
        "s_mul_i32 s17, s21, 56", "s_add_u32 s16, s16, s17", "s_lshl_b32 s44, s16, 10", f"s_add_u32 s44, s44, {WS_H}",
        f"v_add_u32 v10, {112*1024-1024}, v3",
        "s_lshl_b32 s45, s20, 11",
        "s_add_u32 s46, s45, 8192",
        "v_lshrrev_b32 v2, 4, v1", "s_lshl_b32 s16, s20, 3", "v_add_u32 v4, s16, v2", "v_lshlrev_b32 v4, 11, v4",
        "v_bfe_u32 v5, v1, 1, 3")
    if M32:
        a.I("v_lshlrev_b32 v6, 1, v2", "v_xor_b32 v6, v6, v5", "v_mov_b32 v7, v6")
    else:
        a.I("v_xor_b32 v6, v2, v5", "v_xor_b32 v7, 4, v6")
    a.I("v_and_b32 v2, 1, v1", "v_lshl_add_u32 v4, v2, 4, v4", "s_lshl_b32 s16, s23, 8", "v_add_u32 v4, s16, v4",
        f"v_add_u32 v5, {4*2048-1024}, v4",
        "v_lshl_add_u32 v4, v6, 5, v4", "v_lshl_add_u32 v5, v7, 5, v5",
        "s_mul_i32 s48, s21, %d" % (1792 * 2048),
        "s_mov_b32 s47, 0", "s_mov_b32 s50, 0",
        "s_and_b32 s40, s20, 1", "s_lshr_b32 s41, s20, 1")
    if M32:
        a.I("v_bfe_u32 v2, v1, 4, 1", "v_lshlrev_b32 v6, 10, v2", "v_lshrrev_b32 v8, 5, v1", "v_lshl_add_u32 v6, v8, 8, v6",
            "v_and_b32 v9, 15, v1", "v_lshl_add_u32 v6, v9, 4, v6", "s_lshl_b32 s16, s41, 12", "v_add_u32 v6, s16, v6",
            "v_lshlrev_b32 v7, 10, v8", "v_bfe_u32 v9, v1, 2, 2", "v_lshl_add_u32 v7, v9, 8, v7",
            "v_lshlrev_b32 v9, 1, v9", "s_lshl_b32 s16, s40, 2", "v_xor_b32 v9, s16, v9", "v_xor_b32 v9, v9, v2",
            "v_lshl_add_u32 v7, v9, 5, v7", "v_and_b32 v9, 3, v1", "v_lshl_add_u32 v7, v9, 3, v7", "v_add_u32 v7, 8192, v7",
            "v_xor_b32 v11, 64, v7")
    else:
        a.I("s_lshl_b32 s16, s41, 12", "v_add_u32 v6, s16, v3",
            "v_lshrrev_b32 v2, 4, v1", "v_lshlrev_b32 v7, 10, v2", "v_bfe_u32 v9, v1, 2, 2", "v_lshl_add_u32 v7, v9, 8, v7",
            "v_bfe_u32 v8, v1, 2, 3", "s_lshl_b32 s16, s40, 2", "v_xor_b32 v8, s16, v8",
            "v_lshl_add_u32 v7, v8, 5, v7", "v_and_b32 v9, 3, v1", "v_lshl_add_u32 v7, v9, 3, v7", "v_add_u32 v7, 8192, v7")
    if M32:
        a.I("v_mov_b32 v12, v6", "v_mov_b32 v13, v7", "v_mov_b32 v14, v11")
    else:
        a.I("v_mov_b32 v12, v6", "v_mov_b32 v13, v7", "v_xor_b32 v14, 32, v7", "v_xor_b32 v15, 64, v7", "v_xor_b32 v16, 96, v7")
    for i in range(5): a.I(f"v_add_u32 v{17+i}, 0x10000, v{12+i}")
    def dma(st):
        sl = (st % R) * SLOT
        return [f"s_add_u32 m0, s46, {sl}", "s_add_u32 s49, s48, 0",
                "buffer_load_dwordx4 v4, s[24:27], s49 offen lds", "s_add_u32 s48, s48, 65536",
                "buffer_load_dwordx4 v5, s[24:27], s49 offen offset:1024 lds",
                f"s_add_u32 m0, s45, {sl}", "s_add_u32 s43, s44, 0",
                "buffer_load_dwordx4 v3, s[32:35], s43 offen lds", "s_add_u32 s44, s44, 1024",
                "buffer_load_dwordx4 v10, s[32:35], s43 offen offset:1024 lds"]
    def reads(st):
        buf = st & 1; sl = st % R
        vb = 12 if sl < 4 else 17; so = sl * SLOT if sl < 4 else 0
        o = []
        if M32:
            for ks in range(2):
                for nb in range(2):
                    for rd in range(2):
                        o.append(f"ds_read_b64_tr_b16 {vr(FW[buf]+(ks*2+nb)*4+2*rd,2)}, v{vb+1+nb} offset:{so+ks*2048+rd*4096}")
                for tb in range(2):
                    o.append(f"ds_read_b128 {vr(FA[buf]+(ks*2+tb)*4,4)}, v{vb} offset:{so+tb*2048+ks*512}")
        else:
            for u in range(4):
                for rd in range(2):
                    o.append(f"ds_read_b64_tr_b16 {vr(FW[buf]+u*4+2*rd,2)}, v{vb+1+u} offset:{so+rd*4096}")
            for t in range(4):
                o.append(f"ds_read_b128 {vr(FA[buf]+t*4,4)}, v{vb} offset:{so+t*1024}")
        return o
    def mm(buf, first):
        if M32:
            return [mfma32(ACC + (tb * 2 + nb) * 16, FW[buf] + (ks * 2 + nb) * 4, FA[buf] + (ks * 2 + tb) * 4, "0" if (first and ks == 0) else None)
                    for ks in range(2) for tb in range(2) for nb in range(2)]
        return [mfma16(ACC + (t * 4 + u) * 4, FW[buf] + u * 4, FA[buf] + t * 4, "0" if first else None) for t in range(4) for u in range(4)]
    stamp(a, 1)
    PH = "dphase" in exp
    for j in range(R - 1): a.extend(dma(j))
    a.I(f"s_waitcnt vmcnt({4*(R-2)})", "s_barrier")
    a.extend(reads(0))
    def body(k):
        o = []
        if k + 1 < NST:
            o += (["s_setprio 1"] if PH else [])
            o += [f"s_waitcnt vmcnt({4*max(0, min(k + R - 1, NST) - 1 - (k + 1))}) lgkmcnt(0)", "s_barrier"]
            fill = mix2(reads(k + 1), dma(k + R - 1) if k + R - 1 < NST else [])
        else:
            o += ["s_waitcnt lgkmcnt(0)"]; fill = []
        m = mm(k & 1, k == 0)
        if PH: o += fill + ["s_setprio 0"] + m
        else: o += interleave(m, fill, front_pattern(len(m), len(fill)))
        return o
    a.extend(body(0) + body(1))
    b10 = [x for k in range(2, 12) for x in body(k)]
    for k0 in range(12, 52, 10): assert [x for k in range(k0, k0 + 10) for x in body(k)] == b10
    a.I("s_mov_b32 s51, 5")
    a.L("K3D_LOOP")
    a.extend(b10)
    a.I("s_sub_u32 s51, s51, 1", "s_cmp_lg_u32 s51, 0", "s_cbranch_scc1 K3D_LOOP")
    for k in range(52, NST): a.extend(body(k))
    stamp(a, 2)
    a.I("s_lshl_b32 s16, s22, 3", "s_lshl_b32 s17, s41, 2", "s_add_u32 s16, s16, s17", "s_lshl_b32 s16, s16, 5",
        "s_lshl_b32 s17, s23, 2", "s_add_u32 s16, s16, s17", "s_lshl_b32 s17, s40, 1", "s_add_u32 s16, s16, s17",
        "s_lshl_b32 s16, s16, 10", "s_lshl_b32 s17, s21, 22", "s_add_u32 s16, s16, s17", f"s_add_u32 s16, s16, {WS_P}")
    if M32:
        a.I("v_bfe_u32 v2, v1, 4, 1", "v_lshlrev_b32 v5, 15, v2", "v_lshrrev_b32 v2, 5, v1", "v_lshl_add_u32 v5, v2, 8, v5",
            "v_and_b32 v2, 15, v1", "v_lshl_add_u32 v5, v2, 4, v5")
        for tb in range(2):
            for nb in range(2):
                g = ACC + (tb * 2 + nb) * 16; pk = 64 + (tb * 2 + nb) * 8
                for e in range(2):
                    a.I(f"v_cvt_pk_bf16_f32 v{pk+4*e}, v{g+4*e}, v{g+4*e+1}", f"v_cvt_pk_bf16_f32 v{pk+4*e+1}, v{g+4*e+2}, v{g+4*e+3}",
                        f"v_cvt_pk_bf16_f32 v{pk+4*e+2}, v{g+8+4*e}, v{g+8+4*e+1}", f"v_cvt_pk_bf16_f32 v{pk+4*e+3}, v{g+8+4*e+2}, v{g+8+4*e+3}",
                        f"buffer_store_dwordx4 {vr(pk+4*e,4)}, v5, s[32:35], s16 offen offset:{nb*1024+e*512}")
            a.I("s_add_u32 s16, s16, 65536")
    else:
        for t in range(4):
            for nb in range(2):
                g = ACC + (t * 4 + nb * 2) * 4; pk = 64 + (t * 2 + nb) * 4
                for d in range(4): a.I(f"v_cvt_pk_bf16_f32 v{pk+d}, v{g+2*d}, v{g+2*d+1}")
                a.I(f"buffer_store_dwordx4 {vr(pk,4)}, v3, s[32:35], s16 offen offset:{nb*1024}")
            a.I("s_add_u32 s16, s16, 32768")
    stamp(a, 3)
    stamp_dump(a, 4, wgs=(356, 356))
    tl_end(a, 2)

def k4(exp=''):
    a = Asm()
    R = 6; SLOT = 24576; NST = 16
    FA = [64, 112]; FW = [96, 144]; ACC = 160
    tl_start(a)
    stamp(a, 0)
    a.I("s_cmp_ge_u32 s2, 256", "s_cbranch_scc1 K4_END",
        f"s_load_dwordx2 s[6:7], s[0:1], {KA_WS}", f"s_load_dwordx2 s[8:9], s[0:1], {KA_WO}",
        f"s_load_dwordx2 s[10:11], s[0:1], {KA_X}", f"s_load_dwordx2 s[12:13], s[0:1], {KA_OUT}",
        "v_lshrrev_b32 v2, 6, v0", "v_and_b32 v1, 63, v0", "v_readfirstlane_b32 s20, v2", "v_lshlrev_b32 v3, 4, v1",
        "s_bfe_u32 s16, s2, 0x20001", "s_lshl_b32 s16, s16, 2", "s_bfe_u32 s17, s2, 0x20003", "s_add_u32 s22, s16, s17",
        "s_and_b32 s16, s2, 1", "s_lshl_b32 s16, s16, 3", "s_lshr_b32 s17, s2, 5", "s_add_u32 s23, s16, s17",
        "s_lshl_b32 s16, s22, 3", "s_lshl_b32 s17, s20, 1", "s_add_u32 s16, s16, s17", "s_lshl_b32 s44, s16, 15",
        f"s_add_u32 s44, s44, {WS_O}", f"v_add_u32 v10, {32768-2048}, v3",
        "s_lshl_b32 s45, s20, 12",
        "s_lshl_b32 s46, s20, 11", "s_add_u32 s46, s46, 16384",
        "v_lshrrev_b32 v2, 3, v1", "s_lshl_b32 s16, s20, 4", "v_add_u32 v4, s16, v2", "v_lshlrev_b32 v4, 11, v4",
        "v_lshrrev_b32 v2, 4, v1", "v_bfe_u32 v5, v1, 1, 2", "v_xor_b32 v2, v2, v5", "v_lshl_add_u32 v4, v2, 5, v4",
        "v_and_b32 v2, 1, v1", "v_lshl_add_u32 v4, v2, 4, v4", "s_lshl_b32 s16, s23, 7", "v_add_u32 v4, s16, v4",
        f"v_add_u32 v5, {8*2048-1024}, v4",
        "s_mov_b32 s48, 0", "s_mov_b32 s47, 0", "s_mov_b32 s50, 0",
        "s_and_b32 s40, s20, 1", "s_lshr_b32 s41, s20, 1",
        "s_waitcnt lgkmcnt(0)")
    srd(a, 32, 6, WS_SIZE); srd(a, 24, 8, 1024 * 1024 * 2)
    def adv(reg): return [f"s_add_u32 s{reg}, s{reg}, {SLOT}", f"s_cmp_eq_u32 s{reg}, {SLOT*R}", f"s_cselect_b32 s{reg}, 0, s{reg}"]
    def dma():
        return ["s_add_u32 m0, s47, s46", "s_nop 0",
                "buffer_load_dwordx4 v4, s[24:27], s48 offen lds", "buffer_load_dwordx4 v5, s[24:27], s48 offen offset:1024 lds",
                f"s_add_u32 s48, s48, {64*2048}", "s_add_u32 m0, s47, s45", "s_nop 0",
                "buffer_load_dwordx4 v3, s[32:35], s44 offen lds", "buffer_load_dwordx4 v3, s[32:35], s44 offen offset:1024 lds",
                "buffer_load_dwordx4 v10, s[32:35], s44 offen offset:2048 lds", "buffer_load_dwordx4 v10, s[32:35], s44 offen offset:3072 lds",
                "s_add_u32 s44, s44, 2048"] + adv(47)
    srd(a, 28, 10, 2048 * 2048); srd(a, 36, 12, 2048 * 2048)
    a.I("v_and_b32 v2, 15, v1", "v_lshlrev_b32 v17, 11, v2", "v_bfe_u32 v2, v1, 4, 1", "v_lshl_add_u32 v17, v2, 5, v17",
        "v_lshrrev_b32 v2, 5, v1", "v_lshl_add_u32 v17, v2, 4, v17",
        "s_lshl_b32 s16, s22, 1", "s_add_u32 s16, s16, s41", "s_lshl_b32 s42, s16, 17",
        "s_lshl_b32 s16, s23, 1", "s_add_u32 s16, s16, s40", "s_lshl_b32 s17, s16, 6", "s_add_u32 s42, s42, s17",
        "s_lshl_b32 s17, s22, 3", "s_lshl_b32 s18, s41, 2", "s_add_u32 s17, s17, s18", "s_lshl_b32 s17, s17, 5",
        "s_add_u32 s17, s17, s16", "s_lshl_b32 s43, s17, 10", f"s_add_u32 s43, s43, {WS_P}")
    XR, P0, P1 = 192, 208, 224
    def seeds():
        o = []
        for t in range(4):
            o += [f"s_add_u32 s16, s42, {t*32768}", f"s_add_u32 s17, s43, {t*32768}", f"s_add_u32 s18, s17, {4<<20}",
                f"buffer_load_dwordx4 {vr(XR+4*t,4)}, v17, s[28:31], s16 offen",
                f"buffer_load_dwordx4 {vr(P0+4*t,4)}, v3, s[32:35], s17 offen",
                f"buffer_load_dwordx4 {vr(P1+4*t,4)}, v3, s[32:35], s18 offen"]
        return o
    a.I("s_lshl_b32 s16, s41, 13", "v_add_u32 v6, s16, v3",
        "v_lshrrev_b32 v2, 5, v1", "v_lshlrev_b32 v7, 11, v2", "v_bfe_u32 v8, v1, 2, 3", "v_lshl_add_u32 v7, v8, 7, v7",
        "v_lshrrev_b32 v8, 1, v8", "s_lshl_b32 s16, s40, 1", "v_xor_b32 v8, s16, v8", "v_lshl_add_u32 v7, v8, 5, v7",
        "v_and_b32 v8, 3, v1", "v_lshl_add_u32 v7, v8, 3, v7", "v_add_u32 v7, 16384, v7",
        "s_mov_b32 s19, 0xffff0000")
    def reads(buf):
        o = ["v_add_u32 v12, s50, v6", "v_add_u32 v13, s50, v7", "v_xor_b32 v14, 32, v13"]
        for kb in range(2):
            for u in range(2):
                for rd in range(2):
                    o.append(f"ds_read_b64_tr_b16 {vr(FW[buf]+(kb*2+u)*4+2*rd,2)}, v{13+u} offset:{kb*4096+rd*1024}")
            for t in range(4):
                o.append(f"ds_read_b128 {vr(FA[buf]+(kb*4+t)*4,4)}, v12 offset:{t*2048+kb*1024}")
        return o + adv(50)
    def mm(buf, first):
        return [mfma16(ACC + (t * 2 + u) * 4, FW[buf] + (kb * 2 + u) * 4, FA[buf] + (kb * 4 + t) * 4, "0" if (first and kb == 0) else None)
                for kb in range(2) for t in range(4) for u in range(2)]
    stamp(a, 1)
    ring_gemm(a, "K4", NST, R, SLOT, 6, dma, reads, mm, exp, tail_loads=seeds())
    stamp(a, 4)
    a.I("s_waitcnt vmcnt(0)")
    for t in range(4):
        a.I(f"v_permlane16_swap_b32 v{XR+4*t}, v{XR+4*t+2}", f"v_permlane16_swap_b32 v{XR+4*t+1}, v{XR+4*t+3}")
    for t in range(4):
        for d in range(4):
            g = ACC + t * 8 + 2 * d
            a.I(f"v_lshlrev_b32 v22, 16, v{XR+4*t+d}", f"v_and_b32 v23, s19, v{XR+4*t+d}",
                f"v_lshlrev_b32 v18, 16, v{P0+4*t+d}", f"v_and_b32 v19, s19, v{P0+4*t+d}",
                f"v_lshlrev_b32 v20, 16, v{P1+4*t+d}", f"v_and_b32 v21, s19, v{P1+4*t+d}",
                f"v_add_f32 v18, v18, v20", f"v_add_f32 v19, v19, v21",
                f"v_add_f32 v{g}, v{g}, v22", f"v_add_f32 v{g+1}, v{g+1}, v23",
                f"v_add_f32 v{g}, v{g}, v18", f"v_add_f32 v{g+1}, v{g+1}, v19")
    for t in range(4):
        g = ACC + t * 8; pk = 64 + 4 * t
        for d in range(4): a.I(f"v_cvt_pk_bf16_f32 v{pk+d}, v{g+2*d}, v{g+2*d+1}")
        a.I(f"v_permlane16_swap_b32 v{pk}, v{pk+2}", f"v_permlane16_swap_b32 v{pk+1}, v{pk+3}",
            f"buffer_store_dwordx4 {vr(pk,4)}, v17, s[36:39], s42 offen", "s_add_u32 s42, s42, 32768")
    stamp(a, 5)
    if STAMPS: a.I("s_waitcnt vmcnt(0)")
    stamp(a, 6)
    stamp_dump(a, 7)
    tl_end(a, 3)
    a.L("K4_END")
    a.I("s_endpgm")
    return a, dict(grid=256, block=256, lds=SLOT * R, vgpr=240)

def build(kernels, path):
    hdr = open("cdna_kernels/" + NAME + ".s.ref").read().split("; Override launch")[0]
    out = hdr
    for nm, (a, p) in kernels:
        kn = "" if nm == NAME else f"kernel={nm}_kernel "
        out += f"; @launch {kn}grid=({p['grid']},1,1) block=({p['block']},1,1) lds={p['lds']}\n"
    out += '.amdgcn_target "amdgcn-amd-amdhsa--gfx950"\n.text\n'
    for nm, (a, p) in kernels:
        a.fix(name=nm, verbose=VERB)
        out += f".globl {nm}_kernel\n.p2align 8\n.type {nm}_kernel,@function\n{nm}_kernel:\n" + a.text()
    out += '.section .rodata,"a"\n'
    for nm, (a, p) in kernels:
        v = p["vgpr"]
        out += f""".p2align 6
.amdhsa_kernel {nm}_kernel
  .amdhsa_next_free_vgpr {v}
  .amdhsa_next_free_sgpr 102
  .amdhsa_accum_offset {(v+3)//4*4}
  .amdhsa_group_segment_fixed_size 0
  .amdhsa_kernarg_size 96
  .amdhsa_user_sgpr_count 2
  .amdhsa_user_sgpr_kernarg_segment_ptr 1
  .amdhsa_system_sgpr_workgroup_id_x 1
.end_amdhsa_kernel
"""
    open(path, "w").write(out)

VERB = True
if __name__ == "__main__":
    path = sys.argv[1] if len(sys.argv) > 1 else "cdna_kernels/" + NAME + ".s"
    opts = dict(o.split("=") for o in sys.argv[2:])
    STAMPS = bool(int(opts.get("stamps", 0)))
    VERB = bool(int(opts.get("verb", 0)))
    FINE = "fine" in opts.get("exp", "")
    TL = bool(int(opts.get("tl", 0)))
    HD = bool(int(opts.get("hd", 0)))
    ex = opts.get("exp", "")
    SC = " sc1" if "sc1" in ex else (" sc0 sc1" if "sc01" in ex else (" nt" if "nt" in ex.split("_") else ""))
    ks = [("ln_kv", k1(ex)), ("gemm1", k2b(ex) if "k2b" in ex else k2(R=int(opts.get("R", 5)), exp=ex)), ("attn_down", k3(ex)), ("wo_out", k4(ex))]
    def empty(nm):
        a = Asm(); a.I("s_endpgm"); return (nm, (a, dict(grid=256, block=64, lds=0, vgpr=8)))
    if "emptyend" in ex: ks = ks + [empty("e1")]
    if "emptyfront" in ex: ks = [empty("e0")] + ks
    if "emptymid" in ex: ks = ks[:2] + [empty("e2")] + ks[2:]
    build(ks, path)
```

```python
import sys, struct, math
from asmlib import *
import gen as G
from gen import (NAME, KA_X, KA_WQ, KA_WK, KA_WV, KA_WO, KA_WG, KA_WU, KA_WD, KA_OUT, KA_DBG, KA_WS,
                 WS_XN, WS_KV, WS_Q, WS_O, WS_H, WS_P, WS_SIZE, f32, vr, srd, mfma32, mfma16, QSCALE, mix2, front_pattern)

WS_PW = WS_P
WS_X  = 0x2800000
WS_FL = 0x0480000
FL_H, FL_O, FL_W, FL_P = 0, 2048, 3072, 4096
WS_TL = 0x3F00000
TL = False
EXP = ""
OPT = {}
SC1 = " sc1"
LD = ""
INV = False

def ts(a, i):
    if TL: a.I(f"s_memrealtime s[{64+2*i}:{65+2*i}]")
def tl_dump(a, n):
    if not TL: return
    lab = f"TLD{len(a.items)}"
    a.I("s_waitcnt vmcnt(0) lgkmcnt(0)")
    ts(a, n - 1)
    a.I("s_waitcnt lgkmcnt(0)", "s_lshl_b32 s90, s2, 2", "s_add_u32 s90, s90, s20", "s_lshl_b32 s90, s90, 5",
        f"s_add_u32 s90, s90, {WS_TL + 0x10000}", "v_mov_b32 v1, 0", "s_mov_b64 exec, 1")
    for i in range(n):
        a.I(f"v_mov_b32 v2, s{64+2*i}", f"buffer_store_dword v2, v1, s[32:35], s90 offen offset:{4*i}")

_n = [0]
def poll(a, soff, n, voff=None):
    _n[0] += 1; lab = f"POLL{_n[0]}"
    if voff is None: a.I("v_lshlrev_b32 v8, 2, v1"); voff = 8
    a.I(f"s_mov_b64 exec, {(1 << n) - 1}", "s_mov_b32 s17, 0x40000")
    a.L(lab)
    a.I(f"buffer_load_dword v2, v{voff}, s[32:35], s{soff} offen sc1", "s_waitcnt vmcnt(0)",
        "v_cmp_ne_u32 vcc, 1, v2", f"s_cbranch_vccz {lab}_D",
        "s_sleep 4", "s_sub_u32 s17, s17, 1", "s_cmp_lg_u32 s17, 0", f"s_cbranch_scc1 {lab}")
    a.L(lab + "_D")
    a.I("s_mov_b64 exec, -1")
    if INV: a.I("buffer_inv sc1", "s_waitcnt vmcnt(0)")

def wg_wait(a, soff, n):
    _n[0] += 1; lab = f"WW{_n[0]}"
    a.I("s_cmp_lg_u32 s20, 0", f"s_cbranch_scc1 {lab}")
    poll(a, soff, n)
    a.L(lab)
    a.I("s_barrier")

def set_flag(a, soff):
    a.I("v_mov_b32 v2, 1", "v_mov_b32 v8, 0", "s_mov_b64 exec, 1",
        f"buffer_store_dword v2, v8, s[32:35], s{soff} offen sc1", "s_mov_b64 exec, -1")

def wg_publish(a, soff):
    _n[0] += 1; lab = f"PUB{_n[0]}"
    a.I("s_waitcnt vmcnt(0)", "s_barrier", "s_cmp_lg_u32 s20, 0", f"s_cbranch_scc1 {lab}")
    set_flag(a, soff)
    a.L(lab)

def ring(a, pfx, NST, R, U, dma, reads, mm, pre=None, tail_loads=(), prologue=None, loop_top=()):
    log = []
    def note(instrs, st):
        log.extend([st] * sum(x.startswith("buffer") for x in instrs)); return instrs
    def cnt(st):
        last = max([i for i, s_ in enumerate(log) if s_ is not None and s_ <= st], default=-1)
        return len(log) - 1 - last
    if prologue is None:
        for j in range(R): a.extend(note(dma(j), j))
        if pre: pre()
    else:
        prologue(note)
    a.I(f"s_waitcnt vmcnt({cnt(0)})", "s_barrier")
    a.extend(reads(0))
    def body(k):
        o = []
        if k + 1 < NST:
            o += [f"s_waitcnt vmcnt({cnt(k + 1)}) lgkmcnt(0)", "s_barrier"]
            dm = note(dma(k + R), k + R) if k + R < NST else (note(list(tail_loads), None) if k + R == NST else [])
            fill = mix2(reads(k + 1), dm)
        else:
            o += ["s_waitcnt lgkmcnt(0)"]; fill = []
        m = mm(k & 1)
        return o + interleave(m, fill, front_pattern(len(m), len(fill)))
    bodies = [body(k) for k in range(NST)]
    for head in range(0, R + U + 1):
        nl = (NST - R - head) // U
        bu = [x for k in range(head, head + U) for x in bodies[k]]
        if nl >= 1 and all([x for k in range(k0, k0 + U) for x in bodies[k]] == bu for k0 in range(head + U, head + nl * U, U)): break
    else: raise AssertionError("no periodic part")
    for k in range(head): a.extend(bodies[k])
    a.I(f"s_mov_b32 s51, {nl}")
    a.L(pfx + "_LOOP")
    a.extend(loop_top)
    a.extend(bu)
    a.I("s_sub_u32 s51, s51, 1", "s_cmp_lg_u32 s51, 0", f"s_cbranch_scc1 {pfx}_LOOP")
    for k in range(head + nl * U, NST): a.extend(bodies[k])

def g1(a):
    NST = 32; R = 3; SLOT = 24576
    ACC = 128; FA = [32, 80]; FW = [64, 112]
    def acc(h, u, t): return ACC + (t * 4 + h * 2 + u) * 4
    a.I(f"s_load_dwordx2 s[4:5], s[0:1], {KA_WQ}", f"s_load_dwordx4 s[8:11], s[0:1], {KA_WG}",
        "s_and_b32 s16, s2, 7", "s_lshr_b32 s17, s16, 1", "s_and_b32 s16, s16, 1",
        "s_bfe_u32 s18, s2, 0x50003",
        "s_mul_i32 s19, s17, 7",
        "s_lshl_b32 s23, s16, 2", "s_add_u32 s23, s23, s19",
        "s_and_b32 s22, s18, 15", "s_lshr_b32 s21, s18, 4", "s_add_u32 s21, s21, s23",
        "s_cmp_ge_u32 s2, 256", "s_cbranch_scc1 G1_MAP",
        "s_add_u32 s21, s23, 2", "s_cmp_ge_u32 s18, 16", "s_cbranch_scc1 G1_MAP",
        "s_and_b32 s22, s18, 7", "s_lshl_b32 s16, s16, 3", "s_add_u32 s22, s22, s16",
        "s_add_u32 s21, s19, 3", "s_cmp_ge_u32 s18, 8", "s_cbranch_scc1 G1_MAP",
        "s_add_u32 s21, s17, 28")
    a.L("G1_MAP")
    a.I("v_add_u32 v10, 31744, v3",
        "s_lshl_b32 s16, s22, 3", "s_lshl_b32 s17, s20, 1", "s_add_u32 s16, s16, s17", "s_lshl_b32 s44, s16, 15",
        "s_lshl_b32 s45, s20, 11", "s_add_u32 s46, s45, 8192", "s_add_u32 s47, s45, 16384",
        "s_waitcnt lgkmcnt(0)")
    a.I("s_cmp_ge_u32 s21, 28", "s_cbranch_scc1 G1_QSET")
    srd(a, 24, 8, 1024 * 3584 * 2); srd(a, 28, 10, 1024 * 3584 * 2)
    a.I("s_mov_b32 s40, 7168", "s_lshl_b32 s41, s21, 8", "s_mov_b32 s49, 0", "s_branch G1_SET")
    a.L("G1_QSET")
    srd(a, 24, 4, 1024 * 1024 * 2); srd(a, 28, 4, 1024 * 1024 * 2)
    a.I("s_mov_b32 s40, 2048", "s_sub_u32 s41, s21, 28", "s_lshl_b32 s41, s41, 9", "s_mov_b32 s49, 256")
    a.L("G1_SET")
    a.I("v_lshrrev_b32 v2, 4, v1", "s_lshl_b32 s16, s20, 3", "v_add_u32 v4, s16, v2", "v_mul_lo_u32 v4, v4, s40",
        "s_and_b32 s16, s20, 1", "s_lshl_b32 s16, s16, 2", "v_add_u32 v2, s16, v2",
        "v_bfe_u32 v5, v1, 1, 3", "v_xor_b32 v2, v2, v5", "v_lshl_add_u32 v4, v2, 5, v4",
        "v_and_b32 v2, 1, v1", "v_lshl_add_u32 v4, v2, 4, v4", "v_add_u32 v4, s41, v4",
        "s_lshl_b32 s16, s40, 2", "s_sub_u32 s16, s16, 1024", "v_add_u32 v5, s16, v4",
        "s_lshl_b32 s43, s40, 5", "s_mov_b32 s48, 0")
    def dma(st):
        sl = (st % R) * SLOT
        return [f"s_add_u32 m0, s46, {sl}", "s_nop 0",
                "buffer_load_dwordx4 v4, s[24:27], s48 offen lds",
                "buffer_load_dwordx4 v5, s[24:27], s48 offen offset:1024 lds",
                f"s_add_u32 m0, s47, {sl}", "s_add_u32 s48, s48, s43",
                "buffer_load_dwordx4 v4, s[28:31], s49 offen lds",
                "buffer_load_dwordx4 v5, s[28:31], s49 offen offset:1024 lds",
                f"s_add_u32 m0, s45, {sl}", "s_add_u32 s49, s49, s43",
                "buffer_load_dwordx4 v3, s[32:35], s44 offen lds",
                "buffer_load_dwordx4 v10, s[32:35], s44 offen offset:1024 lds", "s_add_u32 s44, s44, 1024"]
    def pre():
        a.I("v_mov_b32 v12, v3",
            "v_lshrrev_b32 v2, 4, v1", "v_lshlrev_b32 v13, 11, v2", "v_and_b32 v2, 1, v2", "v_lshlrev_b32 v8, 2, v2",
            "v_bfe_u32 v2, v1, 2, 2", "v_lshl_add_u32 v13, v2, 8, v13", "v_add_u32 v8, v8, v2", "s_lshl_b32 s16, s20, 1",
            "v_xor_b32 v8, s16, v8", "v_lshl_add_u32 v13, v8, 5, v13", "v_and_b32 v2, 3, v1", "v_lshl_add_u32 v13, v2, 3, v13",
            "v_add_u32 v13, 8192, v13", "v_xor_b32 v14, 32, v13")
        for i in range(3): a.I(f"v_add_u32 v{15+i}, {2*SLOT}, v{12+i}")
        for i in range(128): a.I(f"v_mov_b32 v{ACC+i}, 0")
    def reads(st):
        buf = st & 1; sl = st % R; vb = 12 if sl < 2 else 15; so = sl * SLOT if sl < 2 else 0
        o = []
        for h in range(2):
            for u in range(2):
                for rd in range(2):
                    o.append(f"ds_read_b64_tr_b16 {vr(FW[buf]+(h*2+u)*4+2*rd,2)}, v{vb+1+u} offset:{so+h*8192+rd*1024}")
        for t in range(8): o.append(f"ds_read_b128 {vr(FA[buf]+t*4,4)}, v{vb} offset:{so+t*1024}")
        return o
    def mm(buf):
        return [mfma16(acc(h, u, t), FW[buf] + (h * 2 + u) * 4, FA[buf] + t * 4) for t in range(8) for h in range(2) for u in range(2)]
    top = []
    if "noprio" not in EXP:
        PB = int(OPT.get("pb", 0)); PL = int(OPT.get("pl", 0))
        a.I("s_setprio 3", "s_cmp_ge_u32 s21, 28", "s_cbranch_scc1 G1_PR", "s_cmp_ge_u32 s2, 256", "s_cbranch_scc1 G1_PR", "s_setprio 2")
        a.L("G1_PR")
        top = [f"s_cmp_lg_u32 s51, {4-PB}", "s_cbranch_scc1 G1_PR2", "s_cmp_lt_u32 s2, 256", "s_cbranch_scc1 G1_PR2", f"s_setprio {PL}", "G1_PR2:"]
    ring(a, "G1", NST, R, 6, dma, reads, mm, pre, loop_top=top)
    if "noprio" not in EXP: a.I("s_setprio 3")
    ts(a, 1)
    PK = 32
    a.I("s_lshl_b32 s16, s22, 3", "s_cmp_ge_u32 s21, 28", "s_cbranch_scc1 G1_EPQ")
    a.I("s_mul_i32 s17, s16, 112", "s_lshl_b32 s18, s21, 2", "s_add_u32 s17, s17, s18",
        "s_add_u32 s17, s17, s20", "s_lshl_b32 s17, s17, 10", f"s_add_u32 s17, s17, {WS_H}")
    for t in range(8):
        g, u = acc(0, 0, t), acc(1, 0, t)
        for i in range(8): a.I(f"v_max_f32 v{g+i}, 0, v{g+i}")
        for i in range(8): a.I(f"v_mul_f32 v{g+i}, v{g+i}, v{u+i}")
        for d in range(4): a.I(f"v_cvt_pk_bf16_f32 v{PK+4*t+d}, v{g+2*d}, v{g+2*d+1}")
        a.I(f"buffer_store_dwordx4 {vr(PK+4*t,4)}, v3, s[32:35], s17 offen{SC1}", f"s_add_u32 s17, s17, {112*1024}")
    a.I("s_branch G1_PUB")
    a.L("G1_EPQ")
    a.I("s_sub_u32 s17, s21, 28", "s_lshl_b32 s17, s17, 3", "s_add_u32 s17, s17, s20", "s_lshl_b32 s17, s17, 7",
        "s_add_u32 s17, s17, s16", "s_lshl_b32 s17, s17, 10", f"s_add_u32 s17, s17, {WS_Q}",
        f"s_add_u32 s19, s17, {4*128*1024}", f"s_mov_b32 s18, {f32(QSCALE)}")
    for t in range(8):
        for h in range(2):
            g = acc(h, 0, t)
            for i in range(8): a.I(f"v_mul_f32 v{g+i}, s18, v{g+i}")
            for d in range(4): a.I(f"v_cvt_pk_bf16_f32 v{g+d}, v{g+2*d}, v{g+2*d+1}")
            a.I(f"buffer_store_dwordx4 {vr(g,4)}, v3, s[32:35], s{17+2*h} offen offset:{(t&3)*1024}{SC1}")
        if t == 3: a.I("s_add_u32 s17, s17, 4096", "s_add_u32 s19, s19, 4096")
    a.L("G1_PUB")
    a.I("s_lshl_b32 s18, s22, 5", "s_add_u32 s18, s18, s21", "s_lshl_b32 s18, s18, 2", f"s_add_u32 s18, s18, {WS_FL+FL_H}")
    wg_publish(a, 18)
    ts(a, 2)

def attention(a):
    QR = [16, 24]; KB = [32, 48]; VB = [40, 56]; P = 64; SEL = 72; Lr = [76, 80]; S = [96, 112]; O = [128, 144]; C = [160, 176]
    a.I("s_lshr_b32 s21, s2, 2", "s_and_b32 s22, s2, 3", "s_lshl_b32 s22, s22, 3", "s_lshl_b32 s16, s20, 1", "s_add_u32 s22, s22, s16",
        "v_bfe_u32 v2, v1, 4, 1", "v_lshlrev_b32 v4, 10, v2", "v_lshrrev_b32 v2, 5, v1", "v_lshl_add_u32 v4, v2, 8, v4",
        "v_and_b32 v2, 15, v1", "v_lshl_add_u32 v4, v2, 4, v4",
        "s_lshl_b32 s24, s20, 13", "s_mov_b32 s25, s24",
        f"s_add_u32 s36, s32, {WS_KV}", "s_addc_u32 s37, s33, 0", "s_mov_b32 s38, 0x40000", "s_mov_b32 s39, 0x20000")
    def dma_groups():
        gs = []
        for g in range(2):
            for i in range(4):
                o = [f"s_add_u32 m0, s25, {g*4096}", f"s_add_u32 s23, s24, {g*4096}"] if i == 0 else []
                o += [f"buffer_load_dwordx4 v3, s[36:39], s23 offen offset:{i*1024} lds"]
                gs.append(o)
        gs[-1] += ["s_add_u32 s24, s24, 32768", "s_xor_b32 s25, s25, 32768"]
        return gs
    a.extend([x for g in dma_groups() for x in g])
    a.extend(dma_groups()[0] + dma_groups()[1])
    a.I("s_lshl_b32 s16, s22, 7", "s_lshl_b32 s17, s21, 1", "s_add_u32 s16, s16, s17", "s_lshl_b32 s16, s16, 10",
        f"s_add_u32 s26, s16, {WS_Q}", f"s_add_u32 s27, s26, {128*1024}")
    a.I("v_lshrrev_b32 v2, 2, v1", "v_lshrrev_b32 v5, 4, v1", "v_xor_b32 v2, v2, v5", "v_and_b32 v2, 1, v2",
        "v_cmp_eq_u32 vcc, 0, v2", "v_mov_b32 v5, 0x3f803f80", f"v_cndmask_b32 v{SEL}, 0, v5, vcc")
    for i in range(1, 4): a.I(f"v_mov_b32 v{SEL+i}, v{SEL}")
    for b in range(2):
        for i in range(16): a.I(f"v_mov_b32 v{O[b]+i}, 0")
        for i in range(4): a.I(f"v_mov_b32 v{Lr[b]+i}, 0")
    for i in range(4): a.I(f"v_mov_b32 v{P+4+i}, 0", f"v_mov_b32 v{VB[1]+4+i}, 0")
    a.I("v_mov_b32 v6, v4", "v_add_u32 v7, 2048, v3", "s_mov_b32 s28, 0")
    a.I("s_lshr_b32 s18, s2, 4", "s_lshl_b32 s18, s18, 5", "s_and_b32 s16, s2, 3", "s_add_u32 s18, s18, s16",
        "s_lshl_b32 s18, s18, 2", f"s_add_u32 s18, s18, {WS_FL+FL_H+28*4}", "s_waitcnt vmcnt(2)")
    wg_wait(a, 18, 1)
    for b in range(2):
        for ks in range(2):
            a.I(f"buffer_load_dwordx4 {vr(QR[b]+4*ks,4)}, v4, s[32:35], s{26+b} offen offset:{ks*512}{LD}")
    def rdK(buf, off): return [f"ds_read_b128 {vr(KB[buf]+4*ks,4)}, v6 offset:{off+ks*512}" for ks in range(2)]
    def rdV(buf, off): return [f"ds_read_b128 {vr(VB[buf]+4*ks,4)}, v7 offset:{off+ks*1024}" for ks in range(2)]
    a.extend(rdK(0, 0) + rdV(0, 0))
    a.I("s_waitcnt vmcnt(0) lgkmcnt(0)")
    ts(a, 3)
    for b in range(2):
        a.I(mfma32(S[b], KB[0], QR[b], "0"), mfma32(S[b], KB[0] + 4, QR[b] + 4))
    for b in range(2):
        s0 = S[b]
        a.I(f"v_max3_f32 v8, v{s0}, v{s0+1}, v{s0+2}")
        for i in range(3, 15, 2): a.I(f"v_max3_f32 v8, v8, v{s0+i}, v{s0+i+1}")
        a.I(f"v_max_f32 v8, v8, v{s0+15}", "v_mov_b32 v9, v8", "v_permlane32_swap_b32 v8, v9", "v_max_f32 v8, v8, v9",
            f"v_sub_f32 v{C[b]}, 0, v8")
        for i in range(1, 16): a.I(f"v_mov_b32 v{C[b]+i}, v{C[b]}")
    a.I(mfma32(S[0], KB[0], QR[0], C[0]), mfma32(S[0], KB[0] + 4, QR[0] + 4))
    def tile(b, kbuf_next, vbuf, vprev, extra, dg):
        nb = 1 - b; s0 = S[b]
        ex = [f"v_exp_f32 v{s0+i}, v{s0+i}" for i in range(16)]
        cv = [f"v_cvt_pk_bf16_f32 v{P+d}, v{s0+2*d}, v{s0+2*d+1}" for d in range(8)]
        e = list(extra) + [None] * 4
        o = [mfma32(S[nb], KB[kbuf_next], QR[nb], C[nb]), e[0]] + ex[0:3]
        o += [mfma32(O[nb], VB[vprev] + 4, P + 4), e[1]] + ex[3:6]
        o += [mfma16(Lr[nb], SEL, P + 4)] + ex[6:8]
        o += [mfma32(S[nb], KB[kbuf_next] + 4, QR[nb] + 4), e[2], cv[0], cv[1], ex[8], cv[2], cv[3], ex[9], ex[10]]
        o += [mfma32(O[b], VB[vbuf], P), e[3]] + ex[11:14]
        o += [mfma16(Lr[b], SEL, P)] + (dg or []) + [ex[14], ex[15]] + cv[4:8]
        return [x for x in o if x]
    a.I("s_setprio 0", "s_nop 11")
    a.L("ATT_LOOP")
    dg = dma_groups()
    for kb in range(8):
        cur = kb & 1; nxt = 1 - cur
        if kb == 7:
            a.I("s_waitcnt vmcnt(0)", "s_barrier", "v_xor_b32 v6, 0x8000, v6", "v_xor_b32 v7, 0x8000, v7")
        off = ((kb + 1) & 7) * 4096
        order = {7: (0, 1), 0: (2, 3), 1: (4, 5), 2: (6, 7)}.get(kb)
        a.extend(tile(0, cur, cur, nxt, rdK(nxt, off) + rdV(nxt, off), dg[order[0]] if order else None))
        a.I("s_waitcnt lgkmcnt(2)")
        a.extend(tile(1, nxt, cur, cur, [], dg[order[1]] if order else None))
        if kb == 7: a.I("s_add_u32 s28, s28, 1", "s_cmp_lg_u32 s28, 8")
        a.I("s_waitcnt lgkmcnt(0)")
    a.I("s_cbranch_scc1 ATT_LOOP")
    a.I(mfma32(O[1], VB[1] + 4, P + 4), mfma16(Lr[1], SEL, P + 4))
    if "noprio" not in EXP: a.I("s_setprio 3")
    a.I(f"s_mov_b32 s16, {f32(2.0**100)}", "s_waitcnt vmcnt(0)")
    a.I(f"v_max_f32 v8, v{Lr[0]}, v{Lr[1]}")
    for b in range(2):
        for i in range(0, 16, 2): a.I(f"v_max3_f32 v8, v8, abs(v{O[b]+i}), abs(v{O[b]+i+1})")
    a.I(f"v_add_f32 v9, v{Lr[0]}, v{Lr[1]}")
    for b in range(2):
        for i in range(16): a.I(f"v_add_f32 v9, v9, v{O[b]+i}")
    a.I("v_cmp_nlt_f32 vcc, v8, s16", "v_cmp_u_f32 s[18:19], v9, v9", "s_or_b64 vcc, vcc, s[18:19]")
    if "force" in EXP: a.I("s_mov_b64 vcc, -1")
    a.I("s_cbranch_vccz ATT_FIN")
    for b in range(2):
        M = 10; AL = 11
        for i in range(16): a.I(f"v_mov_b32 v{O[b]+i}, 0")
        for i in range(4): a.I(f"v_mov_b32 v{Lr[b]+i}, 0")
        a.I(f"v_mov_b32 v{M}, {f32(-3.0e38)}", f"s_mov_b32 s29, 0")
        a.L(f"ATT_FB{b}")
        for ks in range(2):
            a.I(f"buffer_load_dwordx4 {vr(KB[0]+4*ks,4)}, v4, s[36:39], s29 offen offset:{ks*512}",
                f"buffer_load_dwordx4 {vr(VB[0]+4*ks,4)}, v3, s[36:39], s29 offen offset:{2048+ks*1024}")
        a.I("s_waitcnt vmcnt(0)")
        s0 = S[0]
        a.I(mfma32(s0, KB[0], QR[b], "0"), mfma32(s0, KB[0] + 4, QR[b] + 4))
        a.I(f"v_max3_f32 v8, v{s0}, v{s0+1}, v{M}")
        for i in range(2, 16, 2): a.I(f"v_max3_f32 v8, v8, v{s0+i}, v{s0+i+1}")
        a.I("v_mov_b32 v9, v8", "v_permlane32_swap_b32 v8, v9", "v_max_f32 v8, v8, v9",
            f"v_sub_f32 v{AL}, v{M}, v8", f"v_exp_f32 v{AL}, v{AL}", f"v_mov_b32 v{M}, v8")
        for i in range(16): a.I(f"v_sub_f32 v{s0+i}, v{s0+i}, v8")
        for i in range(16): a.I(f"v_exp_f32 v{s0+i}, v{s0+i}")
        for i in range(16): a.I(f"v_mul_f32 v{O[b]+i}, v{O[b]+i}, v{AL}")
        for i in range(4): a.I(f"v_mul_f32 v{Lr[b]+i}, v{Lr[b]+i}, v{AL}")
        for d in range(8): a.I(f"v_cvt_pk_bf16_f32 v{P+d}, v{s0+2*d}, v{s0+2*d+1}")
        a.I(mfma32(O[b], VB[0], P), mfma16(Lr[b], SEL, P), mfma32(O[b], VB[0] + 4, P + 4), mfma16(Lr[b], SEL, P + 4))
        a.I("s_add_u32 s29, s29, 4096", f"s_cmp_lg_u32 s29, {64*4096}", f"s_cbranch_scc1 ATT_FB{b}")
    a.L("ATT_FIN")
    a.I("v_bfe_u32 v2, v1, 4, 1", "v_lshlrev_b32 v5, 15, v2", "v_lshrrev_b32 v2, 5, v1", "v_lshl_add_u32 v5, v2, 8, v5",
        "v_and_b32 v2, 15, v1", "v_lshl_add_u32 v5, v2, 4, v5",
        "s_lshl_b32 s16, s21, 6", "s_add_u32 s16, s16, s22", "s_lshl_b32 s16, s16, 10", f"s_add_u32 s16, s16, {WS_O}")
    for b in range(2): a.I(f"v_rcp_f32 v{8+b}, v{Lr[b]}")
    for b in range(2):
        for i in range(16): a.I(f"v_mul_f32 v{O[b]+i}, v{O[b]+i}, v{8+b}")
        for d in range(8): a.I(f"v_cvt_pk_bf16_f32 v{S[b]+d}, v{O[b]+2*d}, v{O[b]+2*d+1}")
        for ks in range(2):
            a.I(f"buffer_store_dwordx4 {vr(S[b]+4*ks,4)}, v5, s[32:35], s16 offen offset:{b*1024+ks*512}{SC1}")
    a.I("s_lshl_b32 s18, s2, 2", f"s_add_u32 s18, s18, {WS_FL+FL_O}")
    wg_publish(a, 18)
    ts(a, 4)

def xsel(a, dst):
    a.I("v_and_b32 v2, 15, v1", f"v_lshlrev_b32 v{dst}, 11, v2", "v_bfe_u32 v2, v1, 4, 1", f"v_lshl_add_u32 v{dst}, v2, 5, v{dst}",
        "v_lshrrev_b32 v2, 5, v1", f"v_lshl_add_u32 v{dst}, v2, 4, v{dst}")

def wo(a):
    R = 3; SLOT = 24576; NST = 16
    FA = [32, 80]; FW = [64, 112]; ACC = 128; XR = 160
    a.I(f"s_load_dwordx2 s[8:9], s[0:1], {KA_WO}", f"s_load_dwordx2 s[10:11], s[0:1], {KA_X}",
        "s_bfe_u32 s16, s2, 0x20001", "s_lshl_b32 s16, s16, 2", "s_bfe_u32 s17, s2, 0x20003", "s_add_u32 s22, s16, s17",
        "s_and_b32 s16, s2, 1", "s_lshl_b32 s16, s16, 3", "s_lshr_b32 s17, s2, 5", "s_add_u32 s23, s16, s17",
        "s_lshl_b32 s16, s22, 3", "s_lshl_b32 s17, s20, 1", "s_add_u32 s16, s16, s17", "s_lshl_b32 s44, s16, 15",
        f"s_add_u32 s44, s44, {WS_O}", f"v_add_u32 v10, {32768-2048}, v3",
        "s_lshl_b32 s45, s20, 12", "s_lshl_b32 s46, s20, 11", "s_add_u32 s46, s46, 16384",
        "v_lshrrev_b32 v2, 3, v1", "s_lshl_b32 s16, s20, 4", "v_add_u32 v4, s16, v2", "v_lshlrev_b32 v4, 11, v4",
        "v_lshrrev_b32 v2, 4, v1", "v_bfe_u32 v5, v1, 1, 2", "v_xor_b32 v2, v2, v5", "v_lshl_add_u32 v4, v2, 5, v4",
        "v_and_b32 v2, 1, v1", "v_lshl_add_u32 v4, v2, 4, v4", "s_lshl_b32 s16, s23, 7", "v_add_u32 v4, s16, v4",
        f"v_add_u32 v5, {8*2048-1024}, v4", "s_mov_b32 s48, 0",
        "s_and_b32 s40, s20, 1", "s_lshr_b32 s41, s20, 1")
    xsel(a, 18)
    a.I("s_lshl_b32 s16, s22, 1", "s_add_u32 s16, s16, s41", "s_lshl_b32 s42, s16, 17",
        "s_lshl_b32 s16, s23, 1", "s_add_u32 s16, s16, s40", "s_lshl_b32 s17, s16, 6", "s_add_u32 s42, s42, s17",
        "s_lshl_b32 s17, s22, 3", "s_lshl_b32 s18, s41, 2", "s_add_u32 s17, s17, s18", "s_lshl_b32 s17, s17, 5",
        "s_add_u32 s17, s17, s16", "s_lshl_b32 s43, s17, 10", f"s_add_u32 s43, s43, {WS_PW}",
        "s_lshl_b32 s16, s41, 13", "v_add_u32 v12, s16, v3",
        "v_lshrrev_b32 v2, 5, v1", "v_lshlrev_b32 v13, 11, v2", "v_bfe_u32 v8, v1, 2, 3", "v_lshl_add_u32 v13, v8, 7, v13",
        "v_lshrrev_b32 v8, 1, v8", "s_lshl_b32 s16, s40, 1", "v_xor_b32 v8, s16, v8", "v_lshl_add_u32 v13, v8, 5, v13",
        "v_and_b32 v8, 3, v1", "v_lshl_add_u32 v13, v8, 3, v13", "v_add_u32 v13, 16384, v13", "v_xor_b32 v14, 32, v13",
        "s_mov_b32 s19, 0xffff0000", "s_waitcnt lgkmcnt(0)")
    for i in range(3): a.I(f"v_add_u32 v{15+i}, {2*SLOT}, v{12+i}")
    srd(a, 24, 8, 1024 * 1024 * 2); srd(a, 28, 10, 2048 * 2048)
    for t in range(4):
        a.I(f"s_add_u32 s16, s42, {t*32768}", f"buffer_load_dwordx4 {vr(XR+4*t,4)}, v18, s[28:31], s16 offen")
    def dma_w(st):
        sl = (st % R) * SLOT
        return [f"s_add_u32 m0, s46, {sl}", "s_nop 0",
                "buffer_load_dwordx4 v4, s[24:27], s48 offen lds", "buffer_load_dwordx4 v5, s[24:27], s48 offen offset:1024 lds",
                f"s_add_u32 s48, s48, {64*2048}"]
    def dma_a(st):
        sl = (st % R) * SLOT
        return [f"s_add_u32 m0, s45, {sl}", "s_nop 0",
                f"buffer_load_dwordx4 v3, s[32:35], s44 offen{LD} lds", f"buffer_load_dwordx4 v3, s[32:35], s44 offen offset:1024{LD} lds",
                f"buffer_load_dwordx4 v10, s[32:35], s44 offen offset:2048{LD} lds", f"buffer_load_dwordx4 v10, s[32:35], s44 offen offset:3072{LD} lds",
                "s_add_u32 s44, s44, 2048"]
    def dma(st): return dma_w(st) + dma_a(st)
    def prologue(note):
        for j in range(R): a.extend(note(dma_w(j), j))
        if "notouch" not in EXP:
            a.I("v_lshlrev_b32 v19, 11, v1", "s_lshl_b32 s16, s23, 7", "v_add_u32 v19, s16, v19",
                "s_mul_i32 s16, s20, %d" % (208 * 2048), f"s_add_u32 s16, s16, {192*2048}")
            for j in range(4):
                a.I("buffer_load_dword v20, v19, s[24:27], s16 offen", f"s_add_u32 s16, s16, {52*2048}")
        a.I(f"s_waitcnt vmcnt({2*R + (4 if 'notouch' not in EXP else 0)})")
        for t in range(4):
            a.I(f"v_permlane16_swap_b32 v{XR+4*t}, v{XR+4*t+2}", f"v_permlane16_swap_b32 v{XR+4*t+1}, v{XR+4*t+3}")
        for t in range(4):
            for d in range(4):
                g = ACC + t * 8 + 2 * d
                a.I(f"v_lshlrev_b32 v{g}, 16, v{XR+4*t+d}", f"v_and_b32 v{g+1}, s19, v{XR+4*t+d}")
        a.I("s_lshl_b32 s18, s22, 6", f"s_add_u32 s18, s18, {WS_FL+FL_O}")
        wg_wait(a, 18, 16)
        ts(a, 5)
        a.I("s_mov_b32 s36, s44")
        for j in range(R): a.extend(note(dma_a(j), j))
        if "notouch" not in EXP:
            a.I("v_lshlrev_b32 v19, 7, v1")
            for j in range(8):
                a.extend(note([f"s_add_u32 s16, s36, {j*8192}", f"buffer_load_dword v20, v19, s[32:35], s16 offen{LD}"], None))
    def reads(st):
        buf = st & 1; sl = st % R; vb = 12 if sl < 2 else 15; so = sl * SLOT if sl < 2 else 0
        o = []
        for kb in range(2):
            for u in range(2):
                for rd in range(2):
                    o.append(f"ds_read_b64_tr_b16 {vr(FW[buf]+(kb*2+u)*4+2*rd,2)}, v{vb+1+u} offset:{so+kb*4096+rd*1024}")
            for t in range(4):
                o.append(f"ds_read_b128 {vr(FA[buf]+(kb*4+t)*4,4)}, v{vb} offset:{so+t*2048+kb*1024}")
        return o
    def mm(buf):
        return [mfma16(ACC + (t * 2 + u) * 4, FW[buf] + (kb * 2 + u) * 4, FA[buf] + (kb * 4 + t) * 4)
                for kb in range(2) for t in range(4) for u in range(2)]
    a.I(f"s_setprio {int(OPT.get('pw', 0))}")
    ring(a, "WO", NST, R, 6, dma, reads, mm, prologue=prologue)
    a.I("s_setprio 3")
    for t in range(4):
        g = ACC + t * 8; pk = 32 + 4 * t
        for d in range(4): a.I(f"v_cvt_pk_bf16_f32 v{pk+d}, v{g+2*d}, v{g+2*d+1}")
        a.I(f"buffer_store_dwordx4 {vr(pk,4)}, v3, s[32:35], s43 offen{SC1}", "s_add_u32 s43, s43, 32768")
    a.I("s_lshl_b32 s18, s22, 4", "s_add_u32 s18, s18, s23", "s_lshl_b32 s18, s18, 2", f"s_add_u32 s18, s18, {WS_FL+FL_W}")
    wg_publish(a, 18)

def down(a):
    R = int(OPT.get("dr", 5)); U = 4 if R == 4 else 10; SLOT = 16384; NST = 56
    FA = [32, 64]; FW_ = [48, 80]; ACC = 128; XB = 192; PWR = 96
    a.I(f"s_load_dwordx2 s[8:9], s[0:1], {KA_WD}", f"s_load_dwordx2 s[10:11], s[0:1], {KA_OUT}",
        "s_and_b32 s21, s2, 1",
        "s_bfe_u32 s16, s2, 0x10001", "s_lshl_b32 s16, s16, 3", "s_bfe_u32 s17, s2, 0x30003", "s_add_u32 s22, s16, s17",
        "s_bfe_u32 s16, s2, 0x10002", "s_lshl_b32 s16, s16, 2", "s_bfe_u32 s17, s2, 0x20006", "s_add_u32 s23, s16, s17",
        "s_lshl_b32 s16, s22, 3", "s_lshl_b32 s17, s20, 1", "s_add_u32 s16, s16, s17", "s_mul_i32 s16, s16, 112",
        "s_mul_i32 s17, s21, 56", "s_add_u32 s16, s16, s17", "s_lshl_b32 s44, s16, 10", f"s_add_u32 s44, s44, {WS_H}",
        f"v_add_u32 v10, {112*1024-1024}, v3",
        "s_lshl_b32 s45, s20, 11", "s_add_u32 s46, s45, 8192",
        "v_lshrrev_b32 v2, 4, v1", "s_lshl_b32 s16, s20, 3", "v_add_u32 v4, s16, v2", "v_lshlrev_b32 v4, 11, v4",
        "v_bfe_u32 v5, v1, 1, 3", "v_xor_b32 v6, v2, v5", "v_xor_b32 v7, 4, v6",
        "v_and_b32 v2, 1, v1", "v_lshl_add_u32 v4, v2, 4, v4", "s_lshl_b32 s16, s23, 8", "v_add_u32 v4, s16, v4",
        f"v_add_u32 v5, {4*2048-1024}, v4",
        "v_lshl_add_u32 v4, v6, 5, v4", "v_lshl_add_u32 v5, v7, 5, v5",
        "s_mul_i32 s48, s21, %d" % (1792 * 2048),
        "s_and_b32 s40, s20, 1", "s_lshr_b32 s41, s20, 1",
        "s_lshl_b32 s16, s41, 12", "v_add_u32 v12, s16, v3",
        "v_lshrrev_b32 v2, 4, v1", "v_lshlrev_b32 v13, 10, v2", "v_bfe_u32 v9, v1, 2, 2", "v_lshl_add_u32 v13, v9, 8, v13",
        "v_bfe_u32 v8, v1, 2, 3", "s_lshl_b32 s16, s40, 2", "v_xor_b32 v8, s16, v8",
        "v_lshl_add_u32 v13, v8, 5, v13", "v_and_b32 v9, 3, v1", "v_lshl_add_u32 v13, v9, 3, v13", "v_add_u32 v13, 8192, v13",
        "v_xor_b32 v14, 32, v13", "v_xor_b32 v15, 64, v13", "v_xor_b32 v16, 96, v13",
        "s_waitcnt lgkmcnt(0)")
    for i in range(5): a.I(f"v_add_u32 v{22+i}, 0x10000, v{12+i}")
    srd(a, 24, 8, 3584 * 1024 * 2); srd(a, 28, 10, 2048 * 2048)
    for i in range(64): a.I(f"v_mov_b32 v{ACC+i}, 0")
    a.I("s_lshl_b32 s18, s22, 5", "s_mul_i32 s16, s21, 14", "s_add_u32 s18, s18, s16", "s_lshl_b32 s18, s18, 2",
        f"s_add_u32 s18, s18, {WS_FL+FL_H}")
    wg_wait(a, 18, 14)
    ts(a, 3)
    def dma(st):
        sl = (st % R) * SLOT
        return [f"s_add_u32 m0, s46, {sl}", "s_add_u32 s49, s48, 0",
                "buffer_load_dwordx4 v4, s[24:27], s49 offen lds", "s_add_u32 s48, s48, 65536",
                "buffer_load_dwordx4 v5, s[24:27], s49 offen offset:1024 lds",
                f"s_add_u32 m0, s45, {sl}", "s_add_u32 s43, s44, 0",
                f"buffer_load_dwordx4 v3, s[32:35], s43 offen{LD} lds", "s_add_u32 s44, s44, 1024",
                f"buffer_load_dwordx4 v10, s[32:35], s43 offen offset:1024{LD} lds"]
    def reads(st):
        buf = st & 1; sl = st % R; vb = 12 if sl < 4 else 22; so = sl * SLOT if sl < 4 else 0
        o = []
        for u in range(4):
            for rd in range(2):
                o.append(f"ds_read_b64_tr_b16 {vr(FW_[buf]+u*4+2*rd,2)}, v{vb+1+u} offset:{so+rd*4096}")
        for t in range(4): o.append(f"ds_read_b128 {vr(FA[buf]+t*4,4)}, v{vb} offset:{so+t*1024}")
        return o
    def mm(buf):
        return [mfma16(ACC + (t * 4 + u) * 4, FW_[buf] + u * 4, FA[buf] + t * 4) for t in range(4) for u in range(4)]
    a.I("s_setprio 0")
    ring(a, "DN", NST, R, U, dma, reads, mm)
    if "noprio" not in EXP: a.I("s_setprio 3")
    ts(a, 4)
    a.I("s_lshl_b32 s36, s22, 3", "s_add_u32 s36, s36, s23", "s_cmp_eq_u32 s41, s21", "s_cbranch_scc1 DN_FIN")
    a.I("s_lshl_b32 s16, s36, 1", "s_add_u32 s16, s16, s21", "s_lshl_b32 s16, s16, 1", "s_add_u32 s16, s16, s40",
        "s_lshl_b32 s17, s16, 14", f"s_add_u32 s17, s17, {WS_X}", "s_lshl_b32 s18, s16, 2", f"s_add_u32 s18, s18, {WS_FL+FL_P}")
    for i in range(16):
        a.I(f"buffer_store_dwordx4 {vr(ACC+4*i,4)}, v3, s[32:35], s17 offen offset:{(i&3)*1024}{SC1}")
        if i & 3 == 3: a.I("s_add_u32 s17, s17, 4096")
    a.I("s_waitcnt vmcnt(0)")
    set_flag(a, 18)
    a.I("s_branch DN_END")
    a.L("DN_FIN")
    a.I("s_xor_b32 s16, s21, 1", "s_lshl_b32 s17, s36, 1", "s_add_u32 s16, s16, s17", "s_lshl_b32 s16, s16, 1", "s_add_u32 s16, s16, s40",
        "s_lshl_b32 s37, s16, 14", f"s_add_u32 s37, s37, {WS_X}",
        "s_lshl_b32 s16, s16, 2", f"s_add_u32 s16, s16, {FL_P}",
        "s_lshl_b32 s17, s36, 1", "s_add_u32 s17, s17, s40", "s_lshl_b32 s17, s17, 2", f"s_add_u32 s17, s17, {FL_W}",
        "v_mov_b32 v9, s16", "v_mov_b32 v8, s17", "v_cmp_eq_u32 vcc, 0, v1", "v_cndmask_b32 v9, v8, v9, vcc",
        f"s_mov_b32 s18, {WS_FL}",
        "s_lshl_b32 s16, s22, 3", "s_lshl_b32 s17, s41, 2", "s_add_u32 s16, s16, s17",
        "s_lshl_b32 s38, s16, 15", "s_lshl_b32 s17, s23, 8", "s_add_u32 s39, s38, s17", "s_lshl_b32 s16, s40, 7", "s_add_u32 s39, s39, s16",
        "s_lshl_b32 s17, s23, 12", "s_add_u32 s38, s38, s17", "s_lshl_b32 s16, s40, 11", "s_add_u32 s38, s38, s16",
        f"s_add_u32 s38, s38, {WS_PW}", "s_mov_b32 s19, 0xffff0000")
    xsel(a, 18)
    poll(a, 18, 2, voff=9)
    ts(a, 5)
    for t in range(4):
        for c in range(2):
            a.I(f"buffer_load_dwordx4 {vr(PWR+(t*2+c)*4,4)}, v3, s[32:35], s38 offen offset:{c*1024}{LD}")
        for u in range(4):
            a.I(f"buffer_load_dwordx4 {vr(XB+(t*4+u)*4,4)}, v3, s[32:35], s37 offen offset:{u*1024}{LD}")
        a.I("s_add_u32 s38, s38, 32768", "s_add_u32 s37, s37, 4096")
    for t in range(4):
        a.I(f"s_waitcnt vmcnt({6*(3-t)+2*t})")
        for c in range(2):
            g = ACC + (t * 4 + 2 * c) * 4; xb = XB + (t * 4 + 2 * c) * 4; pw = PWR + (t * 2 + c) * 4; pk = 32 + (t * 2 + c) * 4
            for d in range(4):
                a.I(f"v_lshlrev_b32 v20, 16, v{pw+d}", f"v_and_b32 v21, s19, v{pw+d}",
                    f"v_add_f32 v{g+2*d}, v{g+2*d}, v{xb+2*d}", f"v_add_f32 v{g+2*d+1}, v{g+2*d+1}, v{xb+2*d+1}",
                    f"v_add_f32 v{g+2*d}, v{g+2*d}, v20", f"v_add_f32 v{g+2*d+1}, v{g+2*d+1}, v21",
                    f"v_cvt_pk_bf16_f32 v{pk+d}, v{g+2*d}, v{g+2*d+1}")
            a.I(f"v_permlane16_swap_b32 v{pk}, v{pk+2}", f"v_permlane16_swap_b32 v{pk+1}, v{pk+3}",
                f"buffer_store_dwordx4 {vr(pk,4)}, v18, s[28:31], s39 offen offset:{c*64}")
        a.I("s_add_u32 s39, s39, 32768")
    a.L("DN_END")

def fused():
    a = Asm()
    ts(a, 0)
    a.I("s_cmp_ge_u32 s2, 512", "s_cbranch_scc1 F_END",
        f"s_load_dwordx2 s[6:7], s[0:1], {KA_WS}",
        "v_lshrrev_b32 v2, 6, v0", "v_and_b32 v1, 63, v0", "v_readfirstlane_b32 s20, v2", "v_lshlrev_b32 v3, 4, v1",
        "s_waitcnt lgkmcnt(0)")
    srd(a, 32, 6, WS_SIZE)
    g1(a)
    a.I("s_cmp_ge_u32 s2, 256", "s_cbranch_scc1 F_B")
    attention(a)
    wo(a)
    tl_dump(a, 7)
    a.I("s_endpgm")
    a.L("F_B")
    down(a)
    tl_dump(a, 7)
    a.L("F_END")
    a.I("s_endpgm")
    return a, dict(grid=512, block=256, lds=81920, vgpr=256)

def k1z():
    a, p = G.k1(EXP)
    idx = next(i for i, it in enumerate(a.items) if it.text.startswith("s_mov_b32 s35"))
    z = Asm()
    z.I("s_cmp_ge_u32 s2, 6", "s_cbranch_scc1 K1_NZ", "s_cmp_lg_u32 s20, 0", "s_cbranch_scc1 K1_NZ",
        "v_mov_b32 v112, 0", "v_mov_b32 v113, 0", "v_mov_b32 v114, 0", "v_mov_b32 v115, 0",
        "s_lshl_b32 s16, s2, 10", f"s_add_u32 s16, s16, {WS_FL}",
        "buffer_store_dwordx4 v[112:115], v3, s[32:35], s16 offen")
    z.L("K1_NZ")
    return a, p, idx, z

if __name__ == "__main__":
    path = sys.argv[1] if len(sys.argv) > 1 else "cdna_kernels/" + NAME + ".s"
    opts = dict(o.split("=") for o in sys.argv[2:])
    OPT = opts
    EXP = opts.get("exp", ""); TL = bool(int(opts.get("tl", 0))); G.TL = TL
    G.VERB = bool(int(opts.get("verb", 0)))
    if "ldsc1" in EXP: LD = " sc1"
    if "inv" in EXP.split("_"): INV = True
    a, p, idx, z = k1z()
    end = next(i for i, it in enumerate(a.items) if it.label == "K1_FIN")
    a.items[end + 1:end + 1] = z.items
    p["vgpr"] = 116
    G.build([("ln_kv", (a, p)), ("fused", fused())], path)
```

```python
import sys
from asmlib import *
import gen as G
import gen2 as H
from gen import (NAME, KA_X, KA_WQ, KA_WK, KA_WV, KA_WO, KA_WG, KA_WU, KA_WD, KA_OUT, KA_DBG, KA_WS,
                 WS_XN, WS_KV, WS_Q, WS_O, WS_H, WS_P, WS_SIZE, f32, vr, srd, mfma32, mfma16, QSCALE, mix2, front_pattern)
from gen2 import WS_FL, WS_TL, poll, set_flag, ring, xsel
FL_H, FL_2 = 0, 1024
TL = False; EXP = ""; OPT = {}
SC1 = " sc1"

def ts(a, i):
    if TL: a.I(f"s_memrealtime s[{64+2*i}:{65+2*i}]")
def tl_dump(a, n):
    if not TL: return
    a.I("s_waitcnt vmcnt(0) lgkmcnt(0)")
    ts(a, n - 1)
    a.I("s_waitcnt lgkmcnt(0)", "s_lshl_b32 s90, s2, 3", "s_add_u32 s90, s90, s54", "s_lshl_b32 s90, s90, 5",
        f"s_add_u32 s90, s90, {WS_TL + 0x10000}", "v_mov_b32 v1, 0", "s_mov_b64 exec, 1")
    for i in range(n):
        a.I(f"v_mov_b32 v2, s{64+2*i}", f"buffer_store_dword v2, v1, s[32:35], s90 offen offset:{4*i}")

_n = [0]
def wg_publish(a, soff):
    _n[0] += 1; lab = f"PUB{_n[0]}"
    a.I("s_waitcnt vmcnt(0)", "s_barrier", "s_cmp_lg_u32 s54, 0", f"s_cbranch_scc1 {lab}")
    set_flag(a, soff)
    a.L(lab)

def g1(a):
    NST = 32; R = 5; SLOT = 32768
    ACC = 128; FA = 64; FW = 96
    def acc(h, u, t): return ACC + (t * 4 + h * 2 + u) * 4
    a.I(f"s_load_dwordx2 s[4:5], s[0:1], {KA_WQ}", f"s_load_dwordx4 s[8:11], s[0:1], {KA_WG}",
        "s_and_b32 s16, s2, 7", "s_lshr_b32 s17, s16, 1", "s_and_b32 s16, s16, 1", "s_lshr_b32 s18, s2, 3",
        "s_mul_i32 s19, s17, 7", "s_lshl_b32 s16, s16, 2", "s_add_u32 s21, s19, s16", "s_lshr_b32 s23, s18, 3",
        "s_add_u32 s21, s21, s23", "s_and_b32 s22, s18, 7", "s_cmp_lt_u32 s23, 3", "s_cbranch_scc1 G1_MAP",
        "s_and_b32 s22, s18, 3", "s_add_u32 s22, s22, s16", "s_add_u32 s21, s19, 3", "s_add_u32 s17, s17, 28",
        "s_bitcmp1_b32 s18, 2", "s_cselect_b32 s21, s21, s17")
    a.L("G1_MAP")
    a.I("s_and_b32 s23, s20, 3", "v_add_u32 v10, 31744, v3",
        "s_lshl_b32 s16, s22, 4", "s_lshl_b32 s17, s20, 1", "s_add_u32 s16, s16, s17", "s_lshl_b32 s44, s16, 15",
        "s_lshl_b32 s45, s20, 11", "s_mov_b32 s47, 0", "s_mov_b32 s50, 0", "s_waitcnt lgkmcnt(0)")
    def adv(reg): return [f"s_add_u32 s{reg}, s{reg}, {SLOT}", f"s_cmp_eq_u32 s{reg}, {SLOT*R}", f"s_cselect_b32 s{reg}, 0, s{reg}"]
    def dma_act():
        return ["s_add_u32 m0, s47, s45", "s_nop 0",
                "buffer_load_dwordx4 v3, s[32:35], s44 offen lds",
                "buffer_load_dwordx4 v10, s[32:35], s44 offen offset:1024 lds", "s_add_u32 s44, s44, 1024"]
    def rdaddr():
        return ["s_lshr_b32 s17, s20, 2", "s_lshl_b32 s16, s17, 13", "v_add_u32 v6, s16, v3",
                "v_lshrrev_b32 v2, 4, v1", "v_lshlrev_b32 v7, 11, v2", "v_and_b32 v2, 1, v2", "v_lshlrev_b32 v12, 2, v2",
                "v_bfe_u32 v2, v1, 2, 2", "v_lshl_add_u32 v7, v2, 8, v7",
                "v_add_u32 v12, v12, v2", "s_lshl_b32 s16, s23, 1", "v_xor_b32 v12, s16, v12",
                "v_lshl_add_u32 v7, v12, 5, v7", "v_and_b32 v2, 3, v1", "v_lshl_add_u32 v7, v2, 3, v7",
                "v_add_u32 v7, 16384, v7", "v_xor_b32 v11, 32, v7"]
    def reads():
        o = ["v_add_u32 v8, s50, v6", "v_add_u32 v9, s50, v7", "v_add_u32 v13, s50, v11"]
        for h in range(2):
            for u in range(2):
                for rd in range(2):
                    o.append(f"ds_read_b64_tr_b16 {vr(FW+(h*2+u)*4+2*rd,2)}, v{9 if u == 0 else 13} offset:{h*8192+rd*1024}")
        for t in range(8): o.append(f"ds_read_b128 {vr(FA+t*4,4)}, v8 offset:{t*1024}")
        return o + adv(50)
    def mm(first):
        return [mfma16(acc(h, u, t), FW + (h * 2 + u) * 4, FA + t * 4, "0" if first else None) for t in range(8) for h in range(2) for u in range(2)]
    a.I("s_cmp_ge_u32 s21, 28", "s_cbranch_scc1 G1_QSET")
    srd(a, 24, 8, 1024 * 3584 * 2); srd(a, 28, 10, 1024 * 3584 * 2)
    a.I("s_mov_b32 s40, 7168", "s_lshl_b32 s41, s21, 8", "s_mov_b32 s49, 0", "s_branch G1_SET")
    a.L("G1_QSET")
    srd(a, 24, 4, 1024 * 1024 * 2); srd(a, 28, 4, 1024 * 1024 * 2)
    a.I("s_mov_b32 s40, 2048", "s_sub_u32 s41, s21, 28", "s_lshl_b32 s41, s41, 9", "s_mov_b32 s49, 256")
    a.L("G1_SET")
    a.I("v_lshrrev_b32 v2, 4, v1", "s_lshl_b32 s16, s23, 3", "v_add_u32 v4, s16, v2", "v_mul_lo_u32 v4, v4, s40",
        "s_and_b32 s16, s23, 1", "s_lshl_b32 s16, s16, 2", "v_add_u32 v2, s16, v2",
        "v_bfe_u32 v5, v1, 1, 3", "v_xor_b32 v2, v2, v5", "v_lshl_add_u32 v4, v2, 5, v4",
        "v_and_b32 v2, 1, v1", "v_lshl_add_u32 v4, v2, 4, v4", "v_add_u32 v4, s41, v4",
        "s_lshl_b32 s16, s40, 2", "s_sub_u32 s16, s16, 1024", "v_add_u32 v5, s16, v4",
        "s_lshl_b32 s43, s40, 5", "s_lshl_b32 s46, s23, 11", "s_add_u32 s46, s46, 16384",
        "s_mov_b32 s48, 0", "s_mov_b32 s52, 0")
    def dma_wx(h, slotreg):
        srdw = "s[24:27]" if h == 0 else "s[28:31]"; so = 48 + h
        return [f"s_add_u32 s16, s{slotreg}, s46"] + (["s_add_u32 s16, s16, 8192"] if h else []) + ["s_mov_b32 m0, s16", "s_nop 0",
                f"buffer_load_dwordx4 v4, {srdw}, s{so} offen lds",
                f"buffer_load_dwordx4 v5, {srdw}, s{so} offen offset:1024 lds", f"s_add_u32 s{so}, s{so}, s43"]
    def mixmem(rd, dm):
        if not rd or not dm: return rd + dm
        groups = []; cur = []
        for x in dm:
            cur.append(x)
            if x.startswith("buffer"): groups.append(cur); cur = []
        groups[-1] += cur
        pre = [x for x in rd if x.startswith("v_")]; ds = [x for x in rd if x.startswith("ds_")]; post = [x for x in rd if x.startswith("s_")]
        o = list(pre); n = len(groups); per = len(ds) // n
        for g in range(n): o += groups[g] + ds[g * per:(g + 1) * per if g < n - 1 else len(ds)]
        return o + post
    def cnt(log, stage):
        last = max([i for i, s_ in enumerate(log) if s_ <= stage], default=-1)
        return 2 * (len(log) - 1 - last)
    a.I("s_cmp_ge_u32 s20, 4", "s_cbranch_scc1 G1_B")
    logA = []
    def issueA(kind, stage):
        if stage >= NST: return []
        logA.append(stage)
        return (dma_act() + adv(47)) if kind == "a" else (dma_wx(1, 52) + adv(52))
    for j in range(R):
        if j < R - 1: a.extend(issueA("w", j))
        a.extend(issueA("a", j))
    a.extend(rdaddr())
    a.I(f"s_waitcnt vmcnt({cnt(logA, 0)})", "s_barrier")
    a.extend(reads())
    a.I(f"s_waitcnt vmcnt({cnt(logA, 1)}) lgkmcnt(0)", "s_barrier")
    def bodyA(k, first=False):
        o = mm(first)
        o += mixmem(reads() if k + 1 < NST else [], issueA("w", k - 1 + R) + issueA("a", k + R))
        if k + 1 < NST: o += [f"s_waitcnt vmcnt({cnt(logA, k + 2)}) lgkmcnt(0)", "s_barrier"]
        return o
    a.extend(bodyA(0, True))
    a.I(f"s_mov_b32 s51, {NST-R-1}")
    a.L("G1_A_LOOP")
    body = bodyA(1)
    for k in range(2, NST - R): assert bodyA(k) == body
    a.extend(body)
    a.I("s_sub_u32 s51, s51, 1", "s_cmp_lg_u32 s51, 0", "s_cbranch_scc1 G1_A_LOOP")
    for k in range(NST - R, NST): a.extend(bodyA(k))
    a.I("s_branch G1_EPI")
    a.L("G1_B")
    logB = []
    def dmaB(stage):
        if stage >= NST: return []
        logB.extend([stage, stage])
        return dma_wx(0, 47) + dma_act() + adv(47)
    for j in range(R - 1): a.extend(dmaB(j))
    a.extend(rdaddr())
    a.I(f"s_waitcnt vmcnt({cnt(logB, 0)})", "s_barrier", f"s_waitcnt vmcnt({cnt(logB, 1)})", "s_barrier")
    def bodyB(k, first=False):
        o = mixmem(reads(), dmaB(k - 1 + R)) + ["s_waitcnt lgkmcnt(0)"] + mm(first)
        if k + 1 < NST: o += [f"s_waitcnt vmcnt({cnt(logB, k + 2)})", "s_barrier"]
        return o
    a.extend(bodyB(0, True))
    a.I(f"s_mov_b32 s51, {NST-R}")
    a.L("G1_B_LOOP")
    body = bodyB(1)
    for k in range(2, NST - R + 1): assert bodyB(k) == body
    a.extend(body)
    a.I("s_sub_u32 s51, s51, 1", "s_cmp_lg_u32 s51, 0", "s_cbranch_scc1 G1_B_LOOP")
    for k in range(NST - R + 1, NST): a.extend(bodyB(k))
    a.L("G1_EPI")
    ts(a, 1)
    a.I("s_lshl_b32 s16, s22, 4", "s_lshr_b32 s17, s20, 2", "s_lshl_b32 s17, s17, 3", "s_add_u32 s16, s16, s17",
        "s_cmp_ge_u32 s21, 28", "s_cbranch_scc1 G1_EPQ")
    a.I("s_mul_i32 s17, s16, 112", "s_lshl_b32 s18, s21, 2", "s_add_u32 s17, s17, s18",
        "s_add_u32 s17, s17, s23", "s_lshl_b32 s17, s17, 10", f"s_add_u32 s17, s17, {WS_H}")
    for t in range(8):
        g, u = acc(0, 0, t), acc(1, 0, t)
        for i in range(8): a.I(f"v_max_f32 v{g+i}, 0, v{g+i}")
        for i in range(8): a.I(f"v_mul_f32 v{g+i}, v{g+i}, v{u+i}")
        for d in range(4): a.I(f"v_cvt_pk_bf16_f32 v{FA+4*t+d}, v{g+2*d}, v{g+2*d+1}")
        a.I(f"buffer_store_dwordx4 {vr(FA+4*t,4)}, v3, s[32:35], s17 offen{SC1}", f"s_add_u32 s17, s17, {112*1024}")
    a.I("s_branch G1_PUB")
    a.L("G1_EPQ")
    a.I("s_sub_u32 s17, s21, 28", "s_lshl_b32 s17, s17, 3", "s_add_u32 s17, s17, s23", "s_lshl_b32 s17, s17, 7",
        "s_add_u32 s17, s17, s16", "s_lshl_b32 s17, s17, 10", f"s_add_u32 s17, s17, {WS_Q}",
        f"s_add_u32 s19, s17, {4*128*1024}", f"s_mov_b32 s18, {f32(QSCALE)}")
    for t in range(8):
        for h in range(2):
            g = acc(h, 0, t)
            for i in range(8): a.I(f"v_mul_f32 v{g+i}, s18, v{g+i}")
            for d in range(4): a.I(f"v_cvt_pk_bf16_f32 v{g+d}, v{g+2*d}, v{g+2*d+1}")
            a.I(f"buffer_store_dwordx4 {vr(g,4)}, v3, s[32:35], s{17+2*h} offen offset:{(t&3)*1024}{SC1}")
        if t == 3: a.I("s_add_u32 s17, s17, 4096", "s_add_u32 s19, s19, 4096")
    a.L("G1_PUB")
    a.I("s_lshl_b32 s18, s22, 5", "s_add_u32 s18, s18, s21", "s_lshl_b32 s18, s18, 2", f"s_add_u32 s18, s18, {WS_FL+FL_H}")
    wg_publish(a, 18)
    ts(a, 2)

NBAR = 64

def attention(a):
    QR = [16, 24]; KB = [32, 48]; VB = [40, 56]; P = 64; SEL = 72; Lr = [76, 80]; S = [96, 112]; O = [128, 144]; C = [160, 176]
    a.I("s_lshr_b32 s21, s2, 2", "s_and_b32 s22, s2, 3", "s_lshl_b32 s22, s22, 3", "s_lshl_b32 s16, s20, 1", "s_add_u32 s22, s22, s16",
        "s_lshl_b32 s24, s20, 13", "s_mov_b32 s25, s24",
        f"s_add_u32 s36, s32, {WS_KV}", "s_addc_u32 s37, s33, 0", "s_mov_b32 s38, 0x40000", "s_mov_b32 s39, 0x20000")
    def dma_groups():
        gs = []
        for g in range(2):
            for i in range(4):
                o = [f"s_add_u32 m0, s25, {g*4096}", f"s_add_u32 s23, s24, {g*4096}"] if i == 0 else []
                o += [f"buffer_load_dwordx4 v3, s[36:39], s23 offen offset:{i*1024} lds"]
                gs.append(o)
        gs[-1] += ["s_add_u32 s24, s24, 32768", "s_xor_b32 s25, s25, 32768"]
        return gs
    a.extend([x for g in dma_groups() for x in g])
    a.extend(dma_groups()[0] + dma_groups()[1])
    a.I("v_bfe_u32 v2, v1, 4, 1", "v_lshlrev_b32 v4, 10, v2", "v_lshrrev_b32 v2, 5, v1", "v_lshl_add_u32 v4, v2, 8, v4",
        "v_and_b32 v2, 15, v1", "v_lshl_add_u32 v4, v2, 4, v4",
        "s_lshl_b32 s16, s22, 7", "s_lshl_b32 s17, s21, 1", "s_add_u32 s16, s16, s17", "s_lshl_b32 s16, s16, 10",
        f"s_add_u32 s26, s16, {WS_Q}", f"s_add_u32 s27, s26, {128*1024}",
        "s_and_b32 s18, s2, 0xe0", "s_and_b32 s16, s2, 3", "s_add_u32 s18, s18, s16",
        "s_lshl_b32 s18, s18, 2", f"s_add_u32 s18, s18, {WS_FL+FL_H+28*4}")
    poll(a, 18, 1)
    for b in range(2):
        for ks in range(2):
            a.I(f"buffer_load_dwordx4 {vr(QR[b]+4*ks,4)}, v4, s[32:35], s{26+b} offen offset:{ks*512}")
    a.I("v_lshrrev_b32 v2, 2, v1", "v_lshrrev_b32 v5, 4, v1", "v_xor_b32 v2, v2, v5", "v_and_b32 v2, 1, v2",
        "v_cmp_eq_u32 vcc, 0, v2", "v_mov_b32 v5, 0x3f803f80", f"v_cndmask_b32 v{SEL}, 0, v5, vcc")
    for i in range(1, 4): a.I(f"v_mov_b32 v{SEL+i}, v{SEL}")
    for b in range(2):
        for i in range(16): a.I(f"v_mov_b32 v{O[b]+i}, 0")
        for i in range(4): a.I(f"v_mov_b32 v{Lr[b]+i}, 0")
    for i in range(4): a.I(f"v_mov_b32 v{P+4+i}, 0", f"v_mov_b32 v{VB[1]+4+i}, 0")
    a.I("v_mov_b32 v6, v4", "v_add_u32 v7, 2048, v3", "s_mov_b32 s28, 0")
    a.I("s_barrier")
    def rdK(buf, off): return [f"ds_read_b128 {vr(KB[buf]+4*ks,4)}, v6 offset:{off+ks*512}" for ks in range(2)]
    def rdV(buf, off): return [f"ds_read_b128 {vr(VB[buf]+4*ks,4)}, v7 offset:{off+ks*1024}" for ks in range(2)]
    a.extend(rdK(0, 0) + rdV(0, 0))
    a.I("s_waitcnt vmcnt(0) lgkmcnt(0)")
    ts(a, 3)
    for b in range(2):
        a.I(mfma32(S[b], KB[0], QR[b], "0"), mfma32(S[b], KB[0] + 4, QR[b] + 4))
    for b in range(2):
        s0 = S[b]
        a.I(f"v_max3_f32 v8, v{s0}, v{s0+1}, v{s0+2}")
        for i in range(3, 15, 2): a.I(f"v_max3_f32 v8, v8, v{s0+i}, v{s0+i+1}")
        a.I(f"v_max_f32 v8, v8, v{s0+15}", "v_mov_b32 v9, v8", "v_permlane32_swap_b32 v8, v9", "v_max_f32 v8, v8, v9",
            f"v_sub_f32 v{C[b]}, 0, v8")
        for i in range(1, 16): a.I(f"v_mov_b32 v{C[b]+i}, v{C[b]}")
    a.I(mfma32(S[0], KB[0], QR[0], C[0]), mfma32(S[0], KB[0] + 4, QR[0] + 4))
    def tile(b, kbuf_next, vbuf, vprev, extra, dg):
        nb = 1 - b; s0 = S[b]
        ex = [f"v_exp_f32 v{s0+i}, v{s0+i}" for i in range(16)]
        cv = [f"v_cvt_pk_bf16_f32 v{P+d}, v{s0+2*d}, v{s0+2*d+1}" for d in range(8)]
        e = list(extra) + [None] * 4
        o = [mfma32(S[nb], KB[kbuf_next], QR[nb], C[nb]), e[0]] + ex[0:3]
        o += [mfma32(O[nb], VB[vprev] + 4, P + 4), e[1]] + ex[3:6]
        o += [mfma16(Lr[nb], SEL, P + 4)] + ex[6:8]
        o += [mfma32(S[nb], KB[kbuf_next] + 4, QR[nb] + 4), e[2], cv[0], cv[1], ex[8], cv[2], cv[3], ex[9], ex[10]]
        o += [mfma32(O[b], VB[vbuf], P), e[3]] + ex[11:14]
        o += [mfma16(Lr[b], SEL, P)] + (dg or []) + [ex[14], ex[15]] + cv[4:8]
        return [x for x in o if x]
    a.I("s_nop 11")
    a.L("ATT_LOOP")
    dg = dma_groups()
    for kb in range(8):
        cur = kb & 1; nxt = 1 - cur
        if kb == 7: a.I("s_waitcnt vmcnt(0)")
        a.I("s_barrier")
        if kb == 7: a.I("v_xor_b32 v6, 0x8000, v6", "v_xor_b32 v7, 0x8000, v7")
        off = ((kb + 1) & 7) * 4096
        order = {7: (0, 1), 0: (2, 3), 1: (4, 5), 2: (6, 7)}.get(kb)
        a.extend(tile(0, cur, cur, nxt, rdK(nxt, off) + rdV(nxt, off), dg[order[0]] if order else None))
        a.I("s_waitcnt lgkmcnt(2)")
        a.extend(tile(1, nxt, cur, cur, [], dg[order[1]] if order else None))
        if kb == 7: a.I("s_add_u32 s28, s28, 1", "s_cmp_lg_u32 s28, 8")
        a.I("s_waitcnt lgkmcnt(0)")
    a.I("s_cbranch_scc1 ATT_LOOP")
    a.I(mfma32(O[1], VB[1] + 4, P + 4), mfma16(Lr[1], SEL, P + 4))
    ts(a, 4)
    a.I(f"s_mov_b32 s16, {f32(2.0**100)}", "s_waitcnt vmcnt(0)")
    a.I(f"v_max_f32 v8, v{Lr[0]}, v{Lr[1]}")
    for b in range(2):
        for i in range(0, 16, 2): a.I(f"v_max3_f32 v8, v8, abs(v{O[b]+i}), abs(v{O[b]+i+1})")
    a.I(f"v_add_f32 v9, v{Lr[0]}, v{Lr[1]}")
    for b in range(2):
        for i in range(16): a.I(f"v_add_f32 v9, v9, v{O[b]+i}")
    a.I("v_cmp_nlt_f32 vcc, v8, s16", "v_cmp_u_f32 s[18:19], v9, v9", "s_or_b64 vcc, vcc, s[18:19]")
    if "force" in EXP: a.I("s_mov_b64 vcc, -1")
    a.I("s_cbranch_vccz ATT_FIN")
    for b in range(2):
        M = 10; AL = 11
        for i in range(16): a.I(f"v_mov_b32 v{O[b]+i}, 0")
        for i in range(4): a.I(f"v_mov_b32 v{Lr[b]+i}, 0")
        a.I(f"v_mov_b32 v{M}, {f32(-3.0e38)}", f"s_mov_b32 s29, 0")
        a.L(f"ATT_FB{b}")
        for ks in range(2):
            a.I(f"buffer_load_dwordx4 {vr(KB[0]+4*ks,4)}, v4, s[36:39], s29 offen offset:{ks*512}",
                f"buffer_load_dwordx4 {vr(VB[0]+4*ks,4)}, v3, s[36:39], s29 offen offset:{2048+ks*1024}")
        a.I("s_waitcnt vmcnt(0)")
        s0 = S[0]
        a.I(mfma32(s0, KB[0], QR[b], "0"), mfma32(s0, KB[0] + 4, QR[b] + 4))
        a.I(f"v_max3_f32 v8, v{s0}, v{s0+1}, v{M}")
        for i in range(2, 16, 2): a.I(f"v_max3_f32 v8, v8, v{s0+i}, v{s0+i+1}")
        a.I("v_mov_b32 v9, v8", "v_permlane32_swap_b32 v8, v9", "v_max_f32 v8, v8, v9",
            f"v_sub_f32 v{AL}, v{M}, v8", f"v_exp_f32 v{AL}, v{AL}", f"v_mov_b32 v{M}, v8")
        for i in range(16): a.I(f"v_sub_f32 v{s0+i}, v{s0+i}, v8")
        for i in range(16): a.I(f"v_exp_f32 v{s0+i}, v{s0+i}")
        for i in range(16): a.I(f"v_mul_f32 v{O[b]+i}, v{O[b]+i}, v{AL}")
        for i in range(4): a.I(f"v_mul_f32 v{Lr[b]+i}, v{Lr[b]+i}, v{AL}")
        for d in range(8): a.I(f"v_cvt_pk_bf16_f32 v{P+d}, v{s0+2*d}, v{s0+2*d+1}")
        a.I(mfma32(O[b], VB[0], P), mfma16(Lr[b], SEL, P), mfma32(O[b], VB[0] + 4, P + 4), mfma16(Lr[b], SEL, P + 4))
        a.I("s_add_u32 s29, s29, 4096", f"s_cmp_lg_u32 s29, {64*4096}", f"s_cbranch_scc1 ATT_FB{b}")
    a.L("ATT_FIN")
    a.I("v_bfe_u32 v2, v1, 4, 1", "v_lshlrev_b32 v5, 15, v2", "v_lshrrev_b32 v2, 5, v1", "v_lshl_add_u32 v5, v2, 8, v5",
        "v_and_b32 v2, 15, v1", "v_lshl_add_u32 v5, v2, 4, v5",
        "s_lshl_b32 s16, s21, 6", "s_add_u32 s16, s16, s22", "s_lshl_b32 s16, s16, 10", f"s_add_u32 s16, s16, {WS_O}")
    for b in range(2): a.I(f"v_rcp_f32 v{8+b}, v{Lr[b]}")
    for b in range(2):
        for i in range(16): a.I(f"v_mul_f32 v{O[b]+i}, v{O[b]+i}, v{8+b}")
        for d in range(8): a.I(f"v_cvt_pk_bf16_f32 v{S[b]+d}, v{O[b]+2*d}, v{O[b]+2*d+1}")
        for ks in range(2):
            a.I(f"buffer_store_dwordx4 {vr(S[b]+4*ks,4)}, v5, s[32:35], s16 offen offset:{b*1024+ks*512}{SC1}")

def down(a):
    R = 6; U = 6; SLOT = 16384; NST = 56; LB = 65536
    FA = [32, 64]; FW_ = [48, 80]; ACC = 128
    a.I(f"s_load_dwordx2 s[8:9], s[0:1], {KA_WD}",
        "s_and_b32 s21, s2, 1",
        "s_bfe_u32 s16, s2, 0x10001", "s_lshl_b32 s16, s16, 3", "s_bfe_u32 s17, s2, 0x30003", "s_add_u32 s22, s16, s17",
        "s_bfe_u32 s16, s2, 0x10002", "s_lshl_b32 s16, s16, 2", "s_bfe_u32 s17, s2, 0x20006", "s_add_u32 s23, s16, s17",
        "s_lshl_b32 s45, s20, 11", f"s_add_u32 s45, s45, {LB}", "s_add_u32 s46, s45, 8192",
        "v_lshrrev_b32 v2, 4, v1", "s_lshl_b32 s16, s20, 3", "v_add_u32 v4, s16, v2", "v_lshlrev_b32 v4, 11, v4",
        "v_bfe_u32 v5, v1, 1, 3", "v_xor_b32 v6, v2, v5", "v_xor_b32 v7, 4, v6",
        "v_and_b32 v2, 1, v1", "v_lshl_add_u32 v4, v2, 4, v4", "s_lshl_b32 s16, s23, 8", "v_add_u32 v4, s16, v4",
        f"v_add_u32 v5, {4*2048-1024}, v4",
        "v_lshl_add_u32 v4, v6, 5, v4", "v_lshl_add_u32 v5, v7, 5, v5",
        "s_mul_i32 s48, s21, %d" % (1792 * 2048), "s_waitcnt lgkmcnt(0)")
    srd(a, 24, 8, 3584 * 1024 * 2)
    def dma_w(st):
        return [f"s_add_u32 m0, s46, {(st % R) * SLOT}", "s_add_u32 s49, s48, 0",
                "buffer_load_dwordx4 v4, s[24:27], s49 offen lds", "s_add_u32 s48, s48, 65536",
                "buffer_load_dwordx4 v5, s[24:27], s49 offen offset:1024 lds"]
    def dma_a(st):
        return [f"s_add_u32 m0, s45, {(st % R) * SLOT}", "s_add_u32 s43, s44, 0",
                "buffer_load_dwordx4 v3, s[32:35], s43 offen lds", "s_add_u32 s44, s44, 1024",
                "buffer_load_dwordx4 v10, s[32:35], s43 offen offset:1024 lds"]
    def prologue(note):
        for j in range(R): a.extend(note(dma_w(j), j))
        a.I("s_lshl_b32 s16, s22, 3", "s_lshl_b32 s17, s20, 1", "s_add_u32 s16, s16, s17", "s_mul_i32 s16, s16, 112",
            "s_mul_i32 s17, s21, 56", "s_add_u32 s16, s16, s17", "s_lshl_b32 s44, s16, 10", f"s_add_u32 s44, s44, {WS_H}",
            f"v_add_u32 v10, {112*1024-1024}, v3",
            "s_and_b32 s40, s20, 1", "s_lshr_b32 s41, s20, 1",
            "s_lshl_b32 s16, s41, 12", f"s_add_u32 s16, s16, {LB}", "v_add_u32 v12, s16, v3",
            "v_lshrrev_b32 v2, 4, v1", "v_lshlrev_b32 v13, 10, v2", "v_bfe_u32 v9, v1, 2, 2", "v_lshl_add_u32 v13, v9, 8, v13",
            "v_bfe_u32 v8, v1, 2, 3", "s_lshl_b32 s16, s40, 2", "v_xor_b32 v8, s16, v8",
            "v_lshl_add_u32 v13, v8, 5, v13", "v_and_b32 v9, 3, v1", "v_lshl_add_u32 v13, v9, 3, v13", f"v_add_u32 v13, {LB+8192}, v13",
            "v_xor_b32 v14, 32, v13", "v_xor_b32 v15, 64, v13", "v_xor_b32 v16, 96, v13")
        for i in range(5): a.I(f"v_add_u32 v{22+i}, 0x10000, v{12+i}")
        for i in range(64): a.I(f"v_mov_b32 v{ACC+i}, 0")
        a.I("s_lshr_b32 s18, s22, 1", "s_lshl_b32 s18, s18, 5", "s_mul_i32 s16, s21, 14", "s_add_u32 s18, s18, s16",
            "s_lshl_b32 s18, s18, 2", f"s_add_u32 s18, s18, {WS_FL+FL_H}")
        poll(a, 18, 14)
        ts(a, 3)
        for j in range(R): a.extend(note(dma_a(j), j))
    def reads(st):
        buf = st & 1; sl = st % R; vb = 12 if sl < 4 else 22; so = (sl & 3) * SLOT
        o = []
        for u in range(4):
            for rd in range(2):
                o.append(f"ds_read_b64_tr_b16 {vr(FW_[buf]+u*4+2*rd,2)}, v{vb+1+u} offset:{so+rd*4096}")
        for t in range(4): o.append(f"ds_read_b128 {vr(FA[buf]+t*4,4)}, v{vb} offset:{so+t*1024}")
        return o
    def mm(buf):
        return [mfma16(ACC + (t * 4 + u) * 4, FW_[buf] + u * 4, FA[buf] + t * 4) for t in range(4) for u in range(4)]
    ring(a, "DN", NST, R, U, lambda st: dma_w(st) + dma_a(st), reads, mm, prologue=prologue)
    ts(a, 4)
    a.I("s_lshl_b32 s16, s22, 3", "s_lshl_b32 s17, s41, 2", "s_add_u32 s16, s16, s17", "s_lshl_b32 s16, s16, 5",
        "s_lshl_b32 s17, s23, 2", "s_add_u32 s16, s16, s17", "s_lshl_b32 s17, s40, 1", "s_add_u32 s16, s16, s17",
        "s_lshl_b32 s16, s16, 10", "s_lshl_b32 s17, s21, 22", "s_add_u32 s16, s16, s17", f"s_add_u32 s16, s16, {WS_P}")
    for t in range(4):
        for nb in range(2):
            g = ACC + (t * 4 + nb * 2) * 4; pk = 32 + (t * 2 + nb) * 4
            for d in range(4): a.I(f"v_cvt_pk_bf16_f32 v{pk+d}, v{g+2*d}, v{g+2*d+1}")
            a.I(f"buffer_store_dwordx4 {vr(pk,4)}, v3, s[32:35], s16 offen offset:{nb*1024}{SC1}")
        a.I("s_add_u32 s16, s16, 32768")
    for i in range(NBAR - (NST - 1)): a.I("s_barrier")

def wo(a):
    R = 6; SLOT = 24576; NST = 16
    FA = [32, 64]; FW = [48, 80]; ACC = 96; XR = 112; P0 = 120; P1 = 128
    a.I("s_mov_b32 s20, s54",
        "s_bfe_u32 s16, s2, 0x20001", "s_lshl_b32 s16, s16, 2", "s_bfe_u32 s17, s2, 0x20003", "s_add_u32 s22, s16, s17",
        "s_and_b32 s16, s2, 1", "s_lshl_b32 s16, s16, 3", "s_lshr_b32 s17, s2, 5", "s_add_u32 s23, s16, s17",
        "s_lshl_b32 s46, s20, 10", "s_add_u32 s46, s46, 16384",
        "v_lshrrev_b32 v2, 3, v1", "s_lshl_b32 s16, s20, 3", "v_add_u32 v4, s16, v2", "v_lshlrev_b32 v4, 11, v4",
        "v_lshrrev_b32 v2, 4, v1", "v_bfe_u32 v5, v1, 1, 2", "v_xor_b32 v2, v2, v5", "v_lshl_add_u32 v4, v2, 5, v4",
        "v_and_b32 v2, 1, v1", "v_lshl_add_u32 v4, v2, 4, v4", "s_lshl_b32 s16, s23, 7", "v_add_u32 v4, s16, v4",
        "s_mov_b32 s48, 0")
    def dma_w(st):
        return [f"s_add_u32 m0, s46, {(st % R) * SLOT}", "s_nop 0", "buffer_load_dwordx4 v4, s[24:27], s48 offen lds",
                f"s_add_u32 s48, s48, {64*2048}"]
    def dma_a(st):
        return [f"s_add_u32 m0, s45, {(st % R) * SLOT}", "s_nop 0",
                "buffer_load_dwordx4 v3, s[32:35], s44 offen lds", "buffer_load_dwordx4 v3, s[32:35], s44 offen offset:1024 lds",
                "s_add_u32 s44, s44, 2048"]
    def prologue(note):
        for j in range(R): a.extend(note(dma_w(j), j))
        xsel(a, 21)
        a.I("s_and_b32 s40, s20, 1", "s_lshr_b32 s41, s20, 1",
            "s_lshl_b32 s16, s22, 2", "s_add_u32 s16, s16, s41", "s_lshl_b32 s42, s16, 16",
            "s_lshl_b32 s17, s23, 1", "s_add_u32 s17, s17, s40", "s_lshl_b32 s18, s17, 6", "s_add_u32 s42, s42, s18",
            "s_lshl_b32 s16, s16, 6", "s_add_u32 s16, s16, s17", "s_lshl_b32 s43, s16, 10", f"s_add_u32 s43, s43, {WS_P}",
            "s_add_u32 s16, s42, 32768")
        a.extend(note([f"buffer_load_dwordx4 {vr(XR,4)}, v21, s[28:31], s42 offen", f"buffer_load_dwordx4 {vr(XR+4,4)}, v21, s[28:31], s16 offen"], None))
        a.I("s_lshl_b32 s16, s22, 3", "s_add_u32 s16, s16, s20", "s_lshl_b32 s44, s16, 15", f"s_add_u32 s44, s44, {WS_O}",
            "s_lshl_b32 s45, s20, 11",
            "s_lshl_b32 s16, s41, 12", "v_add_u32 v12, s16, v3",
            "v_lshrrev_b32 v2, 5, v1", "v_lshlrev_b32 v13, 11, v2", "v_bfe_u32 v8, v1, 2, 3", "v_lshl_add_u32 v13, v8, 7, v13",
            "v_lshrrev_b32 v8, 1, v8", "s_lshl_b32 s16, s40, 1", "v_xor_b32 v8, s16, v8", "v_lshl_add_u32 v13, v8, 5, v13",
            "v_and_b32 v8, 3, v1", "v_lshl_add_u32 v13, v8, 3, v13", "v_add_u32 v13, 16384, v13", "v_xor_b32 v14, 32, v13",
            "s_mov_b32 s19, 0xffff0000")
        for s_ in (1, 2):
            for i in range(3): a.I(f"v_add_u32 v{12+3*s_+i}, {2*SLOT*s_}, v{12+i}")
        for i in range(16): a.I(f"v_mov_b32 v{ACC+i}, 0")
        a.I("s_lshr_b32 s16, s22, 3", "s_lshl_b32 s16, s16, 1", "s_lshr_b32 s17, s23, 3", "s_lshl_b32 s17, s17, 2", "s_add_u32 s16, s16, s17",
            "s_and_b32 s17, s22, 7", "s_lshl_b32 s17, s17, 3", "s_add_u32 s16, s16, s17",
            "s_bfe_u32 s17, s23, 0x20001", "s_lshl_b32 s17, s17, 6", "s_add_u32 s16, s16, s17", "s_sub_u32 s16, s16, 16",
            "s_lshl_b32 s17, s22, 4", "v_mov_b32 v8, s16", "v_mov_b32 v9, s17", "v_cmp_gt_u32 vcc, 16, v1",
            "v_cndmask_b32 v9, v8, v9, vcc", "v_add_lshl_u32 v9, v9, v1, 2", f"s_mov_b32 s18, {WS_FL+FL_2}")
        if "wopoll1" in EXP:
            a.I("s_cmp_lg_u32 s20, 0", "s_cbranch_scc1 WO_NP")
            poll(a, 18, 18, voff=9)
            a.L("WO_NP")
            a.I("s_barrier")
        else:
            poll(a, 18, 18, voff=9)
        ts(a, 6)
        for j in range(R): a.extend(note(dma_a(j), j))
        a.I("s_add_u32 s16, s43, 32768", f"s_add_u32 s17, s43, {4<<20}", f"s_add_u32 s18, s16, {4<<20}")
        a.extend(note([f"buffer_load_dwordx4 {vr(P0,4)}, v3, s[32:35], s43 offen", f"buffer_load_dwordx4 {vr(P0+4,4)}, v3, s[32:35], s16 offen",
                       f"buffer_load_dwordx4 {vr(P1,4)}, v3, s[32:35], s17 offen", f"buffer_load_dwordx4 {vr(P1+4,4)}, v3, s[32:35], s18 offen"], None))
    def reads(st):
        buf = st & 1; sl = st % R; vb = 12 + 3 * (sl >> 1); so = (sl & 1) * SLOT
        o = []
        for kb in range(2):
            for u in range(2):
                for rd in range(2):
                    o.append(f"ds_read_b64_tr_b16 {vr(FW[buf]+(kb*2+u)*4+2*rd,2)}, v{vb+1+u} offset:{so+kb*4096+rd*1024}")
            for t in range(2):
                o.append(f"ds_read_b128 {vr(FA[buf]+(kb*2+t)*4,4)}, v{vb} offset:{so+t*2048+kb*1024}")
        return o
    def mm(buf):
        return [mfma16(ACC + (t * 2 + u) * 4, FW[buf] + (kb * 2 + u) * 4, FA[buf] + (kb * 2 + t) * 4)
                for kb in range(2) for t in range(2) for u in range(2)]
    ring(a, "WO", NST, R, 6, lambda st: dma_w(st) + dma_a(st), reads, mm, prologue=prologue)
    a.I("s_waitcnt vmcnt(0)")
    for t in range(2):
        a.I(f"v_permlane16_swap_b32 v{XR+4*t}, v{XR+4*t+2}", f"v_permlane16_swap_b32 v{XR+4*t+1}, v{XR+4*t+3}")
    for t in range(2):
        pk = 32 + 4 * t
        for d in range(4):
            g = ACC + t * 8 + 2 * d
            a.I(f"v_lshlrev_b32 v22, 16, v{XR+4*t+d}", f"v_and_b32 v23, s19, v{XR+4*t+d}",
                f"v_lshlrev_b32 v24, 16, v{P0+4*t+d}", f"v_and_b32 v25, s19, v{P0+4*t+d}",
                f"v_lshlrev_b32 v26, 16, v{P1+4*t+d}", f"v_and_b32 v27, s19, v{P1+4*t+d}",
                "v_add_f32 v24, v24, v26", "v_add_f32 v25, v25, v27",
                f"v_add_f32 v{g}, v{g}, v22", f"v_add_f32 v{g+1}, v{g+1}, v23",
                f"v_add_f32 v{g}, v{g}, v24", f"v_add_f32 v{g+1}, v{g+1}, v25",
                f"v_cvt_pk_bf16_f32 v{pk+d}, v{g}, v{g+1}")
        a.I(f"v_permlane16_swap_b32 v{pk}, v{pk+2}", f"v_permlane16_swap_b32 v{pk+1}, v{pk+3}",
            f"buffer_store_dwordx4 {vr(pk,4)}, v21, s[36:39], s42 offen", "s_add_u32 s42, s42, 32768")

def fused():
    a = Asm()
    ts(a, 0)
    a.I("s_cmp_ge_u32 s2, 256", "s_cbranch_scc1 F_END",
        f"s_load_dwordx2 s[6:7], s[0:1], {KA_WS}",
        "v_lshrrev_b32 v2, 6, v0", "v_and_b32 v1, 63, v0", "v_readfirstlane_b32 s20, v2", "v_lshlrev_b32 v3, 4, v1",
        "s_mov_b32 s54, s20", "s_waitcnt lgkmcnt(0)")
    srd(a, 32, 6, WS_SIZE)
    g1(a)
    a.I("s_and_b32 s20, s54, 3", "s_cmp_ge_u32 s54, 4", "s_cbranch_scc1 F_B")
    attention(a)
    a.I("s_branch F_J")
    a.L("F_B")
    down(a)
    a.L("F_J")
    a.I(f"s_load_dwordx2 s[8:9], s[0:1], {KA_WO}", f"s_load_dwordx2 s[10:11], s[0:1], {KA_X}", f"s_load_dwordx2 s[12:13], s[0:1], {KA_OUT}",
        "s_lshl_b32 s18, s2, 2", f"s_add_u32 s18, s18, {WS_FL+FL_2}")
    wg_publish(a, 18)
    ts(a, 5)
    a.I("s_waitcnt lgkmcnt(0)")
    srd(a, 24, 8, 1024 * 1024 * 2); srd(a, 28, 10, 2048 * 2048); srd(a, 36, 12, 2048 * 2048)
    wo(a)
    tl_dump(a, 8)
    a.L("F_END")
    a.I("s_endpgm")
    return a, dict(grid=256, block=512, lds=163840, vgpr=256)

if __name__ == "__main__":
    path = sys.argv[1] if len(sys.argv) > 1 else "cdna_kernels/" + NAME + ".s"
    opts = dict(o.split("=") for o in sys.argv[2:])
    OPT = opts; EXP = opts.get("exp", ""); TL = bool(int(opts.get("tl", 0))); G.TL = TL; H.EXP = EXP
    H.INV = "inv" in EXP.split("_")
    G.VERB = bool(int(opts.get("verb", 0)))
    a, p, idx, z = H.k1z()
    end = next(i for i, it in enumerate(a.items) if it.label == "K1_FIN")
    a.items[end + 1:end + 1] = z.items
    p["vgpr"] = 116
    G.build([("ln_kv", (a, p)), ("fused8", fused())], path)
```

```python
import sys
from asmlib import *
import gen as G
import gen2 as H
from gen import (NAME, KA_X, KA_WQ, KA_WK, KA_WV, KA_WO, KA_WG, KA_WU, KA_WD, KA_OUT, KA_DBG, KA_WS,
                 WS_XN, WS_KV, WS_Q, WS_O, WS_H, WS_P, WS_SIZE, f32, vr, srd, mfma32, mfma16, QSCALE, mix2, front_pattern)
from gen2 import WS_FL, WS_TL, ring, xsel
FL_H, FL_2, FL_X, FL_KV = 0, 1024, 2048, 3072
TL = False; EXP = ""; OPT = {}
SC1 = " sc1"

def ts(a, i):
    if TL: a.I(f"s_memrealtime s[{64+2*i}:{65+2*i}]")
def tl_dump(a, n):
    if not TL: return
    a.I("s_waitcnt vmcnt(0) lgkmcnt(0)")
    ts(a, 7)
    a.I("s_waitcnt lgkmcnt(0)", "s_lshl_b32 s90, s2, 3", "s_add_u32 s90, s90, s54", "s_lshl_b32 s90, s90, 6",
        f"s_add_u32 s90, s90, {WS_TL + 0x10000}", "v_mov_b32 v1, 0", "s_mov_b64 exec, 1")
    for i in range(n):
        a.I(f"v_mov_b32 v2, s{64+2*i}", f"buffer_store_dword v2, v1, s[32:35], s90 offen offset:{4*i}")

_n = [0]
def poll(a, soff, n, voff=None, wide=False):
    _n[0] += 1; lab = f"POLL{_n[0]}"
    if voff is None and not wide: a.I("v_lshlrev_b32 v8, 2, v1"); voff = 8
    if wide: voff = 3
    if n < 64: a.I(f"s_mov_b64 exec, {(1 << n) - 1}")
    a.I("s_mov_b32 s17, 0x40000")
    a.L(lab)
    if wide:
        a.I(f"buffer_load_dwordx4 v[28:31], v{voff}, s[32:35], s{soff} offen sc1", "s_waitcnt vmcnt(0)",
            "v_xor_b32 v28, s55, v28", "v_xor_b32 v29, s55, v29", "v_xor_b32 v30, s55, v30", "v_xor_b32 v31, s55, v31",
            "v_or3_b32 v28, v28, v29, v30", "v_or_b32 v28, v28, v31", "v_cmp_ne_u32 vcc, 0, v28")
    else:
        a.I(f"buffer_load_dword v2, v{voff}, s[32:35], s{soff} offen sc1", "s_waitcnt vmcnt(0)", "v_cmp_ne_u32 vcc, s55, v2")
    a.I(f"s_cbranch_vccz {lab}_D", "s_sleep 2", "s_sub_u32 s17, s17, 1", "s_cmp_lg_u32 s17, 0", f"s_cbranch_scc1 {lab}")
    a.L(lab + "_D")
    if n < 64: a.I("s_mov_b64 exec, -1")

def set_flag(a, soff):
    a.I("v_mov_b32 v2, s55", "v_mov_b32 v8, 0", "s_mov_b64 exec, 1",
        f"buffer_store_dword v2, v8, s[32:35], s{soff} offen sc1", "s_mov_b64 exec, -1")

def wg_publish(a, soff):
    _n[0] += 1; lab = f"PUB{_n[0]}"
    a.I("s_waitcnt vmcnt(0)", "s_barrier", "s_cmp_lg_u32 s54, 0", f"s_cbranch_scc1 {lab}")
    set_flag(a, soff)
    a.L(lab)

def g1_setup(a, sfx):
    a.I(f"s_load_dwordx2 s[4:5], s[0:1], {KA_WQ}", f"s_load_dwordx4 s[8:11], s[0:1], {KA_WG}",
        "s_and_b32 s16, s2, 7", "s_lshr_b32 s17, s16, 1", "s_and_b32 s16, s16, 1", "s_lshr_b32 s18, s2, 3",
        "s_mul_i32 s19, s17, 7", "s_lshl_b32 s16, s16, 2", "s_add_u32 s21, s19, s16", "s_lshr_b32 s23, s18, 3",
        "s_add_u32 s21, s21, s23", "s_and_b32 s22, s18, 7", "s_cmp_lt_u32 s23, 3", "s_cbranch_scc1 G1_MAP" + sfx,
        "s_and_b32 s22, s18, 3", "s_add_u32 s22, s22, s16", "s_add_u32 s21, s19, 3", "s_add_u32 s17, s17, 28",
        "s_bitcmp1_b32 s18, 2", "s_cselect_b32 s21, s21, s17")
    a.L("G1_MAP" + sfx)
    a.I("s_and_b32 s23, s20, 3", "v_add_u32 v10, 31744, v3",
        "s_lshl_b32 s16, s22, 4", "s_lshl_b32 s17, s20, 1", "s_add_u32 s16, s16, s17", "s_lshl_b32 s44, s16, 15",
        "s_lshl_b32 s45, s20, 11", "s_mov_b32 s47, 0", "s_mov_b32 s50, 0", "s_waitcnt lgkmcnt(0)")
    a.I("s_cmp_ge_u32 s21, 28", "s_cbranch_scc1 G1_QSET" + sfx)
    srd(a, 24, 8, 1024 * 3584 * 2); srd(a, 28, 10, 1024 * 3584 * 2)
    a.I("s_mov_b32 s40, 7168", "s_lshl_b32 s41, s21, 8", "s_mov_b32 s49, 0", "s_branch G1_SET" + sfx)
    a.L("G1_QSET" + sfx)
    srd(a, 24, 4, 1024 * 1024 * 2); srd(a, 28, 4, 1024 * 1024 * 2)
    a.I("s_mov_b32 s40, 2048", "s_sub_u32 s41, s21, 28", "s_lshl_b32 s41, s41, 9", "s_mov_b32 s49, 256")
    a.L("G1_SET" + sfx)
    a.I("v_lshrrev_b32 v2, 4, v1", "s_lshl_b32 s16, s23, 3", "v_add_u32 v4, s16, v2", "v_mul_lo_u32 v4, v4, s40",
        "s_and_b32 s16, s23, 1", "s_lshl_b32 s16, s16, 2", "v_add_u32 v2, s16, v2",
        "v_bfe_u32 v5, v1, 1, 3", "v_xor_b32 v2, v2, v5", "v_lshl_add_u32 v4, v2, 5, v4",
        "v_and_b32 v2, 1, v1", "v_lshl_add_u32 v4, v2, 4, v4", "v_add_u32 v4, s41, v4",
        "s_lshl_b32 s16, s40, 2", "s_sub_u32 s16, s16, 1024", "v_add_u32 v5, s16, v4",
        "s_lshl_b32 s43, s40, 5", "s_lshl_b32 s46, s23, 11", "s_add_u32 s46, s46, 16384",
        "s_mov_b32 s48, 0", "s_mov_b32 s52, 0")

def dma_wx(h, slotreg):
    srdw = "s[24:27]" if h == 0 else "s[28:31]"; so = 48 + h
    return [f"s_add_u32 s16, s{slotreg}, s46"] + (["s_add_u32 s16, s16, 8192"] if h else []) + ["s_mov_b32 m0, s16", "s_nop 0",
            f"buffer_load_dwordx4 v4, {srdw}, s{so} offen lds",
            f"buffer_load_dwordx4 v5, {srdw}, s{so} offen offset:1024 lds", f"s_add_u32 s{so}, s{so}, s43"]

def g1(a):
    NST = 32; R = 5; SLOT = 32768
    ACC = 128; FA = 64; FW = 96
    def acc(h, u, t): return ACC + (t * 4 + h * 2 + u) * 4
    def adv(reg): return [f"s_add_u32 s{reg}, s{reg}, {SLOT}", f"s_cmp_eq_u32 s{reg}, {SLOT*R}", f"s_cselect_b32 s{reg}, 0, s{reg}"]
    def dma_act():
        return ["s_add_u32 m0, s47, s45", "s_nop 0",
                "buffer_load_dwordx4 v3, s[32:35], s44 offen lds",
                "buffer_load_dwordx4 v10, s[32:35], s44 offen offset:1024 lds", "s_add_u32 s44, s44, 1024"]
    def rdaddr():
        return ["s_lshr_b32 s17, s20, 2", "s_lshl_b32 s16, s17, 13", "v_add_u32 v6, s16, v3",
                "v_lshrrev_b32 v2, 4, v1", "v_lshlrev_b32 v7, 11, v2", "v_and_b32 v2, 1, v2", "v_lshlrev_b32 v12, 2, v2",
                "v_bfe_u32 v2, v1, 2, 2", "v_lshl_add_u32 v7, v2, 8, v7",
                "v_add_u32 v12, v12, v2", "s_lshl_b32 s16, s23, 1", "v_xor_b32 v12, s16, v12",
                "v_lshl_add_u32 v7, v12, 5, v7", "v_and_b32 v2, 3, v1", "v_lshl_add_u32 v7, v2, 3, v7",
                "v_add_u32 v7, 16384, v7", "v_xor_b32 v11, 32, v7"]
    def reads():
        o = ["v_add_u32 v8, s50, v6", "v_add_u32 v9, s50, v7", "v_add_u32 v13, s50, v11"]
        for h in range(2):
            for u in range(2):
                for rd in range(2):
                    o.append(f"ds_read_b64_tr_b16 {vr(FW+(h*2+u)*4+2*rd,2)}, v{9 if u == 0 else 13} offset:{h*8192+rd*1024}")
        for t in range(8): o.append(f"ds_read_b128 {vr(FA+t*4,4)}, v8 offset:{t*1024}")
        return o + adv(50)
    def mm(first):
        return [mfma16(acc(h, u, t), FW + (h * 2 + u) * 4, FA + t * 4, "0" if first else None) for t in range(8) for h in range(2) for u in range(2)]
    def mixmem(rd, dm):
        if not rd or not dm: return rd + dm
        groups = []; cur = []
        for x in dm:
            cur.append(x)
            if x.startswith("buffer"): groups.append(cur); cur = []
        groups[-1] += cur
        pre = [x for x in rd if x.startswith("v_")]; ds = [x for x in rd if x.startswith("ds_")]; post = [x for x in rd if x.startswith("s_")]
        o = list(pre); n = len(groups); per = len(ds) // n
        for g in range(n): o += groups[g] + ds[g * per:(g + 1) * per if g < n - 1 else len(ds)]
        return o + post
    def cnt(log, stage):
        last = max([i for i, s_ in enumerate(log) if s_ <= stage], default=-1)
        return 2 * (len(log) - 1 - last)
    a.I("s_lshl_b32 s18, s22, 3", "s_add_u32 s18, s18, s20", "s_lshl_b32 s18, s18, 4", f"s_add_u32 s18, s18, {WS_FL+FL_X}")
    a.I("s_cmp_ge_u32 s20, 4", "s_cbranch_scc1 G1_B")
    logA = []
    def issueA(kind, stage):
        if stage >= NST: return []
        logA.append(stage)
        return (dma_act() + adv(47)) if kind == "a" else (dma_wx(1, 52) + adv(52))
    a.I("s_add_u32 s49, s49, s43", f"s_mov_b32 s52, {SLOT}")
    for j in range(1, R - 1): a.extend(issueA("w", j))
    a.extend(rdaddr())
    poll(a, 18, 4)
    del logA[:]
    for j in range(R): a.extend(issueA("a", j))
    a.I(f"s_waitcnt vmcnt({cnt(logA, 0)})", "s_barrier")
    a.extend(reads())
    a.I(f"s_waitcnt vmcnt({cnt(logA, 1)}) lgkmcnt(0)", "s_barrier")
    def bodyA(k, first=False):
        o = mm(first)
        o += mixmem(reads() if k + 1 < NST else [], issueA("w", k - 1 + R) + issueA("a", k + R))
        if k + 1 < NST: o += [f"s_waitcnt vmcnt({cnt(logA, k + 2)}) lgkmcnt(0)", "s_barrier"]
        return o
    a.extend(bodyA(0, True))
    a.I(f"s_mov_b32 s51, {NST-R-1}")
    a.L("G1_A_LOOP")
    body = bodyA(1)
    for k in range(2, NST - R): assert bodyA(k) == body
    a.extend(body)
    a.I("s_sub_u32 s51, s51, 1", "s_cmp_lg_u32 s51, 0", "s_cbranch_scc1 G1_A_LOOP")
    for k in range(NST - R, NST): a.extend(bodyA(k))
    a.I("s_branch G1_EPI")
    a.L("G1_B")
    logB = []
    def dmaB(stage):
        if stage >= NST: return []
        logB.extend([stage, stage])
        return dma_wx(0, 47) + dma_act() + adv(47)
    a.I("s_add_u32 s48, s48, s43", f"s_mov_b32 s52, {SLOT}")
    for j in range(1, R - 1): a.extend(dma_wx(0, 52) + adv(52))
    a.extend(rdaddr())
    poll(a, 18, 4)
    for j in range(R - 1):
        logB.append(j); a.extend(dma_act() + adv(47))
    a.I(f"s_waitcnt vmcnt({cnt(logB, 0)})", "s_barrier", f"s_waitcnt vmcnt({cnt(logB, 1)})", "s_barrier")
    def bodyB(k, first=False):
        o = mixmem(reads(), dmaB(k - 1 + R)) + ["s_waitcnt lgkmcnt(0)"] + mm(first)
        if k + 1 < NST: o += [f"s_waitcnt vmcnt({cnt(logB, k + 2)})", "s_barrier"]
        return o
    a.extend(bodyB(0, True))
    a.I(f"s_mov_b32 s51, {NST-R}")
    a.L("G1_B_LOOP")
    body = bodyB(1)
    for k in range(2, NST - R + 1): assert bodyB(k) == body
    a.extend(body)
    a.I("s_sub_u32 s51, s51, 1", "s_cmp_lg_u32 s51, 0", "s_cbranch_scc1 G1_B_LOOP")
    for k in range(NST - R + 1, NST): a.extend(bodyB(k))
    a.L("G1_EPI")
    ts(a, 1)
    a.I("s_lshl_b32 s16, s22, 4", "s_lshr_b32 s17, s20, 2", "s_lshl_b32 s17, s17, 3", "s_add_u32 s16, s16, s17",
        "s_cmp_ge_u32 s21, 28", "s_cbranch_scc1 G1_EPQ")
    a.I("s_mul_i32 s17, s16, 112", "s_lshl_b32 s18, s21, 2", "s_add_u32 s17, s17, s18",
        "s_add_u32 s17, s17, s23", "s_lshl_b32 s17, s17, 10", f"s_add_u32 s17, s17, {WS_H}")
    for t in range(8):
        g, u = acc(0, 0, t), acc(1, 0, t)
        for i in range(8): a.I(f"v_max_f32 v{g+i}, 0, v{g+i}")
        for i in range(8): a.I(f"v_mul_f32 v{g+i}, v{g+i}, v{u+i}")
        for d in range(4): a.I(f"v_cvt_pk_bf16_f32 v{FA+4*t+d}, v{g+2*d}, v{g+2*d+1}")
        a.I(f"buffer_store_dwordx4 {vr(FA+4*t,4)}, v3, s[32:35], s17 offen{SC1}", f"s_add_u32 s17, s17, {112*1024}")
    a.I("s_branch G1_PUB")
    a.L("G1_EPQ")
    a.I("s_sub_u32 s17, s21, 28", "s_lshl_b32 s17, s17, 3", "s_add_u32 s17, s17, s23", "s_lshl_b32 s17, s17, 7",
        "s_add_u32 s17, s17, s16", "s_lshl_b32 s17, s17, 10", f"s_add_u32 s17, s17, {WS_Q}",
        f"s_add_u32 s19, s17, {4*128*1024}", f"s_mov_b32 s18, {f32(QSCALE)}")
    for t in range(8):
        for h in range(2):
            g = acc(h, 0, t)
            for i in range(8): a.I(f"v_mul_f32 v{g+i}, s18, v{g+i}")
            for d in range(4): a.I(f"v_cvt_pk_bf16_f32 v{g+d}, v{g+2*d}, v{g+2*d+1}")
            a.I(f"buffer_store_dwordx4 {vr(g,4)}, v3, s[32:35], s{17+2*h} offen offset:{(t&3)*1024}{SC1}")
        if t == 3: a.I("s_add_u32 s17, s17, 4096", "s_add_u32 s19, s19, 4096")
    a.L("G1_PUB")
    a.I("s_lshl_b32 s18, s22, 5", "s_add_u32 s18, s18, s21", "s_lshl_b32 s18, s18, 2", f"s_add_u32 s18, s18, {WS_FL+FL_H}")
    wg_publish(a, 18)
    ts(a, 2)

NBAR = 64

def attention(a):
    QR = [16, 24]; KB = [32, 48]; VB = [40, 56]; P = 64; SEL = 72; Lr = [76, 80]; S = [96, 112]; O = [128, 144]; C = [160, 176]
    a.I("s_lshr_b32 s21, s2, 2", "s_and_b32 s22, s2, 3", "s_lshl_b32 s22, s22, 3", "s_lshl_b32 s16, s20, 1", "s_add_u32 s22, s22, s16",
        "s_lshl_b32 s24, s20, 13", "s_mov_b32 s25, s24",
        f"s_add_u32 s36, s32, {WS_KV}", "s_addc_u32 s37, s33, 0", "s_mov_b32 s38, 0x40000", "s_mov_b32 s39, 0x20000")
    def dma_groups():
        gs = []
        for g in range(2):
            for i in range(4):
                o = [f"s_add_u32 m0, s25, {g*4096}", f"s_add_u32 s23, s24, {g*4096}"] if i == 0 else []
                o += [f"buffer_load_dwordx4 v3, s[36:39], s23 offen offset:{i*1024} lds"]
                gs.append(o)
        gs[-1] += ["s_add_u32 s24, s24, 32768", "s_xor_b32 s25, s25, 32768"]
        return gs
    a.I(f"s_mov_b32 s18, {WS_FL+FL_KV}")
    poll(a, 18, 64, wide=True)
    a.extend([x for g in dma_groups() for x in g])
    a.extend(dma_groups()[0] + dma_groups()[1])
    a.I("v_bfe_u32 v2, v1, 4, 1", "v_lshlrev_b32 v4, 10, v2", "v_lshrrev_b32 v2, 5, v1", "v_lshl_add_u32 v4, v2, 8, v4",
        "v_and_b32 v2, 15, v1", "v_lshl_add_u32 v4, v2, 4, v4",
        "s_lshl_b32 s16, s22, 7", "s_lshl_b32 s17, s21, 1", "s_add_u32 s16, s16, s17", "s_lshl_b32 s16, s16, 10",
        f"s_add_u32 s26, s16, {WS_Q}", f"s_add_u32 s27, s26, {128*1024}",
        "s_and_b32 s18, s2, 0xe0", "s_and_b32 s16, s2, 3", "s_add_u32 s18, s18, s16",
        "s_lshl_b32 s18, s18, 2", f"s_add_u32 s18, s18, {WS_FL+FL_H+28*4}")
    poll(a, 18, 1)
    for b in range(2):
        for ks in range(2):
            a.I(f"buffer_load_dwordx4 {vr(QR[b]+4*ks,4)}, v4, s[32:35], s{26+b} offen offset:{ks*512}")
    a.I("v_lshrrev_b32 v2, 2, v1", "v_lshrrev_b32 v5, 4, v1", "v_xor_b32 v2, v2, v5", "v_and_b32 v2, 1, v2",
        "v_cmp_eq_u32 vcc, 0, v2", "v_mov_b32 v5, 0x3f803f80", f"v_cndmask_b32 v{SEL}, 0, v5, vcc")
    for i in range(1, 4): a.I(f"v_mov_b32 v{SEL+i}, v{SEL}")
    for b in range(2):
        for i in range(16): a.I(f"v_mov_b32 v{O[b]+i}, 0")
        for i in range(4): a.I(f"v_mov_b32 v{Lr[b]+i}, 0")
    for i in range(4): a.I(f"v_mov_b32 v{P+4+i}, 0", f"v_mov_b32 v{VB[1]+4+i}, 0")
    a.I("v_mov_b32 v6, v4", "v_add_u32 v7, 2048, v3", "s_mov_b32 s28, 0")
    a.I("s_barrier")
    def rdK(buf, off): return [f"ds_read_b128 {vr(KB[buf]+4*ks,4)}, v6 offset:{off+ks*512}" for ks in range(2)]
    def rdV(buf, off): return [f"ds_read_b128 {vr(VB[buf]+4*ks,4)}, v7 offset:{off+ks*1024}" for ks in range(2)]
    a.extend(rdK(0, 0) + rdV(0, 0))
    a.I("s_waitcnt vmcnt(0) lgkmcnt(0)")
    ts(a, 3)
    for b in range(2):
        a.I(mfma32(S[b], KB[0], QR[b], "0"), mfma32(S[b], KB[0] + 4, QR[b] + 4))
    for b in range(2):
        s0 = S[b]
        a.I(f"v_max3_f32 v8, v{s0}, v{s0+1}, v{s0+2}")
        for i in range(3, 15, 2): a.I(f"v_max3_f32 v8, v8, v{s0+i}, v{s0+i+1}")
        a.I(f"v_max_f32 v8, v8, v{s0+15}", "v_mov_b32 v9, v8", "v_permlane32_swap_b32 v8, v9", "v_max_f32 v8, v8, v9",
            f"v_sub_f32 v{C[b]}, 0, v8")
        for i in range(1, 16): a.I(f"v_mov_b32 v{C[b]+i}, v{C[b]}")
    a.I(mfma32(S[0], KB[0], QR[0], C[0]), mfma32(S[0], KB[0] + 4, QR[0] + 4))
    def tile(b, kbuf_next, vbuf, vprev, extra, dg):
        nb = 1 - b; s0 = S[b]
        ex = [f"v_exp_f32 v{s0+i}, v{s0+i}" for i in range(16)]
        cv = [f"v_cvt_pk_bf16_f32 v{P+d}, v{s0+2*d}, v{s0+2*d+1}" for d in range(8)]
        e = list(extra) + [None] * 4
        o = [mfma32(S[nb], KB[kbuf_next], QR[nb], C[nb]), e[0]] + ex[0:3]
        o += [mfma32(O[nb], VB[vprev] + 4, P + 4), e[1]] + ex[3:6]
        o += [mfma16(Lr[nb], SEL, P + 4)] + ex[6:8]
        o += [mfma32(S[nb], KB[kbuf_next] + 4, QR[nb] + 4), e[2], cv[0], cv[1], ex[8], cv[2], cv[3], ex[9], ex[10]]
        o += [mfma32(O[b], VB[vbuf], P), e[3]] + ex[11:14]
        o += [mfma16(Lr[b], SEL, P)] + (dg or []) + [ex[14], ex[15]] + cv[4:8]
        return [x for x in o if x]
    a.I("s_nop 11")
    a.L("ATT_LOOP")
    dg = dma_groups()
    for kb in range(8):
        cur = kb & 1; nxt = 1 - cur
        if kb == 7: a.I("s_waitcnt vmcnt(0)")
        a.I("s_barrier")
        if kb == 7: a.I("v_xor_b32 v6, 0x8000, v6", "v_xor_b32 v7, 0x8000, v7")
        off = ((kb + 1) & 7) * 4096
        order = {7: (0, 1), 0: (2, 3), 1: (4, 5), 2: (6, 7)}.get(kb)
        a.extend(tile(0, cur, cur, nxt, rdK(nxt, off) + rdV(nxt, off), dg[order[0]] if order else None))
        a.I("s_waitcnt lgkmcnt(2)")
        a.extend(tile(1, nxt, cur, cur, [], dg[order[1]] if order else None))
        if kb == 7: a.I("s_add_u32 s28, s28, 1", "s_cmp_lg_u32 s28, 8")
        a.I("s_waitcnt lgkmcnt(0)")
    a.I("s_cbranch_scc1 ATT_LOOP")
    a.I(mfma32(O[1], VB[1] + 4, P + 4), mfma16(Lr[1], SEL, P + 4))
    ts(a, 4)
    a.I(f"s_mov_b32 s16, {f32(2.0**100)}", "s_waitcnt vmcnt(0)")
    a.I(f"v_max_f32 v8, v{Lr[0]}, v{Lr[1]}")
    for b in range(2):
        for i in range(0, 16, 2): a.I(f"v_max3_f32 v8, v8, abs(v{O[b]+i}), abs(v{O[b]+i+1})")
    a.I(f"v_add_f32 v9, v{Lr[0]}, v{Lr[1]}")
    for b in range(2):
        for i in range(16): a.I(f"v_add_f32 v9, v9, v{O[b]+i}")
    a.I("v_cmp_nlt_f32 vcc, v8, s16", "v_cmp_u_f32 s[18:19], v9, v9", "s_or_b64 vcc, vcc, s[18:19]")
    if "force" in EXP: a.I("s_mov_b64 vcc, -1")
    a.I("s_cbranch_vccz ATT_FIN")
    for b in range(2):
        M = 10; AL = 11
        for i in range(16): a.I(f"v_mov_b32 v{O[b]+i}, 0")
        for i in range(4): a.I(f"v_mov_b32 v{Lr[b]+i}, 0")
        a.I(f"v_mov_b32 v{M}, {f32(-3.0e38)}", f"s_mov_b32 s29, 0")
        a.L(f"ATT_FB{b}")
        for ks in range(2):
            a.I(f"buffer_load_dwordx4 {vr(KB[0]+4*ks,4)}, v4, s[36:39], s29 offen offset:{ks*512}",
                f"buffer_load_dwordx4 {vr(VB[0]+4*ks,4)}, v3, s[36:39], s29 offen offset:{2048+ks*1024}")
        a.I("s_waitcnt vmcnt(0)")
        s0 = S[0]
        a.I(mfma32(s0, KB[0], QR[b], "0"), mfma32(s0, KB[0] + 4, QR[b] + 4))
        a.I(f"v_max3_f32 v8, v{s0}, v{s0+1}, v{M}")
        for i in range(2, 16, 2): a.I(f"v_max3_f32 v8, v8, v{s0+i}, v{s0+i+1}")
        a.I("v_mov_b32 v9, v8", "v_permlane32_swap_b32 v8, v9", "v_max_f32 v8, v8, v9",
            f"v_sub_f32 v{AL}, v{M}, v8", f"v_exp_f32 v{AL}, v{AL}", f"v_mov_b32 v{M}, v8")
        for i in range(16): a.I(f"v_sub_f32 v{s0+i}, v{s0+i}, v8")
        for i in range(16): a.I(f"v_exp_f32 v{s0+i}, v{s0+i}")
        for i in range(16): a.I(f"v_mul_f32 v{O[b]+i}, v{O[b]+i}, v{AL}")
        for i in range(4): a.I(f"v_mul_f32 v{Lr[b]+i}, v{Lr[b]+i}, v{AL}")
        for d in range(8): a.I(f"v_cvt_pk_bf16_f32 v{P+d}, v{s0+2*d}, v{s0+2*d+1}")
        a.I(mfma32(O[b], VB[0], P), mfma16(Lr[b], SEL, P), mfma32(O[b], VB[0] + 4, P + 4), mfma16(Lr[b], SEL, P + 4))
        a.I("s_add_u32 s29, s29, 4096", f"s_cmp_lg_u32 s29, {64*4096}", f"s_cbranch_scc1 ATT_FB{b}")
    a.L("ATT_FIN")
    a.I("v_bfe_u32 v2, v1, 4, 1", "v_lshlrev_b32 v5, 15, v2", "v_lshrrev_b32 v2, 5, v1", "v_lshl_add_u32 v5, v2, 8, v5",
        "v_and_b32 v2, 15, v1", "v_lshl_add_u32 v5, v2, 4, v5",
        "s_lshl_b32 s16, s21, 6", "s_add_u32 s16, s16, s22", "s_lshl_b32 s16, s16, 10", f"s_add_u32 s16, s16, {WS_O}")
    for b in range(2): a.I(f"v_rcp_f32 v{8+b}, v{Lr[b]}")
    for b in range(2):
        for i in range(16): a.I(f"v_mul_f32 v{O[b]+i}, v{O[b]+i}, v{8+b}")
        for d in range(8): a.I(f"v_cvt_pk_bf16_f32 v{S[b]+d}, v{O[b]+2*d}, v{O[b]+2*d+1}")
        for ks in range(2):
            a.I(f"buffer_store_dwordx4 {vr(S[b]+4*ks,4)}, v5, s[32:35], s16 offen offset:{b*1024+ks*512}{SC1}")

def down(a):
    R = 6; U = 6; SLOT = 16384; NST = 56; LB = 65536
    FA = [32, 64]; FW_ = [48, 80]; ACC = 128
    a.I(f"s_load_dwordx2 s[8:9], s[0:1], {KA_WD}",
        "s_and_b32 s21, s2, 1",
        "s_bfe_u32 s16, s2, 0x10001", "s_lshl_b32 s16, s16, 3", "s_bfe_u32 s17, s2, 0x30003", "s_add_u32 s22, s16, s17",
        "s_bfe_u32 s16, s2, 0x10002", "s_lshl_b32 s16, s16, 2", "s_bfe_u32 s17, s2, 0x20006", "s_add_u32 s23, s16, s17",
        "s_lshl_b32 s45, s20, 11", f"s_add_u32 s45, s45, {LB}", "s_add_u32 s46, s45, 8192",
        "v_lshrrev_b32 v2, 4, v1", "s_lshl_b32 s16, s20, 3", "v_add_u32 v4, s16, v2", "v_lshlrev_b32 v4, 11, v4",
        "v_bfe_u32 v5, v1, 1, 3", "v_xor_b32 v6, v2, v5", "v_xor_b32 v7, 4, v6",
        "v_and_b32 v2, 1, v1", "v_lshl_add_u32 v4, v2, 4, v4", "s_lshl_b32 s16, s23, 8", "v_add_u32 v4, s16, v4",
        f"v_add_u32 v5, {4*2048-1024}, v4",
        "v_lshl_add_u32 v4, v6, 5, v4", "v_lshl_add_u32 v5, v7, 5, v5",
        "s_mul_i32 s48, s21, %d" % (1792 * 2048), "s_waitcnt lgkmcnt(0)")
    srd(a, 24, 8, 3584 * 1024 * 2)
    def dma_w(st):
        return [f"s_add_u32 m0, s46, {(st % R) * SLOT}", "s_add_u32 s49, s48, 0",
                "buffer_load_dwordx4 v4, s[24:27], s49 offen lds", "s_add_u32 s48, s48, 65536",
                "buffer_load_dwordx4 v5, s[24:27], s49 offen offset:1024 lds"]
    def dma_a(st):
        return [f"s_add_u32 m0, s45, {(st % R) * SLOT}", "s_add_u32 s43, s44, 0",
                "buffer_load_dwordx4 v3, s[32:35], s43 offen lds", "s_add_u32 s44, s44, 1024",
                "buffer_load_dwordx4 v10, s[32:35], s43 offen offset:1024 lds"]
    def prologue(note):
        for j in range(R): a.extend(note(dma_w(j), j))
        a.I("s_lshl_b32 s16, s22, 3", "s_lshl_b32 s17, s20, 1", "s_add_u32 s16, s16, s17", "s_mul_i32 s16, s16, 112",
            "s_mul_i32 s17, s21, 56", "s_add_u32 s16, s16, s17", "s_lshl_b32 s44, s16, 10", f"s_add_u32 s44, s44, {WS_H}",
            f"v_add_u32 v10, {112*1024-1024}, v3",
            "s_and_b32 s40, s20, 1", "s_lshr_b32 s41, s20, 1",
            "s_lshl_b32 s16, s41, 12", f"s_add_u32 s16, s16, {LB}", "v_add_u32 v12, s16, v3",
            "v_lshrrev_b32 v2, 4, v1", "v_lshlrev_b32 v13, 10, v2", "v_bfe_u32 v9, v1, 2, 2", "v_lshl_add_u32 v13, v9, 8, v13",
            "v_bfe_u32 v8, v1, 2, 3", "s_lshl_b32 s16, s40, 2", "v_xor_b32 v8, s16, v8",
            "v_lshl_add_u32 v13, v8, 5, v13", "v_and_b32 v9, 3, v1", "v_lshl_add_u32 v13, v9, 3, v13", f"v_add_u32 v13, {LB+8192}, v13",
            "v_xor_b32 v14, 32, v13", "v_xor_b32 v15, 64, v13", "v_xor_b32 v16, 96, v13")
        for i in range(5): a.I(f"v_add_u32 v{22+i}, 0x10000, v{12+i}")
        for i in range(64): a.I(f"v_mov_b32 v{ACC+i}, 0")
        a.I("s_lshr_b32 s18, s22, 1", "s_lshl_b32 s18, s18, 5", "s_mul_i32 s16, s21, 14", "s_add_u32 s18, s18, s16",
            "s_lshl_b32 s18, s18, 2", f"s_add_u32 s18, s18, {WS_FL+FL_H}")
        poll(a, 18, 14)
        ts(a, 3)
        for j in range(R): a.extend(note(dma_a(j), j))
    def reads(st):
        buf = st & 1; sl = st % R; vb = 12 if sl < 4 else 22; so = (sl & 3) * SLOT
        o = []
        for u in range(4):
            for rd in range(2):
                o.append(f"ds_read_b64_tr_b16 {vr(FW_[buf]+u*4+2*rd,2)}, v{vb+1+u} offset:{so+rd*4096}")
        for t in range(4): o.append(f"ds_read_b128 {vr(FA[buf]+t*4,4)}, v{vb} offset:{so+t*1024}")
        return o
    def mm(buf):
        return [mfma16(ACC + (t * 4 + u) * 4, FW_[buf] + u * 4, FA[buf] + t * 4) for t in range(4) for u in range(4)]
    ring(a, "DN", NST, R, U, lambda st: dma_w(st) + dma_a(st), reads, mm, prologue=prologue)
    ts(a, 4)
    a.I("s_lshl_b32 s16, s22, 3", "s_lshl_b32 s17, s41, 2", "s_add_u32 s16, s16, s17", "s_lshl_b32 s16, s16, 5",
        "s_lshl_b32 s17, s23, 2", "s_add_u32 s16, s16, s17", "s_lshl_b32 s17, s40, 1", "s_add_u32 s16, s16, s17",
        "s_lshl_b32 s16, s16, 10", "s_lshl_b32 s17, s21, 22", "s_add_u32 s16, s16, s17", f"s_add_u32 s16, s16, {WS_P}")
    for t in range(4):
        for nb in range(2):
            g = ACC + (t * 4 + nb * 2) * 4; pk = 32 + (t * 2 + nb) * 4
            for d in range(4): a.I(f"v_cvt_pk_bf16_f32 v{pk+d}, v{g+2*d}, v{g+2*d+1}")
            a.I(f"buffer_store_dwordx4 {vr(pk,4)}, v3, s[32:35], s16 offen offset:{nb*1024}{SC1}")
        a.I("s_add_u32 s16, s16, 32768")
    for i in range(NBAR - (NST - 1)): a.I("s_barrier")

def wo(a):
    R = 6; SLOT = 24576; NST = 16
    FA = [32, 64]; FW = [48, 80]; ACC = 96; XR = 112; P0 = 120; P1 = 128
    a.I("s_mov_b32 s20, s54",
        "s_bfe_u32 s16, s2, 0x20001", "s_lshl_b32 s16, s16, 2", "s_bfe_u32 s17, s2, 0x20003", "s_add_u32 s22, s16, s17",
        "s_and_b32 s16, s2, 1", "s_lshl_b32 s16, s16, 3", "s_lshr_b32 s17, s2, 5", "s_add_u32 s23, s16, s17",
        "s_lshl_b32 s46, s20, 10", "s_add_u32 s46, s46, 16384",
        "v_lshrrev_b32 v2, 3, v1", "s_lshl_b32 s16, s20, 3", "v_add_u32 v4, s16, v2", "v_lshlrev_b32 v4, 11, v4",
        "v_lshrrev_b32 v2, 4, v1", "v_bfe_u32 v5, v1, 1, 2", "v_xor_b32 v2, v2, v5", "v_lshl_add_u32 v4, v2, 5, v4",
        "v_and_b32 v2, 1, v1", "v_lshl_add_u32 v4, v2, 4, v4", "s_lshl_b32 s16, s23, 7", "v_add_u32 v4, s16, v4",
        "s_mov_b32 s48, 0")
    def dma_w(st):
        return [f"s_add_u32 m0, s46, {(st % R) * SLOT}", "s_nop 0", "buffer_load_dwordx4 v4, s[24:27], s48 offen lds",
                f"s_add_u32 s48, s48, {64*2048}"]
    def dma_a(st):
        return [f"s_add_u32 m0, s45, {(st % R) * SLOT}", "s_nop 0",
                "buffer_load_dwordx4 v3, s[32:35], s44 offen lds", "buffer_load_dwordx4 v3, s[32:35], s44 offen offset:1024 lds",
                "s_add_u32 s44, s44, 2048"]
    def prologue(note):
        for j in range(R): a.extend(note(dma_w(j), j))
        xsel(a, 21)
        a.I("s_and_b32 s40, s20, 1", "s_lshr_b32 s41, s20, 1",
            "s_lshl_b32 s16, s22, 2", "s_add_u32 s16, s16, s41", "s_lshl_b32 s42, s16, 16",
            "s_lshl_b32 s17, s23, 1", "s_add_u32 s17, s17, s40", "s_lshl_b32 s18, s17, 6", "s_add_u32 s42, s42, s18",
            "s_lshl_b32 s16, s16, 6", "s_add_u32 s16, s16, s17", "s_lshl_b32 s43, s16, 10", f"s_add_u32 s43, s43, {WS_P}",
            "s_add_u32 s16, s42, 32768")
        a.extend(note([f"buffer_load_dwordx4 {vr(XR,4)}, v21, s[28:31], s42 offen", f"buffer_load_dwordx4 {vr(XR+4,4)}, v21, s[28:31], s16 offen"], None))
        a.I("s_lshl_b32 s16, s22, 3", "s_add_u32 s16, s16, s20", "s_lshl_b32 s44, s16, 15", f"s_add_u32 s44, s44, {WS_O}",
            "s_lshl_b32 s45, s20, 11",
            "s_lshl_b32 s16, s41, 12", "v_add_u32 v12, s16, v3",
            "v_lshrrev_b32 v2, 5, v1", "v_lshlrev_b32 v13, 11, v2", "v_bfe_u32 v8, v1, 2, 3", "v_lshl_add_u32 v13, v8, 7, v13",
            "v_lshrrev_b32 v8, 1, v8", "s_lshl_b32 s16, s40, 1", "v_xor_b32 v8, s16, v8", "v_lshl_add_u32 v13, v8, 5, v13",
            "v_and_b32 v8, 3, v1", "v_lshl_add_u32 v13, v8, 3, v13", "v_add_u32 v13, 16384, v13", "v_xor_b32 v14, 32, v13",
            "s_mov_b32 s19, 0xffff0000")
        for s_ in (1, 2):
            for i in range(3): a.I(f"v_add_u32 v{12+3*s_+i}, {2*SLOT*s_}, v{12+i}")
        for i in range(16): a.I(f"v_mov_b32 v{ACC+i}, 0")
        a.I("s_lshr_b32 s16, s22, 3", "s_lshl_b32 s16, s16, 1", "s_lshr_b32 s17, s23, 3", "s_lshl_b32 s17, s17, 2", "s_add_u32 s16, s16, s17",
            "s_and_b32 s17, s22, 7", "s_lshl_b32 s17, s17, 3", "s_add_u32 s16, s16, s17",
            "s_bfe_u32 s17, s23, 0x20001", "s_lshl_b32 s17, s17, 6", "s_add_u32 s16, s16, s17", "s_sub_u32 s16, s16, 16",
            "s_lshl_b32 s17, s22, 4", "v_mov_b32 v8, s16", "v_mov_b32 v9, s17", "v_cmp_gt_u32 vcc, 16, v1",
            "v_cndmask_b32 v9, v8, v9, vcc", "v_add_lshl_u32 v9, v9, v1, 2", f"s_mov_b32 s18, {WS_FL+FL_2}")
        if "wopoll1" in EXP:
            a.I("s_cmp_lg_u32 s20, 0", "s_cbranch_scc1 WO_NP")
            poll(a, 18, 18, voff=9)
            a.L("WO_NP")
            a.I("s_barrier")
        else:
            poll(a, 18, 18, voff=9)
        ts(a, 6)
        for j in range(R): a.extend(note(dma_a(j), j))
        a.I("s_add_u32 s16, s43, 32768", f"s_add_u32 s17, s43, {4<<20}", f"s_add_u32 s18, s16, {4<<20}")
        a.extend(note([f"buffer_load_dwordx4 {vr(P0,4)}, v3, s[32:35], s43 offen", f"buffer_load_dwordx4 {vr(P0+4,4)}, v3, s[32:35], s16 offen",
                       f"buffer_load_dwordx4 {vr(P1,4)}, v3, s[32:35], s17 offen", f"buffer_load_dwordx4 {vr(P1+4,4)}, v3, s[32:35], s18 offen"], None))
    def reads(st):
        buf = st & 1; sl = st % R; vb = 12 + 3 * (sl >> 1); so = (sl & 1) * SLOT
        o = []
        for kb in range(2):
            for u in range(2):
                for rd in range(2):
                    o.append(f"ds_read_b64_tr_b16 {vr(FW[buf]+(kb*2+u)*4+2*rd,2)}, v{vb+1+u} offset:{so+kb*4096+rd*1024}")
            for t in range(2):
                o.append(f"ds_read_b128 {vr(FA[buf]+(kb*2+t)*4,4)}, v{vb} offset:{so+t*2048+kb*1024}")
        return o
    def mm(buf):
        return [mfma16(ACC + (t * 2 + u) * 4, FW[buf] + (kb * 2 + u) * 4, FA[buf] + (kb * 2 + t) * 4)
                for kb in range(2) for t in range(2) for u in range(2)]
    ring(a, "WO", NST, R, 6, lambda st: dma_w(st) + dma_a(st), reads, mm, prologue=prologue)
    a.I("s_waitcnt vmcnt(0)")
    for t in range(2):
        a.I(f"v_permlane16_swap_b32 v{XR+4*t}, v{XR+4*t+2}", f"v_permlane16_swap_b32 v{XR+4*t+1}, v{XR+4*t+3}")
    for t in range(2):
        pk = 32 + 4 * t
        for d in range(4):
            g = ACC + t * 8 + 2 * d
            a.I(f"v_lshlrev_b32 v22, 16, v{XR+4*t+d}", f"v_and_b32 v23, s19, v{XR+4*t+d}",
                f"v_lshlrev_b32 v24, 16, v{P0+4*t+d}", f"v_and_b32 v25, s19, v{P0+4*t+d}",
                f"v_lshlrev_b32 v26, 16, v{P1+4*t+d}", f"v_and_b32 v27, s19, v{P1+4*t+d}",
                "v_add_f32 v24, v24, v26", "v_add_f32 v25, v25, v27",
                f"v_add_f32 v{g}, v{g}, v22", f"v_add_f32 v{g+1}, v{g+1}, v23",
                f"v_add_f32 v{g}, v{g}, v24", f"v_add_f32 v{g+1}, v{g+1}, v25",
                f"v_cvt_pk_bf16_f32 v{pk+d}, v{g}, v{g+1}")
        a.I(f"v_permlane16_swap_b32 v{pk}, v{pk+2}", f"v_permlane16_swap_b32 v{pk+1}, v{pk+3}",
            f"buffer_store_dwordx4 {vr(pk,4)}, v21, s[36:39], s42 offen", "s_add_u32 s42, s42, 32768")

def phase0(a):
    LW, LX, LR = 49152, 114688, 147456
    a.I(f"s_load_dwordx2 s[4:5], s[0:1], {KA_X}", f"s_load_dwordx4 s[8:11], s[0:1], {KA_WK}",
        "s_lshr_b32 s21, s2, 1", "s_and_b32 s22, s2, 1",
        "s_lshl_b32 s23, s21, 15", "s_lshl_b32 s16, s20, 12", "s_add_u32 s19, s23, s16", "s_waitcnt lgkmcnt(0)")
    srd(a, 24, 4, 2048 * 2048)
    a.I("s_cmp_eq_u32 s22, 0", "s_cselect_b64 s[12:13], s[8:9], s[10:11]")
    for i in range(4): a.I(f"buffer_load_dwordx4 {vr(8+4*i,4)}, v3, s[24:27], s19 offen offset:{i*1024}")
    a.I("v_mov_b32 v7, 0", "buffer_load_dword v6, v7, s[56:59], 0 offen sc1")
    srd(a, 28, 12, 65536)
    a.I("s_lshl_b32 s17, s20, 13", f"s_add_u32 m0, s17, {LW}", "s_add_u32 s18, s17, 4096")
    for i in range(4): a.I(f"buffer_load_dwordx4 v3, s[28:31], s17 offen offset:{i*1024} lds")
    a.I(f"s_add_u32 m0, s18, {LW}", "s_nop 0")
    for i in range(4): a.I(f"buffer_load_dwordx4 v3, s[28:31], s18 offen offset:{i*1024} lds")
    a.I("s_mov_b32 s36, 0xffff0000", "s_waitcnt vmcnt(9)")
    for r in range(2):
        for d in range(8):
            src = 8 + 8 * r + d
            a.I(f"v_lshlrev_b32 v{32+16*r+2*d}, 16, v{src}", f"v_and_b32 v{33+16*r+2*d}, s36, v{src}")
    def tree(dst, base, sq):
        t = 64 + (dst - 24) * 8
        for i in range(8):
            if sq: a.I(f"v_mul_f32 v{t+i}, v{base+2*i}, v{base+2*i}", f"v_fmac_f32 v{t+i}, v{base+2*i+1}, v{base+2*i+1}")
            else: a.I(f"v_add_f32 v{t+i}, v{base+2*i}, v{base+2*i+1}")
        for s_ in (4, 2):
            for i in range(s_): a.I(f"v_add_f32 v{t+i}, v{t+i}, v{t+i+s_}")
        a.I(f"v_add_f32 v{dst}, v{t}, v{t+1}")
    def wavered(rs, ss):
        for mod in ("row_shr:1 row_mask:0xf bank_mask:0xf bound_ctrl:0", "row_shr:2 row_mask:0xf bank_mask:0xf bound_ctrl:0",
                    "row_shr:4 row_mask:0xf bank_mask:0xf bound_ctrl:0", "row_shr:8 row_mask:0xf bank_mask:0xf bound_ctrl:0",
                    "row_bcast:15 row_mask:0xa bank_mask:0xf", "row_bcast:31 row_mask:0xc bank_mask:0xf"):
            for r in rs: a.I(f"v_add_f32_dpp v{r}, v{r}, v{r} {mod}")
        for r, s_ in zip(rs, ss): a.I(f"v_readlane_b32 s{s_}, v{r}, 63")
    tree(24, 32, False); tree(25, 48, False)
    wavered((24, 25), (40, 41))
    a.I(f"s_mov_b32 s37, {f32(1.0/1024)}")
    a.I("v_mov_b32 v26, s40", "v_mov_b32 v27, s41", "v_mul_f32 v26, s37, v26", "v_mul_f32 v27, s37, v27")
    for r in range(2):
        for i in range(16): a.I(f"v_sub_f32 v{80+16*r+i}, v{32+16*r+i}, v{26+r}")
    tree(24, 80, True); tree(25, 96, True)
    wavered((24, 25), (42, 43))
    a.I("v_mov_b32 v28, s42", "v_mov_b32 v29, s43", "v_mul_f32 v28, s37, v28", "v_mul_f32 v29, s37, v29")
    def rnd(r): a.I(f"v_cvt_pk_bf16_f32 v{r}, v{r}, v{r}", f"v_lshlrev_b32 v{r}, 16, v{r}")
    a.I(f"s_mov_b32 s38, {f32(1e-5)}")
    for r in range(2):
        rnd(26 + r); rnd(28 + r)
        a.I(f"v_add_f32 v{28+r}, s38, v{28+r}"); rnd(28 + r)
        a.I(f"v_sqrt_f32 v{28+r}, v{28+r}"); rnd(28 + r)
        a.I(f"v_rcp_f32 v{28+r}, v{28+r}")
    for r in range(2):
        for d in range(8):
            b = 32 + 16 * r + 2 * d
            a.I(f"v_sub_f32 v{b}, v{b}, v{26+r}", f"v_sub_f32 v{b+1}, v{b+1}, v{26+r}",
                f"v_cvt_pk_bf16_f32 v{b}, v{b}, v{b+1}",
                f"v_and_b32 v{b+1}, s36, v{b}", f"v_lshlrev_b32 v{b}, 16, v{b}",
                f"v_mul_f32 v{b}, v{b}, v{28+r}", f"v_mul_f32 v{b+1}, v{b+1}, v{28+r}",
                f"v_cvt_pk_bf16_f32 v{8+8*r+d}, v{b}, v{b+1}")
    a.I("s_lshl_b32 s16, s20, 5", f"s_add_u32 s16, s16, {LX}", "v_lshlrev_b32 v4, 8, v1", "v_add_u32 v4, s16, v4")
    for r in range(2):
        for p in range(2): a.I(f"ds_write_b128 v4, {vr(8+8*r+4*p,4)} offset:{p*16384+r*16}")
    a.I("v_lshrrev_b32 v5, 4, v1",
        "s_lshl_b32 s16, s20, 12", f"s_add_u32 s16, s16, {LX}", "v_add_u32 v30, s16, v3",
        "v_lshlrev_b32 v31, 9, v5", "v_bfe_u32 v2, v1, 2, 2", "v_lshl_add_u32 v31, v2, 6, v31",
        "v_and_b32 v2, 3, v1", "v_lshl_add_u32 v31, v2, 3, v31", f"s_add_u32 s16, s17, {LW}", "v_add_u32 v31, s16, v31",
        "s_lshl_b32 s16, s22, 14", "s_lshl_b32 s18, s20, 11", "s_add_u32 s16, s16, s18",
        "s_add_u32 s39, s23, s16", f"s_add_u32 s16, s16, {LX}", "v_add_u32 v24, s16, v3",
        "s_waitcnt vmcnt(0) lgkmcnt(0)", "v_readfirstlane_b32 s55, v6", "s_barrier")
    a.I("ds_read_b128 v[8:11], v24", "ds_read_b128 v[12:15], v24 offset:1024")
    for j in range(4):
        a.I(f"ds_read_b128 {vr(32+4*j,4)}, v30 offset:{j*1024}")
        for d in range(2):
            for rd in range(2):
                a.I(f"ds_read_b64_tr_b16 {vr(64+8*j+4*d+2*rd,2)}, v31 offset:{j*2048+rd*256+d*32}")
    a.I("s_waitcnt lgkmcnt(20)") if False else a.I("s_waitcnt lgkmcnt(0)")
    a.I(f"buffer_store_dwordx4 v[8:11], v3, s[32:35], s39 offen sc1", f"buffer_store_dwordx4 v[12:15], v3, s[32:35], s39 offen offset:1024 sc1")
    a.I("s_cmp_eq_u32 s22, 0", "s_cbranch_scc0 P0_V")
    for j in range(4):
        for d in range(2): a.I(mfma16(96 + 4 * d, 64 + 8 * j + 4 * d, 32 + 4 * j, "0" if j == 0 else None))
    a.I("s_branch P0_R")
    a.L("P0_V")
    for j in range(4):
        for d in range(2): a.I(mfma16(96 + 4 * d, 32 + 4 * j, 64 + 8 * j + 4 * d, "0" if j == 0 else None))
    a.L("P0_R")
    a.I("s_lshl_b32 s16, s20, 11", f"s_add_u32 s16, s16, {LR}", "v_add_u32 v4, s16, v3")
    for d in range(2): a.I(f"ds_write_b128 v4, {vr(96+4*d,4)} offset:{d*1024}")
    a.I("s_mov_b32 s17, 0x40000")
    a.L("P0_TAG")
    a.I("s_cmp_lg_u32 s55, 0", "s_cbranch_scc1 P0_TAGOK",
        "buffer_load_dword v6, v7, s[56:59], 0 offen sc1", "s_waitcnt vmcnt(0)", "v_readfirstlane_b32 s55, v6",
        "s_sub_u32 s17, s17, 1", "s_cmp_lg_u32 s17, 0", "s_cbranch_scc1 P0_TAG")
    a.L("P0_TAGOK")
    a.I("s_waitcnt vmcnt(0) lgkmcnt(0)", "s_barrier")
    a.I("s_lshl_b32 s18, s2, 2", f"s_add_u32 s18, s18, {WS_FL+FL_X}", "s_cmp_lg_u32 s20, 1", "s_cbranch_scc1 P0_NX")
    set_flag(a, 18)
    a.L("P0_NX")
    a.I("s_cmp_lg_u32 s20, 0", "s_cbranch_scc1 P0_END")
    a.I(f"v_add_u32 v4, {LR}, v3")
    for w in range(8):
        a.I(f"ds_read_b128 {vr(32+8*w,4)}, v4 offset:{w*2048}", f"ds_read_b128 {vr(36+8*w,4)}, v4 offset:{w*2048+1024}")
    a.I("s_waitcnt lgkmcnt(0)")
    for s_ in (4, 2, 1):
        for w in range(s_):
            for i in range(8): a.I(f"v_add_f32 v{32+8*w+i}, v{32+8*w+i}, v{32+8*(w+s_)+i}")
    for d in range(4): a.I(f"v_cvt_pk_bf16_f32 v{8+d}, v{32+2*d}, v{33+2*d}")
    a.I("s_lshr_b32 s16, s21, 1", "s_lshl_b32 s19, s16, 12", f"s_add_u32 s19, s19, {WS_KV}",
        "s_and_b32 s16, s21, 1", "s_lshl_b32 s16, s16, 10", "s_add_u32 s19, s19, s16",
        "s_cmp_eq_u32 s22, 0", "s_cbranch_scc0 P0_SV",
        "buffer_store_dwordx4 v[8:11], v3, s[32:35], s19 offen sc1", "s_branch P0_KF")
    a.L("P0_SV")
    a.I("v_and_b32 v2, 1, v5", "v_lshlrev_b32 v4, 9, v2", "v_and_b32 v2, 15, v1", "v_lshl_add_u32 v4, v2, 4, v4",
        "v_lshrrev_b32 v2, 1, v5", "v_lshl_add_u32 v4, v2, 3, v4",
        "buffer_store_dwordx2 v[8:9], v4, s[32:35], s19 offen offset:2048 sc1",
        "buffer_store_dwordx2 v[10:11], v4, s[32:35], s19 offen offset:2304 sc1")
    a.L("P0_KF")
    a.I("s_waitcnt vmcnt(0)", f"s_add_u32 s18, s18, {FL_KV-FL_X}")
    set_flag(a, 18)
    a.L("P0_END")

def fused():
    a = Asm()
    ts(a, 0)
    a.I("s_cmp_ge_u32 s2, 256", "s_cbranch_scc1 F_END",
        f"s_load_dwordx4 s[4:7], s[0:1], {KA_DBG}", "s_memrealtime s[8:9]",
        "v_lshrrev_b32 v2, 6, v0", "v_and_b32 v1, 63, v0", "v_readfirstlane_b32 s20, v2", "v_lshlrev_b32 v3, 4, v1",
        "s_mov_b32 s54, s20", "s_waitcnt lgkmcnt(0)")
    srd(a, 32, 6, WS_SIZE); srd(a, 56, 4, 256)
    a.I("s_or_b32 s16, s2, s20", "s_cmp_lg_u32 s16, 0", "s_cbranch_scc1 F_NT",
        "s_or_b32 s16, s8, 1", "v_mov_b32 v2, s16", "v_mov_b32 v8, 0", "s_mov_b64 exec, 1",
        "buffer_store_dword v2, v8, s[56:59], 0 offen sc1", "s_mov_b64 exec, -1")
    a.L("F_NT")
    g1_setup(a, "E")
    a.I("s_cmp_ge_u32 s20, 4", "s_cbranch_scc1 F_WB")
    a.extend(dma_wx(1, 47))
    a.I("s_branch F_W")
    a.L("F_WB")
    a.extend(dma_wx(0, 47))
    a.L("F_W")
    phase0(a)
    ts(a, 8)
    g1_setup(a, "")
    g1(a)
    a.I("s_and_b32 s20, s54, 3", "s_cmp_ge_u32 s54, 4", "s_cbranch_scc1 F_B")
    attention(a)
    a.I("s_branch F_J")
    a.L("F_B")
    down(a)
    a.L("F_J")
    a.I(f"s_load_dwordx2 s[8:9], s[0:1], {KA_WO}", f"s_load_dwordx2 s[10:11], s[0:1], {KA_X}", f"s_load_dwordx2 s[12:13], s[0:1], {KA_OUT}",
        "s_lshl_b32 s18, s2, 2", f"s_add_u32 s18, s18, {WS_FL+FL_2}")
    wg_publish(a, 18)
    ts(a, 5)
    a.I("s_waitcnt lgkmcnt(0)")
    srd(a, 24, 8, 1024 * 1024 * 2); srd(a, 28, 10, 2048 * 2048); srd(a, 36, 12, 2048 * 2048)
    wo(a)
    tl_dump(a, 9)
    a.L("F_END")
    a.I("s_endpgm")
    return a, dict(grid=256, block=512, lds=163840, vgpr=256)

if __name__ == "__main__":
    path = sys.argv[1] if len(sys.argv) > 1 else "cdna_kernels/" + NAME + ".s"
    opts = dict(o.split("=") for o in sys.argv[2:])
    OPT = opts; EXP = opts.get("exp", ""); TL = bool(int(opts.get("tl", 0))); G.TL = TL; H.EXP = EXP
    H.INV = "inv" in EXP.split("_")
    G.VERB = bool(int(opts.get("verb", 0)))
    G.build([(NAME if int(opts.get("single", 0)) else "fused8", fused())], path)
```

```python
import sys
from asmlib import *
import gen as G
import gen2 as H
from gen import (NAME, KA_X, KA_WQ, KA_WK, KA_WV, KA_WO, KA_WG, KA_WU, KA_WD, KA_OUT, KA_DBG, KA_WS,
                 WS_XN, WS_KV, WS_Q, WS_O, WS_H, WS_P, WS_SIZE, f32, vr, srd, mfma32, mfma16, QSCALE, mix2, front_pattern)
from gen2 import WS_FL, WS_TL, ring, xsel
FL_H, FL_2, FL_KV, FL_X = 0, 1024, 2048, 4096
TL = False; EXP = ""; OPT = {}
SC1 = " sc1"

def ts(a, i):
    if TL: a.I(f"s_memrealtime s[{62+2*i}:{63+2*i}]")
def tl_dump(a, n):
    if not TL: return
    a.I("s_waitcnt vmcnt(0) lgkmcnt(0)")
    ts(a, 7)
    a.I("s_waitcnt lgkmcnt(0)", "s_lshl_b32 s90, s2, 3", "s_add_u32 s90, s90, s54", "s_lshl_b32 s90, s90, 6",
        f"s_add_u32 s90, s90, {WS_TL + 0x10000}", "v_mov_b32 v1, 0", "s_mov_b64 exec, 1")
    for i in range(n):
        a.I(f"v_mov_b32 v2, s{62+2*i}", f"buffer_store_dword v2, v1, s[32:35], s90 offen offset:{4*i}")

_n = [0]
def poll(a, soff, n, voff=None, wide=False):
    _n[0] += 1; lab = f"POLL{_n[0]}"
    if voff is None and not wide: a.I("v_lshlrev_b32 v8, 2, v1"); voff = 8
    if wide: voff = 3
    if n < 64: a.I(f"s_mov_b32 exec_lo, {((1 << n) - 1) & 0xffffffff:#x}", f"s_mov_b32 exec_hi, {((1 << n) - 1) >> 32:#x}")
    a.I("s_mov_b32 s17, 0x40000")
    a.L(lab)
    if wide:
        a.I(f"buffer_load_dwordx4 v[28:31], v{voff}, s[32:35], s{soff} offen sc1", "s_waitcnt vmcnt(0)",
            "v_xor_b32 v28, s55, v28", "v_xor_b32 v29, s55, v29", "v_xor_b32 v30, s55, v30", "v_xor_b32 v31, s55, v31",
            "v_or3_b32 v28, v28, v29, v30", "v_or_b32 v28, v28, v31", "v_cmp_ne_u32 vcc, 0, v28")
    else:
        a.I(f"buffer_load_dword v2, v{voff}, s[32:35], s{soff} offen sc1", "s_waitcnt vmcnt(0)", "v_cmp_ne_u32 vcc, s55, v2")
    a.I(f"s_cbranch_vccz {lab}_D", "s_sleep 2", "s_sub_u32 s17, s17, 1", "s_cmp_lg_u32 s17, 0", f"s_cbranch_scc1 {lab}")
    a.L(lab + "_D")
    if n < 64: a.I("s_mov_b64 exec, -1")

def set_flag(a, soff):
    a.I("v_mov_b32 v2, s55", "v_mov_b32 v8, 0", "s_mov_b64 exec, 1",
        f"buffer_store_dword v2, v8, s[32:35], s{soff} offen sc1", "s_mov_b64 exec, -1")

def wg_publish(a, soff):
    _n[0] += 1; lab = f"PUB{_n[0]}"
    a.I("s_waitcnt vmcnt(0)", "s_barrier", "s_cmp_lg_u32 s54, 0", f"s_cbranch_scc1 {lab}")
    set_flag(a, soff)
    a.L(lab)

def g1_setup(a, sfx):
    a.I(f"s_load_dwordx2 s[4:5], s[0:1], {KA_WQ}", f"s_load_dwordx4 s[8:11], s[0:1], {KA_WG}",
        "s_and_b32 s16, s2, 7", "s_lshr_b32 s17, s16, 1", "s_and_b32 s16, s16, 1", "s_lshr_b32 s18, s2, 3",
        "s_mul_i32 s19, s17, 7", "s_lshl_b32 s16, s16, 2", "s_add_u32 s21, s19, s16", "s_lshr_b32 s23, s18, 3",
        "s_add_u32 s21, s21, s23", "s_and_b32 s22, s18, 7", "s_cmp_lt_u32 s23, 3", "s_cbranch_scc1 G1_MAP" + sfx,
        "s_and_b32 s22, s18, 3", "s_add_u32 s22, s22, s16", "s_add_u32 s21, s19, 3", "s_add_u32 s17, s17, 28",
        "s_bitcmp1_b32 s18, 2", "s_cselect_b32 s21, s21, s17")
    a.L("G1_MAP" + sfx)
    if not sfx: a.I("v_add_u32 v10, 31744, v3")
    a.I("s_and_b32 s23, s20, 3",
        "s_lshl_b32 s16, s22, 4", "s_lshl_b32 s17, s20, 1", "s_add_u32 s16, s16, s17", "s_lshl_b32 s44, s16, 15",
        "s_lshl_b32 s45, s20, 11", "s_mov_b32 s47, 0", "s_mov_b32 s50, 0", "s_waitcnt lgkmcnt(0)")
    a.I("s_cmp_ge_u32 s21, 28", "s_cbranch_scc1 G1_QSET" + sfx)
    srd(a, 24, 8, 1024 * 3584 * 2); srd(a, 28, 10, 1024 * 3584 * 2)
    a.I("s_mov_b32 s40, 7168", "s_lshl_b32 s41, s21, 8", "s_mov_b32 s49, 0", "s_branch G1_SET" + sfx)
    a.L("G1_QSET" + sfx)
    srd(a, 24, 4, 1024 * 1024 * 2); srd(a, 28, 4, 1024 * 1024 * 2)
    a.I("s_mov_b32 s40, 2048", "s_sub_u32 s41, s21, 28", "s_lshl_b32 s41, s41, 9", "s_mov_b32 s49, 256")
    a.L("G1_SET" + sfx)
    a.I("v_lshrrev_b32 v2, 4, v1", "s_lshl_b32 s16, s23, 3", "v_add_u32 v4, s16, v2", "v_mul_lo_u32 v4, v4, s40",
        "s_and_b32 s16, s23, 1", "s_lshl_b32 s16, s16, 2", "v_add_u32 v2, s16, v2",
        "v_bfe_u32 v5, v1, 1, 3", "v_xor_b32 v2, v2, v5", "v_lshl_add_u32 v4, v2, 5, v4",
        "v_and_b32 v2, 1, v1", "v_lshl_add_u32 v4, v2, 4, v4", "v_add_u32 v4, s41, v4",
        "s_lshl_b32 s16, s40, 2", "s_sub_u32 s16, s16, 1024", "v_add_u32 v5, s16, v4",
        "s_lshl_b32 s43, s40, 5", "s_lshl_b32 s46, s23, 11", "s_add_u32 s46, s46, 16384",
        "s_mov_b32 s48, 0", "s_mov_b32 s52, 0")

def dma_wx(h, slotreg):
    srdw = "s[24:27]" if h == 0 else "s[28:31]"; so = 48 + h
    return [f"s_add_u32 s16, s{slotreg}, s46"] + (["s_add_u32 s16, s16, 8192"] if h else []) + ["s_mov_b32 m0, s16", "s_nop 0",
            f"buffer_load_dwordx4 v4, {srdw}, s{so} offen lds",
            f"buffer_load_dwordx4 v5, {srdw}, s{so} offen offset:1024 lds", f"s_add_u32 s{so}, s{so}, s43"]

def g1(a):
    NST = 32; R = 5; SLOT = 32768
    ACC = 128; FA = 64; FW = 96
    def acc(h, u, t): return ACC + (t * 4 + h * 2 + u) * 4
    def adv(reg): return [f"s_add_u32 s{reg}, s{reg}, {SLOT}", f"s_cmp_eq_u32 s{reg}, {SLOT*R}", f"s_cselect_b32 s{reg}, 0, s{reg}"]
    def dma_act():
        return ["s_add_u32 m0, s47, s45", "s_nop 0",
                "buffer_load_dwordx4 v3, s[32:35], s44 offen lds",
                "buffer_load_dwordx4 v10, s[32:35], s44 offen offset:1024 lds", "s_add_u32 s44, s44, 1024"]
    def rdaddr():
        return ["s_lshr_b32 s17, s20, 2", "s_lshl_b32 s16, s17, 13", "v_add_u32 v6, s16, v3",
                "v_lshrrev_b32 v2, 4, v1", "v_lshlrev_b32 v7, 11, v2", "v_and_b32 v2, 1, v2", "v_lshlrev_b32 v12, 2, v2",
                "v_bfe_u32 v2, v1, 2, 2", "v_lshl_add_u32 v7, v2, 8, v7",
                "v_add_u32 v12, v12, v2", "s_lshl_b32 s16, s23, 1", "v_xor_b32 v12, s16, v12",
                "v_lshl_add_u32 v7, v12, 5, v7", "v_and_b32 v2, 3, v1", "v_lshl_add_u32 v7, v2, 3, v7",
                "v_add_u32 v7, 16384, v7", "v_xor_b32 v11, 32, v7"]
    def reads():
        o = ["v_add_u32 v8, s50, v6", "v_add_u32 v9, s50, v7", "v_add_u32 v13, s50, v11"]
        for h in range(2):
            for u in range(2):
                for rd in range(2):
                    o.append(f"ds_read_b64_tr_b16 {vr(FW+(h*2+u)*4+2*rd,2)}, v{9 if u == 0 else 13} offset:{h*8192+rd*1024}")
        for t in range(8): o.append(f"ds_read_b128 {vr(FA+t*4,4)}, v8 offset:{t*1024}")
        return o + adv(50)
    def mm(first):
        return [mfma16(acc(h, u, t), FW + (h * 2 + u) * 4, FA + t * 4, "0" if first else None) for t in range(8) for h in range(2) for u in range(2)]
    def mixmem(rd, dm):
        if not rd or not dm: return rd + dm
        groups = []; cur = []
        for x in dm:
            cur.append(x)
            if x.startswith("buffer"): groups.append(cur); cur = []
        groups[-1] += cur
        pre = [x for x in rd if x.startswith("v_")]; ds = [x for x in rd if x.startswith("ds_")]; post = [x for x in rd if x.startswith("s_")]
        o = list(pre); n = len(groups); per = len(ds) // n
        for g in range(n): o += groups[g] + ds[g * per:(g + 1) * per if g < n - 1 else len(ds)]
        return o + post
    def cnt(log, stage):
        last = max([i for i, s_ in enumerate(log) if s_ <= stage], default=-1)
        return 2 * (len(log) - 1 - last)
    a.I("s_lshl_b32 s18, s22, 3", "s_add_u32 s18, s18, s20", "s_lshl_b32 s18, s18, 7", f"s_add_u32 s18, s18, {WS_FL+FL_X}")
    a.I("s_cmp_ge_u32 s20, 4", "s_cbranch_scc1 G1_B")
    logA = []
    def issueA(kind, stage):
        if stage >= NST: return []
        logA.append(stage)
        return (dma_act() + adv(47)) if kind == "a" else (dma_wx(1, 52) + adv(52))
    a.I("s_add_u32 s49, s49, s43", f"s_mov_b32 s52, {SLOT}")
    poll(a, 18, 32)
    ts(a, 11)
    for j in range(R):
        if 0 < j < R - 1: a.extend(issueA("w", j))
        a.extend(issueA("a", j))
    a.extend(rdaddr())
    a.I(f"s_waitcnt vmcnt({cnt(logA, 0)})", "s_barrier")
    a.extend(reads())
    a.I(f"s_waitcnt vmcnt({cnt(logA, 1)}) lgkmcnt(0)", "s_barrier")
    def bodyA(k, first=False):
        o = mm(first)
        o += mixmem(reads() if k + 1 < NST else [], issueA("w", k - 1 + R) + issueA("a", k + R))
        if k + 1 < NST: o += [f"s_waitcnt vmcnt({cnt(logA, k + 2)}) lgkmcnt(0)", "s_barrier"]
        return o
    ts(a, 12)
    a.extend(bodyA(0, True))
    a.I(f"s_mov_b32 s51, {NST-R-1}")
    a.L("G1_A_LOOP")
    body = bodyA(1)
    for k in range(2, NST - R): assert bodyA(k) == body
    a.extend(body)
    a.I("s_sub_u32 s51, s51, 1", "s_cmp_lg_u32 s51, 0", "s_cbranch_scc1 G1_A_LOOP")
    for k in range(NST - R, NST): a.extend(bodyA(k))
    a.I("s_branch G1_EPI")
    a.L("G1_B")
    logB = []
    def dmaB(stage):
        if stage >= NST: return []
        logB.extend([stage, stage])
        return dma_wx(0, 47) + dma_act() + adv(47)
    a.I("s_add_u32 s48, s48, s43")
    poll(a, 18, 32)
    logB.append(0); a.extend(dma_act() + adv(47))
    for j in range(1, R - 1): a.extend(dmaB(j))
    a.extend(rdaddr())
    a.I(f"s_waitcnt vmcnt({cnt(logB, 0)})", "s_barrier", f"s_waitcnt vmcnt({cnt(logB, 1)})", "s_barrier")
    def bodyB(k, first=False):
        o = mixmem(reads(), dmaB(k - 1 + R)) + ["s_waitcnt lgkmcnt(0)"] + mm(first)
        if k + 1 < NST: o += [f"s_waitcnt vmcnt({cnt(logB, k + 2)})", "s_barrier"]
        return o
    a.extend(bodyB(0, True))
    a.I(f"s_mov_b32 s51, {NST-R}")
    a.L("G1_B_LOOP")
    body = bodyB(1)
    for k in range(2, NST - R + 1): assert bodyB(k) == body
    a.extend(body)
    a.I("s_sub_u32 s51, s51, 1", "s_cmp_lg_u32 s51, 0", "s_cbranch_scc1 G1_B_LOOP")
    for k in range(NST - R + 1, NST): a.extend(bodyB(k))
    a.L("G1_EPI")
    ts(a, 1)
    a.I("s_lshl_b32 s16, s22, 4", "s_lshr_b32 s17, s20, 2", "s_lshl_b32 s17, s17, 3", "s_add_u32 s16, s16, s17",
        "s_cmp_ge_u32 s21, 28", "s_cbranch_scc1 G1_EPQ")
    a.I("s_mul_i32 s17, s16, 112", "s_lshl_b32 s18, s21, 2", "s_add_u32 s17, s17, s18",
        "s_add_u32 s17, s17, s23", "s_lshl_b32 s17, s17, 10", f"s_add_u32 s17, s17, {WS_H}")
    for t in range(8):
        g, u = acc(0, 0, t), acc(1, 0, t)
        for i in range(8): a.I(f"v_max_f32 v{g+i}, 0, v{g+i}")
        for i in range(8): a.I(f"v_mul_f32 v{g+i}, v{g+i}, v{u+i}")
        for d in range(4): a.I(f"v_cvt_pk_bf16_f32 v{FA+4*t+d}, v{g+2*d}, v{g+2*d+1}")
        a.I(f"buffer_store_dwordx4 {vr(FA+4*t,4)}, v3, s[32:35], s17 offen{SC1}", f"s_add_u32 s17, s17, {112*1024}")
    a.I("s_branch G1_PUB")
    a.L("G1_EPQ")
    a.I("s_sub_u32 s17, s21, 28", "s_lshl_b32 s17, s17, 3", "s_add_u32 s17, s17, s23", "s_lshl_b32 s17, s17, 7",
        "s_add_u32 s17, s17, s16", "s_lshl_b32 s17, s17, 10", f"s_add_u32 s17, s17, {WS_Q}",
        f"s_add_u32 s19, s17, {4*128*1024}", f"s_mov_b32 s18, {f32(QSCALE)}")
    for t in range(8):
        for h in range(2):
            g = acc(h, 0, t)
            for i in range(8): a.I(f"v_mul_f32 v{g+i}, s18, v{g+i}")
            for d in range(4): a.I(f"v_cvt_pk_bf16_f32 v{g+d}, v{g+2*d}, v{g+2*d+1}")
            a.I(f"buffer_store_dwordx4 {vr(g,4)}, v3, s[32:35], s{17+2*h} offen offset:{(t&3)*1024}{SC1}")
        if t == 3: a.I("s_add_u32 s17, s17, 4096", "s_add_u32 s19, s19, 4096")
    a.L("G1_PUB")
    a.I("s_lshl_b32 s18, s22, 5", "s_add_u32 s18, s18, s21", "s_lshl_b32 s18, s18, 2", f"s_add_u32 s18, s18, {WS_FL+FL_H}")
    wg_publish(a, 18)
    ts(a, 2)

NBAR = 64

def attention(a):
    QR = [16, 24]; KB = [32, 48]; VB = [40, 56]; P = 64; SEL = 72; Lr = [76, 80]; S = [96, 112]; O = [128, 144]; C = [160, 176]
    a.I("s_lshr_b32 s21, s2, 2", "s_and_b32 s22, s2, 3", "s_lshl_b32 s22, s22, 3", "s_lshl_b32 s16, s20, 1", "s_add_u32 s22, s22, s16",
        "s_lshl_b32 s24, s20, 13", "s_mov_b32 s25, s24",
        f"s_add_u32 s36, s32, {WS_KV}", "s_addc_u32 s37, s33, 0", "s_mov_b32 s38, 0x40000", "s_mov_b32 s39, 0x20000")
    def dma_groups():
        gs = []
        for g in range(2):
            for i in range(4):
                o = [f"s_add_u32 m0, s25, {g*4096}", f"s_add_u32 s23, s24, {g*4096}"] if i == 0 else []
                o += [f"buffer_load_dwordx4 v3, s[36:39], s23 offen offset:{i*1024} lds"]
                gs.append(o)
        gs[-1] += ["s_add_u32 s24, s24, 32768", "s_xor_b32 s25, s25, 32768"]
        return gs
    a.I(f"s_mov_b32 s18, {WS_FL+FL_KV}")
    poll(a, 18, 64, wide=True)
    a.extend([x for g in dma_groups() for x in g])
    a.extend(dma_groups()[0] + dma_groups()[1])
    a.I("v_bfe_u32 v2, v1, 4, 1", "v_lshlrev_b32 v4, 10, v2", "v_lshrrev_b32 v2, 5, v1", "v_lshl_add_u32 v4, v2, 8, v4",
        "v_and_b32 v2, 15, v1", "v_lshl_add_u32 v4, v2, 4, v4",
        "s_lshl_b32 s16, s22, 7", "s_lshl_b32 s17, s21, 1", "s_add_u32 s16, s16, s17", "s_lshl_b32 s16, s16, 10",
        f"s_add_u32 s26, s16, {WS_Q}", f"s_add_u32 s27, s26, {128*1024}",
        "s_and_b32 s18, s2, 0xe0", "s_and_b32 s16, s2, 3", "s_add_u32 s18, s18, s16",
        "s_lshl_b32 s18, s18, 2", f"s_add_u32 s18, s18, {WS_FL+FL_H+28*4}")
    poll(a, 18, 1)
    for b in range(2):
        for ks in range(2):
            a.I(f"buffer_load_dwordx4 {vr(QR[b]+4*ks,4)}, v4, s[32:35], s{26+b} offen offset:{ks*512}")
    a.I("v_lshrrev_b32 v2, 2, v1", "v_lshrrev_b32 v5, 4, v1", "v_xor_b32 v2, v2, v5", "v_and_b32 v2, 1, v2",
        "v_cmp_eq_u32 vcc, 0, v2", "v_mov_b32 v5, 0x3f803f80", f"v_cndmask_b32 v{SEL}, 0, v5, vcc")
    for i in range(1, 4): a.I(f"v_mov_b32 v{SEL+i}, v{SEL}")
    for b in range(2):
        for i in range(16): a.I(f"v_mov_b32 v{O[b]+i}, 0")
        for i in range(4): a.I(f"v_mov_b32 v{Lr[b]+i}, 0")
    for i in range(4): a.I(f"v_mov_b32 v{P+4+i}, 0", f"v_mov_b32 v{VB[1]+4+i}, 0")
    a.I("v_mov_b32 v6, v4", "v_add_u32 v7, 2048, v3", "s_mov_b32 s28, 0")
    a.I("s_barrier")
    def rdK(buf, off): return [f"ds_read_b128 {vr(KB[buf]+4*ks,4)}, v6 offset:{off+ks*512}" for ks in range(2)]
    def rdV(buf, off): return [f"ds_read_b128 {vr(VB[buf]+4*ks,4)}, v7 offset:{off+ks*1024}" for ks in range(2)]
    a.extend(rdK(0, 0) + rdV(0, 0))
    a.I("s_waitcnt vmcnt(0) lgkmcnt(0)")
    ts(a, 3)
    for b in range(2):
        a.I(mfma32(S[b], KB[0], QR[b], "0"), mfma32(S[b], KB[0] + 4, QR[b] + 4))
    for b in range(2):
        s0 = S[b]
        a.I(f"v_max3_f32 v8, v{s0}, v{s0+1}, v{s0+2}")
        for i in range(3, 15, 2): a.I(f"v_max3_f32 v8, v8, v{s0+i}, v{s0+i+1}")
        a.I(f"v_max_f32 v8, v8, v{s0+15}", "v_mov_b32 v9, v8", "v_permlane32_swap_b32 v8, v9", "v_max_f32 v8, v8, v9",
            f"v_sub_f32 v{C[b]}, 0, v8")
        for i in range(1, 16): a.I(f"v_mov_b32 v{C[b]+i}, v{C[b]}")
    a.I(mfma32(S[0], KB[0], QR[0], C[0]), mfma32(S[0], KB[0] + 4, QR[0] + 4))
    def tile(b, kbuf_next, vbuf, vprev, extra, dg):
        nb = 1 - b; s0 = S[b]
        ex = [f"v_exp_f32 v{s0+i}, v{s0+i}" for i in range(16)]
        cv = [f"v_cvt_pk_bf16_f32 v{P+d}, v{s0+2*d}, v{s0+2*d+1}" for d in range(8)]
        e = list(extra) + [None] * 4
        o = [mfma32(S[nb], KB[kbuf_next], QR[nb], C[nb]), e[0]] + ex[0:3]
        o += [mfma32(O[nb], VB[vprev] + 4, P + 4), e[1]] + ex[3:6]
        o += [mfma16(Lr[nb], SEL, P + 4)] + ex[6:8]
        o += [mfma32(S[nb], KB[kbuf_next] + 4, QR[nb] + 4), e[2], cv[0], cv[1], ex[8], cv[2], cv[3], ex[9], ex[10]]
        o += [mfma32(O[b], VB[vbuf], P), e[3]] + ex[11:14]
        o += [mfma16(Lr[b], SEL, P)] + (dg or []) + [ex[14], ex[15]] + cv[4:8]
        return [x for x in o if x]
    a.I("s_nop 11")
    a.L("ATT_LOOP")
    dg = dma_groups()
    for kb in range(8):
        cur = kb & 1; nxt = 1 - cur
        if kb == 7: a.I("s_waitcnt vmcnt(0)")
        a.I("s_barrier")
        if kb == 7: a.I("v_xor_b32 v6, 0x8000, v6", "v_xor_b32 v7, 0x8000, v7")
        off = ((kb + 1) & 7) * 4096
        order = {7: (0, 1), 0: (2, 3), 1: (4, 5), 2: (6, 7)}.get(kb)
        a.extend(tile(0, cur, cur, nxt, rdK(nxt, off) + rdV(nxt, off), dg[order[0]] if order else None))
        a.I("s_waitcnt lgkmcnt(2)")
        a.extend(tile(1, nxt, cur, cur, [], dg[order[1]] if order else None))
        if kb == 7: a.I("s_add_u32 s28, s28, 1", "s_cmp_lg_u32 s28, 8")
        a.I("s_waitcnt lgkmcnt(0)")
    a.I("s_cbranch_scc1 ATT_LOOP")
    a.I(mfma32(O[1], VB[1] + 4, P + 4), mfma16(Lr[1], SEL, P + 4))
    ts(a, 4)
    a.I(f"s_mov_b32 s16, {f32(2.0**100)}", "s_waitcnt vmcnt(0)")
    a.I(f"v_max_f32 v8, v{Lr[0]}, v{Lr[1]}")
    for b in range(2):
        for i in range(0, 16, 2): a.I(f"v_max3_f32 v8, v8, abs(v{O[b]+i}), abs(v{O[b]+i+1})")
    a.I(f"v_add_f32 v9, v{Lr[0]}, v{Lr[1]}")
    for b in range(2):
        for i in range(16): a.I(f"v_add_f32 v9, v9, v{O[b]+i}")
    a.I("v_cmp_nlt_f32 vcc, v8, s16", "v_cmp_u_f32 s[18:19], v9, v9", "s_or_b64 vcc, vcc, s[18:19]")
    if "force" in EXP: a.I("s_mov_b64 vcc, -1")
    a.I("s_cbranch_vccz ATT_FIN")
    for b in range(2):
        M = 10; AL = 11
        for i in range(16): a.I(f"v_mov_b32 v{O[b]+i}, 0")
        for i in range(4): a.I(f"v_mov_b32 v{Lr[b]+i}, 0")
        a.I(f"v_mov_b32 v{M}, {f32(-3.0e38)}", f"s_mov_b32 s29, 0")
        a.L(f"ATT_FB{b}")
        for ks in range(2):
            a.I(f"buffer_load_dwordx4 {vr(KB[0]+4*ks,4)}, v4, s[36:39], s29 offen offset:{ks*512}",
                f"buffer_load_dwordx4 {vr(VB[0]+4*ks,4)}, v3, s[36:39], s29 offen offset:{2048+ks*1024}")
        a.I("s_waitcnt vmcnt(0)")
        s0 = S[0]
        a.I(mfma32(s0, KB[0], QR[b], "0"), mfma32(s0, KB[0] + 4, QR[b] + 4))
        a.I(f"v_max3_f32 v8, v{s0}, v{s0+1}, v{M}")
        for i in range(2, 16, 2): a.I(f"v_max3_f32 v8, v8, v{s0+i}, v{s0+i+1}")
        a.I("v_mov_b32 v9, v8", "v_permlane32_swap_b32 v8, v9", "v_max_f32 v8, v8, v9",
            f"v_sub_f32 v{AL}, v{M}, v8", f"v_exp_f32 v{AL}, v{AL}", f"v_mov_b32 v{M}, v8")
        for i in range(16): a.I(f"v_sub_f32 v{s0+i}, v{s0+i}, v8")
        for i in range(16): a.I(f"v_exp_f32 v{s0+i}, v{s0+i}")
        for i in range(16): a.I(f"v_mul_f32 v{O[b]+i}, v{O[b]+i}, v{AL}")
        for i in range(4): a.I(f"v_mul_f32 v{Lr[b]+i}, v{Lr[b]+i}, v{AL}")
        for d in range(8): a.I(f"v_cvt_pk_bf16_f32 v{P+d}, v{s0+2*d}, v{s0+2*d+1}")
        a.I(mfma32(O[b], VB[0], P), mfma16(Lr[b], SEL, P), mfma32(O[b], VB[0] + 4, P + 4), mfma16(Lr[b], SEL, P + 4))
        a.I("s_add_u32 s29, s29, 4096", f"s_cmp_lg_u32 s29, {64*4096}", f"s_cbranch_scc1 ATT_FB{b}")
    a.L("ATT_FIN")
    a.I("v_bfe_u32 v2, v1, 4, 1", "v_lshlrev_b32 v5, 15, v2", "v_lshrrev_b32 v2, 5, v1", "v_lshl_add_u32 v5, v2, 8, v5",
        "v_and_b32 v2, 15, v1", "v_lshl_add_u32 v5, v2, 4, v5",
        "s_lshl_b32 s16, s21, 6", "s_add_u32 s16, s16, s22", "s_lshl_b32 s16, s16, 10", f"s_add_u32 s16, s16, {WS_O}")
    for b in range(2): a.I(f"v_rcp_f32 v{8+b}, v{Lr[b]}")
    for b in range(2):
        for i in range(16): a.I(f"v_mul_f32 v{O[b]+i}, v{O[b]+i}, v{8+b}")
        for d in range(8): a.I(f"v_cvt_pk_bf16_f32 v{S[b]+d}, v{O[b]+2*d}, v{O[b]+2*d+1}")
        for ks in range(2):
            a.I(f"buffer_store_dwordx4 {vr(S[b]+4*ks,4)}, v5, s[32:35], s16 offen offset:{b*1024+ks*512}{SC1}")

def down(a):
    R = 6; U = 6; SLOT = 16384; NST = 56; LB = 65536
    FA = [32, 64]; FW_ = [48, 80]; ACC = 128
    a.I(f"s_load_dwordx2 s[8:9], s[0:1], {KA_WD}",
        "s_and_b32 s21, s2, 1",
        "s_bfe_u32 s16, s2, 0x10001", "s_lshl_b32 s16, s16, 3", "s_bfe_u32 s17, s2, 0x30003", "s_add_u32 s22, s16, s17",
        "s_bfe_u32 s16, s2, 0x10002", "s_lshl_b32 s16, s16, 2", "s_bfe_u32 s17, s2, 0x20006", "s_add_u32 s23, s16, s17",
        "s_lshl_b32 s45, s20, 11", f"s_add_u32 s45, s45, {LB}", "s_add_u32 s46, s45, 8192",
        "v_lshrrev_b32 v2, 4, v1", "s_lshl_b32 s16, s20, 3", "v_add_u32 v4, s16, v2", "v_lshlrev_b32 v4, 11, v4",
        "v_bfe_u32 v5, v1, 1, 3", "v_xor_b32 v6, v2, v5", "v_xor_b32 v7, 4, v6",
        "v_and_b32 v2, 1, v1", "v_lshl_add_u32 v4, v2, 4, v4", "s_lshl_b32 s16, s23, 8", "v_add_u32 v4, s16, v4",
        f"v_add_u32 v5, {4*2048-1024}, v4",
        "v_lshl_add_u32 v4, v6, 5, v4", "v_lshl_add_u32 v5, v7, 5, v5",
        "s_mul_i32 s48, s21, %d" % (1792 * 2048), "s_waitcnt lgkmcnt(0)")
    srd(a, 24, 8, 3584 * 1024 * 2)
    def dma_w(st):
        return [f"s_add_u32 m0, s46, {(st % R) * SLOT}", "s_add_u32 s49, s48, 0",
                "buffer_load_dwordx4 v4, s[24:27], s49 offen lds", "s_add_u32 s48, s48, 65536",
                "buffer_load_dwordx4 v5, s[24:27], s49 offen offset:1024 lds"]
    def dma_a(st):
        return [f"s_add_u32 m0, s45, {(st % R) * SLOT}", "s_add_u32 s43, s44, 0",
                "buffer_load_dwordx4 v3, s[32:35], s43 offen lds", "s_add_u32 s44, s44, 1024",
                "buffer_load_dwordx4 v10, s[32:35], s43 offen offset:1024 lds"]
    def prologue(note):
        for j in range(R): a.extend(note(dma_w(j), j))
        a.I("s_lshl_b32 s16, s22, 3", "s_lshl_b32 s17, s20, 1", "s_add_u32 s16, s16, s17", "s_mul_i32 s16, s16, 112",
            "s_mul_i32 s17, s21, 56", "s_add_u32 s16, s16, s17", "s_lshl_b32 s44, s16, 10", f"s_add_u32 s44, s44, {WS_H}",
            f"v_add_u32 v10, {112*1024-1024}, v3",
            "s_and_b32 s40, s20, 1", "s_lshr_b32 s41, s20, 1",
            "s_lshl_b32 s16, s41, 12", f"s_add_u32 s16, s16, {LB}", "v_add_u32 v12, s16, v3",
            "v_lshrrev_b32 v2, 4, v1", "v_lshlrev_b32 v13, 10, v2", "v_bfe_u32 v9, v1, 2, 2", "v_lshl_add_u32 v13, v9, 8, v13",
            "v_bfe_u32 v8, v1, 2, 3", "s_lshl_b32 s16, s40, 2", "v_xor_b32 v8, s16, v8",
            "v_lshl_add_u32 v13, v8, 5, v13", "v_and_b32 v9, 3, v1", "v_lshl_add_u32 v13, v9, 3, v13", f"v_add_u32 v13, {LB+8192}, v13",
            "v_xor_b32 v14, 32, v13", "v_xor_b32 v15, 64, v13", "v_xor_b32 v16, 96, v13")
        for i in range(5): a.I(f"v_add_u32 v{22+i}, 0x10000, v{12+i}")
        for i in range(64): a.I(f"v_mov_b32 v{ACC+i}, 0")
        a.I("s_lshr_b32 s18, s22, 1", "s_lshl_b32 s18, s18, 5", "s_mul_i32 s16, s21, 14", "s_add_u32 s18, s18, s16",
            "s_lshl_b32 s18, s18, 2", f"s_add_u32 s18, s18, {WS_FL+FL_H}")
        poll(a, 18, 14)
        ts(a, 3)
        for j in range(R): a.extend(note(dma_a(j), j))
    def reads(st):
        buf = st & 1; sl = st % R; vb = 12 if sl < 4 else 22; so = (sl & 3) * SLOT
        o = []
        for u in range(4):
            for rd in range(2):
                o.append(f"ds_read_b64_tr_b16 {vr(FW_[buf]+u*4+2*rd,2)}, v{vb+1+u} offset:{so+rd*4096}")
        for t in range(4): o.append(f"ds_read_b128 {vr(FA[buf]+t*4,4)}, v{vb} offset:{so+t*1024}")
        return o
    def mm(buf):
        return [mfma16(ACC + (t * 4 + u) * 4, FW_[buf] + u * 4, FA[buf] + t * 4) for t in range(4) for u in range(4)]
    ring(a, "DN", NST, R, U, lambda st: dma_w(st) + dma_a(st), reads, mm, prologue=prologue)
    ts(a, 4)
    a.I("s_lshl_b32 s16, s22, 3", "s_lshl_b32 s17, s41, 2", "s_add_u32 s16, s16, s17", "s_lshl_b32 s16, s16, 5",
        "s_lshl_b32 s17, s23, 2", "s_add_u32 s16, s16, s17", "s_lshl_b32 s17, s40, 1", "s_add_u32 s16, s16, s17",
        "s_lshl_b32 s16, s16, 10", "s_lshl_b32 s17, s21, 22", "s_add_u32 s16, s16, s17", f"s_add_u32 s16, s16, {WS_P}")
    for t in range(4):
        for nb in range(2):
            g = ACC + (t * 4 + nb * 2) * 4; pk = 32 + (t * 2 + nb) * 4
            for d in range(4): a.I(f"v_cvt_pk_bf16_f32 v{pk+d}, v{g+2*d}, v{g+2*d+1}")
            a.I(f"buffer_store_dwordx4 {vr(pk,4)}, v3, s[32:35], s16 offen offset:{nb*1024}{SC1}")
        a.I("s_add_u32 s16, s16, 32768")
    for i in range(NBAR - (NST - 1)): a.I("s_barrier")

def wo(a):
    R = 6; SLOT = 24576; NST = 16
    FA = [32, 64]; FW = [48, 80]; ACC = 96; XR = 112; P0 = 120; P1 = 128
    a.I("s_mov_b32 s20, s54",
        "s_bfe_u32 s16, s2, 0x20001", "s_lshl_b32 s16, s16, 2", "s_bfe_u32 s17, s2, 0x20003", "s_add_u32 s22, s16, s17",
        "s_and_b32 s16, s2, 1", "s_lshl_b32 s16, s16, 3", "s_lshr_b32 s17, s2, 5", "s_add_u32 s23, s16, s17",
        "s_lshl_b32 s46, s20, 10", "s_add_u32 s46, s46, 16384",
        "v_lshrrev_b32 v2, 3, v1", "s_lshl_b32 s16, s20, 3", "v_add_u32 v4, s16, v2", "v_lshlrev_b32 v4, 11, v4",
        "v_lshrrev_b32 v2, 4, v1", "v_bfe_u32 v5, v1, 1, 2", "v_xor_b32 v2, v2, v5", "v_lshl_add_u32 v4, v2, 5, v4",
        "v_and_b32 v2, 1, v1", "v_lshl_add_u32 v4, v2, 4, v4", "s_lshl_b32 s16, s23, 7", "v_add_u32 v4, s16, v4",
        "s_mov_b32 s48, 0")
    def dma_w(st):
        return [f"s_add_u32 m0, s46, {(st % R) * SLOT}", "s_nop 0", "buffer_load_dwordx4 v4, s[24:27], s48 offen lds",
                f"s_add_u32 s48, s48, {64*2048}"]
    def dma_a(st):
        return [f"s_add_u32 m0, s45, {(st % R) * SLOT}", "s_nop 0",
                "buffer_load_dwordx4 v3, s[32:35], s44 offen lds", "buffer_load_dwordx4 v3, s[32:35], s44 offen offset:1024 lds",
                "s_add_u32 s44, s44, 2048"]
    def prologue(note):
        for j in range(R): a.extend(note(dma_w(j), j))
        xsel(a, 21)
        a.I("s_and_b32 s40, s20, 1", "s_lshr_b32 s41, s20, 1",
            "s_lshl_b32 s16, s22, 2", "s_add_u32 s16, s16, s41", "s_lshl_b32 s42, s16, 16",
            "s_lshl_b32 s17, s23, 1", "s_add_u32 s17, s17, s40", "s_lshl_b32 s18, s17, 6", "s_add_u32 s42, s42, s18",
            "s_lshl_b32 s16, s16, 6", "s_add_u32 s16, s16, s17", "s_lshl_b32 s43, s16, 10", f"s_add_u32 s43, s43, {WS_P}",
            "s_add_u32 s16, s42, 32768")
        a.extend(note([f"buffer_load_dwordx4 {vr(XR,4)}, v21, s[28:31], s42 offen", f"buffer_load_dwordx4 {vr(XR+4,4)}, v21, s[28:31], s16 offen"], None))
        a.I("s_lshl_b32 s16, s22, 3", "s_add_u32 s16, s16, s20", "s_lshl_b32 s44, s16, 15", f"s_add_u32 s44, s44, {WS_O}",
            "s_lshl_b32 s45, s20, 11",
            "s_lshl_b32 s16, s41, 12", "v_add_u32 v12, s16, v3",
            "v_lshrrev_b32 v2, 5, v1", "v_lshlrev_b32 v13, 11, v2", "v_bfe_u32 v8, v1, 2, 3", "v_lshl_add_u32 v13, v8, 7, v13",
            "v_lshrrev_b32 v8, 1, v8", "s_lshl_b32 s16, s40, 1", "v_xor_b32 v8, s16, v8", "v_lshl_add_u32 v13, v8, 5, v13",
            "v_and_b32 v8, 3, v1", "v_lshl_add_u32 v13, v8, 3, v13", "v_add_u32 v13, 16384, v13", "v_xor_b32 v14, 32, v13",
            "s_mov_b32 s19, 0xffff0000")
        for s_ in (1, 2):
            for i in range(3): a.I(f"v_add_u32 v{12+3*s_+i}, {2*SLOT*s_}, v{12+i}")
        for i in range(16): a.I(f"v_mov_b32 v{ACC+i}, 0")
        a.I("s_lshr_b32 s16, s22, 3", "s_lshl_b32 s16, s16, 1", "s_lshr_b32 s17, s23, 3", "s_lshl_b32 s17, s17, 2", "s_add_u32 s16, s16, s17",
            "s_and_b32 s17, s22, 7", "s_lshl_b32 s17, s17, 3", "s_add_u32 s16, s16, s17",
            "s_bfe_u32 s17, s23, 0x20001", "s_lshl_b32 s17, s17, 6", "s_add_u32 s16, s16, s17", "s_sub_u32 s16, s16, 16",
            "s_lshl_b32 s17, s22, 4", "v_mov_b32 v8, s16", "v_mov_b32 v9, s17", "v_cmp_gt_u32 vcc, 16, v1",
            "v_cndmask_b32 v9, v8, v9, vcc", "v_add_lshl_u32 v9, v9, v1, 2", f"s_mov_b32 s18, {WS_FL+FL_2}")
        if "wopoll1" in EXP:
            a.I("s_cmp_lg_u32 s20, 0", "s_cbranch_scc1 WO_NP")
            poll(a, 18, 18, voff=9)
            a.L("WO_NP")
            a.I("s_barrier")
        else:
            poll(a, 18, 18, voff=9)
        ts(a, 6)
        for j in range(R): a.extend(note(dma_a(j), j))
        a.I("s_add_u32 s16, s43, 32768", f"s_add_u32 s17, s43, {4<<20}", f"s_add_u32 s18, s16, {4<<20}")
        a.extend(note([f"buffer_load_dwordx4 {vr(P0,4)}, v3, s[32:35], s43 offen", f"buffer_load_dwordx4 {vr(P0+4,4)}, v3, s[32:35], s16 offen",
                       f"buffer_load_dwordx4 {vr(P1,4)}, v3, s[32:35], s17 offen", f"buffer_load_dwordx4 {vr(P1+4,4)}, v3, s[32:35], s18 offen"], None))
    def reads(st):
        buf = st & 1; sl = st % R; vb = 12 + 3 * (sl >> 1); so = (sl & 1) * SLOT
        o = []
        for kb in range(2):
            for u in range(2):
                for rd in range(2):
                    o.append(f"ds_read_b64_tr_b16 {vr(FW[buf]+(kb*2+u)*4+2*rd,2)}, v{vb+1+u} offset:{so+kb*4096+rd*1024}")
            for t in range(2):
                o.append(f"ds_read_b128 {vr(FA[buf]+(kb*2+t)*4,4)}, v{vb} offset:{so+t*2048+kb*1024}")
        return o
    def mm(buf):
        return [mfma16(ACC + (t * 2 + u) * 4, FW[buf] + (kb * 2 + u) * 4, FA[buf] + (kb * 2 + t) * 4)
                for kb in range(2) for t in range(2) for u in range(2)]
    ring(a, "WO", NST, R, 6, lambda st: dma_w(st) + dma_a(st), reads, mm, prologue=prologue)
    a.I("s_waitcnt vmcnt(0)")
    for t in range(2):
        a.I(f"v_permlane16_swap_b32 v{XR+4*t}, v{XR+4*t+2}", f"v_permlane16_swap_b32 v{XR+4*t+1}, v{XR+4*t+3}")
    for t in range(2):
        pk = 32 + 4 * t
        for d in range(4):
            g = ACC + t * 8 + 2 * d
            a.I(f"v_lshlrev_b32 v22, 16, v{XR+4*t+d}", f"v_and_b32 v23, s19, v{XR+4*t+d}",
                f"v_lshlrev_b32 v24, 16, v{P0+4*t+d}", f"v_and_b32 v25, s19, v{P0+4*t+d}",
                f"v_lshlrev_b32 v26, 16, v{P1+4*t+d}", f"v_and_b32 v27, s19, v{P1+4*t+d}",
                "v_add_f32 v24, v24, v26", "v_add_f32 v25, v25, v27",
                f"v_add_f32 v{g}, v{g}, v22", f"v_add_f32 v{g+1}, v{g+1}, v23",
                f"v_add_f32 v{g}, v{g}, v24", f"v_add_f32 v{g+1}, v{g+1}, v25",
                f"v_cvt_pk_bf16_f32 v{pk+d}, v{g}, v{g+1}")
        a.I(f"v_permlane16_swap_b32 v{pk}, v{pk+2}", f"v_permlane16_swap_b32 v{pk+1}, v{pk+3}",
            f"buffer_store_dwordx4 {vr(pk,4)}, v21, s[36:39], s42 offen", "s_add_u32 s42, s42, 32768")

def phase0(a):
    LW, LX, LR = 49152, 114688, 147456
    srd(a, 24, 4, 2048 * 2048)
    for i in range(4): a.I(f"buffer_load_dwordx4 {vr(8+4*i,4)}, v3, s[24:27], s19 offen offset:{i*1024}")
    a.I("v_mov_b32 v7, 0", "buffer_load_dword v6, v7, s[56:59], 0 offen sc1")
    a.I("s_and_b32 s22, s2, 1", "s_cmp_eq_u32 s22, 0", "s_cselect_b64 s[12:13], s[8:9], s[10:11]")
    srd(a, 28, 12, 65536)
    a.I("s_lshl_b32 s17, s20, 13", f"s_add_u32 m0, s17, {LW}", "s_add_u32 s18, s17, 4096")
    for i in range(4): a.I(f"buffer_load_dwordx4 v3, s[28:31], s17 offen offset:{i*1024} lds")
    a.I(f"s_add_u32 m0, s18, {LW}", "s_nop 0")
    for i in range(4): a.I(f"buffer_load_dwordx4 v3, s[28:31], s18 offen offset:{i*1024} lds")
    g1_setup(a, "E")
    a.I("v_lshrrev_b32 v2, 1, v1", "s_lshl_b32 s16, s23, 5", "s_add_u32 s16, s16, 32", "v_add_u32 v2, s16, v2",
        "v_mul_lo_u32 v112, v2, s40", "v_and_b32 v2, 1, v1", "v_lshl_add_u32 v112, v2, 7, v112", "v_add_u32 v112, s41, v112",
        "s_cmp_ge_u32 s20, 4", "s_cbranch_scc1 F_WB")
    a.I("buffer_load_dword v113, v112, s[28:31], s49 offen")
    a.extend(dma_wx(1, 47))
    a.I("s_branch F_W")
    a.L("F_WB")
    a.I("buffer_load_dword v113, v112, s[24:27], s48 offen")
    a.extend(dma_wx(0, 47))
    a.L("F_W")
    a.I("s_lshr_b32 s21, s2, 1", "s_and_b32 s22, s2, 1", "s_lshl_b32 s23, s21, 15", "s_lshl_b32 s17, s20, 13")
    a.I("s_mov_b32 s36, 0xffff0000", "s_waitcnt vmcnt(12)")
    ts(a, 9)
    for r in range(2):
        for d in range(8):
            src = 8 + 8 * r + d
            a.I(f"v_lshlrev_b32 v{32+16*r+2*d}, 16, v{src}", f"v_and_b32 v{33+16*r+2*d}, s36, v{src}")
    def tree(dst, base, sq):
        t = 64 + (dst - 24) * 8
        for i in range(8):
            if sq: a.I(f"v_mul_f32 v{t+i}, v{base+2*i}, v{base+2*i}", f"v_fmac_f32 v{t+i}, v{base+2*i+1}, v{base+2*i+1}")
            else: a.I(f"v_add_f32 v{t+i}, v{base+2*i}, v{base+2*i+1}")
        for s_ in (4, 2):
            for i in range(s_): a.I(f"v_add_f32 v{t+i}, v{t+i}, v{t+i+s_}")
        a.I(f"v_add_f32 v{dst}, v{t}, v{t+1}")
    def wavered(rs, ss):
        for mod in ("row_shr:1 row_mask:0xf bank_mask:0xf bound_ctrl:0", "row_shr:2 row_mask:0xf bank_mask:0xf bound_ctrl:0",
                    "row_shr:4 row_mask:0xf bank_mask:0xf bound_ctrl:0", "row_shr:8 row_mask:0xf bank_mask:0xf bound_ctrl:0",
                    "row_bcast:15 row_mask:0xa bank_mask:0xf", "row_bcast:31 row_mask:0xc bank_mask:0xf"):
            for r in rs: a.I(f"v_add_f32_dpp v{r}, v{r}, v{r} {mod}")
        for r, s_ in zip(rs, ss): a.I(f"v_readlane_b32 s{s_}, v{r}, 63")
    tree(24, 32, False); tree(25, 48, False)
    wavered((24, 25), (40, 41))
    a.I(f"s_mov_b32 s37, {f32(1.0/1024)}")
    a.I("v_mov_b32 v26, s40", "v_mov_b32 v27, s41", "v_mul_f32 v26, s37, v26", "v_mul_f32 v27, s37, v27")
    for r in range(2):
        for i in range(16): a.I(f"v_sub_f32 v{80+16*r+i}, v{32+16*r+i}, v{26+r}")
    tree(24, 80, True); tree(25, 96, True)
    wavered((24, 25), (42, 43))
    a.I("v_mov_b32 v28, s42", "v_mov_b32 v29, s43", "v_mul_f32 v28, s37, v28", "v_mul_f32 v29, s37, v29")
    def rnd(r): a.I(f"v_cvt_pk_bf16_f32 v{r}, v{r}, v{r}", f"v_lshlrev_b32 v{r}, 16, v{r}")
    a.I(f"s_mov_b32 s38, {f32(1e-5)}")
    for r in range(2):
        rnd(26 + r); rnd(28 + r)
        a.I(f"v_add_f32 v{28+r}, s38, v{28+r}"); rnd(28 + r)
        a.I(f"v_sqrt_f32 v{28+r}, v{28+r}"); rnd(28 + r)
        a.I(f"v_rcp_f32 v{28+r}, v{28+r}")
    for r in range(2):
        for d in range(8):
            b = 32 + 16 * r + 2 * d
            a.I(f"v_sub_f32 v{b}, v{b}, v{26+r}", f"v_sub_f32 v{b+1}, v{b+1}, v{26+r}",
                f"v_cvt_pk_bf16_f32 v{b}, v{b}, v{b+1}",
                f"v_and_b32 v{b+1}, s36, v{b}", f"v_lshlrev_b32 v{b}, 16, v{b}",
                f"v_mul_f32 v{b}, v{b}, v{28+r}", f"v_mul_f32 v{b+1}, v{b+1}, v{28+r}",
                f"v_cvt_pk_bf16_f32 v{8+8*r+d}, v{b}, v{b+1}")
    a.I("s_lshl_b32 s16, s20, 1", "v_and_b32 v2, 15, v1", "v_xor_b32 v2, s16, v2", "v_lshlrev_b32 v4, 8, v1", "v_lshl_add_u32 v4, v2, 4, v4",
        f"v_add_u32 v4, {LX}, v4", "v_xor_b32 v25, 16, v4")
    for r in range(2):
        for p in range(2): a.I(f"ds_write_b128 v{25 if r else 4}, {vr(8+8*r+4*p,4)} offset:{p*16384}")
    a.I("v_lshrrev_b32 v5, 4, v1", "v_lshlrev_b32 v2, 4, v5", "v_xor_b32 v26, v2, v3",
        "s_lshl_b32 s16, s20, 12", f"s_add_u32 s16, s16, {LX}", "v_add_u32 v30, s16, v26",
        "v_xor_b32 v27, 64, v30", "v_xor_b32 v28, 0x80, v30", "v_xor_b32 v29, 0xc0, v30",
        "v_lshlrev_b32 v31, 9, v5", "v_bfe_u32 v2, v1, 2, 2", "v_lshl_add_u32 v31, v2, 6, v31",
        "v_and_b32 v2, 3, v1", "v_lshl_add_u32 v31, v2, 3, v31", f"s_add_u32 s16, s17, {LW}", "v_add_u32 v31, s16, v31",
        "s_lshl_b32 s16, s22, 14", "s_lshl_b32 s18, s20, 11", "s_add_u32 s16, s16, s18",
        "s_add_u32 s39, s23, s16", f"s_add_u32 s16, s16, {LX}", "v_add_u32 v24, s16, v26",
        "s_and_b32 s16, s20, 1", "s_lshl_b32 s16, s16, 7", "v_xor_b32 v24, s16, v24", "v_xor_b32 v25, 64, v24",
        "s_waitcnt lgkmcnt(0)", "s_barrier")
    ts(a, 10)
    a.I("ds_read_b128 v[8:11], v24", "ds_read_b128 v[12:15], v25 offset:1024", "s_waitcnt vmcnt(3) lgkmcnt(0)")
    a.I(f"buffer_store_dwordx4 v[8:11], v3, s[32:35], s39 offen sc1", f"buffer_store_dwordx4 v[12:15], v3, s[32:35], s39 offen offset:1024 sc1",
        "v_readfirstlane_b32 s55, v6")
    for j in range(4):
        a.I(f"ds_read_b128 {vr(32+4*j,4)}, v{(30, 27, 28, 29)[j]} offset:{j*1024}")
        for d in range(2):
            for rd in range(2):
                a.I(f"ds_read_b64_tr_b16 {vr(64+8*j+4*d+2*rd,2)}, v31 offset:{j*2048+rd*256+d*32}")
    a.I("s_waitcnt lgkmcnt(0)")
    a.I("s_cmp_eq_u32 s22, 0", "s_cbranch_scc0 P0_V")
    for j in range(4):
        for d in range(2): a.I(mfma16(96 + 4 * d, 64 + 8 * j + 4 * d, 32 + 4 * j, "0" if j == 0 else None))
    a.I("s_branch P0_R")
    a.L("P0_V")
    for j in range(4):
        for d in range(2): a.I(mfma16(96 + 4 * d, 32 + 4 * j, 64 + 8 * j + 4 * d, "0" if j == 0 else None))
    a.L("P0_R")
    a.I("s_lshl_b32 s16, s20, 11", f"s_add_u32 s16, s16, {LR}", "v_add_u32 v4, s16, v3")
    for d in range(2): a.I(f"ds_write_b128 v4, {vr(96+4*d,4)} offset:{d*1024}")
    a.I("s_mov_b32 s17, 0x40000")
    a.L("P0_TAG")
    a.I("s_cmp_lg_u32 s55, 0", "s_cbranch_scc1 P0_TAGOK",
        "buffer_load_dword v6, v7, s[56:59], 0 offen sc1", "s_waitcnt vmcnt(0)", "v_readfirstlane_b32 s55, v6",
        "s_sub_u32 s17, s17, 1", "s_cmp_lg_u32 s17, 0", "s_cbranch_scc1 P0_TAG")
    a.L("P0_TAGOK")
    a.I("s_lshl_b32 s18, s2, 3", "s_add_u32 s18, s18, s20", "s_lshl_b32 s18, s18, 2", f"s_add_u32 s18, s18, {WS_FL+FL_X}",
        "s_waitcnt vmcnt(0)")
    set_flag(a, 18)
    a.I("s_waitcnt lgkmcnt(0)", "s_barrier")
    a.I("s_cmp_lg_u32 s20, 0", "s_cbranch_scc1 P0_END")
    a.I(f"v_add_u32 v4, {LR}, v3")
    for w in range(8):
        a.I(f"ds_read_b128 {vr(32+8*w,4)}, v4 offset:{w*2048}", f"ds_read_b128 {vr(36+8*w,4)}, v4 offset:{w*2048+1024}")
    a.I("s_waitcnt lgkmcnt(0)")
    for s_ in (4, 2, 1):
        for w in range(s_):
            for i in range(8): a.I(f"v_add_f32 v{32+8*w+i}, v{32+8*w+i}, v{32+8*(w+s_)+i}")
    for d in range(4): a.I(f"v_cvt_pk_bf16_f32 v{8+d}, v{32+2*d}, v{33+2*d}")
    a.I("s_lshr_b32 s16, s21, 1", "s_lshl_b32 s19, s16, 12", f"s_add_u32 s19, s19, {WS_KV}",
        "s_and_b32 s16, s21, 1", "s_lshl_b32 s16, s16, 10", "s_add_u32 s19, s19, s16",
        "s_cmp_eq_u32 s22, 0", "s_cbranch_scc0 P0_SV",
        "buffer_store_dwordx4 v[8:11], v3, s[32:35], s19 offen sc1", "s_branch P0_KF")
    a.L("P0_SV")
    a.I("v_and_b32 v2, 1, v5", "v_lshlrev_b32 v4, 9, v2", "v_and_b32 v2, 15, v1", "v_lshl_add_u32 v4, v2, 4, v4",
        "v_lshrrev_b32 v2, 1, v5", "v_lshl_add_u32 v4, v2, 3, v4",
        "buffer_store_dwordx2 v[8:9], v4, s[32:35], s19 offen offset:2048 sc1",
        "buffer_store_dwordx2 v[10:11], v4, s[32:35], s19 offen offset:2304 sc1")
    a.L("P0_KF")
    a.I("s_lshl_b32 s18, s2, 2", f"s_add_u32 s18, s18, {WS_FL+FL_KV}", "s_waitcnt vmcnt(0)")
    set_flag(a, 18)
    a.L("P0_END")

def fused():
    a = Asm()
    ts(a, 0)
    a.I("s_cmp_ge_u32 s2, 256", "s_cbranch_scc1 F_END",
        f"s_load_dwordx2 s[4:5], s[0:1], {KA_X}", f"s_load_dwordx4 s[8:11], s[0:1], {KA_WK}",
        f"s_load_dwordx4 s[12:15], s[0:1], {KA_DBG}", "s_memrealtime s[6:7]",
        "v_lshrrev_b32 v2, 6, v0", "v_and_b32 v1, 63, v0", "v_readfirstlane_b32 s20, v2", "v_lshlrev_b32 v3, 4, v1",
        "s_lshr_b32 s21, s2, 1", "s_lshl_b32 s23, s21, 15",
        "s_mov_b32 s54, s20", "s_lshl_b32 s16, s20, 12", "s_add_u32 s19, s23, s16", "s_waitcnt lgkmcnt(0)")
    srd(a, 32, 14, WS_SIZE); srd(a, 56, 12, 256)
    a.I("s_or_b32 s16, s2, s20", "s_cmp_lg_u32 s16, 0", "s_cbranch_scc1 F_NT",
        "s_or_b32 s16, s6, 1", "v_mov_b32 v2, s16", "v_mov_b32 v8, 0", "s_mov_b64 exec, 1",
        "buffer_store_dword v2, v8, s[56:59], 0 offen sc1", "s_mov_b64 exec, -1")
    a.L("F_NT")
    if "ctouch" in EXP:
        a.I("s_getpc_b64 s[60:61]", "v_lshlrev_b32 v114, 7, v0", "s_cmp_ge_u32 s20, 4", "s_cbranch_scc1 F_CT",
            "global_load_dword v115, v114, s[60:61]")
        a.L("F_CT")
    phase0(a)
    ts(a, 8)
    g1_setup(a, "")
    g1(a)
    a.I("s_and_b32 s20, s54, 3", "s_cmp_ge_u32 s54, 4", "s_cbranch_scc1 F_B")
    attention(a)
    a.I("s_branch F_J")
    a.L("F_B")
    down(a)
    a.L("F_J")
    a.I(f"s_load_dwordx2 s[8:9], s[0:1], {KA_WO}", f"s_load_dwordx2 s[10:11], s[0:1], {KA_X}", f"s_load_dwordx2 s[12:13], s[0:1], {KA_OUT}",
        "s_lshl_b32 s18, s2, 2", f"s_add_u32 s18, s18, {WS_FL+FL_2}")
    wg_publish(a, 18)
    ts(a, 5)
    a.I("s_waitcnt lgkmcnt(0)")
    srd(a, 24, 8, 1024 * 1024 * 2); srd(a, 28, 10, 2048 * 2048); srd(a, 36, 12, 2048 * 2048)
    wo(a)
    tl_dump(a, 13)
    a.L("F_END")
    a.I("s_endpgm")
    return a, dict(grid=256, block=512, lds=163840, vgpr=256)

if __name__ == "__main__":
    path = sys.argv[1] if len(sys.argv) > 1 else "cdna_kernels/" + NAME + ".s"
    opts = dict(o.split("=") for o in sys.argv[2:])
    OPT = opts; EXP = opts.get("exp", ""); TL = bool(int(opts.get("tl", 0))); G.TL = TL; H.EXP = EXP
    H.INV = "inv" in EXP.split("_")
    G.VERB = bool(int(opts.get("verb", 0)))
    G.build([(NAME if int(opts.get("single", 0)) else "fused8", fused())], path)
```

```python
import sys
from asmlib import *
import gen as G
from gen import (NAME, KA_X, KA_WQ, KA_WK, KA_WV, KA_WO, KA_WG, KA_WU, KA_WD, KA_OUT, KA_DBG, KA_WS,
                 WS_XN, WS_KV, WS_O, WS_H, WS_P, WS_SIZE, f32, vr, srd, mfma32, mfma16, QSCALE, mix2, front_pattern)
WS_FL = 0x0480000
FL_KV, FL_X, FL_H, FL_O, FL_P = 0, 4096, 12288, 20480, 24576
WS_TL = 0x3F10000
LKV = 65536
LQ = 131072
LC = 147456
HP = 224
TL = False; EXP = ""; OPT = {}
SC1 = " sc1"

def ts(a, i):
    if TL: a.I(f"s_mem{'' if 'cyc' in EXP else 'real'}time s[{62+2*i}:{63+2*i}]")
def tl_dump(a, n):
    if not TL: return
    a.I("s_waitcnt vmcnt(0) lgkmcnt(0)")
    ts(a, 7)
    a.I("s_waitcnt lgkmcnt(0)", "s_lshl_b32 s90, s2, 3", "s_add_u32 s90, s90, s54", "s_lshl_b32 s90, s90, 6",
        f"s_add_u32 s90, s90, {WS_TL}", "v_mov_b32 v1, 0", "s_mov_b64 exec, 1")
    for i in range(n):
        a.I(f"v_mov_b32 v2, s{62+2*i}", f"buffer_store_dword v2, v1, s[32:35], s90 offen offset:{4*i}")

_n = [0]
def lanes(n): return [f"s_mov_b32 exec_lo, {((1 << n) - 1) & 0xffffffff:#x}", f"s_mov_b32 exec_hi, {((1 << n) - 1) >> 32:#x}"] if n < 64 else []
def poll_load(soff, voff, dst, wide=False):
    return f"buffer_load_dword{'x4' if wide else ''} {vr(dst, 4 if wide else 1)}, v{voff}, s[32:35], s{soff} offen sc1"
def poll_test(dst, wide):
    if wide:
        return [f"v_xor_b32 v{dst+i}, s55, v{dst+i}" for i in range(4)] + \
               [f"v_or3_b32 v{dst}, v{dst}, v{dst+1}, v{dst+2}", f"v_or_b32 v{dst}, v{dst}, v{dst+3}", f"v_cmp_ne_u32 vcc, 0, v{dst}"]
    return [f"v_cmp_ne_u32 vcc, s55, v{dst}"]
def poll(soff, n, voff, dst=2, wide=False, preloaded=None):
    _n[0] += 1; lab = f"POLL{_n[0]}"
    o = lanes(n)
    if preloaded is not None:
        o += [f"s_waitcnt vmcnt({preloaded})"] + poll_test(dst, wide) + [f"s_cbranch_vccz {lab}_D"]
    o += ["s_mov_b32 s17, 0x40000", lab + ":", poll_load(soff, voff, dst, wide), "s_waitcnt vmcnt(0)"] + poll_test(dst, wide)
    o += [f"s_cbranch_vccz {lab}_D", "s_sleep 2", "s_sub_u32 s17, s17, 1", "s_cmp_lg_u32 s17, 0", f"s_cbranch_scc1 {lab}", lab + "_D:"]
    if n < 64: o += ["s_mov_b64 exec, -1"]
    return o
def set_flag(a, soff):
    a.I("v_mov_b32 v2, s55", "v_mov_b32 v8, 0", "s_mov_b64 exec, 1",
        f"buffer_store_dword v2, v8, s[32:35], s{soff} offen sc1", "s_mov_b64 exec, -1")
def wave_flag(a, reg, base):
    a.I(f"s_lshl_b32 s{reg}, s2, 3", f"s_add_u32 s{reg}, s{reg}, s54", f"s_lshl_b32 s{reg}, s{reg}, 2", f"s_add_u32 s{reg}, s{reg}, {WS_FL+base}")
def sync_setup(a, base, own, chk, one):
    a.I("s_lshl_b32 s16, s20, 8", f"s_add_u32 s16, s16, {base}", f"v_lshl_add_u32 v{own}, v1, 2, s16",
        "v_and_b32 v2, 3, v1", f"v_lshlrev_b32 v{chk}, 8, v2", f"v_lshl_add_u32 v{chk}, v1, 2, v{chk}", f"v_add_u32 v{chk}, {base}, v{chk}",
        f"v_mov_b32 v{one}, 1", "s_mov_b32 s53, 0")
def sync_block(a, own, chk, one, tmp):
    _n[0] += 1; lab = f"SY{_n[0]}"
    a.I(f"ds_add_u32 v{own}, v{one}", "s_add_u32 s53, s53, 1")
    a.L(lab)
    a.I(f"ds_read_b32 v{tmp}, v{chk}", "s_waitcnt lgkmcnt(0)", f"v_cmp_gt_u32 vcc, s53, v{tmp}", f"s_cbranch_vccnz {lab}")
def xsel(a, dst):
    a.I("v_and_b32 v2, 15, v1", f"v_lshlrev_b32 v{dst}, 11, v2", "v_bfe_u32 v2, v1, 4, 1", f"v_lshl_add_u32 v{dst}, v2, 5, v{dst}",
        "v_lshrrev_b32 v2, 5, v1", f"v_lshl_add_u32 v{dst}, v2, 4, v{dst}")
def is_vm(x): return x.startswith("buffer") or x.startswith("global")
def groups_of(dm):
    gs = []; cur = []
    for x in dm:
        cur.append(x)
        if is_vm(x): gs.append(cur); cur = []
    gs[-1] += cur
    return gs
def mixmem(rd, dm, dma_first=True):
    if not rd or not dm: return rd + dm
    gs = groups_of(dm)
    pre = [x for x in rd if x.startswith("v_")]; ds = [x for x in rd if x.startswith("ds_")]; post = [x for x in rd if x.startswith("s_")]
    o = list(pre); n = len(gs); per = len(ds) // n
    for g in range(n):
        part = ds[g * per:(g + 1) * per if g < n - 1 else len(ds)]
        o += (gs[g] + part) if dma_first else (part + gs[g])
    return o + post
class Log:
    def __init__(self): self.l = []
    def note(self, instrs, st): self.l += [st] * sum(map(is_vm, instrs)); return instrs
    def cnt(self, st):
        last = max([i for i, s_ in enumerate(self.l) if s_ is not None and s_ <= st], default=-1)
        return len(self.l) - 1 - last

WA0, WA1, WST = 116, 118, 120
def w_dma(slotreg):
    return [f"s_add_u32 m0, s{slotreg}, s46", "s_nop 0",
            f"global_load_lds_dwordx4 {vr(WA0,2)}, off", f"global_load_lds_dwordx4 {vr(WA1,2)}, off offset:1024",
            f"v_lshl_add_u64 {vr(WA0,2)}, {vr(WST,2)}, 0, {vr(WA0,2)}", f"v_lshl_add_u64 {vr(WA1,2)}, {vr(WST,2)}, 0, {vr(WA1,2)}"]

def phase0(a):
    LW, LX, LR = 49152, 114688, 147456
    srd(a, 24, 4, 2048 * 2048)
    for i in range(4): a.I(f"buffer_load_dwordx4 {vr(8+4*i,4)}, v3, s[24:27], s19 offen offset:{i*1024}")
    a.I("v_mov_b32 v7, 0", "buffer_load_dword v6, v7, s[56:59], 0 offen sc1")
    a.I("s_and_b32 s22, s2, 1", "s_cmp_eq_u32 s22, 0", "s_cselect_b64 s[12:13], s[8:9], s[10:11]")
    srd(a, 28, 12, 65536)
    a.I("s_lshl_b32 s17, s20, 13", f"s_add_u32 m0, s17, {LW}", "s_add_u32 s18, s17, 4096")
    for i in range(4): a.I(f"buffer_load_dwordx4 v3, s[28:31], s17 offen offset:{i*1024} lds")
    a.I(f"s_add_u32 m0, s18, {LW}", "s_nop 0")
    for i in range(4): a.I(f"buffer_load_dwordx4 v3, s[28:31], s18 offen offset:{i*1024} lds")
    a.I("s_and_b32 s16, s2, 7", "s_lshl_b32 s16, s16, 2", "s_bfe_u32 s21, s2, 0x20003", "s_add_u32 s21, s21, s16",
        "s_and_b32 s23, s20, 3", "s_cmp_lt_u32 s20, 4", "s_cselect_b64 s[12:13], s[42:43], s[40:41]", "s_cselect_b32 s18, 32, 0",
        "s_cselect_b32 s46, 8192, 0", "s_lshl_b32 s16, s23, 11", "s_add_u32 s46, s46, s16", "s_add_u32 s46, s46, 16384",
        "v_lshrrev_b32 v2, 4, v1", "s_lshl_b32 s16, s23, 3", "v_add_u32 v4, s16, v2",
        "s_and_b32 s16, s23, 1", "s_lshl_b32 s16, s16, 2", "v_add_u32 v2, s16, v2", "v_bfe_u32 v5, v1, 1, 3", "v_xor_b32 v2, v2, v5",
        "v_cmp_eq_u32 vcc, 7, v2", "v_mov_b32 v5, 7168", "v_mov_b32 v112, 2048", f"v_cndmask_b32 v{WST}, v5, v112, vcc",
        f"v_mul_lo_u32 v4, v4, v{WST}",
        "s_mul_i32 s16, s21, 224", "v_lshl_add_u32 v5, v2, 5, s16", "s_lshl_b32 s16, s21, 6", "s_add_u32 s16, s16, s18",
        "v_mov_b32 v112, s16", "v_cndmask_b32 v5, v5, v112, vcc", "v_add_u32 v4, v4, v5",
        "v_and_b32 v2, 1, v1", "v_lshl_add_u32 v4, v2, 4, v4",
        "v_mov_b32 v5, s12", "v_mov_b32 v112, s6", f"v_cndmask_b32 v{WA0}, v5, v112, vcc",
        "v_mov_b32 v5, s13", "v_mov_b32 v112, s7", f"v_cndmask_b32 v{WA0+1}, v5, v112, vcc",
        "v_mov_b32 v5, 0", f"v_lshl_add_u64 {vr(WA0,2)}, v[4:5], 0, {vr(WA0,2)}",
        f"v_lshlrev_b32 v4, 2, v{WST}", "v_add_u32 v4, -1024, v4" if False else "v_subrev_u32 v4, 1024, v4",
        f"v_lshl_add_u64 {vr(WA1,2)}, v[4:5], 0, {vr(WA0,2)}",
        f"v_lshlrev_b32 v{WST}, 5, v{WST}", f"v_mov_b32 v{WST+1}, 0", "s_mov_b32 s47, 0")
    a.extend(w_dma(47))
    srd(a, 24, 12, 1024 * 3584 * 2)
    a.I("v_lshrrev_b32 v2, 1, v1", "s_lshl_b32 s16, s23, 5", "s_add_u32 s16, s16, 32", "v_add_u32 v2, s16, v2",
        "v_mul_u32_u24 v112, 7168, v2", "v_and_b32 v2, 1, v1", "v_mul_u32_u24 v2, 208, v2", "v_add_u32 v112, v112, v2",
        "s_mul_i32 s16, s21, 224", "buffer_load_dword v113, v112, s[24:27], s16 offen")
    a.I("s_lshr_b32 s21, s2, 1", "s_lshl_b32 s23, s21, 15", "s_mov_b32 s36, 0xffff0000", "s_waitcnt vmcnt(12)")
    ts(a, 9)
    for r in range(2):
        for d in range(8):
            src = 8 + 8 * r + d
            a.I(f"v_lshlrev_b32 v{32+16*r+2*d}, 16, v{src}", f"v_and_b32 v{33+16*r+2*d}, s36, v{src}")
    def tree2(bases, sq):
        T_ = [(24 + i, bases[i], 64 + 8 * i) for i in range(2)]
        for dst, base, t in T_:
            for i in range(8):
                a.I(f"v_mul_f32 v{t+i}, v{base+2*i}, v{base+2*i}" if sq else f"v_add_f32 v{t+i}, v{base+2*i}, v{base+2*i+1}")
        if sq:
            for dst, base, t in T_:
                for i in range(8): a.I(f"v_fmac_f32 v{t+i}, v{base+2*i+1}, v{base+2*i+1}")
        for s_ in (4, 2):
            for dst, base, t in T_:
                for i in range(s_): a.I(f"v_add_f32 v{t+i}, v{t+i}, v{t+i+s_}")
        for dst, base, t in T_: a.I(f"v_add_f32 v{dst}, v{t}, v{t+1}")
    def wavered(rs, ss):
        for mod in ("row_shr:1 row_mask:0xf bank_mask:0xf bound_ctrl:0", "row_shr:2 row_mask:0xf bank_mask:0xf bound_ctrl:0",
                    "row_shr:4 row_mask:0xf bank_mask:0xf bound_ctrl:0", "row_shr:8 row_mask:0xf bank_mask:0xf bound_ctrl:0",
                    "row_bcast:15 row_mask:0xa bank_mask:0xf", "row_bcast:31 row_mask:0xc bank_mask:0xf"):
            for r in rs: a.I(f"v_add_f32_dpp v{r}, v{r}, v{r} {mod}")
        for r, s_ in zip(rs, ss): a.I(f"v_readlane_b32 s{s_}, v{r}, 63")
    tree2((32, 48), False)
    wavered((24, 25), (40, 41))
    a.I(f"s_mov_b32 s37, {f32(1.0/1024)}")
    a.I("v_mov_b32 v26, s40", "v_mov_b32 v27, s41", "v_mul_f32 v26, s37, v26", "v_mul_f32 v27, s37, v27")
    for r in range(2):
        for i in range(16): a.I(f"v_sub_f32 v{80+16*r+i}, v{32+16*r+i}, v{26+r}")
    tree2((80, 96), True)
    wavered((24, 25), (42, 43))
    a.I("v_mov_b32 v28, s42", "v_mov_b32 v29, s43", "v_mul_f32 v28, s37, v28", "v_mul_f32 v29, s37, v29")
    def rnd(*rs):
        for r in rs: a.I(f"v_cvt_pk_bf16_f32 v{r}, v{r}, v{r}")
        for r in rs: a.I(f"v_lshlrev_b32 v{r}, 16, v{r}")
    a.I(f"s_mov_b32 s38, {f32(1e-5)}")
    rnd(28, 29, 26, 27)
    a.I("v_add_f32 v28, s38, v28", "v_add_f32 v29, s38, v29"); rnd(28, 29)
    a.I("v_sqrt_f32 v28, v28", "v_sqrt_f32 v29, v29"); rnd(28, 29)
    a.I("v_rcp_f32 v28, v28", "v_rcp_f32 v29, v29")
    P_ = [(r, d, 32 + 16 * r + 2 * d) for r in range(2) for d in range(8)]
    for r, d, b in P_: a.I(f"v_sub_f32 v{b}, v{b}, v{26+r}", f"v_sub_f32 v{b+1}, v{b+1}, v{26+r}")
    for r, d, b in P_: a.I(f"v_cvt_pk_bf16_f32 v{80+8*r+d}, v{b}, v{b+1}")
    for r, d, b in P_: a.I(f"v_lshlrev_b32 v{b}, 16, v{80+8*r+d}", f"v_and_b32 v{b+1}, s36, v{80+8*r+d}")
    for r, d, b in P_: a.I(f"v_mul_f32 v{b}, v{b}, v{28+r}", f"v_mul_f32 v{b+1}, v{b+1}, v{28+r}")
    for r, d, b in P_: a.I(f"v_cvt_pk_bf16_f32 v{8+8*r+d}, v{b}, v{b+1}")
    a.I("s_lshl_b32 s16, s20, 1", "v_and_b32 v2, 15, v1", "v_xor_b32 v2, s16, v2", "v_lshlrev_b32 v4, 8, v1", "v_lshl_add_u32 v4, v2, 4, v4",
        f"v_add_u32 v4, {LX}, v4", "v_xor_b32 v25, 16, v4")
    for r in range(2):
        for p in range(2): a.I(f"ds_write_b128 v{25 if r else 4}, {vr(8+8*r+4*p,4)} offset:{p*16384}")
    a.I("v_lshrrev_b32 v5, 4, v1", "v_lshlrev_b32 v2, 4, v5", "v_xor_b32 v26, v2, v3",
        "s_lshl_b32 s16, s20, 12", f"s_add_u32 s16, s16, {LX}", "v_add_u32 v30, s16, v26",
        "v_xor_b32 v27, 64, v30", "v_xor_b32 v28, 0x80, v30", "v_xor_b32 v29, 0xc0, v30",
        "v_lshlrev_b32 v31, 9, v5", "v_bfe_u32 v2, v1, 2, 2", "v_lshl_add_u32 v31, v2, 6, v31",
        "v_and_b32 v2, 3, v1", "v_lshl_add_u32 v31, v2, 3, v31", f"s_add_u32 s16, s17, {LW}", "v_add_u32 v31, s16, v31",
        "s_lshl_b32 s16, s22, 14", "s_lshl_b32 s18, s20, 11", "s_add_u32 s16, s16, s18",
        "s_add_u32 s39, s23, s16", f"s_add_u32 s16, s16, {LX}", "v_add_u32 v24, s16, v26",
        "s_and_b32 s16, s20, 1", "s_lshl_b32 s16, s16, 7", "v_xor_b32 v24, s16, v24", "v_xor_b32 v25, 64, v24",
        "s_waitcnt lgkmcnt(0)", "s_barrier")
    ts(a, 10)
    a.I("ds_read_b128 v[8:11], v24", "ds_read_b128 v[12:15], v25 offset:1024", "s_waitcnt vmcnt(3) lgkmcnt(0)")
    a.I("buffer_store_dwordx4 v[8:11], v3, s[32:35], s39 offen sc1", "buffer_store_dwordx4 v[12:15], v3, s[32:35], s39 offen offset:1024 sc1",
        "v_readfirstlane_b32 s55, v6")
    for j in range(4):
        a.I(f"ds_read_b128 {vr(32+4*j,4)}, v{(30, 27, 28, 29)[j]} offset:{j*1024}")
        for d in range(2):
            for rd in range(2):
                a.I(f"ds_read_b64_tr_b16 {vr(64+8*j+4*d+2*rd,2)}, v31 offset:{j*2048+rd*256+d*32}")
    a.I("s_waitcnt lgkmcnt(0)", "s_cmp_eq_u32 s22, 0", "s_cbranch_scc0 P0_V")
    for j in range(4):
        for d in range(2): a.I(mfma16(96 + 4 * d, 64 + 8 * j + 4 * d, 32 + 4 * j, "0" if j == 0 else None))
    a.I("s_branch P0_R")
    a.L("P0_V")
    for j in range(4):
        for d in range(2): a.I(mfma16(96 + 4 * d, 32 + 4 * j, 64 + 8 * j + 4 * d, "0" if j == 0 else None))
    a.L("P0_R")
    a.I("s_lshl_b32 s16, s20, 11", f"s_add_u32 s16, s16, {LR}", "v_add_u32 v4, s16, v3")
    wave_flag(a, 18, FL_X)
    for d in range(2): a.I(f"ds_write_b128 v4, {vr(96+4*d,4)} offset:{d*1024}")
    a.I("s_mov_b32 s17, 0x40000")
    a.L("P0_TAG")
    a.I("s_cmp_lg_u32 s55, 0", "s_cbranch_scc1 P0_TAGOK",
        "buffer_load_dword v6, v7, s[56:59], 0 offen sc1", "s_waitcnt vmcnt(0)", "v_readfirstlane_b32 s55, v6",
        "s_sub_u32 s17, s17, 1", "s_cmp_lg_u32 s17, 0", "s_cbranch_scc1 P0_TAG")
    a.L("P0_TAGOK")
    a.I("s_waitcnt vmcnt(0)")
    set_flag(a, 18)
    a.I("s_waitcnt lgkmcnt(0)", "s_barrier")
    a.I("s_cmp_lg_u32 s20, 0", "s_cbranch_scc1 P0_END")
    a.I(f"v_add_u32 v4, {LR}, v3")
    for w in range(8):
        a.I(f"ds_read_b128 {vr(32+8*w,4)}, v4 offset:{w*2048}", f"ds_read_b128 {vr(36+8*w,4)}, v4 offset:{w*2048+1024}")
    a.I("s_waitcnt lgkmcnt(0)")
    for s_ in (4, 2, 1):
        for w in range(s_):
            for i in range(8): a.I(f"v_add_f32 v{32+8*w+i}, v{32+8*w+i}, v{32+8*(w+s_)+i}")
    for d in range(4): a.I(f"v_cvt_pk_bf16_f32 v{8+d}, v{32+2*d}, v{33+2*d}")
    a.I("s_lshr_b32 s16, s21, 1", "s_lshl_b32 s19, s16, 12", f"s_add_u32 s19, s19, {WS_KV}",
        "s_and_b32 s16, s21, 1", "s_lshl_b32 s16, s16, 10", "s_add_u32 s19, s19, s16",
        "s_cmp_eq_u32 s22, 0", "s_cbranch_scc0 P0_SV",
        "buffer_store_dwordx4 v[8:11], v3, s[32:35], s19 offen sc1", "s_branch P0_KF")
    a.L("P0_SV")
    a.I("v_and_b32 v2, 1, v5", "v_lshlrev_b32 v4, 9, v2", "v_and_b32 v2, 15, v1", "v_lshl_add_u32 v4, v2, 4, v4",
        "v_lshrrev_b32 v2, 1, v5", "v_lshl_add_u32 v4, v2, 3, v4",
        "buffer_store_dwordx2 v[8:9], v4, s[32:35], s19 offen offset:2048 sc1",
        "buffer_store_dwordx2 v[10:11], v4, s[32:35], s19 offen offset:2304 sc1")
    a.L("P0_KF")
    a.I("s_lshl_b32 s18, s2, 2", f"s_add_u32 s18, s18, {WS_FL+FL_KV}", "s_waitcnt vmcnt(0)")
    set_flag(a, 18)
    a.L("P0_END")

def kv_groups():
    gs = []
    for g in range(2):
        for i in range(4):
            o = [f"s_add_u32 m0, s25, {g*4096}", f"s_add_u32 s26, s24, {g*4096}"] if i == 0 else []
            gs.append(o + [f"buffer_load_dwordx4 v3, s[36:39], s26 offen offset:{i*1024} lds"])
    gs[-1] += ["s_add_u32 s24, s24, 32768", "s_xor_b32 s25, s25, 32768"]
    return gs

def g1(a):
    NST = 32; R = 5; SLOT = 32768
    ACC = 128; FA = 64; FW = 96
    def acc(h, u, t): return ACC + (t * 4 + h * 2 + u) * 4
    a.I("s_and_b32 s16, s2, 7", "s_lshl_b32 s16, s16, 2", "s_bfe_u32 s21, s2, 0x20003", "s_add_u32 s21, s21, s16",
        "s_lshr_b32 s22, s2, 5", "s_and_b32 s23, s20, 3", "v_add_u32 v10, 31744, v3",
        "s_lshl_b32 s16, s22, 4", "s_lshl_b32 s17, s20, 1", "s_add_u32 s16, s16, s17", "s_lshl_b32 s44, s16, 15",
        "s_lshl_b32 s45, s20, 11", "s_mov_b32 s47, 0", "s_mov_b32 s50, 0", f"s_mov_b32 s52, {SLOT}",
        "s_lshl_b32 s18, s22, 3", "s_add_u32 s18, s18, s20", "s_lshl_b32 s18, s18, 7", f"s_add_u32 s18, s18, {WS_FL+FL_X}",
        "v_lshlrev_b32 v8, 2, v1")
    a.extend(poll(18, 32, 8))
    ts(a, 11)
    def adv(reg): return [f"s_add_u32 s{reg}, s{reg}, {SLOT}", f"s_cmp_eq_u32 s{reg}, {SLOT*R}", f"s_cselect_b32 s{reg}, 0, s{reg}"]
    def dma_act():
        return ["s_add_u32 m0, s47, s45", "s_nop 0", "buffer_load_dwordx4 v3, s[32:35], s44 offen lds",
                "buffer_load_dwordx4 v10, s[32:35], s44 offen offset:1024 lds", "s_add_u32 s44, s44, 1024"] + adv(47)
    def dma_w(): return w_dma(52) + adv(52)
    def rdaddr():
        return ["s_lshr_b32 s17, s20, 2", "s_lshl_b32 s16, s17, 13", "v_add_u32 v6, s16, v3",
                "s_and_b32 s19, s21, 1", "s_lshl_b32 s16, s23, 1", "s_add_u32 s40, s16, s19", "s_add_u32 s41, s40, 1",
                "s_mul_i32 s16, s19, 6", "s_sub_u32 s16, 6, s16", "s_cmp_eq_u32 s23, 3", "s_cselect_b32 s40, s16, s40", "s_cselect_b32 s41, 7, s41",
                "v_lshrrev_b32 v2, 4, v1", "v_lshlrev_b32 v7, 11, v2", "v_and_b32 v2, 1, v2", "v_lshlrev_b32 v12, 2, v2",
                "v_bfe_u32 v2, v1, 2, 2", "v_lshl_add_u32 v7, v2, 8, v7", "v_add_u32 v12, v12, v2",
                "v_and_b32 v2, 3, v1", "v_lshl_add_u32 v7, v2, 3, v7", "v_add_u32 v7, 16384, v7",
                "v_xor_b32 v2, s41, v12", "v_lshl_add_u32 v11, v2, 5, v7", "v_xor_b32 v2, s40, v12", "v_lshl_add_u32 v7, v2, 5, v7"]
    def reads():
        o = ["v_add_u32 v8, s50, v6", "v_add_u32 v9, s50, v7", "v_add_u32 v13, s50, v11"]
        for h in range(2):
            for u in range(2):
                for rd in range(2):
                    o.append(f"ds_read_b64_tr_b16 {vr(FW+(h*2+u)*4+2*rd,2)}, v{9 if u == 0 else 13} offset:{h*8192+rd*1024}")
        for t in range(8): o.append(f"ds_read_b128 {vr(FA+t*4,4)}, v8 offset:{t*1024}")
        return o + adv(50)
    def mm(first):
        return [mfma16(acc(h, u, t), FW + (h * 2 + u) * 4, FA + t * 4, "0" if first else None) for t in range(8) for h in range(2) for u in range(2)]
    a.I("s_cmp_ge_u32 s20, 4", "s_cbranch_scc1 G1_B")
    L = Log()
    for j in range(R):
        if 0 < j < R - 1: a.extend(L.note(dma_w(), j))
        a.extend(L.note(dma_act(), j))
    a.extend(rdaddr())
    a.I(f"s_waitcnt vmcnt({L.cnt(0)})", "s_barrier")
    a.extend(reads())
    a.I(f"s_waitcnt vmcnt({L.cnt(1)}) lgkmcnt(0)", "s_barrier")
    ts(a, 12)
    kv = kv_groups()
    def bodyA(k, first=False):
        o = mm(first)
        dm = L.note([f"s_mov_b32 s18, {WS_FL+FL_KV}", poll_load(18, 3, 28, True)], None) if k == 27 else []
        dm += (L.note(dma_w(), k - 1 + R) if k - 1 + R < NST else []) + (L.note(dma_act(), k + R) if k + R < NST else [])
        if k == 28:
            o += poll(18, 64, 3, 28, True, preloaded=2)
            o += ["s_lshl_b32 s24, s20, 13", f"s_add_u32 s25, s24, {LKV}",
                  f"s_add_u32 s36, s32, {WS_KV}", "s_addc_u32 s37, s33, 0", "s_mov_b32 s38, 0x40000", "s_mov_b32 s39, 0x20000"]
            dm = L.note([x for g in kv for x in g], None)
        if k == 29: dm = L.note([x for g in kv for x in g], None)
        o += mixmem(reads() if k + 1 < NST else [], dm)
        if k + 1 < NST: o += [f"s_waitcnt vmcnt({L.cnt(k + 2)}) lgkmcnt(0)", "s_barrier"]
        return o
    a.extend(bodyA(0, True))
    a.I(f"s_mov_b32 s51, {NST-R-1}")
    a.L("G1_A_LOOP")
    body = bodyA(1)
    for k in range(2, NST - R): assert bodyA(k) == body
    a.extend(body)
    a.I("s_sub_u32 s51, s51, 1", "s_cmp_lg_u32 s51, 0", "s_cbranch_scc1 G1_A_LOOP")
    for k in range(NST - R, NST): a.extend(bodyA(k))
    a.I("s_branch G1_EPI")
    a.L("G1_B")
    M = Log()
    for j in range(R - 1):
        if j: a.extend(M.note(dma_w(), j))
        a.extend(M.note(dma_act(), j))
    a.extend(rdaddr())
    a.I(f"s_waitcnt vmcnt({M.cnt(0)})", "s_barrier", f"s_waitcnt vmcnt({M.cnt(1)})", "s_barrier")
    def bodyB(k, first=False):
        dm = M.note(dma_w() + dma_act(), k - 1 + R) if k - 1 + R < NST else []
        o = mixmem(reads(), dm) + ["s_waitcnt lgkmcnt(0)"] + mm(first)
        if k + 1 < NST: o += [f"s_waitcnt vmcnt({M.cnt(k + 2)})", "s_barrier"]
        return o
    a.extend(bodyB(0, True))
    a.I(f"s_mov_b32 s51, {NST-R}")
    a.L("G1_B_LOOP")
    body = bodyB(1)
    for k in range(2, NST - R + 1): assert bodyB(k) == body
    a.extend(body)
    a.I("s_sub_u32 s51, s51, 1", "s_cmp_lg_u32 s51, 0", "s_cbranch_scc1 G1_B_LOOP")
    for k in range(NST - R + 1, NST): a.extend(bodyB(k))
    a.L("G1_EPI")
    ts(a, 1)
    a.I("s_lshl_b32 s16, s20, 8", f"s_add_u32 s16, s16, {LC}", "v_lshl_add_u32 v13, v1, 2, s16", "v_mov_b32 v12, 0", "ds_write_b32 v13, v12")
    wave_flag(a, 60, FL_H)
    a.I("s_lshl_b32 s16, s22, 4", "s_lshr_b32 s17, s20, 2", "s_lshl_b32 s17, s17, 3", "s_add_u32 s16, s16, s17", "s_mul_i32 s16, s16, 112",
        "s_mul_i32 s17, s21, 7", "s_add_u32 s17, s17, s40", "s_lshr_b32 s17, s17, 1", "s_add_u32 s16, s16, s17",
        "s_lshl_b32 s16, s16, 10", f"s_add_u32 s61, s16, {WS_H}", "s_cmp_eq_u32 s23, 3", "s_cbranch_scc1 G1_EPQ")
    for t in reversed(range(8)):
        g, u = acc(0, 0, t), acc(1, 0, t)
        for i in range(8): a.I(f"v_max_f32 v{g+i}, 0, v{g+i}")
        for i in range(8): a.I(f"v_mul_f32 v{g+i}, v{g+i}, v{u+i}")
        for d in range(4): a.I(f"v_cvt_pk_bf16_f32 v{HP+4*t+d}, v{g+2*d}, v{g+2*d+1}")
    a.I("s_branch G1_X")
    a.L("G1_EPQ")
    a.I(f"s_mov_b32 s18, {f32(QSCALE)}", "s_lshr_b32 s16, s20, 2", "s_lshl_b32 s16, s16, 13", f"s_add_u32 s16, s16, {LQ}",
        "v_add_u32 v9, s16, v3", "s_lshl_b32 s16, s19, 3", "s_add_u32 s61, s61, s16")
    for t in range(8):
        q0, q1 = acc(0, 1, t), acc(1, 1, t)
        for i in range(4): a.I(f"v_mul_f32 v{q0+i}, s18, v{q0+i}", f"v_mul_f32 v{q1+i}, s18, v{q1+i}")
        a.I(f"v_cvt_pk_bf16_f32 v{FA+4*t}, v{q0}, v{q0+1}", f"v_cvt_pk_bf16_f32 v{FA+4*t+1}, v{q0+2}, v{q0+3}",
            f"v_cvt_pk_bf16_f32 v{FA+4*t+2}, v{q1}, v{q1+1}", f"v_cvt_pk_bf16_f32 v{FA+4*t+3}, v{q1+2}, v{q1+3}",
            f"ds_write_b128 v9, {vr(FA+4*t,4)} offset:{t*1024}")
    for t in reversed(range(8)):
        g, u = acc(0, 0, t), acc(1, 0, t)
        for i in range(4): a.I(f"v_max_f32 v{g+i}, 0, v{g+i}")
        for i in range(4): a.I(f"v_mul_f32 v{g+i}, v{g+i}, v{u+i}")
        for d in range(2): a.I(f"v_cvt_pk_bf16_f32 v{HP+4*t+d}, v{g+2*d}, v{g+2*d+1}")
    a.L("G1_X")
    a.I("s_cmp_ge_u32 s20, 4", "s_cbranch_scc1 G1_X2", "s_lshl_b32 s16, s20, 11", "v_add_u32 v9, s16, v3")
    for t in range(8): a.I(f"ds_write_b128 v9, {vr(HP+4*t,4)} offset:{(t>>1)*8192+(t&1)*1024}")
    a.L("G1_X2")
    a.I("s_waitcnt lgkmcnt(0)", "s_barrier")
    ts(a, 2)

def h_stores(a):
    _n[0] += 1; lab = f"HS{_n[0]}"
    a.I(f"s_sub_u32 s16, s61, {8*112*1024}", "s_cmp_eq_u32 s20, 3", f"s_cbranch_scc1 {lab}")
    for w, n in ((4, lab + "_D"), (2, None)):
        for t in range(8): a.I(f"buffer_store_dwordx{w} {vr(HP+4*t,w)}, v3, s[32:35], s61 offen{SC1}", f"s_add_u32 s61, s61, {112*1024}")
        a.I("s_waitcnt lgkmcnt(0)")
        for t in range(8): a.I(f"buffer_store_dwordx{w} {vr(192+4*t,w)}, v3, s[32:35], s16 offen{SC1}", f"s_add_u32 s16, s16, {112*1024}")
        if n: a.I(f"s_branch {n}"); a.L(lab)
    a.L(lab + "_D")

def attention(a):
    QR = [16, 24]; KB = [32, 48]; VB = [40, 56]; P = 64; SEL = 72; Lr = [76, 80]; S = [96, 112]; O = [128, 144]; C = [160, 176]
    a.I(f"s_add_u32 s36, s32, {WS_KV}", "s_addc_u32 s37, s33, 0", "s_mov_b32 s38, 0x40000", "s_mov_b32 s39, 0x20000")
    a.I("v_bfe_u32 v2, v1, 4, 1", "v_lshlrev_b32 v4, 10, v2", "v_lshrrev_b32 v2, 5, v1", "v_lshl_add_u32 v4, v2, 8, v4",
        "v_and_b32 v2, 15, v1", "v_lshl_add_u32 v4, v2, 4, v4",
        "s_lshl_b32 s16, s20, 12", f"s_add_u32 s16, s16, {LQ}", "v_add_u32 v5, s16, v4")
    for b in range(2):
        for ks in range(2): a.I(f"ds_read_b128 {vr(QR[b]+4*ks,4)}, v5 offset:{b*2048+ks*512}")
    a.I(f"v_add_u32 v6, {LKV}, v4", f"v_add_u32 v7, {LKV+2048}, v3")
    sync_setup(a, LC, 13, 14, 12)
    a.I("s_waitcnt vmcnt(8)")
    sync_block(a, 13, 14, 12, 15)
    def rdK(buf, off): return [f"ds_read_b128 {vr(KB[buf]+4*ks,4)}, v6 offset:{off+ks*512}" for ks in range(2)]
    def rdV(buf, off): return [f"ds_read_b128 {vr(VB[buf]+4*ks,4)}, v7 offset:{off+ks*1024}" for ks in range(2)]
    a.extend(rdK(0, 0) + rdV(0, 0))
    a.I("v_lshrrev_b32 v2, 2, v1", "v_lshrrev_b32 v5, 4, v1", "v_xor_b32 v2, v2, v5", "v_and_b32 v2, 1, v2",
        "v_cmp_eq_u32 vcc, 0, v2", "v_mov_b32 v5, 0x3f803f80", "s_mov_b32 s28, 0",
        f"v_cndmask_b32 v{SEL}, 0, v5, vcc")
    for i in range(1, 4): a.I(f"v_mov_b32 v{SEL+i}, v{SEL}")
    a.I("s_waitcnt lgkmcnt(0)")
    ts(a, 3)
    for b in range(2):
        a.I(mfma32(S[b], KB[0], QR[b], "0"), mfma32(S[b], KB[0] + 4, QR[b] + 4))
    for b in range(2):
        for i in range(16): a.I(f"v_mov_b32 v{O[b]+i}, 0")
        for i in range(4): a.I(f"v_mov_b32 v{Lr[b]+i}, 0")
    for i in range(4): a.I(f"v_mov_b32 v{P+4+i}, 0", f"v_mov_b32 v{VB[1]+4+i}, 0")
    for b in range(2):
        s0 = S[b]; m = 8 + 2 * b
        a.I(f"v_max3_f32 v{m}, v{s0}, v{s0+1}, v{s0+2}")
        for i in range(3, 15, 2): a.I(f"v_max3_f32 v{m}, v{m}, v{s0+i}, v{s0+i+1}")
        a.I(f"v_max_f32 v{m}, v{m}, v{s0+15}", f"v_mov_b32 v{m+1}, v{m}")
    for b in range(2):
        m = 8 + 2 * b
        a.I(f"v_permlane32_swap_b32 v{m}, v{m+1}", f"v_max_f32 v{m}, v{m}, v{m+1}", f"v_sub_f32 v{C[b]}, 0, v{m}")
        for i in range(1, 16): a.I(f"v_mov_b32 v{C[b]+i}, v{C[b]}")
    a.I(mfma32(S[0], KB[0], QR[0], C[0]), mfma32(S[0], KB[0] + 4, QR[0] + 4))
    def tile(b, kbuf_next, vbuf, vprev, extra, dg):
        nb = 1 - b; s0 = S[b]
        ex = [f"v_exp_f32 v{s0+i}, v{s0+i}" for i in range(16)]
        cv = [f"v_cvt_pk_bf16_f32 v{P+d}, v{s0+2*d}, v{s0+2*d+1}" for d in range(8)]
        e = list(extra) + [None] * 4
        o = [mfma32(S[nb], KB[kbuf_next], QR[nb], C[nb]), e[0]] + ex[0:3]
        o += [mfma32(O[nb], VB[vprev] + 4, P + 4), e[1]] + ex[3:6]
        o += [mfma16(Lr[nb], SEL, P + 4)] + ex[6:8]
        o += [mfma32(S[nb], KB[kbuf_next] + 4, QR[nb] + 4), e[2], cv[0], cv[1], ex[8], cv[2], cv[3], ex[9], ex[10]]
        o += [mfma32(O[b], VB[vbuf], P), e[3]] + ex[11:14]
        o += [mfma16(Lr[b], SEL, P)] + (dg or []) + [ex[14], ex[15]] + cv[4:8]
        return [x for x in o if x]
    a.I("s_nop 11")
    a.L("ATT_LOOP")
    dg = kv_groups()
    def slot(j):
        return ["s_cmp_eq_u32 s28, 0", f"s_cbranch_scc1 ATT_HB{j}"] + dg[j + 2] + [f"ATT_HB{j}:"]
    for kb in range(8):
        cur = kb & 1; nxt = 1 - cur
        if kb == 7:
            a.I("s_waitcnt vmcnt(0)")
            sync_block(a, 13, 14, 12, 15)
            a.I("v_xor_b32 v6, 0x8000, v6", "v_xor_b32 v7, 0x8000, v7")
        off = ((kb + 1) & 7) * 4096
        g0, g1 = (dg[0], dg[1]) if kb == 7 else (slot(2 * kb), slot(2 * kb + 1)) if kb < 3 else (None, None)
        a.extend(tile(0, cur, cur, nxt, rdK(nxt, off) + rdV(nxt, off), g0))
        a.I("s_waitcnt lgkmcnt(2)")
        a.extend(tile(1, nxt, cur, cur, [], g1))
        if kb == 7: a.I("s_add_u32 s28, s28, 1", f"s_cmp_lg_u32 s28, {1 if 'noatt' in EXP else 8}")
        a.I("s_waitcnt lgkmcnt(0)")
    a.I("s_cbranch_scc1 ATT_LOOP")
    a.I(mfma32(O[1], VB[1] + 4, P + 4), mfma16(Lr[1], SEL, P + 4))
    ts(a, 4)
    a.I("s_setprio 2", f"s_mov_b32 s16, {f32(2.0**100)}")
    for b in range(2):
        a.I(f"v_max3_f32 v{8+b}, abs(v{O[b]}), abs(v{O[b]+1}), v{Lr[b]}", f"v_add_f32 v{10+b}, v{O[b]}, v{O[b]+1}")
    for i in range(2, 16, 2):
        for b in range(2):
            a.I(f"v_max3_f32 v{8+b}, v{8+b}, abs(v{O[b]+i}), abs(v{O[b]+i+1})", f"v_add3_u32 v2, v2, v2, v2" if False else f"v_add_f32 v{10+b}, v{10+b}, v{O[b]+i}",
                f"v_add_f32 v{86+b}, v{O[b]+i+1}, v{Lr[b]}" if i == 2 else f"v_add_f32 v{86+b}, v{86+b}, v{O[b]+i+1}")
    a.I("v_max_f32 v8, v8, v9", "v_add_f32 v10, v10, v11", "v_add_f32 v86, v86, v87", "v_add_f32 v9, v10, v86")
    a.I("v_cmp_nlt_f32 vcc, v8, s16", "v_cmp_u_f32 s[18:19], v9, v9", "s_or_b64 vcc, vcc, s[18:19]")
    if "force" in EXP: a.I("s_mov_b64 vcc, -1")
    a.I("s_cbranch_vccz ATT_FIN")
    for b in range(2):
        M = 10; AL = 11
        for i in range(16): a.I(f"v_mov_b32 v{O[b]+i}, 0")
        for i in range(4): a.I(f"v_mov_b32 v{Lr[b]+i}, 0")
        a.I(f"v_mov_b32 v{M}, {f32(-3.0e38)}", f"s_mov_b32 s29, 0")
        a.L(f"ATT_FB{b}")
        for ks in range(2):
            a.I(f"buffer_load_dwordx4 {vr(KB[0]+4*ks,4)}, v4, s[36:39], s29 offen offset:{ks*512}",
                f"buffer_load_dwordx4 {vr(VB[0]+4*ks,4)}, v3, s[36:39], s29 offen offset:{2048+ks*1024}")
        a.I("s_waitcnt vmcnt(0)")
        s0 = S[0]
        a.I(mfma32(s0, KB[0], QR[b], "0"), mfma32(s0, KB[0] + 4, QR[b] + 4))
        a.I(f"v_max3_f32 v8, v{s0}, v{s0+1}, v{M}")
        for i in range(2, 16, 2): a.I(f"v_max3_f32 v8, v8, v{s0+i}, v{s0+i+1}")
        a.I("v_mov_b32 v9, v8", "v_permlane32_swap_b32 v8, v9", "v_max_f32 v8, v8, v9",
            f"v_sub_f32 v{AL}, v{M}, v8", f"v_exp_f32 v{AL}, v{AL}", f"v_mov_b32 v{M}, v8")
        for i in range(16): a.I(f"v_sub_f32 v{s0+i}, v{s0+i}, v8")
        for i in range(16): a.I(f"v_exp_f32 v{s0+i}, v{s0+i}")
        for i in range(16): a.I(f"v_mul_f32 v{O[b]+i}, v{O[b]+i}, v{AL}")
        for i in range(4): a.I(f"v_mul_f32 v{Lr[b]+i}, v{Lr[b]+i}, v{AL}")
        for d in range(8): a.I(f"v_cvt_pk_bf16_f32 v{P+d}, v{s0+2*d}, v{s0+2*d+1}")
        a.I(mfma32(O[b], VB[0], P), mfma16(Lr[b], SEL, P), mfma32(O[b], VB[0] + 4, P + 4), mfma16(Lr[b], SEL, P + 4))
        a.I("s_add_u32 s29, s29, 4096", f"s_cmp_lg_u32 s29, {64*4096}", f"s_cbranch_scc1 ATT_FB{b}")
    a.L("ATT_FIN")
    a.I("v_mov_b32 v23, v13", "v_mov_b32 v24, v14", "v_mov_b32 v25, v12")
    a.I("v_bfe_u32 v2, v1, 4, 1", "v_lshlrev_b32 v5, 15, v2", "v_lshrrev_b32 v2, 5, v1", "v_lshl_add_u32 v5, v2, 8, v5",
        "v_and_b32 v2, 15, v1", "v_lshl_add_u32 v5, v2, 4, v5",
        "s_lshl_b32 s16, s22, 2", "s_add_u32 s16, s16, s20", "s_lshl_b32 s16, s16, 7", "s_add_u32 s16, s16, s21", "s_lshl_b32 s16, s16, 10",
        f"s_add_u32 s16, s16, {WS_O}", "s_add_u32 s17, s16, 65536")
    for b in range(2): a.I(f"v_rcp_f32 v{8+b}, v{Lr[b]}")
    for b in range(2):
        for i in range(16): a.I(f"v_mul_f32 v{O[b]+i}, v{O[b]+i}, v{8+b}")
        for d in range(8): a.I(f"v_cvt_pk_bf16_f32 v{S[b]+d}, v{O[b]+2*d}, v{O[b]+2*d+1}")
        for ks in range(2):
            a.I(f"buffer_store_dwordx4 {vr(S[b]+4*ks,4)}, v5, s[32:35], s{16+b} offen offset:{ks*512}{SC1}")
    a.I("s_branch F_J")

def down(a):
    R = 8; SLOT = 8192; NST = 56
    FW_ = [32, 64]; AR = 192; ACC = 128
    M32 = "d16" not in EXP
    a.I(f"s_setprio {int(OPT.get('bp', 0))}", "s_lshl_b32 s16, s20, 11", "v_add_u32 v9, s16, v3")
    for t in range(8): a.I(f"ds_read_b128 {vr(192+4*t,4)}, v9 offset:{(t>>1)*8192+(t&1)*1024}")
    h_stores(a)
    a.I(f"s_load_dwordx2 s[8:9], s[0:1], {KA_WD}",
        "s_and_b32 s21, s2, 1",
        "s_bfe_u32 s16, s2, 0x10001", "s_lshl_b32 s16, s16, 3", "s_bfe_u32 s17, s2, 0x30003", "s_add_u32 s22, s16, s17",
        "s_bfe_u32 s16, s2, 0x10002", "s_lshl_b32 s16, s16, 2", "s_bfe_u32 s17, s2, 0x20006", "s_add_u32 s23, s16, s17",
        "s_lshl_b32 s46, s20, 11",
        "v_lshrrev_b32 v2, 4, v1", "s_lshl_b32 s16, s20, 3", "v_add_u32 v4, s16, v2", "v_lshlrev_b32 v4, 11, v4",
        "v_bfe_u32 v5, v1, 1, 3", *(["v_lshlrev_b32 v6, 1, v2", "v_xor_b32 v6, v6, v5", "v_mov_b32 v7, v6"] if M32 else ["v_xor_b32 v6, v2, v5", "v_xor_b32 v7, 4, v6"]),
        "v_and_b32 v2, 1, v1", "v_lshl_add_u32 v4, v2, 4, v4", "s_lshl_b32 s16, s23, 8", "v_add_u32 v4, s16, v4",
        f"v_add_u32 v5, {4*2048-1024}, v4",
        "v_lshl_add_u32 v4, v6, 5, v4", "v_lshl_add_u32 v5, v7, 5, v5",
        "s_mul_i32 s48, s21, %d" % (1792 * 2048), "s_waitcnt lgkmcnt(0)")
    srd(a, 24, 8, 3584 * 1024 * 2)
    def dma_w(st):
        return [f"s_add_u32 m0, s46, {(st % R) * SLOT}", "s_add_u32 s49, s48, 0",
                "buffer_load_dwordx4 v4, s[24:27], s49 offen lds", "s_add_u32 s48, s48, 65536",
                "buffer_load_dwordx4 v5, s[24:27], s49 offen offset:1024 lds"]
    def ld_a(st):
        r = AR + (st % R) * 8
        if M32: return [f"buffer_load_dwordx4 {vr(r,4)}, v10, s[32:35], s44 offen", f"buffer_load_dwordx4 {vr(r+4,4)}, v10, s[32:35], s44 offen offset:512",
                        "s_add_u32 s44, s44, 1024"]
        return [f"buffer_load_dwordx4 {vr(r,4)}, v3, s[32:35], s44 offen", f"buffer_load_dwordx4 {vr(r+4,4)}, v10, s[32:35], s44 offen",
                "s_add_u32 s44, s44, 1024"]
    L = Log()
    NW = int(OPT.get("nw", 2))
    for j in range(NW): a.extend(L.note(dma_w(j), ("w", j)))
    a.I(f"s_waitcnt vmcnt({2*NW})")
    ts(a, 9)
    set_flag(a, 60)
    for j in range(NW, R - 1): a.extend(L.note(dma_w(j), ("w", j)))
    a.I("s_lshl_b32 s16, s22, 3", "s_lshl_b32 s17, s20, 1", "s_add_u32 s16, s16, s17", "s_mul_i32 s16, s16, 112",
        "s_mul_i32 s17, s21, 56", "s_add_u32 s16, s16, s17", "s_lshl_b32 s44, s16, 10", f"s_add_u32 s44, s44, {WS_H}",
        )
    if M32:
        a.I("v_bfe_u32 v2, v1, 4, 1", f"v_mul_u32_u24 v10, {112*1024}, v2", "v_lshrrev_b32 v8, 5, v1", "v_lshl_add_u32 v10, v8, 8, v10",
            "v_and_b32 v9, 15, v1", "v_lshl_add_u32 v10, v9, 4, v10",
            "v_lshlrev_b32 v12, 10, v8", "v_bfe_u32 v9, v1, 2, 2", "v_lshl_add_u32 v12, v9, 8, v12",
            "v_lshlrev_b32 v9, 1, v9", "v_xor_b32 v9, v9, v2", "v_lshl_add_u32 v12, v9, 5, v12",
            "v_and_b32 v9, 3, v1", "v_lshl_add_u32 v12, v9, 3, v12")
        for u in range(1, 4): a.I(f"v_xor_b32 v{12+u}, {64*u}, v12")
    else:
        a.I(f"v_add_u32 v10, {112*1024}, v3",
            "v_lshrrev_b32 v2, 4, v1", "v_lshlrev_b32 v12, 10, v2", "v_bfe_u32 v9, v1, 2, 2", "v_lshl_add_u32 v12, v9, 8, v12",
            "v_bfe_u32 v8, v1, 2, 3", "v_lshl_add_u32 v12, v8, 5, v12", "v_and_b32 v9, 3, v1", "v_lshl_add_u32 v12, v9, 3, v12")
        for u in range(1, 8): a.I(f"v_xor_b32 v{12+u}, {32*u}, v12")
    NT = 0
    if "wt" in EXP.split("_"):
        a.I("v_lshrrev_b32 v2, 1, v1", "v_lshlrev_b32 v24, 11, v2", "v_and_b32 v2, 1, v1", "v_lshl_add_u32 v24, v2, 7, v24",
            "s_and_b32 s16, s22, 7", "s_lshl_b32 s16, s16, 2", "s_add_u32 s16, s16, s20", "s_mul_i32 s16, s16, %d" % (56 * 2048),
            "s_mul_i32 s17, s21, %d" % (1792 * 2048), "s_add_u32 s16, s16, s17", "s_lshl_b32 s17, s23, 8", "s_add_u32 s16, s16, s17",
            f"s_add_u32 s17, s16, {24*2048}",
            "buffer_load_dword v25, v24, s[24:27], s16 offen", "buffer_load_dword v26, v24, s[24:27], s17 offen")
        NT = 2
    sync_setup(a, LC + 1024, 20, 21, 22)
    a.I("v_lshrrev_b32 v2, 4, v1", "v_bfe_u32 v8, v1, 2, 2", "v_lshl_add_u32 v9, v8, 3, v2", "v_lshlrev_b32 v9, 5, v9",
        "v_and_b32 v2, 3, v1", "v_lshl_add_u32 v9, v2, 2, v9",
        "s_lshr_b32 s18, s22, 1", "s_lshl_b32 s18, s18, 5", "s_lshl_b32 s16, s21, 2", "s_add_u32 s18, s18, s16", "s_lshl_b32 s18, s18, 5",
        f"s_add_u32 s18, s18, {WS_FL+FL_H+16}")
    a.extend(poll(18, 64, 9))
    ts(a, 3)
    L.l = []
    for j in range(R - 1): a.extend(L.note(ld_a(j), ("a", j)))
    def need(k):
        last = max([i for i, t in enumerate(L.l) if (t[0] == "a" and t[1] <= k) or (t[0] == "w" and t[1] <= k + 2)], default=-1)
        return len(L.l) - 1 - last
    def reads(st):
        if M32: return [f"ds_read_b64_tr_b16 {vr(FW_[st&1]+(ks*4+nb)*4+2*rd,2)}, v{12+nb} offset:{(st % R)*SLOT+ks*2048+rd*4096}"
                        for ks in range(2) for nb in range(4) for rd in range(2)]
        return [f"ds_read_b64_tr_b16 {vr(FW_[st&1]+u*4+2*rd,2)}, v{12+u} offset:{(st % R)*SLOT+rd*4096}" for u in range(8) for rd in range(2)]
    sync_block(a, 20, 21, 22, 23)
    a.extend(reads(0))
    a.I("ds_read_b32 v23, v21", f"s_setprio {int(OPT.get('dp', 0))}")
    def body(k):
        if M32: m = [mfma32(ACC + nb * 16, FW_[k & 1] + (ks * 4 + nb) * 4, AR + (k % R) * 8 + ks * 4, "0" if k + ks == 0 else None) for ks in range(2) for nb in range(4)]
        else: m = [mfma16(ACC + (t * 8 + u) * 4, FW_[k & 1] + u * 4, AR + (k % R) * 8 + t * 4, "0" if k == 0 else None) for u in range(8) for t in range(2)]
        if k + 1 >= NST: return [f"s_waitcnt vmcnt({need(k)}) lgkmcnt(0)"] + m
        h0, h1 = (1, 7) if M32 else (2, 14)
        o = [f"s_waitcnt vmcnt({need(k)}) lgkmcnt(0)", "v_cmp_gt_u32 vcc, s53, v23", "ds_add_u32 v20, v22", "s_add_u32 s53, s53, 1"]
        if PT: o += [f"s_setprio {1 if (k % R) < PT else 0}"]
        o += m[:h0] + [f"s_nop {2 - h0 - (1 if PT else 0)}"] * (2 - h0 - (1 if PT else 0) >= 0) + ["s_cbranch_vccnz @SPIN", "@CONT:"]
        dm = (L.note(dma_w(k - 1 + R), ("w", k - 1 + R)) + L.note(ld_a(k - 1 + R), ("a", k - 1 + R))) if k - 1 + R < NST else []
        if "dnodma" in EXP: dm = []
        fill = mixmem(reads(k + 1), dm, False)
        FR = int(OPT.get("fr", 5 if M32 else 10))
        rd = reads(k + 1) + ["ds_read_b32 v23, v21"]
        gs = groups_of(dm) if dm else []
        o += interleave(m[h0:FR], rd)
        rest = m[FR:]
        for i, x in enumerate(rest):
            o += [x] + [y for g in gs[(len(gs) * i) // len(rest):(len(gs) * (i + 1)) // len(rest)] for y in g]
        return o
    PT = int(OPT.get("pt", 0))
    bodies = [body(k) for k in range(NST)]
    U = R
    for head in range(0, R + U + 1):
        nl = (NST - R - head) // U
        if all(bodies[k] == bodies[head + (k - head) % U] for k in range(head, head + nl * U)): break
    spins = []
    def emit(k):
        spins.append(k)
        a.extend([x.replace("@SPIN", f"DN_SP{k}").replace("@CONT", f"DN_CT{k}") for x in bodies[k]])
    for k in range(head): emit(k)
    a.I(f"s_mov_b32 s51, {nl}")
    a.L("DN_LOOP")
    for k in range(head, head + U): emit(k)
    a.I("s_sub_u32 s51, s51, 1", "s_cmp_lg_u32 s51, 0", "s_cbranch_scc1 DN_LOOP")
    for k in range(head + nl * U, NST): emit(k)
    ts(a, 4)
    a.I("v_mov_b32 v24, v21", "v_mov_b32 v25, v22", "v_mov_b32 v23, v20")
    a.I("s_setprio 2", "s_lshl_b32 s16, s22, 3", "s_lshl_b32 s17, s20, 1", "s_add_u32 s16, s16, s17", "s_lshl_b32 s16, s16, 5",
        "s_lshl_b32 s17, s23, 2", "s_add_u32 s16, s16, s17",
        "s_lshl_b32 s16, s16, 10", "s_lshl_b32 s17, s21, 22", "s_add_u32 s16, s16, s17", f"s_add_u32 s16, s16, {WS_P}")
    if M32:
        a.I("v_bfe_u32 v2, v1, 4, 1", "v_lshlrev_b32 v5, 15, v2", "v_lshrrev_b32 v2, 5, v1", "v_lshl_add_u32 v5, v2, 8, v5",
            "v_and_b32 v2, 15, v1", "v_lshl_add_u32 v5, v2, 4, v5")
        for nb in range(4):
            g = ACC + nb * 16
            for e in range(2):
                pk = 192 + (nb * 2 + e) * 4
                a.I(f"v_cvt_pk_bf16_f32 v{pk}, v{g+4*e}, v{g+4*e+1}", f"v_cvt_pk_bf16_f32 v{pk+1}, v{g+4*e+2}, v{g+4*e+3}",
                    f"v_cvt_pk_bf16_f32 v{pk+2}, v{g+8+4*e}, v{g+8+4*e+1}", f"v_cvt_pk_bf16_f32 v{pk+3}, v{g+8+4*e+2}, v{g+8+4*e+3}",
                    f"buffer_store_dwordx4 {vr(pk,4)}, v5, s[32:35], s16 offen offset:{nb*1024+e*512}{SC1}")
    else:
        for t in range(2):
            for c in range(4):
                g = ACC + (t * 8 + c * 2) * 4; pk = 192 + (t * 4 + c) * 4
                for d in range(4): a.I(f"v_cvt_pk_bf16_f32 v{pk+d}, v{g+2*d}, v{g+2*d+1}")
                a.I(f"buffer_store_dwordx4 {vr(pk,4)}, v3, s[32:35], s16 offen offset:{c*1024}{SC1}")
            a.I("s_add_u32 s16, s16, 32768")
    a.I("s_branch F_J")
    for k in spins:
        if k + 1 >= NST: continue
        a.L(f"DN_SP{k}")
        a.I("ds_read_b32 v23, v21", "s_waitcnt lgkmcnt(0)", "v_add_u32 v23, 1, v23", "v_cmp_gt_u32 vcc, s53, v23",
            f"s_cbranch_vccnz DN_SP{k}", f"s_branch DN_CT{k}")

def wo(a):
    OA = 128; FW = [32, 48]; ACC = 64; XR = 80; P0 = 88; P1 = 96
    NE = 80
    a.I("s_mov_b32 s20, s54",
        "s_bfe_u32 s16, s2, 0x20001", "s_lshl_b32 s16, s16, 2", "s_bfe_u32 s17, s2, 0x20003", "s_add_u32 s22, s16, s17",
        "s_and_b32 s16, s2, 1", "s_lshl_b32 s16, s16, 3", "s_lshr_b32 s17, s2, 5", "s_add_u32 s23, s16, s17",
        "v_lshrrev_b32 v2, 3, v1", "v_lshlrev_b32 v4, 11, v2",
        "v_lshrrev_b32 v2, 4, v1", "v_bfe_u32 v5, v1, 1, 2", "v_xor_b32 v2, v2, v5", "v_lshl_add_u32 v4, v2, 5, v4",
        "v_and_b32 v2, 1, v1", "v_lshl_add_u32 v4, v2, 4, v4", "s_lshl_b32 s16, s23, 7", "v_add_u32 v4, s16, v4")
    for i in range(1, 4): a.I(f"v_add_u32 v{4+i}, {i*(8*2048-1024)}, v4")
    a.I("s_lshl_b32 s16, s22, 3", "s_add_u32 s16, s16, s20", "s_lshl_b32 s44, s16, 15",
        "s_lshl_b32 s17, s23, 7", "s_add_u32 s42, s44, s17",
        "s_lshl_b32 s17, s23, 11", "s_add_u32 s43, s44, s17", f"s_add_u32 s43, s43, {WS_P}",
        f"s_add_u32 s44, s44, {WS_O}", "s_waitcnt lgkmcnt(0)")
    srd(a, 24, 8, 1024 * 1024 * 2); srd(a, 28, 10, 2048 * 2048); srd(a, 36, 12, 2048 * 2048)
    def w_blocks(first, n, lds):
        o = []
        for j in range(0, n, 4):
            o += [f"s_add_u32 m0, s{lds}, {j*1024}", f"s_add_u32 s16, s{first}, {j*8*2048}"]
            o += [f"buffer_load_dwordx4 v{4+i}, s[24:27], s16 offen offset:{i*1024} lds" for i in range(4)]
        return o
    D = int(OPT.get("od", 12))
    def o_load(kb):
        return [f"buffer_load_dwordx4 {vr(OA+4*kb,4)}, v3, s[32:35], s44 offen offset:{(kb&3)*1024}"] + (["s_add_u32 s44, s44, 4096"] if kb & 3 == 3 else [])
    xsel(a, 21)
    a.I("v_lshrrev_b32 v2, 5, v1", "v_lshlrev_b32 v104, 11, v2", "v_bfe_u32 v9, v1, 2, 3", "v_lshl_add_u32 v104, v9, 7, v104",
        "v_lshrrev_b32 v9, 1, v9", "v_lshl_add_u32 v104, v9, 5, v104", "v_and_b32 v9, 3, v1", "v_lshl_add_u32 v104, v9, 3, v104")
    for u in range(1, 4): a.I(f"v_xor_b32 v{104+u}, {32*u}, v104")
    for u in range(4): a.I(f"v_add_u32 v{12+u}, {LKV}, v{104+u}", f"v_add_u32 v{16+u}, {LKV+65536}, v{104+u}")
    a.I("s_lshr_b32 s16, s22, 3", "s_lshl_b32 s16, s16, 1", "s_lshr_b32 s17, s23, 3", "s_lshl_b32 s17, s17, 2", "s_add_u32 s16, s16, s17",
        "s_and_b32 s17, s22, 7", "s_lshl_b32 s17, s17, 3", "s_add_u32 s16, s16, s17",
        "s_bfe_u32 s17, s23, 0x20001", "s_lshl_b32 s17, s17, 6", "s_add_u32 s16, s16, s17", "s_lshl_b32 s50, s16, 5",
        "s_lshr_b32 s16, s20, 1", "s_lshl_b32 s16, s16, 2", "s_add_u32 s50, s50, s16", f"s_add_u32 s50, s50, {WS_FL+FL_O+16}",
        "v_lshlrev_b32 v22, 5, v1", "s_mov_b32 s19, 0xffff0000")
    a.I("s_cmp_ge_u32 s20, 4", "s_cbranch_scc1 WO_B", "s_waitcnt vmcnt(0)")
    set_flag(a, 60)
    sync_block(a, 23, 24, 25, 26)
    a.I(f"s_mul_i32 s48, s20, {NE//4*8*2048}", f"s_mul_i32 s47, s20, {NE//4*1024}", f"s_add_u32 s47, s47, {LKV}")
    a.extend(w_blocks(48, NE // 4, 47))
    a.I("v_and_b32 v2, 31, v1", "v_lshlrev_b32 v30, 5, v2", "v_lshrrev_b32 v2, 5, v1", "v_lshl_add_u32 v30, v2, 2, v30",
        "s_lshr_b32 s16, s22, 1", "s_lshl_b32 s18, s16, 10", "s_and_b32 s16, s22, 1", "s_lshl_b32 s16, s16, 3",
        "s_add_u32 s18, s18, s16", f"s_add_u32 s18, s18, {WS_FL+FL_O}")
    a.extend(poll(18, 64, 30))
    ts(a, 5)
    for kb in range(D): a.extend(o_load(kb))
    sync_block(a, 23, 24, 25, 26)
    a.I("s_branch WO_J")
    a.L("WO_B")
    sync_block(a, 23, 24, 25, 26)
    NA = (1 if "noatt" in EXP else 8) + 3
    a.I("v_subrev_u32 v24, 1024, v24", f"s_mov_b32 s53, {NA}")
    a.L("WO_BW")
    a.I("ds_read_b32 v26, v24", "s_waitcnt lgkmcnt(0)", "v_cmp_gt_u32 vcc, s53, v26", "s_cbranch_vccz WO_BG", "s_sleep 1", "s_branch WO_BW")
    a.L("WO_BG")
    ts(a, 5)
    for kb in range(D): a.extend(o_load(kb))
    a.I("s_sub_u32 s16, s20, 4", f"s_mul_i32 s48, s16, {12*8*2048}", f"s_add_u32 s48, s48, {NE*8*2048}", f"s_mul_i32 s47, s16, {12*1024}")
    a.extend(w_blocks(48, 12, 47))
    a.L("WO_J")
    ts(a, 6)
    a.I("s_setprio 0")
    def reads(kb):
        vb, so = (12, kb * 4096) if kb < 16 else (16, (kb - 16) * 4096) if kb < 20 else (104, (kb - 20) * 4096)
        return [f"ds_read_b64_tr_b16 {vr(FW[kb&1]+u*4+2*rd,2)}, v{vb+u} offset:{so+rd*1024}" for u in range(4) for rd in range(2)]
    a.extend(reads(0))
    L = Log(); L.l = list(range(D))
    for kb in range(32):
        a.I(f"s_waitcnt vmcnt({L.cnt(kb)}) lgkmcnt(0)")
        if kb == 0: ts(a, 9)
        if kb == 8: ts(a, 10)
        if kb == 20: ts(a, 11)
        if kb == 27: ts(a, 12)
        if kb == 1: set_flag(a, 60); L.note(["buffer"], None)
        if kb == 19: a.I("s_barrier")
        if kb == 20:
            a.extend(L.note(lanes(2) + [poll_load(50, 22, 23), "s_mov_b64 exec, -1",
                            f"buffer_load_dwordx4 {vr(XR,4)}, v21, s[28:31], s42 offen", f"buffer_load_dwordx4 {vr(XR+4,4)}, v21, s[28:31], s42 offen offset:64"], None))
        if kb == 25:
            a.extend(poll(50, 2, 22, 23, preloaded=2))
            a.extend(L.note([f"s_add_u32 s17, s43, {4<<20}",
                f"buffer_load_dwordx4 {vr(P0,4)}, v3, s[32:35], s43 offen", f"buffer_load_dwordx4 {vr(P0+4,4)}, v3, s[32:35], s43 offen offset:1024",
                f"buffer_load_dwordx4 {vr(P1,4)}, v3, s[32:35], s17 offen", f"buffer_load_dwordx4 {vr(P1+4,4)}, v3, s[32:35], s17 offen offset:1024"], None))
        m = [mfma16(ACC + u * 4, FW[kb & 1] + u * 4, OA + 4 * kb, "0" if kb == 0 else None) for u in range(4)]
        a.extend(interleave(m, reads(kb + 1) if kb < 31 else [], [3, 3, 2, 0]))
        if kb + D < 32: a.extend(L.note(o_load(kb + D), kb + D))
    a.I("s_waitcnt vmcnt(0)")
    for c in range(2):
        a.I(f"v_permlane16_swap_b32 v{XR+4*c}, v{XR+4*c+2}", f"v_permlane16_swap_b32 v{XR+4*c+1}, v{XR+4*c+3}")
    E = [(c, d, ACC + c * 8 + 2 * d, 136 + 6 * (c * 4 + d)) for c in range(2) for d in range(4)]
    for t, d, g, r in E:
        a.I(f"v_lshlrev_b32 v{r}, 16, v{P0+4*t+d}", f"v_and_b32 v{r+1}, s19, v{P0+4*t+d}",
            f"v_lshlrev_b32 v{r+2}, 16, v{P1+4*t+d}", f"v_and_b32 v{r+3}, s19, v{P1+4*t+d}",
            f"v_lshlrev_b32 v{r+4}, 16, v{XR+4*t+d}", f"v_and_b32 v{r+5}, s19, v{XR+4*t+d}")
    for t, d, g, r in E: a.I(f"v_add_f32 v{r}, v{r}, v{r+2}", f"v_add_f32 v{r+1}, v{r+1}, v{r+3}", f"v_add_f32 v{g}, v{g}, v{r+4}", f"v_add_f32 v{g+1}, v{g+1}, v{r+5}")
    for t, d, g, r in E: a.I(f"v_add_f32 v{g}, v{g}, v{r}", f"v_add_f32 v{g+1}, v{g+1}, v{r+1}")
    for t, d, g, r in E: a.I(f"v_cvt_pk_bf16_f32 v{32+4*t+d}, v{g}, v{g+1}")
    for c in range(2):
        pk = 32 + 4 * c
        a.I(f"v_permlane16_swap_b32 v{pk}, v{pk+2}", f"v_permlane16_swap_b32 v{pk+1}, v{pk+3}",
            f"buffer_store_dwordx4 {vr(pk,4)}, v21, s[36:39], s42 offen offset:{c*64}")

def fused():
    a = Asm()
    ts(a, 0)
    a.I("s_cmp_ge_u32 s2, 256", "s_cbranch_scc1 F_END",
        f"s_load_dwordx8 s[4:11], s[0:1], {KA_X}", f"s_load_dwordx4 s[40:43], s[0:1], {KA_WG}",
        f"s_load_dwordx4 s[12:15], s[0:1], {KA_DBG}", "s_memrealtime s[44:45]",
        "v_lshrrev_b32 v2, 6, v0", "v_and_b32 v1, 63, v0", "v_readfirstlane_b32 s20, v2", "v_lshlrev_b32 v3, 4, v1",
        "s_lshr_b32 s21, s2, 1", "s_lshl_b32 s23, s21, 15",
        "s_mov_b32 s54, s20", "s_lshl_b32 s16, s20, 12", "s_add_u32 s19, s23, s16", "s_waitcnt lgkmcnt(0)")
    srd(a, 32, 14, WS_SIZE); srd(a, 56, 12, 256)
    a.I("s_or_b32 s16, s2, s20", "s_cmp_lg_u32 s16, 0", "s_cbranch_scc1 F_NT",
        "s_or_b32 s16, s44, 1", "v_mov_b32 v2, s16", "v_mov_b32 v8, 0", "s_mov_b64 exec, 1",
        "buffer_store_dword v2, v8, s[56:59], 0 offen sc1", "s_mov_b64 exec, -1")
    a.L("F_NT")
    phase0(a)
    ts(a, 8)
    g1(a)
    a.I("s_and_b32 s20, s54, 3", "s_cmp_ge_u32 s54, 4", "s_cbranch_scc1 F_B")
    attention(a)
    a.L("F_B")
    down(a)
    a.L("F_J")
    a.I(f"s_load_dwordx2 s[8:9], s[0:1], {KA_WO}", f"s_load_dwordx2 s[10:11], s[0:1], {KA_X}", f"s_load_dwordx2 s[12:13], s[0:1], {KA_OUT}")
    wave_flag(a, 60, FL_O)
    wo(a)
    tl_dump(a, 13)
    a.L("F_END")
    a.I("s_endpgm")
    return a, dict(grid=256, block=512, lds=163840, vgpr=256)

if __name__ == "__main__":
    path = sys.argv[1] if len(sys.argv) > 1 else "cdna_kernels/" + NAME + ".s"
    opts = dict(o.split("=") for o in sys.argv[2:])
    OPT = opts; EXP = opts.get("exp", ""); TL = bool(int(opts.get("tl", 0)))
    G.VERB = bool(int(opts.get("verb", 0)))
    G.build([(NAME if int(opts.get("single", 0)) else "fused8", fused())], path)
```

```python
import sys
from asmlib import *
import gen as G
from gen import (NAME, KA_X, KA_WQ, KA_WK, KA_WV, KA_WO, KA_WG, KA_WU, KA_WD, KA_OUT, KA_DBG, KA_WS,
                 WS_XN, WS_KV, WS_O, WS_H, WS_P, WS_SIZE, f32, vr, srd, mfma32, mfma16, QSCALE, mix2, front_pattern)
WS_FL = 0x0480000
FL_KV, FL_X, FL_H, FL_O, FL_P = 0, 4096, 12288, 20480, 24576
WS_TL = 0x3F10000
LKV = 65536
LQ = 131072
LC = 147456
HP = 224
TL = False; EXP = ""; OPT = {}
SC1 = " sc1"

def ts(a, i):
    if TL: a.I(f"s_mem{'' if 'cyc' in EXP else 'real'}time s[{62+2*i}:{63+2*i}]")
def tl_dump(a, n):
    if not TL: return
    a.I("s_waitcnt vmcnt(0) lgkmcnt(0)")
    ts(a, 7)
    a.I("s_waitcnt lgkmcnt(0)", "s_lshl_b32 s90, s2, 3", "s_add_u32 s90, s90, s54", "s_lshl_b32 s90, s90, 6",
        f"s_add_u32 s90, s90, {WS_TL}", "v_mov_b32 v1, 0", "s_mov_b64 exec, 1")
    for i in range(n):
        a.I(f"v_mov_b32 v2, s{62+2*i}", f"buffer_store_dword v2, v1, s[32:35], s90 offen offset:{4*i}")

_n = [0]
def lanes(n): return [f"s_mov_b32 exec_lo, {((1 << n) - 1) & 0xffffffff:#x}", f"s_mov_b32 exec_hi, {((1 << n) - 1) >> 32:#x}"] if n < 64 else []
def poll_load(soff, voff, dst, wide=False):
    return f"buffer_load_dword{'x4' if wide else ''} {vr(dst, 4 if wide else 1)}, v{voff}, s[32:35], s{soff} offen sc1"
def poll_test(dst, wide):
    if wide:
        return [f"v_xor_b32 v{dst+i}, s55, v{dst+i}" for i in range(4)] + \
               [f"v_or3_b32 v{dst}, v{dst}, v{dst+1}, v{dst+2}", f"v_or_b32 v{dst}, v{dst}, v{dst+3}", f"v_cmp_ne_u32 vcc, 0, v{dst}"]
    return [f"v_cmp_ne_u32 vcc, s55, v{dst}"]
def poll(soff, n, voff, dst=2, wide=False, preloaded=None):
    _n[0] += 1; lab = f"POLL{_n[0]}"
    o = lanes(n)
    if preloaded is not None:
        o += [f"s_waitcnt vmcnt({preloaded})"] + poll_test(dst, wide) + [f"s_cbranch_vccz {lab}_D"]
    o += ["s_mov_b32 s17, 0x40000", lab + ":", poll_load(soff, voff, dst, wide), "s_waitcnt vmcnt(0)"] + poll_test(dst, wide)
    o += [f"s_cbranch_vccz {lab}_D", "s_sleep 2", "s_sub_u32 s17, s17, 1", "s_cmp_lg_u32 s17, 0", f"s_cbranch_scc1 {lab}", lab + "_D:"]
    if n < 64: o += ["s_mov_b64 exec, -1"]
    return o
def set_flag(a, soff):
    a.I("v_mov_b32 v2, s55", "v_mov_b32 v8, 0", "s_mov_b64 exec, 1",
        f"buffer_store_dword v2, v8, s[32:35], s{soff} offen sc1", "s_mov_b64 exec, -1")
def wave_flag(a, reg, base):
    a.I(f"s_lshl_b32 s{reg}, s2, 3", f"s_add_u32 s{reg}, s{reg}, s54", f"s_lshl_b32 s{reg}, s{reg}, 2", f"s_add_u32 s{reg}, s{reg}, {WS_FL+base}")
def sync_setup(a, base, own, chk, one):
    a.I("s_lshl_b32 s16, s20, 8", f"s_add_u32 s16, s16, {base}", f"v_lshl_add_u32 v{own}, v1, 2, s16",
        "v_and_b32 v2, 3, v1", f"v_lshlrev_b32 v{chk}, 8, v2", f"v_lshl_add_u32 v{chk}, v1, 2, v{chk}", f"v_add_u32 v{chk}, {base}, v{chk}",
        f"v_mov_b32 v{one}, 1", "s_mov_b32 s53, 0")
def sync_block(a, own, chk, one, tmp):
    _n[0] += 1; lab = f"SY{_n[0]}"
    a.I(f"ds_add_u32 v{own}, v{one}", "s_add_u32 s53, s53, 1")
    a.L(lab)
    a.I(f"ds_read_b32 v{tmp}, v{chk}", "s_waitcnt lgkmcnt(0)", f"v_cmp_gt_u32 vcc, s53, v{tmp}", f"s_cbranch_vccnz {lab}")
def xsel(a, dst):
    a.I("v_and_b32 v2, 15, v1", f"v_lshlrev_b32 v{dst}, 11, v2", "v_bfe_u32 v2, v1, 4, 1", f"v_lshl_add_u32 v{dst}, v2, 5, v{dst}",
        "v_lshrrev_b32 v2, 5, v1", f"v_lshl_add_u32 v{dst}, v2, 4, v{dst}")
def is_vm(x): return x.startswith("buffer") or x.startswith("global")
def groups_of(dm):
    gs = []; cur = []
    for x in dm:
        cur.append(x)
        if is_vm(x): gs.append(cur); cur = []
    gs[-1] += cur
    return gs
def mixmem(rd, dm, dma_first=True):
    if not rd or not dm: return rd + dm
    gs = groups_of(dm)
    pre = [x for x in rd if x.startswith("v_")]; ds = [x for x in rd if x.startswith("ds_")]; post = [x for x in rd if x.startswith("s_")]
    o = list(pre); n = len(gs); per = len(ds) // n
    for g in range(n):
        part = ds[g * per:(g + 1) * per if g < n - 1 else len(ds)]
        o += (gs[g] + part) if dma_first else (part + gs[g])
    return o + post
class Log:
    def __init__(self): self.l = []
    def note(self, instrs, st): self.l += [st] * sum(map(is_vm, instrs)); return instrs
    def cnt(self, st):
        last = max([i for i, s_ in enumerate(self.l) if s_ is not None and s_ <= st], default=-1)
        return len(self.l) - 1 - last

WA0, WA1, WST = 116, 118, 120
def w_dma(slotreg):
    return [f"s_add_u32 m0, s{slotreg}, s46", "s_nop 0",
            f"global_load_lds_dwordx4 {vr(WA0,2)}, off", f"global_load_lds_dwordx4 {vr(WA1,2)}, off offset:1024",
            f"v_lshl_add_u64 {vr(WA0,2)}, {vr(WST,2)}, 0, {vr(WA0,2)}", f"v_lshl_add_u64 {vr(WA1,2)}, {vr(WST,2)}, 0, {vr(WA1,2)}"]

def phase0(a):
    LW, LX, LR = 49152, 114688, 147456
    srd(a, 24, 4, 2048 * 2048)
    for i in range(4): a.I(f"buffer_load_dwordx4 {vr(8+4*i,4)}, v3, s[24:27], s19 offen offset:{i*1024}")
    a.I("v_mov_b32 v7, 0", "buffer_load_dword v6, v7, s[56:59], 0 offen sc1")
    a.I("s_bfe_u32 s22, s2, 0x10003", "s_cmp_eq_u32 s22, 0", "s_cselect_b64 s[12:13], s[8:9], s[10:11]")
    srd(a, 28, 12, 65536)
    a.I("s_lshl_b32 s17, s20, 13")
    a.I("s_and_b32 s16, s2, 7", "s_lshl_b32 s16, s16, 2", "s_bfe_u32 s21, s2, 0x20003", "s_add_u32 s21, s21, s16",
        "s_and_b32 s23, s20, 3", "s_cmp_lt_u32 s20, 4", "s_cselect_b64 s[12:13], s[42:43], s[40:41]", "s_cselect_b32 s18, 32, 0",
        "s_cselect_b32 s46, 8192, 0", "s_lshl_b32 s16, s23, 11", "s_add_u32 s46, s46, s16", "s_add_u32 s46, s46, 16384",
        "v_lshrrev_b32 v2, 4, v1", "s_lshl_b32 s16, s23, 3", "v_add_u32 v4, s16, v2",
        "s_and_b32 s16, s23, 1", "s_lshl_b32 s16, s16, 2", "v_add_u32 v2, s16, v2", "v_bfe_u32 v5, v1, 1, 3", "v_xor_b32 v2, v2, v5",
        "v_cmp_eq_u32 vcc, 7, v2", "v_mov_b32 v5, 7168", "v_mov_b32 v112, 2048", f"v_cndmask_b32 v{WST}, v5, v112, vcc",
        f"v_mul_lo_u32 v4, v4, v{WST}",
        "s_mul_i32 s16, s21, 224", "v_lshl_add_u32 v5, v2, 5, s16", "s_lshl_b32 s16, s21, 6", "s_add_u32 s16, s16, s18",
        "v_mov_b32 v112, s16", "v_cndmask_b32 v5, v5, v112, vcc", "v_add_u32 v4, v4, v5",
        "v_and_b32 v2, 1, v1", "v_lshl_add_u32 v4, v2, 4, v4",
        "v_mov_b32 v5, s12", "v_mov_b32 v112, s6", f"v_cndmask_b32 v{WA0}, v5, v112, vcc",
        "v_mov_b32 v5, s13", "v_mov_b32 v112, s7", f"v_cndmask_b32 v{WA0+1}, v5, v112, vcc",
        "v_mov_b32 v5, 0", f"v_lshl_add_u64 {vr(WA0,2)}, v[4:5], 0, {vr(WA0,2)}",
        f"v_lshlrev_b32 v4, 2, v{WST}", "v_add_u32 v4, -1024, v4" if False else "v_subrev_u32 v4, 1024, v4",
        f"v_lshl_add_u64 {vr(WA1,2)}, v[4:5], 0, {vr(WA0,2)}",
        f"v_lshlrev_b32 v{WST}, 5, v{WST}", f"v_mov_b32 v{WST+1}, 0", "s_mov_b32 s47, 0")
    srd(a, 24, 12, 1024 * 3584 * 2)
    a.I("v_lshrrev_b32 v2, 1, v1", "s_lshl_b32 s16, s23, 5", "s_add_u32 s16, s16, 32", "v_add_u32 v2, s16, v2",
        "v_mul_u32_u24 v112, 7168, v2", "v_and_b32 v2, 1, v1", "v_mul_u32_u24 v2, 208, v2", "v_add_u32 v112, v112, v2",
        "s_mul_i32 s44, s21, 224")
    a.I("s_mov_b32 s21, s45", "s_lshl_b32 s23, s21, 15", "s_mov_b32 s36, 0xffff0000", "s_waitcnt vmcnt(1)")
    ts(a, 9)
    late = [f"s_add_u32 m0, s17, {LW}", "s_add_u32 s18, s17, 4096"]
    late += [f"buffer_load_dwordx4 v3, s[28:31], s17 offen offset:{i*1024} lds" for i in range(4)]
    late += [f"s_add_u32 m0, s18, {LW}", "s_nop 0"]
    late += [f"buffer_load_dwordx4 v3, s[28:31], s18 offen offset:{i*1024} lds" for i in range(4)]
    late += w_dma(47) + ["buffer_load_dword v113, v112, s[24:27], s44 offen"]
    mark = len(a.items)
    for r in range(2):
        for d in range(8):
            src = 8 + 8 * r + d
            a.I(f"v_lshlrev_b32 v{32+16*r+2*d}, 16, v{src}", f"v_and_b32 v{33+16*r+2*d}, s36, v{src}")
    def tree2(bases, sq):
        T_ = [(24 + i, bases[i], 64 + 8 * i) for i in range(2)]
        for dst, base, t in T_:
            for i in range(8):
                a.I(f"v_mul_f32 v{t+i}, v{base+2*i}, v{base+2*i}" if sq else f"v_add_f32 v{t+i}, v{base+2*i}, v{base+2*i+1}")
        if sq:
            for dst, base, t in T_:
                for i in range(8): a.I(f"v_fmac_f32 v{t+i}, v{base+2*i+1}, v{base+2*i+1}")
        for s_ in (4, 2):
            for dst, base, t in T_:
                for i in range(s_): a.I(f"v_add_f32 v{t+i}, v{t+i}, v{t+i+s_}")
        for dst, base, t in T_: a.I(f"v_add_f32 v{dst}, v{t}, v{t+1}")
    def wavered(rs, ss):
        for mod in ("row_shr:1 row_mask:0xf bank_mask:0xf bound_ctrl:0", "row_shr:2 row_mask:0xf bank_mask:0xf bound_ctrl:0",
                    "row_shr:4 row_mask:0xf bank_mask:0xf bound_ctrl:0", "row_shr:8 row_mask:0xf bank_mask:0xf bound_ctrl:0",
                    "row_bcast:15 row_mask:0xa bank_mask:0xf", "row_bcast:31 row_mask:0xc bank_mask:0xf"):
            for r in rs: a.I(f"v_add_f32_dpp v{r}, v{r}, v{r} {mod}")
        for r, s_ in zip(rs, ss): a.I(f"v_readlane_b32 s{s_}, v{r}, 63")
    if "p0st" in EXP: ts(a, 1)
    tree2((32, 48), False)
    wavered((24, 25), (40, 41))
    if "p0st" in EXP: ts(a, 2)
    a.I(f"s_mov_b32 s37, {f32(1.0/1024)}")
    a.I("v_mov_b32 v26, s40", "v_mov_b32 v27, s41", "v_mul_f32 v26, s37, v26", "v_mul_f32 v27, s37, v27")
    for r in range(2):
        for i in range(16): a.I(f"v_sub_f32 v{80+16*r+i}, v{32+16*r+i}, v{26+r}")
    tree2((80, 96), True)
    wavered((24, 25), (42, 43))
    a.I("v_mov_b32 v28, s42", "v_mov_b32 v29, s43", "v_mul_f32 v28, s37, v28", "v_mul_f32 v29, s37, v29")
    def rnd(*rs):
        for r in rs: a.I(f"v_cvt_pk_bf16_f32 v{r}, v{r}, v{r}")
        for r in rs: a.I(f"v_lshlrev_b32 v{r}, 16, v{r}")
    a.I(f"s_mov_b32 s38, {f32(1e-5)}")
    rnd(28, 29, 26, 27)
    a.I("v_add_f32 v28, s38, v28", "v_add_f32 v29, s38, v29"); rnd(28, 29)
    a.I("v_sqrt_f32 v28, v28", "v_sqrt_f32 v29, v29"); rnd(28, 29)
    a.I("v_rcp_f32 v28, v28", "v_rcp_f32 v29, v29")
    if "p0st" in EXP: ts(a, 3)
    P_ = [(r, d, 32 + 16 * r + 2 * d) for r in range(2) for d in range(8)]
    for r, d, b in P_: a.I(f"v_sub_f32 v{b}, v{b}, v{26+r}", f"v_sub_f32 v{b+1}, v{b+1}, v{26+r}")
    for r, d, b in P_: a.I(f"v_cvt_pk_bf16_f32 v{80+8*r+d}, v{b}, v{b+1}")
    for r, d, b in P_: a.I(f"v_lshlrev_b32 v{b}, 16, v{80+8*r+d}", f"v_and_b32 v{b+1}, s36, v{80+8*r+d}")
    for r, d, b in P_: a.I(f"v_mul_f32 v{b}, v{b}, v{28+r}", f"v_mul_f32 v{b+1}, v{b+1}, v{28+r}")
    for r, d, b in P_: a.I(f"v_cvt_pk_bf16_f32 v{8+8*r+d}, v{b}, v{b+1}")
    body = a.items[mark:]; del a.items[mark:]
    gs = groups_of(late); step = int(OPT.get("lst", 24))
    for i, it in enumerate(body):
        if i % step == 0 and gs: a.extend(gs.pop(0))
        a.items.append(it)
    assert not gs
    if "p0st" in EXP: ts(a, 4)
    a.I("s_lshl_b32 s16, s20, 1", "v_and_b32 v2, 15, v1", "v_xor_b32 v2, s16, v2", "v_lshlrev_b32 v4, 8, v1", "v_lshl_add_u32 v4, v2, 4, v4",
        f"v_add_u32 v4, {LX}, v4", "v_xor_b32 v25, 16, v4")
    for r in range(2):
        for p in range(2): a.I(f"ds_write_b128 v{25 if r else 4}, {vr(8+8*r+4*p,4)} offset:{p*16384}")
    a.I("v_lshrrev_b32 v5, 4, v1", "v_lshlrev_b32 v2, 4, v5", "v_xor_b32 v26, v2, v3",
        "s_lshl_b32 s16, s20, 12", f"s_add_u32 s16, s16, {LX}", "v_add_u32 v30, s16, v26",
        "v_xor_b32 v27, 64, v30", "v_xor_b32 v28, 0x80, v30", "v_xor_b32 v29, 0xc0, v30",
        "v_lshlrev_b32 v31, 9, v5", "v_bfe_u32 v2, v1, 2, 2", "v_lshl_add_u32 v31, v2, 6, v31",
        "v_and_b32 v2, 3, v1", "v_lshl_add_u32 v31, v2, 3, v31", f"s_add_u32 s16, s17, {LW}", "v_add_u32 v31, s16, v31",
        "s_lshl_b32 s16, s22, 14", "s_lshl_b32 s18, s20, 11", "s_add_u32 s16, s16, s18",
        "s_add_u32 s39, s23, s16", f"s_add_u32 s16, s16, {LX}", "v_add_u32 v24, s16, v26",
        "s_and_b32 s16, s20, 1", "s_lshl_b32 s16, s16, 7", "v_xor_b32 v24, s16, v24", "v_xor_b32 v25, 64, v24",
        "s_waitcnt lgkmcnt(0)", "s_barrier")
    ts(a, 10)
    a.I("ds_read_b128 v[8:11], v24", "ds_read_b128 v[12:15], v25 offset:1024", "s_waitcnt vmcnt(3) lgkmcnt(0)")
    a.I("buffer_store_dwordx4 v[8:11], v3, s[32:35], s39 offen sc1", "buffer_store_dwordx4 v[12:15], v3, s[32:35], s39 offen offset:1024 sc1",
        "v_readfirstlane_b32 s55, v6")
    for j in range(4):
        a.I(f"ds_read_b128 {vr(32+4*j,4)}, v{(30, 27, 28, 29)[j]} offset:{j*1024}")
        for d in range(2):
            for rd in range(2):
                a.I(f"ds_read_b64_tr_b16 {vr(64+8*j+4*d+2*rd,2)}, v31 offset:{j*2048+rd*256+d*32}")
    a.I("s_waitcnt lgkmcnt(0)", "s_cmp_eq_u32 s22, 0", "s_cbranch_scc0 P0_V")
    for j in range(4):
        for d in range(2): a.I(mfma16(96 + 4 * d, 64 + 8 * j + 4 * d, 32 + 4 * j, "0" if j == 0 else None))
    a.I("s_branch P0_R")
    a.L("P0_V")
    for j in range(4):
        for d in range(2): a.I(mfma16(96 + 4 * d, 32 + 4 * j, 64 + 8 * j + 4 * d, "0" if j == 0 else None))
    a.L("P0_R")
    a.I("s_lshl_b32 s16, s20, 11", f"s_add_u32 s16, s16, {LR}", "v_add_u32 v4, s16, v3")
    wave_flag(a, 18, FL_X)
    for d in range(2): a.I(f"ds_write_b128 v4, {vr(96+4*d,4)} offset:{d*1024}")
    a.I("s_mov_b32 s17, 0x40000")
    a.L("P0_TAG")
    a.I("s_cmp_lg_u32 s55, 0", "s_cbranch_scc1 P0_TAGOK",
        "buffer_load_dword v6, v7, s[56:59], 0 offen sc1", "s_waitcnt vmcnt(0)", "v_readfirstlane_b32 s55, v6",
        "s_sub_u32 s17, s17, 1", "s_cmp_lg_u32 s17, 0", "s_cbranch_scc1 P0_TAG")
    a.L("P0_TAGOK")
    a.I("s_waitcnt vmcnt(0)")
    set_flag(a, 18)
    a.I("s_waitcnt lgkmcnt(0)", "s_barrier")
    a.I("s_cmp_lg_u32 s20, 0", "s_cbranch_scc1 P0_END")
    a.I(f"v_add_u32 v4, {LR}, v3")
    for w in range(8):
        a.I(f"ds_read_b128 {vr(32+8*w,4)}, v4 offset:{w*2048}", f"ds_read_b128 {vr(36+8*w,4)}, v4 offset:{w*2048+1024}")
    a.I("s_waitcnt lgkmcnt(0)")
    for s_ in (4, 2, 1):
        for w in range(s_):
            for i in range(8): a.I(f"v_add_f32 v{32+8*w+i}, v{32+8*w+i}, v{32+8*(w+s_)+i}")
    for d in range(4): a.I(f"v_cvt_pk_bf16_f32 v{8+d}, v{32+2*d}, v{33+2*d}")
    a.I("s_lshr_b32 s16, s21, 1", "s_lshl_b32 s19, s16, 12", f"s_add_u32 s19, s19, {WS_KV}",
        "s_and_b32 s16, s21, 1", "s_lshl_b32 s16, s16, 10", "s_add_u32 s19, s19, s16",
        "s_cmp_eq_u32 s22, 0", "s_cbranch_scc0 P0_SV",
        "buffer_store_dwordx4 v[8:11], v3, s[32:35], s19 offen sc1", "s_branch P0_KF")
    a.L("P0_SV")
    a.I("v_and_b32 v2, 1, v5", "v_lshlrev_b32 v4, 9, v2", "v_and_b32 v2, 15, v1", "v_lshl_add_u32 v4, v2, 4, v4",
        "v_lshrrev_b32 v2, 1, v5", "v_lshl_add_u32 v4, v2, 3, v4",
        "buffer_store_dwordx2 v[8:9], v4, s[32:35], s19 offen offset:2048 sc1",
        "buffer_store_dwordx2 v[10:11], v4, s[32:35], s19 offen offset:2304 sc1")
    a.L("P0_KF")
    a.I("s_lshl_b32 s18, s2, 2", f"s_add_u32 s18, s18, {WS_FL+FL_KV}", "s_waitcnt vmcnt(0)")
    set_flag(a, 18)
    a.L("P0_END")

def kv_groups():
    gs = []
    for g in range(2):
        for i in range(4):
            o = [f"s_add_u32 m0, s25, {g*4096}", f"s_add_u32 s26, s24, {g*4096}"] if i == 0 else []
            gs.append(o + [f"buffer_load_dwordx4 v3, s[36:39], s26 offen offset:{i*1024} lds"])
    gs[-1] += ["s_add_u32 s24, s24, 32768", "s_xor_b32 s25, s25, 32768"]
    return gs

def g1(a):
    NST = 32; R = 5; SLOT = 32768
    ACC = 128; FA = 64; FW = 96
    def acc(h, u, t): return ACC + (t * 4 + h * 2 + u) * 4
    a.I("s_and_b32 s16, s2, 7", "s_lshl_b32 s16, s16, 2", "s_bfe_u32 s21, s2, 0x20003", "s_add_u32 s21, s21, s16",
        "s_lshr_b32 s22, s2, 5", "s_and_b32 s23, s20, 3", "v_add_u32 v10, 31744, v3",
        "s_lshl_b32 s16, s22, 4", "s_lshl_b32 s17, s20, 1", "s_add_u32 s16, s16, s17", "s_lshl_b32 s44, s16, 15",
        "s_lshl_b32 s45, s20, 11", "s_mov_b32 s47, 0", "s_mov_b32 s50, 0", f"s_mov_b32 s52, {SLOT}",
        "s_lshl_b32 s18, s22, 5", "s_lshr_b32 s16, s20, 2", "s_lshl_b32 s16, s16, 4", "s_add_u32 s18, s18, s16",
        "s_lshl_b32 s16, s23, 1", "s_add_u32 s18, s18, s16", "s_lshl_b32 s18, s18, 5", f"s_add_u32 s18, s18, {WS_FL+FL_X}",
        "v_and_b32 v2, 15, v1", "v_lshlrev_b32 v8, 2, v2", "v_lshrrev_b32 v2, 4, v1", "v_lshl_add_u32 v8, v2, 8, v8")
    a.extend(poll(18, 32, 8))
    ts(a, 11)
    def adv(reg): return [f"s_add_u32 s{reg}, s{reg}, {SLOT}", f"s_cmp_eq_u32 s{reg}, {SLOT*R}", f"s_cselect_b32 s{reg}, 0, s{reg}"]
    def dma_act():
        return ["s_add_u32 m0, s47, s45", "s_nop 0", "buffer_load_dwordx4 v3, s[32:35], s44 offen lds",
                "buffer_load_dwordx4 v10, s[32:35], s44 offen offset:1024 lds", "s_add_u32 s44, s44, 1024"] + adv(47)
    def dma_w(): return w_dma(52) + adv(52)
    def rdaddr():
        return ["s_lshr_b32 s17, s20, 2", "s_lshl_b32 s16, s17, 13", "v_add_u32 v6, s16, v3",
                "s_and_b32 s19, s21, 1", "s_lshl_b32 s16, s23, 1", "s_add_u32 s40, s16, s19", "s_add_u32 s41, s40, 1",
                "s_mul_i32 s16, s19, 6", "s_sub_u32 s16, 6, s16", "s_cmp_eq_u32 s23, 3", "s_cselect_b32 s40, s16, s40", "s_cselect_b32 s41, 7, s41",
                "v_lshrrev_b32 v2, 4, v1", "v_lshlrev_b32 v7, 11, v2", "v_and_b32 v2, 1, v2", "v_lshlrev_b32 v12, 2, v2",
                "v_bfe_u32 v2, v1, 2, 2", "v_lshl_add_u32 v7, v2, 8, v7", "v_add_u32 v12, v12, v2",
                "v_and_b32 v2, 3, v1", "v_lshl_add_u32 v7, v2, 3, v7", "v_add_u32 v7, 16384, v7",
                "v_xor_b32 v2, s41, v12", "v_lshl_add_u32 v11, v2, 5, v7", "v_xor_b32 v2, s40, v12", "v_lshl_add_u32 v7, v2, 5, v7"]
    def reads():
        o = ["v_add_u32 v8, s50, v6", "v_add_u32 v9, s50, v7", "v_add_u32 v13, s50, v11"]
        for h in range(2):
            for u in range(2):
                for rd in range(2):
                    o.append(f"ds_read_b64_tr_b16 {vr(FW+(h*2+u)*4+2*rd,2)}, v{9 if u == 0 else 13} offset:{h*8192+rd*1024}")
        for t in range(8): o.append(f"ds_read_b128 {vr(FA+t*4,4)}, v8 offset:{t*1024}")
        return o + adv(50)
    def mm(first):
        return [mfma16(acc(h, u, t), FW + (h * 2 + u) * 4, FA + t * 4, "0" if first else None) for t in range(8) for h in range(2) for u in range(2)]
    a.I("s_cmp_ge_u32 s20, 4", "s_cbranch_scc1 G1_B")
    L = Log()
    for j in range(R):
        if 0 < j < R - 1: a.extend(L.note(dma_w(), j))
        a.extend(L.note(dma_act(), j))
    a.extend(rdaddr())
    a.I(f"s_waitcnt vmcnt({L.cnt(0)})", "s_barrier")
    a.extend(reads())
    a.I(f"s_waitcnt vmcnt({L.cnt(1)}) lgkmcnt(0)", "s_barrier")
    ts(a, 12)
    kv = kv_groups()
    def bodyA(k, first=False):
        o = mm(first)
        dm = L.note([f"s_mov_b32 s18, {WS_FL+FL_KV}", poll_load(18, 3, 28, True)], None) if k == 27 else []
        dm += (L.note(dma_w(), k - 1 + R) if k - 1 + R < NST else []) + (L.note(dma_act(), k + R) if k + R < NST else [])
        if k == 28:
            o += poll(18, 64, 3, 28, True, preloaded=2)
            o += ["s_lshl_b32 s24, s20, 13", f"s_add_u32 s25, s24, {LKV}",
                  f"s_add_u32 s36, s32, {WS_KV}", "s_addc_u32 s37, s33, 0", "s_mov_b32 s38, 0x40000", "s_mov_b32 s39, 0x20000"]
            dm = L.note([x for g in kv for x in g], None)
        if k == 29: dm = L.note([x for g in kv for x in g], None)
        o += mixmem(reads() if k + 1 < NST else [], dm)
        if k + 1 < NST: o += [f"s_waitcnt vmcnt({L.cnt(k + 2)}) lgkmcnt(0)", "s_barrier"]
        return o
    a.extend(bodyA(0, True))
    a.I(f"s_mov_b32 s51, {NST-R-1}")
    a.L("G1_A_LOOP")
    body = bodyA(1)
    for k in range(2, NST - R): assert bodyA(k) == body
    a.extend(body)
    a.I("s_sub_u32 s51, s51, 1", "s_cmp_lg_u32 s51, 0", "s_cbranch_scc1 G1_A_LOOP")
    for k in range(NST - R, NST): a.extend(bodyA(k))
    a.I("s_branch G1_EPI")
    a.L("G1_B")
    M = Log()
    for j in range(R - 1):
        if j: a.extend(M.note(dma_w(), j))
        a.extend(M.note(dma_act(), j))
    a.extend(rdaddr())
    a.I(f"s_waitcnt vmcnt({M.cnt(0)})", "s_barrier", f"s_waitcnt vmcnt({M.cnt(1)})", "s_barrier")
    def bodyB(k, first=False):
        dm = M.note(dma_w() + dma_act(), k - 1 + R) if k - 1 + R < NST else []
        o = mixmem(reads(), dm) + ["s_waitcnt lgkmcnt(0)"] + mm(first)
        if k + 1 < NST: o += [f"s_waitcnt vmcnt({M.cnt(k + 2)})", "s_barrier"]
        return o
    a.extend(bodyB(0, True))
    a.I(f"s_mov_b32 s51, {NST-R}")
    a.L("G1_B_LOOP")
    body = bodyB(1)
    for k in range(2, NST - R + 1): assert bodyB(k) == body
    a.extend(body)
    a.I("s_sub_u32 s51, s51, 1", "s_cmp_lg_u32 s51, 0", "s_cbranch_scc1 G1_B_LOOP")
    for k in range(NST - R + 1, NST): a.extend(bodyB(k))
    a.L("G1_EPI")
    ts(a, 1)
    a.I("s_lshl_b32 s16, s20, 8", f"s_add_u32 s16, s16, {LC}", "v_lshl_add_u32 v13, v1, 2, s16", "v_mov_b32 v12, 0", "ds_write_b32 v13, v12")
    wave_flag(a, 60, FL_H)
    a.I("s_lshl_b32 s16, s22, 4", "s_lshr_b32 s17, s20, 2", "s_lshl_b32 s17, s17, 3", "s_add_u32 s16, s16, s17", "s_mul_i32 s16, s16, 112",
        "s_mul_i32 s17, s21, 7", "s_add_u32 s17, s17, s40", "s_lshr_b32 s17, s17, 1", "s_add_u32 s16, s16, s17",
        "s_lshl_b32 s16, s16, 10", f"s_add_u32 s61, s16, {WS_H}", "s_cmp_eq_u32 s23, 3", "s_cbranch_scc1 G1_EPQ")
    for t in reversed(range(8)):
        g, u = acc(0, 0, t), acc(1, 0, t)
        for i in range(8): a.I(f"v_max_f32 v{g+i}, 0, v{g+i}")
        for i in range(8): a.I(f"v_mul_f32 v{g+i}, v{g+i}, v{u+i}")
        for d in range(4): a.I(f"v_cvt_pk_bf16_f32 v{HP+4*t+d}, v{g+2*d}, v{g+2*d+1}")
    a.I("s_branch G1_X")
    a.L("G1_EPQ")
    a.I(f"s_mov_b32 s18, {f32(QSCALE)}", "s_lshr_b32 s16, s20, 2", "s_lshl_b32 s16, s16, 13", f"s_add_u32 s16, s16, {LQ}",
        "v_add_u32 v9, s16, v3", "s_lshl_b32 s16, s19, 3", "s_add_u32 s61, s61, s16")
    for t in range(8):
        q0, q1 = acc(0, 1, t), acc(1, 1, t)
        for i in range(4): a.I(f"v_mul_f32 v{q0+i}, s18, v{q0+i}", f"v_mul_f32 v{q1+i}, s18, v{q1+i}")
        a.I(f"v_cvt_pk_bf16_f32 v{FA+4*t}, v{q0}, v{q0+1}", f"v_cvt_pk_bf16_f32 v{FA+4*t+1}, v{q0+2}, v{q0+3}",
            f"v_cvt_pk_bf16_f32 v{FA+4*t+2}, v{q1}, v{q1+1}", f"v_cvt_pk_bf16_f32 v{FA+4*t+3}, v{q1+2}, v{q1+3}",
            f"ds_write_b128 v9, {vr(FA+4*t,4)} offset:{t*1024}")
    for t in reversed(range(8)):
        g, u = acc(0, 0, t), acc(1, 0, t)
        for i in range(4): a.I(f"v_max_f32 v{g+i}, 0, v{g+i}")
        for i in range(4): a.I(f"v_mul_f32 v{g+i}, v{g+i}, v{u+i}")
        for d in range(2): a.I(f"v_cvt_pk_bf16_f32 v{HP+4*t+d}, v{g+2*d}, v{g+2*d+1}")
    a.L("G1_X")
    a.I("s_cmp_ge_u32 s20, 4", "s_cbranch_scc1 G1_X2", "s_lshl_b32 s16, s20, 11", "v_add_u32 v9, s16, v3")
    for t in range(8): a.I(f"ds_write_b128 v9, {vr(HP+4*t,4)} offset:{(t>>1)*8192+(t&1)*1024}")
    a.L("G1_X2")
    a.I("s_waitcnt lgkmcnt(0)", "s_barrier")
    ts(a, 2)

def h_stores(a):
    _n[0] += 1; lab = f"HS{_n[0]}"
    a.I(f"s_sub_u32 s16, s61, {8*112*1024}", "s_cmp_eq_u32 s20, 3", f"s_cbranch_scc1 {lab}")
    for w, n in ((4, lab + "_D"), (2, None)):
        for t in range(8): a.I(f"buffer_store_dwordx{w} {vr(HP+4*t,w)}, v3, s[32:35], s61 offen{SC1}", f"s_add_u32 s61, s61, {112*1024}")
        a.I("s_waitcnt lgkmcnt(0)")
        for t in range(8): a.I(f"buffer_store_dwordx{w} {vr(192+4*t,w)}, v3, s[32:35], s16 offen{SC1}", f"s_add_u32 s16, s16, {112*1024}")
        if n: a.I(f"s_branch {n}"); a.L(lab)
    a.L(lab + "_D")

def attention(a):
    QR = [16, 24]; KB = [32, 48]; VB = [40, 56]; P = 64; SEL = 72; Lr = [76, 80]; S = [96, 112]; O = [128, 144]; C = [160, 176]
    a.I(f"s_add_u32 s36, s32, {WS_KV}", "s_addc_u32 s37, s33, 0", "s_mov_b32 s38, 0x40000", "s_mov_b32 s39, 0x20000")
    a.I("v_bfe_u32 v2, v1, 4, 1", "v_lshlrev_b32 v4, 10, v2", "v_lshrrev_b32 v2, 5, v1", "v_lshl_add_u32 v4, v2, 8, v4",
        "v_and_b32 v2, 15, v1", "v_lshl_add_u32 v4, v2, 4, v4",
        "s_lshl_b32 s16, s20, 12", f"s_add_u32 s16, s16, {LQ}", "v_add_u32 v5, s16, v4")
    for b in range(2):
        for ks in range(2): a.I(f"ds_read_b128 {vr(QR[b]+4*ks,4)}, v5 offset:{b*2048+ks*512}")
    a.I(f"v_add_u32 v6, {LKV}, v4", f"v_add_u32 v7, {LKV+2048}, v3")
    sync_setup(a, LC, 13, 14, 12)
    a.I("s_waitcnt vmcnt(8)")
    sync_block(a, 13, 14, 12, 15)
    def rdK(buf, off): return [f"ds_read_b128 {vr(KB[buf]+4*ks,4)}, v6 offset:{off+ks*512}" for ks in range(2)]
    def rdV(buf, off): return [f"ds_read_b128 {vr(VB[buf]+4*ks,4)}, v7 offset:{off+ks*1024}" for ks in range(2)]
    a.extend(rdK(0, 0) + rdV(0, 0))
    a.I("v_lshrrev_b32 v2, 2, v1", "v_lshrrev_b32 v5, 4, v1", "v_xor_b32 v2, v2, v5", "v_and_b32 v2, 1, v2",
        "v_cmp_eq_u32 vcc, 0, v2", "v_mov_b32 v5, 0x3f803f80", "s_mov_b32 s28, 0",
        f"v_cndmask_b32 v{SEL}, 0, v5, vcc")
    for i in range(1, 4): a.I(f"v_mov_b32 v{SEL+i}, v{SEL}")
    a.I("s_waitcnt lgkmcnt(0)")
    ts(a, 3)
    for b in range(2):
        a.I(mfma32(S[b], KB[0], QR[b], "0"), mfma32(S[b], KB[0] + 4, QR[b] + 4))
    for b in range(2):
        for i in range(16): a.I(f"v_mov_b32 v{O[b]+i}, 0")
        for i in range(4): a.I(f"v_mov_b32 v{Lr[b]+i}, 0")
    for i in range(4): a.I(f"v_mov_b32 v{P+4+i}, 0", f"v_mov_b32 v{VB[1]+4+i}, 0")
    for b in range(2):
        s0 = S[b]; m = 8 + 2 * b
        a.I(f"v_max3_f32 v{m}, v{s0}, v{s0+1}, v{s0+2}")
        for i in range(3, 15, 2): a.I(f"v_max3_f32 v{m}, v{m}, v{s0+i}, v{s0+i+1}")
        a.I(f"v_max_f32 v{m}, v{m}, v{s0+15}", f"v_mov_b32 v{m+1}, v{m}")
    for b in range(2):
        m = 8 + 2 * b
        a.I(f"v_permlane32_swap_b32 v{m}, v{m+1}", f"v_max_f32 v{m}, v{m}, v{m+1}", f"v_sub_f32 v{C[b]}, 0, v{m}")
        for i in range(1, 16): a.I(f"v_mov_b32 v{C[b]+i}, v{C[b]}")
    a.I(mfma32(S[0], KB[0], QR[0], C[0]), mfma32(S[0], KB[0] + 4, QR[0] + 4))
    def tile(b, kbuf_next, vbuf, vprev, extra, dg):
        nb = 1 - b; s0 = S[b]
        ex = [f"v_exp_f32 v{s0+i}, v{s0+i}" for i in range(16)]
        cv = [f"v_cvt_pk_bf16_f32 v{P+d}, v{s0+2*d}, v{s0+2*d+1}" for d in range(8)]
        e = list(extra) + [None] * 4
        o = [mfma32(S[nb], KB[kbuf_next], QR[nb], C[nb]), e[0]] + ex[0:3]
        o += [mfma32(O[nb], VB[vprev] + 4, P + 4), e[1]] + ex[3:6]
        o += [mfma16(Lr[nb], SEL, P + 4)] + ex[6:8]
        o += [mfma32(S[nb], KB[kbuf_next] + 4, QR[nb] + 4), e[2], cv[0], cv[1], ex[8], cv[2], cv[3], ex[9], ex[10]]
        o += [mfma32(O[b], VB[vbuf], P), e[3]] + ex[11:14]
        o += [mfma16(Lr[b], SEL, P)] + (dg or []) + [ex[14], ex[15]] + cv[4:8]
        return [x for x in o if x]
    a.I("s_nop 11")
    a.L("ATT_LOOP")
    dg = kv_groups()
    def slot(j):
        return ["s_cmp_eq_u32 s28, 0", f"s_cbranch_scc1 ATT_HB{j}"] + dg[j + 2] + [f"ATT_HB{j}:"]
    for kb in range(8):
        cur = kb & 1; nxt = 1 - cur
        if kb == 7:
            a.I("s_waitcnt vmcnt(0)")
            sync_block(a, 13, 14, 12, 15)
            a.I("v_xor_b32 v6, 0x8000, v6", "v_xor_b32 v7, 0x8000, v7")
        off = ((kb + 1) & 7) * 4096
        g0, g1 = (dg[0], dg[1]) if kb == 7 else (slot(2 * kb), slot(2 * kb + 1)) if kb < 3 else (None, None)
        a.extend(tile(0, cur, cur, nxt, rdK(nxt, off) + rdV(nxt, off), g0))
        a.I("s_waitcnt lgkmcnt(2)")
        a.extend(tile(1, nxt, cur, cur, [], g1))
        if kb == 7: a.I("s_add_u32 s28, s28, 1", f"s_cmp_lg_u32 s28, {1 if 'noatt' in EXP else 8}")
        a.I("s_waitcnt lgkmcnt(0)")
    a.I("s_cbranch_scc1 ATT_LOOP")
    a.I(mfma32(O[1], VB[1] + 4, P + 4), mfma16(Lr[1], SEL, P + 4))
    ts(a, 4)
    a.I("s_setprio 2", f"s_mov_b32 s16, {f32(2.0**100)}")
    for b in range(2):
        a.I(f"v_max3_f32 v{8+b}, abs(v{O[b]}), abs(v{O[b]+1}), v{Lr[b]}", f"v_add_f32 v{10+b}, v{O[b]}, v{O[b]+1}")
    for i in range(2, 16, 2):
        for b in range(2):
            a.I(f"v_max3_f32 v{8+b}, v{8+b}, abs(v{O[b]+i}), abs(v{O[b]+i+1})", f"v_add3_u32 v2, v2, v2, v2" if False else f"v_add_f32 v{10+b}, v{10+b}, v{O[b]+i}",
                f"v_add_f32 v{86+b}, v{O[b]+i+1}, v{Lr[b]}" if i == 2 else f"v_add_f32 v{86+b}, v{86+b}, v{O[b]+i+1}")
    a.I("v_max_f32 v8, v8, v9", "v_add_f32 v10, v10, v11", "v_add_f32 v86, v86, v87", "v_add_f32 v9, v10, v86")
    a.I("v_cmp_nlt_f32 vcc, v8, s16", "v_cmp_u_f32 s[18:19], v9, v9", "s_or_b64 vcc, vcc, s[18:19]")
    if "force" in EXP: a.I("s_mov_b64 vcc, -1")
    a.I("s_cbranch_vccz ATT_FIN")
    for b in range(2):
        M = 10; AL = 11
        for i in range(16): a.I(f"v_mov_b32 v{O[b]+i}, 0")
        for i in range(4): a.I(f"v_mov_b32 v{Lr[b]+i}, 0")
        a.I(f"v_mov_b32 v{M}, {f32(-3.0e38)}", f"s_mov_b32 s29, 0")
        a.L(f"ATT_FB{b}")
        for ks in range(2):
            a.I(f"buffer_load_dwordx4 {vr(KB[0]+4*ks,4)}, v4, s[36:39], s29 offen offset:{ks*512}",
                f"buffer_load_dwordx4 {vr(VB[0]+4*ks,4)}, v3, s[36:39], s29 offen offset:{2048+ks*1024}")
        a.I("s_waitcnt vmcnt(0)")
        s0 = S[0]
        a.I(mfma32(s0, KB[0], QR[b], "0"), mfma32(s0, KB[0] + 4, QR[b] + 4))
        a.I(f"v_max3_f32 v8, v{s0}, v{s0+1}, v{M}")
        for i in range(2, 16, 2): a.I(f"v_max3_f32 v8, v8, v{s0+i}, v{s0+i+1}")
        a.I("v_mov_b32 v9, v8", "v_permlane32_swap_b32 v8, v9", "v_max_f32 v8, v8, v9",
            f"v_sub_f32 v{AL}, v{M}, v8", f"v_exp_f32 v{AL}, v{AL}", f"v_mov_b32 v{M}, v8")
        for i in range(16): a.I(f"v_sub_f32 v{s0+i}, v{s0+i}, v8")
        for i in range(16): a.I(f"v_exp_f32 v{s0+i}, v{s0+i}")
        for i in range(16): a.I(f"v_mul_f32 v{O[b]+i}, v{O[b]+i}, v{AL}")
        for i in range(4): a.I(f"v_mul_f32 v{Lr[b]+i}, v{Lr[b]+i}, v{AL}")
        for d in range(8): a.I(f"v_cvt_pk_bf16_f32 v{P+d}, v{s0+2*d}, v{s0+2*d+1}")
        a.I(mfma32(O[b], VB[0], P), mfma16(Lr[b], SEL, P), mfma32(O[b], VB[0] + 4, P + 4), mfma16(Lr[b], SEL, P + 4))
        a.I("s_add_u32 s29, s29, 4096", f"s_cmp_lg_u32 s29, {64*4096}", f"s_cbranch_scc1 ATT_FB{b}")
    a.L("ATT_FIN")
    a.I("v_mov_b32 v23, v13", "v_mov_b32 v24, v14", "v_mov_b32 v25, v12")
    a.I("v_bfe_u32 v2, v1, 4, 1", "v_lshlrev_b32 v5, 15, v2", "v_lshrrev_b32 v2, 5, v1", "v_lshl_add_u32 v5, v2, 8, v5",
        "v_and_b32 v2, 15, v1", "v_lshl_add_u32 v5, v2, 4, v5",
        "s_lshl_b32 s16, s22, 2", "s_add_u32 s16, s16, s20", "s_lshl_b32 s16, s16, 7", "s_add_u32 s16, s16, s21", "s_lshl_b32 s16, s16, 10",
        f"s_add_u32 s16, s16, {WS_O}", "s_add_u32 s17, s16, 65536")
    for b in range(2): a.I(f"v_rcp_f32 v{8+b}, v{Lr[b]}")
    for b in range(2):
        for i in range(16): a.I(f"v_mul_f32 v{O[b]+i}, v{O[b]+i}, v{8+b}")
        for d in range(8): a.I(f"v_cvt_pk_bf16_f32 v{S[b]+d}, v{O[b]+2*d}, v{O[b]+2*d+1}")
        for ks in range(2):
            a.I(f"buffer_store_dwordx4 {vr(S[b]+4*ks,4)}, v5, s[32:35], s{16+b} offen offset:{ks*512}{SC1}")
    a.I("s_branch F_J")

def down(a):
    R = 8; SLOT = 8192; NST = 56
    FW_ = [32, 64]; AR = 192; ACC = 128
    M32 = "d16" not in EXP
    a.I(f"s_setprio {int(OPT.get('bp', 0))}", "s_lshl_b32 s16, s20, 11", "v_add_u32 v9, s16, v3")
    for t in range(8): a.I(f"ds_read_b128 {vr(192+4*t,4)}, v9 offset:{(t>>1)*8192+(t&1)*1024}")
    h_stores(a)
    a.I(f"s_load_dwordx2 s[8:9], s[0:1], {KA_WD}",
        "s_and_b32 s21, s2, 1",
        "s_bfe_u32 s16, s2, 0x10001", "s_lshl_b32 s16, s16, 3", "s_bfe_u32 s17, s2, 0x30003", "s_add_u32 s22, s16, s17",
        "s_bfe_u32 s16, s2, 0x10002", "s_lshl_b32 s16, s16, 2", "s_bfe_u32 s17, s2, 0x20006", "s_add_u32 s23, s16, s17",
        "s_lshl_b32 s46, s20, 11",
        "v_lshrrev_b32 v2, 4, v1", "s_lshl_b32 s16, s20, 3", "v_add_u32 v4, s16, v2", "v_lshlrev_b32 v4, 11, v4",
        "v_bfe_u32 v5, v1, 1, 3", *(["v_lshlrev_b32 v6, 1, v2", "v_xor_b32 v6, v6, v5", "v_mov_b32 v7, v6"] if M32 else ["v_xor_b32 v6, v2, v5", "v_xor_b32 v7, 4, v6"]),
        "v_and_b32 v2, 1, v1", "v_lshl_add_u32 v4, v2, 4, v4", "s_lshl_b32 s16, s23, 8", "v_add_u32 v4, s16, v4",
        f"v_add_u32 v5, {4*2048-1024}, v4",
        "v_lshl_add_u32 v4, v6, 5, v4", "v_lshl_add_u32 v5, v7, 5, v5",
        "s_mul_i32 s48, s21, %d" % (1792 * 2048), "s_waitcnt lgkmcnt(0)")
    srd(a, 24, 8, 3584 * 1024 * 2)
    def dma_w(st):
        return [f"s_add_u32 m0, s46, {(st % R) * SLOT}", "s_add_u32 s49, s48, 0",
                "buffer_load_dwordx4 v4, s[24:27], s49 offen lds", "s_add_u32 s48, s48, 65536",
                "buffer_load_dwordx4 v5, s[24:27], s49 offen offset:1024 lds"]
    def ld_a(st):
        r = AR + (st % R) * 8
        if M32: return [f"buffer_load_dwordx4 {vr(r,4)}, v10, s[32:35], s44 offen", f"buffer_load_dwordx4 {vr(r+4,4)}, v10, s[32:35], s44 offen offset:512",
                        "s_add_u32 s44, s44, 1024"]
        return [f"buffer_load_dwordx4 {vr(r,4)}, v3, s[32:35], s44 offen", f"buffer_load_dwordx4 {vr(r+4,4)}, v10, s[32:35], s44 offen",
                "s_add_u32 s44, s44, 1024"]
    L = Log()
    NW = int(OPT.get("nw", 2))
    for j in range(NW): a.extend(L.note(dma_w(j), ("w", j)))
    a.I(f"s_waitcnt vmcnt({2*NW})")
    ts(a, 9)
    set_flag(a, 60)
    for j in range(NW, R - 1): a.extend(L.note(dma_w(j), ("w", j)))
    a.I("s_lshl_b32 s16, s22, 3", "s_lshl_b32 s17, s20, 1", "s_add_u32 s16, s16, s17", "s_mul_i32 s16, s16, 112",
        "s_mul_i32 s17, s21, 56", "s_add_u32 s16, s16, s17", "s_lshl_b32 s44, s16, 10", f"s_add_u32 s44, s44, {WS_H}",
        )
    if M32:
        a.I("v_bfe_u32 v2, v1, 4, 1", f"v_mul_u32_u24 v10, {112*1024}, v2", "v_lshrrev_b32 v8, 5, v1", "v_lshl_add_u32 v10, v8, 8, v10",
            "v_and_b32 v9, 15, v1", "v_lshl_add_u32 v10, v9, 4, v10",
            "v_lshlrev_b32 v12, 10, v8", "v_bfe_u32 v9, v1, 2, 2", "v_lshl_add_u32 v12, v9, 8, v12",
            "v_lshlrev_b32 v9, 1, v9", "v_xor_b32 v9, v9, v2", "v_lshl_add_u32 v12, v9, 5, v12",
            "v_and_b32 v9, 3, v1", "v_lshl_add_u32 v12, v9, 3, v12")
        for u in range(1, 4): a.I(f"v_xor_b32 v{12+u}, {64*u}, v12")
    else:
        a.I(f"v_add_u32 v10, {112*1024}, v3",
            "v_lshrrev_b32 v2, 4, v1", "v_lshlrev_b32 v12, 10, v2", "v_bfe_u32 v9, v1, 2, 2", "v_lshl_add_u32 v12, v9, 8, v12",
            "v_bfe_u32 v8, v1, 2, 3", "v_lshl_add_u32 v12, v8, 5, v12", "v_and_b32 v9, 3, v1", "v_lshl_add_u32 v12, v9, 3, v12")
        for u in range(1, 8): a.I(f"v_xor_b32 v{12+u}, {32*u}, v12")
    NT = 0
    if "wt" in EXP.split("_"):
        a.I("v_lshrrev_b32 v2, 1, v1", "v_lshlrev_b32 v24, 11, v2", "v_and_b32 v2, 1, v1", "v_lshl_add_u32 v24, v2, 7, v24",
            "s_and_b32 s16, s22, 7", "s_lshl_b32 s16, s16, 2", "s_add_u32 s16, s16, s20", "s_mul_i32 s16, s16, %d" % (56 * 2048),
            "s_mul_i32 s17, s21, %d" % (1792 * 2048), "s_add_u32 s16, s16, s17", "s_lshl_b32 s17, s23, 8", "s_add_u32 s16, s16, s17",
            f"s_add_u32 s17, s16, {24*2048}",
            "buffer_load_dword v25, v24, s[24:27], s16 offen", "buffer_load_dword v26, v24, s[24:27], s17 offen")
        NT = 2
    sync_setup(a, LC + 1024, 20, 21, 22)
    a.I("v_lshrrev_b32 v2, 4, v1", "v_bfe_u32 v8, v1, 2, 2", "v_lshl_add_u32 v9, v8, 3, v2", "v_lshlrev_b32 v9, 5, v9",
        "v_and_b32 v2, 3, v1", "v_lshl_add_u32 v9, v2, 2, v9",
        "s_lshr_b32 s18, s22, 1", "s_lshl_b32 s18, s18, 5", "s_lshl_b32 s16, s21, 2", "s_add_u32 s18, s18, s16", "s_lshl_b32 s18, s18, 5",
        f"s_add_u32 s18, s18, {WS_FL+FL_H+16}")
    a.extend(poll(18, 64, 9))
    ts(a, 3)
    L.l = []
    for j in range(R - 1): a.extend(L.note(ld_a(j), ("a", j)))
    def need(k):
        last = max([i for i, t in enumerate(L.l) if (t[0] == "a" and t[1] <= k) or (t[0] == "w" and t[1] <= k + 2)], default=-1)
        return len(L.l) - 1 - last
    def reads(st):
        if M32: return [f"ds_read_b64_tr_b16 {vr(FW_[st&1]+(ks*4+nb)*4+2*rd,2)}, v{12+nb} offset:{(st % R)*SLOT+ks*2048+rd*4096}"
                        for ks in range(2) for nb in range(4) for rd in range(2)]
        return [f"ds_read_b64_tr_b16 {vr(FW_[st&1]+u*4+2*rd,2)}, v{12+u} offset:{(st % R)*SLOT+rd*4096}" for u in range(8) for rd in range(2)]
    sync_block(a, 20, 21, 22, 23)
    a.extend(reads(0))
    a.I("ds_read_b32 v23, v21", f"s_setprio {int(OPT.get('dp', 0))}")
    def body(k):
        if M32: m = [mfma32(ACC + nb * 16, FW_[k & 1] + (ks * 4 + nb) * 4, AR + (k % R) * 8 + ks * 4, "0" if k + ks == 0 else None) for ks in range(2) for nb in range(4)]
        else: m = [mfma16(ACC + (t * 8 + u) * 4, FW_[k & 1] + u * 4, AR + (k % R) * 8 + t * 4, "0" if k == 0 else None) for u in range(8) for t in range(2)]
        if k + 1 >= NST: return [f"s_waitcnt vmcnt({need(k)}) lgkmcnt(0)"] + m
        h0, h1 = (1, 7) if M32 else (2, 14)
        o = [f"s_waitcnt vmcnt({need(k)}) lgkmcnt(0)", "v_cmp_gt_u32 vcc, s53, v23", "ds_add_u32 v20, v22", "s_add_u32 s53, s53, 1"]
        if PT: o += [f"s_setprio {1 if (k % R) < PT else 0}"]
        o += m[:h0] + [f"s_nop {2 - h0 - (1 if PT else 0)}"] * (2 - h0 - (1 if PT else 0) >= 0) + ["s_cbranch_vccnz @SPIN", "@CONT:"]
        dm = (L.note(dma_w(k - 1 + R), ("w", k - 1 + R)) + L.note(ld_a(k - 1 + R), ("a", k - 1 + R))) if k - 1 + R < NST else []
        if "dnodma" in EXP: dm = []
        fill = mixmem(reads(k + 1), dm, False)
        FR = int(OPT.get("fr", 5 if M32 else 10))
        rd = reads(k + 1) + ["ds_read_b32 v23, v21"]
        gs = groups_of(dm) if dm else []
        o += interleave(m[h0:FR], rd)
        rest = m[FR:]
        for i, x in enumerate(rest):
            o += [x] + [y for g in gs[(len(gs) * i) // len(rest):(len(gs) * (i + 1)) // len(rest)] for y in g]
        return o
    PT = int(OPT.get("pt", 0))
    bodies = [body(k) for k in range(NST)]
    U = R
    for head in range(0, R + U + 1):
        nl = (NST - R - head) // U
        if all(bodies[k] == bodies[head + (k - head) % U] for k in range(head, head + nl * U)): break
    spins = []
    def emit(k):
        spins.append(k)
        a.extend([x.replace("@SPIN", f"DN_SP{k}").replace("@CONT", f"DN_CT{k}") for x in bodies[k]])
    for k in range(head): emit(k)
    a.I(f"s_mov_b32 s51, {nl}")
    a.L("DN_LOOP")
    for k in range(head, head + U): emit(k)
    a.I("s_sub_u32 s51, s51, 1", "s_cmp_lg_u32 s51, 0", "s_cbranch_scc1 DN_LOOP")
    for k in range(head + nl * U, NST): emit(k)
    ts(a, 4)
    a.I("v_mov_b32 v24, v21", "v_mov_b32 v25, v22", "v_mov_b32 v23, v20")
    a.I("s_setprio 2", "s_lshl_b32 s16, s22, 3", "s_lshl_b32 s17, s20, 1", "s_add_u32 s16, s16, s17", "s_lshl_b32 s16, s16, 5",
        "s_lshl_b32 s17, s23, 2", "s_add_u32 s16, s16, s17",
        "s_lshl_b32 s16, s16, 10", "s_lshl_b32 s17, s21, 22", "s_add_u32 s16, s16, s17", f"s_add_u32 s16, s16, {WS_P}")
    if M32:
        a.I("v_bfe_u32 v2, v1, 4, 1", "v_lshlrev_b32 v5, 15, v2", "v_lshrrev_b32 v2, 5, v1", "v_lshl_add_u32 v5, v2, 8, v5",
            "v_and_b32 v2, 15, v1", "v_lshl_add_u32 v5, v2, 4, v5")
        for nb in range(4):
            g = ACC + nb * 16
            for e in range(2):
                pk = 192 + (nb * 2 + e) * 4
                a.I(f"v_cvt_pk_bf16_f32 v{pk}, v{g+4*e}, v{g+4*e+1}", f"v_cvt_pk_bf16_f32 v{pk+1}, v{g+4*e+2}, v{g+4*e+3}",
                    f"v_cvt_pk_bf16_f32 v{pk+2}, v{g+8+4*e}, v{g+8+4*e+1}", f"v_cvt_pk_bf16_f32 v{pk+3}, v{g+8+4*e+2}, v{g+8+4*e+3}",
                    f"buffer_store_dwordx4 {vr(pk,4)}, v5, s[32:35], s16 offen offset:{nb*1024+e*512}{SC1}")
    else:
        for t in range(2):
            for c in range(4):
                g = ACC + (t * 8 + c * 2) * 4; pk = 192 + (t * 4 + c) * 4
                for d in range(4): a.I(f"v_cvt_pk_bf16_f32 v{pk+d}, v{g+2*d}, v{g+2*d+1}")
                a.I(f"buffer_store_dwordx4 {vr(pk,4)}, v3, s[32:35], s16 offen offset:{c*1024}{SC1}")
            a.I("s_add_u32 s16, s16, 32768")
    a.I("s_branch F_J")
    for k in spins:
        if k + 1 >= NST: continue
        a.L(f"DN_SP{k}")
        a.I("ds_read_b32 v23, v21", "s_waitcnt lgkmcnt(0)", "v_add_u32 v23, 1, v23", "v_cmp_gt_u32 vcc, s53, v23",
            f"s_cbranch_vccnz DN_SP{k}", f"s_branch DN_CT{k}")

def wo(a):
    OA = 128; FW = [32, 48]; ACC = 64; XR = 80; P0 = 88; P1 = 96
    NE = 80
    a.I("s_mov_b32 s20, s54",
        "s_bfe_u32 s16, s2, 0x20001", "s_lshl_b32 s16, s16, 2", "s_bfe_u32 s17, s2, 0x20003", "s_add_u32 s22, s16, s17",
        "s_and_b32 s16, s2, 1", "s_lshl_b32 s16, s16, 3", "s_lshr_b32 s17, s2, 5", "s_add_u32 s23, s16, s17",
        "v_lshrrev_b32 v2, 3, v1", "v_lshlrev_b32 v4, 11, v2",
        "v_lshrrev_b32 v2, 4, v1", "v_bfe_u32 v5, v1, 1, 2", "v_xor_b32 v2, v2, v5", "v_lshl_add_u32 v4, v2, 5, v4",
        "v_and_b32 v2, 1, v1", "v_lshl_add_u32 v4, v2, 4, v4", "s_lshl_b32 s16, s23, 7", "v_add_u32 v4, s16, v4")
    for i in range(1, 4): a.I(f"v_add_u32 v{4+i}, {i*(8*2048-1024)}, v4")
    a.I("s_lshl_b32 s16, s22, 3", "s_add_u32 s16, s16, s20", "s_lshl_b32 s44, s16, 15",
        "s_lshl_b32 s17, s23, 7", "s_add_u32 s42, s44, s17",
        "s_lshl_b32 s17, s23, 11", "s_add_u32 s43, s44, s17", f"s_add_u32 s43, s43, {WS_P}",
        f"s_add_u32 s44, s44, {WS_O}", "s_waitcnt lgkmcnt(0)")
    srd(a, 24, 8, 1024 * 1024 * 2); srd(a, 28, 10, 2048 * 2048); srd(a, 36, 12, 2048 * 2048)
    def w_blocks(first, n, lds):
        o = []
        for j in range(0, n, 4):
            o += [f"s_add_u32 m0, s{lds}, {j*1024}", f"s_add_u32 s16, s{first}, {j*8*2048}"]
            o += [f"buffer_load_dwordx4 v{4+i}, s[24:27], s16 offen offset:{i*1024} lds" for i in range(4)]
        return o
    D = int(OPT.get("od", 12))
    def o_load(kb):
        return [f"buffer_load_dwordx4 {vr(OA+4*kb,4)}, v3, s[32:35], s44 offen offset:{(kb&3)*1024}"] + (["s_add_u32 s44, s44, 4096"] if kb & 3 == 3 else [])
    xsel(a, 21)
    a.I("v_lshrrev_b32 v2, 5, v1", "v_lshlrev_b32 v104, 11, v2", "v_bfe_u32 v9, v1, 2, 3", "v_lshl_add_u32 v104, v9, 7, v104",
        "v_lshrrev_b32 v9, 1, v9", "v_lshl_add_u32 v104, v9, 5, v104", "v_and_b32 v9, 3, v1", "v_lshl_add_u32 v104, v9, 3, v104")
    for u in range(1, 4): a.I(f"v_xor_b32 v{104+u}, {32*u}, v104")
    for u in range(4): a.I(f"v_add_u32 v{12+u}, {LKV}, v{104+u}", f"v_add_u32 v{16+u}, {LKV+65536}, v{104+u}")
    a.I("s_lshr_b32 s16, s22, 3", "s_lshl_b32 s16, s16, 1", "s_lshr_b32 s17, s23, 3", "s_lshl_b32 s17, s17, 2", "s_add_u32 s16, s16, s17",
        "s_and_b32 s17, s22, 7", "s_lshl_b32 s17, s17, 3", "s_add_u32 s16, s16, s17",
        "s_bfe_u32 s17, s23, 0x20001", "s_lshl_b32 s17, s17, 6", "s_add_u32 s16, s16, s17", "s_lshl_b32 s50, s16, 5",
        "s_lshr_b32 s16, s20, 1", "s_lshl_b32 s16, s16, 2", "s_add_u32 s50, s50, s16", f"s_add_u32 s50, s50, {WS_FL+FL_O+16}",
        "v_lshlrev_b32 v22, 5, v1", "s_mov_b32 s19, 0xffff0000")
    a.I("s_cmp_ge_u32 s20, 4", "s_cbranch_scc1 WO_B", "s_waitcnt vmcnt(0)")
    set_flag(a, 60)
    sync_block(a, 23, 24, 25, 26)
    a.I(f"s_mul_i32 s48, s20, {NE//4*8*2048}", f"s_mul_i32 s47, s20, {NE//4*1024}", f"s_add_u32 s47, s47, {LKV}")
    a.extend(w_blocks(48, NE // 4, 47))
    a.I("v_and_b32 v2, 31, v1", "v_lshlrev_b32 v30, 5, v2", "v_lshrrev_b32 v2, 5, v1", "v_lshl_add_u32 v30, v2, 2, v30",
        "s_lshr_b32 s16, s22, 1", "s_lshl_b32 s18, s16, 10", "s_and_b32 s16, s22, 1", "s_lshl_b32 s16, s16, 3",
        "s_add_u32 s18, s18, s16", f"s_add_u32 s18, s18, {WS_FL+FL_O}")
    a.extend(poll(18, 64, 30))
    ts(a, 5)
    for kb in range(D): a.extend(o_load(kb))
    sync_block(a, 23, 24, 25, 26)
    a.I("s_branch WO_J")
    a.L("WO_B")
    sync_block(a, 23, 24, 25, 26)
    NA = (1 if "noatt" in EXP else 8) + 3
    a.I("v_subrev_u32 v24, 1024, v24", f"s_mov_b32 s53, {NA}")
    a.L("WO_BW")
    a.I("ds_read_b32 v26, v24", "s_waitcnt lgkmcnt(0)", "v_cmp_gt_u32 vcc, s53, v26", "s_cbranch_vccz WO_BG", "s_sleep 1", "s_branch WO_BW")
    a.L("WO_BG")
    ts(a, 5)
    for kb in range(D): a.extend(o_load(kb))
    a.I("s_sub_u32 s16, s20, 4", f"s_mul_i32 s48, s16, {12*8*2048}", f"s_add_u32 s48, s48, {NE*8*2048}", f"s_mul_i32 s47, s16, {12*1024}")
    a.extend(w_blocks(48, 12, 47))
    a.L("WO_J")
    ts(a, 6)
    a.I("s_setprio 0")
    def reads(kb):
        vb, so = (12, kb * 4096) if kb < 16 else (16, (kb - 16) * 4096) if kb < 20 else (104, (kb - 20) * 4096)
        return [f"ds_read_b64_tr_b16 {vr(FW[kb&1]+u*4+2*rd,2)}, v{vb+u} offset:{so+rd*1024}" for u in range(4) for rd in range(2)]
    a.extend(reads(0))
    L = Log(); L.l = list(range(D))
    for kb in range(32):
        a.I(f"s_waitcnt vmcnt({L.cnt(kb)}) lgkmcnt(0)")
        if "wost" in EXP and kb in (0, 8, 20, 27): ts(a, {0: 9, 8: 10, 20: 11, 27: 12}[kb])
        if kb == 1: set_flag(a, 60); L.note(["buffer"], None)
        if kb == 19: a.I("s_barrier")
        if kb == 20:
            a.extend(L.note(lanes(2) + [poll_load(50, 22, 23), "s_mov_b64 exec, -1",
                            f"buffer_load_dwordx4 {vr(XR,4)}, v21, s[28:31], s42 offen", f"buffer_load_dwordx4 {vr(XR+4,4)}, v21, s[28:31], s42 offen offset:64"], None))
        if kb == 25:
            a.extend(poll(50, 2, 22, 23, preloaded=2))
            a.extend(L.note([f"s_add_u32 s17, s43, {4<<20}",
                f"buffer_load_dwordx4 {vr(P0,4)}, v3, s[32:35], s43 offen", f"buffer_load_dwordx4 {vr(P0+4,4)}, v3, s[32:35], s43 offen offset:1024",
                f"buffer_load_dwordx4 {vr(P1,4)}, v3, s[32:35], s17 offen", f"buffer_load_dwordx4 {vr(P1+4,4)}, v3, s[32:35], s17 offen offset:1024"], None))
        m = [mfma16(ACC + u * 4, FW[kb & 1] + u * 4, OA + 4 * kb, "0" if kb == 0 else None) for u in range(4)]
        a.extend(interleave(m, reads(kb + 1) if kb < 31 else [], [3, 3, 2, 0]))
        if kb + D < 32: a.extend(L.note(o_load(kb + D), kb + D))
    a.I("s_waitcnt vmcnt(0)")
    for c in range(2):
        a.I(f"v_permlane16_swap_b32 v{XR+4*c}, v{XR+4*c+2}", f"v_permlane16_swap_b32 v{XR+4*c+1}, v{XR+4*c+3}")
    E = [(c, d, ACC + c * 8 + 2 * d, 136 + 6 * (c * 4 + d)) for c in range(2) for d in range(4)]
    for t, d, g, r in E:
        a.I(f"v_lshlrev_b32 v{r}, 16, v{P0+4*t+d}", f"v_and_b32 v{r+1}, s19, v{P0+4*t+d}",
            f"v_lshlrev_b32 v{r+2}, 16, v{P1+4*t+d}", f"v_and_b32 v{r+3}, s19, v{P1+4*t+d}",
            f"v_lshlrev_b32 v{r+4}, 16, v{XR+4*t+d}", f"v_and_b32 v{r+5}, s19, v{XR+4*t+d}")
    for t, d, g, r in E: a.I(f"v_add_f32 v{r}, v{r}, v{r+2}", f"v_add_f32 v{r+1}, v{r+1}, v{r+3}", f"v_add_f32 v{g}, v{g}, v{r+4}", f"v_add_f32 v{g+1}, v{g+1}, v{r+5}")
    for t, d, g, r in E: a.I(f"v_add_f32 v{g}, v{g}, v{r}", f"v_add_f32 v{g+1}, v{g+1}, v{r+1}")
    for t, d, g, r in E: a.I(f"v_cvt_pk_bf16_f32 v{32+4*t+d}, v{g}, v{g+1}")
    for c in range(2):
        pk = 32 + 4 * c
        a.I(f"v_permlane16_swap_b32 v{pk}, v{pk+2}", f"v_permlane16_swap_b32 v{pk+1}, v{pk+3}",
            f"buffer_store_dwordx4 {vr(pk,4)}, v21, s[36:39], s42 offen offset:{c*64}")

def fused():
    a = Asm()
    ts(a, 0)
    a.I("s_cmp_ge_u32 s2, 256", "s_cbranch_scc1 F_END",
        f"s_load_dwordx8 s[4:11], s[0:1], {KA_X}", f"s_load_dwordx4 s[40:43], s[0:1], {KA_WG}",
        f"s_load_dwordx4 s[12:15], s[0:1], {KA_DBG}", "s_memrealtime s[48:49]",
        "v_lshrrev_b32 v2, 6, v0", "v_and_b32 v1, 63, v0", "v_readfirstlane_b32 s20, v2", "v_lshlrev_b32 v3, 4, v1",
        "s_lshr_b32 s21, s2, 4", "s_lshl_b32 s21, s21, 3", "s_and_b32 s16, s2, 7", "s_add_u32 s45, s21, s16", "s_lshl_b32 s23, s45, 15",
        "s_mov_b32 s54, s20", "s_lshl_b32 s16, s20, 12", "s_add_u32 s19, s23, s16", "s_waitcnt lgkmcnt(0)")
    srd(a, 32, 14, WS_SIZE); srd(a, 56, 12, 256)
    a.I("s_or_b32 s16, s2, s20", "s_cmp_lg_u32 s16, 0", "s_cbranch_scc1 F_NT",
        "s_or_b32 s16, s48, 1", "v_mov_b32 v2, s16", "v_mov_b32 v8, 0", "s_mov_b64 exec, 1",
        "buffer_store_dword v2, v8, s[56:59], 0 offen sc1", "s_mov_b64 exec, -1")
    a.L("F_NT")
    phase0(a)
    ts(a, 8)
    if "p0st" in EXP:
        tl_dump(a, 13); a.I("s_endpgm")
    g1(a)
    a.I("s_and_b32 s20, s54, 3", "s_cmp_ge_u32 s54, 4", "s_cbranch_scc1 F_B")
    attention(a)
    a.L("F_B")
    down(a)
    a.L("F_J")
    a.I(f"s_load_dwordx2 s[8:9], s[0:1], {KA_WO}", f"s_load_dwordx2 s[10:11], s[0:1], {KA_X}", f"s_load_dwordx2 s[12:13], s[0:1], {KA_OUT}")
    wave_flag(a, 60, FL_O)
    wo(a)
    tl_dump(a, 13)
    a.L("F_END")
    a.I("s_endpgm")
    return a, dict(grid=256, block=512, lds=163840, vgpr=256)

if __name__ == "__main__":
    path = sys.argv[1] if len(sys.argv) > 1 else "cdna_kernels/" + NAME + ".s"
    opts = dict(o.split("=") for o in sys.argv[2:])
    OPT = opts; EXP = opts.get("exp", ""); TL = bool(int(opts.get("tl", 0)))
    G.VERB = bool(int(opts.get("verb", 0)))
    G.build([(NAME if int(opts.get("single", 0)) else "fused8", fused())], path)
```

```python
import sys
from asmlib import *
import gen as G
from gen import (NAME, KA_X, KA_WQ, KA_WK, KA_WV, KA_WO, KA_WG, KA_WU, KA_WD, KA_OUT, KA_DBG, KA_WS,
                 WS_XN, WS_KV, WS_O, WS_H, WS_P, WS_SIZE, f32, vr, srd, mfma32, mfma16, QSCALE, mix2, front_pattern)
WS_FL = 0x0480000
FL_KV, FL_X, FL_H, FL_O, FL_P = 0, 4096, 12288, 20480, 24576
WS_TL = 0x3F10000
LKV = 65536
LQ = 131072
LC = 147456
HP = 224
TL = False; EXP = ""; OPT = {}
SC1 = " sc1"

def ts(a, i):
    if TL: a.I(f"s_mem{'' if 'cyc' in EXP else 'real'}time s[{62+2*i}:{63+2*i}]")
def tl_dump(a, n):
    if not TL: return
    a.I("s_waitcnt vmcnt(0) lgkmcnt(0)")
    ts(a, 7)
    a.I("s_waitcnt lgkmcnt(0)", "s_lshl_b32 s90, s2, 3", "s_add_u32 s90, s90, s54", "s_lshl_b32 s90, s90, 6",
        f"s_add_u32 s90, s90, {WS_TL}", "v_mov_b32 v1, 0", "s_mov_b64 exec, 1")
    for i in range(n):
        a.I(f"v_mov_b32 v2, s{62+2*i}", f"buffer_store_dword v2, v1, s[32:35], s90 offen offset:{4*i}")

_n = [0]
def lanes(n): return [f"s_mov_b32 exec_lo, {((1 << n) - 1) & 0xffffffff:#x}", f"s_mov_b32 exec_hi, {((1 << n) - 1) >> 32:#x}"] if n < 64 else []
def poll_load(soff, voff, dst, wide=False):
    return f"buffer_load_dword{'x4' if wide else ''} {vr(dst, 4 if wide else 1)}, v{voff}, s[32:35], s{soff} offen sc1"
def poll_test(dst, wide):
    if wide:
        return [f"v_xor_b32 v{dst+i}, s55, v{dst+i}" for i in range(4)] + \
               [f"v_or3_b32 v{dst}, v{dst}, v{dst+1}, v{dst+2}", f"v_or_b32 v{dst}, v{dst}, v{dst+3}", f"v_cmp_ne_u32 vcc, 0, v{dst}"]
    return [f"v_cmp_ne_u32 vcc, s55, v{dst}"]
def poll(soff, n, voff, dst=2, wide=False, preloaded=None):
    _n[0] += 1; lab = f"POLL{_n[0]}"
    o = lanes(n)
    if preloaded is not None:
        o += [f"s_waitcnt vmcnt({preloaded})"] + poll_test(dst, wide) + [f"s_cbranch_vccz {lab}_D"]
    o += ["s_mov_b32 s17, 0x40000", lab + ":", poll_load(soff, voff, dst, wide), "s_waitcnt vmcnt(0)"] + poll_test(dst, wide)
    o += [f"s_cbranch_vccz {lab}_D", "s_sleep 2", "s_sub_u32 s17, s17, 1", "s_cmp_lg_u32 s17, 0", f"s_cbranch_scc1 {lab}", lab + "_D:"]
    if n < 64: o += ["s_mov_b64 exec, -1"]
    return o
def set_flag(a, soff):
    a.I("v_mov_b32 v2, s55", "v_mov_b32 v8, 0", "s_mov_b64 exec, 1",
        f"buffer_store_dword v2, v8, s[32:35], s{soff} offen sc1", "s_mov_b64 exec, -1")
def wave_flag(a, reg, base):
    a.I(f"s_lshl_b32 s{reg}, s2, 3", f"s_add_u32 s{reg}, s{reg}, s54", f"s_lshl_b32 s{reg}, s{reg}, 2", f"s_add_u32 s{reg}, s{reg}, {WS_FL+base}")
def sync_setup(a, base, own, chk, one):
    a.I("s_lshl_b32 s16, s20, 8", f"s_add_u32 s16, s16, {base}", f"v_lshl_add_u32 v{own}, v1, 2, s16",
        "v_and_b32 v2, 3, v1", f"v_lshlrev_b32 v{chk}, 8, v2", f"v_lshl_add_u32 v{chk}, v1, 2, v{chk}", f"v_add_u32 v{chk}, {base}, v{chk}",
        f"v_mov_b32 v{one}, 1", "s_mov_b32 s53, 0")
def sync_block(a, own, chk, one, tmp):
    _n[0] += 1; lab = f"SY{_n[0]}"
    a.I(f"ds_add_u32 v{own}, v{one}", "s_add_u32 s53, s53, 1")
    a.L(lab)
    a.I(f"ds_read_b32 v{tmp}, v{chk}", "s_waitcnt lgkmcnt(0)", f"v_cmp_gt_u32 vcc, s53, v{tmp}", f"s_cbranch_vccnz {lab}")
def xsel(a, dst):
    a.I("v_and_b32 v2, 15, v1", f"v_lshlrev_b32 v{dst}, 11, v2", "v_bfe_u32 v2, v1, 4, 1", f"v_lshl_add_u32 v{dst}, v2, 5, v{dst}",
        "v_lshrrev_b32 v2, 5, v1", f"v_lshl_add_u32 v{dst}, v2, 4, v{dst}")
def is_vm(x): return x.startswith("buffer") or x.startswith("global")
def groups_of(dm):
    gs = []; cur = []
    for x in dm:
        cur.append(x)
        if is_vm(x): gs.append(cur); cur = []
    gs[-1] += cur
    return gs
def mixmem(rd, dm, dma_first=True):
    if not rd or not dm: return rd + dm
    gs = groups_of(dm)
    pre = [x for x in rd if x.startswith("v_")]; ds = [x for x in rd if x.startswith("ds_")]; post = [x for x in rd if x.startswith("s_")]
    o = list(pre); n = len(gs); per = len(ds) // n
    for g in range(n):
        part = ds[g * per:(g + 1) * per if g < n - 1 else len(ds)]
        o += (gs[g] + part) if dma_first else (part + gs[g])
    return o + post
class Log:
    def __init__(self): self.l = []
    def note(self, instrs, st): self.l += [st] * sum(map(is_vm, instrs)); return instrs
    def cnt(self, st):
        last = max([i for i, s_ in enumerate(self.l) if s_ is not None and s_ <= st], default=-1)
        return len(self.l) - 1 - last

WA0, WA1, WST = 116, 118, 120
def w_dma(slotreg):
    return [f"s_add_u32 m0, s{slotreg}, s46", "s_nop 0",
            f"global_load_lds_dwordx4 {vr(WA0,2)}, off", f"global_load_lds_dwordx4 {vr(WA1,2)}, off offset:1024",
            f"v_lshl_add_u64 {vr(WA0,2)}, {vr(WST,2)}, 0, {vr(WA0,2)}", f"v_lshl_add_u64 {vr(WA1,2)}, {vr(WST,2)}, 0, {vr(WA1,2)}"]

def phase0(a):
    LW, LX, LR = 49152, 114688, 147456
    srd(a, 24, 4, 2048 * 2048)
    for i in range(4): a.I(f"buffer_load_dwordx4 {vr(8+4*i,4)}, v3, s[24:27], s19 offen offset:{i*1024}")
    a.I("v_mov_b32 v7, 0", "buffer_load_dword v6, v7, s[56:59], 0 offen sc1")
    a.I("s_bfe_u32 s22, s2, 0x10003", "s_cmp_eq_u32 s22, 0", "s_cselect_b64 s[12:13], s[8:9], s[10:11]")
    srd(a, 28, 12, 65536)
    a.I("s_lshl_b32 s17, s20, 13")
    a.I("s_and_b32 s16, s2, 7", "s_lshl_b32 s16, s16, 2", "s_bfe_u32 s21, s2, 0x20003", "s_add_u32 s21, s21, s16",
        "s_and_b32 s23, s20, 3", "s_cmp_lt_u32 s20, 4", "s_cselect_b64 s[12:13], s[42:43], s[40:41]", "s_cselect_b32 s18, 32, 0",
        "s_cselect_b32 s46, 8192, 0", "s_lshl_b32 s16, s23, 11", "s_add_u32 s46, s46, s16", "s_add_u32 s46, s46, 16384",
        "v_lshrrev_b32 v2, 4, v1", "s_lshl_b32 s16, s23, 3", "v_add_u32 v4, s16, v2",
        "s_and_b32 s16, s23, 1", "s_lshl_b32 s16, s16, 2", "v_add_u32 v2, s16, v2", "v_bfe_u32 v5, v1, 1, 3", "v_xor_b32 v2, v2, v5",
        "v_cmp_eq_u32 vcc, 7, v2", "v_mov_b32 v5, 7168", "v_mov_b32 v112, 2048", f"v_cndmask_b32 v{WST}, v5, v112, vcc",
        f"v_mul_lo_u32 v4, v4, v{WST}",
        "s_mul_i32 s16, s21, 224", "v_lshl_add_u32 v5, v2, 5, s16", "s_lshl_b32 s16, s21, 6", "s_add_u32 s16, s16, s18",
        "v_mov_b32 v112, s16", "v_cndmask_b32 v5, v5, v112, vcc", "v_add_u32 v4, v4, v5",
        "v_and_b32 v2, 1, v1", "v_lshl_add_u32 v4, v2, 4, v4",
        "v_mov_b32 v5, s12", "v_mov_b32 v112, s6", f"v_cndmask_b32 v{WA0}, v5, v112, vcc",
        "v_mov_b32 v5, s13", "v_mov_b32 v112, s7", f"v_cndmask_b32 v{WA0+1}, v5, v112, vcc",
        "v_mov_b32 v5, 0", f"v_lshl_add_u64 {vr(WA0,2)}, v[4:5], 0, {vr(WA0,2)}",
        f"v_lshlrev_b32 v4, 2, v{WST}", "v_add_u32 v4, -1024, v4" if False else "v_subrev_u32 v4, 1024, v4",
        f"v_lshl_add_u64 {vr(WA1,2)}, v[4:5], 0, {vr(WA0,2)}",
        f"v_lshlrev_b32 v{WST}, 5, v{WST}", f"v_mov_b32 v{WST+1}, 0", "s_mov_b32 s47, 0")
    srd(a, 24, 12, 1024 * 3584 * 2)
    a.I("v_lshrrev_b32 v2, 1, v1", "s_lshl_b32 s16, s23, 5", "s_add_u32 s16, s16, 32", "v_add_u32 v2, s16, v2",
        "v_mul_u32_u24 v112, 7168, v2", "v_and_b32 v2, 1, v1", "v_mul_u32_u24 v2, 208, v2", "v_add_u32 v112, v112, v2",
        "s_mul_i32 s44, s21, 224")
    a.I("s_mov_b32 s21, s45", "s_lshl_b32 s23, s21, 15", "s_mov_b32 s36, 0xffff0000", "s_waitcnt vmcnt(1)")
    ts(a, 9)
    late = [f"s_add_u32 m0, s17, {LW}", "s_add_u32 s18, s17, 4096"]
    late += [f"buffer_load_dwordx4 v3, s[28:31], s17 offen offset:{i*1024} lds" for i in range(4)]
    late += [f"s_add_u32 m0, s18, {LW}", "s_nop 0"]
    late += [f"buffer_load_dwordx4 v3, s[28:31], s18 offen offset:{i*1024} lds" for i in range(4)]
    late += w_dma(47) + ["buffer_load_dword v113, v112, s[24:27], s44 offen"]
    mark = len(a.items)
    for r in range(2):
        for d in range(8):
            src = 8 + 8 * r + d
            a.I(f"v_lshlrev_b32 v{32+16*r+2*d}, 16, v{src}", f"v_and_b32 v{33+16*r+2*d}, s36, v{src}")
    def tree2(bases, sq):
        T_ = [(24 + i, bases[i], 64 + 8 * i) for i in range(2)]
        for dst, base, t in T_:
            for i in range(8):
                a.I(f"v_mul_f32 v{t+i}, v{base+2*i}, v{base+2*i}" if sq else f"v_add_f32 v{t+i}, v{base+2*i}, v{base+2*i+1}")
        if sq:
            for dst, base, t in T_:
                for i in range(8): a.I(f"v_fmac_f32 v{t+i}, v{base+2*i+1}, v{base+2*i+1}")
        for s_ in (4, 2):
            for dst, base, t in T_:
                for i in range(s_): a.I(f"v_add_f32 v{t+i}, v{t+i}, v{t+i+s_}")
        for dst, base, t in T_: a.I(f"v_add_f32 v{dst}, v{t}, v{t+1}")
    def wavered(rs, ss):
        for mod in ("row_shr:1 row_mask:0xf bank_mask:0xf bound_ctrl:0", "row_shr:2 row_mask:0xf bank_mask:0xf bound_ctrl:0",
                    "row_shr:4 row_mask:0xf bank_mask:0xf bound_ctrl:0", "row_shr:8 row_mask:0xf bank_mask:0xf bound_ctrl:0",
                    "row_bcast:15 row_mask:0xa bank_mask:0xf", "row_bcast:31 row_mask:0xc bank_mask:0xf"):
            for r in rs: a.I(f"v_add_f32_dpp v{r}, v{r}, v{r} {mod}")
        for r, s_ in zip(rs, ss): a.I(f"v_readlane_b32 s{s_}, v{r}, 63")
    if "p0st" in EXP: ts(a, 1)
    tree2((32, 48), False)
    wavered((24, 25), (40, 41))
    if "p0st" in EXP: ts(a, 2)
    a.I(f"s_mov_b32 s37, {f32(1.0/1024)}")
    a.I("v_mov_b32 v26, s40", "v_mov_b32 v27, s41", "v_mul_f32 v26, s37, v26", "v_mul_f32 v27, s37, v27")
    for r in range(2):
        for i in range(16): a.I(f"v_sub_f32 v{80+16*r+i}, v{32+16*r+i}, v{26+r}")
    tree2((80, 96), True)
    wavered((24, 25), (42, 43))
    a.I("v_mov_b32 v28, s42", "v_mov_b32 v29, s43", "v_mul_f32 v28, s37, v28", "v_mul_f32 v29, s37, v29")
    def rnd(*rs):
        for r in rs: a.I(f"v_cvt_pk_bf16_f32 v{r}, v{r}, v{r}")
        for r in rs: a.I(f"v_lshlrev_b32 v{r}, 16, v{r}")
    a.I(f"s_mov_b32 s38, {f32(1e-5)}")
    rnd(28, 29, 26, 27)
    a.I("v_add_f32 v28, s38, v28", "v_add_f32 v29, s38, v29"); rnd(28, 29)
    a.I("v_sqrt_f32 v28, v28", "v_sqrt_f32 v29, v29"); rnd(28, 29)
    a.I("v_rcp_f32 v28, v28", "v_rcp_f32 v29, v29")
    if "p0st" in EXP: ts(a, 3)
    P_ = [(r, d, 32 + 16 * r + 2 * d) for r in range(2) for d in range(8)]
    for r, d, b in P_: a.I(f"v_sub_f32 v{b}, v{b}, v{26+r}", f"v_sub_f32 v{b+1}, v{b+1}, v{26+r}")
    for r, d, b in P_: a.I(f"v_cvt_pk_bf16_f32 v{80+8*r+d}, v{b}, v{b+1}")
    for r, d, b in P_: a.I(f"v_lshlrev_b32 v{b}, 16, v{80+8*r+d}", f"v_and_b32 v{b+1}, s36, v{80+8*r+d}")
    for r, d, b in P_: a.I(f"v_mul_f32 v{b}, v{b}, v{28+r}", f"v_mul_f32 v{b+1}, v{b+1}, v{28+r}")
    for r, d, b in P_: a.I(f"v_cvt_pk_bf16_f32 v{8+8*r+d}, v{b}, v{b+1}")
    body = a.items[mark:]; del a.items[mark:]
    gs = groups_of(late); step = int(OPT.get("lst", 24))
    for i, it in enumerate(body):
        if i % step == 0 and gs: a.extend(gs.pop(0))
        a.items.append(it)
    assert not gs
    if "p0st" in EXP: ts(a, 4)
    a.I("s_lshl_b32 s16, s20, 1", "v_and_b32 v2, 15, v1", "v_xor_b32 v2, s16, v2", "v_lshlrev_b32 v4, 8, v1", "v_lshl_add_u32 v4, v2, 4, v4",
        f"v_add_u32 v4, {LX}, v4", "v_xor_b32 v25, 16, v4")
    for r in range(2):
        for p in range(2): a.I(f"ds_write_b128 v{25 if r else 4}, {vr(8+8*r+4*p,4)} offset:{p*16384}")
    a.I("v_lshrrev_b32 v5, 4, v1", "v_lshlrev_b32 v2, 4, v5", "v_xor_b32 v26, v2, v3",
        "s_lshl_b32 s16, s20, 12", f"s_add_u32 s16, s16, {LX}", "v_add_u32 v30, s16, v26",
        "v_xor_b32 v27, 64, v30", "v_xor_b32 v28, 0x80, v30", "v_xor_b32 v29, 0xc0, v30",
        "v_lshlrev_b32 v31, 9, v5", "v_bfe_u32 v2, v1, 2, 2", "v_lshl_add_u32 v31, v2, 6, v31",
        "v_and_b32 v2, 3, v1", "v_lshl_add_u32 v31, v2, 3, v31", f"s_add_u32 s16, s17, {LW}", "v_add_u32 v31, s16, v31",
        "s_lshl_b32 s16, s22, 14", "s_lshl_b32 s18, s20, 11", "s_add_u32 s16, s16, s18",
        "s_add_u32 s39, s23, s16", f"s_add_u32 s16, s16, {LX}", "v_add_u32 v24, s16, v26",
        "s_and_b32 s16, s20, 1", "s_lshl_b32 s16, s16, 7", "v_xor_b32 v24, s16, v24", "v_xor_b32 v25, 64, v24",
        "s_waitcnt lgkmcnt(0)", "s_barrier")
    ts(a, 10)
    a.I("ds_read_b128 v[8:11], v24", "ds_read_b128 v[12:15], v25 offset:1024", "s_waitcnt vmcnt(3) lgkmcnt(0)")
    a.I("buffer_store_dwordx4 v[8:11], v3, s[32:35], s39 offen sc1", "buffer_store_dwordx4 v[12:15], v3, s[32:35], s39 offen offset:1024 sc1",
        "v_readfirstlane_b32 s55, v6")
    for j in range(4):
        a.I(f"ds_read_b128 {vr(32+4*j,4)}, v{(30, 27, 28, 29)[j]} offset:{j*1024}")
        for d in range(2):
            for rd in range(2):
                a.I(f"ds_read_b64_tr_b16 {vr(64+8*j+4*d+2*rd,2)}, v31 offset:{j*2048+rd*256+d*32}")
    a.I("s_waitcnt lgkmcnt(0)", "s_cmp_eq_u32 s22, 0", "s_cbranch_scc0 P0_V")
    for j in range(4):
        for d in range(2): a.I(mfma16(96 + 4 * d, 64 + 8 * j + 4 * d, 32 + 4 * j, "0" if j == 0 else None))
    a.I("s_branch P0_R")
    a.L("P0_V")
    for j in range(4):
        for d in range(2): a.I(mfma16(96 + 4 * d, 32 + 4 * j, 64 + 8 * j + 4 * d, "0" if j == 0 else None))
    a.L("P0_R")
    a.I("s_lshl_b32 s16, s20, 11", f"s_add_u32 s16, s16, {LR}", "v_add_u32 v4, s16, v3")
    wave_flag(a, 18, FL_X)
    for d in range(2): a.I(f"ds_write_b128 v4, {vr(96+4*d,4)} offset:{d*1024}")
    a.I("s_mov_b32 s17, 0x40000")
    a.L("P0_TAG")
    a.I("s_cmp_lg_u32 s55, 0", "s_cbranch_scc1 P0_TAGOK",
        "buffer_load_dword v6, v7, s[56:59], 0 offen sc1", "s_waitcnt vmcnt(0)", "v_readfirstlane_b32 s55, v6",
        "s_sub_u32 s17, s17, 1", "s_cmp_lg_u32 s17, 0", "s_cbranch_scc1 P0_TAG")
    a.L("P0_TAGOK")
    a.I("s_waitcnt vmcnt(0)")
    set_flag(a, 18)
    a.I("s_waitcnt lgkmcnt(0)", "s_barrier")
    a.I("s_cmp_lg_u32 s20, 0", "s_cbranch_scc1 P0_END")
    a.I(f"v_add_u32 v4, {LR}, v3")
    for w in range(8):
        a.I(f"ds_read_b128 {vr(32+8*w,4)}, v4 offset:{w*2048}", f"ds_read_b128 {vr(36+8*w,4)}, v4 offset:{w*2048+1024}")
    a.I("s_waitcnt lgkmcnt(0)")
    for s_ in (4, 2, 1):
        for w in range(s_):
            for i in range(8): a.I(f"v_add_f32 v{32+8*w+i}, v{32+8*w+i}, v{32+8*(w+s_)+i}")
    for d in range(4): a.I(f"v_cvt_pk_bf16_f32 v{8+d}, v{32+2*d}, v{33+2*d}")
    a.I("s_lshr_b32 s16, s21, 1", "s_lshl_b32 s19, s16, 12", f"s_add_u32 s19, s19, {WS_KV}",
        "s_and_b32 s16, s21, 1", "s_lshl_b32 s16, s16, 10", "s_add_u32 s19, s19, s16",
        "s_cmp_eq_u32 s22, 0", "s_cbranch_scc0 P0_SV",
        "buffer_store_dwordx4 v[8:11], v3, s[32:35], s19 offen sc1", "s_branch P0_KF")
    a.L("P0_SV")
    a.I("v_and_b32 v2, 1, v5", "v_lshlrev_b32 v4, 9, v2", "v_and_b32 v2, 15, v1", "v_lshl_add_u32 v4, v2, 4, v4",
        "v_lshrrev_b32 v2, 1, v5", "v_lshl_add_u32 v4, v2, 3, v4",
        "buffer_store_dwordx2 v[8:9], v4, s[32:35], s19 offen offset:2048 sc1",
        "buffer_store_dwordx2 v[10:11], v4, s[32:35], s19 offen offset:2304 sc1")
    a.L("P0_KF")
    a.I("s_lshl_b32 s18, s2, 2", f"s_add_u32 s18, s18, {WS_FL+FL_KV}", "s_waitcnt vmcnt(0)")
    set_flag(a, 18)
    a.L("P0_END")

def kv_groups():
    gs = []
    for g in range(2):
        for i in range(4):
            o = [f"s_add_u32 m0, s25, {g*4096}", f"s_add_u32 s26, s24, {g*4096}"] if i == 0 else []
            gs.append(o + [f"buffer_load_dwordx4 v3, s[36:39], s26 offen offset:{i*1024} lds"])
    gs[-1] += ["s_add_u32 s24, s24, 32768", "s_xor_b32 s25, s25, 32768"]
    return gs

def g1(a):
    NST = 32; R = 5; SLOT = 32768
    ACC = 128; FA = 64; FW = 96
    def acc(h, u, t): return ACC + (t * 4 + h * 2 + u) * 4
    a.I("s_and_b32 s16, s2, 7", "s_lshl_b32 s16, s16, 2", "s_bfe_u32 s21, s2, 0x20003", "s_add_u32 s21, s21, s16",
        "s_lshr_b32 s22, s2, 5", "s_and_b32 s23, s20, 3", "v_add_u32 v10, 31744, v3",
        "s_lshl_b32 s16, s22, 4", "s_lshl_b32 s17, s20, 1", "s_add_u32 s16, s16, s17", "s_lshl_b32 s44, s16, 15",
        "s_lshl_b32 s45, s20, 11", "s_mov_b32 s47, 0", "s_mov_b32 s50, 0", f"s_mov_b32 s52, {SLOT}",
        "s_lshl_b32 s18, s22, 5", "s_lshr_b32 s16, s20, 2", "s_lshl_b32 s16, s16, 4", "s_add_u32 s18, s18, s16",
        "s_lshl_b32 s16, s23, 1", "s_add_u32 s18, s18, s16", "s_lshl_b32 s18, s18, 5", f"s_add_u32 s18, s18, {WS_FL+FL_X}",
        "v_and_b32 v2, 15, v1", "v_lshlrev_b32 v8, 2, v2", "v_lshrrev_b32 v2, 4, v1", "v_lshl_add_u32 v8, v2, 8, v8")
    a.extend(poll(18, 32, 8))
    ts(a, 11)
    def adv(reg): return [f"s_add_u32 s{reg}, s{reg}, {SLOT}", f"s_cmp_eq_u32 s{reg}, {SLOT*R}", f"s_cselect_b32 s{reg}, 0, s{reg}"]
    def dma_act():
        return ["s_add_u32 m0, s47, s45", "s_nop 0", "buffer_load_dwordx4 v3, s[32:35], s44 offen lds",
                "buffer_load_dwordx4 v10, s[32:35], s44 offen offset:1024 lds", "s_add_u32 s44, s44, 1024"] + adv(47)
    def dma_w(): return w_dma(52) + adv(52)
    def rdaddr():
        return ["s_lshr_b32 s17, s20, 2", "s_lshl_b32 s16, s17, 13", "v_add_u32 v6, s16, v3",
                "s_and_b32 s19, s21, 1", "s_lshl_b32 s16, s23, 1", "s_add_u32 s40, s16, s19", "s_add_u32 s41, s40, 1",
                "s_mul_i32 s16, s19, 6", "s_sub_u32 s16, 6, s16", "s_cmp_eq_u32 s23, 3", "s_cselect_b32 s40, s16, s40", "s_cselect_b32 s41, 7, s41",
                "v_lshrrev_b32 v2, 4, v1", "v_lshlrev_b32 v7, 11, v2", "v_and_b32 v2, 1, v2", "v_lshlrev_b32 v12, 2, v2",
                "v_bfe_u32 v2, v1, 2, 2", "v_lshl_add_u32 v7, v2, 8, v7", "v_add_u32 v12, v12, v2",
                "v_and_b32 v2, 3, v1", "v_lshl_add_u32 v7, v2, 3, v7", "v_add_u32 v7, 16384, v7",
                "v_xor_b32 v2, s41, v12", "v_lshl_add_u32 v11, v2, 5, v7", "v_xor_b32 v2, s40, v12", "v_lshl_add_u32 v7, v2, 5, v7"]
    def reads():
        o = ["v_add_u32 v8, s50, v6", "v_add_u32 v9, s50, v7", "v_add_u32 v13, s50, v11"]
        for h in range(2):
            for u in range(2):
                for rd in range(2):
                    o.append(f"ds_read_b64_tr_b16 {vr(FW+(h*2+u)*4+2*rd,2)}, v{9 if u == 0 else 13} offset:{h*8192+rd*1024}")
        for t in range(8): o.append(f"ds_read_b128 {vr(FA+t*4,4)}, v8 offset:{t*1024}")
        return o + adv(50)
    def mm(first):
        return [mfma16(acc(h, u, t), FW + (h * 2 + u) * 4, FA + t * 4, "0" if first else None) for t in range(8) for h in range(2) for u in range(2)]
    a.I("s_cmp_ge_u32 s20, 4", "s_cbranch_scc1 G1_B")
    L = Log()
    for j in range(R):
        if 0 < j < R - 1: a.extend(L.note(dma_w(), j))
        a.extend(L.note(dma_act(), j))
    a.extend(rdaddr())
    a.I(f"s_waitcnt vmcnt({L.cnt(0)})", "s_barrier")
    a.extend(reads())
    a.I(f"s_waitcnt vmcnt({L.cnt(1)}) lgkmcnt(0)", "s_barrier")
    ts(a, 12)
    kv = kv_groups()
    def bodyA(k, first=False):
        o = mm(first)
        dm = L.note([f"s_mov_b32 s18, {WS_FL+FL_KV}", poll_load(18, 3, 28, True)], None) if k == 27 else []
        dm += (L.note(dma_w(), k - 1 + R) if k - 1 + R < NST else []) + (L.note(dma_act(), k + R) if k + R < NST else [])
        if k == 28:
            o += poll(18, 64, 3, 28, True, preloaded=2)
            o += ["s_lshl_b32 s24, s20, 13", f"s_add_u32 s25, s24, {LKV}",
                  f"s_add_u32 s36, s32, {WS_KV}", "s_addc_u32 s37, s33, 0", "s_mov_b32 s38, 0x40000", "s_mov_b32 s39, 0x20000"]
            dm = L.note([x for g in kv for x in g], None)
        if k == 29: dm = L.note([x for g in kv for x in g], None)
        o += mixmem(reads() if k + 1 < NST else [], dm)
        if k + 1 < NST: o += [f"s_waitcnt vmcnt({L.cnt(k + 2)}) lgkmcnt(0)", "s_barrier"]
        return o
    a.extend(bodyA(0, True))
    a.I(f"s_mov_b32 s51, {NST-R-1}")
    a.L("G1_A_LOOP")
    body = bodyA(1)
    for k in range(2, NST - R): assert bodyA(k) == body
    a.extend(body)
    a.I("s_sub_u32 s51, s51, 1", "s_cmp_lg_u32 s51, 0", "s_cbranch_scc1 G1_A_LOOP")
    for k in range(NST - R, NST): a.extend(bodyA(k))
    a.I("s_branch G1_EPI")
    a.L("G1_B")
    M = Log()
    for j in range(R - 1):
        if j: a.extend(M.note(dma_w(), j))
        a.extend(M.note(dma_act(), j))
    a.extend(rdaddr())
    a.I(f"s_waitcnt vmcnt({M.cnt(0)})", "s_barrier", f"s_waitcnt vmcnt({M.cnt(1)})", "s_barrier")
    def bodyB(k, first=False):
        dm = M.note(dma_w() + dma_act(), k - 1 + R) if k - 1 + R < NST else []
        o = mixmem(reads(), dm) + ["s_waitcnt lgkmcnt(0)"] + mm(first)
        if k + 1 < NST: o += [f"s_waitcnt vmcnt({M.cnt(k + 2)})", "s_barrier"]
        return o
    a.extend(bodyB(0, True))
    a.I(f"s_mov_b32 s51, {NST-R}")
    a.L("G1_B_LOOP")
    body = bodyB(1)
    for k in range(2, NST - R + 1): assert bodyB(k) == body
    a.extend(body)
    a.I("s_sub_u32 s51, s51, 1", "s_cmp_lg_u32 s51, 0", "s_cbranch_scc1 G1_B_LOOP")
    for k in range(NST - R + 1, NST): a.extend(bodyB(k))
    a.L("G1_EPI")
    ts(a, 1)
    a.I("s_lshl_b32 s16, s20, 8", f"s_add_u32 s16, s16, {LC}", "v_lshl_add_u32 v13, v1, 2, s16", "v_mov_b32 v12, 0", "ds_write_b32 v13, v12")
    wave_flag(a, 60, FL_H)
    a.I("s_lshl_b32 s16, s22, 4", "s_lshr_b32 s17, s20, 2", "s_lshl_b32 s17, s17, 3", "s_add_u32 s16, s16, s17", "s_mul_i32 s16, s16, 112",
        "s_mul_i32 s17, s21, 7", "s_add_u32 s17, s17, s40", "s_lshr_b32 s17, s17, 1", "s_add_u32 s16, s16, s17",
        "s_lshl_b32 s16, s16, 10", f"s_add_u32 s61, s16, {WS_H}", "s_cmp_eq_u32 s23, 3", "s_cbranch_scc1 G1_EPQ")
    for t in reversed(range(8)):
        g, u = acc(0, 0, t), acc(1, 0, t)
        for i in range(8): a.I(f"v_max_f32 v{g+i}, 0, v{g+i}")
        for i in range(8): a.I(f"v_mul_f32 v{g+i}, v{g+i}, v{u+i}")
        for d in range(4): a.I(f"v_cvt_pk_bf16_f32 v{HP+4*t+d}, v{g+2*d}, v{g+2*d+1}")
    a.I("s_branch G1_X")
    a.L("G1_EPQ")
    a.I(f"s_mov_b32 s18, {f32(QSCALE)}", "s_lshr_b32 s16, s20, 2", "s_lshl_b32 s16, s16, 13", f"s_add_u32 s16, s16, {LQ}",
        "v_add_u32 v9, s16, v3", "s_lshl_b32 s16, s19, 3", "s_add_u32 s61, s61, s16")
    for t in range(8):
        q0, q1 = acc(0, 1, t), acc(1, 1, t)
        for i in range(4): a.I(f"v_mul_f32 v{q0+i}, s18, v{q0+i}", f"v_mul_f32 v{q1+i}, s18, v{q1+i}")
        a.I(f"v_cvt_pk_bf16_f32 v{FA+4*t}, v{q0}, v{q0+1}", f"v_cvt_pk_bf16_f32 v{FA+4*t+1}, v{q0+2}, v{q0+3}",
            f"v_cvt_pk_bf16_f32 v{FA+4*t+2}, v{q1}, v{q1+1}", f"v_cvt_pk_bf16_f32 v{FA+4*t+3}, v{q1+2}, v{q1+3}",
            f"ds_write_b128 v9, {vr(FA+4*t,4)} offset:{t*1024}")
    for t in reversed(range(8)):
        g, u = acc(0, 0, t), acc(1, 0, t)
        for i in range(4): a.I(f"v_max_f32 v{g+i}, 0, v{g+i}")
        for i in range(4): a.I(f"v_mul_f32 v{g+i}, v{g+i}, v{u+i}")
        for d in range(2): a.I(f"v_cvt_pk_bf16_f32 v{HP+4*t+d}, v{g+2*d}, v{g+2*d+1}")
    a.L("G1_X")
    a.I("s_cmp_ge_u32 s20, 4", "s_cbranch_scc1 G1_X2", "s_lshl_b32 s16, s20, 11", "v_add_u32 v9, s16, v3")
    for t in range(8): a.I(f"ds_write_b128 v9, {vr(HP+4*t,4)} offset:{(t>>1)*8192+(t&1)*1024}")
    a.L("G1_X2")
    a.I("s_waitcnt lgkmcnt(0)", "s_barrier")
    ts(a, 2)

def h_stores(a):
    _n[0] += 1; lab = f"HS{_n[0]}"
    a.I(f"s_sub_u32 s16, s61, {8*112*1024}", "s_cmp_eq_u32 s20, 3", f"s_cbranch_scc1 {lab}")
    for w, n in ((4, lab + "_D"), (2, None)):
        for t in range(8): a.I(f"buffer_store_dwordx{w} {vr(HP+4*t,w)}, v3, s[32:35], s61 offen{SC1}", f"s_add_u32 s61, s61, {112*1024}")
        a.I("s_waitcnt lgkmcnt(0)")
        for t in range(8): a.I(f"buffer_store_dwordx{w} {vr(192+4*t,w)}, v3, s[32:35], s16 offen{SC1}", f"s_add_u32 s16, s16, {112*1024}")
        if n: a.I(f"s_branch {n}"); a.L(lab)
    a.L(lab + "_D")

def attention(a):
    QR = [16, 24]; KB = [32, 48]; VB = [40, 56]; P = 64; SEL = 72; Lr = [76, 80]; S = [96, 112]; O = [128, 144]; C = [160, 176]
    a.I(f"s_add_u32 s36, s32, {WS_KV}", "s_addc_u32 s37, s33, 0", "s_mov_b32 s38, 0x40000", "s_mov_b32 s39, 0x20000")
    a.I("v_bfe_u32 v2, v1, 4, 1", "v_lshlrev_b32 v4, 10, v2", "v_lshrrev_b32 v2, 5, v1", "v_lshl_add_u32 v4, v2, 8, v4",
        "v_and_b32 v2, 15, v1", "v_lshl_add_u32 v4, v2, 4, v4",
        "s_lshl_b32 s16, s20, 12", f"s_add_u32 s16, s16, {LQ}", "v_add_u32 v5, s16, v4")
    for b in range(2):
        for ks in range(2): a.I(f"ds_read_b128 {vr(QR[b]+4*ks,4)}, v5 offset:{b*2048+ks*512}")
    a.I(f"v_add_u32 v6, {LKV}, v4", f"v_add_u32 v7, {LKV+2048}, v3")
    sync_setup(a, LC, 13, 14, 12)
    a.I("s_waitcnt vmcnt(8)")
    sync_block(a, 13, 14, 12, 15)
    def rdK(buf, off): return [f"ds_read_b128 {vr(KB[buf]+4*ks,4)}, v6 offset:{off+ks*512}" for ks in range(2)]
    def rdV(buf, off): return [f"ds_read_b128 {vr(VB[buf]+4*ks,4)}, v7 offset:{off+ks*1024}" for ks in range(2)]
    a.extend(rdK(0, 0) + rdV(0, 0))
    a.I("v_lshrrev_b32 v2, 2, v1", "v_lshrrev_b32 v5, 4, v1", "v_xor_b32 v2, v2, v5", "v_and_b32 v2, 1, v2",
        "v_cmp_eq_u32 vcc, 0, v2", "v_mov_b32 v5, 0x3f803f80", "s_mov_b32 s28, 0",
        f"v_cndmask_b32 v{SEL}, 0, v5, vcc")
    for i in range(1, 4): a.I(f"v_mov_b32 v{SEL+i}, v{SEL}")
    a.I("s_waitcnt lgkmcnt(0)")
    ts(a, 3)
    for b in range(2):
        a.I(mfma32(S[b], KB[0], QR[b], "0"), mfma32(S[b], KB[0] + 4, QR[b] + 4))
    for b in range(2):
        for i in range(16): a.I(f"v_mov_b32 v{O[b]+i}, 0")
        for i in range(4): a.I(f"v_mov_b32 v{Lr[b]+i}, 0")
    for i in range(4): a.I(f"v_mov_b32 v{P+4+i}, 0", f"v_mov_b32 v{VB[1]+4+i}, 0")
    for b in range(2):
        s0 = S[b]; m = 8 + 2 * b
        a.I(f"v_max3_f32 v{m}, v{s0}, v{s0+1}, v{s0+2}")
        for i in range(3, 15, 2): a.I(f"v_max3_f32 v{m}, v{m}, v{s0+i}, v{s0+i+1}")
        a.I(f"v_max_f32 v{m}, v{m}, v{s0+15}", f"v_mov_b32 v{m+1}, v{m}")
    for b in range(2):
        m = 8 + 2 * b
        a.I(f"v_permlane32_swap_b32 v{m}, v{m+1}", f"v_max_f32 v{m}, v{m}, v{m+1}", f"v_sub_f32 v{C[b]}, 0, v{m}")
        for i in range(1, 16): a.I(f"v_mov_b32 v{C[b]+i}, v{C[b]}")
    a.I(mfma32(S[0], KB[0], QR[0], C[0]), mfma32(S[0], KB[0] + 4, QR[0] + 4))
    def tile(b, kbuf_next, vbuf, vprev, extra, dg):
        nb = 1 - b; s0 = S[b]
        ex = [f"v_exp_f32 v{s0+i}, v{s0+i}" for i in range(16)]
        cv = [f"v_cvt_pk_bf16_f32 v{P+d}, v{s0+2*d}, v{s0+2*d+1}" for d in range(8)]
        e = list(extra) + [None] * 4
        o = [mfma32(S[nb], KB[kbuf_next], QR[nb], C[nb]), e[0]] + ex[0:3]
        o += [mfma32(O[nb], VB[vprev] + 4, P + 4), e[1]] + ex[3:6]
        o += [mfma16(Lr[nb], SEL, P + 4)] + ex[6:8]
        o += [mfma32(S[nb], KB[kbuf_next] + 4, QR[nb] + 4), e[2], cv[0], cv[1], ex[8], cv[2], cv[3], ex[9], ex[10]]
        o += [mfma32(O[b], VB[vbuf], P), e[3]] + ex[11:14]
        o += [mfma16(Lr[b], SEL, P)] + (dg or []) + [ex[14], ex[15]] + cv[4:8]
        return [x for x in o if x]
    a.I(f"s_setprio {int(OPT.get('ap', 0))}", "s_nop 11")
    a.L("ATT_LOOP")
    dg = kv_groups()
    def slot(j):
        return ["s_cmp_eq_u32 s28, 0", f"s_cbranch_scc1 ATT_HB{j}"] + dg[j + 2] + [f"ATT_HB{j}:"]
    for kb in range(8):
        cur = kb & 1; nxt = 1 - cur
        if kb == 7:
            a.I("s_waitcnt vmcnt(0)")
            sync_block(a, 13, 14, 12, 15)
            a.I("v_xor_b32 v6, 0x8000, v6", "v_xor_b32 v7, 0x8000, v7")
        off = ((kb + 1) & 7) * 4096
        g0, g1 = (dg[0], dg[1]) if kb == 7 else (slot(2 * kb), slot(2 * kb + 1)) if kb < 3 else (None, None)
        a.extend(tile(0, cur, cur, nxt, rdK(nxt, off) + rdV(nxt, off), g0))
        a.I("s_waitcnt lgkmcnt(2)")
        a.extend(tile(1, nxt, cur, cur, [], g1))
        if kb == 7: a.I("s_add_u32 s28, s28, 1", f"s_cmp_lg_u32 s28, {1 if 'noatt' in EXP else 8}")
        a.I("s_waitcnt lgkmcnt(0)")
    a.I("s_cbranch_scc1 ATT_LOOP")
    a.I(mfma32(O[1], VB[1] + 4, P + 4), mfma16(Lr[1], SEL, P + 4))
    ts(a, 4)
    a.I("s_setprio 3", f"s_mov_b32 s16, {f32(2.0**100)}")
    for b in range(2):
        a.I(f"v_max3_f32 v{8+b}, abs(v{O[b]}), abs(v{O[b]+1}), v{Lr[b]}", f"v_add_f32 v{10+b}, v{O[b]}, v{O[b]+1}")
    for i in range(2, 16, 2):
        for b in range(2):
            a.I(f"v_max3_f32 v{8+b}, v{8+b}, abs(v{O[b]+i}), abs(v{O[b]+i+1})", f"v_add3_u32 v2, v2, v2, v2" if False else f"v_add_f32 v{10+b}, v{10+b}, v{O[b]+i}",
                f"v_add_f32 v{86+b}, v{O[b]+i+1}, v{Lr[b]}" if i == 2 else f"v_add_f32 v{86+b}, v{86+b}, v{O[b]+i+1}")
    a.I("v_max_f32 v8, v8, v9", "v_add_f32 v10, v10, v11", "v_add_f32 v86, v86, v87", "v_add_f32 v9, v10, v86")
    a.I("v_cmp_nlt_f32 vcc, v8, s16", "v_cmp_u_f32 s[18:19], v9, v9", "s_or_b64 vcc, vcc, s[18:19]")
    if "force" in EXP: a.I("s_mov_b64 vcc, -1")
    a.I("s_cbranch_vccz ATT_FIN")
    for b in range(2):
        M = 10; AL = 11
        for i in range(16): a.I(f"v_mov_b32 v{O[b]+i}, 0")
        for i in range(4): a.I(f"v_mov_b32 v{Lr[b]+i}, 0")
        a.I(f"v_mov_b32 v{M}, {f32(-3.0e38)}", f"s_mov_b32 s29, 0")
        a.L(f"ATT_FB{b}")
        for ks in range(2):
            a.I(f"buffer_load_dwordx4 {vr(KB[0]+4*ks,4)}, v4, s[36:39], s29 offen offset:{ks*512}",
                f"buffer_load_dwordx4 {vr(VB[0]+4*ks,4)}, v3, s[36:39], s29 offen offset:{2048+ks*1024}")
        a.I("s_waitcnt vmcnt(0)")
        s0 = S[0]
        a.I(mfma32(s0, KB[0], QR[b], "0"), mfma32(s0, KB[0] + 4, QR[b] + 4))
        a.I(f"v_max3_f32 v8, v{s0}, v{s0+1}, v{M}")
        for i in range(2, 16, 2): a.I(f"v_max3_f32 v8, v8, v{s0+i}, v{s0+i+1}")
        a.I("v_mov_b32 v9, v8", "v_permlane32_swap_b32 v8, v9", "v_max_f32 v8, v8, v9",
            f"v_sub_f32 v{AL}, v{M}, v8", f"v_exp_f32 v{AL}, v{AL}", f"v_mov_b32 v{M}, v8")
        for i in range(16): a.I(f"v_sub_f32 v{s0+i}, v{s0+i}, v8")
        for i in range(16): a.I(f"v_exp_f32 v{s0+i}, v{s0+i}")
        for i in range(16): a.I(f"v_mul_f32 v{O[b]+i}, v{O[b]+i}, v{AL}")
        for i in range(4): a.I(f"v_mul_f32 v{Lr[b]+i}, v{Lr[b]+i}, v{AL}")
        for d in range(8): a.I(f"v_cvt_pk_bf16_f32 v{P+d}, v{s0+2*d}, v{s0+2*d+1}")
        a.I(mfma32(O[b], VB[0], P), mfma16(Lr[b], SEL, P), mfma32(O[b], VB[0] + 4, P + 4), mfma16(Lr[b], SEL, P + 4))
        a.I("s_add_u32 s29, s29, 4096", f"s_cmp_lg_u32 s29, {64*4096}", f"s_cbranch_scc1 ATT_FB{b}")
    a.L("ATT_FIN")
    a.I("v_mov_b32 v23, v13", "v_mov_b32 v24, v14", "v_mov_b32 v25, v12")
    a.I("v_bfe_u32 v2, v1, 4, 1", "v_lshlrev_b32 v5, 15, v2", "v_lshrrev_b32 v2, 5, v1", "v_lshl_add_u32 v5, v2, 8, v5",
        "v_and_b32 v2, 15, v1", "v_lshl_add_u32 v5, v2, 4, v5",
        "s_lshl_b32 s16, s22, 2", "s_add_u32 s16, s16, s20", "s_lshl_b32 s16, s16, 7", "s_add_u32 s16, s16, s21", "s_lshl_b32 s16, s16, 10",
        f"s_add_u32 s16, s16, {WS_O}", "s_add_u32 s17, s16, 65536")
    for b in range(2): a.I(f"v_rcp_f32 v{8+b}, v{Lr[b]}")
    for b in range(2):
        for i in range(16): a.I(f"v_mul_f32 v{O[b]+i}, v{O[b]+i}, v{8+b}")
        for d in range(8): a.I(f"v_cvt_pk_bf16_f32 v{S[b]+d}, v{O[b]+2*d}, v{O[b]+2*d+1}")
        for ks in range(2):
            a.I(f"buffer_store_dwordx4 {vr(S[b]+4*ks,4)}, v5, s[32:35], s{16+b} offen offset:{ks*512}{SC1}")

def down(a):
    R = 8; SLOT = 8192; NST = 56
    FW_ = [32, 64]; AR = 192; ACC = 128
    M32 = "d16" not in EXP
    a.I(f"s_setprio {int(OPT.get('bp', 0))}", "s_lshl_b32 s16, s20, 11", "v_add_u32 v9, s16, v3")
    for t in range(8): a.I(f"ds_read_b128 {vr(192+4*t,4)}, v9 offset:{(t>>1)*8192+(t&1)*1024}")
    h_stores(a)
    a.I(f"s_load_dwordx2 s[8:9], s[0:1], {KA_WD}",
        "s_and_b32 s21, s2, 1",
        "s_bfe_u32 s16, s2, 0x10001", "s_lshl_b32 s16, s16, 3", "s_bfe_u32 s17, s2, 0x30003", "s_add_u32 s22, s16, s17",
        "s_bfe_u32 s16, s2, 0x10002", "s_lshl_b32 s16, s16, 2", "s_bfe_u32 s17, s2, 0x20006", "s_add_u32 s23, s16, s17",
        "s_lshl_b32 s46, s20, 11",
        "v_lshrrev_b32 v2, 4, v1", "s_lshl_b32 s16, s20, 3", "v_add_u32 v4, s16, v2", "v_lshlrev_b32 v4, 11, v4",
        "v_bfe_u32 v5, v1, 1, 3", *(["v_lshlrev_b32 v6, 1, v2", "v_xor_b32 v6, v6, v5", "v_mov_b32 v7, v6"] if M32 else ["v_xor_b32 v6, v2, v5", "v_xor_b32 v7, 4, v6"]),
        "v_and_b32 v2, 1, v1", "v_lshl_add_u32 v4, v2, 4, v4", "s_lshl_b32 s16, s23, 8", "v_add_u32 v4, s16, v4",
        f"v_add_u32 v5, {4*2048-1024}, v4",
        "v_lshl_add_u32 v4, v6, 5, v4", "v_lshl_add_u32 v5, v7, 5, v5",
        "s_mul_i32 s48, s21, %d" % (1792 * 2048), "s_waitcnt lgkmcnt(0)")
    srd(a, 24, 8, 3584 * 1024 * 2)
    def dma_w(st):
        return [f"s_add_u32 m0, s46, {(st % R) * SLOT}", "s_add_u32 s49, s48, 0",
                "buffer_load_dwordx4 v4, s[24:27], s49 offen lds", "s_add_u32 s48, s48, 65536",
                "buffer_load_dwordx4 v5, s[24:27], s49 offen offset:1024 lds"]
    def ld_a(st):
        r = AR + (st % R) * 8
        if M32: return [f"buffer_load_dwordx4 {vr(r,4)}, v10, s[32:35], s44 offen", f"buffer_load_dwordx4 {vr(r+4,4)}, v10, s[32:35], s44 offen offset:512",
                        "s_add_u32 s44, s44, 1024"]
        return [f"buffer_load_dwordx4 {vr(r,4)}, v3, s[32:35], s44 offen", f"buffer_load_dwordx4 {vr(r+4,4)}, v10, s[32:35], s44 offen",
                "s_add_u32 s44, s44, 1024"]
    L = Log()
    NW = int(OPT.get("nw", 2))
    for j in range(NW): a.extend(L.note(dma_w(j), ("w", j)))
    a.I(f"s_waitcnt vmcnt({2*NW})")
    ts(a, 9)
    set_flag(a, 60)
    for j in range(NW, R - 1): a.extend(L.note(dma_w(j), ("w", j)))
    a.I("s_lshl_b32 s16, s22, 3", "s_lshl_b32 s17, s20, 1", "s_add_u32 s16, s16, s17", "s_mul_i32 s16, s16, 112",
        "s_mul_i32 s17, s21, 56", "s_add_u32 s16, s16, s17", "s_lshl_b32 s44, s16, 10", f"s_add_u32 s44, s44, {WS_H}",
        )
    if M32:
        a.I("v_bfe_u32 v2, v1, 4, 1", f"v_mul_u32_u24 v10, {112*1024}, v2", "v_lshrrev_b32 v8, 5, v1", "v_lshl_add_u32 v10, v8, 8, v10",
            "v_and_b32 v9, 15, v1", "v_lshl_add_u32 v10, v9, 4, v10",
            "v_lshlrev_b32 v12, 10, v8", "v_bfe_u32 v9, v1, 2, 2", "v_lshl_add_u32 v12, v9, 8, v12",
            "v_lshlrev_b32 v9, 1, v9", "v_xor_b32 v9, v9, v2", "v_lshl_add_u32 v12, v9, 5, v12",
            "v_and_b32 v9, 3, v1", "v_lshl_add_u32 v12, v9, 3, v12")
        for u in range(1, 4): a.I(f"v_xor_b32 v{12+u}, {64*u}, v12")
    else:
        a.I(f"v_add_u32 v10, {112*1024}, v3",
            "v_lshrrev_b32 v2, 4, v1", "v_lshlrev_b32 v12, 10, v2", "v_bfe_u32 v9, v1, 2, 2", "v_lshl_add_u32 v12, v9, 8, v12",
            "v_bfe_u32 v8, v1, 2, 3", "v_lshl_add_u32 v12, v8, 5, v12", "v_and_b32 v9, 3, v1", "v_lshl_add_u32 v12, v9, 3, v12")
        for u in range(1, 8): a.I(f"v_xor_b32 v{12+u}, {32*u}, v12")
    NT = 0
    if "wt" in EXP.split("_"):
        a.I("v_lshrrev_b32 v2, 1, v1", "v_lshlrev_b32 v24, 11, v2", "v_and_b32 v2, 1, v1", "v_lshl_add_u32 v24, v2, 7, v24",
            "s_and_b32 s16, s22, 7", "s_lshl_b32 s16, s16, 2", "s_add_u32 s16, s16, s20", "s_mul_i32 s16, s16, %d" % (56 * 2048),
            "s_mul_i32 s17, s21, %d" % (1792 * 2048), "s_add_u32 s16, s16, s17", "s_lshl_b32 s17, s23, 8", "s_add_u32 s16, s16, s17",
            f"s_add_u32 s17, s16, {24*2048}",
            "buffer_load_dword v25, v24, s[24:27], s16 offen", "buffer_load_dword v26, v24, s[24:27], s17 offen")
        NT = 2
    sync_setup(a, LC + 1024, 20, 21, 22)
    a.I("v_lshrrev_b32 v2, 4, v1", "v_bfe_u32 v8, v1, 2, 2", "v_lshl_add_u32 v9, v8, 3, v2", "v_lshlrev_b32 v9, 5, v9",
        "v_and_b32 v2, 3, v1", "v_lshl_add_u32 v9, v2, 2, v9",
        "s_lshr_b32 s18, s22, 1", "s_lshl_b32 s18, s18, 5", "s_lshl_b32 s16, s21, 2", "s_add_u32 s18, s18, s16", "s_lshl_b32 s18, s18, 5",
        f"s_add_u32 s18, s18, {WS_FL+FL_H+16}")
    a.extend(poll(18, 64, 9))
    ts(a, 3)
    L.l = []
    for j in range(R - 1): a.extend(L.note(ld_a(j), ("a", j)))
    def need(k):
        last = max([i for i, t in enumerate(L.l) if (t[0] == "a" and t[1] <= k) or (t[0] == "w" and t[1] <= k + 2)], default=-1)
        return len(L.l) - 1 - last
    def reads(st):
        if M32: return [f"ds_read_b64_tr_b16 {vr(FW_[st&1]+(ks*4+nb)*4+2*rd,2)}, v{12+nb} offset:{(st % R)*SLOT+ks*2048+rd*4096}"
                        for ks in range(2) for nb in range(4) for rd in range(2)]
        return [f"ds_read_b64_tr_b16 {vr(FW_[st&1]+u*4+2*rd,2)}, v{12+u} offset:{(st % R)*SLOT+rd*4096}" for u in range(8) for rd in range(2)]
    sync_block(a, 20, 21, 22, 23)
    a.extend(reads(0))
    a.I("ds_read_b32 v23, v21", f"s_setprio {int(OPT.get('dp', 0))}")
    def body(k):
        if M32: m = [mfma32(ACC + nb * 16, FW_[k & 1] + (ks * 4 + nb) * 4, AR + (k % R) * 8 + ks * 4, "0" if k + ks == 0 else None) for ks in range(2) for nb in range(4)]
        else: m = [mfma16(ACC + (t * 8 + u) * 4, FW_[k & 1] + u * 4, AR + (k % R) * 8 + t * 4, "0" if k == 0 else None) for u in range(8) for t in range(2)]
        if k + 1 >= NST: return [f"s_waitcnt vmcnt({need(k)}) lgkmcnt(0)"] + m
        h0, h1 = (1, 7) if M32 else (2, 14)
        CP = "nocp" not in EXP and not PT
        o = (["s_setprio 3"] if CP else []) + [f"s_waitcnt vmcnt({need(k)}) lgkmcnt(0)", "v_cmp_gt_u32 vcc, s53, v23"]
        o += ([f"s_setprio {int(OPT.get('dp', 0))}"] if CP else []) + ["ds_add_u32 v20, v22", "s_add_u32 s53, s53, 1"]
        if PT: o += [f"s_setprio {1 if (k % R) < PT else 0}"]
        o += m[:h0] + [f"s_nop {2 - h0 - (1 if PT else 0)}"] * (2 - h0 - (1 if PT else 0) >= 0) + ["s_cbranch_vccnz @SPIN", "@CONT:"]
        dm = (L.note(dma_w(k - 1 + R), ("w", k - 1 + R)) + L.note(ld_a(k - 1 + R), ("a", k - 1 + R))) if k - 1 + R < NST else []
        if "dnodma" in EXP: dm = []
        fill = mixmem(reads(k + 1), dm, False)
        FR = int(OPT.get("fr", 5 if M32 else 10))
        rd = reads(k + 1) + ["ds_read_b32 v23, v21"]
        gs = groups_of(dm) if dm else []
        o += interleave(m[h0:FR], rd)
        rest = m[FR:]
        for i, x in enumerate(rest):
            o += [x] + [y for g in gs[(len(gs) * i) // len(rest):(len(gs) * (i + 1)) // len(rest)] for y in g]
        return o
    PT = int(OPT.get("pt", 0))
    bodies = [body(k) for k in range(NST)]
    U = R
    for head in range(0, R + U + 1):
        nl = (NST - R - head) // U
        if all(bodies[k] == bodies[head + (k - head) % U] for k in range(head, head + nl * U)): break
    spins = []
    def emit(k):
        spins.append(k)
        a.extend([x.replace("@SPIN", f"DN_SP{k}").replace("@CONT", f"DN_CT{k}") for x in bodies[k]])
    for k in range(head): emit(k)
    a.I(f"s_mov_b32 s51, {nl}")
    a.L("DN_LOOP")
    for k in range(head, head + U): emit(k)
    a.I("s_sub_u32 s51, s51, 1", "s_cmp_lg_u32 s51, 0", "s_cbranch_scc1 DN_LOOP")
    for k in range(head + nl * U, NST): emit(k)
    ts(a, 4)
    a.I("s_setprio 3", "s_lshl_b32 s16, s22, 3", "s_lshl_b32 s17, s20, 1", "s_add_u32 s16, s16, s17", "s_lshl_b32 s16, s16, 5",
        "s_lshl_b32 s17, s23, 2", "s_add_u32 s16, s16, s17",
        "s_lshl_b32 s16, s16, 10", "s_lshl_b32 s17, s21, 22", "s_add_u32 s16, s16, s17", f"s_add_u32 s16, s16, {WS_P}")
    if M32:
        a.I("v_bfe_u32 v2, v1, 4, 1", "v_lshlrev_b32 v5, 15, v2", "v_lshrrev_b32 v2, 5, v1", "v_lshl_add_u32 v5, v2, 8, v5",
            "v_and_b32 v2, 15, v1", "v_lshl_add_u32 v5, v2, 4, v5")
        for nb in range(4):
            g = ACC + nb * 16
            for e in range(2):
                pk = 192 + (nb * 2 + e) * 4
                a.I(f"v_cvt_pk_bf16_f32 v{pk}, v{g+4*e}, v{g+4*e+1}", f"v_cvt_pk_bf16_f32 v{pk+1}, v{g+4*e+2}, v{g+4*e+3}",
                    f"v_cvt_pk_bf16_f32 v{pk+2}, v{g+8+4*e}, v{g+8+4*e+1}", f"v_cvt_pk_bf16_f32 v{pk+3}, v{g+8+4*e+2}, v{g+8+4*e+3}",
                    f"buffer_store_dwordx4 {vr(pk,4)}, v5, s[32:35], s16 offen offset:{nb*1024+e*512}{SC1}")
    else:
        for t in range(2):
            for c in range(4):
                g = ACC + (t * 8 + c * 2) * 4; pk = 192 + (t * 4 + c) * 4
                for d in range(4): a.I(f"v_cvt_pk_bf16_f32 v{pk+d}, v{g+2*d}, v{g+2*d+1}")
                a.I(f"buffer_store_dwordx4 {vr(pk,4)}, v3, s[32:35], s16 offen offset:{c*1024}{SC1}")
            a.I("s_add_u32 s16, s16, 32768")
    wave_flag(a, 60, FL_O)
    a.I("s_waitcnt vmcnt(0)")
    set_flag(a, 60)
    tl_dump(a, 13)
    a.I("s_endpgm")
    for k in spins:
        if k + 1 >= NST: continue
        a.L(f"DN_SP{k}")
        a.I("ds_read_b32 v23, v21", "s_waitcnt lgkmcnt(0)", "v_add_u32 v23, 1, v23", "v_cmp_gt_u32 vcc, s53, v23",
            f"s_cbranch_vccnz DN_SP{k}", f"s_branch DN_CT{k}")

def wo(a):
    OA = 128; FW = [32, 48]; ACC = 64; XR = 96; P0 = 128; P1 = 144
    NE = 20; D = 16; SW = int(OPT.get("sw", 12))
    a.I(f"s_load_dwordx2 s[8:9], s[0:1], {KA_WO}", f"s_load_dwordx2 s[10:11], s[0:1], {KA_X}", f"s_load_dwordx2 s[12:13], s[0:1], {KA_OUT}",
        "s_bfe_u32 s16, s2, 0x20001", "s_lshl_b32 s16, s16, 2", "s_bfe_u32 s17, s2, 0x20003", "s_add_u32 s22, s16, s17",
        "s_and_b32 s16, s2, 1", "s_lshl_b32 s16, s16, 3", "s_lshr_b32 s17, s2, 5", "s_add_u32 s23, s16, s17",
        "v_lshrrev_b32 v2, 3, v1", "v_lshlrev_b32 v4, 11, v2",
        "v_lshrrev_b32 v2, 4, v1", "v_bfe_u32 v5, v1, 1, 2", "v_xor_b32 v2, v2, v5", "v_lshl_add_u32 v4, v2, 5, v4",
        "v_and_b32 v2, 1, v1", "v_lshl_add_u32 v4, v2, 4, v4", "s_lshl_b32 s16, s23, 7", "v_add_u32 v4, s16, v4")
    for i in range(1, 4): a.I(f"v_add_u32 v{4+i}, {i*(8*2048-1024)}, v4")
    a.I("s_lshl_b32 s16, s22, 2", "s_add_u32 s16, s16, s20", "s_lshl_b32 s44, s16, 16",
        "s_lshl_b32 s17, s23, 7", "s_add_u32 s42, s44, s17",
        "s_lshl_b32 s17, s23, 11", "s_add_u32 s43, s44, s17", f"s_add_u32 s43, s43, {WS_P}",
        f"s_add_u32 s44, s44, {WS_O}", "v_add_u32 v10, 0x8000, v3")
    wave_flag(a, 60, FL_O)
    a.I("s_waitcnt vmcnt(0) lgkmcnt(0)")
    set_flag(a, 60)
    srd(a, 24, 8, 1024 * 1024 * 2); srd(a, 28, 10, 2048 * 2048); srd(a, 36, 12, 2048 * 2048)
    def w_blocks(first, n, lds):
        o = []
        for j in range(0, n, 4):
            o += [f"s_add_u32 m0, s{lds}, {j*1024}", f"s_add_u32 s16, s{first}, {j*8*2048}", "s_and_b32 s16, s16, 0x1fffff"]
            o += [f"buffer_load_dwordx4 v{4+i}, s[24:27], s16 offen offset:{i*1024} lds" for i in range(4)]
        return o
    def o_load(kb):
        r = OA + (kb % D) * 8
        return (["s_add_u32 s45, s44, s46", "s_add_u32 s46, s46, 4096", "s_and_b32 s46, s46, 0x7fff"] if kb & 3 == 0 else []) + \
               [f"buffer_load_dwordx4 {vr(r,4)}, v3, s[32:35], s45 offen offset:{(kb&3)*1024}",
                f"buffer_load_dwordx4 {vr(r+4,4)}, v10, s[32:35], s45 offen offset:{(kb&3)*1024}"]
    sync_block(a, 23, 24, 25, 26)
    a.I("s_lshr_b32 s16, s2, 5", "s_mul_i32 s16, s16, %d" % int(OPT.get("rot", 1)), "s_lshl_b32 s46, s16, 12", "s_lshl_b32 s49, s16, 18")
    a.I(f"s_mul_i32 s48, s20, {NE*8*2048}", "s_add_u32 s48, s48, s49", f"s_mul_i32 s47, s20, {NE*1024}", f"s_add_u32 s47, s47, {LKV}")
    a.extend(w_blocks(48, NE, 47))
    a.I("v_and_b32 v2, 31, v1", "v_lshlrev_b32 v31, 11, v2", f"s_mul_i32 s48, s20, {96*2048}", f"s_add_u32 s48, s48, {640*2048}", "s_add_u32 s48, s48, s49",
        "s_lshl_b32 s17, s23, 7", "v_add_u32 v31, s17, v31")
    for j in range(3): a.I(f"s_add_u32 s16, s48, {j*32*2048}", "s_and_b32 s16, s16, 0x1fffff", f"buffer_load_dword v{28+j}, v31, s[24:27], s16 offen")
    a.I(
        f"s_mul_i32 s47, s20, {12*1024}", f"s_add_u32 s47, s47, {LKV}")
    xsel(a, 21)
    a.I("v_lshrrev_b32 v2, 5, v1", "v_lshlrev_b32 v12, 11, v2", "v_bfe_u32 v9, v1, 2, 3", "v_lshl_add_u32 v12, v9, 7, v12",
        "v_lshrrev_b32 v9, 1, v9", "v_lshl_add_u32 v12, v9, 5, v12", "v_and_b32 v9, 3, v1", "v_lshl_add_u32 v12, v9, 3, v12",
        f"v_add_u32 v12, {LKV}, v12")
    for u in range(1, 4): a.I(f"v_xor_b32 v{12+u}, {32*u}, v12")
    for u in range(4): a.I(f"v_add_u32 v{16+u}, 0x10000, v{12+u}")
    a.I("s_lshr_b32 s16, s22, 3", "s_lshl_b32 s16, s16, 1", "s_lshr_b32 s17, s23, 3", "s_lshl_b32 s17, s17, 2", "s_add_u32 s16, s16, s17",
        "s_and_b32 s17, s22, 7", "s_lshl_b32 s17, s17, 3", "s_add_u32 s16, s16, s17",
        "s_bfe_u32 s17, s23, 0x20001", "s_lshl_b32 s17, s17, 6", "s_add_u32 s16, s16, s17", "s_lshl_b32 s50, s16, 5",
        "s_lshl_b32 s16, s20, 2", "s_add_u32 s50, s50, s16", f"s_add_u32 s50, s50, {WS_FL+FL_O+16}",
        "v_lshlrev_b32 v22, 5, v1", "s_mov_b32 s19, 0xffff0000",
        "s_lshr_b32 s16, s22, 1", "s_lshl_b32 s18, s16, 10", "s_and_b32 s16, s22, 1", "s_lshl_b32 s16, s16, 1", "s_lshr_b32 s17, s20, 1",
        "s_add_u32 s16, s16, s17", "s_lshl_b32 s16, s16, 2", "s_add_u32 s18, s18, s16", f"s_add_u32 s18, s18, {WS_FL+FL_O}")
    a.extend(poll(18, 32, 22))
    ts(a, 5)
    L = Log()
    nxt = int(OPT.get("o0", 4))
    for kb in range(nxt): a.extend(L.note(o_load(kb), kb))
    sync_block(a, 23, 24, 25, 26)
    ts(a, 6)
    a.I(f"s_setprio {int(OPT.get('wp', 0))}")
    def reads(kb):
        vb, so = (12, kb * 4096) if kb < 16 else (16, (kb - 16) * 4096) if kb < NE else (12, (kb - NE) * 4096)
        return [f"ds_read_b64_tr_b16 {vr(FW[kb&1]+u*4+2*rd,2)}, v{vb+u} offset:{so+rd*1024}" for u in range(4) for rd in range(2)]
    a.extend(reads(0))
    for kb in range(32):
        wc = L.cnt(kb)
        if kb == NE - 1: wc = min(wc, len(L.l) - 1 - max(i for i, t in enumerate(L.l) if t == 99))
        a.I(f"s_waitcnt vmcnt({wc}) lgkmcnt(0)")
        if "wost" in EXP and kb in (0, 8, 20, 27): ts(a, {0: 9, 8: 10, 20: 11, 27: 12}[kb])
        if kb == SW:
            sync_block(a, 23, 24, 25, 26)
            a.extend(L.note(w_blocks(48, 12, 47), 99))
        if kb == NE - 1: sync_block(a, 23, 24, 25, 26)
        if kb == 20:
            a.extend(L.note(["s_add_u32 s16, s42, 0x8000"] + [f"buffer_load_dwordx4 {vr(XR+8*t+4*c,4)}, v21, s[28:31], s{42 if t == 0 else 16} offen offset:{c*64}"
                                                            for t in range(2) for c in range(2)], None))
        if kb == 24: a.extend(L.note(lanes(2) + [poll_load(50, 22, 27), "s_mov_b64 exec, -1"], None))
        m = [mfma16(ACC + (t * 4 + u) * 4, FW[kb & 1] + u * 4, OA + (kb % D) * 8 + 4 * t, "0" if kb == 0 else None) for u in range(4) for t in range(2)]
        a.extend(interleave(m, reads(kb + 1) if kb < 31 else [], [2, 2, 2, 2, 0, 0, 0, 0]))
        for _ in range(int(OPT.get("or", 2))):
            if nxt < 32 and nxt <= kb + D: a.extend(L.note(o_load(nxt), nxt)); nxt += 1
    a.I("s_setprio 3")
    a.extend(poll(50, 2, 22, 27, preloaded=0))
    a.I(f"s_add_u32 s17, s43, {4<<20}")
    for t in range(2):
        for c in range(2):
            a.I(f"buffer_load_dwordx4 {vr(P0+8*t+4*c,4)}, v{3 if t == 0 else 10}, s[32:35], s43 offen offset:{c*1024}",
                f"buffer_load_dwordx4 {vr(P1+8*t+4*c,4)}, v{3 if t == 0 else 10}, s[32:35], s17 offen offset:{c*1024}")
    for i in range(4):
        a.I(f"v_permlane16_swap_b32 v{XR+4*i}, v{XR+4*i+2}", f"v_permlane16_swap_b32 v{XR+4*i+1}, v{XR+4*i+3}")
    E = [(i, d, ACC + i * 8 + 2 * d, 160 + 4 * (i * 4 + d)) for i in range(4) for d in range(4)]
    for i, d, g, r in E: a.I(f"v_lshlrev_b32 v{r}, 16, v{XR+4*i+d}", f"v_and_b32 v{r+1}, s19, v{XR+4*i+d}")
    for i, d, g, r in E: a.I(f"v_add_f32 v{g}, v{g}, v{r}", f"v_add_f32 v{g+1}, v{g+1}, v{r+1}")
    for i in range(4):
        a.I(f"s_waitcnt vmcnt({6 - 2 * i + i})")
        Ei = E[4 * i:4 * i + 4]
        for i_, d, g, r in Ei:
            a.I(f"v_lshlrev_b32 v{r}, 16, v{P0+4*i+d}", f"v_and_b32 v{r+1}, s19, v{P0+4*i+d}",
                f"v_lshlrev_b32 v{r+2}, 16, v{P1+4*i+d}", f"v_and_b32 v{r+3}, s19, v{P1+4*i+d}")
        for i_, d, g, r in Ei: a.I(f"v_add_f32 v{r}, v{r}, v{r+2}", f"v_add_f32 v{r+1}, v{r+1}, v{r+3}")
        for i_, d, g, r in Ei: a.I(f"v_add_f32 v{g}, v{g}, v{r}", f"v_add_f32 v{g+1}, v{g+1}, v{r+1}")
        pk = 32 + 4 * i
        for i_, d, g, r in Ei: a.I(f"v_cvt_pk_bf16_f32 v{pk+d}, v{g}, v{g+1}")
        a.I(f"v_permlane16_swap_b32 v{pk}, v{pk+2}", f"v_permlane16_swap_b32 v{pk+1}, v{pk+3}",
            f"buffer_store_dwordx4 {vr(pk,4)}, v21, s[36:39], s42 offen offset:{(i&1)*64}")
        if i == 1: a.I("s_add_u32 s42, s42, 0x8000")

def fused():
    a = Asm()
    ts(a, 0)
    a.I("s_cmp_ge_u32 s2, 256", "s_cbranch_scc1 F_END",
        f"s_load_dwordx8 s[4:11], s[0:1], {KA_X}", f"s_load_dwordx4 s[40:43], s[0:1], {KA_WG}",
        f"s_load_dwordx4 s[12:15], s[0:1], {KA_DBG}", "s_memrealtime s[48:49]",
        "v_lshrrev_b32 v2, 6, v0", "v_and_b32 v1, 63, v0", "v_readfirstlane_b32 s20, v2", "v_lshlrev_b32 v3, 4, v1",
        "s_lshr_b32 s21, s2, 4", "s_lshl_b32 s21, s21, 3", "s_and_b32 s16, s2, 7", "s_add_u32 s45, s21, s16", "s_lshl_b32 s23, s45, 15",
        "s_mov_b32 s54, s20", "s_lshl_b32 s16, s20, 12", "s_add_u32 s19, s23, s16", "s_waitcnt lgkmcnt(0)")
    srd(a, 32, 14, WS_SIZE); srd(a, 56, 12, 256)
    a.I("s_or_b32 s16, s2, s20", "s_cmp_lg_u32 s16, 0", "s_cbranch_scc1 F_NT",
        "s_or_b32 s16, s48, 1", "v_mov_b32 v2, s16", "v_mov_b32 v8, 0", "s_mov_b64 exec, 1",
        "buffer_store_dword v2, v8, s[56:59], 0 offen sc1", "s_mov_b64 exec, -1")
    a.L("F_NT")
    phase0(a)
    ts(a, 8)
    if "p0st" in EXP:
        tl_dump(a, 13); a.I("s_endpgm")
    g1(a)
    a.I("s_and_b32 s20, s54, 3", "s_cmp_ge_u32 s54, 4", "s_cbranch_scc1 F_B")
    attention(a)
    wo(a)
    tl_dump(a, 13)
    a.I("s_endpgm")
    a.L("F_B")
    down(a)
    a.L("F_END")
    a.I("s_endpgm")
    return a, dict(grid=256, block=512, lds=163840, vgpr=256)

if __name__ == "__main__":
    path = sys.argv[1] if len(sys.argv) > 1 else "cdna_kernels/" + NAME + ".s"
    opts = dict(o.split("=") for o in sys.argv[2:])
    OPT = opts; EXP = opts.get("exp", ""); TL = bool(int(opts.get("tl", 0)))
    G.VERB = bool(int(opts.get("verb", 0)))
    G.build([(NAME if int(opts.get("single", 0)) else "fused8", fused())], path)
```

```python
import sys
from asmlib import *
import gen as G
from gen import (NAME, KA_X, KA_WQ, KA_WK, KA_WV, KA_WO, KA_WG, KA_WU, KA_WD, KA_OUT, KA_DBG, KA_WS,
                 WS_XN, WS_KV, WS_O, WS_H, WS_P, WS_SIZE, f32, vr, srd, mfma32, mfma16, QSCALE, mix2, front_pattern)
WS_FL = 0x0480000
FL_KV, FL_X, FL_H, FL_O, FL_P = 0, 4096, 12288, 20480, 24576
WS_TL = 0x3F10000
LKV = 65536
LQ = 131072
LC = 147456
HP = 224
TL = False; EXP = ""; OPT = {}
SC1 = " sc1"

def ts(a, i):
    if TL: a.I(f"s_mem{'' if 'cyc' in EXP else 'real'}time s[{62+2*i}:{63+2*i}]")
def tl_dump(a, n):
    if not TL: return
    a.I("s_waitcnt vmcnt(0) lgkmcnt(0)")
    ts(a, 7)
    if "hd" in EXP.split("_"):
        a.I("s_waitcnt lgkmcnt(0)", "v_mov_b32 v1, 0", "s_mov_b64 exec, 1", "s_not_b32 s90, s62", "v_mov_b32 v2, s90",
            "buffer_atomic_umax v2, v1, s[56:59], 0 offen offset:4", "s_lshr_b32 s90, s54, 2", "s_mul_i32 s90, s90, 0")
        lab = f"HD{len(a.items)}"
        for j, i in enumerate((0, 8, 11, 12, 1, 2, 3, 4, 5, 7)):
            if j == 6: a.I("s_cmp_ge_u32 s54, 4", f"s_cbranch_scc1 {lab}")
            if j in (2, 3): a.I("s_cmp_ge_u32 s54, 4", f"s_cselect_b32 s{62+2*i}, 0, s{62+2*i}")
            a.I(f"v_mov_b32 v2, s{62+2*i}", f"buffer_atomic_umax v2, v1, s[56:59], 0 offen offset:{8+4*j}")
        a.I("s_endpgm")
        a.L(lab)
        for j, i in enumerate((3, 4, 7)):
            a.I(f"v_mov_b32 v2, s{62+2*i}", f"buffer_atomic_umax v2, v1, s[56:59], 0 offen offset:{48+4*j}")
        return
    a.I("s_waitcnt lgkmcnt(0)", "s_lshl_b32 s90, s2, 3", "s_add_u32 s90, s90, s54", "s_lshl_b32 s90, s90, 6",
        f"s_add_u32 s90, s90, {WS_TL}", "v_mov_b32 v1, 0", "s_mov_b64 exec, 1")
    for i in range(n):
        a.I(f"v_mov_b32 v2, s{62+2*i}", f"buffer_store_dword v2, v1, s[32:35], s90 offen offset:{4*i}")

_n = [0]
def lanes(n): return [f"s_mov_b32 exec_lo, {((1 << n) - 1) & 0xffffffff:#x}", f"s_mov_b32 exec_hi, {((1 << n) - 1) >> 32:#x}"] if n < 64 else []
def poll_load(soff, voff, dst, wide=False):
    return f"buffer_load_dword{'x4' if wide else ''} {vr(dst, 4 if wide else 1)}, v{voff}, s[32:35], s{soff} offen sc1"
def poll_test(dst, wide):
    if wide:
        return [f"v_xor_b32 v{dst+i}, s55, v{dst+i}" for i in range(4)] + \
               [f"v_or3_b32 v{dst}, v{dst}, v{dst+1}, v{dst+2}", f"v_or_b32 v{dst}, v{dst}, v{dst+3}", f"v_cmp_ne_u32 vcc, 0, v{dst}"]
    return [f"v_cmp_ne_u32 vcc, s55, v{dst}"]
def poll(soff, n, voff, dst=2, wide=False, preloaded=None):
    _n[0] += 1; lab = f"POLL{_n[0]}"
    o = lanes(n)
    if preloaded is not None:
        o += [f"s_waitcnt vmcnt({preloaded})"] + poll_test(dst, wide) + [f"s_cbranch_vccz {lab}_D"]
    o += ["s_mov_b32 s17, 0x40000", lab + ":", poll_load(soff, voff, dst, wide), "s_waitcnt vmcnt(0)"] + poll_test(dst, wide)
    o += [f"s_cbranch_vccz {lab}_D", "s_sleep 2", "s_sub_u32 s17, s17, 1", "s_cmp_lg_u32 s17, 0", f"s_cbranch_scc1 {lab}", lab + "_D:"]
    if n < 64: o += ["s_mov_b64 exec, -1"]
    return o
def set_flag(a, soff):
    a.I("v_mov_b32 v2, s55", "v_mov_b32 v8, 0", "s_mov_b64 exec, 1",
        f"buffer_store_dword v2, v8, s[32:35], s{soff} offen sc1", "s_mov_b64 exec, -1")
def wave_flag(a, reg, base):
    a.I(f"s_lshl_b32 s{reg}, s2, 3", f"s_add_u32 s{reg}, s{reg}, s54", f"s_lshl_b32 s{reg}, s{reg}, 2", f"s_add_u32 s{reg}, s{reg}, {WS_FL+base}")
def sync_setup(a, base, own, chk, one):
    a.I("s_lshl_b32 s16, s20, 8", f"s_add_u32 s16, s16, {base}", f"v_lshl_add_u32 v{own}, v1, 2, s16",
        "v_and_b32 v2, 3, v1", f"v_lshlrev_b32 v{chk}, 8, v2", f"v_lshl_add_u32 v{chk}, v1, 2, v{chk}", f"v_add_u32 v{chk}, {base}, v{chk}",
        f"v_mov_b32 v{one}, 1", "s_mov_b32 s53, 0")
def sync_block(a, own, chk, one, tmp):
    _n[0] += 1; lab = f"SY{_n[0]}"
    a.I(f"ds_add_u32 v{own}, v{one}", "s_add_u32 s53, s53, 1")
    a.L(lab)
    a.I(f"ds_read_b32 v{tmp}, v{chk}", "s_waitcnt lgkmcnt(0)", f"v_cmp_gt_u32 vcc, s53, v{tmp}", f"s_cbranch_vccnz {lab}")
def xsel(a, dst):
    a.I("v_and_b32 v2, 15, v1", f"v_lshlrev_b32 v{dst}, 11, v2", "v_bfe_u32 v2, v1, 4, 1", f"v_lshl_add_u32 v{dst}, v2, 5, v{dst}",
        "v_lshrrev_b32 v2, 5, v1", f"v_lshl_add_u32 v{dst}, v2, 4, v{dst}")
def is_vm(x): return x.startswith("buffer") or x.startswith("global")
def groups_of(dm):
    gs = []; cur = []
    for x in dm:
        cur.append(x)
        if is_vm(x): gs.append(cur); cur = []
    gs[-1] += cur
    return gs
def mixmem(rd, dm, dma_first=True):
    if not rd or not dm: return rd + dm
    gs = groups_of(dm)
    pre = [x for x in rd if x.startswith("v_")]; ds = [x for x in rd if x.startswith("ds_")]; post = [x for x in rd if x.startswith("s_")]
    o = list(pre); n = len(gs); per = len(ds) // n
    for g in range(n):
        part = ds[g * per:(g + 1) * per if g < n - 1 else len(ds)]
        o += (gs[g] + part) if dma_first else (part + gs[g])
    return o + post
class Log:
    def __init__(self): self.l = []
    def note(self, instrs, st): self.l += [st] * sum(map(is_vm, instrs)); return instrs
    def cnt(self, st):
        last = max([i for i, s_ in enumerate(self.l) if s_ is not None and s_ <= st], default=-1)
        return len(self.l) - 1 - last

WA0, WA1, WST = 116, 118, 120
def w_dma(slotreg):
    return [f"s_add_u32 m0, s{slotreg}, s46", "s_nop 0",
            f"global_load_lds_dwordx4 {vr(WA0,2)}, off", f"global_load_lds_dwordx4 {vr(WA1,2)}, off offset:1024",
            f"v_lshl_add_u64 {vr(WA0,2)}, {vr(WST,2)}, 0, {vr(WA0,2)}", f"v_lshl_add_u64 {vr(WA1,2)}, {vr(WST,2)}, 0, {vr(WA1,2)}"]

def phase0(a):
    LW, LX, LR = 49152, 114688, 147456
    srd(a, 24, 4, 2048 * 2048)
    for i in range(4): a.I(f"buffer_load_dwordx4 {vr(8+4*i,4)}, v3, s[24:27], s19 offen offset:{i*1024}")
    a.I("v_mov_b32 v7, 0", "buffer_load_dword v6, v7, s[56:59], 0 offen sc1")
    a.I("s_bfe_u32 s22, s2, 0x10003", "s_cmp_eq_u32 s22, 0", "s_cselect_b64 s[12:13], s[8:9], s[10:11]")
    srd(a, 28, 12, 65536)
    a.I("s_lshl_b32 s17, s20, 13")
    a.I("s_and_b32 s16, s2, 7", "s_lshl_b32 s16, s16, 2", "s_bfe_u32 s21, s2, 0x20003", "s_add_u32 s21, s21, s16",
        "s_and_b32 s23, s20, 3", "s_cmp_lt_u32 s20, 4", "s_cselect_b64 s[12:13], s[42:43], s[40:41]", "s_cselect_b32 s18, 32, 0",
        "s_cselect_b32 s46, 8192, 0", "s_lshl_b32 s16, s23, 11", "s_add_u32 s46, s46, s16", "s_add_u32 s46, s46, 16384",
        "v_lshrrev_b32 v2, 4, v1", "s_lshl_b32 s16, s23, 3", "v_add_u32 v4, s16, v2",
        "s_and_b32 s16, s23, 1", "s_lshl_b32 s16, s16, 2", "v_add_u32 v2, s16, v2", "v_bfe_u32 v5, v1, 1, 3", "v_xor_b32 v2, v2, v5",
        "v_cmp_eq_u32 vcc, 7, v2", "v_mov_b32 v5, 7168", "v_mov_b32 v112, 2048", f"v_cndmask_b32 v{WST}, v5, v112, vcc",
        f"v_mul_lo_u32 v4, v4, v{WST}",
        "s_mul_i32 s16, s21, 224", "v_lshl_add_u32 v5, v2, 5, s16", "s_lshl_b32 s16, s21, 6", "s_add_u32 s16, s16, s18",
        "v_mov_b32 v112, s16", "v_cndmask_b32 v5, v5, v112, vcc", "v_add_u32 v4, v4, v5",
        "v_and_b32 v2, 1, v1", "v_lshl_add_u32 v4, v2, 4, v4",
        "v_mov_b32 v5, s12", "v_mov_b32 v112, s6", f"v_cndmask_b32 v{WA0}, v5, v112, vcc",
        "v_mov_b32 v5, s13", "v_mov_b32 v112, s7", f"v_cndmask_b32 v{WA0+1}, v5, v112, vcc",
        "v_mov_b32 v5, 0", f"v_lshl_add_u64 {vr(WA0,2)}, v[4:5], 0, {vr(WA0,2)}",
        f"v_lshlrev_b32 v4, 2, v{WST}", "v_add_u32 v4, -1024, v4" if False else "v_subrev_u32 v4, 1024, v4",
        f"v_lshl_add_u64 {vr(WA1,2)}, v[4:5], 0, {vr(WA0,2)}",
        f"v_lshlrev_b32 v{WST}, 5, v{WST}", f"v_mov_b32 v{WST+1}, 0", "s_mov_b32 s47, 0")
    srd(a, 24, 12, 1024 * 3584 * 2)
    a.I("v_lshrrev_b32 v2, 1, v1", "s_lshl_b32 s16, s23, 5", "s_add_u32 s16, s16, 32", "v_add_u32 v2, s16, v2",
        "v_mul_u32_u24 v112, 7168, v2", "v_and_b32 v2, 1, v1", "v_mul_u32_u24 v2, 208, v2", "v_add_u32 v112, v112, v2",
        "s_mul_i32 s44, s21, 224")
    a.I("s_mov_b32 s21, s45", "s_lshl_b32 s23, s21, 15", "s_mov_b32 s36, 0xffff0000", "s_waitcnt vmcnt(1)")
    ts(a, 9)
    late = [f"s_add_u32 m0, s17, {LW}", "s_add_u32 s18, s17, 4096"]
    late += [f"buffer_load_dwordx4 v3, s[28:31], s17 offen offset:{i*1024} lds" for i in range(4)]
    late += [f"s_add_u32 m0, s18, {LW}", "s_nop 0"]
    late += [f"buffer_load_dwordx4 v3, s[28:31], s18 offen offset:{i*1024} lds" for i in range(4)]
    late += w_dma(47) + ["buffer_load_dword v113, v112, s[24:27], s44 offen"]
    mark = len(a.items)
    for r in range(2):
        for d in range(8):
            src = 8 + 8 * r + d
            a.I(f"v_lshlrev_b32 v{32+16*r+2*d}, 16, v{src}", f"v_and_b32 v{33+16*r+2*d}, s36, v{src}")
    def tree2(bases, sq):
        T_ = [(24 + i, bases[i], 64 + 8 * i) for i in range(2)]
        for dst, base, t in T_:
            for i in range(8):
                a.I(f"v_mul_f32 v{t+i}, v{base+2*i}, v{base+2*i}" if sq else f"v_add_f32 v{t+i}, v{base+2*i}, v{base+2*i+1}")
        if sq:
            for dst, base, t in T_:
                for i in range(8): a.I(f"v_fmac_f32 v{t+i}, v{base+2*i+1}, v{base+2*i+1}")
        for s_ in (4, 2):
            for dst, base, t in T_:
                for i in range(s_): a.I(f"v_add_f32 v{t+i}, v{t+i}, v{t+i+s_}")
        for dst, base, t in T_: a.I(f"v_add_f32 v{dst}, v{t}, v{t+1}")
    def wavered(rs, ss):
        for mod in ("row_shr:1 row_mask:0xf bank_mask:0xf bound_ctrl:0", "row_shr:2 row_mask:0xf bank_mask:0xf bound_ctrl:0",
                    "row_shr:4 row_mask:0xf bank_mask:0xf bound_ctrl:0", "row_shr:8 row_mask:0xf bank_mask:0xf bound_ctrl:0",
                    "row_bcast:15 row_mask:0xa bank_mask:0xf", "row_bcast:31 row_mask:0xc bank_mask:0xf"):
            for r in rs: a.I(f"v_add_f32_dpp v{r}, v{r}, v{r} {mod}")
        for r, s_ in zip(rs, ss): a.I(f"v_readlane_b32 s{s_}, v{r}, 63")
    if "p0st" in EXP: ts(a, 1)
    tree2((32, 48), False)
    wavered((24, 25), (40, 41))
    if "p0st" in EXP: ts(a, 2)
    a.I(f"s_mov_b32 s37, {f32(1.0/1024)}")
    a.I("v_mov_b32 v26, s40", "v_mov_b32 v27, s41", "v_mul_f32 v26, s37, v26", "v_mul_f32 v27, s37, v27")
    for r in range(2):
        for i in range(16): a.I(f"v_sub_f32 v{80+16*r+i}, v{32+16*r+i}, v{26+r}")
    tree2((80, 96), True)
    wavered((24, 25), (42, 43))
    a.I("v_mov_b32 v28, s42", "v_mov_b32 v29, s43", "v_mul_f32 v28, s37, v28", "v_mul_f32 v29, s37, v29")
    def rnd(*rs):
        for r in rs: a.I(f"v_cvt_pk_bf16_f32 v{r}, v{r}, v{r}")
        for r in rs: a.I(f"v_lshlrev_b32 v{r}, 16, v{r}")
    a.I(f"s_mov_b32 s38, {f32(1e-5)}")
    rnd(28, 29, 26, 27)
    a.I("v_add_f32 v28, s38, v28", "v_add_f32 v29, s38, v29"); rnd(28, 29)
    a.I("v_sqrt_f32 v28, v28", "v_sqrt_f32 v29, v29"); rnd(28, 29)
    a.I("v_rcp_f32 v28, v28", "v_rcp_f32 v29, v29")
    if "p0st" in EXP: ts(a, 3)
    P_ = [(r, d, 32 + 16 * r + 2 * d) for r in range(2) for d in range(8)]
    for r, d, b in P_: a.I(f"v_sub_f32 v{b}, v{b}, v{26+r}", f"v_sub_f32 v{b+1}, v{b+1}, v{26+r}")
    for r, d, b in P_: a.I(f"v_cvt_pk_bf16_f32 v{80+8*r+d}, v{b}, v{b+1}")
    for r, d, b in P_: a.I(f"v_lshlrev_b32 v{b}, 16, v{80+8*r+d}", f"v_and_b32 v{b+1}, s36, v{80+8*r+d}")
    for r, d, b in P_: a.I(f"v_mul_f32 v{b}, v{b}, v{28+r}", f"v_mul_f32 v{b+1}, v{b+1}, v{28+r}")
    for r, d, b in P_: a.I(f"v_cvt_pk_bf16_f32 v{8+8*r+d}, v{b}, v{b+1}")
    body = a.items[mark:]; del a.items[mark:]
    gs = groups_of(late); step = int(OPT.get("lst", 24))
    for i, it in enumerate(body):
        if i % step == 0 and gs: a.extend(gs.pop(0))
        a.items.append(it)
    assert not gs
    if "p0st" in EXP: ts(a, 4)
    a.I("s_lshl_b32 s16, s20, 1", "v_and_b32 v2, 15, v1", "v_xor_b32 v2, s16, v2", "v_lshlrev_b32 v4, 8, v1", "v_lshl_add_u32 v4, v2, 4, v4",
        f"v_add_u32 v4, {LX}, v4", "v_xor_b32 v25, 16, v4")
    for r in range(2):
        for p in range(2): a.I(f"ds_write_b128 v{25 if r else 4}, {vr(8+8*r+4*p,4)} offset:{p*16384}")
    a.I("v_lshrrev_b32 v5, 4, v1", "v_lshlrev_b32 v2, 4, v5", "v_xor_b32 v26, v2, v3",
        "s_lshl_b32 s16, s20, 12", f"s_add_u32 s16, s16, {LX}", "v_add_u32 v30, s16, v26",
        "v_xor_b32 v27, 64, v30", "v_xor_b32 v28, 0x80, v30", "v_xor_b32 v29, 0xc0, v30",
        "v_lshlrev_b32 v31, 9, v5", "v_bfe_u32 v2, v1, 2, 2", "v_lshl_add_u32 v31, v2, 6, v31",
        "v_and_b32 v2, 3, v1", "v_lshl_add_u32 v31, v2, 3, v31", f"s_add_u32 s16, s17, {LW}", "v_add_u32 v31, s16, v31",
        "s_lshl_b32 s16, s22, 14", "s_lshl_b32 s18, s20, 11", "s_add_u32 s16, s16, s18",
        "s_add_u32 s39, s23, s16", f"s_add_u32 s16, s16, {LX}", "v_add_u32 v24, s16, v26",
        "s_and_b32 s16, s20, 1", "s_lshl_b32 s16, s16, 7", "v_xor_b32 v24, s16, v24", "v_xor_b32 v25, 64, v24",
        "s_waitcnt lgkmcnt(0)", "s_barrier")
    ts(a, 10)
    a.I("ds_read_b128 v[8:11], v24", "ds_read_b128 v[12:15], v25 offset:1024", "s_waitcnt vmcnt(3) lgkmcnt(0)")
    a.I("buffer_store_dwordx4 v[8:11], v3, s[32:35], s39 offen sc1", "buffer_store_dwordx4 v[12:15], v3, s[32:35], s39 offen offset:1024 sc1",
        "v_readfirstlane_b32 s55, v6")
    for j in range(4):
        a.I(f"ds_read_b128 {vr(32+4*j,4)}, v{(30, 27, 28, 29)[j]} offset:{j*1024}")
        for d in range(2):
            for rd in range(2):
                a.I(f"ds_read_b64_tr_b16 {vr(64+8*j+4*d+2*rd,2)}, v31 offset:{j*2048+rd*256+d*32}")
    a.I("s_waitcnt lgkmcnt(0)", "s_cmp_eq_u32 s22, 0", "s_cbranch_scc0 P0_V")
    for j in range(4):
        for d in range(2): a.I(mfma16(96 + 4 * d, 64 + 8 * j + 4 * d, 32 + 4 * j, "0" if j == 0 else None))
    a.I("s_branch P0_R")
    a.L("P0_V")
    for j in range(4):
        for d in range(2): a.I(mfma16(96 + 4 * d, 32 + 4 * j, 64 + 8 * j + 4 * d, "0" if j == 0 else None))
    a.L("P0_R")
    a.I("s_lshl_b32 s16, s20, 11", f"s_add_u32 s16, s16, {LR}", "v_add_u32 v4, s16, v3")
    wave_flag(a, 18, FL_X)
    for d in range(2): a.I(f"ds_write_b128 v4, {vr(96+4*d,4)} offset:{d*1024}")
    a.I("s_mov_b32 s17, 0x40000")
    a.L("P0_TAG")
    a.I("s_cmp_lg_u32 s55, 0", "s_cbranch_scc1 P0_TAGOK",
        "buffer_load_dword v6, v7, s[56:59], 0 offen sc1", "s_waitcnt vmcnt(0)", "v_readfirstlane_b32 s55, v6",
        "s_sub_u32 s17, s17, 1", "s_cmp_lg_u32 s17, 0", "s_cbranch_scc1 P0_TAG")
    a.L("P0_TAGOK")
    a.I("s_waitcnt vmcnt(0)")
    set_flag(a, 18)
    a.I("s_waitcnt lgkmcnt(0)", "s_barrier")
    a.I("s_cmp_lg_u32 s20, 0", "s_cbranch_scc1 P0_END")
    a.I(f"v_add_u32 v4, {LR}, v3")
    for w in range(8):
        a.I(f"ds_read_b128 {vr(32+8*w,4)}, v4 offset:{w*2048}", f"ds_read_b128 {vr(36+8*w,4)}, v4 offset:{w*2048+1024}")
    a.I("s_waitcnt lgkmcnt(0)")
    for s_ in (4, 2, 1):
        for w in range(s_):
            for i in range(8): a.I(f"v_add_f32 v{32+8*w+i}, v{32+8*w+i}, v{32+8*(w+s_)+i}")
    for d in range(4): a.I(f"v_cvt_pk_bf16_f32 v{8+d}, v{32+2*d}, v{33+2*d}")
    a.I("s_lshr_b32 s16, s21, 1", "s_lshl_b32 s19, s16, 12", f"s_add_u32 s19, s19, {WS_KV}",
        "s_and_b32 s16, s21, 1", "s_lshl_b32 s16, s16, 10", "s_add_u32 s19, s19, s16",
        "s_cmp_eq_u32 s22, 0", "s_cbranch_scc0 P0_SV",
        "buffer_store_dwordx4 v[8:11], v3, s[32:35], s19 offen sc1", "s_branch P0_KF")
    a.L("P0_SV")
    a.I("v_and_b32 v2, 1, v5", "v_lshlrev_b32 v4, 9, v2", "v_and_b32 v2, 15, v1", "v_lshl_add_u32 v4, v2, 4, v4",
        "v_lshrrev_b32 v2, 1, v5", "v_lshl_add_u32 v4, v2, 3, v4",
        "buffer_store_dwordx2 v[8:9], v4, s[32:35], s19 offen offset:2048 sc1",
        "buffer_store_dwordx2 v[10:11], v4, s[32:35], s19 offen offset:2304 sc1")
    a.L("P0_KF")
    a.I("s_lshl_b32 s18, s2, 2", f"s_add_u32 s18, s18, {WS_FL+FL_KV}", "s_waitcnt vmcnt(0)")
    set_flag(a, 18)
    a.L("P0_END")

def kv_groups():
    gs = []
    for g in range(2):
        for i in range(4):
            o = [f"s_add_u32 m0, s25, {g*4096}", f"s_add_u32 s26, s24, {g*4096}"] if i == 0 else []
            gs.append(o + [f"buffer_load_dwordx4 v3, s[36:39], s26 offen offset:{i*1024} lds"])
    gs[-1] += ["s_add_u32 s24, s24, 32768", "s_xor_b32 s25, s25, 32768"]
    return gs

def g1(a):
    NST = 32; R = 5; SLOT = 32768
    ACC = 128; FA = 64; FW = 96
    def acc(h, u, t): return ACC + (t * 4 + h * 2 + u) * 4
    a.I("s_and_b32 s16, s2, 7", "s_lshl_b32 s16, s16, 2", "s_bfe_u32 s21, s2, 0x20003", "s_add_u32 s21, s21, s16",
        "s_lshr_b32 s22, s2, 5", "s_and_b32 s23, s20, 3", "v_add_u32 v10, 31744, v3",
        "s_lshl_b32 s16, s22, 4", "s_lshl_b32 s17, s20, 1", "s_add_u32 s16, s16, s17", "s_lshl_b32 s44, s16, 15",
        "s_lshl_b32 s45, s20, 11", "s_mov_b32 s47, 0", "s_mov_b32 s50, 0", f"s_mov_b32 s52, {SLOT}",
        "s_lshl_b32 s18, s22, 5", "s_lshr_b32 s16, s20, 2", "s_lshl_b32 s16, s16, 4", "s_add_u32 s18, s18, s16",
        "s_lshl_b32 s16, s23, 1", "s_add_u32 s18, s18, s16", "s_lshl_b32 s18, s18, 5", f"s_add_u32 s18, s18, {WS_FL+FL_X}",
        "v_and_b32 v2, 15, v1", "v_lshlrev_b32 v8, 2, v2", "v_lshrrev_b32 v2, 4, v1", "v_lshl_add_u32 v8, v2, 8, v8")
    a.extend(poll(18, 32, 8))
    ts(a, 11)
    def adv(reg): return [f"s_add_u32 s{reg}, s{reg}, {SLOT}", f"s_cmp_eq_u32 s{reg}, {SLOT*R}", f"s_cselect_b32 s{reg}, 0, s{reg}"]
    def dma_act():
        return ["s_add_u32 m0, s47, s45", "s_nop 0", "buffer_load_dwordx4 v3, s[32:35], s44 offen lds",
                "buffer_load_dwordx4 v10, s[32:35], s44 offen offset:1024 lds", "s_add_u32 s44, s44, 1024"] + adv(47)
    def dma_w(): return w_dma(52) + adv(52)
    def rdaddr():
        return ["s_lshr_b32 s17, s20, 2", "s_lshl_b32 s16, s17, 13", "v_add_u32 v6, s16, v3",
                "s_and_b32 s19, s21, 1", "s_lshl_b32 s16, s23, 1", "s_add_u32 s40, s16, s19", "s_add_u32 s41, s40, 1",
                "s_mul_i32 s16, s19, 6", "s_sub_u32 s16, 6, s16", "s_cmp_eq_u32 s23, 3", "s_cselect_b32 s40, s16, s40", "s_cselect_b32 s41, 7, s41",
                "v_lshrrev_b32 v2, 4, v1", "v_lshlrev_b32 v7, 11, v2", "v_and_b32 v2, 1, v2", "v_lshlrev_b32 v12, 2, v2",
                "v_bfe_u32 v2, v1, 2, 2", "v_lshl_add_u32 v7, v2, 8, v7", "v_add_u32 v12, v12, v2",
                "v_and_b32 v2, 3, v1", "v_lshl_add_u32 v7, v2, 3, v7", "v_add_u32 v7, 16384, v7",
                "v_xor_b32 v2, s41, v12", "v_lshl_add_u32 v11, v2, 5, v7", "v_xor_b32 v2, s40, v12", "v_lshl_add_u32 v7, v2, 5, v7"]
    def reads():
        o = ["v_add_u32 v8, s50, v6", "v_add_u32 v9, s50, v7", "v_add_u32 v13, s50, v11"]
        for h in range(2):
            for u in range(2):
                for rd in range(2):
                    o.append(f"ds_read_b64_tr_b16 {vr(FW+(h*2+u)*4+2*rd,2)}, v{9 if u == 0 else 13} offset:{h*8192+rd*1024}")
        for t in range(8): o.append(f"ds_read_b128 {vr(FA+t*4,4)}, v8 offset:{t*1024}")
        return o + adv(50)
    def mm(first):
        return [mfma16(acc(h, u, t), FW + (h * 2 + u) * 4, FA + t * 4, "0" if first else None) for t in range(8) for h in range(2) for u in range(2)]
    a.I("s_cmp_ge_u32 s20, 4", "s_cbranch_scc1 G1_B")
    L = Log()
    for j in range(R):
        if 0 < j < R - 1: a.extend(L.note(dma_w(), j))
        a.extend(L.note(dma_act(), j))
    a.extend(rdaddr())
    a.I(f"s_waitcnt vmcnt({L.cnt(0)})", "s_barrier")
    a.extend(reads())
    a.I(f"s_waitcnt vmcnt({L.cnt(1)}) lgkmcnt(0)", "s_barrier")
    ts(a, 12)
    kv = kv_groups()
    def bodyA(k, first=False):
        o = mm(first)
        dm = L.note([f"s_mov_b32 s18, {WS_FL+FL_KV}", poll_load(18, 3, 28, True)], None) if k == 27 else []
        dm += (L.note(dma_w(), k - 1 + R) if k - 1 + R < NST else []) + (L.note(dma_act(), k + R) if k + R < NST else [])
        if k == 28:
            o += poll(18, 64, 3, 28, True, preloaded=2)
            o += ["s_lshl_b32 s24, s20, 13", f"s_add_u32 s25, s24, {LKV}",
                  f"s_add_u32 s36, s32, {WS_KV}", "s_addc_u32 s37, s33, 0", "s_mov_b32 s38, 0x40000", "s_mov_b32 s39, 0x20000"]
            dm = L.note([x for g in kv for x in g], None)
        if k == 29: dm = L.note([x for g in kv for x in g], None)
        o += mixmem(reads() if k + 1 < NST else [], dm)
        if k + 1 < NST: o += [f"s_waitcnt vmcnt({L.cnt(k + 2)}) lgkmcnt(0)", "s_barrier"]
        return o
    a.extend(bodyA(0, True))
    a.I(f"s_mov_b32 s51, {NST-R-1}")
    a.L("G1_A_LOOP")
    body = bodyA(1)
    for k in range(2, NST - R): assert bodyA(k) == body
    a.extend(body)
    a.I("s_sub_u32 s51, s51, 1", "s_cmp_lg_u32 s51, 0", "s_cbranch_scc1 G1_A_LOOP")
    for k in range(NST - R, NST): a.extend(bodyA(k))
    a.I("s_branch G1_EPI")
    a.L("G1_B")
    M = Log()
    for j in range(R - 1):
        if j: a.extend(M.note(dma_w(), j))
        a.extend(M.note(dma_act(), j))
    a.extend(rdaddr())
    a.I(f"s_waitcnt vmcnt({M.cnt(0)})", "s_barrier", f"s_waitcnt vmcnt({M.cnt(1)})", "s_barrier")
    def bodyB(k, first=False):
        dm = M.note(dma_w() + dma_act(), k - 1 + R) if k - 1 + R < NST else []
        o = mixmem(reads(), dm) + ["s_waitcnt lgkmcnt(0)"] + mm(first)
        if k + 1 < NST: o += [f"s_waitcnt vmcnt({M.cnt(k + 2)})", "s_barrier"]
        return o
    a.extend(bodyB(0, True))
    a.I(f"s_mov_b32 s51, {NST-R}")
    a.L("G1_B_LOOP")
    body = bodyB(1)
    for k in range(2, NST - R + 1): assert bodyB(k) == body
    a.extend(body)
    a.I("s_sub_u32 s51, s51, 1", "s_cmp_lg_u32 s51, 0", "s_cbranch_scc1 G1_B_LOOP")
    for k in range(NST - R + 1, NST): a.extend(bodyB(k))
    a.L("G1_EPI")
    ts(a, 1)
    a.I("s_lshl_b32 s16, s20, 8", f"s_add_u32 s16, s16, {LC}", "v_lshl_add_u32 v13, v1, 2, s16", "v_mov_b32 v12, 0", "ds_write_b32 v13, v12")
    wave_flag(a, 60, FL_H)
    a.I("s_lshl_b32 s16, s22, 4", "s_lshr_b32 s17, s20, 2", "s_lshl_b32 s17, s17, 3", "s_add_u32 s16, s16, s17", "s_mul_i32 s16, s16, 112",
        "s_mul_i32 s17, s21, 7", "s_add_u32 s17, s17, s40", "s_lshr_b32 s17, s17, 1", "s_add_u32 s16, s16, s17",
        "s_lshl_b32 s16, s16, 10", f"s_add_u32 s61, s16, {WS_H}", "s_cmp_eq_u32 s23, 3", "s_cbranch_scc1 G1_EPQ")
    for t in reversed(range(8)):
        g, u = acc(0, 0, t), acc(1, 0, t)
        for i in range(8): a.I(f"v_max_f32 v{g+i}, 0, v{g+i}")
        for i in range(8): a.I(f"v_mul_f32 v{g+i}, v{g+i}, v{u+i}")
        for d in range(4): a.I(f"v_cvt_pk_bf16_f32 v{HP+4*t+d}, v{g+2*d}, v{g+2*d+1}")
    a.I("s_branch G1_X")
    a.L("G1_EPQ")
    a.I(f"s_mov_b32 s18, {f32(QSCALE)}", "s_lshr_b32 s16, s20, 2", "s_lshl_b32 s16, s16, 13", f"s_add_u32 s16, s16, {LQ}",
        "v_add_u32 v9, s16, v3", "s_lshl_b32 s16, s19, 3", "s_add_u32 s61, s61, s16")
    for t in range(8):
        q0, q1 = acc(0, 1, t), acc(1, 1, t)
        for i in range(4): a.I(f"v_mul_f32 v{q0+i}, s18, v{q0+i}", f"v_mul_f32 v{q1+i}, s18, v{q1+i}")
        a.I(f"v_cvt_pk_bf16_f32 v{FA+4*t}, v{q0}, v{q0+1}", f"v_cvt_pk_bf16_f32 v{FA+4*t+1}, v{q0+2}, v{q0+3}",
            f"v_cvt_pk_bf16_f32 v{FA+4*t+2}, v{q1}, v{q1+1}", f"v_cvt_pk_bf16_f32 v{FA+4*t+3}, v{q1+2}, v{q1+3}",
            f"ds_write_b128 v9, {vr(FA+4*t,4)} offset:{t*1024}")
    for t in reversed(range(8)):
        g, u = acc(0, 0, t), acc(1, 0, t)
        for i in range(4): a.I(f"v_max_f32 v{g+i}, 0, v{g+i}")
        for i in range(4): a.I(f"v_mul_f32 v{g+i}, v{g+i}, v{u+i}")
        for d in range(2): a.I(f"v_cvt_pk_bf16_f32 v{HP+4*t+d}, v{g+2*d}, v{g+2*d+1}")
    a.L("G1_X")
    a.I("s_cmp_ge_u32 s20, 4", "s_cbranch_scc1 G1_X2", "s_lshl_b32 s16, s20, 11", "v_add_u32 v9, s16, v3")
    for t in range(8): a.I(f"ds_write_b128 v9, {vr(HP+4*t,4)} offset:{(t>>1)*8192+(t&1)*1024}")
    a.L("G1_X2")
    a.I("s_waitcnt lgkmcnt(0)", "s_barrier")
    ts(a, 2)

def h_stores(a):
    _n[0] += 1; lab = f"HS{_n[0]}"
    a.I(f"s_sub_u32 s16, s61, {8*112*1024}", "s_cmp_eq_u32 s20, 3", f"s_cbranch_scc1 {lab}")
    for w, n in ((4, lab + "_D"), (2, None)):
        for t in range(8): a.I(f"buffer_store_dwordx{w} {vr(HP+4*t,w)}, v3, s[32:35], s61 offen{SC1}", f"s_add_u32 s61, s61, {112*1024}")
        a.I("s_waitcnt lgkmcnt(0)")
        for t in range(8): a.I(f"buffer_store_dwordx{w} {vr(192+4*t,w)}, v3, s[32:35], s16 offen{SC1}", f"s_add_u32 s16, s16, {112*1024}")
        if n: a.I(f"s_branch {n}"); a.L(lab)
    a.L(lab + "_D")

def attention(a):
    QR = [16, 24]; KB = [32, 48]; VB = [40, 56]; P = 64; SEL = 72; Lr = [76, 80]; S = [96, 112]; O = [128, 144]; C = [160, 176]
    a.I(f"s_add_u32 s36, s32, {WS_KV}", "s_addc_u32 s37, s33, 0", "s_mov_b32 s38, 0x40000", "s_mov_b32 s39, 0x20000")
    a.I("v_bfe_u32 v2, v1, 4, 1", "v_lshlrev_b32 v4, 10, v2", "v_lshrrev_b32 v2, 5, v1", "v_lshl_add_u32 v4, v2, 8, v4",
        "v_and_b32 v2, 15, v1", "v_lshl_add_u32 v4, v2, 4, v4",
        "s_lshl_b32 s16, s20, 12", f"s_add_u32 s16, s16, {LQ}", "v_add_u32 v5, s16, v4")
    for b in range(2):
        for ks in range(2): a.I(f"ds_read_b128 {vr(QR[b]+4*ks,4)}, v5 offset:{b*2048+ks*512}")
    a.I(f"v_add_u32 v6, {LKV}, v4", f"v_add_u32 v7, {LKV+2048}, v3")
    sync_setup(a, LC, 13, 14, 12)
    a.I("s_waitcnt vmcnt(8)")
    sync_block(a, 13, 14, 12, 15)
    def rdK(buf, off): return [f"ds_read_b128 {vr(KB[buf]+4*ks,4)}, v6 offset:{off+ks*512}" for ks in range(2)]
    def rdV(buf, off): return [f"ds_read_b128 {vr(VB[buf]+4*ks,4)}, v7 offset:{off+ks*1024}" for ks in range(2)]
    a.extend(rdK(0, 0) + rdV(0, 0))
    a.I("v_lshrrev_b32 v2, 2, v1", "v_lshrrev_b32 v5, 4, v1", "v_xor_b32 v2, v2, v5", "v_and_b32 v2, 1, v2",
        "v_cmp_eq_u32 vcc, 0, v2", "v_mov_b32 v5, 0x3f803f80", "s_mov_b32 s28, 0",
        f"v_cndmask_b32 v{SEL}, 0, v5, vcc")
    for i in range(1, 4): a.I(f"v_mov_b32 v{SEL+i}, v{SEL}")
    a.I("s_waitcnt lgkmcnt(0)")
    ts(a, 3)
    for b in range(2):
        a.I(mfma32(S[b], KB[0], QR[b], "0"), mfma32(S[b], KB[0] + 4, QR[b] + 4))
    for b in range(2):
        for i in range(16): a.I(f"v_mov_b32 v{O[b]+i}, 0")
        for i in range(4): a.I(f"v_mov_b32 v{Lr[b]+i}, 0")
    for i in range(4): a.I(f"v_mov_b32 v{P+4+i}, 0", f"v_mov_b32 v{VB[1]+4+i}, 0")
    for b in range(2):
        s0 = S[b]; m = 8 + 2 * b
        a.I(f"v_max3_f32 v{m}, v{s0}, v{s0+1}, v{s0+2}")
        for i in range(3, 15, 2): a.I(f"v_max3_f32 v{m}, v{m}, v{s0+i}, v{s0+i+1}")
        a.I(f"v_max_f32 v{m}, v{m}, v{s0+15}", f"v_mov_b32 v{m+1}, v{m}")
    for b in range(2):
        m = 8 + 2 * b
        a.I(f"v_permlane32_swap_b32 v{m}, v{m+1}", f"v_max_f32 v{m}, v{m}, v{m+1}", f"v_sub_f32 v{C[b]}, 0, v{m}")
        for i in range(1, 16): a.I(f"v_mov_b32 v{C[b]+i}, v{C[b]}")
    a.I(mfma32(S[0], KB[0], QR[0], C[0]), mfma32(S[0], KB[0] + 4, QR[0] + 4))
    def tile(b, kbuf_next, vbuf, vprev, extra, dg):
        nb = 1 - b; s0 = S[b]
        ex = [f"v_exp_f32 v{s0+i}, v{s0+i}" for i in range(16)]
        cv = [f"v_cvt_pk_bf16_f32 v{P+d}, v{s0+2*d}, v{s0+2*d+1}" for d in range(8)]
        e = list(extra) + [None] * 4
        o = [mfma32(S[nb], KB[kbuf_next], QR[nb], C[nb]), e[0]] + ex[0:3]
        o += [mfma32(O[nb], VB[vprev] + 4, P + 4), e[1]] + ex[3:6]
        o += [mfma16(Lr[nb], SEL, P + 4)] + ex[6:8]
        o += [mfma32(S[nb], KB[kbuf_next] + 4, QR[nb] + 4), e[2], cv[0], cv[1], ex[8], cv[2], cv[3], ex[9], ex[10]]
        o += [mfma32(O[b], VB[vbuf], P), e[3]] + ex[11:14]
        o += [mfma16(Lr[b], SEL, P)] + (dg or []) + [ex[14], ex[15]] + cv[4:8]
        return [x for x in o if x]
    a.I(f"s_setprio {int(OPT.get('ap', 0))}", "s_nop 11")
    a.L("ATT_LOOP")
    dg = kv_groups()
    def slot(j):
        return ["s_cmp_eq_u32 s28, 0", f"s_cbranch_scc1 ATT_HB{j}"] + dg[j + 2] + [f"ATT_HB{j}:"]
    for kb in range(8):
        cur = kb & 1; nxt = 1 - cur
        if kb == 7:
            a.I("s_waitcnt vmcnt(0)")
            sync_block(a, 13, 14, 12, 15)
            a.I("v_xor_b32 v6, 0x8000, v6", "v_xor_b32 v7, 0x8000, v7")
        off = ((kb + 1) & 7) * 4096
        g0, g1 = (dg[0], dg[1]) if kb == 7 else (slot(2 * kb), slot(2 * kb + 1)) if kb < 3 else (None, None)
        a.extend(tile(0, cur, cur, nxt, rdK(nxt, off) + rdV(nxt, off), g0))
        a.I("s_waitcnt lgkmcnt(2)")
        a.extend(tile(1, nxt, cur, cur, [], g1))
        if kb == 7: a.I("s_add_u32 s28, s28, 1", f"s_cmp_lg_u32 s28, {1 if 'noatt' in EXP else 8}")
        a.I("s_waitcnt lgkmcnt(0)")
    a.I("s_cbranch_scc1 ATT_LOOP")
    a.I(mfma32(O[1], VB[1] + 4, P + 4), mfma16(Lr[1], SEL, P + 4))
    ts(a, 4)
    a.I("s_setprio 3", f"s_mov_b32 s16, {f32(2.0**100)}")
    for b in range(2):
        a.I(f"v_max3_f32 v{8+b}, abs(v{O[b]}), abs(v{O[b]+1}), v{Lr[b]}", f"v_add_f32 v{10+b}, v{O[b]}, v{O[b]+1}")
    for i in range(2, 16, 2):
        for b in range(2):
            a.I(f"v_max3_f32 v{8+b}, v{8+b}, abs(v{O[b]+i}), abs(v{O[b]+i+1})", f"v_add3_u32 v2, v2, v2, v2" if False else f"v_add_f32 v{10+b}, v{10+b}, v{O[b]+i}",
                f"v_add_f32 v{86+b}, v{O[b]+i+1}, v{Lr[b]}" if i == 2 else f"v_add_f32 v{86+b}, v{86+b}, v{O[b]+i+1}")
    a.I("v_max_f32 v8, v8, v9", "v_add_f32 v10, v10, v11", "v_add_f32 v86, v86, v87", "v_add_f32 v9, v10, v86")
    a.I("v_cmp_nlt_f32 vcc, v8, s16", "v_cmp_u_f32 s[18:19], v9, v9", "s_or_b64 vcc, vcc, s[18:19]")
    if "force" in EXP: a.I("s_mov_b64 vcc, -1")
    a.I("s_cbranch_vccz ATT_FIN")
    for b in range(2):
        M = 10; AL = 11
        for i in range(16): a.I(f"v_mov_b32 v{O[b]+i}, 0")
        for i in range(4): a.I(f"v_mov_b32 v{Lr[b]+i}, 0")
        a.I(f"v_mov_b32 v{M}, {f32(-3.0e38)}", f"s_mov_b32 s29, 0")
        a.L(f"ATT_FB{b}")
        for ks in range(2):
            a.I(f"buffer_load_dwordx4 {vr(KB[0]+4*ks,4)}, v4, s[36:39], s29 offen offset:{ks*512}",
                f"buffer_load_dwordx4 {vr(VB[0]+4*ks,4)}, v3, s[36:39], s29 offen offset:{2048+ks*1024}")
        a.I("s_waitcnt vmcnt(0)")
        s0 = S[0]
        a.I(mfma32(s0, KB[0], QR[b], "0"), mfma32(s0, KB[0] + 4, QR[b] + 4))
        a.I(f"v_max3_f32 v8, v{s0}, v{s0+1}, v{M}")
        for i in range(2, 16, 2): a.I(f"v_max3_f32 v8, v8, v{s0+i}, v{s0+i+1}")
        a.I("v_mov_b32 v9, v8", "v_permlane32_swap_b32 v8, v9", "v_max_f32 v8, v8, v9",
            f"v_sub_f32 v{AL}, v{M}, v8", f"v_exp_f32 v{AL}, v{AL}", f"v_mov_b32 v{M}, v8")
        for i in range(16): a.I(f"v_sub_f32 v{s0+i}, v{s0+i}, v8")
        for i in range(16): a.I(f"v_exp_f32 v{s0+i}, v{s0+i}")
        for i in range(16): a.I(f"v_mul_f32 v{O[b]+i}, v{O[b]+i}, v{AL}")
        for i in range(4): a.I(f"v_mul_f32 v{Lr[b]+i}, v{Lr[b]+i}, v{AL}")
        for d in range(8): a.I(f"v_cvt_pk_bf16_f32 v{P+d}, v{s0+2*d}, v{s0+2*d+1}")
        a.I(mfma32(O[b], VB[0], P), mfma16(Lr[b], SEL, P), mfma32(O[b], VB[0] + 4, P + 4), mfma16(Lr[b], SEL, P + 4))
        a.I("s_add_u32 s29, s29, 4096", f"s_cmp_lg_u32 s29, {64*4096}", f"s_cbranch_scc1 ATT_FB{b}")
    a.L("ATT_FIN")
    a.I("v_mov_b32 v23, v13", "v_mov_b32 v24, v14", "v_mov_b32 v25, v12")
    a.I("v_bfe_u32 v2, v1, 4, 1", "v_lshlrev_b32 v5, 15, v2", "v_lshrrev_b32 v2, 5, v1", "v_lshl_add_u32 v5, v2, 8, v5",
        "v_and_b32 v2, 15, v1", "v_lshl_add_u32 v5, v2, 4, v5",
        "s_lshl_b32 s16, s22, 2", "s_add_u32 s16, s16, s20", "s_lshl_b32 s16, s16, 7", "s_add_u32 s16, s16, s21", "s_lshl_b32 s16, s16, 10",
        f"s_add_u32 s16, s16, {WS_O}", "s_add_u32 s17, s16, 65536")
    for b in range(2): a.I(f"v_rcp_f32 v{8+b}, v{Lr[b]}")
    for b in range(2):
        for i in range(16): a.I(f"v_mul_f32 v{O[b]+i}, v{O[b]+i}, v{8+b}")
        for d in range(8): a.I(f"v_cvt_pk_bf16_f32 v{S[b]+d}, v{O[b]+2*d}, v{O[b]+2*d+1}")
        for ks in range(2):
            a.I(f"buffer_store_dwordx4 {vr(S[b]+4*ks,4)}, v5, s[32:35], s{16+b} offen offset:{ks*512}{SC1}")

def down(a):
    R = 8; SLOT = 8192; NST = 56
    FW_ = [32, 64]; AR = 192; ACC = 128
    M32 = "d16" not in EXP
    a.I(f"s_setprio {int(OPT.get('bp', 0))}", "s_lshl_b32 s16, s20, 11", "v_add_u32 v9, s16, v3")
    for t in range(8): a.I(f"ds_read_b128 {vr(192+4*t,4)}, v9 offset:{(t>>1)*8192+(t&1)*1024}")
    h_stores(a)
    a.I(f"s_load_dwordx2 s[8:9], s[0:1], {KA_WD}",
        "s_and_b32 s21, s2, 1",
        "s_bfe_u32 s16, s2, 0x10001", "s_lshl_b32 s16, s16, 3", "s_bfe_u32 s17, s2, 0x30003", "s_add_u32 s22, s16, s17",
        "s_bfe_u32 s16, s2, 0x10002", "s_lshl_b32 s16, s16, 2", "s_bfe_u32 s17, s2, 0x20006", "s_add_u32 s23, s16, s17",
        "s_lshl_b32 s46, s20, 11",
        "v_lshrrev_b32 v2, 4, v1", "s_lshl_b32 s16, s20, 3", "v_add_u32 v4, s16, v2", "v_lshlrev_b32 v4, 11, v4",
        "v_bfe_u32 v5, v1, 1, 3", *(["v_lshlrev_b32 v6, 1, v2", "v_xor_b32 v6, v6, v5", "v_mov_b32 v7, v6"] if M32 else ["v_xor_b32 v6, v2, v5", "v_xor_b32 v7, 4, v6"]),
        "v_and_b32 v2, 1, v1", "v_lshl_add_u32 v4, v2, 4, v4", "s_lshl_b32 s16, s23, 8", "v_add_u32 v4, s16, v4",
        f"v_add_u32 v5, {4*2048-1024}, v4",
        "v_lshl_add_u32 v4, v6, 5, v4", "v_lshl_add_u32 v5, v7, 5, v5",
        "s_mul_i32 s48, s21, %d" % (1792 * 2048), "s_waitcnt lgkmcnt(0)")
    srd(a, 24, 8, 3584 * 1024 * 2)
    def dma_w(st):
        return [f"s_add_u32 m0, s46, {(st % R) * SLOT}", "s_add_u32 s49, s48, 0",
                "buffer_load_dwordx4 v4, s[24:27], s49 offen lds", "s_add_u32 s48, s48, 65536",
                "buffer_load_dwordx4 v5, s[24:27], s49 offen offset:1024 lds"]
    def ld_a(st):
        r = AR + (st % R) * 8
        if M32: return [f"buffer_load_dwordx4 {vr(r,4)}, v10, s[32:35], s44 offen", f"buffer_load_dwordx4 {vr(r+4,4)}, v10, s[32:35], s44 offen offset:512",
                        "s_add_u32 s44, s44, 1024"]
        return [f"buffer_load_dwordx4 {vr(r,4)}, v3, s[32:35], s44 offen", f"buffer_load_dwordx4 {vr(r+4,4)}, v10, s[32:35], s44 offen",
                "s_add_u32 s44, s44, 1024"]
    L = Log()
    NW = int(OPT.get("nw", 2))
    for j in range(NW): a.extend(L.note(dma_w(j), ("w", j)))
    a.I(f"s_waitcnt vmcnt({2*NW})")
    ts(a, 9)
    set_flag(a, 60)
    for j in range(NW, R - 1): a.extend(L.note(dma_w(j), ("w", j)))
    a.I("s_lshl_b32 s16, s22, 3", "s_lshl_b32 s17, s20, 1", "s_add_u32 s16, s16, s17", "s_mul_i32 s16, s16, 112",
        "s_mul_i32 s17, s21, 56", "s_add_u32 s16, s16, s17", "s_lshl_b32 s44, s16, 10", f"s_add_u32 s44, s44, {WS_H}",
        )
    if M32:
        a.I("v_bfe_u32 v2, v1, 4, 1", f"v_mul_u32_u24 v10, {112*1024}, v2", "v_lshrrev_b32 v8, 5, v1", "v_lshl_add_u32 v10, v8, 8, v10",
            "v_and_b32 v9, 15, v1", "v_lshl_add_u32 v10, v9, 4, v10",
            "v_lshlrev_b32 v12, 10, v8", "v_bfe_u32 v9, v1, 2, 2", "v_lshl_add_u32 v12, v9, 8, v12",
            "v_lshlrev_b32 v9, 1, v9", "v_xor_b32 v9, v9, v2", "v_lshl_add_u32 v12, v9, 5, v12",
            "v_and_b32 v9, 3, v1", "v_lshl_add_u32 v12, v9, 3, v12")
        for u in range(1, 4): a.I(f"v_xor_b32 v{12+u}, {64*u}, v12")
    else:
        a.I(f"v_add_u32 v10, {112*1024}, v3",
            "v_lshrrev_b32 v2, 4, v1", "v_lshlrev_b32 v12, 10, v2", "v_bfe_u32 v9, v1, 2, 2", "v_lshl_add_u32 v12, v9, 8, v12",
            "v_bfe_u32 v8, v1, 2, 3", "v_lshl_add_u32 v12, v8, 5, v12", "v_and_b32 v9, 3, v1", "v_lshl_add_u32 v12, v9, 3, v12")
        for u in range(1, 8): a.I(f"v_xor_b32 v{12+u}, {32*u}, v12")
    NT = 0
    if "wt" in EXP.split("_"):
        a.I("v_lshrrev_b32 v2, 1, v1", "v_lshlrev_b32 v24, 11, v2", "v_and_b32 v2, 1, v1", "v_lshl_add_u32 v24, v2, 7, v24",
            "s_and_b32 s16, s22, 7", "s_lshl_b32 s16, s16, 2", "s_add_u32 s16, s16, s20", "s_mul_i32 s16, s16, %d" % (56 * 2048),
            "s_mul_i32 s17, s21, %d" % (1792 * 2048), "s_add_u32 s16, s16, s17", "s_lshl_b32 s17, s23, 8", "s_add_u32 s16, s16, s17",
            f"s_add_u32 s17, s16, {24*2048}",
            "buffer_load_dword v25, v24, s[24:27], s16 offen", "buffer_load_dword v26, v24, s[24:27], s17 offen")
        NT = 2
    sync_setup(a, LC + 1024, 20, 21, 22)
    a.I("v_lshrrev_b32 v2, 4, v1", "v_bfe_u32 v8, v1, 2, 2", "v_lshl_add_u32 v9, v8, 3, v2", "v_lshlrev_b32 v9, 5, v9",
        "v_and_b32 v2, 3, v1", "v_lshl_add_u32 v9, v2, 2, v9",
        "s_lshr_b32 s18, s22, 1", "s_lshl_b32 s18, s18, 5", "s_lshl_b32 s16, s21, 2", "s_add_u32 s18, s18, s16", "s_lshl_b32 s18, s18, 5",
        f"s_add_u32 s18, s18, {WS_FL+FL_H+16}")
    a.extend(poll(18, 64, 9))
    ts(a, 3)
    L.l = []
    for j in range(R - 1): a.extend(L.note(ld_a(j), ("a", j)))
    def need(k):
        last = max([i for i, t in enumerate(L.l) if (t[0] == "a" and t[1] <= k) or (t[0] == "w" and t[1] <= k + 2)], default=-1)
        return len(L.l) - 1 - last
    def reads(st):
        if M32: return [f"ds_read_b64_tr_b16 {vr(FW_[st&1]+(ks*4+nb)*4+2*rd,2)}, v{12+nb} offset:{(st % R)*SLOT+ks*2048+rd*4096}"
                        for ks in range(2) for nb in range(4) for rd in range(2)]
        return [f"ds_read_b64_tr_b16 {vr(FW_[st&1]+u*4+2*rd,2)}, v{12+u} offset:{(st % R)*SLOT+rd*4096}" for u in range(8) for rd in range(2)]
    sync_block(a, 20, 21, 22, 23)
    a.extend(reads(0))
    a.I("ds_read_b32 v23, v21", f"s_setprio {int(OPT.get('dp', 0))}")
    def body(k):
        if M32: m = [mfma32(ACC + nb * 16, FW_[k & 1] + (ks * 4 + nb) * 4, AR + (k % R) * 8 + ks * 4, "0" if k + ks == 0 else None) for ks in range(2) for nb in range(4)]
        else: m = [mfma16(ACC + (t * 8 + u) * 4, FW_[k & 1] + u * 4, AR + (k % R) * 8 + t * 4, "0" if k == 0 else None) for u in range(8) for t in range(2)]
        if k + 1 >= NST: return [f"s_waitcnt vmcnt({need(k)}) lgkmcnt(0)"] + m
        h0, h1 = (1, 7) if M32 else (2, 14)
        CP = "nocp" not in EXP and not PT
        o = (["s_setprio 3"] if CP else []) + [f"s_waitcnt vmcnt({need(k)}) lgkmcnt(0)", "v_cmp_gt_u32 vcc, s53, v23"]
        o += ([f"s_setprio {int(OPT.get('dp', 0))}"] if CP else []) + ["ds_add_u32 v20, v22", "s_add_u32 s53, s53, 1"]
        if PT: o += [f"s_setprio {1 if (k % R) < PT else 0}"]
        o += m[:h0] + [f"s_nop {2 - h0 - (1 if PT else 0)}"] * (2 - h0 - (1 if PT else 0) >= 0) + ["s_cbranch_vccnz @SPIN", "@CONT:"]
        dm = (L.note(dma_w(k - 1 + R), ("w", k - 1 + R)) + L.note(ld_a(k - 1 + R), ("a", k - 1 + R))) if k - 1 + R < NST else []
        if "dnodma" in EXP: dm = []
        fill = mixmem(reads(k + 1), dm, False)
        FR = int(OPT.get("fr", 5 if M32 else 10))
        rd = reads(k + 1) + ["ds_read_b32 v23, v21"]
        gs = groups_of(dm) if dm else []
        o += interleave(m[h0:FR], rd)
        rest = m[FR:]
        for i, x in enumerate(rest):
            o += [x] + [y for g in gs[(len(gs) * i) // len(rest):(len(gs) * (i + 1)) // len(rest)] for y in g]
        return o
    PT = int(OPT.get("pt", 0))
    bodies = [body(k) for k in range(NST)]
    U = R
    for head in range(0, R + U + 1):
        nl = (NST - R - head) // U
        if all(bodies[k] == bodies[head + (k - head) % U] for k in range(head, head + nl * U)): break
    spins = []
    def emit(k):
        spins.append(k)
        a.extend([x.replace("@SPIN", f"DN_SP{k}").replace("@CONT", f"DN_CT{k}") for x in bodies[k]])
    for k in range(head): emit(k)
    a.I(f"s_mov_b32 s51, {nl}")
    a.L("DN_LOOP")
    for k in range(head, head + U): emit(k)
    a.I("s_sub_u32 s51, s51, 1", "s_cmp_lg_u32 s51, 0", "s_cbranch_scc1 DN_LOOP")
    for k in range(head + nl * U, NST): emit(k)
    ts(a, 4)
    a.I("s_setprio 3", "s_lshl_b32 s16, s22, 3", "s_lshl_b32 s17, s20, 1", "s_add_u32 s16, s16, s17", "s_lshl_b32 s16, s16, 5",
        "s_lshl_b32 s17, s23, 2", "s_add_u32 s16, s16, s17",
        "s_lshl_b32 s16, s16, 10", "s_lshl_b32 s17, s21, 22", "s_add_u32 s16, s16, s17", f"s_add_u32 s16, s16, {WS_P}")
    if M32:
        a.I("v_bfe_u32 v2, v1, 4, 1", "v_lshlrev_b32 v5, 15, v2", "v_lshrrev_b32 v2, 5, v1", "v_lshl_add_u32 v5, v2, 8, v5",
            "v_and_b32 v2, 15, v1", "v_lshl_add_u32 v5, v2, 4, v5")
        for nb in range(4):
            g = ACC + nb * 16
            for e in range(2):
                pk = 192 + (nb * 2 + e) * 4
                a.I(f"v_cvt_pk_bf16_f32 v{pk}, v{g+4*e}, v{g+4*e+1}", f"v_cvt_pk_bf16_f32 v{pk+1}, v{g+4*e+2}, v{g+4*e+3}",
                    f"v_cvt_pk_bf16_f32 v{pk+2}, v{g+8+4*e}, v{g+8+4*e+1}", f"v_cvt_pk_bf16_f32 v{pk+3}, v{g+8+4*e+2}, v{g+8+4*e+3}",
                    f"buffer_store_dwordx4 {vr(pk,4)}, v5, s[32:35], s16 offen offset:{nb*1024+e*512}{SC1}")
    else:
        for t in range(2):
            for c in range(4):
                g = ACC + (t * 8 + c * 2) * 4; pk = 192 + (t * 4 + c) * 4
                for d in range(4): a.I(f"v_cvt_pk_bf16_f32 v{pk+d}, v{g+2*d}, v{g+2*d+1}")
                a.I(f"buffer_store_dwordx4 {vr(pk,4)}, v3, s[32:35], s16 offen offset:{c*1024}{SC1}")
            a.I("s_add_u32 s16, s16, 32768")
    wave_flag(a, 60, FL_O)
    a.I("s_waitcnt vmcnt(0)")
    set_flag(a, 60)
    tl_dump(a, 13)
    a.I("s_endpgm")
    for k in spins:
        if k + 1 >= NST: continue
        a.L(f"DN_SP{k}")
        a.I("ds_read_b32 v23, v21", "s_waitcnt lgkmcnt(0)", "v_add_u32 v23, 1, v23", "v_cmp_gt_u32 vcc, s53, v23",
            f"s_cbranch_vccnz DN_SP{k}", f"s_branch DN_CT{k}")

def wo(a):
    OA = 128; FW = [32, 48]; ACC = 64; XR = 96; P0 = 128; P1 = 144
    NE = 20; D = 16; SW = int(OPT.get("sw", 12))
    a.I(f"s_load_dwordx2 s[8:9], s[0:1], {KA_WO}", f"s_load_dwordx2 s[10:11], s[0:1], {KA_X}", f"s_load_dwordx2 s[12:13], s[0:1], {KA_OUT}",
        "s_bfe_u32 s16, s2, 0x20001", "s_lshl_b32 s16, s16, 2", "s_bfe_u32 s17, s2, 0x20003", "s_add_u32 s22, s16, s17",
        "s_and_b32 s16, s2, 1", "s_lshl_b32 s16, s16, 3", "s_lshr_b32 s17, s2, 5", "s_add_u32 s23, s16, s17",
        "v_lshrrev_b32 v2, 3, v1", "v_lshlrev_b32 v4, 11, v2",
        "v_lshrrev_b32 v2, 4, v1", "v_bfe_u32 v5, v1, 1, 2", "v_xor_b32 v2, v2, v5", "v_lshl_add_u32 v4, v2, 5, v4",
        "v_and_b32 v2, 1, v1", "v_lshl_add_u32 v4, v2, 4, v4", "s_lshl_b32 s16, s23, 7", "v_add_u32 v4, s16, v4")
    for i in range(1, 4): a.I(f"v_add_u32 v{4+i}, {i*(8*2048-1024)}, v4")
    a.I("s_lshl_b32 s16, s22, 2", "s_add_u32 s16, s16, s20", "s_lshl_b32 s44, s16, 16",
        "s_lshl_b32 s17, s23, 7", "s_add_u32 s42, s44, s17",
        "s_lshl_b32 s17, s23, 11", "s_add_u32 s43, s44, s17", f"s_add_u32 s43, s43, {WS_P}",
        f"s_add_u32 s44, s44, {WS_O}", "v_add_u32 v10, 0x8000, v3")
    wave_flag(a, 60, FL_O)
    a.I("s_waitcnt vmcnt(0) lgkmcnt(0)")
    set_flag(a, 60)
    srd(a, 24, 8, 1024 * 1024 * 2); srd(a, 28, 10, 2048 * 2048); srd(a, 36, 12, 2048 * 2048)
    def w_blocks(first, n, lds):
        o = []
        for j in range(0, n, 4):
            o += [f"s_add_u32 m0, s{lds}, {j*1024}", f"s_add_u32 s16, s{first}, {j*8*2048}", "s_and_b32 s16, s16, 0x1fffff"]
            o += [f"buffer_load_dwordx4 v{4+i}, s[24:27], s16 offen offset:{i*1024} lds" for i in range(4)]
        return o
    def o_load(kb):
        r = OA + (kb % D) * 8
        return (["s_add_u32 s45, s44, s46", "s_add_u32 s46, s46, 4096", "s_and_b32 s46, s46, 0x7fff"] if kb & 3 == 0 else []) + \
               [f"buffer_load_dwordx4 {vr(r,4)}, v3, s[32:35], s45 offen offset:{(kb&3)*1024}",
                f"buffer_load_dwordx4 {vr(r+4,4)}, v10, s[32:35], s45 offen offset:{(kb&3)*1024}"]
    sync_block(a, 23, 24, 25, 26)
    a.I("s_lshr_b32 s16, s2, 5", "s_mul_i32 s16, s16, %d" % int(OPT.get("rot", 1)), "s_lshl_b32 s46, s16, 12", "s_lshl_b32 s49, s16, 18")
    a.I(f"s_mul_i32 s48, s20, {NE*8*2048}", "s_add_u32 s48, s48, s49", f"s_mul_i32 s47, s20, {NE*1024}", f"s_add_u32 s47, s47, {LKV}")
    a.extend(w_blocks(48, NE, 47))
    a.I("v_and_b32 v2, 31, v1", "v_lshlrev_b32 v31, 11, v2", f"s_mul_i32 s48, s20, {96*2048}", f"s_add_u32 s48, s48, {640*2048}", "s_add_u32 s48, s48, s49",
        "s_lshl_b32 s17, s23, 7", "v_add_u32 v31, s17, v31")
    for j in range(3): a.I(f"s_add_u32 s16, s48, {j*32*2048}", "s_and_b32 s16, s16, 0x1fffff", f"buffer_load_dword v{28+j}, v31, s[24:27], s16 offen")
    a.I(
        f"s_mul_i32 s47, s20, {12*1024}", f"s_add_u32 s47, s47, {LKV}")
    xsel(a, 21)
    a.I("v_lshrrev_b32 v2, 5, v1", "v_lshlrev_b32 v12, 11, v2", "v_bfe_u32 v9, v1, 2, 3", "v_lshl_add_u32 v12, v9, 7, v12",
        "v_lshrrev_b32 v9, 1, v9", "v_lshl_add_u32 v12, v9, 5, v12", "v_and_b32 v9, 3, v1", "v_lshl_add_u32 v12, v9, 3, v12",
        f"v_add_u32 v12, {LKV}, v12")
    for u in range(1, 4): a.I(f"v_xor_b32 v{12+u}, {32*u}, v12")
    for u in range(4): a.I(f"v_add_u32 v{16+u}, 0x10000, v{12+u}")
    a.I("s_lshr_b32 s16, s22, 3", "s_lshl_b32 s16, s16, 1", "s_lshr_b32 s17, s23, 3", "s_lshl_b32 s17, s17, 2", "s_add_u32 s16, s16, s17",
        "s_and_b32 s17, s22, 7", "s_lshl_b32 s17, s17, 3", "s_add_u32 s16, s16, s17",
        "s_bfe_u32 s17, s23, 0x20001", "s_lshl_b32 s17, s17, 6", "s_add_u32 s16, s16, s17", "s_lshl_b32 s50, s16, 5",
        "s_lshl_b32 s16, s20, 2", "s_add_u32 s50, s50, s16", f"s_add_u32 s50, s50, {WS_FL+FL_O+16}",
        "v_lshlrev_b32 v22, 5, v1", "s_mov_b32 s19, 0xffff0000",
        "s_lshr_b32 s16, s22, 1", "s_lshl_b32 s18, s16, 10", "s_and_b32 s16, s22, 1", "s_lshl_b32 s16, s16, 1", "s_lshr_b32 s17, s20, 1",
        "s_add_u32 s16, s16, s17", "s_lshl_b32 s16, s16, 2", "s_add_u32 s18, s18, s16", f"s_add_u32 s18, s18, {WS_FL+FL_O}")
    a.extend(poll(18, 32, 22))
    ts(a, 5)
    L = Log()
    nxt = int(OPT.get("o0", 4))
    for kb in range(nxt): a.extend(L.note(o_load(kb), kb))
    sync_block(a, 23, 24, 25, 26)
    ts(a, 6)
    a.I(f"s_setprio {int(OPT.get('wp', 0))}")
    def reads(kb):
        vb, so = (12, kb * 4096) if kb < 16 else (16, (kb - 16) * 4096) if kb < NE else (12, (kb - NE) * 4096)
        return [f"ds_read_b64_tr_b16 {vr(FW[kb&1]+u*4+2*rd,2)}, v{vb+u} offset:{so+rd*1024}" for u in range(4) for rd in range(2)]
    a.extend(reads(0))
    for kb in range(32):
        wc = L.cnt(kb)
        if kb == NE - 1: wc = min(wc, len(L.l) - 1 - max(i for i, t in enumerate(L.l) if t == 99))
        a.I(f"s_waitcnt vmcnt({wc}) lgkmcnt(0)")
        if "wost" in EXP and kb in (0, 8, 20, 27): ts(a, {0: 9, 8: 10, 20: 11, 27: 12}[kb])
        if kb == SW:
            sync_block(a, 23, 24, 25, 26)
            a.extend(L.note(w_blocks(48, 12, 47), 99))
        if kb == NE - 1: sync_block(a, 23, 24, 25, 26)
        if kb == 20:
            a.extend(L.note(["s_add_u32 s16, s42, 0x8000"] + [f"buffer_load_dwordx4 {vr(XR+8*t+4*c,4)}, v21, s[28:31], s{42 if t == 0 else 16} offen offset:{c*64}"
                                                            for t in range(2) for c in range(2)], None))
        if kb == 24: a.extend(L.note(lanes(2) + [poll_load(50, 22, 27), "s_mov_b64 exec, -1"], None))
        m = [mfma16(ACC + (t * 4 + u) * 4, FW[kb & 1] + u * 4, OA + (kb % D) * 8 + 4 * t, "0" if kb == 0 else None) for u in range(4) for t in range(2)]
        a.extend(interleave(m, reads(kb + 1) if kb < 31 else [], [2, 2, 2, 2, 0, 0, 0, 0]))
        for _ in range(int(OPT.get("or", 2))):
            if nxt < 32 and nxt <= kb + D: a.extend(L.note(o_load(nxt), nxt)); nxt += 1
    a.I("s_setprio 3")
    a.extend(poll(50, 2, 22, 27, preloaded=0))
    a.I(f"s_add_u32 s17, s43, {4<<20}")
    for t in range(2):
        for c in range(2):
            a.I(f"buffer_load_dwordx4 {vr(P0+8*t+4*c,4)}, v{3 if t == 0 else 10}, s[32:35], s43 offen offset:{c*1024}",
                f"buffer_load_dwordx4 {vr(P1+8*t+4*c,4)}, v{3 if t == 0 else 10}, s[32:35], s17 offen offset:{c*1024}")
    for i in range(4):
        a.I(f"v_permlane16_swap_b32 v{XR+4*i}, v{XR+4*i+2}", f"v_permlane16_swap_b32 v{XR+4*i+1}, v{XR+4*i+3}")
    E = [(i, d, ACC + i * 8 + 2 * d, 160 + 4 * (i * 4 + d)) for i in range(4) for d in range(4)]
    for i, d, g, r in E: a.I(f"v_lshlrev_b32 v{r}, 16, v{XR+4*i+d}", f"v_and_b32 v{r+1}, s19, v{XR+4*i+d}")
    for i, d, g, r in E: a.I(f"v_add_f32 v{g}, v{g}, v{r}", f"v_add_f32 v{g+1}, v{g+1}, v{r+1}")
    for i in range(4):
        a.I(f"s_waitcnt vmcnt({6 - 2 * i + i})")
        Ei = E[4 * i:4 * i + 4]
        for i_, d, g, r in Ei:
            a.I(f"v_lshlrev_b32 v{r}, 16, v{P0+4*i+d}", f"v_and_b32 v{r+1}, s19, v{P0+4*i+d}",
                f"v_lshlrev_b32 v{r+2}, 16, v{P1+4*i+d}", f"v_and_b32 v{r+3}, s19, v{P1+4*i+d}")
        for i_, d, g, r in Ei: a.I(f"v_add_f32 v{r}, v{r}, v{r+2}", f"v_add_f32 v{r+1}, v{r+1}, v{r+3}")
        for i_, d, g, r in Ei: a.I(f"v_add_f32 v{g}, v{g}, v{r}", f"v_add_f32 v{g+1}, v{g+1}, v{r+1}")
        pk = 32 + 4 * i
        for i_, d, g, r in Ei: a.I(f"v_cvt_pk_bf16_f32 v{pk+d}, v{g}, v{g+1}")
        a.I(f"v_permlane16_swap_b32 v{pk}, v{pk+2}", f"v_permlane16_swap_b32 v{pk+1}, v{pk+3}",
            f"buffer_store_dwordx4 {vr(pk,4)}, v21, s[36:39], s42 offen offset:{(i&1)*64}")
        if i == 1: a.I("s_add_u32 s42, s42, 0x8000")

def fused():
    a = Asm()
    ts(a, 0)
    a.I("s_cmp_ge_u32 s2, 256", "s_cbranch_scc1 F_END",
        f"s_load_dwordx8 s[4:11], s[0:1], {KA_X}", f"s_load_dwordx4 s[40:43], s[0:1], {KA_WG}",
        f"s_load_dwordx4 s[12:15], s[0:1], {KA_DBG}", "s_memrealtime s[48:49]",
        "v_lshrrev_b32 v2, 6, v0", "v_and_b32 v1, 63, v0", "v_readfirstlane_b32 s20, v2", "v_lshlrev_b32 v3, 4, v1",
        "s_lshr_b32 s21, s2, 4", "s_lshl_b32 s21, s21, 3", "s_and_b32 s16, s2, 7", "s_add_u32 s45, s21, s16", "s_lshl_b32 s23, s45, 15",
        "s_mov_b32 s54, s20", "s_lshl_b32 s16, s20, 12", "s_add_u32 s19, s23, s16", "s_waitcnt lgkmcnt(0)")
    srd(a, 32, 14, WS_SIZE); srd(a, 56, 12, 256)
    a.I("s_or_b32 s16, s2, s20", "s_cmp_lg_u32 s16, 0", "s_cbranch_scc1 F_NT",
        "s_or_b32 s16, s48, 1", "v_mov_b32 v2, s16", "v_mov_b32 v8, 0", "s_mov_b64 exec, 1",
        "buffer_store_dword v2, v8, s[56:59], 0 offen sc1", "s_mov_b64 exec, -1")
    a.L("F_NT")
    phase0(a)
    ts(a, 8)
    if "p0st" in EXP:
        tl_dump(a, 13); a.I("s_endpgm")
    g1(a)
    a.I("s_and_b32 s20, s54, 3", "s_cmp_ge_u32 s54, 4", "s_cbranch_scc1 F_B")
    attention(a)
    wo(a)
    tl_dump(a, 13)
    a.I("s_endpgm")
    a.L("F_B")
    down(a)
    a.L("F_END")
    a.I("s_endpgm")
    return a, dict(grid=256, block=512, lds=163840, vgpr=256)

if __name__ == "__main__":
    path = sys.argv[1] if len(sys.argv) > 1 else "cdna_kernels/" + NAME + ".s"
    opts = dict(o.split("=") for o in sys.argv[2:])
    OPT = opts; EXP = opts.get("exp", ""); TL = bool(int(opts.get("tl", 0)))
    G.VERB = bool(int(opts.get("verb", 0)))
    G.build([(NAME if int(opts.get("single", 0)) else "fused8", fused())], path)
```

```python
import sys
from asmlib import *
import gen as G
from gen import (NAME, KA_X, KA_WQ, KA_WK, KA_WV, KA_WO, KA_WG, KA_WU, KA_WD, KA_OUT, KA_DBG, KA_WS,
                 WS_XN, WS_KV, WS_O, WS_H, WS_P, WS_SIZE, f32, vr, srd, mfma32, mfma16, QSCALE, mix2, front_pattern)
WS_FL = 0x0480000
FL_KV, FL_X, FL_H, FL_O, FL_P = 0, 4096, 12288, 20480, 24576
WS_TL = 0x3F10000
LKV = 65536
LQ = 131072
LC = 147456
HP = 224
TL = False; EXP = ""; OPT = {}
SC1 = " sc1"

def ts(a, i):
    if TL: a.I(f"s_mem{'' if 'cyc' in EXP else 'real'}time s[{62+2*i}:{63+2*i}]")
def tl_dump(a, n):
    if not TL: return
    a.I("s_waitcnt vmcnt(0) lgkmcnt(0)")
    ts(a, 7)
    if "hd" in EXP.split("_"):
        a.I("s_waitcnt lgkmcnt(0)", "v_mov_b32 v1, 0", "s_mov_b64 exec, 1", "s_not_b32 s90, s62", "v_mov_b32 v2, s90",
            "buffer_atomic_umax v2, v1, s[56:59], 0 offen offset:4", "s_lshr_b32 s90, s54, 2", "s_mul_i32 s90, s90, 0")
        lab = f"HD{len(a.items)}"
        for j, i in enumerate((0, 8, 11, 12, 1, 2, 3, 4, 5, 7)):
            if j == 6: a.I("s_cmp_ge_u32 s54, 4", f"s_cbranch_scc1 {lab}")
            if j in (2, 3): a.I("s_cmp_ge_u32 s54, 4", f"s_cselect_b32 s{62+2*i}, 0, s{62+2*i}")
            a.I(f"v_mov_b32 v2, s{62+2*i}", f"buffer_atomic_umax v2, v1, s[56:59], 0 offen offset:{8+4*j}")
        a.I("s_endpgm")
        a.L(lab)
        for j, i in enumerate((3, 4, 7)):
            a.I(f"v_mov_b32 v2, s{62+2*i}", f"buffer_atomic_umax v2, v1, s[56:59], 0 offen offset:{48+4*j}")
        return
    a.I("s_waitcnt lgkmcnt(0)", "s_lshl_b32 s90, s2, 3", "s_add_u32 s90, s90, s54", "s_lshl_b32 s90, s90, 6",
        f"s_add_u32 s90, s90, {WS_TL}", "v_mov_b32 v1, 0", "s_mov_b64 exec, 1")
    for i in range(n):
        a.I(f"v_mov_b32 v2, s{62+2*i}", f"buffer_store_dword v2, v1, s[32:35], s90 offen offset:{4*i}")

_n = [0]
def lanes(n): return [f"s_mov_b32 exec_lo, {((1 << n) - 1) & 0xffffffff:#x}", f"s_mov_b32 exec_hi, {((1 << n) - 1) >> 32:#x}"] if n < 64 else []
def poll_load(soff, voff, dst, wide=False):
    return f"buffer_load_dword{'x4' if wide else ''} {vr(dst, 4 if wide else 1)}, v{voff}, s[32:35], s{soff} offen sc1"
def poll_test(dst, wide):
    if wide:
        return [f"v_xor_b32 v{dst+i}, s55, v{dst+i}" for i in range(4)] + \
               [f"v_or3_b32 v{dst}, v{dst}, v{dst+1}, v{dst+2}", f"v_or_b32 v{dst}, v{dst}, v{dst+3}", f"v_cmp_ne_u32 vcc, 0, v{dst}"]
    return [f"v_cmp_ne_u32 vcc, s55, v{dst}"]
def poll(soff, n, voff, dst=2, wide=False, preloaded=None):
    _n[0] += 1; lab = f"POLL{_n[0]}"
    o = lanes(n)
    if preloaded is not None:
        o += [f"s_waitcnt vmcnt({preloaded})"] + poll_test(dst, wide) + [f"s_cbranch_vccz {lab}_D"]
    o += ["s_mov_b32 s17, 0x40000", lab + ":", poll_load(soff, voff, dst, wide), "s_waitcnt vmcnt(0)"] + poll_test(dst, wide)
    o += [f"s_cbranch_vccz {lab}_D", "s_sleep 2", "s_sub_u32 s17, s17, 1", "s_cmp_lg_u32 s17, 0", f"s_cbranch_scc1 {lab}", lab + "_D:"]
    if n < 64: o += ["s_mov_b64 exec, -1"]
    return o
def set_flag(a, soff):
    a.I("v_mov_b32 v2, s55", "v_mov_b32 v8, 0", "s_mov_b64 exec, 1",
        f"buffer_store_dword v2, v8, s[32:35], s{soff} offen sc1", "s_mov_b64 exec, -1")
def wave_flag(a, reg, base):
    a.I(f"s_lshl_b32 s{reg}, s2, 3", f"s_add_u32 s{reg}, s{reg}, s54", f"s_lshl_b32 s{reg}, s{reg}, 2", f"s_add_u32 s{reg}, s{reg}, {WS_FL+base}")
def sync_setup(a, base, own, chk, one):
    a.I("s_lshl_b32 s16, s20, 8", f"s_add_u32 s16, s16, {base}", f"v_lshl_add_u32 v{own}, v1, 2, s16",
        "v_and_b32 v2, 3, v1", f"v_lshlrev_b32 v{chk}, 8, v2", f"v_lshl_add_u32 v{chk}, v1, 2, v{chk}", f"v_add_u32 v{chk}, {base}, v{chk}",
        f"v_mov_b32 v{one}, 1", "s_mov_b32 s53, 0")
def sync_block(a, own, chk, one, tmp):
    _n[0] += 1; lab = f"SY{_n[0]}"
    a.I(f"ds_add_u32 v{own}, v{one}", "s_add_u32 s53, s53, 1")
    a.L(lab)
    a.I(f"ds_read_b32 v{tmp}, v{chk}", "s_waitcnt lgkmcnt(0)", f"v_cmp_gt_u32 vcc, s53, v{tmp}", f"s_cbranch_vccnz {lab}")
def xsel(a, dst):
    a.I("v_and_b32 v2, 15, v1", f"v_lshlrev_b32 v{dst}, 11, v2", "v_bfe_u32 v2, v1, 4, 1", f"v_lshl_add_u32 v{dst}, v2, 5, v{dst}",
        "v_lshrrev_b32 v2, 5, v1", f"v_lshl_add_u32 v{dst}, v2, 4, v{dst}")
def is_vm(x): return x.startswith("buffer") or x.startswith("global")
def groups_of(dm):
    gs = []; cur = []
    for x in dm:
        cur.append(x)
        if is_vm(x): gs.append(cur); cur = []
    gs[-1] += cur
    return gs
def mixmem(rd, dm, dma_first=True):
    if not rd or not dm: return rd + dm
    gs = groups_of(dm)
    pre = [x for x in rd if x.startswith("v_")]; ds = [x for x in rd if x.startswith("ds_")]; post = [x for x in rd if x.startswith("s_")]
    o = list(pre); n = len(gs); per = len(ds) // n
    for g in range(n):
        part = ds[g * per:(g + 1) * per if g < n - 1 else len(ds)]
        o += (gs[g] + part) if dma_first else (part + gs[g])
    return o + post
class Log:
    def __init__(self): self.l = []
    def note(self, instrs, st): self.l += [st] * sum(map(is_vm, instrs)); return instrs
    def cnt(self, st):
        last = max([i for i, s_ in enumerate(self.l) if s_ is not None and s_ <= st], default=-1)
        return len(self.l) - 1 - last

WA0, WA1, WST = 116, 118, 120
def w_dma(slotreg):
    return [f"s_add_u32 m0, s{slotreg}, s46", "s_nop 0",
            f"global_load_lds_dwordx4 {vr(WA0,2)}, off", f"global_load_lds_dwordx4 {vr(WA1,2)}, off offset:1024",
            f"v_lshl_add_u64 {vr(WA0,2)}, {vr(WST,2)}, 0, {vr(WA0,2)}", f"v_lshl_add_u64 {vr(WA1,2)}, {vr(WST,2)}, 0, {vr(WA1,2)}"]

STREAM = ["buffer_load_dword v122, v114, s[88:91], s100 offen", "buffer_load_dword v123, v114, s[92:95], s100 offen",
          "buffer_load_dword v124, v115, s[96:99], s101 offen"]
def phase0(a):
    LW, LX, LR = 49152, 114688, 147456
    srd(a, 24, 4, 2048 * 2048)
    for i in range(4): a.I(f"buffer_load_dwordx4 {vr(8+4*i,4)}, v3, s[24:27], s19 offen offset:{i*1024}")
    a.I("v_mov_b32 v7, 0", "buffer_load_dword v6, v7, s[56:59], 0 offen sc1")
    TP = 0; NH = int(OPT.get("nh", 6))
    if NH:
        a.I("s_cmp_lt_u32 s20, 4", "s_cbranch_scc1 P0_NS", "s_cmp_eq_u32 s20, 7", "s_cbranch_scc1 P0_NS",
            "s_cmp_eq_u32 s20, 4", "s_cselect_b64 s[12:13], s[40:41], s[42:43]", f"s_mov_b32 s16, {NH*896}",
            "s_cmp_eq_u32 s20, 6", "s_cselect_b64 s[12:13], s[6:7], s[12:13]", f"s_cselect_b32 s16, {NH*256}, s16")
        srd(a, 88, 12, 1024 * 1024 * 2)
        a.I("v_lshlrev_b32 v114, 7, v1", "s_sub_u32 s17, s16, 128", "v_min_u32 v114, s17, v114", "s_mul_i32 s16, s16, s2",
            "buffer_load_dword v122, v114, s[88:91], s16 offen")
        a.L("P0_NS")
    a.I("s_bfe_u32 s22, s2, 0x10003", "s_cmp_eq_u32 s22, 0", "s_cselect_b64 s[12:13], s[8:9], s[10:11]")
    srd(a, 28, 12, 65536)
    a.I("s_lshl_b32 s17, s20, 13")
    a.I("s_and_b32 s16, s2, 7", "s_lshl_b32 s16, s16, 2", "s_bfe_u32 s21, s2, 0x20003", "s_add_u32 s21, s21, s16",
        "s_and_b32 s23, s20, 3", "s_cmp_lt_u32 s20, 4", "s_cselect_b64 s[12:13], s[42:43], s[40:41]", "s_cselect_b32 s18, 32, 0",
        "s_cselect_b32 s46, 8192, 0", "s_lshl_b32 s16, s23, 11", "s_add_u32 s46, s46, s16", "s_add_u32 s46, s46, 16384",
        "v_lshrrev_b32 v2, 4, v1", "s_lshl_b32 s16, s23, 3", "v_add_u32 v4, s16, v2",
        "s_and_b32 s16, s23, 1", "s_lshl_b32 s16, s16, 2", "v_add_u32 v2, s16, v2", "v_bfe_u32 v5, v1, 1, 3", "v_xor_b32 v2, v2, v5",
        "v_cmp_eq_u32 vcc, 7, v2", "v_mov_b32 v5, 7168", "v_mov_b32 v112, 2048", f"v_cndmask_b32 v{WST}, v5, v112, vcc",
        f"v_mul_lo_u32 v4, v4, v{WST}",
        "s_mul_i32 s16, s21, 224", "v_lshl_add_u32 v5, v2, 5, s16", "s_lshl_b32 s16, s21, 6", "s_add_u32 s16, s16, s18",
        "v_mov_b32 v112, s16", "v_cndmask_b32 v5, v5, v112, vcc", "v_add_u32 v4, v4, v5",
        "v_and_b32 v2, 1, v1", "v_lshl_add_u32 v4, v2, 4, v4",
        "v_mov_b32 v5, s12", "v_mov_b32 v112, s6", f"v_cndmask_b32 v{WA0}, v5, v112, vcc",
        "v_mov_b32 v5, s13", "v_mov_b32 v112, s7", f"v_cndmask_b32 v{WA0+1}, v5, v112, vcc",
        "v_mov_b32 v5, 0", f"v_lshl_add_u64 {vr(WA0,2)}, v[4:5], 0, {vr(WA0,2)}",
        f"v_lshlrev_b32 v4, 2, v{WST}", "v_add_u32 v4, -1024, v4" if False else "v_subrev_u32 v4, 1024, v4",
        f"v_lshl_add_u64 {vr(WA1,2)}, v[4:5], 0, {vr(WA0,2)}",
        f"v_lshlrev_b32 v{WST}, 5, v{WST}", f"v_mov_b32 v{WST+1}, 0", "s_mov_b32 s47, 0")
    srd(a, 24, 12, 1024 * 3584 * 2)
    a.I("v_lshrrev_b32 v2, 1, v1", "s_lshl_b32 s16, s23, 5", "s_add_u32 s16, s16, 32", "v_add_u32 v2, s16, v2",
        "v_mul_u32_u24 v112, 7168, v2", "v_and_b32 v2, 1, v1", "v_mul_u32_u24 v2, 208, v2", "v_add_u32 v112, v112, v2",
        "s_mul_i32 s44, s21, 224")
    a.I("s_mov_b32 s21, s45", "s_lshl_b32 s23, s21, 15", "s_mov_b32 s36, 0xffff0000")
    if NH: a.I("s_sub_u32 s16, s20, 4", "s_cmp_lt_u32 s16, 3", "s_cbranch_scc0 P0_X1", "s_waitcnt vmcnt(2)", "s_branch P0_X2", "P0_X1:", "s_waitcnt vmcnt(1)", "P0_X2:")
    else: a.I("s_waitcnt vmcnt(1)")
    ts(a, 9)
    late = [f"s_add_u32 m0, s17, {LW}", "s_add_u32 s18, s17, 4096"]
    late += [f"buffer_load_dwordx4 v3, s[28:31], s17 offen offset:{i*1024} lds" for i in range(4)]
    late += [f"s_add_u32 m0, s18, {LW}", "s_nop 0"]
    late += [f"buffer_load_dwordx4 v3, s[28:31], s18 offen offset:{i*1024} lds" for i in range(4)]
    late += w_dma(47) + (["buffer_load_dword v113, v112, s[24:27], s44 offen"] if not NH else [])
    if TP: late += ["s_cmp_lt_u32 s20, 4", "s_cbranch_scc1 P0_NS"] + STREAM + ["P0_NS:"]
    mark = len(a.items)
    for r in range(2):
        for d in range(8):
            src = 8 + 8 * r + d
            a.I(f"v_lshlrev_b32 v{32+16*r+2*d}, 16, v{src}", f"v_and_b32 v{33+16*r+2*d}, s36, v{src}")
    def tree2(bases, sq):
        T_ = [(24 + i, bases[i], 64 + 8 * i) for i in range(2)]
        for dst, base, t in T_:
            for i in range(8):
                a.I(f"v_mul_f32 v{t+i}, v{base+2*i}, v{base+2*i}" if sq else f"v_add_f32 v{t+i}, v{base+2*i}, v{base+2*i+1}")
        if sq:
            for dst, base, t in T_:
                for i in range(8): a.I(f"v_fmac_f32 v{t+i}, v{base+2*i+1}, v{base+2*i+1}")
        for s_ in (4, 2):
            for dst, base, t in T_:
                for i in range(s_): a.I(f"v_add_f32 v{t+i}, v{t+i}, v{t+i+s_}")
        for dst, base, t in T_: a.I(f"v_add_f32 v{dst}, v{t}, v{t+1}")
    def wavered(rs, ss):
        for mod in ("row_shr:1 row_mask:0xf bank_mask:0xf bound_ctrl:0", "row_shr:2 row_mask:0xf bank_mask:0xf bound_ctrl:0",
                    "row_shr:4 row_mask:0xf bank_mask:0xf bound_ctrl:0", "row_shr:8 row_mask:0xf bank_mask:0xf bound_ctrl:0",
                    "row_bcast:15 row_mask:0xa bank_mask:0xf", "row_bcast:31 row_mask:0xc bank_mask:0xf"):
            for r in rs: a.I(f"v_add_f32_dpp v{r}, v{r}, v{r} {mod}")
        for r, s_ in zip(rs, ss): a.I(f"v_readlane_b32 s{s_}, v{r}, 63")
    if "p0st" in EXP: ts(a, 1)
    tree2((32, 48), False)
    wavered((24, 25), (40, 41))
    if "p0st" in EXP: ts(a, 2)
    a.I(f"s_mov_b32 s37, {f32(1.0/1024)}")
    a.I("v_mov_b32 v26, s40", "v_mov_b32 v27, s41", "v_mul_f32 v26, s37, v26", "v_mul_f32 v27, s37, v27")
    for r in range(2):
        for i in range(16): a.I(f"v_sub_f32 v{80+16*r+i}, v{32+16*r+i}, v{26+r}")
    tree2((80, 96), True)
    wavered((24, 25), (42, 43))
    a.I("v_mov_b32 v28, s42", "v_mov_b32 v29, s43", "v_mul_f32 v28, s37, v28", "v_mul_f32 v29, s37, v29")
    def rnd(*rs):
        for r in rs: a.I(f"v_cvt_pk_bf16_f32 v{r}, v{r}, v{r}")
        for r in rs: a.I(f"v_lshlrev_b32 v{r}, 16, v{r}")
    a.I(f"s_mov_b32 s38, {f32(1e-5)}")
    rnd(28, 29, 26, 27)
    a.I("v_add_f32 v28, s38, v28", "v_add_f32 v29, s38, v29"); rnd(28, 29)
    a.I("v_sqrt_f32 v28, v28", "v_sqrt_f32 v29, v29"); rnd(28, 29)
    a.I("v_rcp_f32 v28, v28", "v_rcp_f32 v29, v29")
    if "p0st" in EXP: ts(a, 3)
    P_ = [(r, d, 32 + 16 * r + 2 * d) for r in range(2) for d in range(8)]
    for r, d, b in P_: a.I(f"v_sub_f32 v{b}, v{b}, v{26+r}", f"v_sub_f32 v{b+1}, v{b+1}, v{26+r}")
    for r, d, b in P_: a.I(f"v_cvt_pk_bf16_f32 v{80+8*r+d}, v{b}, v{b+1}")
    for r, d, b in P_: a.I(f"v_lshlrev_b32 v{b}, 16, v{80+8*r+d}", f"v_and_b32 v{b+1}, s36, v{80+8*r+d}")
    for r, d, b in P_: a.I(f"v_mul_f32 v{b}, v{b}, v{28+r}", f"v_mul_f32 v{b+1}, v{b+1}, v{28+r}")
    for r, d, b in P_: a.I(f"v_cvt_pk_bf16_f32 v{8+8*r+d}, v{b}, v{b+1}")
    body = a.items[mark:]; del a.items[mark:]
    gs = groups_of(late); step = int(OPT.get("lst", 24))
    if TP: gs[-3:] = [gs[-3] + gs[-2] + gs[-1]]
    for i, it in enumerate(body):
        if i % step == 0 and gs: a.extend(gs.pop(0))
        a.items.append(it)
    assert not gs
    if "p0st" in EXP: ts(a, 4)
    a.I("s_lshl_b32 s16, s20, 1", "v_and_b32 v2, 15, v1", "v_xor_b32 v2, s16, v2", "v_lshlrev_b32 v4, 8, v1", "v_lshl_add_u32 v4, v2, 4, v4",
        f"v_add_u32 v4, {LX}, v4", "v_xor_b32 v25, 16, v4")
    for r in range(2):
        for p in range(2): a.I(f"ds_write_b128 v{25 if r else 4}, {vr(8+8*r+4*p,4)} offset:{p*16384}")
    a.I("v_lshrrev_b32 v5, 4, v1", "v_lshlrev_b32 v2, 4, v5", "v_xor_b32 v26, v2, v3",
        "s_lshl_b32 s16, s20, 12", f"s_add_u32 s16, s16, {LX}", "v_add_u32 v30, s16, v26",
        "v_xor_b32 v27, 64, v30", "v_xor_b32 v28, 0x80, v30", "v_xor_b32 v29, 0xc0, v30",
        "v_lshlrev_b32 v31, 9, v5", "v_bfe_u32 v2, v1, 2, 2", "v_lshl_add_u32 v31, v2, 6, v31",
        "v_and_b32 v2, 3, v1", "v_lshl_add_u32 v31, v2, 3, v31", f"s_add_u32 s16, s17, {LW}", "v_add_u32 v31, s16, v31",
        "s_lshl_b32 s16, s22, 14", "s_lshl_b32 s18, s20, 12", "s_add_u32 s16, s16, s18",
        "s_add_u32 s39, s23, s16", f"s_add_u32 s16, s16, {LX}", "v_add_u32 v24, s16, v26",
        "v_xor_b32 v25, 64, v24", "v_xor_b32 v4, 0x80, v24", "v_xor_b32 v26, 0xc0, v24",
        "s_waitcnt lgkmcnt(0)", "s_barrier")
    ts(a, 10)
    a.I("s_cmp_ge_u32 s20, 4", "s_cbranch_scc1 P0_NC")
    for i, r in enumerate((24, 25, 4, 26)): a.I(f"ds_read_b128 {vr(8+4*i,4)}, v{r} offset:{i*1024}")
    for i in range(4): a.I(f"s_waitcnt lgkmcnt({3-i})", f"buffer_store_dwordx4 {vr(8+4*i,4)}, v3, s[32:35], s39 offen offset:{i*1024} sc1")
    a.I(f"s_waitcnt vmcnt({6 if NH else 7})", "s_branch P0_C")
    a.L("P0_NC")
    a.I(f"s_waitcnt vmcnt({2 if NH else 3})")
    a.L("P0_C")
    a.I("v_readfirstlane_b32 s55, v6")
    for j in range(4):
        a.I(f"ds_read_b128 {vr(32+4*j,4)}, v{(30, 27, 28, 29)[j]} offset:{j*1024}")
        for d in range(2):
            for rd in range(2):
                a.I(f"ds_read_b64_tr_b16 {vr(64+8*j+4*d+2*rd,2)}, v31 offset:{j*2048+rd*256+d*32}")
    a.I("s_waitcnt lgkmcnt(0)", "s_cmp_eq_u32 s22, 0", "s_cbranch_scc0 P0_V")
    for j in range(4):
        for d in range(2): a.I(mfma16(96 + 4 * d, 64 + 8 * j + 4 * d, 32 + 4 * j, "0" if j == 0 else None))
    a.I("s_branch P0_R")
    a.L("P0_V")
    for j in range(4):
        for d in range(2): a.I(mfma16(96 + 4 * d, 32 + 4 * j, 64 + 8 * j + 4 * d, "0" if j == 0 else None))
    a.L("P0_R")
    a.I("s_lshl_b32 s16, s20, 11", f"s_add_u32 s16, s16, {LR}", "v_add_u32 v4, s16, v3")
    wave_flag(a, 18, FL_X)
    for d in range(2): a.I(f"ds_write_b128 v4, {vr(96+4*d,4)} offset:{d*1024}")
    a.I("s_mov_b32 s17, 0x40000")
    a.L("P0_TAG")
    a.I("s_cmp_lg_u32 s55, 0", "s_cbranch_scc1 P0_TAGOK",
        "buffer_load_dword v6, v7, s[56:59], 0 offen sc1", "s_waitcnt vmcnt(0)", "v_readfirstlane_b32 s55, v6",
        "s_sub_u32 s17, s17, 1", "s_cmp_lg_u32 s17, 0", "s_cbranch_scc1 P0_TAG")
    a.L("P0_TAGOK")
    a.I("s_cmp_ge_u32 s20, 4", "s_cbranch_scc1 P0_NF", "s_waitcnt vmcnt(0)")
    set_flag(a, 18)
    a.L("P0_NF")
    a.I("s_waitcnt lgkmcnt(0)", "s_barrier")
    a.I("s_cmp_lg_u32 s20, 0", "s_cbranch_scc1 P0_END")
    a.I(f"v_add_u32 v4, {LR}, v3")
    for w in range(8):
        a.I(f"ds_read_b128 {vr(32+8*w,4)}, v4 offset:{w*2048}", f"ds_read_b128 {vr(36+8*w,4)}, v4 offset:{w*2048+1024}")
    a.I("s_waitcnt lgkmcnt(0)")
    for s_ in (4, 2, 1):
        for w in range(s_):
            for i in range(8): a.I(f"v_add_f32 v{32+8*w+i}, v{32+8*w+i}, v{32+8*(w+s_)+i}")
    for d in range(4): a.I(f"v_cvt_pk_bf16_f32 v{8+d}, v{32+2*d}, v{33+2*d}")
    a.I("s_lshr_b32 s16, s21, 1", "s_lshl_b32 s19, s16, 12", f"s_add_u32 s19, s19, {WS_KV}",
        "s_and_b32 s16, s21, 1", "s_lshl_b32 s16, s16, 10", "s_add_u32 s19, s19, s16",
        "s_cmp_eq_u32 s22, 0", "s_cbranch_scc0 P0_SV",
        "buffer_store_dwordx4 v[8:11], v3, s[32:35], s19 offen sc1", "s_branch P0_KF")
    a.L("P0_SV")
    a.I("v_and_b32 v2, 1, v5", "v_lshlrev_b32 v4, 9, v2", "v_and_b32 v2, 15, v1", "v_lshl_add_u32 v4, v2, 4, v4",
        "v_lshrrev_b32 v2, 1, v5", "v_lshl_add_u32 v4, v2, 3, v4",
        "buffer_store_dwordx2 v[8:9], v4, s[32:35], s19 offen offset:2048 sc1",
        "buffer_store_dwordx2 v[10:11], v4, s[32:35], s19 offen offset:2304 sc1")
    a.L("P0_KF")
    a.I("s_lshl_b32 s18, s2, 2", f"s_add_u32 s18, s18, {WS_FL+FL_KV}", "s_waitcnt vmcnt(0)")
    set_flag(a, 18)
    a.L("P0_END")

def kv_groups():
    gs = []
    for g in range(2):
        for i in range(4):
            o = [f"s_add_u32 m0, s25, {g*4096}", f"s_add_u32 s26, s24, {g*4096}"] if i == 0 else []
            gs.append(o + [f"buffer_load_dwordx4 v3, s[36:39], s26 offen offset:{i*1024} lds"])
    gs[-1] += ["s_add_u32 s24, s24, 32768", "s_xor_b32 s25, s25, 32768"]
    return gs

def emit_loop(a, label, bodies):
    best = (0, 1)
    i = 0
    while i < len(bodies):
        j = i
        while j < len(bodies) and bodies[j] == bodies[i]: j += 1
        if j - i > best[1] - best[0]: best = (i, j)
        i = j
    for k in range(best[0]): a.extend(bodies[k])
    a.I(f"s_mov_b32 s51, {best[1]-best[0]}")
    a.L(label)
    a.extend(bodies[best[0]])
    a.I("s_sub_u32 s51, s51, 1", "s_cmp_lg_u32 s51, 0", f"s_cbranch_scc1 {label}")
    for k in range(best[1], len(bodies)): a.extend(bodies[k])

def g1(a):
    NST = 32; R = 5; SLOT = 32768
    ACC = 128; FA = 64; FW = 96
    def acc(h, u, t): return ACC + (t * 4 + h * 2 + u) * 4
    a.I("s_and_b32 s16, s2, 7", "s_lshl_b32 s16, s16, 2", "s_bfe_u32 s21, s2, 0x20003", "s_add_u32 s21, s21, s16",
        "s_lshr_b32 s22, s2, 5", "s_and_b32 s23, s20, 3", "v_add_u32 v10, 31744, v3",
        "s_lshl_b32 s16, s22, 4", "s_lshl_b32 s17, s20, 1", "s_add_u32 s16, s16, s17", "s_lshl_b32 s44, s16, 15",
        "s_lshl_b32 s45, s20, 11", "s_mov_b32 s47, 0", "s_mov_b32 s50, 0", f"s_mov_b32 s52, {SLOT}",
        "s_lshl_b32 s18, s22, 5", "s_lshr_b32 s16, s20, 2", "s_lshl_b32 s16, s16, 4", "s_add_u32 s18, s18, s16",
        "s_lshl_b32 s16, s23, 1", "s_add_u32 s18, s18, s16", "s_lshl_b32 s18, s18, 5", f"s_add_u32 s18, s18, {WS_FL+FL_X}",
        "v_and_b32 v2, 3, v1", "v_lshlrev_b32 v8, 2, v2", "v_bfe_u32 v2, v1, 2, 1", "v_lshl_add_u32 v8, v2, 5, v8",
        "v_lshrrev_b32 v2, 3, v1", "v_lshl_add_u32 v8, v2, 8, v8")
    PD = int(OPT.get("pd", 6))
    if PD:
        a.I(f"s_load_dwordx2 s[4:5], s[0:1], {KA_WQ}", f"s_load_dwordx2 s[6:7], s[0:1], {KA_WD}", f"s_load_dwordx2 s[8:9], s[0:1], {KA_WO}",
            "v_min_u32 v2, 6, v1", "v_lshlrev_b32 v14, 7, v2", "s_mul_i32 s16, s2, 896", "v_add_u32 v14, s16, v14",
            f"s_mov_b32 s31, {32*7168}", f"s_mov_b32 s30, {PD*32*7168}", "s_cmp_eq_u32 s23, 0", "s_cbranch_scc1 G1_T0",
            "s_mov_b32 s30, 0x7f000000", "s_mov_b32 s31, 0", "s_cmp_ge_u32 s20, 4", "s_cbranch_scc1 G1_T0", "s_waitcnt lgkmcnt(0)",
            "s_cmp_eq_u32 s20, 1", "s_cbranch_scc0 G1_T2")
        srd(a, 24, 4, 1024 * 1024 * 2)
        a.I("v_and_b32 v2, 1, v1", "v_lshlrev_b32 v14, 7, v2", "s_lshl_b32 s16, s2, 8", "v_add_u32 v14, s16, v14",
            f"s_mov_b32 s31, {32*2048}", f"s_mov_b32 s30, {PD*32*2048}", "s_branch G1_T0")
        a.L("G1_T2")
        if "nolate" not in EXP:
            a.I("s_cmp_eq_u32 s20, 2", "s_cbranch_scc0 G1_T3")
            srd(a, 24, 6, 3584 * 1024 * 2)
            a.I("v_min_u32 v2, 8, v1", "v_lshlrev_b32 v14, 7, v2", "s_mov_b32 s31, 1152", "s_mul_i32 s30, s2, 28672", "s_branch G1_T0")
            a.L("G1_T3")
            srd(a, 24, 8, 1024 * 1024 * 2)
            a.I("v_min_u32 v2, 2, v1", "v_lshlrev_b32 v14, 7, v2", "s_mov_b32 s31, 384", "s_lshl_b32 s30, s2, 13")
        a.L("G1_T0")
    def touch(): return ["buffer_load_dword v16, v14, s[24:27], s30 offen", "s_add_u32 s30, s30, s31"] if PD else []
    def touch0(): return []
    a.extend(poll(18, 16, 8))
    ts(a, 11)
    def adv(reg): return [f"s_add_u32 s{reg}, s{reg}, {SLOT}", f"s_cmp_eq_u32 s{reg}, {SLOT*R}", f"s_cselect_b32 s{reg}, 0, s{reg}"]
    def dma_act():
        return ["s_add_u32 m0, s47, s45", "s_nop 0", "buffer_load_dwordx4 v3, s[32:35], s44 offen lds",
                "buffer_load_dwordx4 v10, s[32:35], s44 offen offset:1024 lds", "s_add_u32 s44, s44, 1024"] + adv(47)
    def dma_w(): return w_dma(52) + adv(52)
    def rdaddr():
        return ["s_lshr_b32 s17, s20, 2", "s_lshl_b32 s16, s17, 13", "v_add_u32 v6, s16, v3",
                "s_and_b32 s19, s21, 1", "s_lshl_b32 s16, s23, 1", "s_add_u32 s40, s16, s19", "s_add_u32 s41, s40, 1",
                "s_mul_i32 s16, s19, 6", "s_sub_u32 s16, 6, s16", "s_cmp_eq_u32 s23, 3", "s_cselect_b32 s40, s16, s40", "s_cselect_b32 s41, 7, s41",
                "v_lshrrev_b32 v2, 4, v1", "v_lshlrev_b32 v7, 11, v2", "v_and_b32 v2, 1, v2", "v_lshlrev_b32 v12, 2, v2",
                "v_bfe_u32 v2, v1, 2, 2", "v_lshl_add_u32 v7, v2, 8, v7", "v_add_u32 v12, v12, v2",
                "v_and_b32 v2, 3, v1", "v_lshl_add_u32 v7, v2, 3, v7", "v_add_u32 v7, 16384, v7",
                "v_xor_b32 v2, s41, v12", "v_lshl_add_u32 v11, v2, 5, v7", "v_xor_b32 v2, s40, v12", "v_lshl_add_u32 v7, v2, 5, v7"]
    def reads():
        o = ["v_add_u32 v8, s50, v6", "v_add_u32 v9, s50, v7", "v_add_u32 v13, s50, v11"]
        for h in range(2):
            for u in range(2):
                for rd in range(2):
                    o.append(f"ds_read_b64_tr_b16 {vr(FW+(h*2+u)*4+2*rd,2)}, v{9 if u == 0 else 13} offset:{h*8192+rd*1024}")
        for t in range(8): o.append(f"ds_read_b128 {vr(FA+t*4,4)}, v8 offset:{t*1024}")
        return o + adv(50)
    def mm(first):
        return [mfma16(acc(h, u, t), FW + (h * 2 + u) * 4, FA + t * 4, "0" if first else None) for t in range(8) for h in range(2) for u in range(2)]
    a.I("s_cmp_ge_u32 s20, 4", "s_cbranch_scc1 G1_B")
    L = Log()
    for j in range(R):
        if 0 < j < R - 1: a.extend(L.note(dma_w(), j))
        a.extend(L.note(dma_act(), j))
    a.extend(L.note(touch0(), None))
    a.extend(rdaddr())
    a.I(f"s_waitcnt vmcnt({L.cnt(0)})", "s_barrier")
    a.extend(reads())
    a.I(f"s_waitcnt vmcnt({L.cnt(1)}) lgkmcnt(0)", "s_barrier")
    ts(a, 12)
    kv = kv_groups()
    def bodyA(k, first=False):
        o = mm(first)
        dm = L.note([f"s_mov_b32 s18, {WS_FL+FL_KV}", poll_load(18, 3, 28, True)], None) if k == 27 else []
        dm += (L.note(dma_w(), k - 1 + R) if k - 1 + R < NST else []) + (L.note(dma_act() + touch(), k + R) if k + R < NST else [])
        if k + R < NST and PD: L.l[-1] = None
        if k == 28:
            o += poll(18, 64, 3, 28, True, preloaded=2)
            o += ["s_lshl_b32 s24, s20, 13", f"s_add_u32 s25, s24, {LKV}",
                  f"s_add_u32 s36, s32, {WS_KV}", "s_addc_u32 s37, s33, 0", "s_mov_b32 s38, 0x40000", "s_mov_b32 s39, 0x20000"]
            dm = L.note([x for g in kv for x in g], None)
        if k == 29: dm = L.note([x for g in kv for x in g], None)
        o += mixmem(reads() if k + 1 < NST else [], dm)
        if k + 1 < NST: o += [f"s_waitcnt vmcnt({L.cnt(k + 2)}) lgkmcnt(0)", "s_barrier"]
        return o
    emit_loop(a, "G1_A_LOOP", [bodyA(k, k == 0) for k in range(NST)])
    a.I("s_branch G1_EPI")
    a.L("G1_B")
    M = Log()
    for j in range(R - 1):
        if j: a.extend(M.note(dma_w(), j))
        a.extend(M.note(dma_act(), j))
    a.extend(M.note(touch0(), None))
    a.extend(rdaddr())
    a.I(f"s_waitcnt vmcnt({M.cnt(0)})", "s_barrier", f"s_waitcnt vmcnt({M.cnt(1)})", "s_barrier")
    def bodyB(k, first=False):
        dm = M.note(dma_w() + dma_act(), k - 1 + R) + M.note(touch(), None) if k - 1 + R < NST else []
        o = mixmem(reads(), dm) + ["s_waitcnt lgkmcnt(0)"] + mm(first)
        if k + 1 < NST: o += [f"s_waitcnt vmcnt({M.cnt(k + 2)})", "s_barrier"]
        return o
    emit_loop(a, "G1_B_LOOP", [bodyB(k, k == 0) for k in range(NST)])
    a.L("G1_EPI")
    ts(a, 1)
    a.I("s_lshl_b32 s16, s20, 8", f"s_add_u32 s16, s16, {LC}", "v_lshl_add_u32 v13, v1, 2, s16", "v_mov_b32 v12, 0", "ds_write_b32 v13, v12")
    wave_flag(a, 60, FL_H)
    a.I("s_lshl_b32 s16, s22, 4", "s_lshr_b32 s17, s20, 2", "s_lshl_b32 s17, s17, 3", "s_add_u32 s16, s16, s17", "s_mul_i32 s16, s16, 112",
        "s_mul_i32 s17, s21, 7", "s_add_u32 s17, s17, s40", "s_lshr_b32 s17, s17, 1", "s_add_u32 s16, s16, s17",
        "s_lshl_b32 s16, s16, 10", f"s_add_u32 s61, s16, {WS_H}", "s_cmp_eq_u32 s23, 3", "s_cbranch_scc1 G1_EPQ")
    for t in reversed(range(8)):
        g, u = acc(0, 0, t), acc(1, 0, t)
        for i in range(8): a.I(f"v_max_f32 v{g+i}, 0, v{g+i}")
        for i in range(8): a.I(f"v_mul_f32 v{g+i}, v{g+i}, v{u+i}")
        for d in range(4): a.I(f"v_cvt_pk_bf16_f32 v{HP+4*t+d}, v{g+2*d}, v{g+2*d+1}")
    a.I("s_branch G1_X")
    a.L("G1_EPQ")
    a.I(f"s_mov_b32 s18, {f32(QSCALE)}", "s_lshr_b32 s16, s20, 2", "s_lshl_b32 s16, s16, 13", f"s_add_u32 s16, s16, {LQ}",
        "v_add_u32 v9, s16, v3", "s_lshl_b32 s16, s19, 3", "s_add_u32 s61, s61, s16")
    for t in range(8):
        q0, q1 = acc(0, 1, t), acc(1, 1, t)
        for i in range(4): a.I(f"v_mul_f32 v{q0+i}, s18, v{q0+i}", f"v_mul_f32 v{q1+i}, s18, v{q1+i}")
        a.I(f"v_cvt_pk_bf16_f32 v{FA+4*t}, v{q0}, v{q0+1}", f"v_cvt_pk_bf16_f32 v{FA+4*t+1}, v{q0+2}, v{q0+3}",
            f"v_cvt_pk_bf16_f32 v{FA+4*t+2}, v{q1}, v{q1+1}", f"v_cvt_pk_bf16_f32 v{FA+4*t+3}, v{q1+2}, v{q1+3}",
            f"ds_write_b128 v9, {vr(FA+4*t,4)} offset:{t*1024}")
    for t in reversed(range(8)):
        g, u = acc(0, 0, t), acc(1, 0, t)
        for i in range(4): a.I(f"v_max_f32 v{g+i}, 0, v{g+i}")
        for i in range(4): a.I(f"v_mul_f32 v{g+i}, v{g+i}, v{u+i}")
        for d in range(2): a.I(f"v_cvt_pk_bf16_f32 v{HP+4*t+d}, v{g+2*d}, v{g+2*d+1}")
    a.L("G1_X")
    a.I("s_cmp_ge_u32 s20, 4", "s_cbranch_scc1 G1_X2", "s_lshl_b32 s16, s20, 11", "v_add_u32 v9, s16, v3")
    for t in range(8): a.I(f"ds_write_b128 v9, {vr(HP+4*t,4)} offset:{(t>>1)*8192+(t&1)*1024}")
    a.L("G1_X2")
    a.I("s_waitcnt lgkmcnt(0)", "s_barrier")
    ts(a, 2)

def h_stores(a):
    _n[0] += 1; lab = f"HS{_n[0]}"
    a.I(f"s_sub_u32 s16, s61, {8*112*1024}", "s_cmp_eq_u32 s20, 3", f"s_cbranch_scc1 {lab}")
    for w, n in ((4, lab + "_D"), (2, None)):
        for t in range(8): a.I(f"buffer_store_dwordx{w} {vr(HP+4*t,w)}, v3, s[32:35], s61 offen{SC1}", f"s_add_u32 s61, s61, {112*1024}")
        a.I("s_waitcnt lgkmcnt(0)")
        for t in range(8): a.I(f"buffer_store_dwordx{w} {vr(192+4*t,w)}, v3, s[32:35], s16 offen{SC1}", f"s_add_u32 s16, s16, {112*1024}")
        if n: a.I(f"s_branch {n}"); a.L(lab)
    a.L(lab + "_D")

def attention(a):
    QR = [16, 24]; KB = [32, 48]; VB = [40, 56]; P = 64; SEL = 72; Lr = [76, 80]; S = [96, 112]; O = [128, 144]; C = [160, 176]
    a.I(f"s_add_u32 s36, s32, {WS_KV}", "s_addc_u32 s37, s33, 0", "s_mov_b32 s38, 0x40000", "s_mov_b32 s39, 0x20000")
    a.I("v_bfe_u32 v2, v1, 4, 1", "v_lshlrev_b32 v4, 10, v2", "v_lshrrev_b32 v2, 5, v1", "v_lshl_add_u32 v4, v2, 8, v4",
        "v_and_b32 v2, 15, v1", "v_lshl_add_u32 v4, v2, 4, v4",
        "s_lshl_b32 s16, s20, 12", f"s_add_u32 s16, s16, {LQ}", "v_add_u32 v5, s16, v4")
    for b in range(2):
        for ks in range(2): a.I(f"ds_read_b128 {vr(QR[b]+4*ks,4)}, v5 offset:{b*2048+ks*512}")
    a.I(f"v_add_u32 v6, {LKV}, v4", f"v_add_u32 v7, {LKV+2048}, v3")
    sync_setup(a, LC, 13, 14, 12)
    a.I("s_waitcnt vmcnt(8)")
    sync_block(a, 13, 14, 12, 15)
    def rdK(buf, off): return [f"ds_read_b128 {vr(KB[buf]+4*ks,4)}, v6 offset:{off+ks*512}" for ks in range(2)]
    def rdV(buf, off): return [f"ds_read_b128 {vr(VB[buf]+4*ks,4)}, v7 offset:{off+ks*1024}" for ks in range(2)]
    a.extend(rdK(0, 0) + rdV(0, 0))
    a.I("v_lshrrev_b32 v2, 2, v1", "v_lshrrev_b32 v5, 4, v1", "v_xor_b32 v2, v2, v5", "v_and_b32 v2, 1, v2",
        "v_cmp_eq_u32 vcc, 0, v2", "v_mov_b32 v5, 0x3f803f80", "s_mov_b32 s28, 0",
        f"v_cndmask_b32 v{SEL}, 0, v5, vcc")
    for i in range(1, 4): a.I(f"v_mov_b32 v{SEL+i}, v{SEL}")
    a.I("s_waitcnt lgkmcnt(0)")
    ts(a, 3)
    for b in range(2):
        a.I(mfma32(S[b], KB[0], QR[b], "0"), mfma32(S[b], KB[0] + 4, QR[b] + 4))
    for b in range(2):
        for i in range(16): a.I(f"v_mov_b32 v{O[b]+i}, 0")
        for i in range(4): a.I(f"v_mov_b32 v{Lr[b]+i}, 0")
    for i in range(4): a.I(f"v_mov_b32 v{P+4+i}, 0", f"v_mov_b32 v{VB[1]+4+i}, 0")
    for b in range(2):
        s0 = S[b]; m = 8 + 2 * b
        a.I(f"v_max3_f32 v{m}, v{s0}, v{s0+1}, v{s0+2}")
        for i in range(3, 15, 2): a.I(f"v_max3_f32 v{m}, v{m}, v{s0+i}, v{s0+i+1}")
        a.I(f"v_max_f32 v{m}, v{m}, v{s0+15}", f"v_mov_b32 v{m+1}, v{m}")
    for b in range(2):
        m = 8 + 2 * b
        a.I(f"v_permlane32_swap_b32 v{m}, v{m+1}", f"v_max_f32 v{m}, v{m}, v{m+1}", f"v_sub_f32 v{C[b]}, 0, v{m}")
        for i in range(1, 16): a.I(f"v_mov_b32 v{C[b]+i}, v{C[b]}")
    a.I(mfma32(S[0], KB[0], QR[0], C[0]), mfma32(S[0], KB[0] + 4, QR[0] + 4))
    def tile(b, kbuf_next, vbuf, vprev, extra, dg):
        nb = 1 - b; s0 = S[b]
        ex = [f"v_exp_f32 v{s0+i}, v{s0+i}" for i in range(16)]
        cv = [f"v_cvt_pk_bf16_f32 v{P+d}, v{s0+2*d}, v{s0+2*d+1}" for d in range(8)]
        e = list(extra) + [None] * 4
        o = [mfma32(S[nb], KB[kbuf_next], QR[nb], C[nb]), e[0]] + ex[0:3]
        o += [mfma32(O[nb], VB[vprev] + 4, P + 4), e[1]] + ex[3:6]
        o += [mfma16(Lr[nb], SEL, P + 4)] + ex[6:8]
        o += [mfma32(S[nb], KB[kbuf_next] + 4, QR[nb] + 4), e[2], cv[0], cv[1], ex[8], cv[2], cv[3], ex[9], ex[10]]
        o += [mfma32(O[b], VB[vbuf], P), e[3]] + ex[11:14]
        o += [mfma16(Lr[b], SEL, P)] + (dg or []) + [ex[14], ex[15]] + cv[4:8]
        return [x for x in o if x]
    a.I(f"s_setprio {int(OPT.get('ap', 0))}", "s_nop 11")
    a.L("ATT_LOOP")
    dg = kv_groups()
    def slot(j):
        return ["s_cmp_eq_u32 s28, 0", f"s_cbranch_scc1 ATT_HB{j}"] + dg[j + 2] + [f"ATT_HB{j}:"]
    for kb in range(8):
        cur = kb & 1; nxt = 1 - cur
        if kb == 7:
            a.I("s_waitcnt vmcnt(0)")
            sync_block(a, 13, 14, 12, 15)
            a.I("v_xor_b32 v6, 0x8000, v6", "v_xor_b32 v7, 0x8000, v7")
        off = ((kb + 1) & 7) * 4096
        g0, g1 = (dg[0], dg[1]) if kb == 7 else (slot(2 * kb), slot(2 * kb + 1)) if kb < 3 else (None, None)
        a.extend(tile(0, cur, cur, nxt, rdK(nxt, off) + rdV(nxt, off), g0))
        a.I("s_waitcnt lgkmcnt(2)")
        a.extend(tile(1, nxt, cur, cur, [], g1))
        if kb == 7: a.I("s_add_u32 s28, s28, 1", f"s_cmp_lg_u32 s28, {1 if 'noatt' in EXP else 8}")
        a.I("s_waitcnt lgkmcnt(0)")
    a.I("s_cbranch_scc1 ATT_LOOP")
    a.I(mfma32(O[1], VB[1] + 4, P + 4), mfma16(Lr[1], SEL, P + 4))
    ts(a, 4)
    a.I("s_setprio 3", f"s_mov_b32 s16, {f32(2.0**100)}")
    for b in range(2):
        a.I(f"v_max3_f32 v{8+b}, abs(v{O[b]}), abs(v{O[b]+1}), v{Lr[b]}", f"v_add_f32 v{10+b}, v{O[b]}, v{O[b]+1}")
    for i in range(2, 16, 2):
        for b in range(2):
            a.I(f"v_max3_f32 v{8+b}, v{8+b}, abs(v{O[b]+i}), abs(v{O[b]+i+1})", f"v_add3_u32 v2, v2, v2, v2" if False else f"v_add_f32 v{10+b}, v{10+b}, v{O[b]+i}",
                f"v_add_f32 v{86+b}, v{O[b]+i+1}, v{Lr[b]}" if i == 2 else f"v_add_f32 v{86+b}, v{86+b}, v{O[b]+i+1}")
    a.I("v_max_f32 v8, v8, v9", "v_add_f32 v10, v10, v11", "v_add_f32 v86, v86, v87", "v_add_f32 v9, v10, v86")
    a.I("v_cmp_nlt_f32 vcc, v8, s16", "v_cmp_u_f32 s[18:19], v9, v9", "s_or_b64 vcc, vcc, s[18:19]")
    if "force" in EXP: a.I("s_mov_b64 vcc, -1")
    a.I("s_cbranch_vccz ATT_FIN")
    for b in range(2):
        M = 10; AL = 11
        for i in range(16): a.I(f"v_mov_b32 v{O[b]+i}, 0")
        for i in range(4): a.I(f"v_mov_b32 v{Lr[b]+i}, 0")
        a.I(f"v_mov_b32 v{M}, {f32(-3.0e38)}", f"s_mov_b32 s29, 0")
        a.L(f"ATT_FB{b}")
        for ks in range(2):
            a.I(f"buffer_load_dwordx4 {vr(KB[0]+4*ks,4)}, v4, s[36:39], s29 offen offset:{ks*512}",
                f"buffer_load_dwordx4 {vr(VB[0]+4*ks,4)}, v3, s[36:39], s29 offen offset:{2048+ks*1024}")
        a.I("s_waitcnt vmcnt(0)")
        s0 = S[0]
        a.I(mfma32(s0, KB[0], QR[b], "0"), mfma32(s0, KB[0] + 4, QR[b] + 4))
        a.I(f"v_max3_f32 v8, v{s0}, v{s0+1}, v{M}")
        for i in range(2, 16, 2): a.I(f"v_max3_f32 v8, v8, v{s0+i}, v{s0+i+1}")
        a.I("v_mov_b32 v9, v8", "v_permlane32_swap_b32 v8, v9", "v_max_f32 v8, v8, v9",
            f"v_sub_f32 v{AL}, v{M}, v8", f"v_exp_f32 v{AL}, v{AL}", f"v_mov_b32 v{M}, v8")
        for i in range(16): a.I(f"v_sub_f32 v{s0+i}, v{s0+i}, v8")
        for i in range(16): a.I(f"v_exp_f32 v{s0+i}, v{s0+i}")
        for i in range(16): a.I(f"v_mul_f32 v{O[b]+i}, v{O[b]+i}, v{AL}")
        for i in range(4): a.I(f"v_mul_f32 v{Lr[b]+i}, v{Lr[b]+i}, v{AL}")
        for d in range(8): a.I(f"v_cvt_pk_bf16_f32 v{P+d}, v{s0+2*d}, v{s0+2*d+1}")
        a.I(mfma32(O[b], VB[0], P), mfma16(Lr[b], SEL, P), mfma32(O[b], VB[0] + 4, P + 4), mfma16(Lr[b], SEL, P + 4))
        a.I("s_add_u32 s29, s29, 4096", f"s_cmp_lg_u32 s29, {64*4096}", f"s_cbranch_scc1 ATT_FB{b}")
    a.L("ATT_FIN")
    a.I("v_mov_b32 v23, v13", "v_mov_b32 v24, v14", "v_mov_b32 v25, v12")
    a.I("v_bfe_u32 v2, v1, 4, 1", "v_lshlrev_b32 v5, 15, v2", "v_lshrrev_b32 v2, 5, v1", "v_lshl_add_u32 v5, v2, 8, v5",
        "v_and_b32 v2, 15, v1", "v_lshl_add_u32 v5, v2, 4, v5",
        "s_lshl_b32 s16, s22, 2", "s_add_u32 s16, s16, s20", "s_lshl_b32 s16, s16, 7", "s_add_u32 s16, s16, s21", "s_lshl_b32 s16, s16, 10",
        f"s_add_u32 s16, s16, {WS_O}", "s_add_u32 s17, s16, 65536")
    for b in range(2): a.I(f"v_rcp_f32 v{8+b}, v{Lr[b]}")
    for b in range(2):
        for i in range(16): a.I(f"v_mul_f32 v{O[b]+i}, v{O[b]+i}, v{8+b}")
        for d in range(8): a.I(f"v_cvt_pk_bf16_f32 v{S[b]+d}, v{O[b]+2*d}, v{O[b]+2*d+1}")
        for ks in range(2):
            a.I(f"buffer_store_dwordx4 {vr(S[b]+4*ks,4)}, v5, s[32:35], s{16+b} offen offset:{ks*512}{SC1}")

def down(a):
    R = 8; SLOT = 8192; NST = 56
    FW_ = [32, 64]; AR = 192; ACC = 128
    M32 = "d16" not in EXP
    a.I(f"s_setprio {int(OPT.get('bp', 0))}", "s_lshl_b32 s16, s20, 11", "v_add_u32 v9, s16, v3")
    for t in range(8): a.I(f"ds_read_b128 {vr(192+4*t,4)}, v9 offset:{(t>>1)*8192+(t&1)*1024}")
    h_stores(a)
    a.I(f"s_load_dwordx2 s[8:9], s[0:1], {KA_WD}",
        "s_and_b32 s21, s2, 1",
        "s_bfe_u32 s16, s2, 0x10001", "s_lshl_b32 s16, s16, 3", "s_bfe_u32 s17, s2, 0x30003", "s_add_u32 s22, s16, s17",
        "s_bfe_u32 s16, s2, 0x10002", "s_lshl_b32 s16, s16, 2", "s_bfe_u32 s17, s2, 0x20006", "s_add_u32 s23, s16, s17",
        "s_lshl_b32 s46, s20, 11",
        "v_lshrrev_b32 v2, 4, v1", "s_lshl_b32 s16, s20, 3", "v_add_u32 v4, s16, v2", "v_lshlrev_b32 v4, 11, v4",
        "v_bfe_u32 v5, v1, 1, 3", *(["v_lshlrev_b32 v6, 1, v2", "v_xor_b32 v6, v6, v5", "v_mov_b32 v7, v6"] if M32 else ["v_xor_b32 v6, v2, v5", "v_xor_b32 v7, 4, v6"]),
        "v_and_b32 v2, 1, v1", "v_lshl_add_u32 v4, v2, 4, v4", "s_lshl_b32 s16, s23, 8", "v_add_u32 v4, s16, v4",
        f"v_add_u32 v5, {4*2048-1024}, v4",
        "v_lshl_add_u32 v4, v6, 5, v4", "v_lshl_add_u32 v5, v7, 5, v5",
        "s_mul_i32 s48, s21, %d" % (1792 * 2048), "s_waitcnt lgkmcnt(0)")
    srd(a, 24, 8, 3584 * 1024 * 2)
    def dma_w(st):
        return [f"s_add_u32 m0, s46, {(st % R) * SLOT}", "s_add_u32 s49, s48, 0",
                "buffer_load_dwordx4 v4, s[24:27], s49 offen lds", "s_add_u32 s48, s48, 65536",
                "buffer_load_dwordx4 v5, s[24:27], s49 offen offset:1024 lds"]
    def ld_a(st):
        r = AR + (st % R) * 8
        if M32: return [f"buffer_load_dwordx4 {vr(r,4)}, v10, s[32:35], s44 offen", f"buffer_load_dwordx4 {vr(r+4,4)}, v10, s[32:35], s44 offen offset:512",
                        "s_add_u32 s44, s44, 1024"]
        return [f"buffer_load_dwordx4 {vr(r,4)}, v3, s[32:35], s44 offen", f"buffer_load_dwordx4 {vr(r+4,4)}, v10, s[32:35], s44 offen",
                "s_add_u32 s44, s44, 1024"]
    L = Log()
    NW = int(OPT.get("nw", 2))
    for j in range(NW): a.extend(L.note(dma_w(j), ("w", j)))
    a.I(f"s_waitcnt vmcnt({2*NW})")
    ts(a, 9)
    set_flag(a, 60)
    for j in range(NW, R - 1): a.extend(L.note(dma_w(j), ("w", j)))
    a.I("s_lshl_b32 s16, s22, 3", "s_lshl_b32 s17, s20, 1", "s_add_u32 s16, s16, s17", "s_mul_i32 s16, s16, 112",
        "s_mul_i32 s17, s21, 56", "s_add_u32 s16, s16, s17", "s_lshl_b32 s44, s16, 10", f"s_add_u32 s44, s44, {WS_H}",
        )
    if M32:
        a.I("v_bfe_u32 v2, v1, 4, 1", f"v_mul_u32_u24 v10, {112*1024}, v2", "v_lshrrev_b32 v8, 5, v1", "v_lshl_add_u32 v10, v8, 8, v10",
            "v_and_b32 v9, 15, v1", "v_lshl_add_u32 v10, v9, 4, v10",
            "v_lshlrev_b32 v12, 10, v8", "v_bfe_u32 v9, v1, 2, 2", "v_lshl_add_u32 v12, v9, 8, v12",
            "v_lshlrev_b32 v9, 1, v9", "v_xor_b32 v9, v9, v2", "v_lshl_add_u32 v12, v9, 5, v12",
            "v_and_b32 v9, 3, v1", "v_lshl_add_u32 v12, v9, 3, v12")
        for u in range(1, 4): a.I(f"v_xor_b32 v{12+u}, {64*u}, v12")
    else:
        a.I(f"v_add_u32 v10, {112*1024}, v3",
            "v_lshrrev_b32 v2, 4, v1", "v_lshlrev_b32 v12, 10, v2", "v_bfe_u32 v9, v1, 2, 2", "v_lshl_add_u32 v12, v9, 8, v12",
            "v_bfe_u32 v8, v1, 2, 3", "v_lshl_add_u32 v12, v8, 5, v12", "v_and_b32 v9, 3, v1", "v_lshl_add_u32 v12, v9, 3, v12")
        for u in range(1, 8): a.I(f"v_xor_b32 v{12+u}, {32*u}, v12")
    NT = 0
    if "wt" in EXP.split("_"):
        a.I("v_lshrrev_b32 v2, 1, v1", "v_lshlrev_b32 v24, 11, v2", "v_and_b32 v2, 1, v1", "v_lshl_add_u32 v24, v2, 7, v24",
            "s_and_b32 s16, s22, 7", "s_lshl_b32 s16, s16, 2", "s_add_u32 s16, s16, s20", "s_mul_i32 s16, s16, %d" % (56 * 2048),
            "s_mul_i32 s17, s21, %d" % (1792 * 2048), "s_add_u32 s16, s16, s17", "s_lshl_b32 s17, s23, 8", "s_add_u32 s16, s16, s17",
            f"s_add_u32 s17, s16, {24*2048}",
            "buffer_load_dword v25, v24, s[24:27], s16 offen", "buffer_load_dword v26, v24, s[24:27], s17 offen")
        NT = 2
    sync_setup(a, LC + 1024, 20, 21, 22)
    a.I("v_lshrrev_b32 v2, 4, v1", "v_bfe_u32 v8, v1, 2, 2", "v_lshl_add_u32 v9, v8, 3, v2", "v_lshlrev_b32 v9, 5, v9",
        "v_and_b32 v2, 3, v1", "v_lshl_add_u32 v9, v2, 2, v9",
        "s_lshr_b32 s18, s22, 1", "s_lshl_b32 s18, s18, 5", "s_lshl_b32 s16, s21, 2", "s_add_u32 s18, s18, s16", "s_lshl_b32 s18, s18, 5",
        f"s_add_u32 s18, s18, {WS_FL+FL_H+16}")
    a.extend(poll(18, 64, 9))
    ts(a, 3)
    L.l = []
    for j in range(R - 1): a.extend(L.note(ld_a(j), ("a", j)))
    def need(k):
        last = max([i for i, t in enumerate(L.l) if (t[0] == "a" and t[1] <= k) or (t[0] == "w" and t[1] <= k + 2)], default=-1)
        return len(L.l) - 1 - last
    def reads(st):
        if M32: return [f"ds_read_b64_tr_b16 {vr(FW_[st&1]+(ks*4+nb)*4+2*rd,2)}, v{12+nb} offset:{(st % R)*SLOT+ks*2048+rd*4096}"
                        for ks in range(2) for nb in range(4) for rd in range(2)]
        return [f"ds_read_b64_tr_b16 {vr(FW_[st&1]+u*4+2*rd,2)}, v{12+u} offset:{(st % R)*SLOT+rd*4096}" for u in range(8) for rd in range(2)]
    sync_block(a, 20, 21, 22, 23)
    a.extend(reads(0))
    a.I("ds_read_b32 v23, v21", f"s_setprio {int(OPT.get('dp', 0))}")
    def body(k):
        if M32: m = [mfma32(ACC + nb * 16, FW_[k & 1] + (ks * 4 + nb) * 4, AR + (k % R) * 8 + ks * 4, "0" if k + ks == 0 else None) for ks in range(2) for nb in range(4)]
        else: m = [mfma16(ACC + (t * 8 + u) * 4, FW_[k & 1] + u * 4, AR + (k % R) * 8 + t * 4, "0" if k == 0 else None) for u in range(8) for t in range(2)]
        if k + 1 >= NST: return [f"s_waitcnt vmcnt({need(k)}) lgkmcnt(0)"] + m
        h0, h1 = (1, 7) if M32 else (2, 14)
        CP = "nocp" not in EXP and not PT
        o = (["s_setprio 3"] if CP else []) + [f"s_waitcnt vmcnt({need(k)}) lgkmcnt(0)", "v_cmp_gt_u32 vcc, s53, v23"]
        o += ([f"s_setprio {int(OPT.get('dp', 0))}"] if CP else []) + ["ds_add_u32 v20, v22", "s_add_u32 s53, s53, 1"]
        if PT: o += [f"s_setprio {1 if (k % R) < PT else 0}"]
        o += m[:h0] + [f"s_nop {2 - h0 - (1 if PT else 0)}"] * (2 - h0 - (1 if PT else 0) >= 0) + ["s_cbranch_vccnz @SPIN", "@CONT:"]
        dm = (L.note(dma_w(k - 1 + R), ("w", k - 1 + R)) + L.note(ld_a(k - 1 + R), ("a", k - 1 + R))) if k - 1 + R < NST else []
        if "dnodma" in EXP: dm = []
        fill = mixmem(reads(k + 1), dm, False)
        FR = int(OPT.get("fr", 5 if M32 else 10))
        rd = reads(k + 1) + ["ds_read_b32 v23, v21"]
        gs = groups_of(dm) if dm else []
        o += interleave(m[h0:FR], rd)
        rest = m[FR:]
        for i, x in enumerate(rest):
            o += [x] + [y for g in gs[(len(gs) * i) // len(rest):(len(gs) * (i + 1)) // len(rest)] for y in g]
        return o
    PT = int(OPT.get("pt", 0))
    bodies = [body(k) for k in range(NST)]
    U = R
    for head in range(0, R + U + 1):
        nl = (NST - R - head) // U
        if all(bodies[k] == bodies[head + (k - head) % U] for k in range(head, head + nl * U)): break
    spins = []
    def emit(k):
        spins.append(k)
        a.extend([x.replace("@SPIN", f"DN_SP{k}").replace("@CONT", f"DN_CT{k}") for x in bodies[k]])
    for k in range(head): emit(k)
    a.I(f"s_mov_b32 s51, {nl}")
    a.L("DN_LOOP")
    for k in range(head, head + U): emit(k)
    a.I("s_sub_u32 s51, s51, 1", "s_cmp_lg_u32 s51, 0", "s_cbranch_scc1 DN_LOOP")
    for k in range(head + nl * U, NST): emit(k)
    ts(a, 4)
    a.I("s_setprio 3", "s_lshl_b32 s16, s22, 3", "s_lshl_b32 s17, s20, 1", "s_add_u32 s16, s16, s17", "s_lshl_b32 s16, s16, 5",
        "s_lshl_b32 s17, s23, 2", "s_add_u32 s16, s16, s17",
        "s_lshl_b32 s16, s16, 10", "s_lshl_b32 s17, s21, 22", "s_add_u32 s16, s16, s17", f"s_add_u32 s16, s16, {WS_P}")
    if M32:
        a.I("v_bfe_u32 v2, v1, 4, 1", "v_lshlrev_b32 v5, 15, v2", "v_lshrrev_b32 v2, 5, v1", "v_lshl_add_u32 v5, v2, 8, v5",
            "v_and_b32 v2, 15, v1", "v_lshl_add_u32 v5, v2, 4, v5")
        for nb in range(4):
            g = ACC + nb * 16
            for e in range(2):
                pk = 192 + (nb * 2 + e) * 4
                a.I(f"v_cvt_pk_bf16_f32 v{pk}, v{g+4*e}, v{g+4*e+1}", f"v_cvt_pk_bf16_f32 v{pk+1}, v{g+4*e+2}, v{g+4*e+3}",
                    f"v_cvt_pk_bf16_f32 v{pk+2}, v{g+8+4*e}, v{g+8+4*e+1}", f"v_cvt_pk_bf16_f32 v{pk+3}, v{g+8+4*e+2}, v{g+8+4*e+3}",
                    f"buffer_store_dwordx4 {vr(pk,4)}, v5, s[32:35], s16 offen offset:{nb*1024+e*512}{SC1}")
    else:
        for t in range(2):
            for c in range(4):
                g = ACC + (t * 8 + c * 2) * 4; pk = 192 + (t * 4 + c) * 4
                for d in range(4): a.I(f"v_cvt_pk_bf16_f32 v{pk+d}, v{g+2*d}, v{g+2*d+1}")
                a.I(f"buffer_store_dwordx4 {vr(pk,4)}, v3, s[32:35], s16 offen offset:{c*1024}{SC1}")
            a.I("s_add_u32 s16, s16, 32768")
    wave_flag(a, 60, FL_O)
    a.I("s_waitcnt vmcnt(0)")
    set_flag(a, 60)
    tl_dump(a, 13)
    a.I("s_endpgm")
    for k in spins:
        if k + 1 >= NST: continue
        a.L(f"DN_SP{k}")
        a.I("ds_read_b32 v23, v21", "s_waitcnt lgkmcnt(0)", "v_add_u32 v23, 1, v23", "v_cmp_gt_u32 vcc, s53, v23",
            f"s_cbranch_vccnz DN_SP{k}", f"s_branch DN_CT{k}")

def wo(a):
    OA = 128; FW = [32, 48]; ACC = 64; XR = 96; P0 = 128; P1 = 144
    NE = 20; D = 16; SW = int(OPT.get("sw", 12))
    a.I(f"s_load_dwordx2 s[8:9], s[0:1], {KA_WO}", f"s_load_dwordx2 s[10:11], s[0:1], {KA_X}", f"s_load_dwordx2 s[12:13], s[0:1], {KA_OUT}",
        "s_bfe_u32 s16, s2, 0x20001", "s_lshl_b32 s16, s16, 2", "s_bfe_u32 s17, s2, 0x20003", "s_add_u32 s22, s16, s17",
        "s_and_b32 s16, s2, 1", "s_lshl_b32 s16, s16, 3", "s_lshr_b32 s17, s2, 5", "s_add_u32 s23, s16, s17",
        "v_lshrrev_b32 v2, 3, v1", "v_lshlrev_b32 v4, 11, v2",
        "v_lshrrev_b32 v2, 4, v1", "v_bfe_u32 v5, v1, 1, 2", "v_xor_b32 v2, v2, v5", "v_lshl_add_u32 v4, v2, 5, v4",
        "v_and_b32 v2, 1, v1", "v_lshl_add_u32 v4, v2, 4, v4", "s_lshl_b32 s16, s23, 7", "v_add_u32 v4, s16, v4")
    for i in range(1, 4): a.I(f"v_add_u32 v{4+i}, {i*(8*2048-1024)}, v4")
    a.I("s_lshl_b32 s16, s22, 2", "s_add_u32 s16, s16, s20", "s_lshl_b32 s44, s16, 16",
        "s_lshl_b32 s17, s23, 7", "s_add_u32 s42, s44, s17",
        "s_lshl_b32 s17, s23, 11", "s_add_u32 s43, s44, s17", f"s_add_u32 s43, s43, {WS_P}",
        f"s_add_u32 s44, s44, {WS_O}", "v_add_u32 v10, 0x8000, v3")
    wave_flag(a, 60, FL_O)
    a.I("s_waitcnt vmcnt(0) lgkmcnt(0)")
    set_flag(a, 60)
    srd(a, 24, 8, 1024 * 1024 * 2); srd(a, 28, 10, 2048 * 2048); srd(a, 36, 12, 2048 * 2048)
    def w_blocks(first, n, lds):
        o = []
        for j in range(0, n, 4):
            o += [f"s_add_u32 m0, s{lds}, {j*1024}", f"s_add_u32 s16, s{first}, {j*8*2048}", "s_and_b32 s16, s16, 0x1fffff"]
            o += [f"buffer_load_dwordx4 v{4+i}, s[24:27], s16 offen offset:{i*1024} lds" for i in range(4)]
        return o
    def o_load(kb):
        r = OA + (kb % D) * 8
        return (["s_add_u32 s45, s44, s46", "s_add_u32 s46, s46, 4096", "s_and_b32 s46, s46, 0x7fff"] if kb & 3 == 0 else []) + \
               [f"buffer_load_dwordx4 {vr(r,4)}, v3, s[32:35], s45 offen offset:{(kb&3)*1024}",
                f"buffer_load_dwordx4 {vr(r+4,4)}, v10, s[32:35], s45 offen offset:{(kb&3)*1024}"]
    sync_block(a, 23, 24, 25, 26)
    a.I("s_lshr_b32 s16, s2, 5", "s_mul_i32 s16, s16, %d" % int(OPT.get("rot", 1)), "s_lshl_b32 s46, s16, 12", "s_lshl_b32 s49, s16, 18")
    a.I(f"s_mul_i32 s48, s20, {NE*8*2048}", "s_add_u32 s48, s48, s49", f"s_mul_i32 s47, s20, {NE*1024}", f"s_add_u32 s47, s47, {LKV}")
    a.extend(w_blocks(48, NE, 47))
    a.I("v_and_b32 v2, 31, v1", "v_lshlrev_b32 v31, 11, v2", f"s_mul_i32 s48, s20, {96*2048}", f"s_add_u32 s48, s48, {640*2048}", "s_add_u32 s48, s48, s49",
        "s_lshl_b32 s17, s23, 7", "v_add_u32 v31, s17, v31")
    for j in range(3): a.I(f"s_add_u32 s16, s48, {j*32*2048}", "s_and_b32 s16, s16, 0x1fffff", f"buffer_load_dword v{28+j}, v31, s[24:27], s16 offen")
    a.I(
        f"s_mul_i32 s47, s20, {12*1024}", f"s_add_u32 s47, s47, {LKV}")
    xsel(a, 21)
    a.I("v_lshrrev_b32 v2, 5, v1", "v_lshlrev_b32 v12, 11, v2", "v_bfe_u32 v9, v1, 2, 3", "v_lshl_add_u32 v12, v9, 7, v12",
        "v_lshrrev_b32 v9, 1, v9", "v_lshl_add_u32 v12, v9, 5, v12", "v_and_b32 v9, 3, v1", "v_lshl_add_u32 v12, v9, 3, v12",
        f"v_add_u32 v12, {LKV}, v12")
    for u in range(1, 4): a.I(f"v_xor_b32 v{12+u}, {32*u}, v12")
    for u in range(4): a.I(f"v_add_u32 v{16+u}, 0x10000, v{12+u}")
    a.I("s_lshr_b32 s16, s22, 3", "s_lshl_b32 s16, s16, 1", "s_lshr_b32 s17, s23, 3", "s_lshl_b32 s17, s17, 2", "s_add_u32 s16, s16, s17",
        "s_and_b32 s17, s22, 7", "s_lshl_b32 s17, s17, 3", "s_add_u32 s16, s16, s17",
        "s_bfe_u32 s17, s23, 0x20001", "s_lshl_b32 s17, s17, 6", "s_add_u32 s16, s16, s17", "s_lshl_b32 s50, s16, 5",
        "s_lshl_b32 s16, s20, 2", "s_add_u32 s50, s50, s16", f"s_add_u32 s50, s50, {WS_FL+FL_O+16}",
        "v_lshlrev_b32 v22, 5, v1", "s_mov_b32 s19, 0xffff0000",
        "s_lshr_b32 s16, s22, 1", "s_lshl_b32 s18, s16, 10", "s_and_b32 s16, s22, 1", "s_lshl_b32 s16, s16, 1", "s_lshr_b32 s17, s20, 1",
        "s_add_u32 s16, s16, s17", "s_lshl_b32 s16, s16, 2", "s_add_u32 s18, s18, s16", f"s_add_u32 s18, s18, {WS_FL+FL_O}")
    a.extend(poll(18, 32, 22))
    ts(a, 5)
    L = Log()
    nxt = int(OPT.get("o0", 4))
    for kb in range(nxt): a.extend(L.note(o_load(kb), kb))
    sync_block(a, 23, 24, 25, 26)
    ts(a, 6)
    a.I(f"s_setprio {int(OPT.get('wp', 0))}")
    def reads(kb):
        vb, so = (12, kb * 4096) if kb < 16 else (16, (kb - 16) * 4096) if kb < NE else (12, (kb - NE) * 4096)
        return [f"ds_read_b64_tr_b16 {vr(FW[kb&1]+u*4+2*rd,2)}, v{vb+u} offset:{so+rd*1024}" for u in range(4) for rd in range(2)]
    a.extend(reads(0))
    for kb in range(32):
        wc = L.cnt(kb)
        if kb == NE - 1: wc = min(wc, len(L.l) - 1 - max(i for i, t in enumerate(L.l) if t == 99))
        a.I(f"s_waitcnt vmcnt({wc}) lgkmcnt(0)")
        if "wost" in EXP and kb in (0, 8, 20, 27): ts(a, {0: 9, 8: 10, 20: 11, 27: 12}[kb])
        if kb == SW:
            sync_block(a, 23, 24, 25, 26)
            a.extend(L.note(w_blocks(48, 12, 47), 99))
        if kb == NE - 1: sync_block(a, 23, 24, 25, 26)
        if kb == 20:
            a.extend(L.note(["s_add_u32 s16, s42, 0x8000"] + [f"buffer_load_dwordx4 {vr(XR+8*t+4*c,4)}, v21, s[28:31], s{42 if t == 0 else 16} offen offset:{c*64}"
                                                            for t in range(2) for c in range(2)], None))
        if kb == 24: a.extend(L.note(lanes(2) + [poll_load(50, 22, 27), "s_mov_b64 exec, -1"], None))
        m = [mfma16(ACC + (t * 4 + u) * 4, FW[kb & 1] + u * 4, OA + (kb % D) * 8 + 4 * t, "0" if kb == 0 else None) for u in range(4) for t in range(2)]
        a.extend(interleave(m, reads(kb + 1) if kb < 31 else [], [2, 2, 2, 2, 0, 0, 0, 0]))
        for _ in range(int(OPT.get("or", 2))):
            if nxt < 32 and nxt <= kb + D: a.extend(L.note(o_load(nxt), nxt)); nxt += 1
    a.I("s_setprio 3")
    a.extend(poll(50, 2, 22, 27, preloaded=0))
    a.I(f"s_add_u32 s17, s43, {4<<20}")
    for t in range(2):
        for c in range(2):
            a.I(f"buffer_load_dwordx4 {vr(P0+8*t+4*c,4)}, v{3 if t == 0 else 10}, s[32:35], s43 offen offset:{c*1024}",
                f"buffer_load_dwordx4 {vr(P1+8*t+4*c,4)}, v{3 if t == 0 else 10}, s[32:35], s17 offen offset:{c*1024}")
    for i in range(4):
        a.I(f"v_permlane16_swap_b32 v{XR+4*i}, v{XR+4*i+2}", f"v_permlane16_swap_b32 v{XR+4*i+1}, v{XR+4*i+3}")
    E = [(i, d, ACC + i * 8 + 2 * d, 160 + 4 * (i * 4 + d)) for i in range(4) for d in range(4)]
    for i, d, g, r in E: a.I(f"v_lshlrev_b32 v{r}, 16, v{XR+4*i+d}", f"v_and_b32 v{r+1}, s19, v{XR+4*i+d}")
    for i, d, g, r in E: a.I(f"v_add_f32 v{g}, v{g}, v{r}", f"v_add_f32 v{g+1}, v{g+1}, v{r+1}")
    for i in range(4):
        a.I(f"s_waitcnt vmcnt({6 - 2 * i + i})")
        Ei = E[4 * i:4 * i + 4]
        for i_, d, g, r in Ei:
            a.I(f"v_lshlrev_b32 v{r}, 16, v{P0+4*i+d}", f"v_and_b32 v{r+1}, s19, v{P0+4*i+d}",
                f"v_lshlrev_b32 v{r+2}, 16, v{P1+4*i+d}", f"v_and_b32 v{r+3}, s19, v{P1+4*i+d}")
        for i_, d, g, r in Ei: a.I(f"v_add_f32 v{r}, v{r}, v{r+2}", f"v_add_f32 v{r+1}, v{r+1}, v{r+3}")
        for i_, d, g, r in Ei: a.I(f"v_add_f32 v{g}, v{g}, v{r}", f"v_add_f32 v{g+1}, v{g+1}, v{r+1}")
        pk = 32 + 4 * i
        for i_, d, g, r in Ei: a.I(f"v_cvt_pk_bf16_f32 v{pk+d}, v{g}, v{g+1}")
        a.I(f"v_permlane16_swap_b32 v{pk}, v{pk+2}", f"v_permlane16_swap_b32 v{pk+1}, v{pk+3}",
            f"buffer_store_dwordx4 {vr(pk,4)}, v21, s[36:39], s42 offen offset:{(i&1)*64}")
        if i == 1: a.I("s_add_u32 s42, s42, 0x8000")

def fused():
    a = Asm()
    ts(a, 0)
    a.I("s_cmp_ge_u32 s2, 256", "s_cbranch_scc1 F_END",
        f"s_load_dwordx8 s[4:11], s[0:1], {KA_X}", f"s_load_dwordx4 s[40:43], s[0:1], {KA_WG}",
        f"s_load_dwordx4 s[12:15], s[0:1], {KA_DBG}", "s_memrealtime s[48:49]",
        "v_lshrrev_b32 v2, 6, v0", "v_and_b32 v1, 63, v0", "v_readfirstlane_b32 s20, v2", "v_lshlrev_b32 v3, 4, v1",
        "s_lshr_b32 s21, s2, 4", "s_lshl_b32 s21, s21, 3", "s_and_b32 s16, s2, 7", "s_add_u32 s45, s21, s16", "s_lshl_b32 s23, s45, 15",
        "s_mov_b32 s54, s20", "s_lshl_b32 s16, s20, 12", "s_add_u32 s19, s23, s16", "s_waitcnt lgkmcnt(0)")
    srd(a, 32, 14, WS_SIZE); srd(a, 56, 12, 256)
    a.I("s_or_b32 s16, s2, s20", "s_cmp_lg_u32 s16, 0", "s_cbranch_scc1 F_NT",
        "s_or_b32 s16, s48, 1", "v_mov_b32 v2, s16", "v_mov_b32 v8, 0", "s_mov_b64 exec, 1",
        "buffer_store_dword v2, v8, s[56:59], 0 offen sc1", "s_mov_b64 exec, -1")
    a.L("F_NT")
    phase0(a)
    ts(a, 8)
    if "p0st" in EXP:
        tl_dump(a, 13); a.I("s_endpgm")
    g1(a)
    a.I("s_and_b32 s20, s54, 3", "s_cmp_ge_u32 s54, 4", "s_cbranch_scc1 F_B")
    attention(a)
    wo(a)
    tl_dump(a, 13)
    a.I("s_endpgm")
    a.L("F_B")
    down(a)
    a.L("F_END")
    a.I("s_endpgm")
    return a, dict(grid=256, block=512, lds=163840, vgpr=256)

if __name__ == "__main__":
    path = sys.argv[1] if len(sys.argv) > 1 else "cdna_kernels/" + NAME + ".s"
    opts = dict(o.split("=") for o in sys.argv[2:])
    OPT = opts; EXP = opts.get("exp", ""); TL = bool(int(opts.get("tl", 0)))
    G.VERB = bool(int(opts.get("verb", 0)))
    G.build([(NAME if int(opts.get("single", 0)) else "fused8", fused())], path)
```

```python
import sys
from asmlib import *
import gen as G
from gen import (NAME, KA_X, KA_WQ, KA_WK, KA_WV, KA_WO, KA_WG, KA_WU, KA_WD, KA_OUT, KA_DBG, KA_WS,
                 WS_XN, WS_KV, WS_O, WS_H, WS_P, WS_SIZE, f32, vr, srd, mfma32, mfma16, QSCALE, mix2, front_pattern)
WS_FL = 0x0480000
FL_KV, FL_X, FL_H, FL_O, FL_P = 0, 4096, 12288, 20480, 24576
WS_TL = 0x3F10000
LKV = 65536
LQ = 131072
LC = 147456
HP = 224
TL = False; EXP = ""; OPT = {}
SC1 = " sc1"

def ts(a, i):
    if TL: a.I(f"s_mem{'' if 'cyc' in EXP else 'real'}time s[{62+2*i}:{63+2*i}]")
def tl_dump(a, n):
    if not TL: return
    a.I("s_waitcnt vmcnt(0) lgkmcnt(0)")
    ts(a, 7)
    if "hd" in EXP.split("_"):
        a.I("s_waitcnt lgkmcnt(0)", "v_mov_b32 v1, 0", "s_mov_b64 exec, 1", "s_not_b32 s90, s62", "v_mov_b32 v2, s90",
            "buffer_atomic_umax v2, v1, s[56:59], 0 offen offset:4", "s_lshr_b32 s90, s54, 2", "s_mul_i32 s90, s90, 0")
        lab = f"HD{len(a.items)}"
        for j, i in enumerate((0, 8, 11, 12, 1, 2, 3, 4, 5, 7)):
            if j == 6: a.I("s_cmp_ge_u32 s54, 4", f"s_cbranch_scc1 {lab}")
            if j in (2, 3): a.I("s_cmp_ge_u32 s54, 4", f"s_cselect_b32 s{62+2*i}, 0, s{62+2*i}")
            a.I(f"v_mov_b32 v2, s{62+2*i}", f"buffer_atomic_umax v2, v1, s[56:59], 0 offen offset:{8+4*j}")
        a.I("s_endpgm")
        a.L(lab)
        for j, i in enumerate((3, 4, 7)):
            a.I(f"v_mov_b32 v2, s{62+2*i}", f"buffer_atomic_umax v2, v1, s[56:59], 0 offen offset:{48+4*j}")
        return
    a.I("s_waitcnt lgkmcnt(0)", "s_lshl_b32 s90, s2, 3", "s_add_u32 s90, s90, s54", "s_lshl_b32 s90, s90, 6",
        f"s_add_u32 s90, s90, {WS_TL}", "v_mov_b32 v1, 0", "s_mov_b64 exec, 1")
    for i in range(n):
        a.I(f"v_mov_b32 v2, s{62+2*i}", f"buffer_store_dword v2, v1, s[32:35], s90 offen offset:{4*i}")

_n = [0]
def lanes(n): return [f"s_mov_b32 exec_lo, {((1 << n) - 1) & 0xffffffff:#x}", f"s_mov_b32 exec_hi, {((1 << n) - 1) >> 32:#x}"] if n < 64 else []
def poll_load(soff, voff, dst, wide=False):
    return f"buffer_load_dword{'x4' if wide else ''} {vr(dst, 4 if wide else 1)}, v{voff}, s[32:35], s{soff} offen sc1"
def poll_test(dst, wide):
    if wide:
        return [f"v_xor_b32 v{dst+i}, s55, v{dst+i}" for i in range(4)] + \
               [f"v_or3_b32 v{dst}, v{dst}, v{dst+1}, v{dst+2}", f"v_or_b32 v{dst}, v{dst}, v{dst+3}", f"v_cmp_ne_u32 vcc, 0, v{dst}"]
    return [f"v_cmp_ne_u32 vcc, s55, v{dst}"]
def poll(soff, n, voff, dst=2, wide=False, preloaded=None):
    _n[0] += 1; lab = f"POLL{_n[0]}"
    o = lanes(n)
    if preloaded is not None:
        o += [f"s_waitcnt vmcnt({preloaded})"] + poll_test(dst, wide) + [f"s_cbranch_vccz {lab}_D"]
    o += ["s_mov_b32 s17, 0x40000", lab + ":", poll_load(soff, voff, dst, wide), "s_waitcnt vmcnt(0)"] + poll_test(dst, wide)
    o += [f"s_cbranch_vccz {lab}_D", "s_sleep 2", "s_sub_u32 s17, s17, 1", "s_cmp_lg_u32 s17, 0", f"s_cbranch_scc1 {lab}", lab + "_D:"]
    if n < 64: o += ["s_mov_b64 exec, -1"]
    return o
def set_flag(a, soff):
    a.I("v_mov_b32 v2, s55", "v_mov_b32 v8, 0", "s_mov_b64 exec, 1",
        f"buffer_store_dword v2, v8, s[32:35], s{soff} offen sc1", "s_mov_b64 exec, -1")
def wave_flag(a, reg, base):
    a.I(f"s_lshl_b32 s{reg}, s2, 3", f"s_add_u32 s{reg}, s{reg}, s54", f"s_lshl_b32 s{reg}, s{reg}, 2", f"s_add_u32 s{reg}, s{reg}, {WS_FL+base}")
def sync_setup(a, base, own, chk, one):
    a.I("s_lshl_b32 s16, s20, 8", f"s_add_u32 s16, s16, {base}", f"v_lshl_add_u32 v{own}, v1, 2, s16",
        "v_and_b32 v2, 3, v1", f"v_lshlrev_b32 v{chk}, 8, v2", f"v_lshl_add_u32 v{chk}, v1, 2, v{chk}", f"v_add_u32 v{chk}, {base}, v{chk}",
        f"v_mov_b32 v{one}, 1", "s_mov_b32 s53, 0")
def sync_block(a, own, chk, one, tmp):
    _n[0] += 1; lab = f"SY{_n[0]}"
    a.I(f"ds_add_u32 v{own}, v{one}", "s_add_u32 s53, s53, 1")
    a.L(lab)
    a.I(f"ds_read_b32 v{tmp}, v{chk}", "s_waitcnt lgkmcnt(0)", f"v_cmp_gt_u32 vcc, s53, v{tmp}", f"s_cbranch_vccnz {lab}")
def xsel(a, dst):
    a.I("v_and_b32 v2, 15, v1", f"v_lshlrev_b32 v{dst}, 11, v2", "v_bfe_u32 v2, v1, 4, 1", f"v_lshl_add_u32 v{dst}, v2, 5, v{dst}",
        "v_lshrrev_b32 v2, 5, v1", f"v_lshl_add_u32 v{dst}, v2, 4, v{dst}")
def is_vm(x): return x.startswith("buffer") or x.startswith("global")
def groups_of(dm):
    gs = []; cur = []
    for x in dm:
        cur.append(x)
        if is_vm(x): gs.append(cur); cur = []
    gs[-1] += cur
    return gs
def mixmem(rd, dm, dma_first=True):
    if not rd or not dm: return rd + dm
    gs = groups_of(dm)
    pre = [x for x in rd if x.startswith("v_")]; ds = [x for x in rd if x.startswith("ds_")]; post = [x for x in rd if x.startswith("s_")]
    o = list(pre); n = len(gs); per = len(ds) // n
    for g in range(n):
        part = ds[g * per:(g + 1) * per if g < n - 1 else len(ds)]
        o += (gs[g] + part) if dma_first else (part + gs[g])
    return o + post
class Log:
    def __init__(self): self.l = []
    def note(self, instrs, st): self.l += [st] * sum(map(is_vm, instrs)); return instrs
    def cnt(self, st):
        last = max([i for i, s_ in enumerate(self.l) if s_ is not None and s_ <= st], default=-1)
        return len(self.l) - 1 - last

WA0, WA1, WST = 116, 118, 120
def w_dma(slotreg):
    return [f"s_add_u32 m0, s{slotreg}, s46", "s_nop 0",
            f"global_load_lds_dwordx4 {vr(WA0,2)}, off", f"global_load_lds_dwordx4 {vr(WA1,2)}, off offset:1024",
            f"v_lshl_add_u64 {vr(WA0,2)}, {vr(WST,2)}, 0, {vr(WA0,2)}", f"v_lshl_add_u64 {vr(WA1,2)}, {vr(WST,2)}, 0, {vr(WA1,2)}"]

STREAM = ["buffer_load_dword v122, v114, s[88:91], s100 offen", "buffer_load_dword v123, v114, s[92:95], s100 offen",
          "buffer_load_dword v124, v115, s[96:99], s101 offen"]
def phase0(a):
    LW, LX, LR = 49152, 114688, 147456
    srd(a, 24, 4, 2048 * 2048)
    for i in range(4): a.I(f"buffer_load_dwordx4 {vr(8+4*i,4)}, v3, s[24:27], s19 offen offset:{i*1024}")
    a.I("v_mov_b32 v7, 0", "buffer_load_dword v6, v7, s[56:59], 0 offen sc1")
    TP = 0; NH = int(OPT.get("nh", 6))
    if NH:
        a.I("s_cmp_lt_u32 s20, 4", "s_cbranch_scc1 P0_NS", "s_cmp_eq_u32 s20, 7", "s_cbranch_scc1 P0_NS",
            "s_cmp_eq_u32 s20, 4", "s_cselect_b64 s[12:13], s[40:41], s[42:43]", f"s_mov_b32 s16, {NH*896}",
            "s_cmp_eq_u32 s20, 6", "s_cselect_b64 s[12:13], s[6:7], s[12:13]", f"s_cselect_b32 s16, {8192 if 'qf' in EXP else NH*256}, s16")
        srd(a, 88, 12, 1024 * 1024 * 2)
        a.I("v_lshlrev_b32 v114, 7, v1", "s_sub_u32 s17, s16, 128", "v_min_u32 v114, s17, v114", "s_mul_i32 s16, s16, s2",
            "buffer_load_dword v122, v114, s[88:91], s16 offen")
        a.L("P0_NS")
    a.I("s_bfe_u32 s22, s2, 0x10003", "s_cmp_eq_u32 s22, 0", "s_cselect_b64 s[12:13], s[8:9], s[10:11]")
    srd(a, 28, 12, 65536)
    a.I("s_lshl_b32 s17, s20, 13")
    a.I("s_and_b32 s16, s2, 7", "s_lshl_b32 s16, s16, 2", "s_bfe_u32 s21, s2, 0x20003", "s_add_u32 s21, s21, s16",
        "s_and_b32 s23, s20, 3", "s_cmp_lt_u32 s20, 4", "s_cselect_b64 s[12:13], s[42:43], s[40:41]", "s_cselect_b32 s18, 32, 0",
        "s_cselect_b32 s46, 8192, 0", "s_lshl_b32 s16, s23, 11", "s_add_u32 s46, s46, s16", "s_add_u32 s46, s46, 16384",
        "v_lshrrev_b32 v2, 4, v1", "s_lshl_b32 s16, s23, 3", "v_add_u32 v4, s16, v2",
        "s_and_b32 s16, s23, 1", "s_lshl_b32 s16, s16, 2", "v_add_u32 v2, s16, v2", "v_bfe_u32 v5, v1, 1, 3", "v_xor_b32 v2, v2, v5",
        "v_cmp_eq_u32 vcc, 7, v2", "v_mov_b32 v5, 7168", "v_mov_b32 v112, 2048", f"v_cndmask_b32 v{WST}, v5, v112, vcc",
        f"v_mul_lo_u32 v4, v4, v{WST}",
        "s_mul_i32 s16, s21, 224", "v_lshl_add_u32 v5, v2, 5, s16", "s_lshl_b32 s16, s21, 6", "s_add_u32 s16, s16, s18",
        "v_mov_b32 v112, s16", "v_cndmask_b32 v5, v5, v112, vcc", "v_add_u32 v4, v4, v5",
        "v_and_b32 v2, 1, v1", "v_lshl_add_u32 v4, v2, 4, v4",
        "v_mov_b32 v5, s12", "v_mov_b32 v112, s6", f"v_cndmask_b32 v{WA0}, v5, v112, vcc",
        "v_mov_b32 v5, s13", "v_mov_b32 v112, s7", f"v_cndmask_b32 v{WA0+1}, v5, v112, vcc",
        "v_mov_b32 v5, 0", f"v_lshl_add_u64 {vr(WA0,2)}, v[4:5], 0, {vr(WA0,2)}",
        f"v_lshlrev_b32 v4, 2, v{WST}", "v_add_u32 v4, -1024, v4" if False else "v_subrev_u32 v4, 1024, v4",
        f"v_lshl_add_u64 {vr(WA1,2)}, v[4:5], 0, {vr(WA0,2)}",
        f"v_lshlrev_b32 v{WST}, 5, v{WST}", f"v_mov_b32 v{WST+1}, 0", "s_mov_b32 s47, 0")
    srd(a, 24, 12, 1024 * 3584 * 2)
    a.I("v_lshrrev_b32 v2, 1, v1", "s_lshl_b32 s16, s23, 5", "s_add_u32 s16, s16, 32", "v_add_u32 v2, s16, v2",
        "v_mul_u32_u24 v112, 7168, v2", "v_and_b32 v2, 1, v1", "v_mul_u32_u24 v2, 208, v2", "v_add_u32 v112, v112, v2",
        "s_mul_i32 s44, s21, 224")
    a.I("s_mov_b32 s21, s45", "s_lshl_b32 s23, s21, 15", "s_mov_b32 s36, 0xffff0000")
    if NH: a.I("s_sub_u32 s16, s20, 4", "s_cmp_lt_u32 s16, 3", "s_cbranch_scc0 P0_X1", "s_waitcnt vmcnt(2)", "s_branch P0_X2", "P0_X1:", "s_waitcnt vmcnt(1)", "P0_X2:")
    else: a.I("s_waitcnt vmcnt(1)")
    ts(a, 9)
    late = [f"s_add_u32 m0, s17, {LW}", "s_add_u32 s18, s17, 4096"]
    late += [f"buffer_load_dwordx4 v3, s[28:31], s17 offen offset:{i*1024} lds" for i in range(4)]
    late += [f"s_add_u32 m0, s18, {LW}", "s_nop 0"]
    late += [f"buffer_load_dwordx4 v3, s[28:31], s18 offen offset:{i*1024} lds" for i in range(4)]
    late += w_dma(47) + (["buffer_load_dword v113, v112, s[24:27], s44 offen"] if not NH else [])
    if TP: late += ["s_cmp_lt_u32 s20, 4", "s_cbranch_scc1 P0_NS"] + STREAM + ["P0_NS:"]
    mark = len(a.items)
    for r in range(2):
        for d in range(8):
            src = 8 + 8 * r + d
            a.I(f"v_lshlrev_b32 v{32+16*r+2*d}, 16, v{src}", f"v_and_b32 v{33+16*r+2*d}, s36, v{src}")
    def tree2(bases, sq):
        T_ = [(24 + i, bases[i], 64 + 8 * i) for i in range(2)]
        for dst, base, t in T_:
            for i in range(8):
                a.I(f"v_mul_f32 v{t+i}, v{base+2*i}, v{base+2*i}" if sq else f"v_add_f32 v{t+i}, v{base+2*i}, v{base+2*i+1}")
        if sq:
            for dst, base, t in T_:
                for i in range(8): a.I(f"v_fmac_f32 v{t+i}, v{base+2*i+1}, v{base+2*i+1}")
        for s_ in (4, 2):
            for dst, base, t in T_:
                for i in range(s_): a.I(f"v_add_f32 v{t+i}, v{t+i}, v{t+i+s_}")
        for dst, base, t in T_: a.I(f"v_add_f32 v{dst}, v{t}, v{t+1}")
    def wavered(rs, ss):
        for mod in ("row_shr:1 row_mask:0xf bank_mask:0xf bound_ctrl:0", "row_shr:2 row_mask:0xf bank_mask:0xf bound_ctrl:0",
                    "row_shr:4 row_mask:0xf bank_mask:0xf bound_ctrl:0", "row_shr:8 row_mask:0xf bank_mask:0xf bound_ctrl:0",
                    "row_bcast:15 row_mask:0xa bank_mask:0xf", "row_bcast:31 row_mask:0xc bank_mask:0xf"):
            for r in rs: a.I(f"v_add_f32_dpp v{r}, v{r}, v{r} {mod}")
        for r, s_ in zip(rs, ss): a.I(f"v_readlane_b32 s{s_}, v{r}, 63")
    if "p0st" in EXP: ts(a, 1)
    tree2((32, 48), False)
    wavered((24, 25), (40, 41))
    if "p0st" in EXP: ts(a, 2)
    a.I(f"s_mov_b32 s37, {f32(1.0/1024)}")
    a.I("v_mov_b32 v26, s40", "v_mov_b32 v27, s41", "v_mul_f32 v26, s37, v26", "v_mul_f32 v27, s37, v27")
    for r in range(2):
        for i in range(16): a.I(f"v_sub_f32 v{80+16*r+i}, v{32+16*r+i}, v{26+r}")
    tree2((80, 96), True)
    wavered((24, 25), (42, 43))
    a.I("v_mov_b32 v28, s42", "v_mov_b32 v29, s43", "v_mul_f32 v28, s37, v28", "v_mul_f32 v29, s37, v29")
    def rnd(*rs):
        for r in rs: a.I(f"v_cvt_pk_bf16_f32 v{r}, v{r}, v{r}")
        for r in rs: a.I(f"v_lshlrev_b32 v{r}, 16, v{r}")
    a.I(f"s_mov_b32 s38, {f32(1e-5)}")
    rnd(28, 29, 26, 27)
    a.I("v_add_f32 v28, s38, v28", "v_add_f32 v29, s38, v29"); rnd(28, 29)
    a.I("v_sqrt_f32 v28, v28", "v_sqrt_f32 v29, v29"); rnd(28, 29)
    a.I("v_rcp_f32 v28, v28", "v_rcp_f32 v29, v29")
    if "p0st" in EXP: ts(a, 3)
    P_ = [(r, d, 32 + 16 * r + 2 * d) for r in range(2) for d in range(8)]
    for r, d, b in P_: a.I(f"v_sub_f32 v{b}, v{b}, v{26+r}", f"v_sub_f32 v{b+1}, v{b+1}, v{26+r}")
    for r, d, b in P_: a.I(f"v_cvt_pk_bf16_f32 v{80+8*r+d}, v{b}, v{b+1}")
    for r, d, b in P_: a.I(f"v_lshlrev_b32 v{b}, 16, v{80+8*r+d}", f"v_and_b32 v{b+1}, s36, v{80+8*r+d}")
    for r, d, b in P_: a.I(f"v_mul_f32 v{b}, v{b}, v{28+r}", f"v_mul_f32 v{b+1}, v{b+1}, v{28+r}")
    for r, d, b in P_: a.I(f"v_cvt_pk_bf16_f32 v{8+8*r+d}, v{b}, v{b+1}")
    body = a.items[mark:]; del a.items[mark:]
    gs = groups_of(late); step = int(OPT.get("lst", 24))
    if TP: gs[-3:] = [gs[-3] + gs[-2] + gs[-1]]
    for i, it in enumerate(body):
        if i % step == 0 and gs: a.extend(gs.pop(0))
        a.items.append(it)
    assert not gs
    if "p0st" in EXP: ts(a, 4)
    a.I("s_lshl_b32 s16, s20, 1", "v_and_b32 v2, 15, v1", "v_xor_b32 v2, s16, v2", "v_lshlrev_b32 v4, 8, v1", "v_lshl_add_u32 v4, v2, 4, v4",
        f"v_add_u32 v4, {LX}, v4", "v_xor_b32 v25, 16, v4")
    for r in range(2):
        for p in range(2): a.I(f"ds_write_b128 v{25 if r else 4}, {vr(8+8*r+4*p,4)} offset:{p*16384}")
    a.I("v_lshrrev_b32 v5, 4, v1", "v_lshlrev_b32 v2, 4, v5", "v_xor_b32 v26, v2, v3",
        "s_lshl_b32 s16, s20, 12", f"s_add_u32 s16, s16, {LX}", "v_add_u32 v30, s16, v26",
        "v_xor_b32 v27, 64, v30", "v_xor_b32 v28, 0x80, v30", "v_xor_b32 v29, 0xc0, v30",
        "v_lshlrev_b32 v31, 9, v5", "v_bfe_u32 v2, v1, 2, 2", "v_lshl_add_u32 v31, v2, 6, v31",
        "v_and_b32 v2, 3, v1", "v_lshl_add_u32 v31, v2, 3, v31", f"s_add_u32 s16, s17, {LW}", "v_add_u32 v31, s16, v31",
        "s_lshl_b32 s16, s22, 14", "s_lshl_b32 s18, s20, 12", "s_add_u32 s16, s16, s18",
        "s_add_u32 s39, s23, s16", f"s_add_u32 s16, s16, {LX}", "v_add_u32 v24, s16, v26",
        "v_xor_b32 v25, 64, v24", "v_xor_b32 v4, 0x80, v24", "v_xor_b32 v26, 0xc0, v24",
        "s_waitcnt lgkmcnt(0)", "s_barrier")
    ts(a, 10)
    a.I("s_cmp_ge_u32 s20, 4", "s_cbranch_scc1 P0_NC")
    for i, r in enumerate((24, 25, 4, 26)): a.I(f"ds_read_b128 {vr(8+4*i,4)}, v{r} offset:{i*1024}")
    for i in range(4): a.I(f"s_waitcnt lgkmcnt({3-i})", f"buffer_store_dwordx4 {vr(8+4*i,4)}, v3, s[32:35], s39 offen offset:{i*1024} sc1")
    a.I(f"s_waitcnt vmcnt({6 if NH else 7})", "s_branch P0_C")
    a.L("P0_NC")
    a.I(f"s_waitcnt vmcnt({2 if NH else 3})")
    a.L("P0_C")
    a.I("v_readfirstlane_b32 s55, v6")
    for j in range(4):
        a.I(f"ds_read_b128 {vr(32+4*j,4)}, v{(30, 27, 28, 29)[j]} offset:{j*1024}")
        for d in range(2):
            for rd in range(2):
                a.I(f"ds_read_b64_tr_b16 {vr(64+8*j+4*d+2*rd,2)}, v31 offset:{j*2048+rd*256+d*32}")
    a.I("s_waitcnt lgkmcnt(0)", "s_cmp_eq_u32 s22, 0", "s_cbranch_scc0 P0_V")
    for j in range(4):
        for d in range(2): a.I(mfma16(96 + 4 * d, 64 + 8 * j + 4 * d, 32 + 4 * j, "0" if j == 0 else None))
    a.I("s_branch P0_R")
    a.L("P0_V")
    for j in range(4):
        for d in range(2): a.I(mfma16(96 + 4 * d, 32 + 4 * j, 64 + 8 * j + 4 * d, "0" if j == 0 else None))
    a.L("P0_R")
    a.I("s_lshl_b32 s16, s20, 11", f"s_add_u32 s16, s16, {LR}", "v_add_u32 v4, s16, v3")
    wave_flag(a, 18, FL_X)
    for d in range(2): a.I(f"ds_write_b128 v4, {vr(96+4*d,4)} offset:{d*1024}")
    a.I("s_mov_b32 s17, 0x40000")
    a.L("P0_TAG")
    a.I("s_cmp_lg_u32 s55, 0", "s_cbranch_scc1 P0_TAGOK",
        "buffer_load_dword v6, v7, s[56:59], 0 offen sc1", "s_waitcnt vmcnt(0)", "v_readfirstlane_b32 s55, v6",
        "s_sub_u32 s17, s17, 1", "s_cmp_lg_u32 s17, 0", "s_cbranch_scc1 P0_TAG")
    a.L("P0_TAGOK")
    a.I("s_cmp_ge_u32 s20, 4", "s_cbranch_scc1 P0_NF", "s_waitcnt vmcnt(0)")
    set_flag(a, 18)
    a.L("P0_NF")
    a.I("s_waitcnt lgkmcnt(0)", "s_barrier")
    a.I("s_cmp_lg_u32 s20, 0", "s_cbranch_scc1 P0_END")
    a.I(f"v_add_u32 v4, {LR}, v3")
    for w in range(8):
        a.I(f"ds_read_b128 {vr(32+8*w,4)}, v4 offset:{w*2048}", f"ds_read_b128 {vr(36+8*w,4)}, v4 offset:{w*2048+1024}")
    a.I("s_waitcnt lgkmcnt(0)")
    for s_ in (4, 2, 1):
        for w in range(s_):
            for i in range(8): a.I(f"v_add_f32 v{32+8*w+i}, v{32+8*w+i}, v{32+8*(w+s_)+i}")
    for d in range(4): a.I(f"v_cvt_pk_bf16_f32 v{8+d}, v{32+2*d}, v{33+2*d}")
    a.I("s_lshr_b32 s16, s21, 1", "s_lshl_b32 s19, s16, 12", f"s_add_u32 s19, s19, {WS_KV}",
        "s_and_b32 s16, s21, 1", "s_lshl_b32 s16, s16, 10", "s_add_u32 s19, s19, s16",
        "s_cmp_eq_u32 s22, 0", "s_cbranch_scc0 P0_SV",
        "buffer_store_dwordx4 v[8:11], v3, s[32:35], s19 offen sc1", "s_branch P0_KF")
    a.L("P0_SV")
    a.I("v_and_b32 v2, 1, v5", "v_lshlrev_b32 v4, 9, v2", "v_and_b32 v2, 15, v1", "v_lshl_add_u32 v4, v2, 4, v4",
        "v_lshrrev_b32 v2, 1, v5", "v_lshl_add_u32 v4, v2, 3, v4",
        "buffer_store_dwordx2 v[8:9], v4, s[32:35], s19 offen offset:2048 sc1",
        "buffer_store_dwordx2 v[10:11], v4, s[32:35], s19 offen offset:2304 sc1")
    a.L("P0_KF")
    a.I("s_lshl_b32 s18, s2, 2", f"s_add_u32 s18, s18, {WS_FL+FL_KV}", "s_waitcnt vmcnt(0)")
    set_flag(a, 18)
    a.L("P0_END")

def kv_groups():
    gs = []
    for g in range(2):
        for i in range(4):
            o = [f"s_add_u32 m0, s25, {g*4096}", f"s_add_u32 s26, s24, {g*4096}"] if i == 0 else []
            gs.append(o + [f"buffer_load_dwordx4 v3, s[36:39], s26 offen offset:{i*1024} lds"])
    gs[-1] += ["s_add_u32 s24, s24, 32768", "s_xor_b32 s25, s25, 32768"]
    return gs

def emit_loop(a, label, bodies):
    best = (0, 1)
    i = 0
    while i < len(bodies):
        j = i
        while j < len(bodies) and bodies[j] == bodies[i]: j += 1
        if j - i > best[1] - best[0]: best = (i, j)
        i = j
    for k in range(best[0]): a.extend(bodies[k])
    a.I(f"s_mov_b32 s51, {best[1]-best[0]}")
    a.L(label)
    a.extend(bodies[best[0]])
    a.I("s_sub_u32 s51, s51, 1", "s_cmp_lg_u32 s51, 0", f"s_cbranch_scc1 {label}")
    for k in range(best[1], len(bodies)): a.extend(bodies[k])

def g1(a):
    NST = 32; R = 5; SLOT = 32768
    ACC = 128; FA = 64; FW = 96
    def acc(h, u, t): return ACC + (t * 4 + h * 2 + u) * 4
    a.I("s_and_b32 s16, s2, 7", "s_lshl_b32 s16, s16, 2", "s_bfe_u32 s21, s2, 0x20003", "s_add_u32 s21, s21, s16",
        "s_lshr_b32 s22, s2, 5", "s_and_b32 s23, s20, 3", "v_add_u32 v10, 31744, v3",
        "s_lshl_b32 s16, s22, 4", "s_lshl_b32 s17, s20, 1", "s_add_u32 s16, s16, s17", "s_lshl_b32 s44, s16, 15",
        "s_lshl_b32 s45, s20, 11", "s_mov_b32 s47, 0", "s_mov_b32 s50, 0", f"s_mov_b32 s52, {SLOT}",
        "s_lshl_b32 s18, s22, 5", "s_lshr_b32 s16, s20, 2", "s_lshl_b32 s16, s16, 4", "s_add_u32 s18, s18, s16",
        "s_lshl_b32 s16, s23, 1", "s_add_u32 s18, s18, s16", "s_lshl_b32 s18, s18, 5", f"s_add_u32 s18, s18, {WS_FL+FL_X}",
        "v_and_b32 v2, 3, v1", "v_lshlrev_b32 v8, 2, v2", "v_bfe_u32 v2, v1, 2, 1", "v_lshl_add_u32 v8, v2, 5, v8",
        "v_lshrrev_b32 v2, 3, v1", "v_lshl_add_u32 v8, v2, 8, v8")
    PD = int(OPT.get("pd", 6))
    RH = int(OPT.get("rh", 1))
    if PD:
        a.I(f"s_load_dwordx2 s[4:5], s[0:1], {KA_WQ}", f"s_load_dwordx2 s[6:7], s[0:1], {KA_WD}", f"s_load_dwordx2 s[8:9], s[0:1], {KA_WO}",
            f"v_min_u32 v2, {7*RH-1}, v1", "v_lshlrev_b32 v14, 7, v2", f"s_mul_i32 s16, s2, {896*RH}", "v_add_u32 v14, s16, v14",
            f"s_mov_b32 s31, {32*7168*RH}", f"s_mov_b32 s30, {PD*32*7168}", "s_cmp_eq_u32 s23, 0", "s_cbranch_scc1 G1_T0",
            "s_mov_b32 s30, 0x7f000000", "s_mov_b32 s31, 0", "s_cmp_ge_u32 s20, 4", "s_cbranch_scc1 G1_T0", "s_waitcnt lgkmcnt(0)",
            "s_cmp_eq_u32 s20, 1", "s_cbranch_scc0 G1_T2")
        srd(a, 24, 4, 1024 * 1024 * 2)
        a.I("v_and_b32 v2, 1, v1", "v_lshlrev_b32 v14, 7, v2", "s_lshl_b32 s16, s2, 8", "v_add_u32 v14, s16, v14",
            f"s_mov_b32 s31, {32*2048}", f"s_mov_b32 s30, {PD*32*2048}", "s_branch G1_T0")
        a.L("G1_T2")
        if "nolate" not in EXP:
            a.I("s_cmp_eq_u32 s20, 2", "s_cbranch_scc0 G1_T3")
            srd(a, 24, 6, 3584 * 1024 * 2)
            if "lwd" in EXP: a.I("v_min_u32 v2, 8, v1", "v_lshlrev_b32 v14, 7, v2", "s_mov_b32 s31, 1152", "s_mul_i32 s30, s2, 28672")
            a.I("s_branch G1_T0")
            a.L("G1_T3")
            srd(a, 24, 8, 1024 * 1024 * 2)
            a.I("v_min_u32 v2, 2, v1", "v_lshlrev_b32 v14, 7, v2", "s_mov_b32 s31, 384", "s_lshl_b32 s30, s2, 13")
        a.L("G1_T0")
    def touch(): return ["buffer_load_dword v16, v14, s[24:27], s30 offen", "s_add_u32 s30, s30, s31"] if PD else []
    def touch0(): return []
    a.extend(poll(18, 16, 8))
    ts(a, 11)
    def adv(reg): return [f"s_add_u32 s{reg}, s{reg}, {SLOT}", f"s_cmp_eq_u32 s{reg}, {SLOT*R}", f"s_cselect_b32 s{reg}, 0, s{reg}"]
    def dma_act():
        return ["s_add_u32 m0, s47, s45", "s_nop 0", "buffer_load_dwordx4 v3, s[32:35], s44 offen lds",
                "buffer_load_dwordx4 v10, s[32:35], s44 offen offset:1024 lds", "s_add_u32 s44, s44, 1024"] + adv(47)
    def dma_w(): return w_dma(52) + adv(52)
    def rdaddr():
        return ["s_lshr_b32 s17, s20, 2", "s_lshl_b32 s16, s17, 13", "v_add_u32 v6, s16, v3",
                "s_and_b32 s19, s21, 1", "s_lshl_b32 s16, s23, 1", "s_add_u32 s40, s16, s19", "s_add_u32 s41, s40, 1",
                "s_mul_i32 s16, s19, 6", "s_sub_u32 s16, 6, s16", "s_cmp_eq_u32 s23, 3", "s_cselect_b32 s40, s16, s40", "s_cselect_b32 s41, 7, s41",
                "v_lshrrev_b32 v2, 4, v1", "v_lshlrev_b32 v7, 11, v2", "v_and_b32 v2, 1, v2", "v_lshlrev_b32 v12, 2, v2",
                "v_bfe_u32 v2, v1, 2, 2", "v_lshl_add_u32 v7, v2, 8, v7", "v_add_u32 v12, v12, v2",
                "v_and_b32 v2, 3, v1", "v_lshl_add_u32 v7, v2, 3, v7", "v_add_u32 v7, 16384, v7",
                "v_xor_b32 v2, s41, v12", "v_lshl_add_u32 v11, v2, 5, v7", "v_xor_b32 v2, s40, v12", "v_lshl_add_u32 v7, v2, 5, v7"]
    def reads():
        o = ["v_add_u32 v8, s50, v6", "v_add_u32 v9, s50, v7", "v_add_u32 v13, s50, v11"]
        for h in range(2):
            for u in range(2):
                for rd in range(2):
                    o.append(f"ds_read_b64_tr_b16 {vr(FW+(h*2+u)*4+2*rd,2)}, v{9 if u == 0 else 13} offset:{h*8192+rd*1024}")
        for t in range(8): o.append(f"ds_read_b128 {vr(FA+t*4,4)}, v8 offset:{t*1024}")
        return o + adv(50)
    def mm(first):
        return [mfma16(acc(h, u, t), FW + (h * 2 + u) * 4, FA + t * 4, "0" if first else None) for t in range(8) for h in range(2) for u in range(2)]
    a.I("s_cmp_ge_u32 s20, 4", "s_cbranch_scc1 G1_B")
    L = Log()
    for j in range(R):
        if 0 < j < R - 1: a.extend(L.note(dma_w(), j))
        a.extend(L.note(dma_act(), j))
    a.extend(L.note(touch0(), None))
    a.extend(rdaddr())
    a.I(f"s_waitcnt vmcnt({L.cnt(0)})", "s_barrier")
    a.extend(reads())
    a.I(f"s_waitcnt vmcnt({L.cnt(1)}) lgkmcnt(0)", "s_barrier")
    ts(a, 12)
    kv = kv_groups()
    def bodyA(k, first=False):
        o = mm(first)
        dm = L.note([f"s_mov_b32 s18, {WS_FL+FL_KV}", poll_load(18, 3, 28, True)], None) if k == 27 else []
        dm += (L.note(dma_w(), k - 1 + R) if k - 1 + R < NST else []) + (L.note(dma_act() + touch(), k + R) if k + R < NST else [])
        if k + R < NST and PD: L.l[-1] = None
        if k == 28:
            o += poll(18, 64, 3, 28, True, preloaded=2)
            o += ["s_lshl_b32 s24, s20, 13", f"s_add_u32 s25, s24, {LKV}",
                  f"s_add_u32 s36, s32, {WS_KV}", "s_addc_u32 s37, s33, 0", "s_mov_b32 s38, 0x40000", "s_mov_b32 s39, 0x20000"]
            dm = L.note([x for g in kv for x in g], None)
        if k == 29: dm = L.note([x for g in kv for x in g], None)
        o += mixmem(reads() if k + 1 < NST else [], dm)
        if k + 1 < NST: o += [f"s_waitcnt vmcnt({L.cnt(k + 2)}) lgkmcnt(0)", "s_barrier"]
        return o
    emit_loop(a, "G1_A_LOOP", [bodyA(k, k == 0) for k in range(NST)])
    a.I("s_branch G1_EPI")
    a.L("G1_B")
    M = Log()
    for j in range(R - 1):
        if j: a.extend(M.note(dma_w(), j))
        a.extend(M.note(dma_act(), j))
    a.extend(M.note(touch0(), None))
    a.extend(rdaddr())
    a.I(f"s_waitcnt vmcnt({M.cnt(0)})", "s_barrier", f"s_waitcnt vmcnt({M.cnt(1)})", "s_barrier")
    def bodyB(k, first=False):
        dm = M.note(dma_w() + dma_act(), k - 1 + R) + M.note(touch(), None) if k - 1 + R < NST else []
        o = mixmem(reads(), dm) + ["s_waitcnt lgkmcnt(0)"] + mm(first)
        if k + 1 < NST: o += [f"s_waitcnt vmcnt({M.cnt(k + 2)})", "s_barrier"]
        return o
    emit_loop(a, "G1_B_LOOP", [bodyB(k, k == 0) for k in range(NST)])
    a.L("G1_EPI")
    ts(a, 1)
    a.I("s_lshl_b32 s16, s20, 8", f"s_add_u32 s16, s16, {LC}", "v_lshl_add_u32 v13, v1, 2, s16", "v_mov_b32 v12, 0", "ds_write_b32 v13, v12")
    wave_flag(a, 60, FL_H)
    a.I("s_lshl_b32 s16, s22, 4", "s_lshr_b32 s17, s20, 2", "s_lshl_b32 s17, s17, 3", "s_add_u32 s16, s16, s17", "s_mul_i32 s16, s16, 112",
        "s_mul_i32 s17, s21, 7", "s_add_u32 s17, s17, s40", "s_lshr_b32 s17, s17, 1", "s_add_u32 s16, s16, s17",
        "s_lshl_b32 s16, s16, 10", f"s_add_u32 s61, s16, {WS_H}", "s_cmp_eq_u32 s23, 3", "s_cbranch_scc1 G1_EPQ")
    for t in reversed(range(8)):
        g, u = acc(0, 0, t), acc(1, 0, t)
        for i in range(8): a.I(f"v_max_f32 v{g+i}, 0, v{g+i}")
        for i in range(8): a.I(f"v_mul_f32 v{g+i}, v{g+i}, v{u+i}")
        for d in range(4): a.I(f"v_cvt_pk_bf16_f32 v{HP+4*t+d}, v{g+2*d}, v{g+2*d+1}")
    a.I("s_branch G1_X")
    a.L("G1_EPQ")
    a.I(f"s_mov_b32 s18, {f32(QSCALE)}", "s_lshr_b32 s16, s20, 2", "s_lshl_b32 s16, s16, 13", f"s_add_u32 s16, s16, {LQ}",
        "v_add_u32 v9, s16, v3", "s_lshl_b32 s16, s19, 3", "s_add_u32 s61, s61, s16")
    for t in range(8):
        q0, q1 = acc(0, 1, t), acc(1, 1, t)
        for i in range(4): a.I(f"v_mul_f32 v{q0+i}, s18, v{q0+i}", f"v_mul_f32 v{q1+i}, s18, v{q1+i}")
        a.I(f"v_cvt_pk_bf16_f32 v{FA+4*t}, v{q0}, v{q0+1}", f"v_cvt_pk_bf16_f32 v{FA+4*t+1}, v{q0+2}, v{q0+3}",
            f"v_cvt_pk_bf16_f32 v{FA+4*t+2}, v{q1}, v{q1+1}", f"v_cvt_pk_bf16_f32 v{FA+4*t+3}, v{q1+2}, v{q1+3}",
            f"ds_write_b128 v9, {vr(FA+4*t,4)} offset:{t*1024}")
    for t in reversed(range(8)):
        g, u = acc(0, 0, t), acc(1, 0, t)
        for i in range(4): a.I(f"v_max_f32 v{g+i}, 0, v{g+i}")
        for i in range(4): a.I(f"v_mul_f32 v{g+i}, v{g+i}, v{u+i}")
        for d in range(2): a.I(f"v_cvt_pk_bf16_f32 v{HP+4*t+d}, v{g+2*d}, v{g+2*d+1}")
    a.L("G1_X")
    a.I("s_cmp_ge_u32 s20, 4", "s_cbranch_scc1 G1_X2", "s_lshl_b32 s16, s20, 11", "v_add_u32 v9, s16, v3")
    for t in range(8): a.I(f"ds_write_b128 v9, {vr(HP+4*t,4)} offset:{(t>>1)*8192+(t&1)*1024}")
    a.L("G1_X2")
    a.I("s_waitcnt lgkmcnt(0)", "s_barrier")
    ts(a, 2)

def h_stores(a):
    _n[0] += 1; lab = f"HS{_n[0]}"
    a.I(f"s_sub_u32 s16, s61, {8*112*1024}", "s_cmp_eq_u32 s20, 3", f"s_cbranch_scc1 {lab}")
    for w, n in ((4, lab + "_D"), (2, None)):
        for t in range(8): a.I(f"buffer_store_dwordx{w} {vr(HP+4*t,w)}, v3, s[32:35], s61 offen{SC1}", f"s_add_u32 s61, s61, {112*1024}")
        a.I("s_waitcnt lgkmcnt(0)")
        for t in range(8): a.I(f"buffer_store_dwordx{w} {vr(192+4*t,w)}, v3, s[32:35], s16 offen{SC1}", f"s_add_u32 s16, s16, {112*1024}")
        if n: a.I(f"s_branch {n}"); a.L(lab)
    a.L(lab + "_D")

def attention(a):
    QR = [16, 24]; KB = [32, 48]; VB = [40, 56]; P = 64; SEL = 72; Lr = [76, 80]; S = [96, 112]; O = [128, 144]; C = [160, 176]
    a.I(f"s_add_u32 s36, s32, {WS_KV}", "s_addc_u32 s37, s33, 0", "s_mov_b32 s38, 0x40000", "s_mov_b32 s39, 0x20000")
    a.I("v_bfe_u32 v2, v1, 4, 1", "v_lshlrev_b32 v4, 10, v2", "v_lshrrev_b32 v2, 5, v1", "v_lshl_add_u32 v4, v2, 8, v4",
        "v_and_b32 v2, 15, v1", "v_lshl_add_u32 v4, v2, 4, v4",
        "s_lshl_b32 s16, s20, 12", f"s_add_u32 s16, s16, {LQ}", "v_add_u32 v5, s16, v4")
    for b in range(2):
        for ks in range(2): a.I(f"ds_read_b128 {vr(QR[b]+4*ks,4)}, v5 offset:{b*2048+ks*512}")
    a.I(f"v_add_u32 v6, {LKV}, v4", f"v_add_u32 v7, {LKV+2048}, v3")
    sync_setup(a, LC, 13, 14, 12)
    a.I("s_waitcnt vmcnt(8)")
    sync_block(a, 13, 14, 12, 15)
    def rdK(buf, off): return [f"ds_read_b128 {vr(KB[buf]+4*ks,4)}, v6 offset:{off+ks*512}" for ks in range(2)]
    def rdV(buf, off): return [f"ds_read_b128 {vr(VB[buf]+4*ks,4)}, v7 offset:{off+ks*1024}" for ks in range(2)]
    a.extend(rdK(0, 0) + rdV(0, 0))
    a.I("v_lshrrev_b32 v2, 2, v1", "v_lshrrev_b32 v5, 4, v1", "v_xor_b32 v2, v2, v5", "v_and_b32 v2, 1, v2",
        "v_cmp_eq_u32 vcc, 0, v2", "v_mov_b32 v5, 0x3f803f80", "s_mov_b32 s28, 0",
        f"v_cndmask_b32 v{SEL}, 0, v5, vcc")
    for i in range(1, 4): a.I(f"v_mov_b32 v{SEL+i}, v{SEL}")
    a.I("s_waitcnt lgkmcnt(0)")
    ts(a, 3)
    for b in range(2):
        a.I(mfma32(S[b], KB[0], QR[b], "0"), mfma32(S[b], KB[0] + 4, QR[b] + 4))
    for b in range(2):
        for i in range(16): a.I(f"v_mov_b32 v{O[b]+i}, 0")
        for i in range(4): a.I(f"v_mov_b32 v{Lr[b]+i}, 0")
    for i in range(4): a.I(f"v_mov_b32 v{P+4+i}, 0", f"v_mov_b32 v{VB[1]+4+i}, 0")
    for b in range(2):
        s0 = S[b]; m = 8 + 2 * b
        a.I(f"v_max3_f32 v{m}, v{s0}, v{s0+1}, v{s0+2}")
        for i in range(3, 15, 2): a.I(f"v_max3_f32 v{m}, v{m}, v{s0+i}, v{s0+i+1}")
        a.I(f"v_max_f32 v{m}, v{m}, v{s0+15}", f"v_mov_b32 v{m+1}, v{m}")
    for b in range(2):
        m = 8 + 2 * b
        a.I(f"v_permlane32_swap_b32 v{m}, v{m+1}", f"v_max_f32 v{m}, v{m}, v{m+1}", f"v_sub_f32 v{C[b]}, 0, v{m}")
        for i in range(1, 16): a.I(f"v_mov_b32 v{C[b]+i}, v{C[b]}")
    a.I(mfma32(S[0], KB[0], QR[0], C[0]), mfma32(S[0], KB[0] + 4, QR[0] + 4))
    def tile(b, kbuf_next, vbuf, vprev, extra, dg):
        nb = 1 - b; s0 = S[b]
        ex = [f"v_exp_f32 v{s0+i}, v{s0+i}" for i in range(16)]
        cv = [f"v_cvt_pk_bf16_f32 v{P+d}, v{s0+2*d}, v{s0+2*d+1}" for d in range(8)]
        e = list(extra) + [None] * 4
        o = [mfma32(S[nb], KB[kbuf_next], QR[nb], C[nb]), e[0]] + ex[0:3]
        o += [mfma32(O[nb], VB[vprev] + 4, P + 4), e[1]] + ex[3:6]
        o += [mfma16(Lr[nb], SEL, P + 4)] + ex[6:8]
        o += [mfma32(S[nb], KB[kbuf_next] + 4, QR[nb] + 4), e[2], cv[0], cv[1], ex[8], cv[2], cv[3], ex[9], ex[10]]
        o += [mfma32(O[b], VB[vbuf], P), e[3]] + ex[11:14]
        o += [mfma16(Lr[b], SEL, P)] + (dg or []) + [ex[14], ex[15]] + cv[4:8]
        return [x for x in o if x]
    a.I(f"s_setprio {int(OPT.get('ap', 0))}", "s_nop 11")
    a.L("ATT_LOOP")
    dg = kv_groups()
    def slot(j):
        return ["s_cmp_eq_u32 s28, 0", f"s_cbranch_scc1 ATT_HB{j}"] + dg[j + 2] + [f"ATT_HB{j}:"]
    for kb in range(8):
        cur = kb & 1; nxt = 1 - cur
        if kb == 7:
            a.I("s_waitcnt vmcnt(0)")
            sync_block(a, 13, 14, 12, 15)
            a.I("v_xor_b32 v6, 0x8000, v6", "v_xor_b32 v7, 0x8000, v7")
        off = ((kb + 1) & 7) * 4096
        g0, g1 = (dg[0], dg[1]) if kb == 7 else (slot(2 * kb), slot(2 * kb + 1)) if kb < 3 else (None, None)
        a.extend(tile(0, cur, cur, nxt, rdK(nxt, off) + rdV(nxt, off), g0))
        a.I("s_waitcnt lgkmcnt(2)")
        a.extend(tile(1, nxt, cur, cur, [], g1))
        if kb == 7: a.I("s_add_u32 s28, s28, 1", f"s_cmp_lg_u32 s28, {1 if 'noatt' in EXP else 8}")
        a.I("s_waitcnt lgkmcnt(0)")
    a.I("s_cbranch_scc1 ATT_LOOP")
    a.I(mfma32(O[1], VB[1] + 4, P + 4), mfma16(Lr[1], SEL, P + 4))
    ts(a, 4)
    a.I("s_setprio 3", f"s_mov_b32 s16, {f32(2.0**100)}")
    for b in range(2):
        a.I(f"v_max3_f32 v{8+b}, abs(v{O[b]}), abs(v{O[b]+1}), v{Lr[b]}", f"v_add_f32 v{10+b}, v{O[b]}, v{O[b]+1}")
    for i in range(2, 16, 2):
        for b in range(2):
            a.I(f"v_max3_f32 v{8+b}, v{8+b}, abs(v{O[b]+i}), abs(v{O[b]+i+1})", f"v_add3_u32 v2, v2, v2, v2" if False else f"v_add_f32 v{10+b}, v{10+b}, v{O[b]+i}",
                f"v_add_f32 v{86+b}, v{O[b]+i+1}, v{Lr[b]}" if i == 2 else f"v_add_f32 v{86+b}, v{86+b}, v{O[b]+i+1}")
    a.I("v_max_f32 v8, v8, v9", "v_add_f32 v10, v10, v11", "v_add_f32 v86, v86, v87", "v_add_f32 v9, v10, v86")
    a.I("v_cmp_nlt_f32 vcc, v8, s16", "v_cmp_u_f32 s[18:19], v9, v9", "s_or_b64 vcc, vcc, s[18:19]")
    if "force" in EXP: a.I("s_mov_b64 vcc, -1")
    a.I("s_cbranch_vccz ATT_FIN")
    for b in range(2):
        M = 10; AL = 11
        for i in range(16): a.I(f"v_mov_b32 v{O[b]+i}, 0")
        for i in range(4): a.I(f"v_mov_b32 v{Lr[b]+i}, 0")
        a.I(f"v_mov_b32 v{M}, {f32(-3.0e38)}", f"s_mov_b32 s29, 0")
        a.L(f"ATT_FB{b}")
        for ks in range(2):
            a.I(f"buffer_load_dwordx4 {vr(KB[0]+4*ks,4)}, v4, s[36:39], s29 offen offset:{ks*512}",
                f"buffer_load_dwordx4 {vr(VB[0]+4*ks,4)}, v3, s[36:39], s29 offen offset:{2048+ks*1024}")
        a.I("s_waitcnt vmcnt(0)")
        s0 = S[0]
        a.I(mfma32(s0, KB[0], QR[b], "0"), mfma32(s0, KB[0] + 4, QR[b] + 4))
        a.I(f"v_max3_f32 v8, v{s0}, v{s0+1}, v{M}")
        for i in range(2, 16, 2): a.I(f"v_max3_f32 v8, v8, v{s0+i}, v{s0+i+1}")
        a.I("v_mov_b32 v9, v8", "v_permlane32_swap_b32 v8, v9", "v_max_f32 v8, v8, v9",
            f"v_sub_f32 v{AL}, v{M}, v8", f"v_exp_f32 v{AL}, v{AL}", f"v_mov_b32 v{M}, v8")
        for i in range(16): a.I(f"v_sub_f32 v{s0+i}, v{s0+i}, v8")
        for i in range(16): a.I(f"v_exp_f32 v{s0+i}, v{s0+i}")
        for i in range(16): a.I(f"v_mul_f32 v{O[b]+i}, v{O[b]+i}, v{AL}")
        for i in range(4): a.I(f"v_mul_f32 v{Lr[b]+i}, v{Lr[b]+i}, v{AL}")
        for d in range(8): a.I(f"v_cvt_pk_bf16_f32 v{P+d}, v{s0+2*d}, v{s0+2*d+1}")
        a.I(mfma32(O[b], VB[0], P), mfma16(Lr[b], SEL, P), mfma32(O[b], VB[0] + 4, P + 4), mfma16(Lr[b], SEL, P + 4))
        a.I("s_add_u32 s29, s29, 4096", f"s_cmp_lg_u32 s29, {64*4096}", f"s_cbranch_scc1 ATT_FB{b}")
    a.L("ATT_FIN")
    a.I("v_mov_b32 v23, v13", "v_mov_b32 v24, v14", "v_mov_b32 v25, v12")
    a.I("v_bfe_u32 v2, v1, 4, 1", "v_lshlrev_b32 v5, 15, v2", "v_lshrrev_b32 v2, 5, v1", "v_lshl_add_u32 v5, v2, 8, v5",
        "v_and_b32 v2, 15, v1", "v_lshl_add_u32 v5, v2, 4, v5",
        "s_lshl_b32 s16, s22, 2", "s_add_u32 s16, s16, s20", "s_lshl_b32 s16, s16, 7", "s_add_u32 s16, s16, s21", "s_lshl_b32 s16, s16, 10",
        f"s_add_u32 s16, s16, {WS_O}", "s_add_u32 s17, s16, 65536")
    for b in range(2): a.I(f"v_rcp_f32 v{8+b}, v{Lr[b]}")
    for b in range(2):
        for i in range(16): a.I(f"v_mul_f32 v{O[b]+i}, v{O[b]+i}, v{8+b}")
        for d in range(8): a.I(f"v_cvt_pk_bf16_f32 v{S[b]+d}, v{O[b]+2*d}, v{O[b]+2*d+1}")
        for ks in range(2):
            a.I(f"buffer_store_dwordx4 {vr(S[b]+4*ks,4)}, v5, s[32:35], s{16+b} offen offset:{ks*512}{SC1}")

def down(a):
    R = 8; SLOT = 8192; NST = 56
    FW_ = [32, 64]; AR = 192; ACC = 128
    M32 = "d16" not in EXP
    a.I(f"s_setprio {int(OPT.get('bp', 0))}", "s_lshl_b32 s16, s20, 11", "v_add_u32 v9, s16, v3")
    for t in range(8): a.I(f"ds_read_b128 {vr(192+4*t,4)}, v9 offset:{(t>>1)*8192+(t&1)*1024}")
    h_stores(a)
    a.I(f"s_load_dwordx2 s[8:9], s[0:1], {KA_WD}",
        "s_and_b32 s21, s2, 1",
        "s_bfe_u32 s16, s2, 0x10001", "s_lshl_b32 s16, s16, 3", "s_bfe_u32 s17, s2, 0x30003", "s_add_u32 s22, s16, s17",
        "s_bfe_u32 s16, s2, 0x10002", "s_lshl_b32 s16, s16, 2", "s_bfe_u32 s17, s2, 0x20006", "s_add_u32 s23, s16, s17",
        "s_lshl_b32 s46, s20, 11",
        "v_lshrrev_b32 v2, 4, v1", "s_lshl_b32 s16, s20, 3", "v_add_u32 v4, s16, v2", "v_lshlrev_b32 v4, 11, v4",
        "v_bfe_u32 v5, v1, 1, 3", *(["v_lshlrev_b32 v6, 1, v2", "v_xor_b32 v6, v6, v5", "v_mov_b32 v7, v6"] if M32 else ["v_xor_b32 v6, v2, v5", "v_xor_b32 v7, 4, v6"]),
        "v_and_b32 v2, 1, v1", "v_lshl_add_u32 v4, v2, 4, v4", "s_lshl_b32 s16, s23, 8", "v_add_u32 v4, s16, v4",
        f"v_add_u32 v5, {4*2048-1024}, v4",
        "v_lshl_add_u32 v4, v6, 5, v4", "v_lshl_add_u32 v5, v7, 5, v5",
        "s_mul_i32 s48, s21, %d" % (1792 * 2048), "s_waitcnt lgkmcnt(0)")
    srd(a, 24, 8, 3584 * 1024 * 2)
    def dma_w(st):
        return [f"s_add_u32 m0, s46, {(st % R) * SLOT}", "s_add_u32 s49, s48, 0",
                "buffer_load_dwordx4 v4, s[24:27], s49 offen lds", "s_add_u32 s48, s48, 65536",
                "buffer_load_dwordx4 v5, s[24:27], s49 offen offset:1024 lds"]
    def ld_a(st):
        r = AR + (st % R) * 8
        if M32: return [f"buffer_load_dwordx4 {vr(r,4)}, v10, s[32:35], s44 offen", f"buffer_load_dwordx4 {vr(r+4,4)}, v10, s[32:35], s44 offen offset:512",
                        "s_add_u32 s44, s44, 1024"]
        return [f"buffer_load_dwordx4 {vr(r,4)}, v3, s[32:35], s44 offen", f"buffer_load_dwordx4 {vr(r+4,4)}, v10, s[32:35], s44 offen",
                "s_add_u32 s44, s44, 1024"]
    L = Log()
    NW = int(OPT.get("nw", 2))
    for j in range(NW): a.extend(L.note(dma_w(j), ("w", j)))
    a.I(f"s_waitcnt vmcnt({2*NW})")
    ts(a, 9)
    set_flag(a, 60)
    for j in range(NW, R - 1): a.extend(L.note(dma_w(j), ("w", j)))
    a.I("s_lshl_b32 s16, s22, 3", "s_lshl_b32 s17, s20, 1", "s_add_u32 s16, s16, s17", "s_mul_i32 s16, s16, 112",
        "s_mul_i32 s17, s21, 56", "s_add_u32 s16, s16, s17", "s_lshl_b32 s44, s16, 10", f"s_add_u32 s44, s44, {WS_H}",
        )
    if M32:
        a.I("v_bfe_u32 v2, v1, 4, 1", f"v_mul_u32_u24 v10, {112*1024}, v2", "v_lshrrev_b32 v8, 5, v1", "v_lshl_add_u32 v10, v8, 8, v10",
            "v_and_b32 v9, 15, v1", "v_lshl_add_u32 v10, v9, 4, v10",
            "v_lshlrev_b32 v12, 10, v8", "v_bfe_u32 v9, v1, 2, 2", "v_lshl_add_u32 v12, v9, 8, v12",
            "v_lshlrev_b32 v9, 1, v9", "v_xor_b32 v9, v9, v2", "v_lshl_add_u32 v12, v9, 5, v12",
            "v_and_b32 v9, 3, v1", "v_lshl_add_u32 v12, v9, 3, v12")
        for u in range(1, 4): a.I(f"v_xor_b32 v{12+u}, {64*u}, v12")
    else:
        a.I(f"v_add_u32 v10, {112*1024}, v3",
            "v_lshrrev_b32 v2, 4, v1", "v_lshlrev_b32 v12, 10, v2", "v_bfe_u32 v9, v1, 2, 2", "v_lshl_add_u32 v12, v9, 8, v12",
            "v_bfe_u32 v8, v1, 2, 3", "v_lshl_add_u32 v12, v8, 5, v12", "v_and_b32 v9, 3, v1", "v_lshl_add_u32 v12, v9, 3, v12")
        for u in range(1, 8): a.I(f"v_xor_b32 v{12+u}, {32*u}, v12")
    NT = 0
    if "wt2" in EXP:
        a.I("v_min_u32 v2, 55, v1", "v_lshlrev_b32 v24, 7, v2", "s_lshl_b32 s16, s2, 2", "s_add_u32 s16, s16, s20", "s_mul_i32 s16, s16, 7168",
            "buffer_load_dword v25, v24, s[24:27], s16 offen")
    if "wt" in EXP.split("_"):
        a.I("v_lshrrev_b32 v2, 1, v1", "v_lshlrev_b32 v24, 11, v2", "v_and_b32 v2, 1, v1", "v_lshl_add_u32 v24, v2, 7, v24",
            "s_and_b32 s16, s22, 7", "s_lshl_b32 s16, s16, 2", "s_add_u32 s16, s16, s20", "s_mul_i32 s16, s16, %d" % (56 * 2048),
            "s_mul_i32 s17, s21, %d" % (1792 * 2048), "s_add_u32 s16, s16, s17", "s_lshl_b32 s17, s23, 8", "s_add_u32 s16, s16, s17",
            f"s_add_u32 s17, s16, {24*2048}",
            "buffer_load_dword v25, v24, s[24:27], s16 offen", "buffer_load_dword v26, v24, s[24:27], s17 offen")
        NT = 2
    sync_setup(a, LC + 1024, 20, 21, 22)
    a.I("v_lshrrev_b32 v2, 4, v1", "v_bfe_u32 v8, v1, 2, 2", "v_lshl_add_u32 v9, v8, 3, v2", "v_lshlrev_b32 v9, 5, v9",
        "v_and_b32 v2, 3, v1", "v_lshl_add_u32 v9, v2, 2, v9",
        "s_lshr_b32 s18, s22, 1", "s_lshl_b32 s18, s18, 5", "s_lshl_b32 s16, s21, 2", "s_add_u32 s18, s18, s16", "s_lshl_b32 s18, s18, 5",
        f"s_add_u32 s18, s18, {WS_FL+FL_H+16}")
    PG = "nopg" not in EXP
    a.extend(poll(18, 8 if PG else 64, 9))
    ts(a, 3)
    L.l = []
    for j in range(R - 1): a.extend(L.note(ld_a(j), ("a", j)))
    if PG: a.extend(L.note([poll_load(18, 9, 24), "s_mov_b32 s45, 44"], ("f", 0)))
    def need(k):
        last = max([i for i, t in enumerate(L.l) if (t[0] in "af" and t[1] <= k) or (t[0] == "w" and t[1] <= k + 2)], default=-1)
        return len(L.l) - 1 - last
    def reads(st):
        if M32: return [f"ds_read_b64_tr_b16 {vr(FW_[st&1]+(ks*4+nb)*4+2*rd,2)}, v{12+nb} offset:{(st % R)*SLOT+ks*2048+rd*4096}"
                        for ks in range(2) for nb in range(4) for rd in range(2)]
        return [f"ds_read_b64_tr_b16 {vr(FW_[st&1]+u*4+2*rd,2)}, v{12+u} offset:{(st % R)*SLOT+rd*4096}" for u in range(8) for rd in range(2)]
    sync_block(a, 20, 21, 22, 23)
    a.extend(reads(0))
    a.I("ds_read_b32 v23, v21", f"s_setprio {int(OPT.get('dp', 0))}")
    def body(k):
        if M32: m = [mfma32(ACC + nb * 16, FW_[k & 1] + (ks * 4 + nb) * 4, AR + (k % R) * 8 + ks * 4, "0" if k + ks == 0 else None) for ks in range(2) for nb in range(4)]
        else: m = [mfma16(ACC + (t * 8 + u) * 4, FW_[k & 1] + u * 4, AR + (k % R) * 8 + t * 4, "0" if k == 0 else None) for u in range(8) for t in range(2)]
        if k + 1 >= NST: return [f"s_waitcnt vmcnt({need(k)}) lgkmcnt(0)"] + m
        h0, h1 = (1, 7) if M32 else (2, 14)
        CP = "nocp" not in EXP and not PT
        o = (["s_setprio 3"] if CP else []) + [f"s_waitcnt vmcnt({need(k)}) lgkmcnt(0)", "v_cmp_gt_u32 vcc, s53, v23"]
        o += ([f"s_setprio {int(OPT.get('dp', 0))}"] if CP else []) + ["ds_add_u32 v20, v22", "s_add_u32 s53, s53, 1"]
        if PT: o += [f"s_setprio {1 if (k % R) < PT else 0}"]
        o += m[:h0] + [f"s_nop {2 - h0 - (1 if PT else 0)}"] * (2 - h0 - (1 if PT else 0) >= 0) + ["s_cbranch_vccnz @SPIN", "@CONT:"]
        if PG and k % 8 == 0 and k <= 40:
            o += ["s_lshr_b64 s[28:29], -1, s45", "s_setprio 3", "v_cmp_ne_u32 vcc, s55, v24", f"s_setprio {int(OPT.get('dp', 0))}",
                  "s_sub_u32 s45, s45, 10", "s_max_i32 s45, s45, 0", "s_and_b64 vcc, vcc, s[28:29]", "s_cbranch_scc1 @FSP", "@FCT:"]
        dm = (L.note(dma_w(k - 1 + R), ("w", k - 1 + R)) + L.note(ld_a(k - 1 + R), ("a", k - 1 + R))) if k - 1 + R < NST else []
        if PG and k % 8 == 4 and k <= 44: dm += L.note([poll_load(18, 9, 24)], ("f", k + 4))
        if "dnodma" in EXP: dm = []
        fill = mixmem(reads(k + 1), dm, False)
        FR = int(OPT.get("fr", 5 if M32 else 10))
        rd = reads(k + 1) + ["ds_read_b32 v23, v21"]
        gs = groups_of(dm) if dm else []
        o += interleave(m[h0:FR], rd)
        rest = m[FR:]
        for i, x in enumerate(rest):
            o += [x] + [y for g in gs[(len(gs) * i) // len(rest):(len(gs) * (i + 1)) // len(rest)] for y in g]
        return o
    PT = int(OPT.get("pt", 0))
    bodies = [body(k) for k in range(NST)]
    U = R
    for head in range(0, R + U + 1):
        nl = (NST - R - head) // U
        if all(bodies[k] == bodies[head + (k - head) % U] for k in range(head, head + nl * U)): break
    spins = []
    def emit(k):
        spins.append(k)
        a.extend([x.replace("@SPIN", f"DN_SP{k}").replace("@CONT", f"DN_CT{k}").replace("@FSP", f"DN_FS{k}").replace("@FCT", f"DN_FC{k}") for x in bodies[k]])
    for k in range(head): emit(k)
    a.I(f"s_mov_b32 s51, {nl}")
    a.L("DN_LOOP")
    for k in range(head, head + U): emit(k)
    a.I("s_sub_u32 s51, s51, 1", "s_cmp_lg_u32 s51, 0", "s_cbranch_scc1 DN_LOOP")
    for k in range(head + nl * U, NST): emit(k)
    ts(a, 4)
    a.I("s_setprio 3", "s_lshl_b32 s16, s22, 3", "s_lshl_b32 s17, s20, 1", "s_add_u32 s16, s16, s17", "s_lshl_b32 s16, s16, 5",
        "s_lshl_b32 s17, s23, 2", "s_add_u32 s16, s16, s17",
        "s_lshl_b32 s16, s16, 10", "s_lshl_b32 s17, s21, 22", "s_add_u32 s16, s16, s17", f"s_add_u32 s16, s16, {WS_P}")
    if M32:
        a.I("v_bfe_u32 v2, v1, 4, 1", "v_lshlrev_b32 v5, 15, v2", "v_lshrrev_b32 v2, 5, v1", "v_lshl_add_u32 v5, v2, 8, v5",
            "v_and_b32 v2, 15, v1", "v_lshl_add_u32 v5, v2, 4, v5")
        for nb in range(4):
            g = ACC + nb * 16
            for e in range(2):
                pk = 192 + (nb * 2 + e) * 4
                a.I(f"v_cvt_pk_bf16_f32 v{pk}, v{g+4*e}, v{g+4*e+1}", f"v_cvt_pk_bf16_f32 v{pk+1}, v{g+4*e+2}, v{g+4*e+3}",
                    f"v_cvt_pk_bf16_f32 v{pk+2}, v{g+8+4*e}, v{g+8+4*e+1}", f"v_cvt_pk_bf16_f32 v{pk+3}, v{g+8+4*e+2}, v{g+8+4*e+3}",
                    f"buffer_store_dwordx4 {vr(pk,4)}, v5, s[32:35], s16 offen offset:{nb*1024+e*512}{SC1}")
    else:
        for t in range(2):
            for c in range(4):
                g = ACC + (t * 8 + c * 2) * 4; pk = 192 + (t * 4 + c) * 4
                for d in range(4): a.I(f"v_cvt_pk_bf16_f32 v{pk+d}, v{g+2*d}, v{g+2*d+1}")
                a.I(f"buffer_store_dwordx4 {vr(pk,4)}, v3, s[32:35], s16 offen offset:{c*1024}{SC1}")
            a.I("s_add_u32 s16, s16, 32768")
    wave_flag(a, 60, FL_O)
    a.I("s_waitcnt vmcnt(0)")
    set_flag(a, 60)
    tl_dump(a, 13)
    a.I("s_endpgm")
    for k in spins:
        if k + 1 >= NST: continue
        if any("@FSP" in x for x in bodies[k]):
            a.L(f"DN_FS{k}")
            a.I("s_mov_b32 s17, 0x40000")
            a.L(f"DN_FL{k}")
            a.I(poll_load(18, 9, 24), "s_waitcnt vmcnt(0)", "v_cmp_ne_u32 vcc, s55, v24", "s_and_b64 vcc, vcc, s[28:29]",
                f"s_cbranch_scc0 DN_FC{k}", "s_sleep 2", "s_sub_u32 s17, s17, 1", "s_cmp_lg_u32 s17, 0", f"s_cbranch_scc1 DN_FL{k}", f"s_branch DN_FC{k}")
        a.L(f"DN_SP{k}")
        a.I("ds_read_b32 v23, v21", "s_waitcnt lgkmcnt(0)", "v_add_u32 v23, 1, v23", "v_cmp_gt_u32 vcc, s53, v23",
            f"s_cbranch_vccnz DN_SP{k}", f"s_branch DN_CT{k}")

def wo(a):
    OA = 128; FW = [32, 48]; ACC = 64; XR = 96; P0 = 128; P1 = 144
    NE = 20; D = 16; SW = int(OPT.get("sw", 12))
    a.I(f"s_load_dwordx2 s[8:9], s[0:1], {KA_WO}", f"s_load_dwordx2 s[10:11], s[0:1], {KA_X}", f"s_load_dwordx2 s[12:13], s[0:1], {KA_OUT}",
        "s_bfe_u32 s16, s2, 0x20001", "s_lshl_b32 s16, s16, 2", "s_bfe_u32 s17, s2, 0x20003", "s_add_u32 s22, s16, s17",
        "s_and_b32 s16, s2, 1", "s_lshl_b32 s16, s16, 3", "s_lshr_b32 s17, s2, 5", "s_add_u32 s23, s16, s17",
        "v_lshrrev_b32 v2, 3, v1", "v_lshlrev_b32 v4, 11, v2",
        "v_lshrrev_b32 v2, 4, v1", "v_bfe_u32 v5, v1, 1, 2", "v_xor_b32 v2, v2, v5", "v_lshl_add_u32 v4, v2, 5, v4",
        "v_and_b32 v2, 1, v1", "v_lshl_add_u32 v4, v2, 4, v4", "s_lshl_b32 s16, s23, 7", "v_add_u32 v4, s16, v4")
    for i in range(1, 4): a.I(f"v_add_u32 v{4+i}, {i*(8*2048-1024)}, v4")
    a.I("s_lshl_b32 s16, s22, 2", "s_add_u32 s16, s16, s20", "s_lshl_b32 s44, s16, 16",
        "s_lshl_b32 s17, s23, 7", "s_add_u32 s42, s44, s17",
        "s_lshl_b32 s17, s23, 11", "s_add_u32 s43, s44, s17", f"s_add_u32 s43, s43, {WS_P}",
        f"s_add_u32 s44, s44, {WS_O}", "v_add_u32 v10, 0x8000, v3")
    wave_flag(a, 60, FL_O)
    a.I("s_waitcnt vmcnt(0) lgkmcnt(0)")
    set_flag(a, 60)
    srd(a, 24, 8, 1024 * 1024 * 2); srd(a, 28, 10, 2048 * 2048); srd(a, 36, 12, 2048 * 2048)
    def w_blocks(first, n, lds):
        o = []
        for j in range(0, n, 4):
            o += [f"s_add_u32 m0, s{lds}, {j*1024}", f"s_add_u32 s16, s{first}, {j*8*2048}", "s_and_b32 s16, s16, 0x1fffff"]
            o += [f"buffer_load_dwordx4 v{4+i}, s[24:27], s16 offen offset:{i*1024} lds" for i in range(4)]
        return o
    def o_load(kb):
        r = OA + (kb % D) * 8
        return (["s_add_u32 s45, s44, s46", "s_add_u32 s46, s46, 4096", "s_and_b32 s46, s46, 0x7fff"] if kb & 3 == 0 else []) + \
               [f"buffer_load_dwordx4 {vr(r,4)}, v3, s[32:35], s45 offen offset:{(kb&3)*1024}",
                f"buffer_load_dwordx4 {vr(r+4,4)}, v10, s[32:35], s45 offen offset:{(kb&3)*1024}"]
    sync_block(a, 23, 24, 25, 26)
    a.I("s_lshr_b32 s16, s2, 5", "s_mul_i32 s16, s16, %d" % int(OPT.get("rot", 1)), "s_lshl_b32 s46, s16, 12", "s_lshl_b32 s49, s16, 18")
    a.I(f"s_mul_i32 s48, s20, {NE*8*2048}", "s_add_u32 s48, s48, s49", f"s_mul_i32 s47, s20, {NE*1024}", f"s_add_u32 s47, s47, {LKV}")
    a.extend(w_blocks(48, NE, 47))
    a.I("v_and_b32 v2, 31, v1", "v_lshlrev_b32 v31, 11, v2", f"s_mul_i32 s48, s20, {96*2048}", f"s_add_u32 s48, s48, {640*2048}", "s_add_u32 s48, s48, s49",
        "s_lshl_b32 s17, s23, 7", "v_add_u32 v31, s17, v31")
    for j in range(3): a.I(f"s_add_u32 s16, s48, {j*32*2048}", "s_and_b32 s16, s16, 0x1fffff", f"buffer_load_dword v{28+j}, v31, s[24:27], s16 offen")
    a.I(
        f"s_mul_i32 s47, s20, {12*1024}", f"s_add_u32 s47, s47, {LKV}")
    xsel(a, 21)
    a.I("v_lshrrev_b32 v2, 5, v1", "v_lshlrev_b32 v12, 11, v2", "v_bfe_u32 v9, v1, 2, 3", "v_lshl_add_u32 v12, v9, 7, v12",
        "v_lshrrev_b32 v9, 1, v9", "v_lshl_add_u32 v12, v9, 5, v12", "v_and_b32 v9, 3, v1", "v_lshl_add_u32 v12, v9, 3, v12",
        f"v_add_u32 v12, {LKV}, v12")
    for u in range(1, 4): a.I(f"v_xor_b32 v{12+u}, {32*u}, v12")
    for u in range(4): a.I(f"v_add_u32 v{16+u}, 0x10000, v{12+u}")
    a.I("s_lshr_b32 s16, s22, 3", "s_lshl_b32 s16, s16, 1", "s_lshr_b32 s17, s23, 3", "s_lshl_b32 s17, s17, 2", "s_add_u32 s16, s16, s17",
        "s_and_b32 s17, s22, 7", "s_lshl_b32 s17, s17, 3", "s_add_u32 s16, s16, s17",
        "s_bfe_u32 s17, s23, 0x20001", "s_lshl_b32 s17, s17, 6", "s_add_u32 s16, s16, s17", "s_lshl_b32 s50, s16, 5",
        "s_lshl_b32 s16, s20, 2", "s_add_u32 s50, s50, s16", f"s_add_u32 s50, s50, {WS_FL+FL_O+16}",
        "v_lshlrev_b32 v22, 5, v1", "s_mov_b32 s19, 0xffff0000",
        "s_lshr_b32 s16, s22, 1", "s_lshl_b32 s18, s16, 10", "s_and_b32 s16, s22, 1", "s_lshl_b32 s16, s16, 1", "s_lshr_b32 s17, s20, 1",
        "s_add_u32 s16, s16, s17", "s_lshl_b32 s16, s16, 2", "s_add_u32 s18, s18, s16", f"s_add_u32 s18, s18, {WS_FL+FL_O}")
    a.extend(poll(18, 32, 22))
    ts(a, 5)
    L = Log()
    nxt = int(OPT.get("o0", 4))
    for kb in range(nxt): a.extend(L.note(o_load(kb), kb))
    sync_block(a, 23, 24, 25, 26)
    ts(a, 6)
    a.I(f"s_setprio {int(OPT.get('wp', 0))}")
    def reads(kb):
        vb, so = (12, kb * 4096) if kb < 16 else (16, (kb - 16) * 4096) if kb < NE else (12, (kb - NE) * 4096)
        return [f"ds_read_b64_tr_b16 {vr(FW[kb&1]+u*4+2*rd,2)}, v{vb+u} offset:{so+rd*1024}" for u in range(4) for rd in range(2)]
    a.extend(reads(0))
    for kb in range(32):
        wc = L.cnt(kb)
        if kb == NE - 1: wc = min(wc, len(L.l) - 1 - max(i for i, t in enumerate(L.l) if t == 99))
        a.I(f"s_waitcnt vmcnt({wc}) lgkmcnt(0)")
        if "wost" in EXP and kb in (0, 8, 20, 27): ts(a, {0: 9, 8: 10, 20: 11, 27: 12}[kb])
        if kb == SW:
            sync_block(a, 23, 24, 25, 26)
            a.extend(L.note(w_blocks(48, 12, 47), 99))
        if kb == NE - 1: sync_block(a, 23, 24, 25, 26)
        if kb == 20:
            a.extend(L.note(["s_add_u32 s16, s42, 0x8000"] + [f"buffer_load_dwordx4 {vr(XR+8*t+4*c,4)}, v21, s[28:31], s{42 if t == 0 else 16} offen offset:{c*64}"
                                                            for t in range(2) for c in range(2)], None))
        if kb == 24: a.extend(L.note(lanes(2) + [poll_load(50, 22, 27), "s_mov_b64 exec, -1"], None))
        m = [mfma16(ACC + (t * 4 + u) * 4, FW[kb & 1] + u * 4, OA + (kb % D) * 8 + 4 * t, "0" if kb == 0 else None) for u in range(4) for t in range(2)]
        a.extend(interleave(m, reads(kb + 1) if kb < 31 else [], [2, 2, 2, 2, 0, 0, 0, 0]))
        for _ in range(int(OPT.get("or", 2))):
            if nxt < 32 and nxt <= kb + D: a.extend(L.note(o_load(nxt), nxt)); nxt += 1
    a.I("s_setprio 3")
    a.extend(poll(50, 2, 22, 27, preloaded=0))
    a.I(f"s_add_u32 s17, s43, {4<<20}")
    for t in range(2):
        for c in range(2):
            a.I(f"buffer_load_dwordx4 {vr(P0+8*t+4*c,4)}, v{3 if t == 0 else 10}, s[32:35], s43 offen offset:{c*1024}",
                f"buffer_load_dwordx4 {vr(P1+8*t+4*c,4)}, v{3 if t == 0 else 10}, s[32:35], s17 offen offset:{c*1024}")
    for i in range(4):
        a.I(f"v_permlane16_swap_b32 v{XR+4*i}, v{XR+4*i+2}", f"v_permlane16_swap_b32 v{XR+4*i+1}, v{XR+4*i+3}")
    E = [(i, d, ACC + i * 8 + 2 * d, 160 + 4 * (i * 4 + d)) for i in range(4) for d in range(4)]
    for i, d, g, r in E: a.I(f"v_lshlrev_b32 v{r}, 16, v{XR+4*i+d}", f"v_and_b32 v{r+1}, s19, v{XR+4*i+d}")
    for i, d, g, r in E: a.I(f"v_add_f32 v{g}, v{g}, v{r}", f"v_add_f32 v{g+1}, v{g+1}, v{r+1}")
    for i in range(4):
        a.I(f"s_waitcnt vmcnt({6 - 2 * i + i})")
        Ei = E[4 * i:4 * i + 4]
        for i_, d, g, r in Ei:
            a.I(f"v_lshlrev_b32 v{r}, 16, v{P0+4*i+d}", f"v_and_b32 v{r+1}, s19, v{P0+4*i+d}",
                f"v_lshlrev_b32 v{r+2}, 16, v{P1+4*i+d}", f"v_and_b32 v{r+3}, s19, v{P1+4*i+d}")
        for i_, d, g, r in Ei: a.I(f"v_add_f32 v{r}, v{r}, v{r+2}", f"v_add_f32 v{r+1}, v{r+1}, v{r+3}")
        for i_, d, g, r in Ei: a.I(f"v_add_f32 v{g}, v{g}, v{r}", f"v_add_f32 v{g+1}, v{g+1}, v{r+1}")
        pk = 32 + 4 * i
        for i_, d, g, r in Ei: a.I(f"v_cvt_pk_bf16_f32 v{pk+d}, v{g}, v{g+1}")
        a.I(f"v_permlane16_swap_b32 v{pk}, v{pk+2}", f"v_permlane16_swap_b32 v{pk+1}, v{pk+3}",
            f"buffer_store_dwordx4 {vr(pk,4)}, v21, s[36:39], s42 offen offset:{(i&1)*64}")
        if i == 1: a.I("s_add_u32 s42, s42, 0x8000")

def fused():
    a = Asm()
    ts(a, 0)
    a.I("s_cmp_ge_u32 s2, 256", "s_cbranch_scc1 F_END",
        f"s_load_dwordx8 s[4:11], s[0:1], {KA_X}", f"s_load_dwordx4 s[40:43], s[0:1], {KA_WG}",
        f"s_load_dwordx4 s[12:15], s[0:1], {KA_DBG}", "s_memrealtime s[48:49]",
        "v_lshrrev_b32 v2, 6, v0", "v_and_b32 v1, 63, v0", "v_readfirstlane_b32 s20, v2", "v_lshlrev_b32 v3, 4, v1",
        "s_lshr_b32 s21, s2, 4", "s_lshl_b32 s21, s21, 3", "s_and_b32 s16, s2, 7", "s_add_u32 s45, s21, s16", "s_lshl_b32 s23, s45, 15",
        "s_mov_b32 s54, s20", "s_lshl_b32 s16, s20, 12", "s_add_u32 s19, s23, s16", "s_waitcnt lgkmcnt(0)")
    srd(a, 32, 14, WS_SIZE); srd(a, 56, 12, 256)
    a.I("s_or_b32 s16, s2, s20", "s_cmp_lg_u32 s16, 0", "s_cbranch_scc1 F_NT",
        "s_or_b32 s16, s48, 1", "v_mov_b32 v2, s16", "v_mov_b32 v8, 0", "s_mov_b64 exec, 1",
        "buffer_store_dword v2, v8, s[56:59], 0 offen sc1", "s_mov_b64 exec, -1")
    a.L("F_NT")
    phase0(a)
    ts(a, 8)
    if "p0st" in EXP:
        tl_dump(a, 13); a.I("s_endpgm")
    g1(a)
    a.I("s_and_b32 s20, s54, 3", "s_cmp_ge_u32 s54, 4", "s_cbranch_scc1 F_B")
    attention(a)
    wo(a)
    tl_dump(a, 13)
    a.I("s_endpgm")
    a.L("F_B")
    down(a)
    a.L("F_END")
    a.I("s_endpgm")
    return a, dict(grid=256, block=512, lds=163840, vgpr=256)

if __name__ == "__main__":
    path = sys.argv[1] if len(sys.argv) > 1 else "cdna_kernels/" + NAME + ".s"
    opts = dict(o.split("=") for o in sys.argv[2:])
    OPT = opts; EXP = opts.get("exp", ""); TL = bool(int(opts.get("tl", 0)))
    G.VERB = bool(int(opts.get("verb", 0)))
    G.build([(NAME if int(opts.get("single", 0)) else "fused8", fused())], path)
```

```python
import sys
from asmlib import *
import gen as G
from gen import (NAME, KA_X, KA_WQ, KA_WK, KA_WV, KA_WO, KA_WG, KA_WU, KA_WD, KA_OUT, KA_DBG, KA_WS,
                 WS_XN, WS_KV, WS_O, WS_H, WS_P, WS_SIZE, f32, vr, srd, mfma32, mfma16, QSCALE, mix2, front_pattern)
WS_FL = 0x0480000
FL_KV, FL_X, FL_H, FL_O, FL_P = 0, 4096, 12288, 20480, 24576
WS_TL = 0x3F10000
LKV = 65536
LQ = 131072
LC = 147456
HP = 224
TL = False; EXP = ""; OPT = {}
SC1 = " sc1"

def ts(a, i):
    if TL: a.I(f"s_mem{'' if 'cyc' in EXP else 'real'}time s[{62+2*i}:{63+2*i}]")
def tl_dump(a, n):
    if not TL: return
    a.I("s_waitcnt vmcnt(0) lgkmcnt(0)")
    ts(a, 7)
    if "hd" in EXP.split("_"):
        a.I("s_waitcnt lgkmcnt(0)", "s_and_b32 s90, s54, 3", "s_cmp_lg_u32 s90, 0", "s_cbranch_scc1 F_END", "s_sleep 127", "s_sleep 127", "s_sleep 127",
            "v_mov_b32 v1, 0", "s_mov_b64 exec, 1", "s_not_b32 s90, s62", "v_mov_b32 v2, s90",
            "buffer_atomic_umax v2, v1, s[56:59], 0 offen offset:4", "s_lshr_b32 s90, s54, 2", "s_mul_i32 s90, s90, 0")
        lab = f"HD{len(a.items)}"
        for j, i in enumerate((0, 8, 11, 12, 1, 2, 3, 4, 5, 7)):
            if j == 6: a.I("s_cmp_ge_u32 s54, 4", f"s_cbranch_scc1 {lab}")
            if j in (2, 3): a.I("s_cmp_ge_u32 s54, 4", f"s_cselect_b32 s{62+2*i}, 0, s{62+2*i}")
            a.I(f"v_mov_b32 v2, s{62+2*i}", f"buffer_atomic_umax v2, v1, s[56:59], 0 offen offset:{8+4*j}")
        a.I("s_endpgm")
        a.L(lab)
        for j, i in enumerate((3, 4, 7)):
            a.I(f"v_mov_b32 v2, s{62+2*i}", f"buffer_atomic_umax v2, v1, s[56:59], 0 offen offset:{48+4*j}")
        return
    a.I("s_waitcnt lgkmcnt(0)", "s_lshl_b32 s90, s2, 3", "s_add_u32 s90, s90, s54", "s_lshl_b32 s90, s90, 6",
        f"s_add_u32 s90, s90, {WS_TL}", "v_mov_b32 v1, 0", "s_mov_b64 exec, 1")
    for i in range(n):
        a.I(f"v_mov_b32 v2, s{62+2*i}", f"buffer_store_dword v2, v1, s[32:35], s90 offen offset:{4*i}")

_n = [0]
def lanes(n): return [f"s_mov_b32 exec_lo, {((1 << n) - 1) & 0xffffffff:#x}", f"s_mov_b32 exec_hi, {((1 << n) - 1) >> 32:#x}"] if n < 64 else []
def poll_load(soff, voff, dst, wide=False):
    return f"buffer_load_dword{'x4' if wide else ''} {vr(dst, 4 if wide else 1)}, v{voff}, s[32:35], s{soff} offen sc1"
def poll_test(dst, wide):
    if wide:
        return [f"v_xor_b32 v{dst+i}, s55, v{dst+i}" for i in range(4)] + \
               [f"v_or3_b32 v{dst}, v{dst}, v{dst+1}, v{dst+2}", f"v_or_b32 v{dst}, v{dst}, v{dst+3}", f"v_cmp_ne_u32 vcc, 0, v{dst}"]
    return [f"v_cmp_ne_u32 vcc, s55, v{dst}"]
def poll(soff, n, voff, dst=2, wide=False, preloaded=None):
    _n[0] += 1; lab = f"POLL{_n[0]}"
    o = lanes(n)
    if preloaded is not None:
        o += [f"s_waitcnt vmcnt({preloaded})"] + poll_test(dst, wide) + [f"s_cbranch_vccz {lab}_D"]
    o += ["s_mov_b32 s17, 0x40000", lab + ":", poll_load(soff, voff, dst, wide), "s_waitcnt vmcnt(0)"] + poll_test(dst, wide)
    o += [f"s_cbranch_vccz {lab}_D", "s_sleep 2", "s_sub_u32 s17, s17, 1", "s_cmp_lg_u32 s17, 0", f"s_cbranch_scc1 {lab}", lab + "_D:"]
    if n < 64: o += ["s_mov_b64 exec, -1"]
    return o
def set_flag(a, soff):
    a.I("v_mov_b32 v2, s55", "v_mov_b32 v8, 0", "s_mov_b64 exec, 1",
        f"buffer_store_dword v2, v8, s[32:35], s{soff} offen sc1", "s_mov_b64 exec, -1")
def wave_flag(a, reg, base):
    a.I(f"s_lshl_b32 s{reg}, s2, 3", f"s_add_u32 s{reg}, s{reg}, s54", f"s_lshl_b32 s{reg}, s{reg}, 2", f"s_add_u32 s{reg}, s{reg}, {WS_FL+base}")
def sync_setup(a, base, own, chk, one):
    a.I("s_lshl_b32 s16, s20, 8", f"s_add_u32 s16, s16, {base}", f"v_lshl_add_u32 v{own}, v1, 2, s16",
        "v_and_b32 v2, 3, v1", f"v_lshlrev_b32 v{chk}, 8, v2", f"v_lshl_add_u32 v{chk}, v1, 2, v{chk}", f"v_add_u32 v{chk}, {base}, v{chk}",
        f"v_mov_b32 v{one}, 1", "s_mov_b32 s53, 0")
def sync_block(a, own, chk, one, tmp):
    _n[0] += 1; lab = f"SY{_n[0]}"
    a.I(f"ds_add_u32 v{own}, v{one}", "s_add_u32 s53, s53, 1")
    a.L(lab)
    a.I(f"ds_read_b32 v{tmp}, v{chk}", "s_waitcnt lgkmcnt(0)", f"v_cmp_gt_u32 vcc, s53, v{tmp}", f"s_cbranch_vccnz {lab}")
def xsel(a, dst):
    a.I("v_and_b32 v2, 15, v1", f"v_lshlrev_b32 v{dst}, 11, v2", "v_bfe_u32 v2, v1, 4, 1", f"v_lshl_add_u32 v{dst}, v2, 5, v{dst}",
        "v_lshrrev_b32 v2, 5, v1", f"v_lshl_add_u32 v{dst}, v2, 4, v{dst}")
def is_vm(x): return x.startswith("buffer") or x.startswith("global")
def groups_of(dm):
    gs = []; cur = []
    for x in dm:
        cur.append(x)
        if is_vm(x): gs.append(cur); cur = []
    gs[-1] += cur
    return gs
def mixmem(rd, dm, dma_first=True):
    if not rd or not dm: return rd + dm
    gs = groups_of(dm)
    pre = [x for x in rd if x.startswith("v_")]; ds = [x for x in rd if x.startswith("ds_")]; post = [x for x in rd if x.startswith("s_")]
    o = list(pre); n = len(gs); per = len(ds) // n
    for g in range(n):
        part = ds[g * per:(g + 1) * per if g < n - 1 else len(ds)]
        o += (gs[g] + part) if dma_first else (part + gs[g])
    return o + post
class Log:
    def __init__(self): self.l = []
    def note(self, instrs, st): self.l += [st] * sum(map(is_vm, instrs)); return instrs
    def cnt(self, st):
        last = max([i for i, s_ in enumerate(self.l) if s_ is not None and s_ <= st], default=-1)
        return len(self.l) - 1 - last

WA0, WA1, WST = 116, 118, 120
def w_dma(slotreg):
    return [f"s_add_u32 m0, s{slotreg}, s46", "s_nop 0",
            f"global_load_lds_dwordx4 {vr(WA0,2)}, off", f"global_load_lds_dwordx4 {vr(WA1,2)}, off offset:1024",
            f"v_lshl_add_u64 {vr(WA0,2)}, {vr(WST,2)}, 0, {vr(WA0,2)}", f"v_lshl_add_u64 {vr(WA1,2)}, {vr(WST,2)}, 0, {vr(WA1,2)}"]

STREAM = ["buffer_load_dword v122, v114, s[88:91], s100 offen", "buffer_load_dword v123, v114, s[92:95], s100 offen",
          "buffer_load_dword v124, v115, s[96:99], s101 offen"]
def phase0(a):
    LW, LX, LR = 49152, 114688, 147456
    srd(a, 24, 4, 2048 * 2048)
    for i in range(4): a.I(f"buffer_load_dwordx4 {vr(8+4*i,4)}, v3, s[24:27], s19 offen offset:{i*1024}")
    a.I("v_mov_b32 v7, 0", "buffer_load_dword v6, v7, s[56:59], 0 offen sc1")
    TP = 0; NH = int(OPT.get("nh", 5))
    if NH:
        a.I("s_cmp_lt_u32 s20, 4", "s_cbranch_scc1 P0_NS", "s_cmp_eq_u32 s20, 7", "s_cbranch_scc1 P0_NS",
            "s_cmp_eq_u32 s20, 4", "s_cselect_b64 s[12:13], s[40:41], s[42:43]", f"s_mov_b32 s16, {NH*896}",
            "s_cmp_eq_u32 s20, 6", "s_cselect_b64 s[12:13], s[6:7], s[12:13]", f"s_cselect_b32 s16, {8192 if 'qf' in EXP else NH*256}, s16")
        srd(a, 88, 12, 1024 * 1024 * 2)
        a.I("v_lshlrev_b32 v114, 7, v1", "s_sub_u32 s17, s16, 128", "v_min_u32 v114, s17, v114", "s_mul_i32 s16, s16, s2",
            "buffer_load_dword v122, v114, s[88:91], s16 offen")
        a.L("P0_NS")
    a.I("s_bfe_u32 s22, s2, 0x10003", "s_cmp_eq_u32 s22, 0", "s_cselect_b64 s[12:13], s[8:9], s[10:11]")
    srd(a, 28, 12, 65536)
    a.I("s_lshl_b32 s17, s20, 13")
    a.I("s_and_b32 s16, s2, 7", "s_lshl_b32 s16, s16, 2", "s_bfe_u32 s21, s2, 0x20003", "s_add_u32 s21, s21, s16",
        "s_and_b32 s23, s20, 3", "s_cmp_lt_u32 s20, 4", "s_cselect_b64 s[12:13], s[42:43], s[40:41]", "s_cselect_b32 s18, 32, 0",
        "s_cselect_b32 s46, 8192, 0", "s_lshl_b32 s16, s23, 11", "s_add_u32 s46, s46, s16", "s_add_u32 s46, s46, 16384",
        "v_lshrrev_b32 v2, 4, v1", "s_lshl_b32 s16, s23, 3", "v_add_u32 v4, s16, v2",
        "s_and_b32 s16, s23, 1", "s_lshl_b32 s16, s16, 2", "v_add_u32 v2, s16, v2", "v_bfe_u32 v5, v1, 1, 3", "v_xor_b32 v2, v2, v5",
        "v_cmp_eq_u32 vcc, 7, v2", "v_mov_b32 v5, 7168", "v_mov_b32 v112, 2048", f"v_cndmask_b32 v{WST}, v5, v112, vcc",
        f"v_mul_lo_u32 v4, v4, v{WST}",
        "s_mul_i32 s16, s21, 224", "v_lshl_add_u32 v5, v2, 5, s16", "s_lshl_b32 s16, s21, 6", "s_add_u32 s16, s16, s18",
        "v_mov_b32 v112, s16", "v_cndmask_b32 v5, v5, v112, vcc", "v_add_u32 v4, v4, v5",
        "v_and_b32 v2, 1, v1", "v_lshl_add_u32 v4, v2, 4, v4",
        "v_mov_b32 v5, s12", "v_mov_b32 v112, s6", f"v_cndmask_b32 v{WA0}, v5, v112, vcc",
        "v_mov_b32 v5, s13", "v_mov_b32 v112, s7", f"v_cndmask_b32 v{WA0+1}, v5, v112, vcc",
        "v_mov_b32 v5, 0", f"v_lshl_add_u64 {vr(WA0,2)}, v[4:5], 0, {vr(WA0,2)}",
        f"v_lshlrev_b32 v4, 2, v{WST}", "v_add_u32 v4, -1024, v4" if False else "v_subrev_u32 v4, 1024, v4",
        f"v_lshl_add_u64 {vr(WA1,2)}, v[4:5], 0, {vr(WA0,2)}",
        f"v_lshlrev_b32 v{WST}, 5, v{WST}", f"v_mov_b32 v{WST+1}, 0", "s_mov_b32 s47, 0")
    srd(a, 24, 12, 1024 * 3584 * 2)
    a.I("v_lshrrev_b32 v2, 1, v1", "s_lshl_b32 s16, s23, 5", "s_add_u32 s16, s16, 32", "v_add_u32 v2, s16, v2",
        "v_mul_u32_u24 v112, 7168, v2", "v_and_b32 v2, 1, v1", "v_mul_u32_u24 v2, 208, v2", "v_add_u32 v112, v112, v2",
        "s_mul_i32 s44, s21, 224")
    a.I("s_mov_b32 s21, s45", "s_lshl_b32 s23, s21, 15", "s_mov_b32 s36, 0xffff0000")
    if NH: a.I("s_sub_u32 s16, s20, 4", "s_cmp_lt_u32 s16, 3", "s_cbranch_scc0 P0_X1", "s_waitcnt vmcnt(2)", "s_branch P0_X2", "P0_X1:", "s_waitcnt vmcnt(1)", "P0_X2:")
    else: a.I("s_waitcnt vmcnt(1)")
    ts(a, 9)
    late = [f"s_add_u32 m0, s17, {LW}", "s_add_u32 s18, s17, 4096"]
    late += [f"buffer_load_dwordx4 v3, s[28:31], s17 offen offset:{i*1024} lds" for i in range(4)]
    late += [f"s_add_u32 m0, s18, {LW}", "s_nop 0"]
    late += [f"buffer_load_dwordx4 v3, s[28:31], s18 offen offset:{i*1024} lds" for i in range(4)]
    late += w_dma(47) + (["buffer_load_dword v113, v112, s[24:27], s44 offen"] if not NH else [])
    if TP: late += ["s_cmp_lt_u32 s20, 4", "s_cbranch_scc1 P0_NS"] + STREAM + ["P0_NS:"]
    mark = len(a.items)
    for r in range(2):
        for d in range(8):
            src = 8 + 8 * r + d
            a.I(f"v_lshlrev_b32 v{32+16*r+2*d}, 16, v{src}", f"v_and_b32 v{33+16*r+2*d}, s36, v{src}")
    def tree2(bases, sq):
        T_ = [(24 + i, bases[i], 64 + 8 * i) for i in range(2)]
        for dst, base, t in T_:
            for i in range(8):
                a.I(f"v_mul_f32 v{t+i}, v{base+2*i}, v{base+2*i}" if sq else f"v_add_f32 v{t+i}, v{base+2*i}, v{base+2*i+1}")
        if sq:
            for dst, base, t in T_:
                for i in range(8): a.I(f"v_fmac_f32 v{t+i}, v{base+2*i+1}, v{base+2*i+1}")
        for s_ in (4, 2):
            for dst, base, t in T_:
                for i in range(s_): a.I(f"v_add_f32 v{t+i}, v{t+i}, v{t+i+s_}")
        for dst, base, t in T_: a.I(f"v_add_f32 v{dst}, v{t}, v{t+1}")
    def wavered(rs, ss):
        for mod in ("row_shr:1 row_mask:0xf bank_mask:0xf bound_ctrl:0", "row_shr:2 row_mask:0xf bank_mask:0xf bound_ctrl:0",
                    "row_shr:4 row_mask:0xf bank_mask:0xf bound_ctrl:0", "row_shr:8 row_mask:0xf bank_mask:0xf bound_ctrl:0",
                    "row_bcast:15 row_mask:0xa bank_mask:0xf", "row_bcast:31 row_mask:0xc bank_mask:0xf"):
            for r in rs: a.I(f"v_add_f32_dpp v{r}, v{r}, v{r} {mod}")
        for r, s_ in zip(rs, ss): a.I(f"v_readlane_b32 s{s_}, v{r}, 63")
    if "p0st" in EXP: ts(a, 1)
    tree2((32, 48), False)
    wavered((24, 25), (40, 41))
    if "p0st" in EXP: ts(a, 2)
    a.I(f"s_mov_b32 s37, {f32(1.0/1024)}")
    a.I("v_mov_b32 v26, s40", "v_mov_b32 v27, s41", "v_mul_f32 v26, s37, v26", "v_mul_f32 v27, s37, v27")
    for r in range(2):
        for i in range(16): a.I(f"v_sub_f32 v{80+16*r+i}, v{32+16*r+i}, v{26+r}")
    tree2((80, 96), True)
    wavered((24, 25), (42, 43))
    a.I("v_mov_b32 v28, s42", "v_mov_b32 v29, s43", "v_mul_f32 v28, s37, v28", "v_mul_f32 v29, s37, v29")
    def rnd(*rs):
        for r in rs: a.I(f"v_cvt_pk_bf16_f32 v{r}, v{r}, v{r}")
        for r in rs: a.I(f"v_lshlrev_b32 v{r}, 16, v{r}")
    a.I(f"s_mov_b32 s38, {f32(1e-5)}")
    rnd(28, 29, 26, 27)
    a.I("v_add_f32 v28, s38, v28", "v_add_f32 v29, s38, v29"); rnd(28, 29)
    a.I("v_sqrt_f32 v28, v28", "v_sqrt_f32 v29, v29"); rnd(28, 29)
    a.I("v_rcp_f32 v28, v28", "v_rcp_f32 v29, v29")
    if "p0st" in EXP: ts(a, 3)
    P_ = [(r, d, 32 + 16 * r + 2 * d) for r in range(2) for d in range(8)]
    for r, d, b in P_: a.I(f"v_sub_f32 v{b}, v{b}, v{26+r}", f"v_sub_f32 v{b+1}, v{b+1}, v{26+r}")
    for r, d, b in P_: a.I(f"v_cvt_pk_bf16_f32 v{80+8*r+d}, v{b}, v{b+1}")
    for r, d, b in P_: a.I(f"v_lshlrev_b32 v{b}, 16, v{80+8*r+d}", f"v_and_b32 v{b+1}, s36, v{80+8*r+d}")
    for r, d, b in P_: a.I(f"v_mul_f32 v{b}, v{b}, v{28+r}", f"v_mul_f32 v{b+1}, v{b+1}, v{28+r}")
    for r, d, b in P_: a.I(f"v_cvt_pk_bf16_f32 v{8+8*r+d}, v{b}, v{b+1}")
    body = a.items[mark:]; del a.items[mark:]
    gs = groups_of(late); step = int(OPT.get("lst", 24))
    if TP: gs[-3:] = [gs[-3] + gs[-2] + gs[-1]]
    for i, it in enumerate(body):
        if i % step == 0 and gs: a.extend(gs.pop(0))
        a.items.append(it)
    assert not gs
    if "p0st" in EXP: ts(a, 4)
    a.I("s_lshl_b32 s16, s20, 1", "v_and_b32 v2, 15, v1", "v_xor_b32 v2, s16, v2", "v_lshlrev_b32 v4, 8, v1", "v_lshl_add_u32 v4, v2, 4, v4",
        f"v_add_u32 v4, {LX}, v4", "v_xor_b32 v25, 16, v4")
    for r in range(2):
        for p in range(2): a.I(f"ds_write_b128 v{25 if r else 4}, {vr(8+8*r+4*p,4)} offset:{p*16384}")
    a.I("v_lshrrev_b32 v5, 4, v1", "v_lshlrev_b32 v2, 4, v5", "v_xor_b32 v26, v2, v3",
        "s_lshl_b32 s16, s20, 12", f"s_add_u32 s16, s16, {LX}", "v_add_u32 v30, s16, v26",
        "v_xor_b32 v27, 64, v30", "v_xor_b32 v28, 0x80, v30", "v_xor_b32 v29, 0xc0, v30",
        "v_lshlrev_b32 v31, 9, v5", "v_bfe_u32 v2, v1, 2, 2", "v_lshl_add_u32 v31, v2, 6, v31",
        "v_and_b32 v2, 3, v1", "v_lshl_add_u32 v31, v2, 3, v31", f"s_add_u32 s16, s17, {LW}", "v_add_u32 v31, s16, v31",
        "s_lshl_b32 s16, s22, 14", "s_lshl_b32 s18, s20, 12", "s_add_u32 s16, s16, s18",
        "s_add_u32 s39, s23, s16", f"s_add_u32 s16, s16, {LX}", "v_add_u32 v24, s16, v26",
        "v_xor_b32 v25, 64, v24", "v_xor_b32 v4, 0x80, v24", "v_xor_b32 v26, 0xc0, v24",
        "s_waitcnt lgkmcnt(0)", "s_barrier")
    ts(a, 10)
    a.I("s_cmp_ge_u32 s20, 4", "s_cbranch_scc1 P0_NC")
    for i, r in enumerate((24, 25, 4, 26)): a.I(f"ds_read_b128 {vr(8+4*i,4)}, v{r} offset:{i*1024}")
    for i in range(4): a.I(f"s_waitcnt lgkmcnt({3-i})", f"buffer_store_dwordx4 {vr(8+4*i,4)}, v3, s[32:35], s39 offen offset:{i*1024} sc1")
    a.I(f"s_waitcnt vmcnt({6 if NH else 7})", "s_branch P0_C")
    a.L("P0_NC")
    a.I(f"s_waitcnt vmcnt({2 if NH else 3})")
    a.L("P0_C")
    a.I("v_readfirstlane_b32 s55, v6")
    for j in range(4):
        a.I(f"ds_read_b128 {vr(32+4*j,4)}, v{(30, 27, 28, 29)[j]} offset:{j*1024}")
        for d in range(2):
            for rd in range(2):
                a.I(f"ds_read_b64_tr_b16 {vr(64+8*j+4*d+2*rd,2)}, v31 offset:{j*2048+rd*256+d*32}")
    a.I("s_waitcnt lgkmcnt(0)", "s_cmp_eq_u32 s22, 0", "s_cbranch_scc0 P0_V")
    for j in range(4):
        for d in range(2): a.I(mfma16(96 + 4 * d, 64 + 8 * j + 4 * d, 32 + 4 * j, "0" if j == 0 else None))
    a.I("s_branch P0_R")
    a.L("P0_V")
    for j in range(4):
        for d in range(2): a.I(mfma16(96 + 4 * d, 32 + 4 * j, 64 + 8 * j + 4 * d, "0" if j == 0 else None))
    a.L("P0_R")
    a.I("s_lshl_b32 s16, s20, 11", f"s_add_u32 s16, s16, {LR}", "v_add_u32 v4, s16, v3")
    wave_flag(a, 18, FL_X)
    for d in range(2): a.I(f"ds_write_b128 v4, {vr(96+4*d,4)} offset:{d*1024}")
    a.I("s_mov_b32 s17, 0x40000")
    a.L("P0_TAG")
    a.I("s_cmp_eq_u32 s55, 0", "s_cbranch_scc1 P0_TAGLD",
        "s_sub_u32 s16, s48, s55", "s_add_u32 s16, s16, 3000", "s_cmp_lt_u32 s16, 6000", "s_cbranch_scc1 P0_TAGOK",
        "s_cmp_lt_u32 s17, 0x3f800", "s_cbranch_scc1 P0_TAGOK")
    a.L("P0_TAGLD")
    a.I("buffer_load_dword v6, v7, s[56:59], 0 offen sc1", "s_waitcnt vmcnt(0)", "v_readfirstlane_b32 s55, v6",
        "s_sub_u32 s17, s17, 1", "s_cmp_lg_u32 s17, 0", "s_cbranch_scc1 P0_TAG")
    a.L("P0_TAGOK")
    a.I("s_cmp_ge_u32 s20, 4", "s_cbranch_scc1 P0_NF", "s_waitcnt vmcnt(0)")
    set_flag(a, 18)
    a.L("P0_NF")
    a.I("s_waitcnt lgkmcnt(0)", "s_barrier")
    a.I("s_cmp_lg_u32 s20, 0", "s_cbranch_scc1 P0_END")
    a.I(f"v_add_u32 v4, {LR}, v3")
    for w in range(8):
        a.I(f"ds_read_b128 {vr(32+8*w,4)}, v4 offset:{w*2048}", f"ds_read_b128 {vr(36+8*w,4)}, v4 offset:{w*2048+1024}")
    a.I("s_waitcnt lgkmcnt(0)")
    for s_ in (4, 2, 1):
        for w in range(s_):
            for i in range(8): a.I(f"v_add_f32 v{32+8*w+i}, v{32+8*w+i}, v{32+8*(w+s_)+i}")
    for d in range(4): a.I(f"v_cvt_pk_bf16_f32 v{8+d}, v{32+2*d}, v{33+2*d}")
    a.I("s_lshr_b32 s16, s21, 1", "s_lshl_b32 s19, s16, 12", f"s_add_u32 s19, s19, {WS_KV}",
        "s_and_b32 s16, s21, 1", "s_lshl_b32 s16, s16, 10", "s_add_u32 s19, s19, s16",
        "s_cmp_eq_u32 s22, 0", "s_cbranch_scc0 P0_SV",
        "buffer_store_dwordx4 v[8:11], v3, s[32:35], s19 offen sc1", "s_branch P0_KF")
    a.L("P0_SV")
    a.I("v_and_b32 v2, 1, v5", "v_lshlrev_b32 v4, 9, v2", "v_and_b32 v2, 15, v1", "v_lshl_add_u32 v4, v2, 4, v4",
        "v_lshrrev_b32 v2, 1, v5", "v_lshl_add_u32 v4, v2, 3, v4",
        "buffer_store_dwordx2 v[8:9], v4, s[32:35], s19 offen offset:2048 sc1",
        "buffer_store_dwordx2 v[10:11], v4, s[32:35], s19 offen offset:2304 sc1")
    a.L("P0_KF")
    if "kvearly" in EXP:
        a.I("s_lshl_b32 s18, s2, 2", f"s_add_u32 s18, s18, {WS_FL+FL_KV}", "s_waitcnt vmcnt(0)")
        set_flag(a, 18)
    a.L("P0_END")

def kv_groups():
    gs = []
    for g in range(2):
        for i in range(4):
            o = [f"s_add_u32 m0, s25, {g*4096}", f"s_add_u32 s26, s24, {g*4096}"] if i == 0 else []
            gs.append(o + [f"buffer_load_dwordx4 v3, s[36:39], s26 offen offset:{i*1024} lds"])
    gs[-1] += ["s_add_u32 s24, s24, 32768", "s_xor_b32 s25, s25, 32768"]
    return gs

def emit_loop(a, label, bodies):
    best = (0, 1)
    i = 0
    while i < len(bodies):
        j = i
        while j < len(bodies) and bodies[j] == bodies[i]: j += 1
        if j - i > best[1] - best[0]: best = (i, j)
        i = j
    for k in range(best[0]): a.extend(bodies[k])
    a.I(f"s_mov_b32 s51, {best[1]-best[0]}")
    a.L(label)
    a.extend(bodies[best[0]])
    a.I("s_sub_u32 s51, s51, 1", "s_cmp_lg_u32 s51, 0", f"s_cbranch_scc1 {label}")
    for k in range(best[1], len(bodies)): a.extend(bodies[k])

def g1(a):
    NST = 32; R = 5; SLOT = 32768
    ACC = 128; FA = 64; FW = 96
    def acc(h, u, t): return ACC + (t * 4 + h * 2 + u) * 4
    a.I("s_and_b32 s16, s2, 7", "s_lshl_b32 s16, s16, 2", "s_bfe_u32 s21, s2, 0x20003", "s_add_u32 s21, s21, s16",
        "s_lshr_b32 s22, s2, 5", "s_and_b32 s23, s20, 3", "v_add_u32 v10, 31744, v3",
        "s_lshl_b32 s16, s22, 4", "s_lshl_b32 s17, s20, 1", "s_add_u32 s16, s16, s17", "s_lshl_b32 s44, s16, 15",
        "s_lshl_b32 s45, s20, 11", "s_mov_b32 s47, 0", "s_mov_b32 s50, 0", f"s_mov_b32 s52, {SLOT}",
        "s_lshl_b32 s18, s22, 5", "s_lshr_b32 s16, s20, 2", "s_lshl_b32 s16, s16, 4", "s_add_u32 s18, s18, s16",
        "s_lshl_b32 s16, s23, 1", "s_add_u32 s18, s18, s16", "s_lshl_b32 s18, s18, 5", f"s_add_u32 s18, s18, {WS_FL+FL_X}",
        "v_and_b32 v2, 3, v1", "v_lshlrev_b32 v8, 2, v2", "v_bfe_u32 v2, v1, 2, 1", "v_lshl_add_u32 v8, v2, 5, v8",
        "v_lshrrev_b32 v2, 3, v1", "v_lshl_add_u32 v8, v2, 8, v8")
    PD = int(OPT.get("pd", 5))
    RH = int(OPT.get("rh", 1)); PX = int(OPT.get("px", 0))
    if PD:
        a.I(f"s_load_dwordx2 s[4:5], s[0:1], {KA_WQ}", f"s_load_dwordx2 s[6:7], s[0:1], {KA_WD}", f"s_load_dwordx2 s[8:9], s[0:1], {KA_WO}",
            f"v_min_u32 v2, {7*RH-1}, v1", "v_lshlrev_b32 v14, 7, v2", f"s_mul_i32 s16, s2, {896*RH}", "v_add_u32 v14, s16, v14",
            f"s_mov_b32 s31, {32*7168*RH}", f"s_mov_b32 s30, {PD*32*7168}", "s_cmp_eq_u32 s23, 0", "s_cbranch_scc1 G1_T0",
            *([f"s_mov_b32 s30, {PX*32*7168}", "v_bfe_u32 v2, v1, 2, 2", "s_lshl_b32 s16, s22, 2", "v_add_u32 v2, s16, v2", "v_mul_u32_u24 v14, 7168, v2",
               "v_and_b32 v2, 3, v1", "v_min_u32 v2, 2, v2", "v_mul_u32_u24 v2, 104, v2", "s_mul_i32 s16, s21, 224", "v_add3_u32 v14, v14, v2, s16",
               "s_cmp_eq_u32 s23, 2", "s_cbranch_scc1 G1_T0"] if PX else []),
            "s_mov_b32 s30, 0x7f000000", "s_mov_b32 s31, 0", "s_cmp_ge_u32 s20, 4", "s_cbranch_scc1 G1_T0", "s_waitcnt lgkmcnt(0)",
            "s_cmp_eq_u32 s20, 1", "s_cbranch_scc0 G1_T2")
        srd(a, 24, 4, 1024 * 1024 * 2)
        a.I("v_and_b32 v2, 1, v1", "v_lshlrev_b32 v14, 7, v2", "s_lshl_b32 s16, s2, 8", "v_add_u32 v14, s16, v14",
            f"s_mov_b32 s31, {32*2048}", f"s_mov_b32 s30, {PD*32*2048}", "s_branch G1_T0")
        a.L("G1_T2")
        if "nolate" not in EXP:
            a.I("s_cmp_eq_u32 s20, 2", "s_cbranch_scc0 G1_T3")
            srd(a, 24, 6, 3584 * 1024 * 2)
            if "lwd" in EXP: a.I("v_min_u32 v2, 8, v1", "v_lshlrev_b32 v14, 7, v2", "s_mov_b32 s31, 1152", "s_mul_i32 s30, s2, 28672")
            a.I("s_branch G1_T0")
            a.L("G1_T3")
            srd(a, 24, 8, 1024 * 1024 * 2)
            a.I("v_min_u32 v2, 2, v1", "v_lshlrev_b32 v14, 7, v2", "s_mov_b32 s31, 384", "s_lshl_b32 s30, s2, 13")
        a.L("G1_T0")
    def touch(): return ["buffer_load_dword v16, v14, s[24:27], s30 offen", "s_add_u32 s30, s30, s31"] if PD else []
    def touch0(): return []
    if "nopp" in EXP: a.extend(poll(18, 16, 8))
    else:
        a.extend(lanes(16) + ["s_mov_b32 s17, 0x20000", poll_load(18, 8, 17), "s_sleep 3", "G1_PP:", poll_load(18, 8, 18), "s_waitcnt vmcnt(1)",
                 "v_cmp_ne_u32 vcc, s55, v17", "s_cbranch_vccz G1_PD", poll_load(18, 8, 17), "s_waitcnt vmcnt(1)",
                 "v_cmp_ne_u32 vcc, s55, v18", "s_cbranch_vccz G1_PD", "s_sub_u32 s17, s17, 1", "s_cmp_lg_u32 s17, 0", "s_cbranch_scc1 G1_PP",
                 "G1_PD:", "s_mov_b64 exec, -1"])
    ts(a, 11)
    def adv(reg): return [f"s_add_u32 s{reg}, s{reg}, {SLOT}", f"s_cmp_eq_u32 s{reg}, {SLOT*R}", f"s_cselect_b32 s{reg}, 0, s{reg}"]
    def dma_act():
        return ["s_add_u32 m0, s47, s45", "s_nop 0", "buffer_load_dwordx4 v3, s[32:35], s44 offen lds",
                "buffer_load_dwordx4 v10, s[32:35], s44 offen offset:1024 lds", "s_add_u32 s44, s44, 1024"] + adv(47)
    def dma_w(): return w_dma(52) + adv(52)
    def rdaddr():
        return ["s_lshr_b32 s17, s20, 2", "s_lshl_b32 s16, s17, 13", "v_add_u32 v6, s16, v3",
                "s_and_b32 s19, s21, 1", "s_lshl_b32 s16, s23, 1", "s_add_u32 s40, s16, s19", "s_add_u32 s41, s40, 1",
                "s_mul_i32 s16, s19, 6", "s_sub_u32 s16, 6, s16", "s_cmp_eq_u32 s23, 3", "s_cselect_b32 s40, s16, s40", "s_cselect_b32 s41, 7, s41",
                "v_lshrrev_b32 v2, 4, v1", "v_lshlrev_b32 v7, 11, v2", "v_and_b32 v2, 1, v2", "v_lshlrev_b32 v12, 2, v2",
                "v_bfe_u32 v2, v1, 2, 2", "v_lshl_add_u32 v7, v2, 8, v7", "v_add_u32 v12, v12, v2",
                "v_and_b32 v2, 3, v1", "v_lshl_add_u32 v7, v2, 3, v7", "v_add_u32 v7, 16384, v7",
                "v_xor_b32 v2, s41, v12", "v_lshl_add_u32 v11, v2, 5, v7", "v_xor_b32 v2, s40, v12", "v_lshl_add_u32 v7, v2, 5, v7"]
    def reads():
        o = ["v_add_u32 v8, s50, v6", "v_add_u32 v9, s50, v7", "v_add_u32 v13, s50, v11"]
        for h in range(2):
            for u in range(2):
                for rd in range(2):
                    o.append(f"ds_read_b64_tr_b16 {vr(FW+(h*2+u)*4+2*rd,2)}, v{9 if u == 0 else 13} offset:{h*8192+rd*1024}")
        for t in range(8): o.append(f"ds_read_b128 {vr(FA+t*4,4)}, v8 offset:{t*1024}")
        return o + adv(50)
    def mm(first):
        return [mfma16(acc(h, u, t), FW + (h * 2 + u) * 4, FA + t * 4, "0" if first else None) for t in range(8) for h in range(2) for u in range(2)]
    a.I("s_cmp_ge_u32 s20, 4", "s_cbranch_scc1 G1_B")
    L = Log()
    NP0 = int(OPT.get("np0", 2))
    def proA(js): return [x for j in js for x in (L.note(dma_w(), j) if 0 < j < R - 1 else []) + L.note(dma_act(), j)]
    a.extend(proA(range(NP0)))
    if "kvearly" not in EXP:
        a.I("s_lshl_b32 s18, s2, 2", f"s_add_u32 s18, s18, {WS_FL+FL_KV}", "s_cmp_eq_u32 s20, 0", "s_cselect_b32 s18, s18, 0x7f000000")
        set_flag(a, 18); L.note(["buffer"], None)
    a.extend(rdaddr())
    a.I(f"s_waitcnt vmcnt({L.cnt(0)})", "s_barrier")
    a.extend(mixmem(reads(), proA(range(NP0, R)), False))
    E0 = "noe0" not in EXP
    a.I("s_waitcnt lgkmcnt(0)" if E0 else f"s_waitcnt vmcnt({L.cnt(1)}) lgkmcnt(0)", "s_barrier")
    ts(a, 12)
    kv = kv_groups()
    def bodyA(k, first=False):
        o = mm(first)
        if first and E0: o += [f"s_waitcnt vmcnt({L.cnt(1)})", "s_barrier"]
        dm = L.note([f"s_mov_b32 s18, {WS_FL+FL_KV}", poll_load(18, 3, 28, True)], None) if k == 27 else []
        dm += (L.note(dma_w(), k - 1 + R) if k - 1 + R < NST else []) + (L.note(dma_act() + touch(), k + R) if k + R < NST else [])
        if k + R < NST and PD: L.l[-1] = None
        if k == 28:
            o += poll(18, 64, 3, 28, True, preloaded=2)
            o += ["s_lshl_b32 s24, s20, 13", f"s_add_u32 s25, s24, {LKV}",
                  f"s_add_u32 s36, s32, {WS_KV}", "s_addc_u32 s37, s33, 0", "s_mov_b32 s38, 0x40000", "s_mov_b32 s39, 0x20000"]
            dm = L.note([x for g in kv for x in g], None)
        if k == 29: dm = L.note([x for g in kv for x in g], None)
        o += mixmem(reads() if k + 1 < NST else [], dm)
        if k + 1 < NST: o += [f"s_waitcnt vmcnt({L.cnt(k + 2)}) lgkmcnt(0)", "s_barrier"]
        return o
    emit_loop(a, "G1_A_LOOP", [bodyA(k, k == 0) for k in range(NST)])
    a.I("s_branch G1_EPI")
    a.L("G1_B")
    M = Log()
    def proB(js): return [x for j in js for x in (M.note(dma_w(), j) if j else []) + M.note(dma_act(), j)]
    a.extend(proB(range(min(NP0, R - 1))))
    a.extend(rdaddr())
    a.I(f"s_waitcnt vmcnt({M.cnt(0)})", "s_barrier")
    a.extend(proB(range(min(NP0, R - 1), R - 1)))
    a.I(*([] if E0 else [f"s_waitcnt vmcnt({M.cnt(1)})"]), "s_barrier")
    def bodyB(k, first=False):
        dm = M.note(dma_w() + dma_act(), k - 1 + R) + M.note(touch(), None) if k - 1 + R < NST else []
        o = mixmem(reads(), dm) + ([f"s_waitcnt vmcnt({M.cnt(1)})", "s_barrier"] if first and E0 else []) + ["s_waitcnt lgkmcnt(0)"] + mm(first)
        if k + 1 < NST: o += [f"s_waitcnt vmcnt({M.cnt(k + 2)})", "s_barrier"]
        return o
    emit_loop(a, "G1_B_LOOP", [bodyB(k, k == 0) for k in range(NST)])
    a.L("G1_EPI")
    ts(a, 1)
    a.I("s_lshl_b32 s16, s20, 8", f"s_add_u32 s16, s16, {LC}", "v_lshl_add_u32 v13, v1, 2, s16", "v_mov_b32 v12, 0", "ds_write_b32 v13, v12")
    wave_flag(a, 60, FL_H)
    a.I("s_lshl_b32 s16, s22, 4", "s_lshr_b32 s17, s20, 2", "s_lshl_b32 s17, s17, 3", "s_add_u32 s16, s16, s17", "s_mul_i32 s16, s16, 112",
        "s_mul_i32 s17, s21, 7", "s_add_u32 s17, s17, s40", "s_lshr_b32 s17, s17, 1", "s_add_u32 s16, s16, s17",
        "s_lshl_b32 s16, s16, 10", f"s_add_u32 s61, s16, {WS_H}", "s_cmp_eq_u32 s23, 3", "s_cbranch_scc1 G1_EPQ")
    for t in reversed(range(8)):
        g, u = acc(0, 0, t), acc(1, 0, t)
        for i in range(8): a.I(f"v_max_f32 v{g+i}, 0, v{g+i}")
        for i in range(8): a.I(f"v_mul_f32 v{g+i}, v{g+i}, v{u+i}")
        for d in range(4): a.I(f"v_cvt_pk_bf16_f32 v{HP+4*t+d}, v{g+2*d}, v{g+2*d+1}")
    a.I("s_branch G1_X")
    a.L("G1_EPQ")
    a.I(f"s_mov_b32 s18, {f32(QSCALE)}", "s_lshr_b32 s16, s20, 2", "s_lshl_b32 s16, s16, 13", f"s_add_u32 s16, s16, {LQ}",
        "v_add_u32 v9, s16, v3", "s_lshl_b32 s16, s19, 3", "s_add_u32 s61, s61, s16")
    for t in range(8):
        q0, q1 = acc(0, 1, t), acc(1, 1, t)
        for i in range(4): a.I(f"v_mul_f32 v{q0+i}, s18, v{q0+i}", f"v_mul_f32 v{q1+i}, s18, v{q1+i}")
        a.I(f"v_cvt_pk_bf16_f32 v{FA+4*t}, v{q0}, v{q0+1}", f"v_cvt_pk_bf16_f32 v{FA+4*t+1}, v{q0+2}, v{q0+3}",
            f"v_cvt_pk_bf16_f32 v{FA+4*t+2}, v{q1}, v{q1+1}", f"v_cvt_pk_bf16_f32 v{FA+4*t+3}, v{q1+2}, v{q1+3}",
            f"ds_write_b128 v9, {vr(FA+4*t,4)} offset:{t*1024}")
    for t in reversed(range(8)):
        g, u = acc(0, 0, t), acc(1, 0, t)
        for i in range(4): a.I(f"v_max_f32 v{g+i}, 0, v{g+i}")
        for i in range(4): a.I(f"v_mul_f32 v{g+i}, v{g+i}, v{u+i}")
        for d in range(2): a.I(f"v_cvt_pk_bf16_f32 v{HP+4*t+d}, v{g+2*d}, v{g+2*d+1}")
    a.L("G1_X")
    a.I("s_cmp_ge_u32 s20, 4", "s_cbranch_scc1 G1_X2", "s_lshl_b32 s16, s20, 11", "v_add_u32 v9, s16, v3")
    for t in range(8): a.I(f"ds_write_b128 v9, {vr(HP+4*t,4)} offset:{(t>>1)*8192+(t&1)*1024}")
    a.L("G1_X2")
    a.I("s_waitcnt lgkmcnt(0)", "s_barrier")
    ts(a, 2)

def h_stores(a):
    _n[0] += 1; lab = f"HS{_n[0]}"
    a.I(f"s_sub_u32 s16, s61, {8*112*1024}", "s_cmp_eq_u32 s20, 3", f"s_cbranch_scc1 {lab}")
    for w, n in ((4, lab + "_D"), (2, None)):
        for t in range(8): a.I(f"buffer_store_dwordx{w} {vr(HP+4*t,w)}, v3, s[32:35], s61 offen{SC1}", f"s_add_u32 s61, s61, {112*1024}")
        a.I("s_waitcnt lgkmcnt(0)")
        for t in range(8): a.I(f"buffer_store_dwordx{w} {vr(192+4*t,w)}, v3, s[32:35], s16 offen{SC1}", f"s_add_u32 s16, s16, {112*1024}")
        if n: a.I(f"s_branch {n}"); a.L(lab)
    a.L(lab + "_D")

def attention(a):
    QR = [16, 24]; KB = [32, 48]; VB = [40, 56]; P = 64; SEL = 72; Lr = [76, 80]; S = [96, 112]; O = [128, 144]; C = [160, 176]
    a.I(f"s_add_u32 s36, s32, {WS_KV}", "s_addc_u32 s37, s33, 0", "s_mov_b32 s38, 0x40000", "s_mov_b32 s39, 0x20000")
    a.I("v_bfe_u32 v2, v1, 4, 1", "v_lshlrev_b32 v4, 10, v2", "v_lshrrev_b32 v2, 5, v1", "v_lshl_add_u32 v4, v2, 8, v4",
        "v_and_b32 v2, 15, v1", "v_lshl_add_u32 v4, v2, 4, v4",
        "s_lshl_b32 s16, s20, 12", f"s_add_u32 s16, s16, {LQ}", "v_add_u32 v5, s16, v4")
    for b in range(2):
        for ks in range(2): a.I(f"ds_read_b128 {vr(QR[b]+4*ks,4)}, v5 offset:{b*2048+ks*512}")
    a.I(f"v_add_u32 v6, {LKV}, v4", f"v_add_u32 v7, {LKV+2048}, v3")
    sync_setup(a, LC, 13, 14, 12)
    a.I("s_waitcnt vmcnt(8)")
    sync_block(a, 13, 14, 12, 15)
    def rdK(buf, off): return [f"ds_read_b128 {vr(KB[buf]+4*ks,4)}, v6 offset:{off+ks*512}" for ks in range(2)]
    def rdV(buf, off): return [f"ds_read_b128 {vr(VB[buf]+4*ks,4)}, v7 offset:{off+ks*1024}" for ks in range(2)]
    a.extend(rdK(0, 0) + rdV(0, 0))
    a.I("v_lshrrev_b32 v2, 2, v1", "v_lshrrev_b32 v5, 4, v1", "v_xor_b32 v2, v2, v5", "v_and_b32 v2, 1, v2",
        "v_cmp_eq_u32 vcc, 0, v2", "v_mov_b32 v5, 0x3f803f80", "s_mov_b32 s28, 0",
        f"v_cndmask_b32 v{SEL}, 0, v5, vcc")
    for i in range(1, 4): a.I(f"v_mov_b32 v{SEL+i}, v{SEL}")
    a.I("s_waitcnt lgkmcnt(0)")
    ts(a, 3)
    for b in range(2):
        a.I(mfma32(S[b], KB[0], QR[b], "0"), mfma32(S[b], KB[0] + 4, QR[b] + 4))
    for b in range(2):
        for i in range(16): a.I(f"v_mov_b32 v{O[b]+i}, 0")
        for i in range(4): a.I(f"v_mov_b32 v{Lr[b]+i}, 0")
    for i in range(4): a.I(f"v_mov_b32 v{P+4+i}, 0", f"v_mov_b32 v{VB[1]+4+i}, 0")
    for b in range(2):
        s0 = S[b]; m = 8 + 2 * b
        a.I(f"v_max3_f32 v{m}, v{s0}, v{s0+1}, v{s0+2}")
        for i in range(3, 15, 2): a.I(f"v_max3_f32 v{m}, v{m}, v{s0+i}, v{s0+i+1}")
        a.I(f"v_max_f32 v{m}, v{m}, v{s0+15}", f"v_mov_b32 v{m+1}, v{m}")
    for b in range(2):
        m = 8 + 2 * b
        a.I(f"v_permlane32_swap_b32 v{m}, v{m+1}", f"v_max_f32 v{m}, v{m}, v{m+1}", f"v_sub_f32 v{C[b]}, 0, v{m}")
        for i in range(1, 16): a.I(f"v_mov_b32 v{C[b]+i}, v{C[b]}")
    a.I(mfma32(S[0], KB[0], QR[0], C[0]), mfma32(S[0], KB[0] + 4, QR[0] + 4))
    def tile(b, kbuf_next, vbuf, vprev, extra, dg):
        nb = 1 - b; s0 = S[b]
        ex = [f"v_exp_f32 v{s0+i}, v{s0+i}" for i in range(16)]
        cv = [f"v_cvt_pk_bf16_f32 v{P+d}, v{s0+2*d}, v{s0+2*d+1}" for d in range(8)]
        e = list(extra) + [None] * 4
        o = [mfma32(S[nb], KB[kbuf_next], QR[nb], C[nb]), e[0]] + ex[0:3]
        o += [mfma32(O[nb], VB[vprev] + 4, P + 4), e[1]] + ex[3:6]
        o += [mfma16(Lr[nb], SEL, P + 4)] + ex[6:8]
        o += [mfma32(S[nb], KB[kbuf_next] + 4, QR[nb] + 4), e[2], cv[0], cv[1], ex[8], cv[2], cv[3], ex[9], ex[10]]
        o += [mfma32(O[b], VB[vbuf], P), e[3]] + ex[11:14]
        o += [mfma16(Lr[b], SEL, P)] + (dg or []) + [ex[14], ex[15]] + cv[4:8]
        return [x for x in o if x]
    a.I(f"s_setprio {int(OPT.get('ap', 2))}", "s_nop 11")
    a.L("ATT_LOOP")
    dg = kv_groups()
    SPL = "ablock" not in EXP
    def slot(j):
        if "noadma" in EXP: return []
        return ["s_cmp_eq_u32 s28, 0", f"s_cbranch_scc1 ATT_HB{j}"] + dg[j if SPL else j + 2] + [f"ATT_HB{j}:"]
    def chk(tag):
        return ["v_cmp_gt_u32 vcc, s53, v15", "s_nop 0", f"s_cbranch_vccnz ATT_SP{tag}", f"ATT_CT{tag}:"]
    for kb in range(8):
        cur = kb & 1; nxt = 1 - cur
        arrive = ["ds_add_u32 v13, v12", "s_add_u32 s53, s53, 1"]
        if SPL:
            if kb == 0: a.extend(chk(0))
            if kb == 6: a.I("s_waitcnt vmcnt(0)", *arrive)
            if kb == 7: a.extend(chk(7) + arrive)
        elif kb == 7:
            a.I("s_waitcnt vmcnt(0)")
            sync_block(a, 13, 14, 12, 15)
        if kb == 7: a.I("v_xor_b32 v6, 0x8000, v6", "v_xor_b32 v7, 0x8000, v7")
        off = ((kb + 1) & 7) * 4096
        if SPL: g0, g1 = (slot(2 * kb), slot(2 * kb + 1)) if kb < 4 else (None, ["ds_read_b32 v15, v14"] if kb >= 6 else None)
        else: g0, g1 = (dg[0], dg[1]) if kb == 7 else (slot(2 * kb), slot(2 * kb + 1)) if kb < 3 else (None, None)
        a.extend(tile(0, cur, cur, nxt, rdK(nxt, off) + rdV(nxt, off), g0))
        a.I("s_waitcnt lgkmcnt(2)")
        a.extend(tile(1, nxt, cur, cur, [], g1))
        if kb == 7: a.I("s_add_u32 s28, s28, 1", f"s_cmp_lg_u32 s28, {1 if 'noatt' in EXP else 8}")
        a.I("s_waitcnt lgkmcnt(0)")
    a.I("s_cbranch_scc1 ATT_LOOP")
    a.I(mfma32(O[1], VB[1] + 4, P + 4), mfma16(Lr[1], SEL, P + 4))
    ts(a, 4)
    a.I("s_setprio 3", f"s_mov_b32 s16, {f32(2.0**100)}")
    for b in range(2):
        a.I(f"v_max3_f32 v{8+b}, abs(v{O[b]}), abs(v{O[b]+1}), v{Lr[b]}", f"v_add_f32 v{10+b}, v{O[b]}, v{O[b]+1}")
    for i in range(2, 16, 2):
        for b in range(2):
            a.I(f"v_max3_f32 v{8+b}, v{8+b}, abs(v{O[b]+i}), abs(v{O[b]+i+1})", f"v_add3_u32 v2, v2, v2, v2" if False else f"v_add_f32 v{10+b}, v{10+b}, v{O[b]+i}",
                f"v_add_f32 v{86+b}, v{O[b]+i+1}, v{Lr[b]}" if i == 2 else f"v_add_f32 v{86+b}, v{86+b}, v{O[b]+i+1}")
    a.I("v_max_f32 v8, v8, v9", "v_add_f32 v10, v10, v11", "v_add_f32 v86, v86, v87", "v_add_f32 v9, v10, v86")
    a.I("v_cmp_nlt_f32 vcc, v8, s16", "v_cmp_u_f32 s[18:19], v9, v9", "s_or_b64 vcc, vcc, s[18:19]")
    if "force" in EXP: a.I("s_mov_b64 vcc, -1")
    a.I("s_cbranch_vccz ATT_FIN")
    for b in range(2):
        M = 10; AL = 11
        for i in range(16): a.I(f"v_mov_b32 v{O[b]+i}, 0")
        for i in range(4): a.I(f"v_mov_b32 v{Lr[b]+i}, 0")
        a.I(f"v_mov_b32 v{M}, {f32(-3.0e38)}", f"s_mov_b32 s29, 0")
        a.L(f"ATT_FB{b}")
        for ks in range(2):
            a.I(f"buffer_load_dwordx4 {vr(KB[0]+4*ks,4)}, v4, s[36:39], s29 offen offset:{ks*512}",
                f"buffer_load_dwordx4 {vr(VB[0]+4*ks,4)}, v3, s[36:39], s29 offen offset:{2048+ks*1024}")
        a.I("s_waitcnt vmcnt(0)")
        s0 = S[0]
        a.I(mfma32(s0, KB[0], QR[b], "0"), mfma32(s0, KB[0] + 4, QR[b] + 4))
        a.I(f"v_max3_f32 v8, v{s0}, v{s0+1}, v{M}")
        for i in range(2, 16, 2): a.I(f"v_max3_f32 v8, v8, v{s0+i}, v{s0+i+1}")
        a.I("v_mov_b32 v9, v8", "v_permlane32_swap_b32 v8, v9", "v_max_f32 v8, v8, v9",
            f"v_sub_f32 v{AL}, v{M}, v8", f"v_exp_f32 v{AL}, v{AL}", f"v_mov_b32 v{M}, v8")
        for i in range(16): a.I(f"v_sub_f32 v{s0+i}, v{s0+i}, v8")
        for i in range(16): a.I(f"v_exp_f32 v{s0+i}, v{s0+i}")
        for i in range(16): a.I(f"v_mul_f32 v{O[b]+i}, v{O[b]+i}, v{AL}")
        for i in range(4): a.I(f"v_mul_f32 v{Lr[b]+i}, v{Lr[b]+i}, v{AL}")
        for d in range(8): a.I(f"v_cvt_pk_bf16_f32 v{P+d}, v{s0+2*d}, v{s0+2*d+1}")
        a.I(mfma32(O[b], VB[0], P), mfma16(Lr[b], SEL, P), mfma32(O[b], VB[0] + 4, P + 4), mfma16(Lr[b], SEL, P + 4))
        a.I("s_add_u32 s29, s29, 4096", f"s_cmp_lg_u32 s29, {64*4096}", f"s_cbranch_scc1 ATT_FB{b}")
    a.L("ATT_FIN")
    a.I("v_mov_b32 v23, v13", "v_mov_b32 v24, v14", "v_mov_b32 v25, v12")
    a.I("v_bfe_u32 v2, v1, 4, 1", "v_lshlrev_b32 v5, 15, v2", "v_lshrrev_b32 v2, 5, v1", "v_lshl_add_u32 v5, v2, 8, v5",
        "v_and_b32 v2, 15, v1", "v_lshl_add_u32 v5, v2, 4, v5",
        "s_lshl_b32 s16, s22, 2", "s_add_u32 s16, s16, s20", "s_lshl_b32 s16, s16, 7", "s_add_u32 s16, s16, s21", "s_lshl_b32 s16, s16, 10",
        f"s_add_u32 s16, s16, {WS_O}", "s_add_u32 s17, s16, 65536")
    for b in range(2): a.I(f"v_rcp_f32 v{8+b}, v{Lr[b]}")
    for b in range(2):
        for i in range(16): a.I(f"v_mul_f32 v{O[b]+i}, v{O[b]+i}, v{8+b}")
        for d in range(8): a.I(f"v_cvt_pk_bf16_f32 v{S[b]+d}, v{O[b]+2*d}, v{O[b]+2*d+1}")
        for ks in range(2):
            a.I(f"buffer_store_dwordx4 {vr(S[b]+4*ks,4)}, v5, s[32:35], s{16+b} offen offset:{ks*512}{SC1}")

def down(a):
    R = 8; SLOT = 8192; NST = 56
    FW_ = [32, 64]; AR = 192; ACC = 128
    M32 = "d32" in EXP
    a.I(f"s_setprio {int(OPT.get('bp', 0))}", "s_lshl_b32 s16, s20, 11", "v_add_u32 v9, s16, v3")
    for t in range(8): a.I(f"ds_read_b128 {vr(192+4*t,4)}, v9 offset:{(t>>1)*8192+(t&1)*1024}")
    h_stores(a)
    a.I(f"s_load_dwordx2 s[8:9], s[0:1], {KA_WD}",
        "s_and_b32 s21, s2, 1",
        "s_bfe_u32 s16, s2, 0x10001", "s_lshl_b32 s16, s16, 3", "s_bfe_u32 s17, s2, 0x30003", "s_add_u32 s22, s16, s17",
        "s_bfe_u32 s16, s2, 0x10002", "s_lshl_b32 s16, s16, 2", "s_bfe_u32 s17, s2, 0x20006", "s_add_u32 s23, s16, s17",
        "s_lshl_b32 s46, s20, 11",
        "v_lshrrev_b32 v2, 4, v1", "s_lshl_b32 s16, s20, 3", "v_add_u32 v4, s16, v2", "v_lshlrev_b32 v4, 11, v4",
        "v_bfe_u32 v5, v1, 1, 3", *(["v_lshlrev_b32 v6, 1, v2", "v_xor_b32 v6, v6, v5", "v_mov_b32 v7, v6"] if M32 else ["v_xor_b32 v6, v2, v5", "v_xor_b32 v7, 4, v6"]),
        "v_and_b32 v2, 1, v1", "v_lshl_add_u32 v4, v2, 4, v4", "s_lshl_b32 s16, s23, 8", "v_add_u32 v4, s16, v4",
        f"v_add_u32 v5, {4*2048-1024}, v4",
        "v_lshl_add_u32 v4, v6, 5, v4", "v_lshl_add_u32 v5, v7, 5, v5",
        "s_mul_i32 s48, s21, %d" % (1792 * 2048), "s_waitcnt lgkmcnt(0)")
    srd(a, 24, 8, 3584 * 1024 * 2)
    def dma_w(st):
        return [f"s_add_u32 m0, s46, {(st % R) * SLOT}", "s_add_u32 s49, s48, 0",
                "buffer_load_dwordx4 v4, s[24:27], s49 offen lds", "s_add_u32 s48, s48, 65536",
                "buffer_load_dwordx4 v5, s[24:27], s49 offen offset:1024 lds"]
    def ld_a(st):
        r = AR + (st % R) * 8
        if M32: return [f"buffer_load_dwordx4 {vr(r,4)}, v10, s[32:35], s44 offen", f"buffer_load_dwordx4 {vr(r+4,4)}, v10, s[32:35], s44 offen offset:512",
                        "s_add_u32 s44, s44, 1024"]
        return [f"buffer_load_dwordx4 {vr(r,4)}, v3, s[32:35], s44 offen", f"buffer_load_dwordx4 {vr(r+4,4)}, v10, s[32:35], s44 offen",
                "s_add_u32 s44, s44, 1024"]
    L = Log()
    NW = int(OPT.get("nw", 2))
    for j in range(NW): a.extend(L.note(dma_w(j), ("w", j)))
    a.I(f"s_waitcnt vmcnt({2*NW})")
    ts(a, 9)
    set_flag(a, 60)
    LAG = int(OPT.get("lag", 2))
    for j in range(NW, R - LAG): a.extend(L.note(dma_w(j), ("w", j)))
    a.I("s_lshl_b32 s16, s22, 3", "s_lshl_b32 s17, s20, 1", "s_add_u32 s16, s16, s17", "s_mul_i32 s16, s16, 112",
        "s_mul_i32 s17, s21, 56", "s_add_u32 s16, s16, s17", "s_lshl_b32 s44, s16, 10", f"s_add_u32 s44, s44, {WS_H}",
        )
    if M32:
        a.I("v_bfe_u32 v2, v1, 4, 1", f"v_mul_u32_u24 v10, {112*1024}, v2", "v_lshrrev_b32 v8, 5, v1", "v_lshl_add_u32 v10, v8, 8, v10",
            "v_and_b32 v9, 15, v1", "v_lshl_add_u32 v10, v9, 4, v10",
            "v_lshlrev_b32 v12, 10, v8", "v_bfe_u32 v9, v1, 2, 2", "v_lshl_add_u32 v12, v9, 8, v12",
            "v_lshlrev_b32 v9, 1, v9", "v_xor_b32 v9, v9, v2", "v_lshl_add_u32 v12, v9, 5, v12",
            "v_and_b32 v9, 3, v1", "v_lshl_add_u32 v12, v9, 3, v12")
        for u in range(1, 4): a.I(f"v_xor_b32 v{12+u}, {64*u}, v12")
    else:
        a.I(f"v_add_u32 v10, {112*1024}, v3",
            "v_lshrrev_b32 v2, 4, v1", "v_lshlrev_b32 v12, 10, v2", "v_bfe_u32 v9, v1, 2, 2", "v_lshl_add_u32 v12, v9, 8, v12",
            "v_bfe_u32 v8, v1, 2, 3", "v_lshl_add_u32 v12, v8, 5, v12", "v_and_b32 v9, 3, v1", "v_lshl_add_u32 v12, v9, 3, v12")
        for u in range(1, 8): a.I(f"v_xor_b32 v{12+u}, {32*u}, v12")
    NT = 0
    if "wt2" in EXP:
        a.I("v_min_u32 v2, 55, v1", "v_lshlrev_b32 v24, 7, v2", "s_lshl_b32 s16, s2, 2", "s_add_u32 s16, s16, s20", "s_mul_i32 s16, s16, 7168",
            "buffer_load_dword v25, v24, s[24:27], s16 offen")
    if "wt" in EXP.split("_"):
        a.I("v_lshrrev_b32 v2, 1, v1", "v_lshlrev_b32 v24, 11, v2", "v_and_b32 v2, 1, v1", "v_lshl_add_u32 v24, v2, 7, v24",
            "s_and_b32 s16, s22, 7", "s_lshl_b32 s16, s16, 2", "s_add_u32 s16, s16, s20", "s_mul_i32 s16, s16, %d" % (56 * 2048),
            "s_mul_i32 s17, s21, %d" % (1792 * 2048), "s_add_u32 s16, s16, s17", "s_lshl_b32 s17, s23, 8", "s_add_u32 s16, s16, s17",
            f"s_add_u32 s17, s16, {24*2048}",
            "buffer_load_dword v25, v24, s[24:27], s16 offen", "buffer_load_dword v26, v24, s[24:27], s17 offen")
        NT = 2
    sync_setup(a, LC + 1024, 20, 21, 22)
    a.I("v_lshrrev_b32 v2, 4, v1", "v_bfe_u32 v8, v1, 2, 2", "v_lshl_add_u32 v9, v8, 3, v2", "v_lshlrev_b32 v9, 5, v9",
        "v_and_b32 v2, 3, v1", "v_lshl_add_u32 v9, v2, 2, v9",
        "s_lshr_b32 s18, s22, 1", "s_lshl_b32 s18, s18, 5", "s_lshl_b32 s16, s21, 2", "s_add_u32 s18, s18, s16", "s_lshl_b32 s18, s18, 5",
        f"s_add_u32 s18, s18, {WS_FL+FL_H+16}")
    PG = "nopg" not in EXP
    a.extend(poll(18, 8 if PG else 64, 9))
    ts(a, 3)
    L.l = []
    for j in range(R - 1): a.extend(L.note(ld_a(j), ("a", j)))
    if PG: a.extend(L.note([poll_load(18, 9, 24), "s_mov_b32 s45, 44"], ("f", 0)))
    def need(k):
        last = max([i for i, t in enumerate(L.l) if (t[0] in "af" and t[1] <= k) or (t[0] == "w" and t[1] <= k + 1 + LAG)], default=-1)
        return len(L.l) - 1 - last
    def reads(st):
        if M32: return [f"ds_read_b64_tr_b16 {vr(FW_[st&1]+(ks*4+nb)*4+2*rd,2)}, v{12+nb} offset:{(st % R)*SLOT+ks*2048+rd*4096}"
                        for ks in range(2) for nb in range(4) for rd in range(2)]
        return [f"ds_read_b64_tr_b16 {vr(FW_[st&1]+u*4+2*rd,2)}, v{12+u} offset:{(st % R)*SLOT+rd*4096}" for u in range(8) for rd in range(2)]
    sync_block(a, 20, 21, 22, 23)
    a.extend(reads(0))
    a.I("ds_read_b32 v23, v21", f"s_mov_b32 s53, {2 - LAG}", f"s_setprio {int(OPT.get('dp', 1))}")
    def body(k):
        if M32: m = [mfma32(ACC + nb * 16, FW_[k & 1] + (ks * 4 + nb) * 4, AR + (k % R) * 8 + ks * 4, "0" if k + ks == 0 else None) for ks in range(2) for nb in range(4)]
        else: m = [mfma16(ACC + (t * 8 + u) * 4, FW_[k & 1] + u * 4, AR + (k % R) * 8 + t * 4, "0" if k == 0 else None) for u in range(8) for t in range(2)]
        if k + 1 >= NST: return [f"s_waitcnt vmcnt({need(k)}) lgkmcnt(0)"] + m
        h0, h1 = (1, 7) if M32 else (2, 14)
        CP = "nocp" not in EXP and not PT
        o = (["s_setprio 3"] if CP else []) + [f"s_waitcnt vmcnt({need(k)}) lgkmcnt(0)", "v_cmp_gt_i32 vcc, s53, v23"]
        o += ([f"s_setprio {int(OPT.get('dp', 1))}"] if CP else []) + ["ds_add_u32 v20, v22", "s_add_u32 s53, s53, 1"]
        if PT: o += [f"s_setprio {1 if (k % R) < PT else 0}"]
        o += m[:h0] + [f"s_nop {2 - h0 - (1 if PT else 0)}"] * (2 - h0 - (1 if PT else 0) >= 0) + (["s_cbranch_vccnz @SPIN"] if "nosync" not in EXP else []) + ["@CONT:"]
        if PG and k % 8 == 0 and k <= 40:
            o += ["s_lshr_b64 s[28:29], -1, s45", "s_setprio 3", "v_cmp_ne_u32 vcc, s55, v24", f"s_setprio {int(OPT.get('dp', 1))}",
                  "s_sub_u32 s45, s45, 10", "s_max_i32 s45, s45, 0", "s_and_b64 vcc, vcc, s[28:29]", "s_cbranch_scc1 @FSP", "@FCT:"]
        dm = (L.note(dma_w(k - LAG + R), ("w", k - LAG + R)) if k - LAG + R < NST else []) + (L.note(ld_a(k - 1 + R), ("a", k - 1 + R)) if k - 1 + R < NST else [])
        if PG and k % 8 == 4 and k <= 44: dm += L.note([poll_load(18, 9, 24)], ("f", k + 4))
        if "dnodma" in EXP: dm = []
        fill = mixmem(reads(k + 1), dm, False)
        FR = int(OPT.get("fr", 5 if M32 else 10))
        rd = reads(k + 1) + ["ds_read_b32 v23, v21"]
        gs = groups_of(dm) if dm else []
        if "vend" in EXP:
            o += interleave(m[h0:FR], rd)
            rest = m[FR:]
            for i, x in enumerate(rest):
                o += [x] + [y for g in gs[(len(gs) * i) // len(rest):(len(gs) * (i + 1)) // len(rest)] for y in g]
            return o
        n = len(m) - h0; nr = FR - h0
        for i, x in enumerate(m[h0:]):
            o += [x] + (rd[(len(rd) * i) // nr:(len(rd) * (i + 1)) // nr] if i < nr else [])
            o += [y for g in gs[(len(gs) * i) // n:(len(gs) * (i + 1)) // n] for y in g]
        return o
    PT = int(OPT.get("pt", 0))
    bodies = [body(k) for k in range(NST)]
    U = R
    for head in range(0, R + U + 1):
        nl = (NST - R - head) // U
        if all(bodies[k] == bodies[head + (k - head) % U] for k in range(head, head + nl * U)): break
    else: raise AssertionError
    spins = []
    def emit(k):
        spins.append(k)
        a.extend([x.replace("@SPIN", f"DN_SP{k}").replace("@CONT", f"DN_CT{k}").replace("@FSP", f"DN_FS{k}").replace("@FCT", f"DN_FC{k}") for x in bodies[k]])
    for k in range(head): emit(k)
    a.I(f"s_mov_b32 s51, {nl}")
    a.L("DN_LOOP")
    for k in range(head, head + U): emit(k)
    a.I("s_sub_u32 s51, s51, 1", "s_cmp_lg_u32 s51, 0", "s_cbranch_scc1 DN_LOOP")
    for k in range(head + nl * U, NST): emit(k)
    ts(a, 4)
    a.I("s_setprio 3", "s_lshl_b32 s16, s22, 3", "s_lshl_b32 s17, s20, 1", "s_add_u32 s16, s16, s17", "s_lshl_b32 s16, s16, 5",
        "s_lshl_b32 s17, s23, 2", "s_add_u32 s16, s16, s17",
        "s_lshl_b32 s16, s16, 10", "s_lshl_b32 s17, s21, 22", "s_add_u32 s16, s16, s17", f"s_add_u32 s16, s16, {WS_P}")
    if M32:
        a.I("v_bfe_u32 v2, v1, 4, 1", "v_lshlrev_b32 v5, 15, v2", "v_lshrrev_b32 v2, 5, v1", "v_lshl_add_u32 v5, v2, 8, v5",
            "v_and_b32 v2, 15, v1", "v_lshl_add_u32 v5, v2, 4, v5")
        for nb in range(4):
            g = ACC + nb * 16
            for e in range(2):
                pk = 192 + (nb * 2 + e) * 4
                a.I(f"v_cvt_pk_bf16_f32 v{pk}, v{g+4*e}, v{g+4*e+1}", f"v_cvt_pk_bf16_f32 v{pk+1}, v{g+4*e+2}, v{g+4*e+3}",
                    f"v_cvt_pk_bf16_f32 v{pk+2}, v{g+8+4*e}, v{g+8+4*e+1}", f"v_cvt_pk_bf16_f32 v{pk+3}, v{g+8+4*e+2}, v{g+8+4*e+3}",
                    f"buffer_store_dwordx4 {vr(pk,4)}, v5, s[32:35], s16 offen offset:{nb*1024+e*512}{SC1}")
    else:
        for t in range(2):
            for c in range(4):
                g = ACC + (t * 8 + c * 2) * 4; pk = 192 + (t * 4 + c) * 4
                for d in range(4): a.I(f"v_cvt_pk_bf16_f32 v{pk+d}, v{g+2*d}, v{g+2*d+1}")
                a.I(f"buffer_store_dwordx4 {vr(pk,4)}, v3, s[32:35], s16 offen offset:{c*1024}{SC1}")
            a.I("s_add_u32 s16, s16, 32768")
    wave_flag(a, 60, FL_O)
    a.I("s_waitcnt vmcnt(0)")
    set_flag(a, 60)
    tl_dump(a, 13)
    a.I("s_endpgm")
    for k in spins:
        if k + 1 >= NST: continue
        if any("@FSP" in x for x in bodies[k]):
            a.L(f"DN_FS{k}")
            a.I("s_mov_b32 s17, 0x40000")
            a.L(f"DN_FL{k}")
            a.I(poll_load(18, 9, 24), "s_waitcnt vmcnt(0)", "v_cmp_ne_u32 vcc, s55, v24", "s_and_b64 vcc, vcc, s[28:29]",
                f"s_cbranch_scc0 DN_FC{k}", "s_sleep 2", "s_sub_u32 s17, s17, 1", "s_cmp_lg_u32 s17, 0", f"s_cbranch_scc1 DN_FL{k}", f"s_branch DN_FC{k}")
        a.L(f"DN_SP{k}")
        a.I("ds_read_b32 v23, v21", "s_waitcnt lgkmcnt(0)", "v_add_u32 v23, 1, v23", "v_cmp_gt_i32 vcc, s53, v23",
            f"s_cbranch_vccnz DN_SP{k}", f"s_branch DN_CT{k}")

def wo(a):
    OA = 128; FW = [32, 48]; ACC = 64; XR = 96; P0 = 128; P1 = 144
    NE = 20; D = 16; SW = int(OPT.get("sw", 12))
    a.I(f"s_load_dwordx2 s[8:9], s[0:1], {KA_WO}", f"s_load_dwordx2 s[10:11], s[0:1], {KA_X}", f"s_load_dwordx2 s[12:13], s[0:1], {KA_OUT}",
        "s_bfe_u32 s16, s2, 0x20001", "s_lshl_b32 s16, s16, 2", "s_bfe_u32 s17, s2, 0x20003", "s_add_u32 s22, s16, s17",
        "s_and_b32 s16, s2, 1", "s_lshl_b32 s16, s16, 3", "s_lshr_b32 s17, s2, 5", "s_add_u32 s23, s16, s17",
        "v_lshrrev_b32 v2, 3, v1", "v_lshlrev_b32 v4, 11, v2",
        "v_lshrrev_b32 v2, 4, v1", "v_bfe_u32 v5, v1, 1, 2", "v_xor_b32 v2, v2, v5", "v_lshl_add_u32 v4, v2, 5, v4",
        "v_and_b32 v2, 1, v1", "v_lshl_add_u32 v4, v2, 4, v4", "s_lshl_b32 s16, s23, 7", "v_add_u32 v4, s16, v4")
    for i in range(1, 4): a.I(f"v_add_u32 v{4+i}, {i*(8*2048-1024)}, v4")
    a.I("s_lshl_b32 s16, s22, 2", "s_add_u32 s16, s16, s20", "s_lshl_b32 s44, s16, 16",
        "s_lshl_b32 s17, s23, 7", "s_add_u32 s42, s44, s17",
        "s_lshl_b32 s17, s23, 11", "s_add_u32 s43, s44, s17", f"s_add_u32 s43, s43, {WS_P}",
        f"s_add_u32 s44, s44, {WS_O}", "v_add_u32 v10, 0x8000, v3")
    wave_flag(a, 60, FL_O)
    a.I("s_waitcnt vmcnt(0) lgkmcnt(0)")
    set_flag(a, 60)
    srd(a, 24, 8, 1024 * 1024 * 2); srd(a, 28, 10, 2048 * 2048); srd(a, 36, 12, 2048 * 2048)
    def w_blocks(first, n, lds):
        o = []
        for j in range(0, n, 4):
            o += [f"s_add_u32 m0, s{lds}, {j*1024}", f"s_add_u32 s16, s{first}, {j*8*2048}", "s_and_b32 s16, s16, 0x1fffff"]
            o += [f"buffer_load_dwordx4 v{4+i}, s[24:27], s16 offen offset:{i*1024} lds" for i in range(4)]
        return o
    def o_load(kb):
        r = OA + (kb % D) * 8
        return (["s_add_u32 s45, s44, s46", "s_add_u32 s46, s46, 4096", "s_and_b32 s46, s46, 0x7fff"] if kb & 3 == 0 else []) + \
               [f"buffer_load_dwordx4 {vr(r,4)}, v3, s[32:35], s45 offen offset:{(kb&3)*1024}",
                f"buffer_load_dwordx4 {vr(r+4,4)}, v10, s[32:35], s45 offen offset:{(kb&3)*1024}"]
    def p_loads():
        o = [f"s_add_u32 s17, s43, {4<<20}"]
        for t in range(2):
            for c in range(2):
                o += [f"buffer_load_dwordx4 {vr(P0+8*t+4*c,4)}, v{3 if t == 0 else 10}, s[32:35], s43 offen offset:{c*1024}",
                      f"buffer_load_dwordx4 {vr(P1+8*t+4*c,4)}, v{3 if t == 0 else 10}, s[32:35], s17 offen offset:{c*1024}"]
        return o
    sync_block(a, 23, 24, 25, 26)
    a.I("s_lshr_b32 s16, s2, 5", "s_mul_i32 s16, s16, %d" % int(OPT.get("rot", 1)), "s_lshl_b32 s46, s16, 12", "s_lshl_b32 s49, s16, 18")
    a.I(f"s_mul_i32 s48, s20, {NE*8*2048}", "s_add_u32 s48, s48, s49", f"s_mul_i32 s47, s20, {NE*1024}", f"s_add_u32 s47, s47, {LKV}")
    a.extend(w_blocks(48, NE, 47))
    a.I("v_and_b32 v2, 31, v1", "v_lshlrev_b32 v31, 11, v2", f"s_mul_i32 s48, s20, {96*2048}", f"s_add_u32 s48, s48, {640*2048}", "s_add_u32 s48, s48, s49",
        "s_lshl_b32 s17, s23, 7", "v_add_u32 v31, s17, v31")
    for j in range(3): a.I(f"s_add_u32 s16, s48, {j*32*2048}", "s_and_b32 s16, s16, 0x1fffff", f"buffer_load_dword v{28+j}, v31, s[24:27], s16 offen")
    a.I(
        f"s_mul_i32 s47, s20, {12*1024}", f"s_add_u32 s47, s47, {LKV}")
    xsel(a, 21)
    a.I("v_lshrrev_b32 v2, 5, v1", "v_lshlrev_b32 v12, 11, v2", "v_bfe_u32 v9, v1, 2, 3", "v_lshl_add_u32 v12, v9, 7, v12",
        "v_lshrrev_b32 v9, 1, v9", "v_lshl_add_u32 v12, v9, 5, v12", "v_and_b32 v9, 3, v1", "v_lshl_add_u32 v12, v9, 3, v12",
        f"v_add_u32 v12, {LKV}, v12")
    for u in range(1, 4): a.I(f"v_xor_b32 v{12+u}, {32*u}, v12")
    for u in range(4): a.I(f"v_add_u32 v{16+u}, 0x10000, v{12+u}")
    a.I("s_lshr_b32 s16, s22, 3", "s_lshl_b32 s16, s16, 1", "s_lshr_b32 s17, s23, 3", "s_lshl_b32 s17, s17, 2", "s_add_u32 s16, s16, s17",
        "s_and_b32 s17, s22, 7", "s_lshl_b32 s17, s17, 3", "s_add_u32 s16, s16, s17",
        "s_bfe_u32 s17, s23, 0x20001", "s_lshl_b32 s17, s17, 6", "s_add_u32 s16, s16, s17", "s_lshl_b32 s50, s16, 5",
        "s_lshl_b32 s16, s20, 2", "s_add_u32 s50, s50, s16", f"s_add_u32 s50, s50, {WS_FL+FL_O+16}",
        "v_lshlrev_b32 v22, 5, v1", "s_mov_b32 s19, 0xffff0000",
        "s_lshr_b32 s16, s22, 1", "s_lshl_b32 s18, s16, 10", "s_and_b32 s16, s22, 1", "s_lshl_b32 s16, s16, 1", "s_lshr_b32 s17, s20, 1",
        "s_add_u32 s16, s16, s17", "s_lshl_b32 s16, s16, 2", "s_add_u32 s18, s18, s16", f"s_add_u32 s18, s18, {WS_FL+FL_O}")
    a.extend(poll(18, 32, 22))
    ts(a, 5)
    L = Log()
    nxt = int(OPT.get("o0", 4))
    for kb in range(nxt): a.extend(L.note(o_load(kb), kb))
    sync_block(a, 23, 24, 25, 26)
    ts(a, 6)
    a.I(f"s_setprio {int(OPT.get('wp', 0))}")
    def reads(kb):
        vb, so = (12, kb * 4096) if kb < 16 else (16, (kb - 16) * 4096) if kb < NE else (12, (kb - NE) * 4096)
        return [f"ds_read_b64_tr_b16 {vr(FW[kb&1]+u*4+2*rd,2)}, v{vb+u} offset:{so+rd*1024}" for u in range(4) for rd in range(2)]
    a.extend(reads(0))
    for kb in range(32):
        wc = L.cnt(kb)
        if kb == NE - 1: wc = min(wc, len(L.l) - 1 - max(i for i, t in enumerate(L.l) if t == 99))
        a.I(f"s_waitcnt vmcnt({wc}) lgkmcnt(0)")
        if "wost" in EXP and kb in (0, 8, 20, 27): ts(a, {0: 9, 8: 10, 20: 11, 27: 12}[kb])
        if kb == SW:
            sync_block(a, 23, 24, 25, 26)
            a.extend(L.note(w_blocks(48, 12, 47), 99))
        if kb == NE - 1: sync_block(a, 23, 24, 25, 26)
        if kb == 20:
            a.extend(L.note(["s_add_u32 s16, s42, 0x8000"] + [f"buffer_load_dwordx4 {vr(XR+8*t+4*c,4)}, v21, s[28:31], s{42 if t == 0 else 16} offen offset:{c*64}"
                                                            for t in range(2) for c in range(2)], None))
        if kb == 22: a.extend(L.note(lanes(2) + [poll_load(50, 22, 27), "s_mov_b64 exec, -1"], None))
        if kb == 25:
            a.I("s_mov_b32 s52, 0", "s_waitcnt vmcnt(0)", "v_cmp_ne_u32 vcc, s55, v27", "s_bitcmp1_b32 vcc_lo, 0", "s_cbranch_scc1 WO_NP",
                "s_bitcmp1_b32 vcc_lo, 1", "s_cbranch_scc1 WO_NP", "s_mov_b32 s52, 1")
            a.extend(p_loads())
            a.L("WO_NP")
        m = [mfma16(ACC + (t * 4 + u) * 4, FW[kb & 1] + u * 4, OA + (kb % D) * 8 + 4 * t, "0" if kb == 0 else None) for u in range(4) for t in range(2)]
        a.extend(interleave(m, reads(kb + 1) if kb < 31 else [], [2, 2, 2, 2, 0, 0, 0, 0]))
        for _ in range(int(OPT.get("or", 2))):
            if nxt < 32 and nxt <= kb + D: a.extend(L.note(o_load(nxt), nxt)); nxt += 1
    a.I("s_setprio 3")
    a.I("s_cmp_eq_u32 s52, 1", "s_cbranch_scc1 WO_HP")
    a.extend(poll(50, 2, 22, 27))
    a.extend(p_loads())
    a.L("WO_HP")
    for i in range(4):
        a.I(f"v_permlane16_swap_b32 v{XR+4*i}, v{XR+4*i+2}", f"v_permlane16_swap_b32 v{XR+4*i+1}, v{XR+4*i+3}")
    E = [(i, d, ACC + i * 8 + 2 * d, 160 + 4 * (i * 4 + d)) for i in range(4) for d in range(4)]
    for i, d, g, r in E: a.I(f"v_lshlrev_b32 v{r}, 16, v{XR+4*i+d}", f"v_and_b32 v{r+1}, s19, v{XR+4*i+d}")
    for i, d, g, r in E: a.I(f"v_add_f32 v{g}, v{g}, v{r}", f"v_add_f32 v{g+1}, v{g+1}, v{r+1}")
    for i in range(4):
        a.I(f"s_waitcnt vmcnt({6 - 2 * i + i})")
        Ei = E[4 * i:4 * i + 4]
        for i_, d, g, r in Ei:
            a.I(f"v_lshlrev_b32 v{r}, 16, v{P0+4*i+d}", f"v_and_b32 v{r+1}, s19, v{P0+4*i+d}",
                f"v_lshlrev_b32 v{r+2}, 16, v{P1+4*i+d}", f"v_and_b32 v{r+3}, s19, v{P1+4*i+d}")
        for i_, d, g, r in Ei: a.I(f"v_add_f32 v{r}, v{r}, v{r+2}", f"v_add_f32 v{r+1}, v{r+1}, v{r+3}")
        for i_, d, g, r in Ei: a.I(f"v_add_f32 v{g}, v{g}, v{r}", f"v_add_f32 v{g+1}, v{g+1}, v{r+1}")
        pk = 32 + 4 * i
        for i_, d, g, r in Ei: a.I(f"v_cvt_pk_bf16_f32 v{pk+d}, v{g}, v{g+1}")
        a.I(f"v_permlane16_swap_b32 v{pk}, v{pk+2}", f"v_permlane16_swap_b32 v{pk+1}, v{pk+3}",
            f"buffer_store_dwordx4 {vr(pk,4)}, v21, s[36:39], s42 offen offset:{(i&1)*64}")
        if i == 1: a.I("s_add_u32 s42, s42, 0x8000")

def fused():
    a = Asm()
    ts(a, 0)
    a.I("s_cmp_ge_u32 s2, 256", "s_cbranch_scc1 F_END",
        f"s_load_dwordx8 s[4:11], s[0:1], {KA_X}", f"s_load_dwordx4 s[40:43], s[0:1], {KA_WG}",
        f"s_load_dwordx4 s[12:15], s[0:1], {KA_DBG}", "s_memrealtime s[48:49]",
        "v_lshrrev_b32 v2, 6, v0", "v_and_b32 v1, 63, v0", "v_readfirstlane_b32 s20, v2", "v_lshlrev_b32 v3, 4, v1",
        "s_lshr_b32 s21, s2, 4", "s_lshl_b32 s21, s21, 3", "s_and_b32 s16, s2, 7", "s_add_u32 s45, s21, s16", "s_lshl_b32 s23, s45, 15",
        "s_mov_b32 s54, s20", "s_lshl_b32 s16, s20, 12", "s_add_u32 s19, s23, s16", "s_waitcnt lgkmcnt(0)")
    srd(a, 32, 14, WS_SIZE); srd(a, 56, 12, 256)
    a.I("s_or_b32 s16, s2, s20", "s_cmp_lg_u32 s16, 0", "s_cbranch_scc1 F_NT",
        "s_or_b32 s16, s48, 1", "v_mov_b32 v2, s16", "v_mov_b32 v8, 0", "s_mov_b64 exec, 1",
        "buffer_store_dword v2, v8, s[56:59], 0 offen sc1", "s_mov_b64 exec, -1")
    a.L("F_NT")
    phase0(a)
    ts(a, 8)
    if "p0st" in EXP:
        tl_dump(a, 13); a.I("s_endpgm")
    g1(a)
    a.I("s_and_b32 s20, s54, 3", "s_cmp_ge_u32 s54, 4", "s_cbranch_scc1 F_B")
    attention(a)
    wo(a)
    tl_dump(a, 13)
    a.I("s_endpgm")
    if "ablock" not in EXP:
        for tag in (0, 7):
            a.L(f"ATT_SP{tag}")
            a.I("ds_read_b32 v15, v14", "s_waitcnt lgkmcnt(0)", "v_cmp_gt_u32 vcc, s53, v15", f"s_cbranch_vccnz ATT_SP{tag}", f"s_branch ATT_CT{tag}")
    a.L("F_B")
    down(a)
    a.L("F_END")
    a.I("s_endpgm")
    return a, dict(grid=256, block=512, lds=163840, vgpr=256)

if __name__ == "__main__":
    path = sys.argv[1] if len(sys.argv) > 1 else "cdna_kernels/" + NAME + ".s"
    opts = dict(o.split("=") for o in sys.argv[2:])
    OPT = opts; EXP = opts.get("exp", ""); TL = bool(int(opts.get("tl", 0)))
    G.VERB = bool(int(opts.get("verb", 0)))
    G.build([(NAME if int(opts.get("single", 0)) else "fused8", fused())], path)
```

```python
import sys
from asmlib import *
import gen as G
from gen import (NAME, KA_X, KA_WQ, KA_WK, KA_WV, KA_WO, KA_WG, KA_WU, KA_WD, KA_OUT, KA_DBG, KA_WS,
                 WS_XN, WS_KV, WS_O, WS_H, WS_P, WS_SIZE, f32, vr, srd, mfma32, mfma16, QSCALE, mix2, front_pattern)
WS_FL = 0x0480000
FL_KV, FL_X, FL_H, FL_O, FL_P = 0, 4096, 12288, 20480, 24576
WS_TL = 0x3F10000
LKV = 65536
LQ = 131072
LC = 147456
HP = 224
TL = False; EXP = ""; OPT = {}
SC1 = " sc1"

def ts(a, i):
    if TL: a.I(f"s_mem{'' if 'cyc' in EXP else 'real'}time s[{62+2*i}:{63+2*i}]")
def tl_dump(a, n):
    if not TL: return
    a.I("s_waitcnt vmcnt(0) lgkmcnt(0)")
    ts(a, 7)
    if "hd" in EXP.split("_"):
        a.I("s_waitcnt lgkmcnt(0)", "s_and_b32 s90, s54, 3", "s_cmp_lg_u32 s90, 0", "s_cbranch_scc1 F_END", "s_sleep 127", "s_sleep 127", "s_sleep 127",
            "v_mov_b32 v1, 0", "s_mov_b64 exec, 1", "s_not_b32 s90, s62", "v_mov_b32 v2, s90",
            "buffer_atomic_umax v2, v1, s[56:59], 0 offen offset:4", "s_lshr_b32 s90, s54, 2", "s_mul_i32 s90, s90, 0")
        lab = f"HD{len(a.items)}"
        for j, i in enumerate((0, 8, 11, 12, 1, 2, 3, 4, 5, 7)):
            if j == 6: a.I("s_cmp_ge_u32 s54, 4", f"s_cbranch_scc1 {lab}")
            if j in (2, 3): a.I("s_cmp_ge_u32 s54, 4", f"s_cselect_b32 s{62+2*i}, 0, s{62+2*i}")
            a.I(f"v_mov_b32 v2, s{62+2*i}", f"buffer_atomic_umax v2, v1, s[56:59], 0 offen offset:{8+4*j}")
        a.I("s_endpgm")
        a.L(lab)
        for j, i in enumerate((3, 4, 7)):
            a.I(f"v_mov_b32 v2, s{62+2*i}", f"buffer_atomic_umax v2, v1, s[56:59], 0 offen offset:{48+4*j}")
        return
    a.I("s_waitcnt lgkmcnt(0)", "s_lshl_b32 s90, s2, 3", "s_add_u32 s90, s90, s54", "s_lshl_b32 s90, s90, 6",
        f"s_add_u32 s90, s90, {WS_TL}", "v_mov_b32 v1, 0", "s_mov_b64 exec, 1")
    for i in range(n):
        a.I(f"v_mov_b32 v2, s{62+2*i}", f"buffer_store_dword v2, v1, s[32:35], s90 offen offset:{4*i}")

_n = [0]
def lanes(n): return [f"s_mov_b32 exec_lo, {((1 << n) - 1) & 0xffffffff:#x}", f"s_mov_b32 exec_hi, {((1 << n) - 1) >> 32:#x}"] if n < 64 else []
def poll_load(soff, voff, dst, wide=False):
    return f"buffer_load_dword{'x4' if wide else ''} {vr(dst, 4 if wide else 1)}, v{voff}, s[32:35], s{soff} offen sc1"
def poll_test(dst, wide):
    if wide:
        return [f"v_xor_b32 v{dst+i}, s55, v{dst+i}" for i in range(4)] + \
               [f"v_or3_b32 v{dst}, v{dst}, v{dst+1}, v{dst+2}", f"v_or_b32 v{dst}, v{dst}, v{dst+3}", f"v_cmp_ne_u32 vcc, 0, v{dst}"]
    return [f"v_cmp_ne_u32 vcc, s55, v{dst}"]
def poll(soff, n, voff, dst=2, wide=False, preloaded=None):
    _n[0] += 1; lab = f"POLL{_n[0]}"
    o = lanes(n)
    if preloaded is not None:
        o += [f"s_waitcnt vmcnt({preloaded})"] + poll_test(dst, wide) + [f"s_cbranch_vccz {lab}_D"]
    o += ["s_mov_b32 s17, 0x40000", lab + ":", poll_load(soff, voff, dst, wide), "s_waitcnt vmcnt(0)"] + poll_test(dst, wide)
    o += [f"s_cbranch_vccz {lab}_D", "s_sleep 2", "s_sub_u32 s17, s17, 1", "s_cmp_lg_u32 s17, 0", f"s_cbranch_scc1 {lab}", lab + "_D:"]
    if n < 64: o += ["s_mov_b64 exec, -1"]
    return o
def set_flag(a, soff):
    a.I("v_mov_b32 v2, s55", "v_mov_b32 v8, 0", "s_mov_b64 exec, 1",
        f"buffer_store_dword v2, v8, s[32:35], s{soff} offen sc1", "s_mov_b64 exec, -1")
def wave_flag(a, reg, base):
    a.I(f"s_lshl_b32 s{reg}, s2, 3", f"s_add_u32 s{reg}, s{reg}, s54", f"s_lshl_b32 s{reg}, s{reg}, 2", f"s_add_u32 s{reg}, s{reg}, {WS_FL+base}")
def sync_setup(a, base, own, chk, one):
    a.I("s_lshl_b32 s16, s20, 8", f"s_add_u32 s16, s16, {base}", f"v_lshl_add_u32 v{own}, v1, 2, s16",
        "v_and_b32 v2, 3, v1", f"v_lshlrev_b32 v{chk}, 8, v2", f"v_lshl_add_u32 v{chk}, v1, 2, v{chk}", f"v_add_u32 v{chk}, {base}, v{chk}",
        f"v_mov_b32 v{one}, 1", "s_mov_b32 s53, 0")
def sync_block(a, own, chk, one, tmp):
    _n[0] += 1; lab = f"SY{_n[0]}"
    a.I(f"ds_add_u32 v{own}, v{one}", "s_add_u32 s53, s53, 1")
    a.L(lab)
    a.I(f"ds_read_b32 v{tmp}, v{chk}", "s_waitcnt lgkmcnt(0)", f"v_cmp_gt_u32 vcc, s53, v{tmp}", f"s_cbranch_vccnz {lab}")
def xsel(a, dst):
    a.I("v_and_b32 v2, 15, v1", f"v_lshlrev_b32 v{dst}, 11, v2", "v_bfe_u32 v2, v1, 4, 1", f"v_lshl_add_u32 v{dst}, v2, 5, v{dst}",
        "v_lshrrev_b32 v2, 5, v1", f"v_lshl_add_u32 v{dst}, v2, 4, v{dst}")
def is_vm(x): return x.startswith("buffer") or x.startswith("global")
def groups_of(dm):
    gs = []; cur = []
    for x in dm:
        cur.append(x)
        if is_vm(x): gs.append(cur); cur = []
    gs[-1] += cur
    return gs
def mixmem(rd, dm, dma_first=True):
    if not rd or not dm: return rd + dm
    gs = groups_of(dm)
    pre = [x for x in rd if x.startswith("v_")]; ds = [x for x in rd if x.startswith("ds_")]; post = [x for x in rd if x.startswith("s_")]
    o = list(pre); n = len(gs); per = len(ds) // n
    for g in range(n):
        part = ds[g * per:(g + 1) * per if g < n - 1 else len(ds)]
        o += (gs[g] + part) if dma_first else (part + gs[g])
    return o + post
class Log:
    def __init__(self): self.l = []
    def note(self, instrs, st): self.l += [st] * sum(map(is_vm, instrs)); return instrs
    def cnt(self, st):
        last = max([i for i, s_ in enumerate(self.l) if s_ is not None and s_ <= st], default=-1)
        return len(self.l) - 1 - last

WA0, WA1, WST = 116, 118, 120
def w_dma(slotreg):
    return [f"s_add_u32 m0, s{slotreg}, s46", "s_nop 0",
            f"global_load_lds_dwordx4 {vr(WA0,2)}, off" + OPT.get("wm", "").replace("+", " "), f"global_load_lds_dwordx4 {vr(WA1,2)}, off offset:1024" + OPT.get("wm", "").replace("+", " "),
            f"v_lshl_add_u64 {vr(WA0,2)}, {vr(WST,2)}, 0, {vr(WA0,2)}", f"v_lshl_add_u64 {vr(WA1,2)}, {vr(WST,2)}, 0, {vr(WA1,2)}"]

STREAM = ["buffer_load_dword v122, v114, s[88:91], s100 offen", "buffer_load_dword v123, v114, s[92:95], s100 offen",
          "buffer_load_dword v124, v115, s[96:99], s101 offen"]
def phase0(a):
    LW, LX, LR = 49152, 114688, 147456
    srd(a, 24, 4, 2048 * 2048)
    for i in range(4): a.I(f"buffer_load_dwordx4 {vr(8+4*i,4)}, v3, s[24:27], s19 offen offset:{i*1024}")
    a.I("v_mov_b32 v7, 0", "buffer_load_dword v6, v7, s[56:59], 0 offen sc1")
    TP = 0; NH = int(OPT.get("nh", 5))
    if NH:
        a.I("s_cmp_lt_u32 s20, 4", "s_cbranch_scc1 P0_NS", "s_cmp_eq_u32 s20, 7", "s_cbranch_scc1 P0_NS",
            "s_cmp_eq_u32 s20, 4", "s_cselect_b64 s[12:13], s[40:41], s[42:43]", f"s_mov_b32 s16, {NH*896}",
            "s_cmp_eq_u32 s20, 6", "s_cselect_b64 s[12:13], s[6:7], s[12:13]", f"s_cselect_b32 s16, {8192 if 'qf' in EXP else NH*256}, s16")
        srd(a, 88, 12, 1024 * 1024 * 2)
        a.I("v_lshlrev_b32 v114, 7, v1", "s_sub_u32 s17, s16, 128", "v_min_u32 v114, s17, v114", "s_mul_i32 s16, s16, s2",
            "buffer_load_dword v122, v114, s[88:91], s16 offen")
        a.L("P0_NS")
    a.I("s_bfe_u32 s22, s2, 0x10003", "s_cmp_eq_u32 s22, 0", "s_cselect_b64 s[12:13], s[8:9], s[10:11]")
    srd(a, 28, 12, 65536)
    a.I("s_lshl_b32 s17, s20, 13")
    a.I("s_and_b32 s16, s2, 7", "s_lshl_b32 s16, s16, 2", "s_bfe_u32 s21, s2, 0x20003", "s_add_u32 s21, s21, s16",
        "s_and_b32 s23, s20, 3", "s_cmp_lt_u32 s20, 4", "s_cselect_b64 s[12:13], s[42:43], s[40:41]", "s_cselect_b32 s18, 32, 0",
        "s_cselect_b32 s46, 8192, 0", "s_lshl_b32 s16, s23, 11", "s_add_u32 s46, s46, s16", "s_add_u32 s46, s46, 16384",
        "v_lshrrev_b32 v2, 4, v1", "s_lshl_b32 s16, s23, 3", "v_add_u32 v4, s16, v2",
        "s_and_b32 s16, s23, 1", "s_lshl_b32 s16, s16, 2", "v_add_u32 v2, s16, v2", "v_bfe_u32 v5, v1, 1, 3", "v_xor_b32 v2, v2, v5",
        "v_cmp_eq_u32 vcc, 7, v2", "v_mov_b32 v5, 7168", "v_mov_b32 v112, 2048", f"v_cndmask_b32 v{WST}, v5, v112, vcc",
        f"v_mul_lo_u32 v4, v4, v{WST}",
        "s_mul_i32 s16, s21, 224", "v_lshl_add_u32 v5, v2, 5, s16", "s_lshl_b32 s16, s21, 6", "s_add_u32 s16, s16, s18",
        "v_mov_b32 v112, s16", "v_cndmask_b32 v5, v5, v112, vcc", "v_add_u32 v4, v4, v5",
        "v_and_b32 v2, 1, v1", "v_lshl_add_u32 v4, v2, 4, v4",
        "v_mov_b32 v5, s12", "v_mov_b32 v112, s6", f"v_cndmask_b32 v{WA0}, v5, v112, vcc",
        "v_mov_b32 v5, s13", "v_mov_b32 v112, s7", f"v_cndmask_b32 v{WA0+1}, v5, v112, vcc",
        "v_mov_b32 v5, 0", f"v_lshl_add_u64 {vr(WA0,2)}, v[4:5], 0, {vr(WA0,2)}",
        f"v_lshlrev_b32 v4, 2, v{WST}", "v_add_u32 v4, -1024, v4" if False else "v_subrev_u32 v4, 1024, v4",
        f"v_lshl_add_u64 {vr(WA1,2)}, v[4:5], 0, {vr(WA0,2)}",
        f"v_lshlrev_b32 v{WST}, 5, v{WST}", f"v_mov_b32 v{WST+1}, 0", "s_mov_b32 s47, 0")
    srd(a, 24, 12, 1024 * 3584 * 2)
    a.I("v_lshrrev_b32 v2, 1, v1", "s_lshl_b32 s16, s23, 5", "s_add_u32 s16, s16, 32", "v_add_u32 v2, s16, v2",
        "v_mul_u32_u24 v112, 7168, v2", "v_and_b32 v2, 1, v1", "v_mul_u32_u24 v2, 208, v2", "v_add_u32 v112, v112, v2",
        "s_mul_i32 s44, s21, 224")
    a.I("s_mov_b32 s21, s45", "s_lshl_b32 s23, s21, 15", "s_mov_b32 s36, 0xffff0000")
    if NH: a.I("s_sub_u32 s16, s20, 4", "s_cmp_lt_u32 s16, 3", "s_cbranch_scc0 P0_X1", "s_waitcnt vmcnt(2)", "s_branch P0_X2", "P0_X1:", "s_waitcnt vmcnt(1)", "P0_X2:")
    else: a.I("s_waitcnt vmcnt(1)")
    ts(a, 9)
    late = [f"s_add_u32 m0, s17, {LW}", "s_add_u32 s18, s17, 4096"]
    late += [f"buffer_load_dwordx4 v3, s[28:31], s17 offen offset:{i*1024} lds" for i in range(4)]
    late += [f"s_add_u32 m0, s18, {LW}", "s_nop 0"]
    late += [f"buffer_load_dwordx4 v3, s[28:31], s18 offen offset:{i*1024} lds" for i in range(4)]
    late += w_dma(47) + (["buffer_load_dword v113, v112, s[24:27], s44 offen"] if not NH else [])
    if TP: late += ["s_cmp_lt_u32 s20, 4", "s_cbranch_scc1 P0_NS"] + STREAM + ["P0_NS:"]
    mark = len(a.items)
    for r in range(2):
        for d in range(8):
            src = 8 + 8 * r + d
            a.I(f"v_lshlrev_b32 v{32+16*r+2*d}, 16, v{src}", f"v_and_b32 v{33+16*r+2*d}, s36, v{src}")
    def tree2(bases, sq):
        T_ = [(24 + i, bases[i], 64 + 8 * i) for i in range(2)]
        for dst, base, t in T_:
            for i in range(8):
                a.I(f"v_mul_f32 v{t+i}, v{base+2*i}, v{base+2*i}" if sq else f"v_add_f32 v{t+i}, v{base+2*i}, v{base+2*i+1}")
        if sq:
            for dst, base, t in T_:
                for i in range(8): a.I(f"v_fmac_f32 v{t+i}, v{base+2*i+1}, v{base+2*i+1}")
        for s_ in (4, 2):
            for dst, base, t in T_:
                for i in range(s_): a.I(f"v_add_f32 v{t+i}, v{t+i}, v{t+i+s_}")
        for dst, base, t in T_: a.I(f"v_add_f32 v{dst}, v{t}, v{t+1}")
    def wavered(rs, ss):
        for mod in ("row_shr:1 row_mask:0xf bank_mask:0xf bound_ctrl:0", "row_shr:2 row_mask:0xf bank_mask:0xf bound_ctrl:0",
                    "row_shr:4 row_mask:0xf bank_mask:0xf bound_ctrl:0", "row_shr:8 row_mask:0xf bank_mask:0xf bound_ctrl:0",
                    "row_bcast:15 row_mask:0xa bank_mask:0xf", "row_bcast:31 row_mask:0xc bank_mask:0xf"):
            for r in rs: a.I(f"v_add_f32_dpp v{r}, v{r}, v{r} {mod}")
        for r, s_ in zip(rs, ss): a.I(f"v_readlane_b32 s{s_}, v{r}, 63")
    if "p0st" in EXP: ts(a, 1)
    tree2((32, 48), False)
    wavered((24, 25), (40, 41))
    if "p0st" in EXP: ts(a, 2)
    a.I(f"s_mov_b32 s37, {f32(1.0/1024)}")
    a.I("v_mov_b32 v26, s40", "v_mov_b32 v27, s41", "v_mul_f32 v26, s37, v26", "v_mul_f32 v27, s37, v27")
    for r in range(2):
        for i in range(16): a.I(f"v_sub_f32 v{80+16*r+i}, v{32+16*r+i}, v{26+r}")
    tree2((80, 96), True)
    wavered((24, 25), (42, 43))
    a.I("v_mov_b32 v28, s42", "v_mov_b32 v29, s43", "v_mul_f32 v28, s37, v28", "v_mul_f32 v29, s37, v29")
    def rnd(*rs):
        for r in rs: a.I(f"v_cvt_pk_bf16_f32 v{r}, v{r}, v{r}")
        for r in rs: a.I(f"v_lshlrev_b32 v{r}, 16, v{r}")
    a.I(f"s_mov_b32 s38, {f32(1e-5)}")
    rnd(28, 29, 26, 27)
    a.I("v_add_f32 v28, s38, v28", "v_add_f32 v29, s38, v29"); rnd(28, 29)
    a.I("v_sqrt_f32 v28, v28", "v_sqrt_f32 v29, v29"); rnd(28, 29)
    a.I("v_rcp_f32 v28, v28", "v_rcp_f32 v29, v29")
    if "p0st" in EXP: ts(a, 3)
    P_ = [(r, d, 32 + 16 * r + 2 * d) for r in range(2) for d in range(8)]
    for r, d, b in P_: a.I(f"v_sub_f32 v{b}, v{b}, v{26+r}", f"v_sub_f32 v{b+1}, v{b+1}, v{26+r}")
    for r, d, b in P_: a.I(f"v_cvt_pk_bf16_f32 v{80+8*r+d}, v{b}, v{b+1}")
    for r, d, b in P_: a.I(f"v_lshlrev_b32 v{b}, 16, v{80+8*r+d}", f"v_and_b32 v{b+1}, s36, v{80+8*r+d}")
    for r, d, b in P_: a.I(f"v_mul_f32 v{b}, v{b}, v{28+r}", f"v_mul_f32 v{b+1}, v{b+1}, v{28+r}")
    for r, d, b in P_: a.I(f"v_cvt_pk_bf16_f32 v{8+8*r+d}, v{b}, v{b+1}")
    body = a.items[mark:]; del a.items[mark:]
    gs = groups_of(late); step = int(OPT.get("lst", 24))
    if TP: gs[-3:] = [gs[-3] + gs[-2] + gs[-1]]
    for i, it in enumerate(body):
        if i % step == 0 and gs: a.extend(gs.pop(0))
        a.items.append(it)
    assert not gs
    if "p0st" in EXP: ts(a, 4)
    a.I("s_lshl_b32 s16, s20, 1", "v_and_b32 v2, 15, v1", "v_xor_b32 v2, s16, v2", "v_lshlrev_b32 v4, 8, v1", "v_lshl_add_u32 v4, v2, 4, v4",
        f"v_add_u32 v4, {LX}, v4", "v_xor_b32 v25, 16, v4")
    for r in range(2):
        for p in range(2): a.I(f"ds_write_b128 v{25 if r else 4}, {vr(8+8*r+4*p,4)} offset:{p*16384}")
    a.I("v_lshrrev_b32 v5, 4, v1", "v_lshlrev_b32 v2, 4, v5", "v_xor_b32 v26, v2, v3",
        "s_lshl_b32 s16, s20, 12", f"s_add_u32 s16, s16, {LX}", "v_add_u32 v30, s16, v26",
        "v_xor_b32 v27, 64, v30", "v_xor_b32 v28, 0x80, v30", "v_xor_b32 v29, 0xc0, v30",
        "v_lshlrev_b32 v31, 9, v5", "v_bfe_u32 v2, v1, 2, 2", "v_lshl_add_u32 v31, v2, 6, v31",
        "v_and_b32 v2, 3, v1", "v_lshl_add_u32 v31, v2, 3, v31", f"s_add_u32 s16, s17, {LW}", "v_add_u32 v31, s16, v31",
        "s_lshl_b32 s16, s22, 14", "s_lshl_b32 s18, s20, 12", "s_add_u32 s16, s16, s18",
        "s_add_u32 s39, s23, s16", f"s_add_u32 s16, s16, {LX}", "v_add_u32 v24, s16, v26",
        "v_xor_b32 v25, 64, v24", "v_xor_b32 v4, 0x80, v24", "v_xor_b32 v26, 0xc0, v24",
        "s_waitcnt lgkmcnt(0)", "s_barrier")
    ts(a, 10)
    a.I("s_cmp_ge_u32 s20, 4", "s_cbranch_scc1 P0_NC")
    for i, r in enumerate((24, 25, 4, 26)): a.I(f"ds_read_b128 {vr(8+4*i,4)}, v{r} offset:{i*1024}")
    for i in range(4): a.I(f"s_waitcnt lgkmcnt({3-i})", f"buffer_store_dwordx4 {vr(8+4*i,4)}, v3, s[32:35], s39 offen offset:{i*1024} sc1")
    a.I(f"s_waitcnt vmcnt({6 if NH else 7})", "s_branch P0_C")
    a.L("P0_NC")
    a.I(f"s_waitcnt vmcnt({2 if NH else 3})")
    a.L("P0_C")
    a.I("v_readfirstlane_b32 s55, v6")
    for j in range(4):
        a.I(f"ds_read_b128 {vr(32+4*j,4)}, v{(30, 27, 28, 29)[j]} offset:{j*1024}")
        for d in range(2):
            for rd in range(2):
                a.I(f"ds_read_b64_tr_b16 {vr(64+8*j+4*d+2*rd,2)}, v31 offset:{j*2048+rd*256+d*32}")
    a.I("s_waitcnt lgkmcnt(0)", "s_cmp_eq_u32 s22, 0", "s_cbranch_scc0 P0_V")
    for j in range(4):
        for d in range(2): a.I(mfma16(96 + 4 * d, 64 + 8 * j + 4 * d, 32 + 4 * j, "0" if j == 0 else None))
    a.I("s_branch P0_R")
    a.L("P0_V")
    for j in range(4):
        for d in range(2): a.I(mfma16(96 + 4 * d, 32 + 4 * j, 64 + 8 * j + 4 * d, "0" if j == 0 else None))
    a.L("P0_R")
    a.I("s_lshl_b32 s16, s20, 11", f"s_add_u32 s16, s16, {LR}", "v_add_u32 v4, s16, v3")
    wave_flag(a, 18, FL_X)
    for d in range(2): a.I(f"ds_write_b128 v4, {vr(96+4*d,4)} offset:{d*1024}")
    a.I("s_mov_b32 s17, 0x40000")
    a.L("P0_TAG")
    a.I("s_cmp_eq_u32 s55, 0", "s_cbranch_scc1 P0_TAGLD",
        "s_sub_u32 s16, s48, s55", "s_add_u32 s16, s16, 3000", "s_cmp_lt_u32 s16, 6000", "s_cbranch_scc1 P0_TAGOK",
        "s_cmp_lt_u32 s17, 0x3f800", "s_cbranch_scc1 P0_TAGOK")
    a.L("P0_TAGLD")
    a.I("buffer_load_dword v6, v7, s[56:59], 0 offen sc1", "s_waitcnt vmcnt(0)", "v_readfirstlane_b32 s55, v6",
        "s_sub_u32 s17, s17, 1", "s_cmp_lg_u32 s17, 0", "s_cbranch_scc1 P0_TAG")
    a.L("P0_TAGOK")
    a.I("s_cmp_ge_u32 s20, 4", "s_cbranch_scc1 P0_NF", "s_waitcnt vmcnt(0)")
    set_flag(a, 18)
    a.L("P0_NF")
    a.I("s_waitcnt lgkmcnt(0)", "s_barrier")
    a.I("s_cmp_lg_u32 s20, 0", "s_cbranch_scc1 P0_END")
    a.I(f"v_add_u32 v4, {LR}, v3")
    for w in range(8):
        a.I(f"ds_read_b128 {vr(32+8*w,4)}, v4 offset:{w*2048}", f"ds_read_b128 {vr(36+8*w,4)}, v4 offset:{w*2048+1024}")
    a.I("s_waitcnt lgkmcnt(0)")
    for s_ in (4, 2, 1):
        for w in range(s_):
            for i in range(8): a.I(f"v_add_f32 v{32+8*w+i}, v{32+8*w+i}, v{32+8*(w+s_)+i}")
    for d in range(4): a.I(f"v_cvt_pk_bf16_f32 v{8+d}, v{32+2*d}, v{33+2*d}")
    a.I("s_lshr_b32 s16, s21, 1", "s_lshl_b32 s19, s16, 12", f"s_add_u32 s19, s19, {WS_KV}",
        "s_and_b32 s16, s21, 1", "s_lshl_b32 s16, s16, 10", "s_add_u32 s19, s19, s16",
        "s_cmp_eq_u32 s22, 0", "s_cbranch_scc0 P0_SV",
        "buffer_store_dwordx4 v[8:11], v3, s[32:35], s19 offen sc1", "s_branch P0_KF")
    a.L("P0_SV")
    a.I("v_and_b32 v2, 1, v5", "v_lshlrev_b32 v4, 9, v2", "v_and_b32 v2, 15, v1", "v_lshl_add_u32 v4, v2, 4, v4",
        "v_lshrrev_b32 v2, 1, v5", "v_lshl_add_u32 v4, v2, 3, v4",
        "buffer_store_dwordx2 v[8:9], v4, s[32:35], s19 offen offset:2048 sc1",
        "buffer_store_dwordx2 v[10:11], v4, s[32:35], s19 offen offset:2304 sc1")
    a.L("P0_KF")
    if "kvearly" in EXP:
        a.I("s_lshl_b32 s18, s2, 2", f"s_add_u32 s18, s18, {WS_FL+FL_KV}", "s_waitcnt vmcnt(0)")
        set_flag(a, 18)
    a.L("P0_END")

def kv_groups():
    gs = []
    for g in range(2):
        for i in range(4):
            o = [f"s_add_u32 m0, s25, {g*4096}", f"s_add_u32 s26, s24, {g*4096}"] if i == 0 else []
            gs.append(o + [f"buffer_load_dwordx4 v3, s[36:39], s26 offen offset:{i*1024} lds"])
    gs[-1] += ["s_add_u32 s24, s24, 32768", "s_xor_b32 s25, s25, 32768"]
    return gs

def emit_loop(a, label, bodies):
    best = (0, 1)
    i = 0
    while i < len(bodies):
        j = i
        while j < len(bodies) and bodies[j] == bodies[i]: j += 1
        if j - i > best[1] - best[0]: best = (i, j)
        i = j
    for k in range(best[0]): a.extend(bodies[k])
    a.I(f"s_mov_b32 s51, {best[1]-best[0]}")
    a.L(label)
    a.extend(bodies[best[0]])
    a.I("s_sub_u32 s51, s51, 1", "s_cmp_lg_u32 s51, 0", f"s_cbranch_scc1 {label}")
    for k in range(best[1], len(bodies)): a.extend(bodies[k])

def g1(a):
    NST = 32; R = 5; SLOT = 32768
    ACC = 128; FA = 64; FW = 96
    def acc(h, u, t): return ACC + (t * 4 + h * 2 + u) * 4
    a.I("s_and_b32 s16, s2, 7", "s_lshl_b32 s16, s16, 2", "s_bfe_u32 s21, s2, 0x20003", "s_add_u32 s21, s21, s16",
        "s_lshr_b32 s22, s2, 5", "s_and_b32 s23, s20, 3", "v_add_u32 v10, 31744, v3",
        "s_lshl_b32 s16, s22, 4", "s_lshl_b32 s17, s20, 1", "s_add_u32 s16, s16, s17", "s_lshl_b32 s44, s16, 15",
        "s_lshl_b32 s45, s20, 11", "s_mov_b32 s47, 0", "s_mov_b32 s50, 0", f"s_mov_b32 s52, {SLOT}",
        "s_lshl_b32 s18, s22, 5", "s_lshr_b32 s16, s20, 2", "s_lshl_b32 s16, s16, 4", "s_add_u32 s18, s18, s16",
        "s_lshl_b32 s16, s23, 1", "s_add_u32 s18, s18, s16", "s_lshl_b32 s18, s18, 5", f"s_add_u32 s18, s18, {WS_FL+FL_X}",
        "v_and_b32 v2, 3, v1", "v_lshlrev_b32 v8, 2, v2", "v_bfe_u32 v2, v1, 2, 1", "v_lshl_add_u32 v8, v2, 5, v8",
        "v_lshrrev_b32 v2, 3, v1", "v_lshl_add_u32 v8, v2, 8, v8")
    PD = int(OPT.get("pd", 5))
    RH = int(OPT.get("rh", 1)); PX = int(OPT.get("px", 0))
    if PD:
        a.I(f"s_load_dwordx2 s[4:5], s[0:1], {KA_WQ}", f"s_load_dwordx2 s[6:7], s[0:1], {KA_WD}", f"s_load_dwordx2 s[8:9], s[0:1], {KA_WO}",
            f"v_min_u32 v2, {7*RH-1}, v1", "v_lshlrev_b32 v14, 7, v2", f"s_mul_i32 s16, s2, {896*RH}", "v_add_u32 v14, s16, v14",
            f"s_mov_b32 s31, {32*7168*RH}", f"s_mov_b32 s30, {PD*32*7168}", "s_cmp_eq_u32 s23, 0", "s_cbranch_scc1 G1_T0",
            *([f"s_mov_b32 s30, {PX*32*7168}", "v_bfe_u32 v2, v1, 2, 2", "s_lshl_b32 s16, s22, 2", "v_add_u32 v2, s16, v2", "v_mul_u32_u24 v14, 7168, v2",
               "v_and_b32 v2, 3, v1", "v_min_u32 v2, 2, v2", "v_mul_u32_u24 v2, 104, v2", "s_mul_i32 s16, s21, 224", "v_add3_u32 v14, v14, v2, s16",
               "s_cmp_eq_u32 s23, 2", "s_cbranch_scc1 G1_T0"] if PX else []),
            "s_mov_b32 s30, 0x7f000000", "s_mov_b32 s31, 0", "s_cmp_ge_u32 s20, 4", "s_cbranch_scc1 G1_T0", "s_waitcnt lgkmcnt(0)",
            "s_cmp_eq_u32 s20, 1", "s_cbranch_scc0 G1_T2")
        srd(a, 24, 4, 1024 * 1024 * 2)
        a.I("v_and_b32 v2, 1, v1", "v_lshlrev_b32 v14, 7, v2", "s_lshl_b32 s16, s2, 8", "v_add_u32 v14, s16, v14",
            f"s_mov_b32 s31, {32*2048}", f"s_mov_b32 s30, {PD*32*2048}", "s_branch G1_T0")
        a.L("G1_T2")
        if "nolate" not in EXP:
            a.I("s_cmp_eq_u32 s20, 2", "s_cbranch_scc0 G1_T3")
            srd(a, 24, 6, 3584 * 1024 * 2)
            if "lwd" in EXP: a.I("v_min_u32 v2, 8, v1", "v_lshlrev_b32 v14, 7, v2", "s_mov_b32 s31, 1152", "s_mul_i32 s30, s2, 28672")
            a.I("s_branch G1_T0")
            a.L("G1_T3")
            srd(a, 24, 8, 1024 * 1024 * 2)
            a.I("v_min_u32 v2, 2, v1", "v_lshlrev_b32 v14, 7, v2", "s_mov_b32 s31, 384", "s_lshl_b32 s30, s2, 13")
        a.L("G1_T0")
    def touch(): return ["buffer_load_dword v16, v14, s[24:27], s30 offen" + OPT.get("tm", "").replace("+", " "), "s_add_u32 s30, s30, s31"] if PD else []
    def touch0(): return []
    if "nopp" in EXP: a.extend(poll(18, 16, 8))
    else:
        a.extend(lanes(16) + ["s_mov_b32 s17, 0x20000", poll_load(18, 8, 17), "s_sleep 3", "G1_PP:", poll_load(18, 8, 18), "s_waitcnt vmcnt(1)",
                 "v_cmp_ne_u32 vcc, s55, v17", "s_cbranch_vccz G1_PD", poll_load(18, 8, 17), "s_waitcnt vmcnt(1)",
                 "v_cmp_ne_u32 vcc, s55, v18", "s_cbranch_vccz G1_PD", "s_sub_u32 s17, s17, 1", "s_cmp_lg_u32 s17, 0", "s_cbranch_scc1 G1_PP",
                 "G1_PD:", "s_mov_b64 exec, -1"])
    ts(a, 11)
    def adv(reg): return [f"s_add_u32 s{reg}, s{reg}, {SLOT}", f"s_cmp_eq_u32 s{reg}, {SLOT*R}", f"s_cselect_b32 s{reg}, 0, s{reg}"]
    def dma_act():
        return ["s_add_u32 m0, s47, s45", "s_nop 0", "buffer_load_dwordx4 v3, s[32:35], s44 offen lds",
                "buffer_load_dwordx4 v10, s[32:35], s44 offen offset:1024 lds", "s_add_u32 s44, s44, 1024"] + adv(47)
    def dma_w(): return w_dma(52) + adv(52)
    def rdaddr():
        return ["s_lshr_b32 s17, s20, 2", "s_lshl_b32 s16, s17, 13", "v_add_u32 v6, s16, v3",
                "s_and_b32 s19, s21, 1", "s_lshl_b32 s16, s23, 1", "s_add_u32 s40, s16, s19", "s_add_u32 s41, s40, 1",
                "s_mul_i32 s16, s19, 6", "s_sub_u32 s16, 6, s16", "s_cmp_eq_u32 s23, 3", "s_cselect_b32 s40, s16, s40", "s_cselect_b32 s41, 7, s41",
                "v_lshrrev_b32 v2, 4, v1", "v_lshlrev_b32 v7, 11, v2", "v_and_b32 v2, 1, v2", "v_lshlrev_b32 v12, 2, v2",
                "v_bfe_u32 v2, v1, 2, 2", "v_lshl_add_u32 v7, v2, 8, v7", "v_add_u32 v12, v12, v2",
                "v_and_b32 v2, 3, v1", "v_lshl_add_u32 v7, v2, 3, v7", "v_add_u32 v7, 16384, v7",
                "v_xor_b32 v2, s41, v12", "v_lshl_add_u32 v11, v2, 5, v7", "v_xor_b32 v2, s40, v12", "v_lshl_add_u32 v7, v2, 5, v7"]
    def reads():
        o = ["v_add_u32 v8, s50, v6", "v_add_u32 v9, s50, v7", "v_add_u32 v13, s50, v11"]
        for h in range(2):
            for u in range(2):
                for rd in range(2):
                    o.append(f"ds_read_b64_tr_b16 {vr(FW+(h*2+u)*4+2*rd,2)}, v{9 if u == 0 else 13} offset:{h*8192+rd*1024}")
        for t in range(8): o.append(f"ds_read_b128 {vr(FA+t*4,4)}, v8 offset:{t*1024}")
        return o + adv(50)
    def mm(first):
        return [mfma16(acc(h, u, t), FW + (h * 2 + u) * 4, FA + t * 4, "0" if first else None) for t in range(8) for h in range(2) for u in range(2)]
    a.I("s_cmp_ge_u32 s20, 4", "s_cbranch_scc1 G1_B")
    L = Log()
    NP0 = int(OPT.get("np0", 2))
    def proA(js): return [x for j in js for x in (L.note(dma_w(), j) if 0 < j < R - 1 else []) + L.note(dma_act(), j)]
    a.extend(proA(range(NP0)))
    if "kvearly" not in EXP:
        a.I("s_lshl_b32 s18, s2, 2", f"s_add_u32 s18, s18, {WS_FL+FL_KV}", "s_cmp_eq_u32 s20, 0", "s_cselect_b32 s18, s18, 0x7f000000")
        set_flag(a, 18); L.note(["buffer"], None)
    a.extend(rdaddr())
    a.I(f"s_waitcnt vmcnt({L.cnt(0)})", "s_barrier")
    a.extend(mixmem(reads(), proA(range(NP0, R)), False))
    E0 = "noe0" not in EXP
    a.I("s_waitcnt lgkmcnt(0)" if E0 else f"s_waitcnt vmcnt({L.cnt(1)}) lgkmcnt(0)", "s_barrier")
    ts(a, 12)
    kv = kv_groups()
    def bodyA(k, first=False):
        o = mm(first)
        if first and E0: o += [f"s_waitcnt vmcnt({L.cnt(1)})", "s_barrier"]
        dm = L.note([f"s_mov_b32 s18, {WS_FL+FL_KV}", poll_load(18, 3, 28, True)], None) if k == 27 else []
        dm += (L.note(dma_w(), k - 1 + R) if k - 1 + R < NST else []) + (L.note(dma_act() + touch(), k + R) if k + R < NST else [])
        if k + R < NST and PD: L.l[-1] = None
        if k == 28:
            o += poll(18, 64, 3, 28, True, preloaded=2)
            o += ["s_lshl_b32 s24, s20, 13", f"s_add_u32 s25, s24, {LKV}",
                  f"s_add_u32 s36, s32, {WS_KV}", "s_addc_u32 s37, s33, 0", "s_mov_b32 s38, 0x40000", "s_mov_b32 s39, 0x20000"]
            dm = L.note([x for g in kv for x in g], None)
        if k == 29: dm = L.note([x for g in kv for x in g], None)
        o += mixmem(reads() if k + 1 < NST else [], dm)
        if k + 1 < NST: o += [f"s_waitcnt vmcnt({L.cnt(k + 2)}) lgkmcnt(0)", "s_barrier"]
        return o
    emit_loop(a, "G1_A_LOOP", [bodyA(k, k == 0) for k in range(NST)])
    a.I("s_branch G1_EPI")
    a.L("G1_B")
    M = Log()
    def proB(js): return [x for j in js for x in (M.note(dma_w(), j) if j else []) + M.note(dma_act(), j)]
    a.extend(proB(range(min(NP0, R - 1))))
    a.extend(rdaddr())
    a.I(f"s_waitcnt vmcnt({M.cnt(0)})", "s_barrier")
    a.extend(proB(range(min(NP0, R - 1), R - 1)))
    a.I(*([] if E0 else [f"s_waitcnt vmcnt({M.cnt(1)})"]), "s_barrier")
    def bodyB(k, first=False):
        dm = M.note(dma_w() + dma_act(), k - 1 + R) + M.note(touch(), None) if k - 1 + R < NST else []
        o = mixmem(reads(), dm) + ([f"s_waitcnt vmcnt({M.cnt(1)})", "s_barrier"] if first and E0 else []) + ["s_waitcnt lgkmcnt(0)"] + mm(first)
        if k + 1 < NST: o += [f"s_waitcnt vmcnt({M.cnt(k + 2)})", "s_barrier"]
        return o
    emit_loop(a, "G1_B_LOOP", [bodyB(k, k == 0) for k in range(NST)])
    a.L("G1_EPI")
    ts(a, 1)
    a.I("s_lshl_b32 s16, s20, 8", f"s_add_u32 s16, s16, {LC}", "v_lshl_add_u32 v13, v1, 2, s16", "v_mov_b32 v12, 0", "ds_write_b32 v13, v12")
    wave_flag(a, 60, FL_H)
    a.I("s_lshl_b32 s16, s22, 4", "s_lshr_b32 s17, s20, 2", "s_lshl_b32 s17, s17, 3", "s_add_u32 s16, s16, s17", "s_mul_i32 s16, s16, 112",
        "s_mul_i32 s17, s21, 7", "s_add_u32 s17, s17, s40", "s_lshr_b32 s17, s17, 1", "s_add_u32 s16, s16, s17",
        "s_lshl_b32 s16, s16, 10", f"s_add_u32 s61, s16, {WS_H}", "s_cmp_lg_u32 s23, 3", "s_cbranch_scc1 G1_NQ")
    a.I(f"s_mov_b32 s18, {f32(QSCALE)}", "s_lshr_b32 s16, s20, 2", "s_lshl_b32 s16, s16, 13", f"s_add_u32 s16, s16, {LQ}",
        "v_add_u32 v9, s16, v3", "s_lshl_b32 s16, s19, 3", "s_add_u32 s61, s61, s16")
    for t in range(8):
        q0, q1 = acc(0, 1, t), acc(1, 1, t)
        for i in range(4): a.I(f"v_mul_f32 v{q0+i}, s18, v{q0+i}", f"v_mul_f32 v{q1+i}, s18, v{q1+i}")
        a.I(f"v_cvt_pk_bf16_f32 v{FA+4*t}, v{q0}, v{q0+1}", f"v_cvt_pk_bf16_f32 v{FA+4*t+1}, v{q0+2}, v{q0+3}",
            f"v_cvt_pk_bf16_f32 v{FA+4*t+2}, v{q1}, v{q1+1}", f"v_cvt_pk_bf16_f32 v{FA+4*t+3}, v{q1+2}, v{q1+3}",
            f"ds_write_b128 v9, {vr(FA+4*t,4)} offset:{t*1024}")
    a.L("G1_NQ")
    XE = "xlate" not in EXP
    if XE: a.I("s_cmp_lt_u32 s20, 4", "s_cbranch_scc1 G1_PK", "s_waitcnt lgkmcnt(0)", "s_barrier", "s_setprio 3", "G1_PK:")
    a.I("s_cmp_eq_u32 s23, 3", "s_cbranch_scc1 G1_EPQ")
    for t in reversed(range(8)):
        g, u = acc(0, 0, t), acc(1, 0, t)
        for i in range(8): a.I(f"v_max_f32 v{g+i}, 0, v{g+i}")
        for i in range(8): a.I(f"v_mul_f32 v{g+i}, v{g+i}, v{u+i}")
        for d in range(4): a.I(f"v_cvt_pk_bf16_f32 v{HP+4*t+d}, v{g+2*d}, v{g+2*d+1}")
    a.I("s_branch G1_X")
    a.L("G1_EPQ")
    for t in reversed(range(8)):
        g, u = acc(0, 0, t), acc(1, 0, t)
        for i in range(4): a.I(f"v_max_f32 v{g+i}, 0, v{g+i}")
        for i in range(4): a.I(f"v_mul_f32 v{g+i}, v{g+i}, v{u+i}")
        for d in range(2): a.I(f"v_cvt_pk_bf16_f32 v{HP+4*t+d}, v{g+2*d}, v{g+2*d+1}")
    a.L("G1_X")
    a.I("s_cmp_ge_u32 s20, 4", "s_cbranch_scc1 G1_X2", "s_lshl_b32 s16, s20, 11", "v_add_u32 v9, s16, v3")
    for t in range(8): a.I(f"ds_write_b128 v9, {vr(HP+4*t,4)} offset:{(t>>1)*8192+(t&1)*1024}")
    if XE: a.I("s_waitcnt lgkmcnt(0)", "s_barrier", "G1_X2:")
    else: a.I("G1_X2:", "s_waitcnt lgkmcnt(0)", "s_barrier")
    ts(a, 2)

def h_stores(a):
    _n[0] += 1; lab = f"HS{_n[0]}"
    a.I(f"s_sub_u32 s16, s61, {8*112*1024}", "s_cmp_eq_u32 s20, 3", f"s_cbranch_scc1 {lab}")
    for w, n in ((4, lab + "_D"), (2, None)):
        for t in range(8): a.I(f"buffer_store_dwordx{w} {vr(HP+4*t,w)}, v3, s[32:35], s61 offen{SC1}", f"s_add_u32 s61, s61, {112*1024}")
        a.I("s_waitcnt lgkmcnt(0)")
        for t in range(8): a.I(f"buffer_store_dwordx{w} {vr(192+4*t,w)}, v3, s[32:35], s16 offen{SC1}", f"s_add_u32 s16, s16, {112*1024}")
        if n: a.I(f"s_branch {n}"); a.L(lab)
    a.L(lab + "_D")

def attention(a):
    QR = [16, 24]; KB = [32, 48]; VB = [40, 56]; P = 64; SEL = 72; Lr = [76, 80]; S = [96, 112]; O = [128, 144]; C = [160, 176]
    a.I(f"s_add_u32 s36, s32, {WS_KV}", "s_addc_u32 s37, s33, 0", "s_mov_b32 s38, 0x40000", "s_mov_b32 s39, 0x20000")
    a.I("v_bfe_u32 v2, v1, 4, 1", "v_lshlrev_b32 v4, 10, v2", "v_lshrrev_b32 v2, 5, v1", "v_lshl_add_u32 v4, v2, 8, v4",
        "v_and_b32 v2, 15, v1", "v_lshl_add_u32 v4, v2, 4, v4",
        "s_lshl_b32 s16, s20, 12", f"s_add_u32 s16, s16, {LQ}", "v_add_u32 v5, s16, v4")
    for b in range(2):
        for ks in range(2): a.I(f"ds_read_b128 {vr(QR[b]+4*ks,4)}, v5 offset:{b*2048+ks*512}")
    a.I(f"v_add_u32 v6, {LKV}, v4", f"v_add_u32 v7, {LKV+2048}, v3")
    sync_setup(a, LC, 13, 14, 12)
    a.I("s_waitcnt vmcnt(8)")
    sync_block(a, 13, 14, 12, 15)
    def rdK(buf, off): return [f"ds_read_b128 {vr(KB[buf]+4*ks,4)}, v6 offset:{off+ks*512}" for ks in range(2)]
    def rdV(buf, off): return [f"ds_read_b128 {vr(VB[buf]+4*ks,4)}, v7 offset:{off+ks*1024}" for ks in range(2)]
    a.extend(rdK(0, 0) + rdV(0, 0))
    def rsum(b): return f"v_smfmac_f32_16x16x64_bf16 {vr(Lr[b],4)}, {vr(SEL,4)}, {vr(P,8)}, v84"
    a.I("v_and_b32 v2, 4, v1", "v_cmp_eq_u32 vcc, 0, v2", "v_mov_b32 v5, 0x3f803f80", "s_mov_b32 s28, 0", "v_and_b32 v2, 1, v1",
        f"v_cndmask_b32 v{SEL}, 0, v5, vcc", f"v_cndmask_b32 v{SEL+2}, v5, 0, vcc" if False else f"v_xor_b32 v{SEL+2}, v5, v{SEL}",
        f"v_mov_b32 v{SEL+1}, v{SEL}", f"v_mov_b32 v{SEL+3}, v{SEL+2}",
        "s_mov_b32 s16, 0xaaaaaaaa", "v_mul_lo_u32 v84, v2, s16", "v_or_b32 v84, 0x44444444, v84")
    a.I("s_waitcnt lgkmcnt(0)")
    ts(a, 3)
    for b in range(2):
        a.I(mfma32(S[b], KB[0], QR[b], "0"), mfma32(S[b], KB[0] + 4, QR[b] + 4))
    for b in range(2):
        for i in range(16): a.I(f"v_mov_b32 v{O[b]+i}, 0")
        for i in range(4): a.I(f"v_mov_b32 v{Lr[b]+i}, 0")
    for i in range(4): a.I(f"v_mov_b32 v{P+i}, 0", f"v_mov_b32 v{P+4+i}, 0", f"v_mov_b32 v{VB[1]+4+i}, 0")
    for b in range(2):
        s0 = S[b]; m = 8 + 2 * b
        a.I(f"v_max3_f32 v{m}, v{s0}, v{s0+1}, v{s0+2}")
        for i in range(3, 15, 2): a.I(f"v_max3_f32 v{m}, v{m}, v{s0+i}, v{s0+i+1}")
        a.I(f"v_max_f32 v{m}, v{m}, v{s0+15}", f"v_mov_b32 v{m+1}, v{m}")
    for b in range(2):
        m = 8 + 2 * b
        a.I(f"v_permlane32_swap_b32 v{m}, v{m+1}", f"v_max_f32 v{m}, v{m}, v{m+1}", f"v_sub_f32 v{C[b]}, 0, v{m}")
        for i in range(1, 16): a.I(f"v_mov_b32 v{C[b]+i}, v{C[b]}")
    a.I(mfma32(S[0], KB[0], QR[0], C[0]), mfma32(S[0], KB[0] + 4, QR[0] + 4))
    def tile(b, kbuf_next, vbuf, vprev, extra, dg):
        nb = 1 - b; s0 = S[b]
        ex = [f"v_exp_f32 v{s0+i}, v{s0+i}" for i in range(16)]
        cv = [f"v_cvt_pk_bf16_f32 v{P+d}, v{s0+2*d}, v{s0+2*d+1}" for d in range(8)]
        e = list(extra) + [None] * 4
        if "twow" not in EXP:
            o = [mfma32(S[nb], KB[kbuf_next], QR[nb], C[nb]), e[0]] + ex[0:2] + [e[1], ex[2]]
            o += [mfma32(O[nb], VB[vprev] + 4, P + 4), e[2]] + ex[3:6]
            o += [rsum(nb), e[3]] + ex[6:8]
            o += [mfma32(S[nb], KB[kbuf_next] + 4, QR[nb] + 4), cv[0], cv[1], ex[8], cv[2], cv[3], ex[9], ex[10]]
            o += [mfma32(O[b], VB[vbuf], P)] + ex[11:14]
        else:
            o = [mfma32(S[nb], KB[kbuf_next], QR[nb], C[nb]), e[0]] + ex[0:3]
            o += [mfma32(O[nb], VB[vprev] + 4, P + 4), e[1]] + ex[3:6]
            o += [rsum(nb)] + ex[6:8]
            o += [mfma32(S[nb], KB[kbuf_next] + 4, QR[nb] + 4), e[2], cv[0], cv[1], ex[8], cv[2], cv[3], ex[9], ex[10]]
            o += [mfma32(O[b], VB[vbuf], P), e[3]] + ex[11:14]
        o += (dg or []) + [ex[14], ex[15]] + cv[4:8]
        return [x for x in o if x]
    a.I(f"s_setprio {int(OPT.get('ap', 2))}", "s_nop 11")
    dg = kv_groups()
    ONEW = "twow" not in EXP
    def trip(first, sfx):
        def chk(tag):
            return ["v_cmp_gt_u32 vcc, s53, v15", "s_nop 0", f"s_cbranch_vccnz ATT_SP{tag}{sfx}", f"ATT_CT{tag}{sfx}:"]
        for kb in range(8):
            cur = kb & 1; nxt = 1 - cur
            arrive = ["ds_add_u32 v13, v12", "s_add_u32 s53, s53, 1"]
            if kb == 0 and not first: a.extend(chk(0))
            if kb == 6: a.I("s_waitcnt vmcnt(0)", *arrive)
            if kb == 7: a.extend(chk(7) + arrive)
            if kb == 7: a.I("v_xor_b32 v6, 0x8000, v6", "v_xor_b32 v7, 0x8000, v7")
            off = ((kb + 1) & 7) * 4096
            g0, g1 = (dg[2 * kb], dg[2 * kb + 1]) if kb < 4 and not first else (None, ["ds_read_b32 v15, v14"] if kb >= 6 else None)
            a.extend(tile(0, cur, cur, nxt, rdK(nxt, off) + rdV(nxt, off), g0))
            a.I("s_waitcnt lgkmcnt(0)" if ONEW else "s_waitcnt lgkmcnt(2)")
            a.extend(tile(1, nxt, cur, cur, [], g1))
            if kb == 7 and not first: a.I("s_add_u32 s28, s28, 1", "s_cmp_lg_u32 s28, 7")
            if not ONEW or kb >= 6: a.I("s_waitcnt lgkmcnt(0)")
    trip(True, "F")
    a.L("ATT_LOOP")
    trip(False, "")
    a.I("s_cbranch_scc1 ATT_LOOP")
    a.I(mfma32(O[1], VB[1] + 4, P + 4), rsum(1))
    ts(a, 4)
    for b in range(2): a.I(f"v_add_f32 v{Lr[b]}, v{Lr[b]}, v{Lr[b]+1}")
    a.I("s_setprio 3", f"s_mov_b32 s16, {f32(2.0**100)}")
    for b in range(2):
        a.I(f"v_max3_f32 v{8+b}, abs(v{O[b]}), abs(v{O[b]+1}), v{Lr[b]}", f"v_add_f32 v{10+b}, v{O[b]}, v{O[b]+1}")
    for i in range(2, 16, 2):
        for b in range(2):
            a.I(f"v_max3_f32 v{8+b}, v{8+b}, abs(v{O[b]+i}), abs(v{O[b]+i+1})", f"v_add3_u32 v2, v2, v2, v2" if False else f"v_add_f32 v{10+b}, v{10+b}, v{O[b]+i}",
                f"v_add_f32 v{86+b}, v{O[b]+i+1}, v{Lr[b]}" if i == 2 else f"v_add_f32 v{86+b}, v{86+b}, v{O[b]+i+1}")
    a.I("v_max_f32 v8, v8, v9", "v_add_f32 v10, v10, v11", "v_add_f32 v86, v86, v87", "v_add_f32 v9, v10, v86")
    a.I("v_cmp_nlt_f32 vcc, v8, s16", "v_cmp_u_f32 s[18:19], v9, v9", "s_or_b64 vcc, vcc, s[18:19]")
    if "force" in EXP: a.I("s_mov_b64 vcc, -1")
    a.I("s_cbranch_vccz ATT_FIN")
    for b in range(2):
        M = 10; AL = 11
        for i in range(16): a.I(f"v_mov_b32 v{O[b]+i}, 0")
        for i in range(4): a.I(f"v_mov_b32 v{Lr[b]+i}, 0")
        a.I(f"v_mov_b32 v{M}, {f32(-3.0e38)}", f"s_mov_b32 s29, 0")
        a.L(f"ATT_FB{b}")
        for ks in range(2):
            a.I(f"buffer_load_dwordx4 {vr(KB[0]+4*ks,4)}, v4, s[36:39], s29 offen offset:{ks*512}",
                f"buffer_load_dwordx4 {vr(VB[0]+4*ks,4)}, v3, s[36:39], s29 offen offset:{2048+ks*1024}")
        a.I("s_waitcnt vmcnt(0)")
        s0 = S[0]
        a.I(mfma32(s0, KB[0], QR[b], "0"), mfma32(s0, KB[0] + 4, QR[b] + 4))
        a.I(f"v_max3_f32 v8, v{s0}, v{s0+1}, v{M}")
        for i in range(2, 16, 2): a.I(f"v_max3_f32 v8, v8, v{s0+i}, v{s0+i+1}")
        a.I("v_mov_b32 v9, v8", "v_permlane32_swap_b32 v8, v9", "v_max_f32 v8, v8, v9",
            f"v_sub_f32 v{AL}, v{M}, v8", f"v_exp_f32 v{AL}, v{AL}", f"v_mov_b32 v{M}, v8")
        for i in range(16): a.I(f"v_sub_f32 v{s0+i}, v{s0+i}, v8")
        for i in range(16): a.I(f"v_exp_f32 v{s0+i}, v{s0+i}")
        for i in range(16): a.I(f"v_mul_f32 v{O[b]+i}, v{O[b]+i}, v{AL}")
        for i in range(4): a.I(f"v_mul_f32 v{Lr[b]+i}, v{Lr[b]+i}, v{AL}")
        for d in range(8): a.I(f"v_cvt_pk_bf16_f32 v{P+d}, v{s0+2*d}, v{s0+2*d+1}")
        a.I(mfma32(O[b], VB[0], P), mfma32(O[b], VB[0] + 4, P + 4), rsum(b))
        a.I("s_add_u32 s29, s29, 4096", f"s_cmp_lg_u32 s29, {64*4096}", f"s_cbranch_scc1 ATT_FB{b}")
        a.I(f"v_add_f32 v{Lr[b]}, v{Lr[b]}, v{Lr[b]+1}")
    a.L("ATT_FIN")
    a.I("v_mov_b32 v23, v13", "v_mov_b32 v24, v14", "v_mov_b32 v25, v12")
    a.I("v_bfe_u32 v2, v1, 4, 1", "v_lshlrev_b32 v5, 15, v2", "v_lshrrev_b32 v2, 5, v1", "v_lshl_add_u32 v5, v2, 8, v5",
        "v_and_b32 v2, 15, v1", "v_lshl_add_u32 v5, v2, 4, v5",
        "s_lshl_b32 s16, s22, 2", "s_add_u32 s16, s16, s20", "s_lshl_b32 s16, s16, 7", "s_add_u32 s16, s16, s21", "s_lshl_b32 s16, s16, 10",
        f"s_add_u32 s16, s16, {WS_O}", "s_add_u32 s17, s16, 65536")
    for b in range(2): a.I(f"v_rcp_f32 v{8+b}, v{Lr[b]}")
    for b in range(2):
        for i in range(16): a.I(f"v_mul_f32 v{O[b]+i}, v{O[b]+i}, v{8+b}")
        for d in range(8): a.I(f"v_cvt_pk_bf16_f32 v{S[b]+d}, v{O[b]+2*d}, v{O[b]+2*d+1}")
        for ks in range(2):
            a.I(f"buffer_store_dwordx4 {vr(S[b]+4*ks,4)}, v5, s[32:35], s{16+b} offen offset:{ks*512}{SC1}")

def down(a):
    R = 8; SLOT = 8192; NST = 56
    FW_ = [32, 64]; AR = 192; ACC = 128
    M32 = "d32" in EXP
    a.I(f"s_setprio {int(OPT.get('bp', 0))}", "s_lshl_b32 s16, s20, 11", "v_add_u32 v9, s16, v3")
    for t in range(8): a.I(f"ds_read_b128 {vr(192+4*t,4)}, v9 offset:{(t>>1)*8192+(t&1)*1024}")
    h_stores(a)
    a.I(f"s_load_dwordx2 s[8:9], s[0:1], {KA_WD}",
        "s_and_b32 s21, s2, 1",
        "s_bfe_u32 s16, s2, 0x10001", "s_lshl_b32 s16, s16, 3", "s_bfe_u32 s17, s2, 0x30003", "s_add_u32 s22, s16, s17",
        "s_bfe_u32 s16, s2, 0x10002", "s_lshl_b32 s16, s16, 2", "s_bfe_u32 s17, s2, 0x20006", "s_add_u32 s23, s16, s17",
        "s_lshl_b32 s46, s20, 11",
        "v_lshrrev_b32 v2, 4, v1", "s_lshl_b32 s16, s20, 3", "v_add_u32 v4, s16, v2", "v_lshlrev_b32 v4, 11, v4",
        "v_bfe_u32 v5, v1, 1, 3", *(["v_lshlrev_b32 v6, 1, v2", "v_xor_b32 v6, v6, v5", "v_mov_b32 v7, v6"] if M32 else ["v_xor_b32 v6, v2, v5", "v_xor_b32 v7, 4, v6"]),
        "v_and_b32 v2, 1, v1", "v_lshl_add_u32 v4, v2, 4, v4", "s_lshl_b32 s16, s23, 8", "v_add_u32 v4, s16, v4",
        f"v_add_u32 v5, {4*2048-1024}, v4",
        "v_lshl_add_u32 v4, v6, 5, v4", "v_lshl_add_u32 v5, v7, 5, v5",
        "s_mul_i32 s48, s21, %d" % (1792 * 2048), "s_waitcnt lgkmcnt(0)")
    srd(a, 24, 8, 3584 * 1024 * 2)
    def dma_w(st):
        return [f"s_add_u32 m0, s46, {(st % R) * SLOT}", "s_add_u32 s49, s48, 0",
                "buffer_load_dwordx4 v4, s[24:27], s49 offen lds", "s_add_u32 s48, s48, 65536",
                "buffer_load_dwordx4 v5, s[24:27], s49 offen offset:1024 lds"]
    def ld_a(st):
        r = AR + (st % R) * 8
        if M32: return [f"buffer_load_dwordx4 {vr(r,4)}, v10, s[32:35], s44 offen", f"buffer_load_dwordx4 {vr(r+4,4)}, v10, s[32:35], s44 offen offset:512",
                        "s_add_u32 s44, s44, 1024"]
        return [f"buffer_load_dwordx4 {vr(r,4)}, v3, s[32:35], s44 offen", f"buffer_load_dwordx4 {vr(r+4,4)}, v10, s[32:35], s44 offen",
                "s_add_u32 s44, s44, 1024"]
    L = Log()
    NW = int(OPT.get("nw", 2))
    for j in range(NW): a.extend(L.note(dma_w(j), ("w", j)))
    a.I(f"s_waitcnt vmcnt({2*NW})")
    ts(a, 9)
    set_flag(a, 60)
    LAG = int(OPT.get("lag", 2))
    for j in range(NW, R - LAG): a.extend(L.note(dma_w(j), ("w", j)))
    a.I("s_lshl_b32 s16, s22, 3", "s_lshl_b32 s17, s20, 1", "s_add_u32 s16, s16, s17", "s_mul_i32 s16, s16, 112",
        "s_mul_i32 s17, s21, 56", "s_add_u32 s16, s16, s17", "s_lshl_b32 s44, s16, 10", f"s_add_u32 s44, s44, {WS_H}",
        )
    if M32:
        a.I("v_bfe_u32 v2, v1, 4, 1", f"v_mul_u32_u24 v10, {112*1024}, v2", "v_lshrrev_b32 v8, 5, v1", "v_lshl_add_u32 v10, v8, 8, v10",
            "v_and_b32 v9, 15, v1", "v_lshl_add_u32 v10, v9, 4, v10",
            "v_lshlrev_b32 v12, 10, v8", "v_bfe_u32 v9, v1, 2, 2", "v_lshl_add_u32 v12, v9, 8, v12",
            "v_lshlrev_b32 v9, 1, v9", "v_xor_b32 v9, v9, v2", "v_lshl_add_u32 v12, v9, 5, v12",
            "v_and_b32 v9, 3, v1", "v_lshl_add_u32 v12, v9, 3, v12")
        for u in range(1, 4): a.I(f"v_xor_b32 v{12+u}, {64*u}, v12")
    else:
        a.I(f"v_add_u32 v10, {112*1024}, v3",
            "v_lshrrev_b32 v2, 4, v1", "v_lshlrev_b32 v12, 10, v2", "v_bfe_u32 v9, v1, 2, 2", "v_lshl_add_u32 v12, v9, 8, v12",
            "v_bfe_u32 v8, v1, 2, 3", "v_lshl_add_u32 v12, v8, 5, v12", "v_and_b32 v9, 3, v1", "v_lshl_add_u32 v12, v9, 3, v12")
        for u in range(1, 8): a.I(f"v_xor_b32 v{12+u}, {32*u}, v12")
    NT = 0
    if "wt2" in EXP:
        a.I("v_min_u32 v2, 55, v1", "v_lshlrev_b32 v24, 7, v2", "s_lshl_b32 s16, s2, 2", "s_add_u32 s16, s16, s20", "s_mul_i32 s16, s16, 7168",
            "buffer_load_dword v25, v24, s[24:27], s16 offen")
    if "wt" in EXP.split("_"):
        a.I("v_lshrrev_b32 v2, 1, v1", "v_lshlrev_b32 v24, 11, v2", "v_and_b32 v2, 1, v1", "v_lshl_add_u32 v24, v2, 7, v24",
            "s_and_b32 s16, s22, 7", "s_lshl_b32 s16, s16, 2", "s_add_u32 s16, s16, s20", "s_mul_i32 s16, s16, %d" % (56 * 2048),
            "s_mul_i32 s17, s21, %d" % (1792 * 2048), "s_add_u32 s16, s16, s17", "s_lshl_b32 s17, s23, 8", "s_add_u32 s16, s16, s17",
            f"s_add_u32 s17, s16, {24*2048}",
            "buffer_load_dword v25, v24, s[24:27], s16 offen", "buffer_load_dword v26, v24, s[24:27], s17 offen")
        NT = 2
    sync_setup(a, LC + 1024, 20, 21, 22)
    a.I("v_lshrrev_b32 v2, 4, v1", "v_bfe_u32 v8, v1, 2, 2", "v_lshl_add_u32 v9, v8, 3, v2", "v_lshlrev_b32 v9, 5, v9",
        "v_and_b32 v2, 3, v1", "v_lshl_add_u32 v9, v2, 2, v9",
        "s_lshr_b32 s18, s22, 1", "s_lshl_b32 s18, s18, 5", "s_lshl_b32 s16, s21, 2", "s_add_u32 s18, s18, s16", "s_lshl_b32 s18, s18, 5",
        f"s_add_u32 s18, s18, {WS_FL+FL_H+16}")
    PG = "nopg" not in EXP
    a.extend(poll(18, 8 if PG else 64, 9))
    ts(a, 3)
    L.l = []
    for j in range(R - 1): a.extend(L.note(ld_a(j), ("a", j)))
    if PG: a.extend(L.note([poll_load(18, 9, 24), "s_mov_b32 s45, 44"], ("f", 0)))
    def need(k):
        last = max([i for i, t in enumerate(L.l) if (t[0] in "af" and t[1] <= k) or (t[0] == "w" and t[1] <= k + 1 + LAG)], default=-1)
        return len(L.l) - 1 - last
    def reads(st):
        if M32: return [f"ds_read_b64_tr_b16 {vr(FW_[st&1]+(ks*4+nb)*4+2*rd,2)}, v{12+nb} offset:{(st % R)*SLOT+ks*2048+rd*4096}"
                        for ks in range(2) for nb in range(4) for rd in range(2)]
        return [f"ds_read_b64_tr_b16 {vr(FW_[st&1]+u*4+2*rd,2)}, v{12+u} offset:{(st % R)*SLOT+rd*4096}" for u in range(8) for rd in range(2)]
    sync_block(a, 20, 21, 22, 23)
    a.extend(reads(0))
    a.I("ds_read_b32 v23, v21", f"s_mov_b32 s53, {2 - LAG}", f"s_setprio {int(OPT.get('dp', 1))}")
    def body(k):
        if M32: m = [mfma32(ACC + nb * 16, FW_[k & 1] + (ks * 4 + nb) * 4, AR + (k % R) * 8 + ks * 4, "0" if k + ks == 0 else None) for ks in range(2) for nb in range(4)]
        else: m = [mfma16(ACC + (t * 8 + u) * 4, FW_[k & 1] + u * 4, AR + (k % R) * 8 + t * 4, "0" if k == 0 else None) for u in range(8) for t in range(2)]
        if k + 1 >= NST: return [f"s_waitcnt vmcnt({need(k)}) lgkmcnt(0)"] + m
        h0, h1 = (1, 7) if M32 else (2, 14)
        CP = "nocp" not in EXP and not PT
        o = (["s_setprio 3"] if CP else []) + [f"s_waitcnt vmcnt({need(k)}) lgkmcnt(0)", "v_cmp_gt_i32 vcc, s53, v23"]
        o += ([f"s_setprio {int(OPT.get('dp', 1))}"] if CP else []) + ["ds_add_u32 v20, v22", "s_add_u32 s53, s53, 1"]
        if PT: o += [f"s_setprio {1 if (k % R) < PT else 0}"]
        o += m[:h0] + [f"s_nop {2 - h0 - (1 if PT else 0)}"] * (2 - h0 - (1 if PT else 0) >= 0) + (["s_cbranch_vccnz @SPIN"] if "nosync" not in EXP else []) + ["@CONT:"]
        if TH and k % 4 == 2:
            o += ["s_setprio 3", "v_cmp_gt_u32 vcc, s47, v25", f"s_setprio {int(OPT.get('dp', 1))}", f"s_add_u32 s47, s47, {TH}", "s_min_u32 s47, s47, 17",
                  "s_cbranch_vccnz @TSP", "@TCT:"]
        if PG and k % 8 == 0 and k <= 40:
            o += ["s_lshr_b64 s[28:29], -1, s45", "s_setprio 3", "v_cmp_ne_u32 vcc, s55, v24", f"s_setprio {int(OPT.get('dp', 1))}",
                  "s_sub_u32 s45, s45, 10", "s_max_i32 s45, s45, 0", "s_and_b64 vcc, vcc, s[28:29]", "s_cbranch_scc1 @FSP", "@FCT:"]
        dm = (L.note(dma_w(k - LAG + R), ("w", k - LAG + R)) if k - LAG + R < NST else []) + (L.note(ld_a(k - 1 + R), ("a", k - 1 + R)) if k - 1 + R < NST else [])
        if PG and k % 8 == 4 and k <= 44: dm += L.note([poll_load(18, 9, 24)], ("f", k + 4))
        if "dnodma" in EXP: dm = []
        fill = mixmem(reads(k + 1), dm, False)
        FR = int(OPT.get("fr", 5 if M32 else 10))
        rd = reads(k + 1) + ["ds_read_b32 v23, v21"] + (["ds_read_b32 v25, v26"] if TH and k % 4 == 1 else [])
        gs = groups_of(dm) if dm else []
        if "vend" in EXP:
            o += interleave(m[h0:FR], rd)
            rest = m[FR:]
            for i, x in enumerate(rest):
                o += [x] + [y for g in gs[(len(gs) * i) // len(rest):(len(gs) * (i + 1)) // len(rest)] for y in g]
            return o
        n = len(m) - h0; nr = FR - h0
        for i, x in enumerate(m[h0:]):
            o += [x] + (rd[(len(rd) * i) // nr:(len(rd) * (i + 1)) // nr] if i < nr else [])
            o += [y for g in gs[(len(gs) * i) // n:(len(gs) * (i + 1)) // n] for y in g]
        return o
    PT = int(OPT.get("pt", 0))
    TH = int(OPT.get("th", 0))
    if TH: a.I("v_subrev_u32 v26, 1024, v21", f"s_mov_b32 s47, {int(OPT.get('th0', 3))}")
    bodies = [body(k) for k in range(NST)]
    U = R
    for head in range(0, R + U + 1):
        nl = (NST - R - head) // U
        if all(bodies[k] == bodies[head + (k - head) % U] for k in range(head, head + nl * U)): break
    else: raise AssertionError
    spins = []
    def emit(k):
        spins.append(k)
        a.extend([x.replace("@SPIN", f"DN_SP{k}").replace("@CONT", f"DN_CT{k}").replace("@FSP", f"DN_FS{k}").replace("@FCT", f"DN_FC{k}").replace("@TSP", f"DN_TS{k}").replace("@TCT", f"DN_TC{k}") for x in bodies[k]])
    for k in range(head): emit(k)
    a.I(f"s_mov_b32 s51, {nl}")
    a.L("DN_LOOP")
    for k in range(head, head + U): emit(k)
    a.I("s_sub_u32 s51, s51, 1", "s_cmp_lg_u32 s51, 0", "s_cbranch_scc1 DN_LOOP")
    for k in range(head + nl * U, NST): emit(k)
    ts(a, 4)
    a.I("s_setprio 3", "s_lshl_b32 s16, s22, 3", "s_lshl_b32 s17, s20, 1", "s_add_u32 s16, s16, s17", "s_lshl_b32 s16, s16, 5",
        "s_lshl_b32 s17, s23, 2", "s_add_u32 s16, s16, s17",
        "s_lshl_b32 s16, s16, 10", "s_lshl_b32 s17, s21, 22", "s_add_u32 s16, s16, s17", f"s_add_u32 s16, s16, {WS_P}")
    if M32:
        a.I("v_bfe_u32 v2, v1, 4, 1", "v_lshlrev_b32 v5, 15, v2", "v_lshrrev_b32 v2, 5, v1", "v_lshl_add_u32 v5, v2, 8, v5",
            "v_and_b32 v2, 15, v1", "v_lshl_add_u32 v5, v2, 4, v5")
        for nb in range(4):
            g = ACC + nb * 16
            for e in range(2):
                pk = 192 + (nb * 2 + e) * 4
                a.I(f"v_cvt_pk_bf16_f32 v{pk}, v{g+4*e}, v{g+4*e+1}", f"v_cvt_pk_bf16_f32 v{pk+1}, v{g+4*e+2}, v{g+4*e+3}",
                    f"v_cvt_pk_bf16_f32 v{pk+2}, v{g+8+4*e}, v{g+8+4*e+1}", f"v_cvt_pk_bf16_f32 v{pk+3}, v{g+8+4*e+2}, v{g+8+4*e+3}",
                    f"buffer_store_dwordx4 {vr(pk,4)}, v5, s[32:35], s16 offen offset:{nb*1024+e*512}{SC1}")
    else:
        for t in range(2):
            for c in range(4):
                g = ACC + (t * 8 + c * 2) * 4; pk = 192 + (t * 4 + c) * 4
                for d in range(4): a.I(f"v_cvt_pk_bf16_f32 v{pk+d}, v{g+2*d}, v{g+2*d+1}")
                a.I(f"buffer_store_dwordx4 {vr(pk,4)}, v3, s[32:35], s16 offen offset:{c*1024}{SC1}")
            a.I("s_add_u32 s16, s16, 32768")
    wave_flag(a, 60, FL_O)
    a.I("s_waitcnt vmcnt(0)")
    set_flag(a, 60)
    tl_dump(a, 13)
    a.I("s_endpgm")
    for k in spins:
        if k + 1 >= NST: continue
        if any("@TSP" in x for x in bodies[k]):
            a.L(f"DN_TS{k}")
            a.I("s_sleep 4", "ds_read_b32 v25, v26", "s_waitcnt lgkmcnt(0)", f"v_add_u32 v25, {TH}, v25", "v_cmp_gt_u32 vcc, s47, v25",
                f"s_cbranch_vccnz DN_TS{k}", f"s_branch DN_TC{k}")
        if any("@FSP" in x for x in bodies[k]):
            a.L(f"DN_FS{k}")
            a.I("s_mov_b32 s17, 0x40000")
            a.L(f"DN_FL{k}")
            a.I(poll_load(18, 9, 24), "s_waitcnt vmcnt(0)", "v_cmp_ne_u32 vcc, s55, v24", "s_and_b64 vcc, vcc, s[28:29]",
                f"s_cbranch_scc0 DN_FC{k}", "s_sleep 2", "s_sub_u32 s17, s17, 1", "s_cmp_lg_u32 s17, 0", f"s_cbranch_scc1 DN_FL{k}", f"s_branch DN_FC{k}")
        a.L(f"DN_SP{k}")
        a.I("ds_read_b32 v23, v21", "s_waitcnt lgkmcnt(0)", "v_add_u32 v23, 1, v23", "v_cmp_gt_i32 vcc, s53, v23",
            f"s_cbranch_vccnz DN_SP{k}", f"s_branch DN_CT{k}")

def wo(a):
    OA = 128; FW = [32, 48]; ACC = 64; XR = 96; P0 = 128; P1 = 144
    NE = 20; D = 16; SW = int(OPT.get("sw", 12))
    a.I(f"s_load_dwordx2 s[8:9], s[0:1], {KA_WO}", f"s_load_dwordx2 s[10:11], s[0:1], {KA_X}", f"s_load_dwordx2 s[12:13], s[0:1], {KA_OUT}",
        "s_bfe_u32 s16, s2, 0x20001", "s_lshl_b32 s16, s16, 2", "s_bfe_u32 s17, s2, 0x20003", "s_add_u32 s22, s16, s17",
        "s_and_b32 s16, s2, 1", "s_lshl_b32 s16, s16, 3", "s_lshr_b32 s17, s2, 5", "s_add_u32 s23, s16, s17",
        "v_lshrrev_b32 v2, 3, v1", "v_lshlrev_b32 v4, 11, v2",
        "v_lshrrev_b32 v2, 4, v1", "v_bfe_u32 v5, v1, 1, 2", "v_xor_b32 v2, v2, v5", "v_lshl_add_u32 v4, v2, 5, v4",
        "v_and_b32 v2, 1, v1", "v_lshl_add_u32 v4, v2, 4, v4", "s_lshl_b32 s16, s23, 7", "v_add_u32 v4, s16, v4")
    for i in range(1, 4): a.I(f"v_add_u32 v{4+i}, {i*(8*2048-1024)}, v4")
    a.I("s_lshl_b32 s16, s22, 2", "s_add_u32 s16, s16, s20", "s_lshl_b32 s44, s16, 16",
        "s_lshl_b32 s17, s23, 7", "s_add_u32 s42, s44, s17",
        "s_lshl_b32 s17, s23, 11", "s_add_u32 s43, s44, s17", f"s_add_u32 s43, s43, {WS_P}",
        f"s_add_u32 s44, s44, {WS_O}", "v_add_u32 v10, 0x8000, v3")
    wave_flag(a, 60, FL_O)
    a.I("s_waitcnt vmcnt(0) lgkmcnt(0)")
    set_flag(a, 60)
    srd(a, 24, 8, 1024 * 1024 * 2); srd(a, 28, 10, 2048 * 2048); srd(a, 36, 12, 2048 * 2048)
    def w_blocks(first, n, lds):
        o = []
        for j in range(0, n, 4):
            o += [f"s_add_u32 m0, s{lds}, {j*1024}", f"s_add_u32 s16, s{first}, {j*8*2048}", "s_and_b32 s16, s16, 0x1fffff"]
            o += [f"buffer_load_dwordx4 v{4+i}, s[24:27], s16 offen offset:{i*1024} lds" for i in range(4)]
        return o
    def o_load(kb):
        r = OA + (kb % D) * 8
        return (["s_add_u32 s45, s44, s46", "s_add_u32 s46, s46, 4096", "s_and_b32 s46, s46, 0x7fff"] if kb & 3 == 0 else []) + \
               [f"buffer_load_dwordx4 {vr(r,4)}, v3, s[32:35], s45 offen offset:{(kb&3)*1024}",
                f"buffer_load_dwordx4 {vr(r+4,4)}, v10, s[32:35], s45 offen offset:{(kb&3)*1024}"]
    def p_loads():
        o = [f"s_add_u32 s17, s43, {4<<20}"]
        for t in range(2):
            for c in range(2):
                o += [f"buffer_load_dwordx4 {vr(P0+8*t+4*c,4)}, v{3 if t == 0 else 10}, s[32:35], s43 offen offset:{c*1024}",
                      f"buffer_load_dwordx4 {vr(P1+8*t+4*c,4)}, v{3 if t == 0 else 10}, s[32:35], s17 offen offset:{c*1024}"]
        return o
    sync_block(a, 23, 24, 25, 26)
    a.I("s_lshr_b32 s16, s2, 5", "s_mul_i32 s16, s16, %d" % int(OPT.get("rot", 1)), "s_lshl_b32 s46, s16, 12", "s_lshl_b32 s49, s16, 18")
    a.I(f"s_mul_i32 s48, s20, {NE*8*2048}", "s_add_u32 s48, s48, s49", f"s_mul_i32 s47, s20, {NE*1024}", f"s_add_u32 s47, s47, {LKV}")
    a.extend(w_blocks(48, NE, 47))
    a.I("v_and_b32 v2, 31, v1", "v_lshlrev_b32 v31, 11, v2", f"s_mul_i32 s48, s20, {96*2048}", f"s_add_u32 s48, s48, {640*2048}", "s_add_u32 s48, s48, s49",
        "s_lshl_b32 s17, s23, 7", "v_add_u32 v31, s17, v31")
    for j in range(3): a.I(f"s_add_u32 s16, s48, {j*32*2048}", "s_and_b32 s16, s16, 0x1fffff", f"buffer_load_dword v{28+j}, v31, s[24:27], s16 offen")
    a.I(
        f"s_mul_i32 s47, s20, {12*1024}", f"s_add_u32 s47, s47, {LKV}")
    xsel(a, 21)
    a.I("v_lshrrev_b32 v2, 5, v1", "v_lshlrev_b32 v12, 11, v2", "v_bfe_u32 v9, v1, 2, 3", "v_lshl_add_u32 v12, v9, 7, v12",
        "v_lshrrev_b32 v9, 1, v9", "v_lshl_add_u32 v12, v9, 5, v12", "v_and_b32 v9, 3, v1", "v_lshl_add_u32 v12, v9, 3, v12",
        f"v_add_u32 v12, {LKV}, v12")
    for u in range(1, 4): a.I(f"v_xor_b32 v{12+u}, {32*u}, v12")
    for u in range(4): a.I(f"v_add_u32 v{16+u}, 0x10000, v{12+u}")
    a.I("s_lshr_b32 s16, s22, 3", "s_lshl_b32 s16, s16, 1", "s_lshr_b32 s17, s23, 3", "s_lshl_b32 s17, s17, 2", "s_add_u32 s16, s16, s17",
        "s_and_b32 s17, s22, 7", "s_lshl_b32 s17, s17, 3", "s_add_u32 s16, s16, s17",
        "s_bfe_u32 s17, s23, 0x20001", "s_lshl_b32 s17, s17, 6", "s_add_u32 s16, s16, s17", "s_lshl_b32 s50, s16, 5",
        "s_lshl_b32 s16, s20, 2", "s_add_u32 s50, s50, s16", f"s_add_u32 s50, s50, {WS_FL+FL_O+16}",
        "v_lshlrev_b32 v22, 5, v1", "s_mov_b32 s19, 0xffff0000",
        "s_lshr_b32 s16, s22, 1", "s_lshl_b32 s18, s16, 10", "s_and_b32 s16, s22, 1", "s_lshl_b32 s16, s16, 1", "s_lshr_b32 s17, s20, 1",
        "s_add_u32 s16, s16, s17", "s_lshl_b32 s16, s16, 2", "s_add_u32 s18, s18, s16", f"s_add_u32 s18, s18, {WS_FL+FL_O}")
    a.extend(poll(18, 32, 22))
    ts(a, 5)
    L = Log()
    nxt = int(OPT.get("o0", 4))
    for kb in range(nxt): a.extend(L.note(o_load(kb), kb))
    sync_block(a, 23, 24, 25, 26)
    ts(a, 6)
    a.I(f"s_setprio {int(OPT.get('wp', 0))}")
    def reads(kb):
        vb, so = (12, kb * 4096) if kb < 16 else (16, (kb - 16) * 4096) if kb < NE else (12, (kb - NE) * 4096)
        return [f"ds_read_b64_tr_b16 {vr(FW[kb&1]+u*4+2*rd,2)}, v{vb+u} offset:{so+rd*1024}" for u in range(4) for rd in range(2)]
    a.extend(reads(0))
    for kb in range(32):
        wc = L.cnt(kb)
        if kb == NE - 1: wc = min(wc, len(L.l) - 1 - max(i for i, t in enumerate(L.l) if t == 99))
        a.I(f"s_waitcnt vmcnt({wc}) lgkmcnt(0)")
        if "wost" in EXP and kb in (0, 8, 20, 27): ts(a, {0: 9, 8: 10, 20: 11, 27: 12}[kb])
        if kb == SW:
            sync_block(a, 23, 24, 25, 26)
            a.extend(L.note(w_blocks(48, 12, 47), 99))
        if kb == NE - 1: sync_block(a, 23, 24, 25, 26)
        if kb == 20:
            a.extend(L.note(["s_add_u32 s16, s42, 0x8000"] + [f"buffer_load_dwordx4 {vr(XR+8*t+4*c,4)}, v21, s[28:31], s{42 if t == 0 else 16} offen offset:{c*64}"
                                                            for t in range(2) for c in range(2)], None))
        if kb == 22: a.extend(L.note(lanes(2) + [poll_load(50, 22, 27), "s_mov_b64 exec, -1"], None))
        if kb == 25:
            a.I("s_mov_b32 s52, 0", "s_waitcnt vmcnt(0)", "v_cmp_ne_u32 vcc, s55, v27", "s_bitcmp1_b32 vcc_lo, 0", "s_cbranch_scc1 WO_NP",
                "s_bitcmp1_b32 vcc_lo, 1", "s_cbranch_scc1 WO_NP", "s_mov_b32 s52, 1")
            a.extend(p_loads())
            a.L("WO_NP")
        m = [mfma16(ACC + (t * 4 + u) * 4, FW[kb & 1] + u * 4, OA + (kb % D) * 8 + 4 * t, "0" if kb == 0 else None) for u in range(4) for t in range(2)]
        a.extend(interleave(m, reads(kb + 1) if kb < 31 else [], [2, 2, 2, 2, 0, 0, 0, 0]))
        for _ in range(int(OPT.get("or", 2))):
            if nxt < 32 and nxt <= kb + D: a.extend(L.note(o_load(nxt), nxt)); nxt += 1
    a.I("s_setprio 3")
    a.I("s_cmp_eq_u32 s52, 1", "s_cbranch_scc1 WO_HP")
    a.extend(poll(50, 2, 22, 27))
    a.extend(p_loads())
    a.L("WO_HP")
    for i in range(4):
        a.I(f"v_permlane16_swap_b32 v{XR+4*i}, v{XR+4*i+2}", f"v_permlane16_swap_b32 v{XR+4*i+1}, v{XR+4*i+3}")
    E = [(i, d, ACC + i * 8 + 2 * d, 160 + 4 * (i * 4 + d)) for i in range(4) for d in range(4)]
    for i, d, g, r in E: a.I(f"v_lshlrev_b32 v{r}, 16, v{XR+4*i+d}", f"v_and_b32 v{r+1}, s19, v{XR+4*i+d}")
    for i, d, g, r in E: a.I(f"v_add_f32 v{g}, v{g}, v{r}", f"v_add_f32 v{g+1}, v{g+1}, v{r+1}")
    for i in range(4):
        a.I(f"s_waitcnt vmcnt({6 - 2 * i + i})")
        Ei = E[4 * i:4 * i + 4]
        for i_, d, g, r in Ei:
            a.I(f"v_lshlrev_b32 v{r}, 16, v{P0+4*i+d}", f"v_and_b32 v{r+1}, s19, v{P0+4*i+d}",
                f"v_lshlrev_b32 v{r+2}, 16, v{P1+4*i+d}", f"v_and_b32 v{r+3}, s19, v{P1+4*i+d}")
        for i_, d, g, r in Ei: a.I(f"v_add_f32 v{r}, v{r}, v{r+2}", f"v_add_f32 v{r+1}, v{r+1}, v{r+3}")
        for i_, d, g, r in Ei: a.I(f"v_add_f32 v{g}, v{g}, v{r}", f"v_add_f32 v{g+1}, v{g+1}, v{r+1}")
        pk = 32 + 4 * i
        for i_, d, g, r in Ei: a.I(f"v_cvt_pk_bf16_f32 v{pk+d}, v{g}, v{g+1}")
        a.I(f"v_permlane16_swap_b32 v{pk}, v{pk+2}", f"v_permlane16_swap_b32 v{pk+1}, v{pk+3}",
            f"buffer_store_dwordx4 {vr(pk,4)}, v21, s[36:39], s42 offen offset:{(i&1)*64}" + OPT.get("om", "").replace("+", " "))
        if i == 1: a.I("s_add_u32 s42, s42, 0x8000")

def fused():
    a = Asm()
    ts(a, 0)
    a.I("s_cmp_ge_u32 s2, 256", "s_cbranch_scc1 F_END",
        f"s_load_dwordx8 s[4:11], s[0:1], {KA_X}", f"s_load_dwordx4 s[40:43], s[0:1], {KA_WG}",
        f"s_load_dwordx4 s[12:15], s[0:1], {KA_DBG}", "s_memrealtime s[48:49]",
        "v_lshrrev_b32 v2, 6, v0", "v_and_b32 v1, 63, v0", "v_readfirstlane_b32 s20, v2", "v_lshlrev_b32 v3, 4, v1",
        "s_lshr_b32 s21, s2, 4", "s_lshl_b32 s21, s21, 3", "s_and_b32 s16, s2, 7", "s_add_u32 s45, s21, s16", "s_lshl_b32 s23, s45, 15",
        "s_mov_b32 s54, s20", "s_lshl_b32 s16, s20, 12", "s_add_u32 s19, s23, s16", "s_waitcnt lgkmcnt(0)")
    srd(a, 32, 14, WS_SIZE); srd(a, 56, 12, 256)
    a.I("s_or_b32 s16, s2, s20", "s_cmp_lg_u32 s16, 0", "s_cbranch_scc1 F_NT",
        "s_or_b32 s16, s48, 1", "v_mov_b32 v2, s16", "v_mov_b32 v8, 0", "s_mov_b64 exec, 1",
        "buffer_store_dword v2, v8, s[56:59], 0 offen sc1", "s_mov_b64 exec, -1")
    a.L("F_NT")
    phase0(a)
    ts(a, 8)
    if "p0st" in EXP:
        tl_dump(a, 13); a.I("s_endpgm")
    g1(a)
    a.I("s_and_b32 s20, s54, 3", "s_cmp_ge_u32 s54, 4", "s_cbranch_scc1 F_B")
    attention(a)
    wo(a)
    tl_dump(a, 13)
    a.I("s_endpgm")
    if "ablock" not in EXP:
        for tag in ("0", "7", "7F"):
            a.L(f"ATT_SP{tag}")
            a.I("ds_read_b32 v15, v14", "s_waitcnt lgkmcnt(0)", "v_cmp_gt_u32 vcc, s53, v15", f"s_cbranch_vccnz ATT_SP{tag}", f"s_branch ATT_CT{tag}")
    a.L("F_B")
    down(a)
    a.L("F_END")
    a.I("s_endpgm")
    return a, dict(grid=256, block=512, lds=163840, vgpr=256)

if __name__ == "__main__":
    path = sys.argv[1] if len(sys.argv) > 1 else "cdna_kernels/" + NAME + ".s"
    opts = dict(o.split("=") for o in sys.argv[2:])
    OPT = opts; EXP = opts.get("exp", ""); TL = bool(int(opts.get("tl", 0)))
    G.VERB = bool(int(opts.get("verb", 0)))
    SC1 = opts.get("sm", "+sc1").replace("+", " ")
    G.build([(NAME if int(opts.get("single", 0)) else "fused8", fused())], path)
```

```python
import sys
from asmlib import *
import gen as G
from gen import (NAME, KA_X, KA_WQ, KA_WK, KA_WV, KA_WO, KA_WG, KA_WU, KA_WD, KA_OUT, KA_DBG, KA_WS,
                 WS_XN, WS_KV, WS_O, WS_H, WS_P, WS_SIZE, f32, vr, srd, mfma32, mfma16, QSCALE, mix2, front_pattern)
WS_FL = 0x0480000
FL_KV, FL_X, FL_H, FL_O, FL_P = 0, 4096, 12288, 20480, 24576
WS_TL = 0x3F10000
LKV = 65536
LQ = 131072
LC = 147456
HP = 224
TL = False; EXP = ""; OPT = {}
SC1 = " sc1"

def ts(a, i):
    if TL: a.I(f"s_mem{'' if 'cyc' in EXP else 'real'}time s[{62+2*i}:{63+2*i}]")
def tl_dump(a, n):
    if not TL: return
    a.I("s_waitcnt vmcnt(0) lgkmcnt(0)")
    ts(a, 7)
    if "hd" in EXP.split("_"):
        a.I("s_waitcnt lgkmcnt(0)", "s_and_b32 s90, s54, 3", "s_cmp_lg_u32 s90, 0", "s_cbranch_scc1 F_END", "s_sleep 127", "s_sleep 127", "s_sleep 127",
            "v_mov_b32 v1, 0", "s_mov_b64 exec, 1", "s_not_b32 s90, s62", "v_mov_b32 v2, s90",
            "buffer_atomic_umax v2, v1, s[56:59], 0 offen offset:4", "s_lshr_b32 s90, s54, 2", "s_mul_i32 s90, s90, 0")
        lab = f"HD{len(a.items)}"
        for j, i in enumerate((0, 8, 11, 12, 1, 2, 3, 4, 5, 7)):
            if j == 6: a.I("s_cmp_ge_u32 s54, 4", f"s_cbranch_scc1 {lab}")
            if j in (2, 3): a.I("s_cmp_ge_u32 s54, 4", f"s_cselect_b32 s{62+2*i}, 0, s{62+2*i}")
            a.I(f"v_mov_b32 v2, s{62+2*i}", f"buffer_atomic_umax v2, v1, s[56:59], 0 offen offset:{8+4*j}")
        a.I("s_endpgm")
        a.L(lab)
        for j, i in enumerate((3, 4, 7)):
            a.I(f"v_mov_b32 v2, s{62+2*i}", f"buffer_atomic_umax v2, v1, s[56:59], 0 offen offset:{48+4*j}")
        return
    a.I("s_waitcnt lgkmcnt(0)", "s_lshl_b32 s90, s2, 3", "s_add_u32 s90, s90, s54", "s_lshl_b32 s90, s90, 6",
        f"s_add_u32 s90, s90, {WS_TL}", "v_mov_b32 v1, 0", "s_mov_b64 exec, 1")
    for i in range(n):
        a.I(f"v_mov_b32 v2, s{62+2*i}", f"buffer_store_dword v2, v1, s[32:35], s90 offen offset:{4*i}")

_n = [0]
def lanes(n): return [f"s_mov_b32 exec_lo, {((1 << n) - 1) & 0xffffffff:#x}", f"s_mov_b32 exec_hi, {((1 << n) - 1) >> 32:#x}"] if n < 64 else []
def poll_load(soff, voff, dst, wide=False):
    return f"buffer_load_dword{'x4' if wide else ''} {vr(dst, 4 if wide else 1)}, v{voff}, s[32:35], s{soff} offen sc1"
def poll_test(dst, wide):
    if wide:
        return [f"v_xor_b32 v{dst+i}, s55, v{dst+i}" for i in range(4)] + \
               [f"v_or3_b32 v{dst}, v{dst}, v{dst+1}, v{dst+2}", f"v_or_b32 v{dst}, v{dst}, v{dst+3}", f"v_cmp_ne_u32 vcc, 0, v{dst}"]
    return [f"v_cmp_ne_u32 vcc, s55, v{dst}"]
def poll(soff, n, voff, dst=2, wide=False, preloaded=None, sleep=2):
    _n[0] += 1; lab = f"POLL{_n[0]}"
    o = lanes(n)
    if preloaded is not None:
        o += [f"s_waitcnt vmcnt({preloaded})"] + poll_test(dst, wide) + [f"s_cbranch_vccz {lab}_D"]
    o += ["s_mov_b32 s17, 0x40000", lab + ":", poll_load(soff, voff, dst, wide), "s_waitcnt vmcnt(0)"] + poll_test(dst, wide)
    o += [f"s_cbranch_vccz {lab}_D", f"s_sleep {sleep}", "s_sub_u32 s17, s17, 1", "s_cmp_lg_u32 s17, 0", f"s_cbranch_scc1 {lab}", lab + "_D:"]
    if n < 64: o += ["s_mov_b64 exec, -1"]
    return o
def set_flag(a, soff):
    a.I("v_mov_b32 v2, s55", "v_mov_b32 v8, 0", "s_mov_b64 exec, 1",
        f"buffer_store_dword v2, v8, s[32:35], s{soff} offen sc1", "s_mov_b64 exec, -1")
def wave_flag(a, reg, base):
    a.I(f"s_lshl_b32 s{reg}, s2, 3", f"s_add_u32 s{reg}, s{reg}, s54", f"s_lshl_b32 s{reg}, s{reg}, 2", f"s_add_u32 s{reg}, s{reg}, {WS_FL+base}")
def sync_setup(a, base, own, chk, one):
    a.I("s_lshl_b32 s16, s20, 8", f"s_add_u32 s16, s16, {base}", f"v_lshl_add_u32 v{own}, v1, 2, s16",
        "v_and_b32 v2, 3, v1", f"v_lshlrev_b32 v{chk}, 8, v2", f"v_lshl_add_u32 v{chk}, v1, 2, v{chk}", f"v_add_u32 v{chk}, {base}, v{chk}",
        f"v_mov_b32 v{one}, 1", "s_mov_b32 s53, 0")
def sync_block(a, own, chk, one, tmp, sleep=False):
    _n[0] += 1; lab = f"SY{_n[0]}"
    a.I(f"ds_add_u32 v{own}, v{one}", "s_add_u32 s53, s53, 1")
    a.L(lab)
    if sleep: a.I("s_sleep 1")
    a.I(f"ds_read_b32 v{tmp}, v{chk}", "s_waitcnt lgkmcnt(0)", f"v_cmp_gt_u32 vcc, s53, v{tmp}", f"s_cbranch_vccnz {lab}")
def xsel(a, dst):
    a.I("v_and_b32 v2, 15, v1", f"v_lshlrev_b32 v{dst}, 11, v2", "v_bfe_u32 v2, v1, 4, 1", f"v_lshl_add_u32 v{dst}, v2, 5, v{dst}",
        "v_lshrrev_b32 v2, 5, v1", f"v_lshl_add_u32 v{dst}, v2, 4, v{dst}")
def is_vm(x): return x.startswith("buffer") or x.startswith("global")
def groups_of(dm):
    gs = []; cur = []
    for x in dm:
        cur.append(x)
        if is_vm(x): gs.append(cur); cur = []
    gs[-1] += cur
    return gs
def mixmem(rd, dm, dma_first=True):
    if not rd or not dm: return rd + dm
    gs = groups_of(dm)
    pre = [x for x in rd if x.startswith("v_")]; ds = [x for x in rd if x.startswith("ds_")]; post = [x for x in rd if x.startswith("s_")]
    o = list(pre); n = len(gs); per = len(ds) // n
    for g in range(n):
        part = ds[g * per:(g + 1) * per if g < n - 1 else len(ds)]
        o += (gs[g] + part) if dma_first else (part + gs[g])
    return o + post
class Log:
    def __init__(self): self.l = []
    def note(self, instrs, st): self.l += [st] * sum(map(is_vm, instrs)); return instrs
    def cnt(self, st):
        last = max([i for i, s_ in enumerate(self.l) if s_ is not None and s_ <= st], default=-1)
        return len(self.l) - 1 - last

WA0, WA1, WST = 116, 118, 120
def w_dma(slotreg):
    return [f"s_add_u32 m0, s{slotreg}, s46", "s_nop 0",
            f"global_load_lds_dwordx4 {vr(WA0,2)}, off" + OPT.get("wm", "").replace("+", " "), f"global_load_lds_dwordx4 {vr(WA1,2)}, off offset:1024" + OPT.get("wm", "").replace("+", " "),
            f"v_lshl_add_u64 {vr(WA0,2)}, {vr(WST,2)}, 0, {vr(WA0,2)}", f"v_lshl_add_u64 {vr(WA1,2)}, {vr(WST,2)}, 0, {vr(WA1,2)}"]

def tag_check(a):
    a.I("s_mov_b32 s17, 0x40000")
    a.L("P0_TAG")
    a.I("s_cmp_eq_u32 s55, 0", "s_cbranch_scc1 P0_TAGLD",
        "s_sub_u32 s16, s48, s55", "s_add_u32 s16, s16, 3000", "s_cmp_lt_u32 s16, 6000", "s_cbranch_scc1 P0_TAGOK",
        "s_cmp_lt_u32 s17, 0x3f800", "s_cbranch_scc1 P0_TAGOK")
    a.L("P0_TAGLD")
    a.I("buffer_load_dword v6, v7, s[56:59], 0 offen sc1", "s_waitcnt vmcnt(0)", "v_readfirstlane_b32 s55, v6",
        "s_sub_u32 s17, s17, 1", "s_cmp_lg_u32 s17, 0", "s_cbranch_scc1 P0_TAG")
    a.L("P0_TAGOK")

STREAM = ["buffer_load_dword v122, v114, s[88:91], s100 offen", "buffer_load_dword v123, v114, s[92:95], s100 offen",
          "buffer_load_dword v124, v115, s[96:99], s101 offen"]
def phase0(a):
    LW, LX, LR = 49152, 114688, 147456
    srd(a, 24, 4, 2048 * 2048)
    for i in range(4): a.I(f"buffer_load_dwordx4 {vr(8+4*i,4)}, v3, s[24:27], s19 offen offset:{i*1024}")
    a.I("v_mov_b32 v7, 0", "buffer_load_dword v6, v7, s[56:59], 0 offen sc1")
    TP = 0; NH = int(OPT.get("nh", 5))
    if NH:
        a.I("s_cmp_eq_u32 s20, 4", "s_cselect_b64 s[12:13], s[40:41], s[42:43]", f"s_mov_b32 s16, {NH*896}",
            "s_cmp_eq_u32 s20, 6", "s_cselect_b64 s[12:13], s[6:7], s[12:13]", f"s_cselect_b32 s16, {8192 if 'qf' in EXP else NH*256}, s16")
        srd(a, 88, 12, 1024 * 1024 * 2)
        a.I("v_lshlrev_b32 v114, 7, v1", "s_sub_u32 s17, s16, 128", "v_min_u32 v114, s17, v114", "s_mul_i32 s92, s16, s2")
        a.I("s_cmp_lg_u32 s20, 7", "s_cbranch_scc1 P0_N7", "s_bitcmp1_b32 s2, 3", "s_cselect_b64 s[88:89], s[10:11], s[8:9]", "s_mov_b32 s90, 0x10000",
            "v_and_b32 v114, 0xf80, v114", "s_lshr_b32 s92, s2, 4", "s_lshl_b32 s92, s92, 12")
        a.L("P0_N7")
        a.I("s_cmp_lt_u32 s20, 4", "s_cbranch_scc1 P0_NS", "buffer_load_dword v122, v114, s[88:91], s92 offen")
        a.L("P0_NS")
    a.I("s_bfe_u32 s22, s2, 0x10003", "s_cmp_eq_u32 s22, 0", "s_cselect_b64 s[12:13], s[8:9], s[10:11]")
    srd(a, 28, 12, 65536)
    a.I("s_lshl_b32 s17, s20, 13")
    a.I("s_and_b32 s16, s2, 7", "s_lshl_b32 s16, s16, 2", "s_bfe_u32 s21, s2, 0x20003", "s_add_u32 s21, s21, s16",
        "s_and_b32 s23, s20, 3", "s_cmp_lt_u32 s20, 4", "s_cselect_b64 s[12:13], s[42:43], s[40:41]", "s_cselect_b32 s18, 32, 0",
        "s_cselect_b32 s46, 8192, 0", "s_lshl_b32 s16, s23, 11", "s_add_u32 s46, s46, s16", "s_add_u32 s46, s46, 16384",
        "v_lshrrev_b32 v2, 4, v1", "s_lshl_b32 s16, s23, 3", "v_add_u32 v4, s16, v2",
        "s_and_b32 s16, s23, 1", "s_lshl_b32 s16, s16, 2", "v_add_u32 v2, s16, v2", "v_bfe_u32 v5, v1, 1, 3", "v_xor_b32 v2, v2, v5",
        "v_cmp_eq_u32 vcc, 7, v2", "v_mov_b32 v5, 7168", "v_mov_b32 v112, 2048", f"v_cndmask_b32 v{WST}, v5, v112, vcc",
        f"v_mul_lo_u32 v4, v4, v{WST}",
        "s_mul_i32 s16, s21, 224", "v_lshl_add_u32 v5, v2, 5, s16", "s_lshl_b32 s16, s21, 6", "s_add_u32 s16, s16, s18",
        "v_mov_b32 v112, s16", "v_cndmask_b32 v5, v5, v112, vcc", "v_add_u32 v4, v4, v5",
        "v_and_b32 v2, 1, v1", "v_lshl_add_u32 v4, v2, 4, v4",
        "v_mov_b32 v5, s12", "v_mov_b32 v112, s6", f"v_cndmask_b32 v{WA0}, v5, v112, vcc",
        "v_mov_b32 v5, s13", "v_mov_b32 v112, s7", f"v_cndmask_b32 v{WA0+1}, v5, v112, vcc",
        "v_mov_b32 v5, 0", f"v_lshl_add_u64 {vr(WA0,2)}, v[4:5], 0, {vr(WA0,2)}",
        f"v_lshlrev_b32 v4, 2, v{WST}", "v_add_u32 v4, -1024, v4" if False else "v_subrev_u32 v4, 1024, v4",
        f"v_lshl_add_u64 {vr(WA1,2)}, v[4:5], 0, {vr(WA0,2)}",
        f"v_lshlrev_b32 v{WST}, 5, v{WST}", f"v_mov_b32 v{WST+1}, 0", "s_mov_b32 s47, 0")
    srd(a, 24, 12, 1024 * 3584 * 2)
    a.I("v_lshrrev_b32 v2, 1, v1", "s_lshl_b32 s16, s23, 5", "s_add_u32 s16, s16, 32", "v_add_u32 v2, s16, v2",
        "v_mul_u32_u24 v112, 7168, v2", "v_and_b32 v2, 1, v1", "v_mul_u32_u24 v2, 208, v2", "v_add_u32 v112, v112, v2",
        "s_mul_i32 s44, s21, 224")
    a.I("s_mov_b32 s21, s45", "s_lshl_b32 s23, s21, 15", "s_mov_b32 s36, 0xffff0000")
    if NH: a.I("s_cmp_ge_u32 s20, 4", "s_cbranch_scc0 P0_X1", "s_waitcnt vmcnt(2)", "s_branch P0_X2", "P0_X1:", "s_waitcnt vmcnt(1)", "P0_X2:")
    else: a.I("s_waitcnt vmcnt(1)")
    ts(a, 9)
    late = [f"s_add_u32 m0, s17, {LW}", "s_add_u32 s18, s17, 4096"]
    late += [f"buffer_load_dwordx4 v3, s[28:31], s17 offen offset:{i*1024} lds" for i in range(4)]
    late += [f"s_add_u32 m0, s18, {LW}", "s_nop 0"]
    late += [f"buffer_load_dwordx4 v3, s[28:31], s18 offen offset:{i*1024} lds" for i in range(4)]
    late += w_dma(47) + (["buffer_load_dword v113, v112, s[24:27], s44 offen"] if not NH else [])
    if TP: late += ["s_cmp_lt_u32 s20, 4", "s_cbranch_scc1 P0_NS"] + STREAM + ["P0_NS:"]
    mark = len(a.items)
    for r in range(2):
        for d in range(8):
            src = 8 + 8 * r + d
            a.I(f"v_lshlrev_b32 v{32+16*r+2*d}, 16, v{src}", f"v_and_b32 v{33+16*r+2*d}, s36, v{src}")
    def tree2(bases, sq):
        T_ = [(24 + i, bases[i], 64 + 8 * i) for i in range(2)]
        for dst, base, t in T_:
            for i in range(8):
                a.I(f"v_mul_f32 v{t+i}, v{base+2*i}, v{base+2*i}" if sq else f"v_add_f32 v{t+i}, v{base+2*i}, v{base+2*i+1}")
        if sq:
            for dst, base, t in T_:
                for i in range(8): a.I(f"v_fmac_f32 v{t+i}, v{base+2*i+1}, v{base+2*i+1}")
        for s_ in (4, 2):
            for dst, base, t in T_:
                for i in range(s_): a.I(f"v_add_f32 v{t+i}, v{t+i}, v{t+i+s_}")
        for dst, base, t in T_: a.I(f"v_add_f32 v{dst}, v{t}, v{t+1}")
    def wavered(rs, ss):
        for mod in ("row_shr:1 row_mask:0xf bank_mask:0xf bound_ctrl:0", "row_shr:2 row_mask:0xf bank_mask:0xf bound_ctrl:0",
                    "row_shr:4 row_mask:0xf bank_mask:0xf bound_ctrl:0", "row_shr:8 row_mask:0xf bank_mask:0xf bound_ctrl:0",
                    "row_bcast:15 row_mask:0xa bank_mask:0xf", "row_bcast:31 row_mask:0xc bank_mask:0xf"):
            for r in rs: a.I(f"v_add_f32_dpp v{r}, v{r}, v{r} {mod}")
        for r, s_ in zip(rs, ss): a.I(f"v_readlane_b32 s{s_}, v{r}, 63")
    if "p0st" in EXP: ts(a, 1)
    tree2((32, 48), False)
    wavered((24, 25), (40, 41))
    if "p0st" in EXP: ts(a, 2)
    a.I(f"s_mov_b32 s37, {f32(1.0/1024)}")
    a.I("v_mov_b32 v26, s40", "v_mov_b32 v27, s41", "v_mul_f32 v26, s37, v26", "v_mul_f32 v27, s37, v27")
    for r in range(2):
        for i in range(16): a.I(f"v_sub_f32 v{80+16*r+i}, v{32+16*r+i}, v{26+r}")
    tree2((80, 96), True)
    wavered((24, 25), (42, 43))
    a.I("v_mov_b32 v28, s42", "v_mov_b32 v29, s43", "v_mul_f32 v28, s37, v28", "v_mul_f32 v29, s37, v29")
    def rnd(*rs):
        for r in rs: a.I(f"v_cvt_pk_bf16_f32 v{r}, v{r}, v{r}")
        for r in rs: a.I(f"v_lshlrev_b32 v{r}, 16, v{r}")
    a.I(f"s_mov_b32 s38, {f32(1e-5)}")
    rnd(28, 29, 26, 27)
    a.I("v_add_f32 v28, s38, v28", "v_add_f32 v29, s38, v29"); rnd(28, 29)
    a.I("v_sqrt_f32 v28, v28", "v_sqrt_f32 v29, v29"); rnd(28, 29)
    a.I("v_rcp_f32 v28, v28", "v_rcp_f32 v29, v29")
    if "p0st" in EXP: ts(a, 3)
    P_ = [(r, d, 32 + 16 * r + 2 * d) for r in range(2) for d in range(8)]
    for r, d, b in P_: a.I(f"v_sub_f32 v{b}, v{b}, v{26+r}", f"v_sub_f32 v{b+1}, v{b+1}, v{26+r}")
    for r, d, b in P_: a.I(f"v_cvt_pk_bf16_f32 v{80+8*r+d}, v{b}, v{b+1}")
    for r, d, b in P_: a.I(f"v_lshlrev_b32 v{b}, 16, v{80+8*r+d}", f"v_and_b32 v{b+1}, s36, v{80+8*r+d}")
    for r, d, b in P_: a.I(f"v_mul_f32 v{b}, v{b}, v{28+r}", f"v_mul_f32 v{b+1}, v{b+1}, v{28+r}")
    for r, d, b in P_: a.I(f"v_cvt_pk_bf16_f32 v{8+8*r+d}, v{b}, v{b+1}")
    LP = OPT.get("lp", "post")
    body = a.items[mark:]; del a.items[mark:]
    gs = groups_of(late) if LP == "mix" else []; step = int(OPT.get("lst", 24))
    if TP: gs[-3:] = [gs[-3] + gs[-2] + gs[-1]]
    for i, it in enumerate(body):
        if i % step == 0 and gs: a.extend(gs.pop(0))
        a.items.append(it)
    assert not gs
    if "p0st" in EXP: ts(a, 4)
    a.I("s_lshl_b32 s16, s20, 1", "v_and_b32 v2, 15, v1", "v_xor_b32 v2, s16, v2", "v_lshlrev_b32 v4, 8, v1", "v_lshl_add_u32 v4, v2, 4, v4",
        f"v_add_u32 v4, {LX}, v4", "v_xor_b32 v25, 16, v4")
    for r in range(2):
        for p in range(2): a.I(f"ds_write_b128 v{25 if r else 4}, {vr(8+8*r+4*p,4)} offset:{p*16384}")
    a.I("v_lshrrev_b32 v5, 4, v1", "v_lshlrev_b32 v2, 4, v5", "v_xor_b32 v26, v2, v3",
        "s_lshl_b32 s16, s20, 12", f"s_add_u32 s16, s16, {LX}", "v_add_u32 v30, s16, v26",
        "v_xor_b32 v27, 64, v30", "v_xor_b32 v28, 0x80, v30", "v_xor_b32 v29, 0xc0, v30",
        "v_lshlrev_b32 v31, 9, v5", "v_bfe_u32 v2, v1, 2, 2", "v_lshl_add_u32 v31, v2, 6, v31",
        "v_and_b32 v2, 3, v1", "v_lshl_add_u32 v31, v2, 3, v31", f"s_add_u32 s16, s17, {LW}", "v_add_u32 v31, s16, v31",
        "s_lshl_b32 s16, s22, 14", "s_lshl_b32 s18, s20, 12", "s_add_u32 s16, s16, s18",
        "s_add_u32 s39, s23, s16", f"s_add_u32 s16, s16, {LX}", "v_add_u32 v24, s16, v26",
        "v_xor_b32 v25, 64, v24", "v_xor_b32 v4, 0x80, v24", "v_xor_b32 v26, 0xc0, v24",
        "s_waitcnt lgkmcnt(0)", "s_barrier")
    ts(a, 10)
    a.I("s_cmp_ge_u32 s20, 4", "s_cbranch_scc1 P0_NC")
    for i, r in enumerate((24, 25, 4, 26)): a.I(f"ds_read_b128 {vr(8+4*i,4)}, v{r} offset:{i*1024}")
    for i in range(4): a.I(f"s_waitcnt lgkmcnt({3-i})", f"buffer_store_dwordx4 {vr(8+4*i,4)}, v3, s[32:35], s39 offen offset:{i*1024} sc1")
    if LP == "mix":
        a.I(f"s_waitcnt vmcnt({6 if NH else 7})", "s_branch P0_C")
        a.L("P0_NC")
        a.I(f"s_waitcnt vmcnt({2 if NH else 3})")
        a.L("P0_C")
        a.I("v_readfirstlane_b32 s55, v6")
    else:
        a.L("P0_NC")
        a.extend(late)
        wave_flag(a, 18, FL_X)
        a.I("s_waitcnt vmcnt(10)", "v_readfirstlane_b32 s55, v6")
        tag_check(a)
        a.I("s_cmp_ge_u32 s20, 4", "s_cbranch_scc1 P0_NF")
        set_flag(a, 18)
        if "ea" not in EXP.split("_"):
            a.I("s_waitcnt vmcnt(3)", "s_branch P0_C")
            a.L("P0_NF")
            a.I("s_waitcnt vmcnt(2)")
            a.L("P0_C")
        else:
            a.L("P0_NF")
            xn_poll(a)
            a.I("s_lshr_b32 s16, s2, 5", "s_lshl_b32 s16, s16, 3", "s_add_u32 s16, s16, s20", "s_lshl_b32 s16, s16, 16",
                "s_lshl_b32 m0, s20, 11", "v_add_u32 v10, 31744, v3",
                "buffer_load_dwordx4 v3, s[32:35], s16 offen lds", "buffer_load_dwordx4 v10, s[32:35], s16 offen offset:1024 lds")
    for j in range(4):
        a.I(f"ds_read_b128 {vr(32+4*j,4)}, v{(30, 27, 28, 29)[j]} offset:{j*1024}")
        for d in range(2):
            for rd in range(2):
                a.I(f"ds_read_b64_tr_b16 {vr(64+8*j+4*d+2*rd,2)}, v31 offset:{j*2048+rd*256+d*32}")
    a.I("s_waitcnt lgkmcnt(0)", "s_cmp_eq_u32 s22, 0", "s_cbranch_scc0 P0_V")
    for j in range(4):
        for d in range(2): a.I(mfma16(96 + 4 * d, 64 + 8 * j + 4 * d, 32 + 4 * j, "0" if j == 0 else None))
    a.I("s_branch P0_R")
    a.L("P0_V")
    for j in range(4):
        for d in range(2): a.I(mfma16(96 + 4 * d, 32 + 4 * j, 64 + 8 * j + 4 * d, "0" if j == 0 else None))
    a.L("P0_R")
    a.I("s_lshl_b32 s16, s20, 11", f"s_add_u32 s16, s16, {LR}", "v_add_u32 v4, s16, v3")
    wave_flag(a, 18, FL_X)
    for d in range(2): a.I(f"ds_write_b128 v4, {vr(96+4*d,4)} offset:{d*1024}")
    if LP == "mix":
        tag_check(a)
        a.I("s_cmp_ge_u32 s20, 4", "s_cbranch_scc1 P0_NF", "s_waitcnt vmcnt(0)")
        set_flag(a, 18)
        a.L("P0_NF")
    a.I("s_waitcnt lgkmcnt(0)", "s_barrier")
    a.I("s_cmp_lg_u32 s20, 0", "s_cbranch_scc1 P0_END")
    a.I(f"v_add_u32 v4, {LR}, v3")
    for w in range(8):
        a.I(f"ds_read_b128 {vr(32+8*w,4)}, v4 offset:{w*2048}", f"ds_read_b128 {vr(36+8*w,4)}, v4 offset:{w*2048+1024}")
    a.I("s_waitcnt lgkmcnt(0)")
    for s_ in (4, 2, 1):
        for w in range(s_):
            for i in range(8): a.I(f"v_add_f32 v{32+8*w+i}, v{32+8*w+i}, v{32+8*(w+s_)+i}")
    for d in range(4): a.I(f"v_cvt_pk_bf16_f32 v{8+d}, v{32+2*d}, v{33+2*d}")
    a.I("s_lshr_b32 s16, s21, 1", "s_lshl_b32 s19, s16, 12", f"s_add_u32 s19, s19, {WS_KV}",
        "s_and_b32 s16, s21, 1", "s_lshl_b32 s16, s16, 10", "s_add_u32 s19, s19, s16",
        "s_waitcnt vmcnt(0)", "s_cmp_eq_u32 s22, 0", "s_cbranch_scc0 P0_SV",
        "buffer_store_dwordx4 v[8:11], v3, s[32:35], s19 offen sc1", "s_branch P0_KF")
    a.L("P0_SV")
    a.I("v_and_b32 v2, 1, v5", "v_lshlrev_b32 v4, 9, v2", "v_and_b32 v2, 15, v1", "v_lshl_add_u32 v4, v2, 4, v4",
        "v_lshrrev_b32 v2, 1, v5", "v_lshl_add_u32 v4, v2, 3, v4",
        "buffer_store_dwordx2 v[8:9], v4, s[32:35], s19 offen offset:2048 sc1",
        "buffer_store_dwordx2 v[10:11], v4, s[32:35], s19 offen offset:2304 sc1")
    a.L("P0_KF")
    if "kvearly" in EXP:
        a.I("s_lshl_b32 s18, s2, 2", f"s_add_u32 s18, s18, {WS_FL+FL_KV}", "s_waitcnt vmcnt(0)")
        set_flag(a, 18)
    a.L("P0_END")

def kv_groups():
    gs = []
    for g in range(2):
        for i in range(4):
            o = [f"s_add_u32 m0, s25, {g*4096}", f"s_add_u32 s26, s24, {g*4096}"] if i == 0 else []
            gs.append(o + [f"buffer_load_dwordx4 v3, s[36:39], s26 offen offset:{i*1024} lds"])
    gs[-1] += ["s_add_u32 s24, s24, 32768", "s_xor_b32 s25, s25, 32768"]
    return gs

def emit_loop(a, label, bodies):
    best = (0, 1)
    i = 0
    while i < len(bodies):
        j = i
        while j < len(bodies) and bodies[j] == bodies[i]: j += 1
        if j - i > best[1] - best[0]: best = (i, j)
        i = j
    for k in range(best[0]): a.extend(bodies[k])
    a.I(f"s_mov_b32 s51, {best[1]-best[0]}")
    a.L(label)
    a.extend(bodies[best[0]])
    a.I("s_sub_u32 s51, s51, 1", "s_cmp_lg_u32 s51, 0", f"s_cbranch_scc1 {label}")
    for k in range(best[1], len(bodies)): a.extend(bodies[k])

def xn_poll(a):
    a.I("s_and_b32 s18, s2, 0xe0", "s_lshr_b32 s16, s20, 2", "s_lshl_b32 s16, s16, 4", "s_add_u32 s18, s18, s16",
        "s_and_b32 s16, s20, 3", "s_lshl_b32 s16, s16, 1", "s_add_u32 s18, s18, s16", "s_lshl_b32 s18, s18, 5", f"s_add_u32 s18, s18, {WS_FL+FL_X}",
        "v_and_b32 v2, 3, v1", "v_lshlrev_b32 v8, 2, v2", "v_bfe_u32 v2, v1, 2, 1", "v_lshl_add_u32 v8, v2, 5, v8",
        "v_lshrrev_b32 v2, 3, v1", "v_lshl_add_u32 v8, v2, 8, v8")
    if int(OPT.get("xs", 0)):
        a.extend(poll(18, 16, 8, 17, sleep=int(OPT.get("xs"))))
        return
    a.extend(lanes(16) + ["s_mov_b32 s17, 0x20000", poll_load(18, 8, 17), "s_sleep 3", "G1_PP:", poll_load(18, 8, 18), "s_waitcnt vmcnt(1)",
             "v_cmp_ne_u32 vcc, s55, v17", "s_cbranch_vccz G1_PD", poll_load(18, 8, 17), "s_waitcnt vmcnt(1)",
             "v_cmp_ne_u32 vcc, s55, v18", "s_cbranch_vccz G1_PD", "s_sub_u32 s17, s17, 1", "s_cmp_lg_u32 s17, 0", "s_cbranch_scc1 G1_PP",
             "G1_PD:", "s_mov_b64 exec, -1"])

def g1(a):
    EA = "ea" in EXP.split("_")
    NST = 32; R = 5; SLOT = 32768
    ACC = 128; FA = 64; FW = 96
    def acc(h, u, t): return ACC + (t * 4 + h * 2 + u) * 4
    a.I("s_and_b32 s16, s2, 7", "s_lshl_b32 s16, s16, 2", "s_bfe_u32 s21, s2, 0x20003", "s_add_u32 s21, s21, s16",
        "s_lshr_b32 s22, s2, 5", "s_and_b32 s23, s20, 3", "v_add_u32 v10, 31744, v3",
        "s_lshl_b32 s16, s22, 4", "s_lshl_b32 s17, s20, 1", "s_add_u32 s16, s16, s17", "s_lshl_b32 s44, s16, 15",
        "s_lshl_b32 s45, s20, 11", "s_mov_b32 s47, 0", "s_mov_b32 s50, 0", f"s_mov_b32 s52, {SLOT}",
        *([f"s_mov_b32 s47, {SLOT}", "s_add_u32 s44, s44, 1024"] if EA else []))
    PD = int(OPT.get("pd", 5))
    RH = int(OPT.get("rh", 1)); PX = int(OPT.get("px", 0))
    if PD:
        a.I(f"s_load_dwordx2 s[4:5], s[0:1], {KA_WQ}", f"s_load_dwordx2 s[6:7], s[0:1], {KA_WD}", f"s_load_dwordx2 s[8:9], s[0:1], {KA_WO}",
            f"v_min_u32 v2, {7*RH-1}, v1", "v_lshlrev_b32 v14, 7, v2", f"s_mul_i32 s16, s2, {896*RH}", "v_add_u32 v14, s16, v14",
            f"s_mov_b32 s31, {32*7168*RH}", f"s_mov_b32 s30, {PD*32*7168}", "s_cmp_eq_u32 s23, 0", "s_cbranch_scc1 G1_T0",
            *([f"s_mov_b32 s30, {PX*32*7168}", "v_bfe_u32 v2, v1, 2, 2", "s_lshl_b32 s16, s22, 2", "v_add_u32 v2, s16, v2", "v_mul_u32_u24 v14, 7168, v2",
               "v_and_b32 v2, 3, v1", "v_min_u32 v2, 2, v2", "v_mul_u32_u24 v2, 104, v2", "s_mul_i32 s16, s21, 224", "v_add3_u32 v14, v14, v2, s16",
               "s_cmp_eq_u32 s23, 2", "s_cbranch_scc1 G1_T0"] if PX else []),
            "s_mov_b32 s30, 0x7f000000", "s_mov_b32 s31, 0", "s_cmp_ge_u32 s20, 4", "s_cbranch_scc1 G1_T0", "s_waitcnt lgkmcnt(0)",
            "s_cmp_eq_u32 s20, 1", "s_cbranch_scc0 G1_T2")
        srd(a, 24, 4, 1024 * 1024 * 2)
        a.I("v_and_b32 v2, 1, v1", "v_lshlrev_b32 v14, 7, v2", "s_lshl_b32 s16, s2, 8", "v_add_u32 v14, s16, v14",
            f"s_mov_b32 s31, {32*2048}", f"s_mov_b32 s30, {PD*32*2048}", "s_branch G1_T0")
        a.L("G1_T2")
        if "nolate" not in EXP:
            a.I("s_cmp_eq_u32 s20, 2", "s_cbranch_scc0 G1_T3")
            srd(a, 24, 6, 3584 * 1024 * 2)
            if "lwd" in EXP: a.I("v_min_u32 v2, 8, v1", "v_lshlrev_b32 v14, 7, v2", "s_mov_b32 s31, 1152", "s_mul_i32 s30, s2, 28672")
            a.I("s_branch G1_T0")
            a.L("G1_T3")
            srd(a, 24, 8, 1024 * 1024 * 2)
            a.I("v_min_u32 v2, 2, v1", "v_lshlrev_b32 v14, 7, v2", "s_mov_b32 s31, 384", "s_lshl_b32 s30, s2, 13")
        a.L("G1_T0")
    def touch(): return ["buffer_load_dword v16, v14, s[24:27], s30 offen" + OPT.get("tm", "").replace("+", " "), "s_add_u32 s30, s30, s31"] if PD else []
    def touch0(): return []
    if not EA: xn_poll(a)
    ts(a, 11)
    def adv(reg): return [f"s_add_u32 s{reg}, s{reg}, {SLOT}", f"s_cmp_eq_u32 s{reg}, {SLOT*R}", f"s_cselect_b32 s{reg}, 0, s{reg}"]
    def dma_act():
        return ["s_add_u32 m0, s47, s45", "s_nop 0", "buffer_load_dwordx4 v3, s[32:35], s44 offen lds",
                "buffer_load_dwordx4 v10, s[32:35], s44 offen offset:1024 lds", "s_add_u32 s44, s44, 1024"] + adv(47)
    def dma_w(): return w_dma(52) + adv(52)
    def rdaddr():
        return ["s_lshr_b32 s17, s20, 2", "s_lshl_b32 s16, s17, 13", "v_add_u32 v6, s16, v3",
                "s_and_b32 s19, s21, 1", "s_lshl_b32 s16, s23, 1", "s_add_u32 s40, s16, s19", "s_add_u32 s41, s40, 1",
                "s_mul_i32 s16, s19, 6", "s_sub_u32 s16, 6, s16", "s_cmp_eq_u32 s23, 3", "s_cselect_b32 s40, s16, s40", "s_cselect_b32 s41, 7, s41",
                "v_lshrrev_b32 v2, 4, v1", "v_lshlrev_b32 v7, 11, v2", "v_and_b32 v2, 1, v2", "v_lshlrev_b32 v12, 2, v2",
                "v_bfe_u32 v2, v1, 2, 2", "v_lshl_add_u32 v7, v2, 8, v7", "v_add_u32 v12, v12, v2",
                "v_and_b32 v2, 3, v1", "v_lshl_add_u32 v7, v2, 3, v7", "v_add_u32 v7, 16384, v7",
                "v_xor_b32 v2, s41, v12", "v_lshl_add_u32 v11, v2, 5, v7", "v_xor_b32 v2, s40, v12", "v_lshl_add_u32 v7, v2, 5, v7"]
    def reads():
        o = ["v_add_u32 v8, s50, v6", "v_add_u32 v9, s50, v7", "v_add_u32 v13, s50, v11"]
        for h in range(2):
            for u in range(2):
                for rd in range(2):
                    o.append(f"ds_read_b64_tr_b16 {vr(FW+(h*2+u)*4+2*rd,2)}, v{9 if u == 0 else 13} offset:{h*8192+rd*1024}")
        for t in range(8): o.append(f"ds_read_b128 {vr(FA+t*4,4)}, v8 offset:{t*1024}")
        return o + adv(50)
    def mm(first):
        return [mfma16(acc(h, u, t), FW + (h * 2 + u) * 4, FA + t * 4, "0" if first else None) for t in range(8) for h in range(2) for u in range(2)]
    a.I("s_cmp_ge_u32 s20, 4", "s_cbranch_scc1 G1_B")
    L = Log()
    NP0 = int(OPT.get("np0", 2))
    def proA(js): return [x for j in js for x in (L.note(dma_w(), j) if 0 < j < R - 1 else []) + (L.note(dma_act(), j) if j or not EA else [])]
    a.extend(proA(range(NP0)))
    def kv_flag():
        a.I("s_lshl_b32 s18, s2, 2", f"s_add_u32 s18, s18, {WS_FL+FL_KV}", "s_cmp_eq_u32 s20, 0", "s_cselect_b32 s18, s18, 0x7f000000")
        set_flag(a, 18); L.note(["buffer"], None)
    if not EA: kv_flag()
    a.extend(rdaddr())
    if EA: a.I("s_cmp_eq_u32 s20, 0", "s_cbranch_scc1 G1_W0")
    a.I(f"s_waitcnt vmcnt({L.cnt(0)})", "G1_W0:", "s_barrier")
    a.extend(mixmem(reads(), proA(range(NP0, R)), False))
    E0 = "noe0" not in EXP
    a.I("s_waitcnt lgkmcnt(0)" if E0 else f"s_waitcnt vmcnt({L.cnt(1)}) lgkmcnt(0)", "s_barrier")
    ts(a, 12)
    kv = kv_groups()
    def bodyA(k, first=False):
        o = mm(first)
        if first and E0: o += [f"s_waitcnt vmcnt({L.cnt(1)})", "s_barrier"]
        if first and EA:
            o += ["s_lshl_b32 s18, s2, 2", f"s_add_u32 s18, s18, {WS_FL+FL_KV}", "s_cmp_eq_u32 s20, 0", "s_cselect_b32 s18, s18, 0x7f000000",
                  "v_mov_b32 v17, s55", "v_mov_b32 v18, 0", "s_mov_b64 exec, 1"] + L.note(["buffer_store_dword v17, v18, s[32:35], s18 offen sc1"], None) + ["s_mov_b64 exec, -1"]
        dm = L.note([f"s_mov_b32 s18, {WS_FL+FL_KV}", poll_load(18, 3, 28, True)], None) if k == 27 else []
        dm += (L.note(dma_w(), k - 1 + R) if k - 1 + R < NST else []) + (L.note(dma_act() + touch(), k + R) if k + R < NST else [])
        if k + R < NST and PD: L.l[-1] = None
        if k == 28:
            o += poll(18, 64, 3, 28, True, preloaded=2)
            o += ["s_lshl_b32 s24, s20, 13", f"s_add_u32 s25, s24, {LKV}",
                  f"s_add_u32 s36, s32, {WS_KV}", "s_addc_u32 s37, s33, 0", "s_mov_b32 s38, 0x40000", "s_mov_b32 s39, 0x20000"]
            dm = L.note([x for g in kv for x in g], None)
        if k == 29: dm = L.note([x for g in kv for x in g], None)
        o += mixmem(reads() if k + 1 < NST else [], dm)
        if k + 1 < NST: o += [f"s_waitcnt vmcnt({L.cnt(k + 2)}) lgkmcnt(0)", "s_barrier"]
        return o
    emit_loop(a, "G1_A_LOOP", [bodyA(k, k == 0) for k in range(NST)])
    a.I("s_branch G1_EPI")
    a.L("G1_B")
    M = Log()
    def proB(js): return [x for j in js for x in (M.note(dma_w(), j) if j else []) + (M.note(dma_act(), j) if j or not EA else [])]
    a.extend(proB(range(min(NP0, R - 1))))
    a.extend(rdaddr())
    a.I(f"s_waitcnt vmcnt({M.cnt(0)})", "s_barrier")
    a.extend(proB(range(min(NP0, R - 1), R - 1)))
    a.I(*([] if E0 else [f"s_waitcnt vmcnt({M.cnt(1)})"]), "s_barrier")
    def bodyB(k, first=False):
        dm = M.note(dma_w() + dma_act(), k - 1 + R) + M.note(touch(), None) if k - 1 + R < NST else []
        o = mixmem(reads(), dm) + ([f"s_waitcnt vmcnt({M.cnt(1)})", "s_barrier"] if first and E0 else []) + ["s_waitcnt lgkmcnt(0)"] + mm(first)
        if k + 1 < NST: o += [f"s_waitcnt vmcnt({M.cnt(k + 2)})", "s_barrier"]
        return o
    emit_loop(a, "G1_B_LOOP", [bodyB(k, k == 0) for k in range(NST)])
    a.L("G1_EPI")
    ts(a, 1)
    a.I("s_lshl_b32 s16, s20, 8", f"s_add_u32 s16, s16, {LC}", "v_lshl_add_u32 v13, v1, 2, s16", "v_mov_b32 v12, 0", "ds_write_b32 v13, v12")
    wave_flag(a, 60, FL_H)
    a.I("s_lshl_b32 s16, s22, 4", "s_lshr_b32 s17, s20, 2", "s_lshl_b32 s17, s17, 3", "s_add_u32 s16, s16, s17", "s_mul_i32 s16, s16, 112",
        "s_mul_i32 s17, s21, 7", "s_add_u32 s17, s17, s40", "s_lshr_b32 s17, s17, 1", "s_add_u32 s16, s16, s17",
        "s_lshl_b32 s16, s16, 10", f"s_add_u32 s61, s16, {WS_H}", "s_cmp_lg_u32 s23, 3", "s_cbranch_scc1 G1_NQ")
    a.I(f"s_mov_b32 s18, {f32(QSCALE)}", "s_lshr_b32 s16, s20, 2", "s_lshl_b32 s16, s16, 13", f"s_add_u32 s16, s16, {LQ}",
        "v_add_u32 v9, s16, v3", "s_lshl_b32 s16, s19, 3", "s_add_u32 s61, s61, s16")
    for t in range(8):
        q0, q1 = acc(0, 1, t), acc(1, 1, t)
        for i in range(4): a.I(f"v_mul_f32 v{q0+i}, s18, v{q0+i}", f"v_mul_f32 v{q1+i}, s18, v{q1+i}")
        a.I(f"v_cvt_pk_bf16_f32 v{FA+4*t}, v{q0}, v{q0+1}", f"v_cvt_pk_bf16_f32 v{FA+4*t+1}, v{q0+2}, v{q0+3}",
            f"v_cvt_pk_bf16_f32 v{FA+4*t+2}, v{q1}, v{q1+1}", f"v_cvt_pk_bf16_f32 v{FA+4*t+3}, v{q1+2}, v{q1+3}",
            f"ds_write_b128 v9, {vr(FA+4*t,4)} offset:{t*1024}")
    a.L("G1_NQ")
    XE = "xlate" not in EXP
    if XE: a.I("s_cmp_lt_u32 s20, 4", "s_cbranch_scc1 G1_PK", "s_waitcnt lgkmcnt(0)", "s_barrier", "s_setprio 3", "G1_PK:")
    a.I("s_cmp_eq_u32 s23, 3", "s_cbranch_scc1 G1_EPQ")
    for t in reversed(range(8)):
        g, u = acc(0, 0, t), acc(1, 0, t)
        for i in range(8): a.I(f"v_max_f32 v{g+i}, 0, v{g+i}")
        for i in range(8): a.I(f"v_mul_f32 v{g+i}, v{g+i}, v{u+i}")
        for d in range(4): a.I(f"v_cvt_pk_bf16_f32 v{HP+4*t+d}, v{g+2*d}, v{g+2*d+1}")
    a.I("s_branch G1_X")
    a.L("G1_EPQ")
    for t in reversed(range(8)):
        g, u = acc(0, 0, t), acc(1, 0, t)
        for i in range(4): a.I(f"v_max_f32 v{g+i}, 0, v{g+i}")
        for i in range(4): a.I(f"v_mul_f32 v{g+i}, v{g+i}, v{u+i}")
        for d in range(2): a.I(f"v_cvt_pk_bf16_f32 v{HP+4*t+d}, v{g+2*d}, v{g+2*d+1}")
    a.L("G1_X")
    a.I("s_cmp_ge_u32 s20, 4", "s_cbranch_scc1 G1_X2", "s_lshl_b32 s16, s20, 11", "v_add_u32 v9, s16, v3")
    for t in range(8): a.I(f"ds_write_b128 v9, {vr(HP+4*t,4)} offset:{(t>>1)*8192+(t&1)*1024}")
    if XE: a.I("s_waitcnt lgkmcnt(0)", "s_barrier", "G1_X2:")
    else: a.I("G1_X2:", "s_waitcnt lgkmcnt(0)", "s_barrier")
    ts(a, 2)

def h_stores(a):
    _n[0] += 1; lab = f"HS{_n[0]}"
    a.I(f"s_sub_u32 s16, s61, {8*112*1024}", "s_cmp_eq_u32 s20, 3", f"s_cbranch_scc1 {lab}")
    for w, n in ((4, lab + "_D"), (2, None)):
        for t in range(8): a.I(f"buffer_store_dwordx{w} {vr(HP+4*t,w)}, v3, s[32:35], s61 offen{SC1}", f"s_add_u32 s61, s61, {112*1024}")
        a.I("s_waitcnt lgkmcnt(0)")
        for t in range(8): a.I(f"buffer_store_dwordx{w} {vr(192+4*t,w)}, v3, s[32:35], s16 offen{SC1}", f"s_add_u32 s16, s16, {112*1024}")
        if n: a.I(f"s_branch {n}"); a.L(lab)
    a.L(lab + "_D")

def attention(a):
    QR = [16, 24]; KB = [32, 48]; VB = [40, 56]; P = 64; SEL = 72; Lr = [76, 80]; S = [96, 112]; O = [128, 144]; C = [160, 176]
    a.I(f"s_add_u32 s36, s32, {WS_KV}", "s_addc_u32 s37, s33, 0", "s_mov_b32 s38, 0x40000", "s_mov_b32 s39, 0x20000")
    a.I("v_bfe_u32 v2, v1, 4, 1", "v_lshlrev_b32 v4, 10, v2", "v_lshrrev_b32 v2, 5, v1", "v_lshl_add_u32 v4, v2, 8, v4",
        "v_and_b32 v2, 15, v1", "v_lshl_add_u32 v4, v2, 4, v4",
        "s_lshl_b32 s16, s20, 12", f"s_add_u32 s16, s16, {LQ}", "v_add_u32 v5, s16, v4")
    for b in range(2):
        for ks in range(2): a.I(f"ds_read_b128 {vr(QR[b]+4*ks,4)}, v5 offset:{b*2048+ks*512}")
    a.I(f"v_add_u32 v6, {LKV}, v4", f"v_add_u32 v7, {LKV+2048}, v3")
    sync_setup(a, LC, 13, 14, 12)
    a.I("s_waitcnt vmcnt(8)")
    sync_block(a, 13, 14, 12, 15)
    def rdK(buf, off): return [f"ds_read_b128 {vr(KB[buf]+4*ks,4)}, v6 offset:{off+ks*512}" for ks in range(2)]
    def rdV(buf, off): return [f"ds_read_b128 {vr(VB[buf]+4*ks,4)}, v7 offset:{off+ks*1024}" for ks in range(2)]
    a.extend(rdK(0, 0) + rdV(0, 0))
    def rsum(b): return f"v_smfmac_f32_16x16x64_bf16 {vr(Lr[b],4)}, {vr(SEL,4)}, {vr(P,8)}, v84"
    a.I("v_and_b32 v2, 4, v1", "v_cmp_eq_u32 vcc, 0, v2", "v_mov_b32 v5, 0x3f803f80", "s_mov_b32 s28, 0", "v_and_b32 v2, 1, v1",
        f"v_cndmask_b32 v{SEL}, 0, v5, vcc", f"v_cndmask_b32 v{SEL+2}, v5, 0, vcc" if False else f"v_xor_b32 v{SEL+2}, v5, v{SEL}",
        f"v_mov_b32 v{SEL+1}, v{SEL}", f"v_mov_b32 v{SEL+3}, v{SEL+2}",
        "s_mov_b32 s16, 0xaaaaaaaa", "v_mul_lo_u32 v84, v2, s16", "v_or_b32 v84, 0x44444444, v84")
    a.I("s_waitcnt lgkmcnt(0)")
    ts(a, 3)
    for b in range(2):
        a.I(mfma32(S[b], KB[0], QR[b], "0"), mfma32(S[b], KB[0] + 4, QR[b] + 4))
    for b in range(2):
        for i in range(16): a.I(f"v_mov_b32 v{O[b]+i}, 0")
        for i in range(4): a.I(f"v_mov_b32 v{Lr[b]+i}, 0")
    for i in range(4): a.I(f"v_mov_b32 v{P+i}, 0", f"v_mov_b32 v{P+4+i}, 0", f"v_mov_b32 v{VB[1]+4+i}, 0")
    for b in range(2):
        s0 = S[b]; m = 8 + 2 * b
        a.I(f"v_max3_f32 v{m}, v{s0}, v{s0+1}, v{s0+2}")
        for i in range(3, 15, 2): a.I(f"v_max3_f32 v{m}, v{m}, v{s0+i}, v{s0+i+1}")
        a.I(f"v_max_f32 v{m}, v{m}, v{s0+15}", f"v_mov_b32 v{m+1}, v{m}")
    for b in range(2):
        m = 8 + 2 * b
        a.I(f"v_permlane32_swap_b32 v{m}, v{m+1}", f"v_max_f32 v{m}, v{m}, v{m+1}", f"v_sub_f32 v{C[b]}, 0, v{m}")
        for i in range(1, 16): a.I(f"v_mov_b32 v{C[b]+i}, v{C[b]}")
    a.I(mfma32(S[0], KB[0], QR[0], C[0]), mfma32(S[0], KB[0] + 4, QR[0] + 4))
    def tile(b, kbuf_next, vbuf, vprev, extra, dg):
        nb = 1 - b; s0 = S[b]
        ex = [f"v_exp_f32 v{s0+i}, v{s0+i}" for i in range(16)]
        cv = [f"v_cvt_pk_bf16_f32 v{P+d}, v{s0+2*d}, v{s0+2*d+1}" for d in range(8)]
        e = list(extra) + [None] * 4
        if "twow" not in EXP:
            o = [mfma32(S[nb], KB[kbuf_next], QR[nb], C[nb]), e[0]] + ex[0:2] + [e[1], ex[2]]
            o += [mfma32(O[nb], VB[vprev] + 4, P + 4), e[2]] + ex[3:6]
            o += [rsum(nb), e[3]] + ex[6:8]
            o += [mfma32(S[nb], KB[kbuf_next] + 4, QR[nb] + 4), cv[0], cv[1], ex[8], cv[2], cv[3], ex[9], ex[10]]
            o += [mfma32(O[b], VB[vbuf], P)] + ex[11:14]
        else:
            o = [mfma32(S[nb], KB[kbuf_next], QR[nb], C[nb]), e[0]] + ex[0:3]
            o += [mfma32(O[nb], VB[vprev] + 4, P + 4), e[1]] + ex[3:6]
            o += [rsum(nb)] + ex[6:8]
            o += [mfma32(S[nb], KB[kbuf_next] + 4, QR[nb] + 4), e[2], cv[0], cv[1], ex[8], cv[2], cv[3], ex[9], ex[10]]
            o += [mfma32(O[b], VB[vbuf], P), e[3]] + ex[11:14]
        o += (dg or []) + [ex[14], ex[15]] + cv[4:8]
        return [x for x in o if x]
    a.I(f"s_setprio {int(OPT.get('ap', 2))}", "s_nop 11")
    dg = kv_groups()
    ONEW = "twow" not in EXP
    def trip(first, sfx):
        def chk(tag):
            return ["v_cmp_gt_u32 vcc, s53, v15", "s_nop 0", f"s_cbranch_vccnz ATT_SP{tag}{sfx}", f"ATT_CT{tag}{sfx}:"]
        for kb in range(8):
            cur = kb & 1; nxt = 1 - cur
            arrive = ["ds_add_u32 v13, v12", "s_add_u32 s53, s53, 1"]
            if kb == 0 and not first: a.extend(chk(0))
            if kb == 6: a.I("s_waitcnt vmcnt(0)", *arrive)
            if kb == 7: a.extend(chk(7) + arrive)
            if kb == 7: a.I("v_xor_b32 v6, 0x8000, v6", "v_xor_b32 v7, 0x8000, v7")
            off = ((kb + 1) & 7) * 4096
            g0, g1 = (dg[2 * kb], dg[2 * kb + 1]) if kb < 4 and not first else (None, ["ds_read_b32 v15, v14"] if kb >= 6 else None)
            a.extend(tile(0, cur, cur, nxt, rdK(nxt, off) + rdV(nxt, off), g0))
            a.I("s_waitcnt lgkmcnt(0)" if ONEW else "s_waitcnt lgkmcnt(2)")
            a.extend(tile(1, nxt, cur, cur, [], g1))
            if kb == 7 and not first: a.I("s_add_u32 s28, s28, 1", "s_cmp_lg_u32 s28, 7")
            if not ONEW or kb >= 6: a.I("s_waitcnt lgkmcnt(0)")
    trip(True, "F")
    a.L("ATT_LOOP")
    trip(False, "")
    a.I("s_cbranch_scc1 ATT_LOOP")
    a.I(mfma32(O[1], VB[1] + 4, P + 4), rsum(1))
    ts(a, 4)
    for b in range(2): a.I(f"v_add_f32 v{Lr[b]}, v{Lr[b]}, v{Lr[b]+1}")
    a.I("s_setprio 3", f"s_mov_b32 s16, {f32(2.0**100)}")
    for b in range(2):
        a.I(f"v_max3_f32 v{8+b}, abs(v{O[b]}), abs(v{O[b]+1}), v{Lr[b]}", f"v_add_f32 v{10+b}, v{O[b]}, v{O[b]+1}")
    for i in range(2, 16, 2):
        for b in range(2):
            a.I(f"v_max3_f32 v{8+b}, v{8+b}, abs(v{O[b]+i}), abs(v{O[b]+i+1})", f"v_add3_u32 v2, v2, v2, v2" if False else f"v_add_f32 v{10+b}, v{10+b}, v{O[b]+i}",
                f"v_add_f32 v{86+b}, v{O[b]+i+1}, v{Lr[b]}" if i == 2 else f"v_add_f32 v{86+b}, v{86+b}, v{O[b]+i+1}")
    a.I("v_max_f32 v8, v8, v9", "v_add_f32 v10, v10, v11", "v_add_f32 v86, v86, v87", "v_add_f32 v9, v10, v86")
    a.I("v_cmp_nlt_f32 vcc, v8, s16", "v_cmp_u_f32 s[18:19], v9, v9", "s_or_b64 vcc, vcc, s[18:19]")
    if "force" in EXP: a.I("s_mov_b64 vcc, -1")
    a.I("s_cbranch_vccz ATT_FIN")
    for b in range(2):
        M = 10; AL = 11
        for i in range(16): a.I(f"v_mov_b32 v{O[b]+i}, 0")
        for i in range(4): a.I(f"v_mov_b32 v{Lr[b]+i}, 0")
        a.I(f"v_mov_b32 v{M}, {f32(-3.0e38)}", f"s_mov_b32 s29, 0")
        a.L(f"ATT_FB{b}")
        for ks in range(2):
            a.I(f"buffer_load_dwordx4 {vr(KB[0]+4*ks,4)}, v4, s[36:39], s29 offen offset:{ks*512}",
                f"buffer_load_dwordx4 {vr(VB[0]+4*ks,4)}, v3, s[36:39], s29 offen offset:{2048+ks*1024}")
        a.I("s_waitcnt vmcnt(0)")
        s0 = S[0]
        a.I(mfma32(s0, KB[0], QR[b], "0"), mfma32(s0, KB[0] + 4, QR[b] + 4))
        a.I(f"v_max3_f32 v8, v{s0}, v{s0+1}, v{M}")
        for i in range(2, 16, 2): a.I(f"v_max3_f32 v8, v8, v{s0+i}, v{s0+i+1}")
        a.I("v_mov_b32 v9, v8", "v_permlane32_swap_b32 v8, v9", "v_max_f32 v8, v8, v9",
            f"v_sub_f32 v{AL}, v{M}, v8", f"v_exp_f32 v{AL}, v{AL}", f"v_mov_b32 v{M}, v8")
        for i in range(16): a.I(f"v_sub_f32 v{s0+i}, v{s0+i}, v8")
        for i in range(16): a.I(f"v_exp_f32 v{s0+i}, v{s0+i}")
        for i in range(16): a.I(f"v_mul_f32 v{O[b]+i}, v{O[b]+i}, v{AL}")
        for i in range(4): a.I(f"v_mul_f32 v{Lr[b]+i}, v{Lr[b]+i}, v{AL}")
        for d in range(8): a.I(f"v_cvt_pk_bf16_f32 v{P+d}, v{s0+2*d}, v{s0+2*d+1}")
        a.I(mfma32(O[b], VB[0], P), mfma32(O[b], VB[0] + 4, P + 4), rsum(b))
        a.I("s_add_u32 s29, s29, 4096", f"s_cmp_lg_u32 s29, {64*4096}", f"s_cbranch_scc1 ATT_FB{b}")
        a.I(f"v_add_f32 v{Lr[b]}, v{Lr[b]}, v{Lr[b]+1}")
    a.L("ATT_FIN")
    a.I("v_mov_b32 v23, v13", "v_mov_b32 v24, v14", "v_mov_b32 v25, v12")
    a.I("v_bfe_u32 v2, v1, 4, 1", "v_lshlrev_b32 v5, 15, v2", "v_lshrrev_b32 v2, 5, v1", "v_lshl_add_u32 v5, v2, 8, v5",
        "v_and_b32 v2, 15, v1", "v_lshl_add_u32 v5, v2, 4, v5",
        "s_lshl_b32 s16, s22, 2", "s_add_u32 s16, s16, s20", "s_lshl_b32 s16, s16, 7", "s_add_u32 s16, s16, s21", "s_lshl_b32 s16, s16, 10",
        f"s_add_u32 s16, s16, {WS_O}", "s_add_u32 s17, s16, 65536")
    for b in range(2): a.I(f"v_rcp_f32 v{8+b}, v{Lr[b]}")
    for b in range(2):
        for i in range(16): a.I(f"v_mul_f32 v{O[b]+i}, v{O[b]+i}, v{8+b}")
        for d in range(8): a.I(f"v_cvt_pk_bf16_f32 v{S[b]+d}, v{O[b]+2*d}, v{O[b]+2*d+1}")
        for ks in range(2):
            a.I(f"buffer_store_dwordx4 {vr(S[b]+4*ks,4)}, v5, s[32:35], s{16+b} offen offset:{ks*512}{SC1}")

def down(a):
    R = 8; SLOT = 8192; NH_ = 56; NST = NH_ + 16 - NPA
    FW_ = [32, 64]; AR = 192; ACC = 128
    M32 = "d32" in EXP
    a.I(f"s_setprio {int(OPT.get('bp', 0))}", "s_lshl_b32 s16, s20, 11", "v_add_u32 v9, s16, v3")
    for t in range(8): a.I(f"ds_read_b128 {vr(192+4*t,4)}, v9 offset:{(t>>1)*8192+(t&1)*1024}")
    h_stores(a)
    a.I(f"s_load_dwordx2 s[8:9], s[0:1], {KA_WD}", f"s_load_dwordx2 s[4:5], s[0:1], {KA_WO}",
        "s_and_b32 s21, s2, 1",
        "s_bfe_u32 s16, s2, 0x10001", "s_lshl_b32 s16, s16, 3", "s_bfe_u32 s17, s2, 0x30003", "s_add_u32 s22, s16, s17",
        "s_bfe_u32 s16, s2, 0x10002", "s_lshl_b32 s16, s16, 2", "s_bfe_u32 s17, s2, 0x20006", "s_add_u32 s23, s16, s17",
        "s_lshl_b32 s46, s20, 11",
        "v_lshrrev_b32 v2, 4, v1", "s_lshl_b32 s16, s20, 3", "v_add_u32 v4, s16, v2", "v_lshlrev_b32 v4, 11, v4",
        "v_bfe_u32 v5, v1, 1, 3", *(["v_lshlrev_b32 v6, 1, v2", "v_xor_b32 v6, v6, v5", "v_mov_b32 v7, v6"] if M32 else ["v_xor_b32 v6, v2, v5", "v_xor_b32 v7, 4, v6"]),
        "v_and_b32 v2, 1, v1", "v_lshl_add_u32 v4, v2, 4, v4", "s_lshl_b32 s16, s23, 8", "v_add_u32 v4, s16, v4",
        f"v_add_u32 v5, {4*2048-1024}, v4",
        "v_lshl_add_u32 v4, v6, 5, v4", "v_lshl_add_u32 v5, v7, 5, v5",
        "s_mul_i32 s48, s21, %d" % (1792 * 2048), "s_waitcnt lgkmcnt(0)")
    srd(a, 24, 8, 3584 * 1024 * 2)
    def dma_w(st):
        sw = [*[f"s_mov_b32 s{24+i}, s{4+i}" for i in range(2)], "s_mov_b32 s26, 0x200000", "s_mov_b32 s48, s40"] if st == NH_ else []
        return sw + [f"s_add_u32 m0, s46, {(st % R) * SLOT}", "s_add_u32 s49, s48, 0",
                "buffer_load_dwordx4 v4, s[24:27], s49 offen lds", "s_add_u32 s48, s48, 65536",
                "buffer_load_dwordx4 v5, s[24:27], s49 offen offset:1024 lds"]
    def ld_a(st):
        r = AR + (st % R) * 8
        if st >= NH_:
            return (["s_mov_b32 s44, s41"] if st == NH_ else []) + [f"buffer_load_dwordx4 {vr(r,4)}, v3, s[32:35], s44 offen",
                    f"buffer_load_dwordx4 {vr(r+4,4)}, v27, s[32:35], s44 offen", "s_add_u32 s44, s44, 1024"]
        if M32: return [f"buffer_load_dwordx4 {vr(r,4)}, v10, s[32:35], s44 offen", f"buffer_load_dwordx4 {vr(r+4,4)}, v10, s[32:35], s44 offen offset:512",
                        "s_add_u32 s44, s44, 1024"]
        return [f"buffer_load_dwordx4 {vr(r,4)}, v3, s[32:35], s44 offen", f"buffer_load_dwordx4 {vr(r+4,4)}, v10, s[32:35], s44 offen",
                "s_add_u32 s44, s44, 1024"]
    L = Log()
    NW = int(OPT.get("nw", 2))
    for j in range(NW): a.extend(L.note(dma_w(j), ("w", j)))
    a.I(f"s_waitcnt vmcnt({2*NW})")
    set_flag(a, 60)
    LAG = int(OPT.get("lag", 2))
    for j in range(NW, R - LAG): a.extend(L.note(dma_w(j), ("w", j)))
    a.I("s_lshl_b32 s16, s22, 3", "s_lshl_b32 s17, s20, 1", "s_add_u32 s16, s16, s17", "s_mul_i32 s16, s16, 112",
        "s_mul_i32 s17, s21, 56", "s_add_u32 s16, s16, s17", "s_lshl_b32 s44, s16, 10", f"s_add_u32 s44, s44, {WS_H}",
        )
    if M32:
        a.I("v_bfe_u32 v2, v1, 4, 1", f"v_mul_u32_u24 v10, {112*1024}, v2", "v_lshrrev_b32 v8, 5, v1", "v_lshl_add_u32 v10, v8, 8, v10",
            "v_and_b32 v9, 15, v1", "v_lshl_add_u32 v10, v9, 4, v10",
            "v_lshlrev_b32 v12, 10, v8", "v_bfe_u32 v9, v1, 2, 2", "v_lshl_add_u32 v12, v9, 8, v12",
            "v_lshlrev_b32 v9, 1, v9", "v_xor_b32 v9, v9, v2", "v_lshl_add_u32 v12, v9, 5, v12",
            "v_and_b32 v9, 3, v1", "v_lshl_add_u32 v12, v9, 3, v12")
        for u in range(1, 4): a.I(f"v_xor_b32 v{12+u}, {64*u}, v12")
    else:
        a.I(f"v_add_u32 v10, {112*1024}, v3",
            "v_lshrrev_b32 v2, 4, v1", "v_lshlrev_b32 v12, 10, v2", "v_bfe_u32 v9, v1, 2, 2", "v_lshl_add_u32 v12, v9, 8, v12",
            "v_bfe_u32 v8, v1, 2, 3", "v_lshl_add_u32 v12, v8, 5, v12", "v_and_b32 v9, 3, v1", "v_lshl_add_u32 v12, v9, 3, v12")
        for u in range(1, 8): a.I(f"v_xor_b32 v{12+u}, {32*u}, v12")
    NT = 0
    if "wt2" in EXP:
        a.I("v_min_u32 v2, 55, v1", "v_lshlrev_b32 v24, 7, v2", "s_lshl_b32 s16, s2, 2", "s_add_u32 s16, s16, s20", "s_mul_i32 s16, s16, 7168",
            "buffer_load_dword v25, v24, s[24:27], s16 offen")
    if "wt" in EXP.split("_"):
        a.I("v_lshrrev_b32 v2, 1, v1", "v_lshlrev_b32 v24, 11, v2", "v_and_b32 v2, 1, v1", "v_lshl_add_u32 v24, v2, 7, v24",
            "s_and_b32 s16, s22, 7", "s_lshl_b32 s16, s16, 2", "s_add_u32 s16, s16, s20", "s_mul_i32 s16, s16, %d" % (56 * 2048),
            "s_mul_i32 s17, s21, %d" % (1792 * 2048), "s_add_u32 s16, s16, s17", "s_lshl_b32 s17, s23, 8", "s_add_u32 s16, s16, s17",
            f"s_add_u32 s17, s16, {24*2048}",
            "buffer_load_dword v25, v24, s[24:27], s16 offen", "buffer_load_dword v26, v24, s[24:27], s17 offen")
        NT = 2
    sync_setup(a, LC + 1024, 20, 21, 22)
    a.I("s_lshl_b32 s40, s21, 20", f"s_add_u32 s40, s40, {NPA*65536}", "s_and_b32 s16, s20, 1", "s_lshl_b32 s16, s16, 15", "s_add_u32 s40, s40, s16",
        "s_lshr_b32 s16, s20, 1", "s_lshl_b32 s16, s16, 14", "s_add_u32 s40, s40, s16", "s_lshl_b32 s16, s20, 14", "s_sub_u32 s40, s40, s16",
        "s_lshl_b32 s16, s22, 2", "s_add_u32 s16, s16, s20", "s_lshl_b32 s41, s16, 16", "s_lshl_b32 s16, s21, 14", "s_add_u32 s41, s41, s16",
        f"s_add_u32 s41, s41, {WS_O+NPA*1024}", "v_add_u32 v27, 0x8000, v3",
        f"v_add_u32 v2, {NPA}, v1", "v_and_b32 v8, 3, v2", "v_lshlrev_b32 v28, 8, v8", "v_bfe_u32 v8, v2, 2, 2", "v_lshl_add_u32 v28, v8, 5, v28",
        "s_lshr_b32 s16, s22, 1", "s_lshl_b32 s43, s16, 10", "s_and_b32 s16, s22, 1", "s_lshl_b32 s16, s16, 1", "s_lshr_b32 s17, s20, 1",
        "s_add_u32 s16, s16, s17", "s_lshl_b32 s16, s16, 2", "s_add_u32 s43, s43, s16", "s_lshl_b32 s16, s21, 7", "s_add_u32 s43, s43, s16",
        f"s_add_u32 s43, s43, {WS_FL+FL_O}")
    a.I("v_lshrrev_b32 v2, 4, v1", "v_bfe_u32 v8, v1, 2, 2", "v_lshl_add_u32 v9, v8, 3, v2", "v_lshlrev_b32 v9, 5, v9",
        "v_and_b32 v2, 3, v1", "v_lshl_add_u32 v9, v2, 2, v9",
        "s_lshr_b32 s18, s22, 1", "s_lshl_b32 s18, s18, 5", "s_lshl_b32 s16, s21, 2", "s_add_u32 s18, s18, s16", "s_lshl_b32 s18, s18, 5",
        f"s_add_u32 s18, s18, {WS_FL+FL_H+16}")
    PG = "nopg" not in EXP
    a.extend(poll(18, 8 if PG else 64, 9, sleep=int(OPT.get("hs", 2))))
    ts(a, 3)
    L.l = []
    for j in range(R - 1): a.extend(L.note(ld_a(j), ("a", j)))
    if PG: a.extend(L.note([poll_load(18, 9, 24), "s_mov_b32 s45, 44"], ("f", 0)))
    def need(k):
        last = max([i for i, t in enumerate(L.l) if (t[0] in "af" and t[1] <= k) or (t[0] == "w" and t[1] <= k + 1 + LAG)], default=-1)
        return len(L.l) - 1 - last
    def reads(st):
        if M32: return [f"ds_read_b64_tr_b16 {vr(FW_[st&1]+(ks*4+nb)*4+2*rd,2)}, v{12+nb} offset:{(st % R)*SLOT+ks*2048+rd*4096}"
                        for ks in range(2) for nb in range(4) for rd in range(2)]
        return [f"ds_read_b64_tr_b16 {vr(FW_[st&1]+u*4+2*rd,2)}, v{12+u} offset:{(st % R)*SLOT+rd*4096}" for u in range(8) for rd in range(2)]
    sync_block(a, 20, 21, 22, 23)
    a.extend(reads(0))
    a.I("ds_read_b32 v23, v21", f"s_mov_b32 s53, {2 - LAG}", f"s_setprio {int(OPT.get('dp', 1))}")
    def body(k):
        if M32: m = [mfma32(ACC + nb * 16, FW_[k & 1] + (ks * 4 + nb) * 4, AR + (k % R) * 8 + ks * 4, "0" if k + ks == 0 else None) for ks in range(2) for nb in range(4)]
        else: m = [mfma16(ACC + (t * 8 + u) * 4, FW_[k & 1] + u * 4, AR + (k % R) * 8 + t * 4, "0" if k == 0 else None) for u in range(8) for t in range(2)]
        if k + 1 >= NST: return [f"s_waitcnt vmcnt({need(k)}) lgkmcnt(0)"] + m
        h0, h1 = (1, 7) if M32 else (2, 14)
        CP = "nocp" not in EXP and not PT
        o = (["s_setprio 3"] if CP else []) + [f"s_waitcnt vmcnt({need(k)}) lgkmcnt(0)", "v_cmp_gt_i32 vcc, s53, v23"]
        o += ([f"s_setprio {int(OPT.get('dp', 1))}"] if CP else []) + ["ds_add_u32 v20, v22", "s_add_u32 s53, s53, 1"]
        if PT: o += [f"s_setprio {1 if (k % R) < PT else 0}"]
        o += m[:h0] + [f"s_nop {2 - h0 - (1 if PT else 0)}"] * (2 - h0 - (1 if PT else 0) >= 0) + (["s_cbranch_vccnz @SPIN"] if "nosync" not in EXP else []) + ["@CONT:"]
        if TH and k % 4 == 2:
            o += ["s_setprio 3", "v_cmp_gt_u32 vcc, s47, v25", f"s_setprio {int(OPT.get('dp', 1))}", f"s_add_u32 s47, s47, {TH}", "s_min_u32 s47, s47, 17",
                  "s_cbranch_vccnz @TSP", "@TCT:"]
        if PG and k % 8 == 0 and k <= 40:
            o += ["s_lshr_b64 s[28:29], -1, s45", "s_setprio 3", "v_cmp_ne_u32 vcc, s55, v24", f"s_setprio {int(OPT.get('dp', 1))}",
                  "s_sub_u32 s45, s45, 10", "s_max_i32 s45, s45, 0", "s_and_b64 vcc, vcc, s[28:29]", "s_cbranch_scc1 @FSP", "@FCT:"]
        dm = (L.note(dma_w(k - LAG + R), ("w", k - LAG + R)) if k - LAG + R < NST else []) + (L.note(ld_a(k - 1 + R), ("a", k - 1 + R)) if k - 1 + R < NH_ else [])
        OL = int(OPT.get("ol", 3))
        if k + OL + 2 == NH_: dm += L.note([poll_load(43, 28, 29)], ("f", k + 2))
        if k + OL == NH_:
            o += lanes(16 - NPA) + ["v_cmp_ne_u32 vcc, s55, v29", "s_mov_b64 exec, -1", "s_cbranch_vccnz DN_OS", "DN_OC:"]
        if NH_ <= k + OL < NST: dm += L.note(ld_a(k + OL), ("a", k + OL))
        if PG and k % 8 == 4 and k <= 44: dm += L.note([poll_load(18, 9, 24)], ("f", k + 4))
        if "dnodma" in EXP: dm = []
        fill = mixmem(reads(k + 1), dm, False)
        FR = int(OPT.get("fr", 5 if M32 else 10))
        rd = reads(k + 1) + ["ds_read_b32 v23, v21"] + (["ds_read_b32 v25, v26"] if TH and k % 4 == 1 else [])
        gs = groups_of(dm) if dm else []
        if "vend" in EXP:
            o += interleave(m[h0:FR], rd)
            rest = m[FR:]
            for i, x in enumerate(rest):
                o += [x] + [y for g in gs[(len(gs) * i) // len(rest):(len(gs) * (i + 1)) // len(rest)] for y in g]
            return o
        n = len(m) - h0; nr = FR - h0
        for i, x in enumerate(m[h0:]):
            o += [x] + (rd[(len(rd) * i) // nr:(len(rd) * (i + 1)) // nr] if i < nr else [])
            o += [y for g in gs[(len(gs) * i) // n:(len(gs) * (i + 1)) // n] for y in g]
        return o
    PT = int(OPT.get("pt", 0))
    TH = int(OPT.get("th", 0))
    if TH: a.I("v_subrev_u32 v26, 1024, v21", f"s_mov_b32 s47, {int(OPT.get('th0', 3))}")
    bodies = [body(k) for k in range(NST)]
    U = R
    for head in range(0, R + U + 1):
        nl = (NH_ - R - head) // U
        if all(bodies[k] == bodies[head + (k - head) % U] for k in range(head, head + nl * U)): break
    else: raise AssertionError
    spins = []
    def emit(k):
        spins.append(k)
        a.extend([x.replace("@SPIN", f"DN_SP{k}").replace("@CONT", f"DN_CT{k}").replace("@FSP", f"DN_FS{k}").replace("@FCT", f"DN_FC{k}").replace("@TSP", f"DN_TS{k}").replace("@TCT", f"DN_TC{k}") for x in bodies[k]])
    for k in range(head): emit(k)
    a.I(f"s_mov_b32 s51, {nl}")
    a.L("DN_LOOP")
    for k in range(head, head + U): emit(k)
    a.I("s_sub_u32 s51, s51, 1", "s_cmp_lg_u32 s51, 0", "s_cbranch_scc1 DN_LOOP")
    for k in range(head + nl * U, NST): emit(k)
    ts(a, 4)
    assert not M32
    XR = 32; PR = 64
    a.I("s_setprio 3", f"s_load_dwordx2 s[10:11], s[0:1], {KA_X}", f"s_load_dwordx2 s[12:13], s[0:1], {KA_OUT}",
        "s_lshl_b32 s16, s22, 2", "s_add_u32 s16, s16, s20", "s_lshl_b32 s16, s16, 16", "s_lshl_b32 s17, s23, 8", "s_add_u32 s42, s16, s17",
        "s_lshl_b32 s17, s23, 12", "s_add_u32 s43, s16, s17", f"s_add_u32 s43, s43, {WS_P}", "s_add_u32 s44, s43, 0x8000",
        "s_lshl_b32 s16, s20, 14", f"s_add_u32 s16, s16, {LKV}", "v_add_u32 v9, s16, v3", "v_subrev_u32 v26, 1024, v21",
        f"s_mov_b32 s53, {NA_END}", "s_mov_b32 s19, 0xffff0000", "s_lshr_b32 s40, s20, 1")
    xsel(a, 24)
    wave_flag(a, 60, FL_O)
    a.I("s_waitcnt lgkmcnt(0)")
    srd(a, 28, 10, 2048 * 2048); srd(a, 36, 12, 2048 * 2048)
    a.I("s_cmp_lg_u32 s40, s21", "s_cbranch_scc1 DN_NX", "s_add_u32 s17, s42, 0x8000")
    for t in range(2):
        for c in range(4): a.I(f"buffer_load_dwordx4 {vr(XR+16*t+4*c,4)}, v24, s[28:31], s{42 if t == 0 else 17} offen offset:{c*64}")
    a.L("DN_NX")
    a.I("ds_read_b32 v23, v26", "s_waitcnt lgkmcnt(0)", "v_cmp_gt_u32 vcc, s53, v23", "s_cbranch_vccz DN_AOK", "s_sleep 1", "s_branch DN_NX")
    a.L("DN_AOK")
    ts(a, 5)
    for i in range(16): a.I(f"ds_read_b128 {vr(192+4*i,4)}, v9 offset:{i*1024}")
    for i in range(16):
        if i % 4 == 0: a.I(f"s_waitcnt lgkmcnt({12 - i})")
        for j in range(4): a.I(f"v_add_f32 v{ACC+4*i+j}, v{ACC+4*i+j}, v{192+4*i+j}")
    a.I("s_cmp_eq_u32 s40, s21", "s_cbranch_scc1 DN_FIN")
    for t in range(2):
        for c in range(4):
            g = ACC + (t * 8 + c * 2) * 4; pk = 192 + (t * 4 + c) * 4
            for d in range(4): a.I(f"v_cvt_pk_bf16_f32 v{pk+d}, v{g+2*d}, v{g+2*d+1}")
            a.I(f"buffer_store_dwordx4 {vr(pk,4)}, v3, s[32:35], s{43+t} offen offset:{c*1024}{SC1}")
    a.I("s_waitcnt vmcnt(0)")
    set_flag(a, 60)
    tl_dump(a, 13)
    a.I("s_endpgm")
    a.L("DN_FIN")
    a.I("s_xor_b32 s18, s60, 32", "v_mov_b32 v25, 0", "s_waitcnt vmcnt(0)")
    for i in range(8): a.I(f"v_permlane16_swap_b32 v{XR+4*i}, v{XR+4*i+2}", f"v_permlane16_swap_b32 v{XR+4*i+1}, v{XR+4*i+3}")
    a.extend(lanes(1) + [poll_load(18, 25, 27), "s_mov_b64 exec, -1"])
    for i in range(32): a.I(f"v_lshlrev_b32 v{192+2*i}, 16, v{XR+i}", f"v_and_b32 v{193+2*i}, s19, v{XR+i}")
    for i in range(64): a.I(f"v_add_f32 v{ACC+i}, v{ACC+i}, v{192+i}")
    a.extend(poll(18, 1, 25, 27, preloaded=0, sleep=1))
    ts(a, 6)
    for t in range(2):
        for c in range(4): a.I(f"buffer_load_dwordx4 {vr(PR+16*t+4*c,4)}, v3, s[32:35], s{43+t} offen offset:{c*1024}")
    for i in range(8):
        g = ACC + 8 * i; pk = 32 + 4 * i
        a.I(f"s_waitcnt vmcnt({7 - i + i})")
        for d in range(4): a.I(f"v_lshlrev_b32 v{192+2*d}, 16, v{PR+4*i+d}", f"v_and_b32 v{193+2*d}, s19, v{PR+4*i+d}")
        for d in range(8): a.I(f"v_add_f32 v{g+d}, v{g+d}, v{192+d}")
        for d in range(4): a.I(f"v_cvt_pk_bf16_f32 v{pk+d}, v{g+2*d}, v{g+2*d+1}")
        a.I(f"v_permlane16_swap_b32 v{pk}, v{pk+2}", f"v_permlane16_swap_b32 v{pk+1}, v{pk+3}",
            f"buffer_store_dwordx4 {vr(pk,4)}, v24, s[36:39], s42 offen offset:{(i&3)*64}" + OPT.get("om", "").replace("+", " "))
        if i == 3: a.I("s_add_u32 s42, s42, 0x8000")
    tl_dump(a, 13)
    a.I("s_endpgm")
    a.L("DN_OS")
    a.extend(poll(43, 16 - NPA, 28, 29, sleep=2))
    a.I("s_branch DN_OC")
    for k in spins:
        if k + 1 >= NST: continue
        if any("@TSP" in x for x in bodies[k]):
            a.L(f"DN_TS{k}")
            a.I("s_sleep 4", "ds_read_b32 v25, v26", "s_waitcnt lgkmcnt(0)", f"v_add_u32 v25, {TH}, v25", "v_cmp_gt_u32 vcc, s47, v25",
                f"s_cbranch_vccnz DN_TS{k}", f"s_branch DN_TC{k}")
        if any("@FSP" in x for x in bodies[k]):
            a.L(f"DN_FS{k}")
            a.I("s_mov_b32 s17, 0x40000")
            a.L(f"DN_FL{k}")
            a.I(poll_load(18, 9, 24), "s_waitcnt vmcnt(0)", "v_cmp_ne_u32 vcc, s55, v24", "s_and_b64 vcc, vcc, s[28:29]",
                f"s_cbranch_scc0 DN_FC{k}", "s_sleep 2", "s_sub_u32 s17, s17, 1", "s_cmp_lg_u32 s17, 0", f"s_cbranch_scc1 DN_FL{k}", f"s_branch DN_FC{k}")
        a.L(f"DN_SP{k}")
        a.I("ds_read_b32 v23, v21", "s_waitcnt lgkmcnt(0)", "v_add_u32 v23, 1, v23", "v_cmp_gt_i32 vcc, s53, v23",
            f"s_cbranch_vccnz DN_SP{k}", f"s_branch DN_CT{k}")

NPA = 10
NA_END = 1 + 16 + 4
def wo(a):
    FW = [32, 128]; ACC = 64; OA = 160; D = 12; NP = NPA; SW = 99
    a.I(f"s_load_dwordx2 s[8:9], s[0:1], {KA_WO}",
        "s_and_b32 s21, s2, 1",
        "s_bfe_u32 s16, s2, 0x10001", "s_lshl_b32 s16, s16, 3", "s_bfe_u32 s17, s2, 0x30003", "s_add_u32 s22, s16, s17",
        "s_bfe_u32 s16, s2, 0x10002", "s_lshl_b32 s16, s16, 2", "s_bfe_u32 s17, s2, 0x20006", "s_add_u32 s23, s16, s17",
        "v_lshrrev_b32 v2, 4, v1", "s_lshl_b32 s16, s20, 3", "v_add_u32 v4, s16, v2", "v_lshlrev_b32 v4, 11, v4",
        "v_bfe_u32 v5, v1, 1, 3", "v_lshlrev_b32 v6, 1, v2", "v_xor_b32 v6, v6, v5", "v_mov_b32 v7, v6",
        "v_and_b32 v2, 1, v1", "v_lshl_add_u32 v4, v2, 4, v4", "s_lshl_b32 s16, s23, 8", "v_add_u32 v4, s16, v4",
        f"v_add_u32 v5, {4*2048-1024}, v4", "v_lshl_add_u32 v4, v6, 5, v4", "v_lshl_add_u32 v5, v7, 5, v5",
        "s_lshl_b32 s48, s21, 20", "s_lshl_b32 s46, s20, 11", f"s_add_u32 s46, s46, {LKV}",
        "s_lshl_b32 s16, s22, 2", "s_add_u32 s16, s16, s20", "s_lshl_b32 s44, s16, 16", "s_lshl_b32 s16, s21, 14", "s_add_u32 s44, s44, s16",
        f"s_add_u32 s44, s44, {WS_O}",
        "v_bfe_u32 v2, v1, 4, 1", "v_lshlrev_b32 v10, 15, v2", "v_lshrrev_b32 v2, 5, v1", "v_lshl_add_u32 v10, v2, 8, v10",
        "v_and_b32 v2, 15, v1", "v_lshl_add_u32 v10, v2, 4, v10")
    wave_flag(a, 60, FL_O)
    a.I("s_waitcnt vmcnt(0) lgkmcnt(0)")
    set_flag(a, 60)
    srd(a, 24, 8, 1024 * 1024 * 2)
    RT = int(OPT.get("rt", 0))
    a.I("s_and_b32 s16, s23, 3", f"s_mul_i32 s50, s16, {RT}", "s_mov_b32 s51, s50")
    def step(r): return [f"s_add_u32 s{r}, s{r}, 1", f"s_cmp_eq_u32 s{r}, {NP}", f"s_cselect_b32 s{r}, 0, s{r}"]
    def w_dma3(p):
        return [f"s_add_u32 m0, s46, {p * 8192}", "s_lshl_b32 s49, s50, 16", "s_add_u32 s49, s49, s48", "buffer_load_dwordx4 v4, s[24:27], s49 offen lds"] + \
               step(50) + ["buffer_load_dwordx4 v5, s[24:27], s49 offen offset:1024 lds"]
    def o_load(p):
        r = OA + (p % D) * 8
        return ["s_lshl_b32 s45, s51, 10", "s_add_u32 s45, s45, s44", f"buffer_load_dwordx4 {vr(r,4)}, v10, s[32:35], s45 offen"] + step(51) + \
               [f"buffer_load_dwordx4 {vr(r+4,4)}, v10, s[32:35], s45 offen offset:512"]
    sync_block(a, 23, 24, 25, 26)
    for p in range(NP): a.extend(w_dma3(p))
    a.I("v_lshrrev_b32 v2, 5, v1", "v_lshlrev_b32 v12, 10, v2", "v_bfe_u32 v9, v1, 2, 2", "v_lshl_add_u32 v12, v9, 8, v12",
        "v_lshlrev_b32 v9, 1, v9", "v_bfe_u32 v2, v1, 4, 1", "v_xor_b32 v9, v9, v2", "v_lshl_add_u32 v12, v9, 5, v12",
        "v_and_b32 v9, 3, v1", "v_lshl_add_u32 v12, v9, 3, v12", f"v_add_u32 v12, {LKV}, v12")
    for u in range(1, 4): a.I(f"v_xor_b32 v{12+u}, {64*u}, v12")
    for u in range(4): a.I(f"v_add_u32 v{16+u}, 0x10000, v{12+u}")
    a.I("v_and_b32 v2, 3, v1", "v_lshlrev_b32 v9, 8, v2", "v_bfe_u32 v2, v1, 2, 2", "v_lshl_add_u32 v9, v2, 5, v9",
        "v_bfe_u32 v2, v1, 4, 1", "v_lshl_add_u32 v9, v2, 2, v9",
        "s_lshr_b32 s16, s22, 1", "s_lshl_b32 s18, s16, 10", "s_and_b32 s16, s22, 1", "s_lshl_b32 s16, s16, 3", "s_add_u32 s18, s18, s16",
        "s_lshl_b32 s16, s21, 7", "s_add_u32 s18, s18, s16", f"s_add_u32 s18, s18, {WS_FL+FL_O}")
    a.I("s_cmp_lg_u32 s20, 0", "s_cbranch_scc1 WO_NPL")
    a.I(f"s_mov_b32 exec_lo, {((1 << NP) - 1) * 0x10001:#x}", "s_mov_b32 exec_hi, 0")
    a.extend(poll(18, 64, 9, sleep=int(OPT.get("os", 4))))
    a.I("s_mov_b64 exec, -1")
    a.I("WO_NPL:", "s_waitcnt vmcnt(0)")
    sync_block(a, 23, 24, 25, 26, sleep=True)
    ts(a, 5)
    L = Log()
    nxt = int(OPT.get("o0", 4))
    for p in range(nxt): a.extend(L.note(o_load(p), p))
    a.I(f"s_setprio {int(OPT.get('wp', 0))}")
    def reads(p):
        sl = p % 10
        return [f"ds_read_b64_tr_b16 {vr(FW[p&1]+(ks*4+nb)*4+2*rd,2)}, v{(12 if sl < 8 else 16)+nb} offset:{(sl&7)*8192+ks*4096+rd*2048}"
                for ks in range(2) for nb in range(4) for rd in range(2)]
    a.extend(reads(0))
    for p in range(NP):
        wc = L.cnt(p)
        a.I(f"s_waitcnt vmcnt({wc}) lgkmcnt(0)")
        if "wost" in EXP and p in (0, 4): ts(a, {0: 9, 4: 10}[p])
        if "wost" in EXP and p == 9: ts(a, 11)
        if "wost" in EXP and p == SW: ts(a, 6)
        extra = L.note([x for q in range(10, NP) for x in w_dma3(q)], 99) if p == SW else []
        for _ in range(3):
            if nxt < NP and nxt < p + D: extra += L.note(o_load(nxt), nxt); nxt += 1
        m = [mfma32(ACC + nb * 16, FW[p & 1] + (ks * 4 + nb) * 4, OA + (p % D) * 8 + 4 * ks, "0" if p + ks == 0 else None) for ks in range(2) for nb in range(4)]
        rd = reads(p + 1) if p + 1 < NP else []
        gs = groups_of(extra) if extra else []
        for i, x in enumerate(m):
            a.I(x); a.extend(rd[3 * i:3 * i + 3])
            a.extend([y for g in gs[(len(gs) * i) // 8:(len(gs) * (i + 1)) // 8] for y in g])
    a.I("s_setprio 3")
    sync_block(a, 23, 24, 25, 26)
    a.I("s_lshl_b32 s16, s20, 14", f"s_add_u32 s16, s16, {LKV}", "v_bfe_u32 v2, v1, 4, 1", "v_lshlrev_b32 v9, 13, v2",
        "v_lshrrev_b32 v2, 5, v1", "v_lshl_add_u32 v9, v2, 8, v9", "v_and_b32 v2, 15, v1", "v_lshl_add_u32 v9, v2, 4, v9", "v_add_u32 v9, s16, v9")
    for nb in range(4):
        for j in range(4): a.I(f"ds_write_b128 v9, {vr(ACC+16*nb+4*j,4)} offset:{(2*nb+(j>>1))*1024+(j&1)*512}")
    a.I("ds_add_u32 v23, v25", "s_waitcnt lgkmcnt(0)")

def fused():
    a = Asm()
    ts(a, 0)
    a.I("s_cmp_ge_u32 s2, 256", "s_cbranch_scc1 F_END",
        f"s_load_dwordx8 s[4:11], s[0:1], {KA_X}", f"s_load_dwordx4 s[40:43], s[0:1], {KA_WG}",
        f"s_load_dwordx4 s[12:15], s[0:1], {KA_DBG}", "s_memrealtime s[48:49]",
        "v_lshrrev_b32 v2, 6, v0", "v_and_b32 v1, 63, v0", "v_readfirstlane_b32 s20, v2", "v_lshlrev_b32 v3, 4, v1",
        "s_lshr_b32 s21, s2, 4", "s_lshl_b32 s21, s21, 3", "s_and_b32 s16, s2, 7", "s_add_u32 s45, s21, s16", "s_lshl_b32 s23, s45, 15",
        "s_mov_b32 s54, s20", "s_lshl_b32 s16, s20, 12", "s_add_u32 s19, s23, s16", "s_waitcnt lgkmcnt(0)")
    srd(a, 32, 14, WS_SIZE); srd(a, 56, 12, 256)
    a.I("s_or_b32 s16, s2, s20", "s_cmp_lg_u32 s16, 0", "s_cbranch_scc1 F_NT",
        "s_or_b32 s16, s48, 1", "v_mov_b32 v2, s16", "v_mov_b32 v8, 0", "s_mov_b64 exec, 1",
        "buffer_store_dword v2, v8, s[56:59], 0 offen sc1", "s_mov_b64 exec, -1")
    a.L("F_NT")
    phase0(a)
    ts(a, 8)
    if "p0st" in EXP:
        tl_dump(a, 13); a.I("s_endpgm")
    g1(a)
    a.I("s_and_b32 s20, s54, 3", "s_cmp_ge_u32 s54, 4", "s_cbranch_scc1 F_B")
    attention(a)
    wo(a)
    tl_dump(a, 13)
    a.I("s_endpgm")
    if "ablock" not in EXP:
        for tag in ("0", "7", "7F"):
            a.L(f"ATT_SP{tag}")
            a.I("ds_read_b32 v15, v14", "s_waitcnt lgkmcnt(0)", "v_cmp_gt_u32 vcc, s53, v15", f"s_cbranch_vccnz ATT_SP{tag}", f"s_branch ATT_CT{tag}")
    a.L("F_B")
    down(a)
    a.L("F_END")
    a.I("s_endpgm")
    return a, dict(grid=256, block=512, lds=163840, vgpr=256)

if __name__ == "__main__":
    path = sys.argv[1] if len(sys.argv) > 1 else "cdna_kernels/" + NAME + ".s"
    opts = dict(o.split("=") for o in sys.argv[2:])
    NPA = int(opts.get("npa", 8))
    OPT = opts; EXP = opts.get("exp", ""); TL = bool(int(opts.get("tl", 0)))
    G.VERB = bool(int(opts.get("verb", 0)))
    SC1 = opts.get("sm", "+sc1").replace("+", " ")
    G.build([(NAME if int(opts.get("single", 0)) else "fused8", fused())], path)
```

```python
import sys
from asmlib import *
import gen as G
from gen import (NAME, KA_X, KA_WQ, KA_WK, KA_WV, KA_WO, KA_WG, KA_WU, KA_WD, KA_OUT, KA_DBG, KA_WS,
                 WS_XN, WS_KV, WS_O, WS_H, WS_P, WS_SIZE, f32, vr, srd, mfma32, mfma16, QSCALE, mix2, front_pattern)
WS_FL = 0x0480000
FL_KV, FL_X, FL_H, FL_O, FL_P = 0, 4096, 12288, 20480, 24576
WS_TL = 0x3F10000
LKV = 65536
LQ = 131072
LC = 147456
HP = 224
TL = False; EXP = ""; OPT = {}
SC1 = " sc1"

def ts(a, i):
    if TL: a.I(f"s_mem{'' if 'cyc' in EXP else 'real'}time s[{62+2*i}:{63+2*i}]")
def tl_dump(a, n):
    if not TL: return
    a.I("s_waitcnt vmcnt(0) lgkmcnt(0)")
    ts(a, 7)
    if "hd" in EXP.split("_"):
        a.I("s_waitcnt lgkmcnt(0)", "s_and_b32 s90, s54, 3", "s_cmp_lg_u32 s90, 0", "s_cbranch_scc1 F_END", "s_sleep 127", "s_sleep 127", "s_sleep 127",
            "v_mov_b32 v1, 0", "s_mov_b64 exec, 1", "s_not_b32 s90, s62", "v_mov_b32 v2, s90",
            "buffer_atomic_umax v2, v1, s[56:59], 0 offen offset:4", "s_lshr_b32 s90, s54, 2", "s_mul_i32 s90, s90, 0")
        lab = f"HD{len(a.items)}"
        for j, i in enumerate((0, 8, 11, 12, 1, 2, 3, 4, 5, 7)):
            if j == 6: a.I("s_cmp_ge_u32 s54, 4", f"s_cbranch_scc1 {lab}")
            if j in (2, 3): a.I("s_cmp_ge_u32 s54, 4", f"s_cselect_b32 s{62+2*i}, 0, s{62+2*i}")
            a.I(f"v_mov_b32 v2, s{62+2*i}", f"buffer_atomic_umax v2, v1, s[56:59], 0 offen offset:{8+4*j}")
        a.I("s_endpgm")
        a.L(lab)
        for j, i in enumerate((3, 4, 7)):
            a.I(f"v_mov_b32 v2, s{62+2*i}", f"buffer_atomic_umax v2, v1, s[56:59], 0 offen offset:{48+4*j}")
        return
    a.I("s_waitcnt lgkmcnt(0)", "s_lshl_b32 s90, s2, 3", "s_add_u32 s90, s90, s54", "s_lshl_b32 s90, s90, 6",
        f"s_add_u32 s90, s90, {WS_TL}", "v_mov_b32 v1, 0", "s_mov_b64 exec, 1")
    for i in range(n):
        a.I(f"v_mov_b32 v2, s{62+2*i}", f"buffer_store_dword v2, v1, s[32:35], s90 offen offset:{4*i}")

_n = [0]
def jit(a, k):
    J = int(OPT.get("jit", 0))
    if not J: return
    _n[0] += 1; lab = f"JIT{_n[0]}"
    a.I(f"s_mul_i32 s93, s2, {0x9e37 + 2 * k + 64 * J}", "s_mul_i32 s94, s54, 0x1b5", "s_add_u32 s93, s93, s94", "s_bfe_u32 s93, s93, 0x30004", lab + ":",
        "s_cmp_eq_u32 s93, 0", f"s_cbranch_scc1 {lab}_D", f"s_sleep {8 * J}", "s_sub_u32 s93, s93, 1", f"s_branch {lab}", lab + "_D:")
def lanes(n): return [f"s_mov_b32 exec_lo, {((1 << n) - 1) & 0xffffffff:#x}", f"s_mov_b32 exec_hi, {((1 << n) - 1) >> 32:#x}"] if n < 64 else []
def poll_load(soff, voff, dst, wide=False):
    return f"buffer_load_dword{'x4' if wide else ''} {vr(dst, 4 if wide else 1)}, v{voff}, s[32:35], s{soff} offen sc1"
def poll_test(dst, wide):
    if wide:
        return [f"v_xor_b32 v{dst+i}, s55, v{dst+i}" for i in range(4)] + \
               [f"v_or3_b32 v{dst}, v{dst}, v{dst+1}, v{dst+2}", f"v_or_b32 v{dst}, v{dst}, v{dst+3}", f"v_cmp_ne_u32 vcc, 0, v{dst}"]
    return [f"v_cmp_ne_u32 vcc, s55, v{dst}"]
def poll(soff, n, voff, dst=2, wide=False, preloaded=None, sleep=2):
    _n[0] += 1; lab = f"POLL{_n[0]}"
    o = lanes(n)
    if preloaded is not None:
        o += [f"s_waitcnt vmcnt({preloaded})"] + poll_test(dst, wide) + [f"s_cbranch_vccz {lab}_D"]
    o += ["s_mov_b32 s17, 0x40000", lab + ":", poll_load(soff, voff, dst, wide), "s_waitcnt vmcnt(0)"] + poll_test(dst, wide)
    o += [f"s_cbranch_vccz {lab}_D", f"s_sleep {sleep}", "s_sub_u32 s17, s17, 1", "s_cmp_lg_u32 s17, 0", f"s_cbranch_scc1 {lab}", lab + "_D:"]
    if n < 64: o += ["s_mov_b64 exec, -1"]
    return o
def set_flag(a, soff):
    a.I("v_mov_b32 v2, s55", "v_mov_b32 v8, 0", "s_mov_b64 exec, 1",
        f"buffer_store_dword v2, v8, s[32:35], s{soff} offen sc1", "s_mov_b64 exec, -1")
def wave_flag(a, reg, base):
    a.I(f"s_lshl_b32 s{reg}, s2, 3", f"s_add_u32 s{reg}, s{reg}, s54", f"s_lshl_b32 s{reg}, s{reg}, 2", f"s_add_u32 s{reg}, s{reg}, {WS_FL+base}")
def sync_setup(a, base, own, chk, one):
    a.I("s_lshl_b32 s16, s20, 8", f"s_add_u32 s16, s16, {base}", f"v_lshl_add_u32 v{own}, v1, 2, s16",
        "v_and_b32 v2, 3, v1", f"v_lshlrev_b32 v{chk}, 8, v2", f"v_lshl_add_u32 v{chk}, v1, 2, v{chk}", f"v_add_u32 v{chk}, {base}, v{chk}",
        f"v_mov_b32 v{one}, 1", "s_mov_b32 s53, 0")
def sync_block(a, own, chk, one, tmp, sleep=False):
    _n[0] += 1; lab = f"SY{_n[0]}"
    a.I(f"ds_add_u32 v{own}, v{one}", "s_add_u32 s53, s53, 1")
    a.L(lab)
    if sleep: a.I("s_sleep 1")
    a.I(f"ds_read_b32 v{tmp}, v{chk}", "s_waitcnt lgkmcnt(0)", f"v_cmp_gt_u32 vcc, s53, v{tmp}", f"s_cbranch_vccnz {lab}")
def xsel(a, dst):
    a.I("v_and_b32 v2, 15, v1", f"v_lshlrev_b32 v{dst}, 11, v2", "v_bfe_u32 v2, v1, 4, 1", f"v_lshl_add_u32 v{dst}, v2, 5, v{dst}",
        "v_lshrrev_b32 v2, 5, v1", f"v_lshl_add_u32 v{dst}, v2, 4, v{dst}")
def is_vm(x): return x.startswith("buffer") or x.startswith("global")
def groups_of(dm):
    gs = []; cur = []
    for x in dm:
        cur.append(x)
        if is_vm(x): gs.append(cur); cur = []
    gs[-1] += cur
    return gs
def mixmem(rd, dm, dma_first=True):
    if not rd or not dm: return rd + dm
    gs = groups_of(dm)
    pre = [x for x in rd if x.startswith("v_")]; ds = [x for x in rd if x.startswith("ds_")]; post = [x for x in rd if x.startswith("s_")]
    o = list(pre); n = len(gs); per = len(ds) // n
    for g in range(n):
        part = ds[g * per:(g + 1) * per if g < n - 1 else len(ds)]
        o += (gs[g] + part) if dma_first else (part + gs[g])
    return o + post
class Log:
    def __init__(self): self.l = []
    def note(self, instrs, st): self.l += [st] * sum(map(is_vm, instrs)); return instrs
    def cnt(self, st):
        last = max([i for i, s_ in enumerate(self.l) if s_ is not None and s_ <= st], default=-1)
        return len(self.l) - 1 - last

WA0, WA1, WST = 116, 118, 120
def w_dma(slotreg):
    return [f"s_add_u32 m0, s{slotreg}, s46", "s_nop 0",
            f"global_load_lds_dwordx4 {vr(WA0,2)}, off" + OPT.get("wm", "").replace("+", " "), f"global_load_lds_dwordx4 {vr(WA1,2)}, off offset:1024" + OPT.get("wm", "").replace("+", " "),
            f"v_lshl_add_u64 {vr(WA0,2)}, {vr(WST,2)}, 0, {vr(WA0,2)}", f"v_lshl_add_u64 {vr(WA1,2)}, {vr(WST,2)}, 0, {vr(WA1,2)}"]

def tag_check(a):
    a.I("s_mov_b32 s17, 0x40000")
    a.L("P0_TAG")
    a.I("s_cmp_eq_u32 s55, 0", "s_cbranch_scc1 P0_TAGLD",
        "s_sub_u32 s16, s48, s55", "s_add_u32 s16, s16, 3000", "s_cmp_lt_u32 s16, 6000", "s_cbranch_scc1 P0_TAGOK",
        "s_cmp_lt_u32 s17, 0x3f800", "s_cbranch_scc1 P0_TAGOK")
    a.L("P0_TAGLD")
    a.I("buffer_load_dword v6, v7, s[56:59], 0 offen sc1", "s_waitcnt vmcnt(0)", "v_readfirstlane_b32 s55, v6",
        "s_sub_u32 s17, s17, 1", "s_cmp_lg_u32 s17, 0", "s_cbranch_scc1 P0_TAG")
    a.L("P0_TAGOK")

STREAM = ["buffer_load_dword v122, v114, s[88:91], s100 offen", "buffer_load_dword v123, v114, s[92:95], s100 offen",
          "buffer_load_dword v124, v115, s[96:99], s101 offen"]
def phase0(a):
    LW, LX, LR = 49152, 114688, 147456
    srd(a, 24, 4, 2048 * 2048)
    for i in range(4): a.I(f"buffer_load_dwordx4 {vr(8+4*i,4)}, v3, s[24:27], s19 offen offset:{i*1024}")
    a.I("v_mov_b32 v7, 0", "buffer_load_dword v6, v7, s[56:59], 0 offen sc1")
    TP = 0; NH = int(OPT.get("nh", 5))
    if NH:
        a.I("s_cmp_eq_u32 s20, 4", "s_cselect_b64 s[12:13], s[40:41], s[42:43]", f"s_mov_b32 s16, {NH*896}",
            "s_cmp_eq_u32 s20, 6", "s_cselect_b64 s[12:13], s[6:7], s[12:13]", f"s_cselect_b32 s16, {8192 if 'qf' in EXP else NH*256}, s16")
        srd(a, 88, 12, 1024 * 1024 * 2)
        a.I("v_lshlrev_b32 v114, 7, v1", "s_sub_u32 s17, s16, 128", "v_min_u32 v114, s17, v114", "s_mul_i32 s92, s16, s2")
        a.I("s_cmp_lg_u32 s20, 7", "s_cbranch_scc1 P0_N7", "s_bitcmp1_b32 s2, 3", "s_cselect_b64 s[88:89], s[10:11], s[8:9]", "s_mov_b32 s90, 0x10000",
            "v_and_b32 v114, 0xf80, v114", "s_lshr_b32 s92, s2, 4", "s_lshl_b32 s92, s92, 12")
        a.L("P0_N7")
        a.I("s_cmp_lt_u32 s20, 4", "s_cbranch_scc1 P0_NS", "buffer_load_dword v122, v114, s[88:91], s92 offen")
        a.L("P0_NS")
    a.I("s_bfe_u32 s22, s2, 0x10003", "s_cmp_eq_u32 s22, 0", "s_cselect_b64 s[12:13], s[8:9], s[10:11]")
    srd(a, 28, 12, 65536)
    a.I("s_lshl_b32 s17, s20, 13")
    a.I("s_and_b32 s16, s2, 7", "s_lshl_b32 s16, s16, 2", "s_bfe_u32 s21, s2, 0x20003", "s_add_u32 s21, s21, s16",
        "s_and_b32 s23, s20, 3", "s_cmp_lt_u32 s20, 4", "s_cselect_b64 s[12:13], s[42:43], s[40:41]", "s_cselect_b32 s18, 32, 0",
        "s_cselect_b32 s46, 8192, 0", "s_lshl_b32 s16, s23, 11", "s_add_u32 s46, s46, s16", "s_add_u32 s46, s46, 16384",
        "v_lshrrev_b32 v2, 4, v1", "s_lshl_b32 s16, s23, 3", "v_add_u32 v4, s16, v2",
        "s_and_b32 s16, s23, 1", "s_lshl_b32 s16, s16, 2", "v_add_u32 v2, s16, v2", "v_bfe_u32 v5, v1, 1, 3", "v_xor_b32 v2, v2, v5",
        "v_cmp_eq_u32 vcc, 7, v2", "v_mov_b32 v5, 7168", "v_mov_b32 v112, 2048", f"v_cndmask_b32 v{WST}, v5, v112, vcc",
        f"v_mul_lo_u32 v4, v4, v{WST}",
        "s_mul_i32 s16, s21, 224", "v_lshl_add_u32 v5, v2, 5, s16", "s_lshl_b32 s16, s21, 6", "s_add_u32 s16, s16, s18",
        "v_mov_b32 v112, s16", "v_cndmask_b32 v5, v5, v112, vcc", "v_add_u32 v4, v4, v5",
        "v_and_b32 v2, 1, v1", "v_lshl_add_u32 v4, v2, 4, v4",
        "v_mov_b32 v5, s12", "v_mov_b32 v112, s6", f"v_cndmask_b32 v{WA0}, v5, v112, vcc",
        "v_mov_b32 v5, s13", "v_mov_b32 v112, s7", f"v_cndmask_b32 v{WA0+1}, v5, v112, vcc",
        "v_mov_b32 v5, 0", f"v_lshl_add_u64 {vr(WA0,2)}, v[4:5], 0, {vr(WA0,2)}",
        f"v_lshlrev_b32 v4, 2, v{WST}", "v_add_u32 v4, -1024, v4" if False else "v_subrev_u32 v4, 1024, v4",
        f"v_lshl_add_u64 {vr(WA1,2)}, v[4:5], 0, {vr(WA0,2)}",
        f"v_lshlrev_b32 v{WST}, 5, v{WST}", f"v_mov_b32 v{WST+1}, 0", "s_mov_b32 s47, 0")
    srd(a, 24, 12, 1024 * 3584 * 2)
    a.I("v_lshrrev_b32 v2, 1, v1", "s_lshl_b32 s16, s23, 5", "s_add_u32 s16, s16, 32", "v_add_u32 v2, s16, v2",
        "v_mul_u32_u24 v112, 7168, v2", "v_and_b32 v2, 1, v1", "v_mul_u32_u24 v2, 208, v2", "v_add_u32 v112, v112, v2",
        "s_mul_i32 s44, s21, 224")
    a.I("s_mov_b32 s21, s45", "s_lshl_b32 s23, s21, 15", "s_mov_b32 s36, 0xffff0000")
    if NH: a.I("s_cmp_ge_u32 s20, 4", "s_cbranch_scc0 P0_X1", "s_waitcnt vmcnt(2)", "s_branch P0_X2", "P0_X1:", "s_waitcnt vmcnt(1)", "P0_X2:")
    else: a.I("s_waitcnt vmcnt(1)")
    ts(a, 9)
    late = [f"s_add_u32 m0, s17, {LW}", "s_add_u32 s18, s17, 4096"]
    late += [f"buffer_load_dwordx4 v3, s[28:31], s17 offen offset:{i*1024} lds" for i in range(4)]
    late += [f"s_add_u32 m0, s18, {LW}", "s_nop 0"]
    late += [f"buffer_load_dwordx4 v3, s[28:31], s18 offen offset:{i*1024} lds" for i in range(4)]
    late += w_dma(47) + (["buffer_load_dword v113, v112, s[24:27], s44 offen"] if not NH else [])
    if TP: late += ["s_cmp_lt_u32 s20, 4", "s_cbranch_scc1 P0_NS"] + STREAM + ["P0_NS:"]
    mark = len(a.items)
    for r in range(2):
        for d in range(8):
            src = 8 + 8 * r + d
            a.I(f"v_lshlrev_b32 v{32+16*r+2*d}, 16, v{src}", f"v_and_b32 v{33+16*r+2*d}, s36, v{src}")
    def tree2(bases, sq):
        T_ = [(24 + i, bases[i], 64 + 8 * i) for i in range(2)]
        for dst, base, t in T_:
            for i in range(8):
                a.I(f"v_mul_f32 v{t+i}, v{base+2*i}, v{base+2*i}" if sq else f"v_add_f32 v{t+i}, v{base+2*i}, v{base+2*i+1}")
        if sq:
            for dst, base, t in T_:
                for i in range(8): a.I(f"v_fmac_f32 v{t+i}, v{base+2*i+1}, v{base+2*i+1}")
        for s_ in (4, 2):
            for dst, base, t in T_:
                for i in range(s_): a.I(f"v_add_f32 v{t+i}, v{t+i}, v{t+i+s_}")
        for dst, base, t in T_: a.I(f"v_add_f32 v{dst}, v{t}, v{t+1}")
    def wavered(rs, ss):
        for mod in ("row_shr:1 row_mask:0xf bank_mask:0xf bound_ctrl:0", "row_shr:2 row_mask:0xf bank_mask:0xf bound_ctrl:0",
                    "row_shr:4 row_mask:0xf bank_mask:0xf bound_ctrl:0", "row_shr:8 row_mask:0xf bank_mask:0xf bound_ctrl:0",
                    "row_bcast:15 row_mask:0xa bank_mask:0xf", "row_bcast:31 row_mask:0xc bank_mask:0xf"):
            for r in rs: a.I(f"v_add_f32_dpp v{r}, v{r}, v{r} {mod}")
        for r, s_ in zip(rs, ss): a.I(f"v_readlane_b32 s{s_}, v{r}, 63")
    if "p0st" in EXP: ts(a, 1)
    tree2((32, 48), False)
    wavered((24, 25), (40, 41))
    if "p0st" in EXP: ts(a, 2)
    a.I(f"s_mov_b32 s37, {f32(1.0/1024)}")
    a.I("v_mov_b32 v26, s40", "v_mov_b32 v27, s41", "v_mul_f32 v26, s37, v26", "v_mul_f32 v27, s37, v27")
    for r in range(2):
        for i in range(16): a.I(f"v_sub_f32 v{80+16*r+i}, v{32+16*r+i}, v{26+r}")
    tree2((80, 96), True)
    wavered((24, 25), (42, 43))
    a.I("v_mov_b32 v28, s42", "v_mov_b32 v29, s43", "v_mul_f32 v28, s37, v28", "v_mul_f32 v29, s37, v29")
    def rnd(*rs):
        for r in rs: a.I(f"v_cvt_pk_bf16_f32 v{r}, v{r}, v{r}")
        for r in rs: a.I(f"v_lshlrev_b32 v{r}, 16, v{r}")
    a.I(f"s_mov_b32 s38, {f32(1e-5)}")
    rnd(28, 29, 26, 27)
    a.I("v_add_f32 v28, s38, v28", "v_add_f32 v29, s38, v29"); rnd(28, 29)
    a.I("v_sqrt_f32 v28, v28", "v_sqrt_f32 v29, v29"); rnd(28, 29)
    a.I("v_rcp_f32 v28, v28", "v_rcp_f32 v29, v29")
    if "p0st" in EXP: ts(a, 3)
    P_ = [(r, d, 32 + 16 * r + 2 * d) for r in range(2) for d in range(8)]
    for r, d, b in P_: a.I(f"v_sub_f32 v{b}, v{b}, v{26+r}", f"v_sub_f32 v{b+1}, v{b+1}, v{26+r}")
    for r, d, b in P_: a.I(f"v_cvt_pk_bf16_f32 v{80+8*r+d}, v{b}, v{b+1}")
    for r, d, b in P_: a.I(f"v_lshlrev_b32 v{b}, 16, v{80+8*r+d}", f"v_and_b32 v{b+1}, s36, v{80+8*r+d}")
    for r, d, b in P_: a.I(f"v_mul_f32 v{b}, v{b}, v{28+r}", f"v_mul_f32 v{b+1}, v{b+1}, v{28+r}")
    for r, d, b in P_: a.I(f"v_cvt_pk_bf16_f32 v{8+8*r+d}, v{b}, v{b+1}")
    LP = OPT.get("lp", "post")
    body = a.items[mark:]; del a.items[mark:]
    gs = groups_of(late) if LP == "mix" else []; step = int(OPT.get("lst", 24))
    if TP: gs[-3:] = [gs[-3] + gs[-2] + gs[-1]]
    for i, it in enumerate(body):
        if i % step == 0 and gs: a.extend(gs.pop(0))
        a.items.append(it)
    assert not gs
    if "p0st" in EXP: ts(a, 4)
    a.I("s_lshl_b32 s16, s20, 1", "v_and_b32 v2, 15, v1", "v_xor_b32 v2, s16, v2", "v_lshlrev_b32 v4, 8, v1", "v_lshl_add_u32 v4, v2, 4, v4",
        f"v_add_u32 v4, {LX}, v4", "v_xor_b32 v25, 16, v4")
    for r in range(2):
        for p in range(2): a.I(f"ds_write_b128 v{25 if r else 4}, {vr(8+8*r+4*p,4)} offset:{p*16384}")
    a.I("v_lshrrev_b32 v5, 4, v1", "v_lshlrev_b32 v2, 4, v5", "v_xor_b32 v26, v2, v3",
        "s_lshl_b32 s16, s20, 12", f"s_add_u32 s16, s16, {LX}", "v_add_u32 v30, s16, v26",
        "v_xor_b32 v27, 64, v30", "v_xor_b32 v28, 0x80, v30", "v_xor_b32 v29, 0xc0, v30",
        "v_lshlrev_b32 v31, 9, v5", "v_bfe_u32 v2, v1, 2, 2", "v_lshl_add_u32 v31, v2, 6, v31",
        "v_and_b32 v2, 3, v1", "v_lshl_add_u32 v31, v2, 3, v31", f"s_add_u32 s16, s17, {LW}", "v_add_u32 v31, s16, v31",
        "s_lshl_b32 s16, s22, 14", "s_lshl_b32 s18, s20, 12", "s_add_u32 s16, s16, s18",
        "s_add_u32 s39, s23, s16", f"s_add_u32 s16, s16, {LX}", "v_add_u32 v24, s16, v26",
        "v_xor_b32 v25, 64, v24", "v_xor_b32 v4, 0x80, v24", "v_xor_b32 v26, 0xc0, v24",
        "s_waitcnt lgkmcnt(0)", "s_barrier")
    ts(a, 10)
    a.I("s_cmp_ge_u32 s20, 4", "s_cbranch_scc1 P0_NC")
    for i, r in enumerate((24, 25, 4, 26)): a.I(f"ds_read_b128 {vr(8+4*i,4)}, v{r} offset:{i*1024}")
    for i in range(4): a.I(f"s_waitcnt lgkmcnt({3-i})", f"buffer_store_dwordx4 {vr(8+4*i,4)}, v3, s[32:35], s39 offen offset:{i*1024} sc1")
    if LP == "mix":
        a.I(f"s_waitcnt vmcnt({6 if NH else 7})", "s_branch P0_C")
        a.L("P0_NC")
        a.I(f"s_waitcnt vmcnt({2 if NH else 3})")
        a.L("P0_C")
        a.I("v_readfirstlane_b32 s55, v6")
    else:
        a.L("P0_NC")
        a.extend(late)
        wave_flag(a, 18, FL_X)
        a.I("s_waitcnt vmcnt(10)", "v_readfirstlane_b32 s55, v6")
        tag_check(a)
        a.I("s_cmp_ge_u32 s20, 4", "s_cbranch_scc1 P0_NF")
        set_flag(a, 18)
        if "ea" not in EXP.split("_"):
            a.I("s_waitcnt vmcnt(3)", "s_branch P0_C")
            a.L("P0_NF")
            a.I("s_waitcnt vmcnt(2)")
            a.L("P0_C")
        else:
            a.L("P0_NF")
            xn_poll(a)
            a.I("s_lshr_b32 s16, s2, 5", "s_lshl_b32 s16, s16, 3", "s_add_u32 s16, s16, s20", "s_lshl_b32 s16, s16, 16",
                "s_lshl_b32 m0, s20, 11", "v_add_u32 v10, 31744, v3",
                "buffer_load_dwordx4 v3, s[32:35], s16 offen lds", "buffer_load_dwordx4 v10, s[32:35], s16 offen offset:1024 lds")
    for j in range(4):
        a.I(f"ds_read_b128 {vr(32+4*j,4)}, v{(30, 27, 28, 29)[j]} offset:{j*1024}")
        for d in range(2):
            for rd in range(2):
                a.I(f"ds_read_b64_tr_b16 {vr(64+8*j+4*d+2*rd,2)}, v31 offset:{j*2048+rd*256+d*32}")
    a.I("s_waitcnt lgkmcnt(0)", "s_cmp_eq_u32 s22, 0", "s_cbranch_scc0 P0_V")
    for j in range(4):
        for d in range(2): a.I(mfma16(96 + 4 * d, 64 + 8 * j + 4 * d, 32 + 4 * j, "0" if j == 0 else None))
    a.I("s_branch P0_R")
    a.L("P0_V")
    for j in range(4):
        for d in range(2): a.I(mfma16(96 + 4 * d, 32 + 4 * j, 64 + 8 * j + 4 * d, "0" if j == 0 else None))
    a.L("P0_R")
    a.I("s_lshl_b32 s16, s20, 11", f"s_add_u32 s16, s16, {LR}", "v_add_u32 v4, s16, v3")
    wave_flag(a, 18, FL_X)
    for d in range(2): a.I(f"ds_write_b128 v4, {vr(96+4*d,4)} offset:{d*1024}")
    if LP == "mix":
        tag_check(a)
        a.I("s_cmp_ge_u32 s20, 4", "s_cbranch_scc1 P0_NF", "s_waitcnt vmcnt(0)")
        set_flag(a, 18)
        a.L("P0_NF")
    a.I("s_waitcnt lgkmcnt(0)", "s_barrier")
    a.I("s_cmp_lg_u32 s20, 0", "s_cbranch_scc1 P0_END")
    a.I(f"v_add_u32 v4, {LR}, v3")
    for w in range(8):
        a.I(f"ds_read_b128 {vr(32+8*w,4)}, v4 offset:{w*2048}", f"ds_read_b128 {vr(36+8*w,4)}, v4 offset:{w*2048+1024}")
    a.I("s_waitcnt lgkmcnt(0)")
    for s_ in (4, 2, 1):
        for w in range(s_):
            for i in range(8): a.I(f"v_add_f32 v{32+8*w+i}, v{32+8*w+i}, v{32+8*(w+s_)+i}")
    for d in range(4): a.I(f"v_cvt_pk_bf16_f32 v{8+d}, v{32+2*d}, v{33+2*d}")
    a.I("s_lshr_b32 s16, s21, 1", "s_lshl_b32 s19, s16, 12", f"s_add_u32 s19, s19, {WS_KV}",
        "s_and_b32 s16, s21, 1", "s_lshl_b32 s16, s16, 10", "s_add_u32 s19, s19, s16",
        "s_waitcnt vmcnt(0)", "s_cmp_eq_u32 s22, 0", "s_cbranch_scc0 P0_SV",
        "buffer_store_dwordx4 v[8:11], v3, s[32:35], s19 offen sc1", "s_branch P0_KF")
    a.L("P0_SV")
    a.I("v_and_b32 v2, 1, v5", "v_lshlrev_b32 v4, 9, v2", "v_and_b32 v2, 15, v1", "v_lshl_add_u32 v4, v2, 4, v4",
        "v_lshrrev_b32 v2, 1, v5", "v_lshl_add_u32 v4, v2, 3, v4",
        "buffer_store_dwordx2 v[8:9], v4, s[32:35], s19 offen offset:2048 sc1",
        "buffer_store_dwordx2 v[10:11], v4, s[32:35], s19 offen offset:2304 sc1")
    a.L("P0_KF")
    if "kvearly" in EXP:
        a.I("s_lshl_b32 s18, s2, 2", f"s_add_u32 s18, s18, {WS_FL+FL_KV}", "s_waitcnt vmcnt(0)")
        set_flag(a, 18)
    a.L("P0_END")

def kv_groups():
    gs = []
    for g in range(2):
        for i in range(4):
            o = [f"s_add_u32 m0, s25, {g*4096}", f"s_add_u32 s26, s24, {g*4096}"] if i == 0 else []
            gs.append(o + [f"buffer_load_dwordx4 v3, s[36:39], s26 offen offset:{i*1024} lds"])
    gs[-1] += ["s_add_u32 s24, s24, 32768", "s_xor_b32 s25, s25, 32768"]
    return gs

def emit_loop(a, label, bodies):
    best = (0, 1)
    i = 0
    while i < len(bodies):
        j = i
        while j < len(bodies) and bodies[j] == bodies[i]: j += 1
        if j - i > best[1] - best[0]: best = (i, j)
        i = j
    for k in range(best[0]): a.extend(bodies[k])
    a.I(f"s_mov_b32 s51, {best[1]-best[0]}")
    a.L(label)
    a.extend(bodies[best[0]])
    a.I("s_sub_u32 s51, s51, 1", "s_cmp_lg_u32 s51, 0", f"s_cbranch_scc1 {label}")
    for k in range(best[1], len(bodies)): a.extend(bodies[k])

def xn_poll(a):
    a.I("s_and_b32 s18, s2, 0xe0", "s_lshr_b32 s16, s20, 2", "s_lshl_b32 s16, s16, 4", "s_add_u32 s18, s18, s16",
        "s_and_b32 s16, s20, 3", "s_lshl_b32 s16, s16, 1", "s_add_u32 s18, s18, s16", "s_lshl_b32 s18, s18, 5", f"s_add_u32 s18, s18, {WS_FL+FL_X}",
        "v_and_b32 v2, 3, v1", "v_lshlrev_b32 v8, 2, v2", "v_bfe_u32 v2, v1, 2, 1", "v_lshl_add_u32 v8, v2, 5, v8",
        "v_lshrrev_b32 v2, 3, v1", "v_lshl_add_u32 v8, v2, 8, v8")
    if int(OPT.get("xs", 0)):
        a.extend(poll(18, 16, 8, 17, sleep=int(OPT.get("xs"))))
        return
    a.extend(lanes(16) + ["s_mov_b32 s17, 0x20000", poll_load(18, 8, 17), "s_sleep 3", "G1_PP:", poll_load(18, 8, 18), "s_waitcnt vmcnt(1)",
             "v_cmp_ne_u32 vcc, s55, v17", "s_cbranch_vccz G1_PD", poll_load(18, 8, 17), "s_waitcnt vmcnt(1)",
             "v_cmp_ne_u32 vcc, s55, v18", "s_cbranch_vccz G1_PD", "s_sub_u32 s17, s17, 1", "s_cmp_lg_u32 s17, 0", "s_cbranch_scc1 G1_PP",
             "G1_PD:", "s_mov_b64 exec, -1"])

def g1(a):
    EA = "ea" in EXP.split("_")
    NST = 32; R = 5; SLOT = 32768
    ACC = 128; FA = 64; FW = 96
    def acc(h, u, t): return ACC + (t * 4 + h * 2 + u) * 4
    a.I("s_and_b32 s16, s2, 7", "s_lshl_b32 s16, s16, 2", "s_bfe_u32 s21, s2, 0x20003", "s_add_u32 s21, s21, s16",
        "s_lshr_b32 s22, s2, 5", "s_and_b32 s23, s20, 3", "v_add_u32 v10, 31744, v3",
        "s_lshl_b32 s16, s22, 4", "s_lshl_b32 s17, s20, 1", "s_add_u32 s16, s16, s17", "s_lshl_b32 s44, s16, 15",
        "s_lshl_b32 s45, s20, 11", "s_mov_b32 s47, 0", "s_mov_b32 s50, 0", f"s_mov_b32 s52, {SLOT}",
        *([f"s_mov_b32 s47, {SLOT}", "s_add_u32 s44, s44, 1024"] if EA else []))
    PD = int(OPT.get("pd", 5))
    RH = int(OPT.get("rh", 1)); PX = int(OPT.get("px", 0))
    if PD:
        a.I(f"s_load_dwordx2 s[4:5], s[0:1], {KA_WQ}", f"s_load_dwordx2 s[6:7], s[0:1], {KA_WD}", f"s_load_dwordx2 s[8:9], s[0:1], {KA_WO}",
            f"v_min_u32 v2, {7*RH-1}, v1", "v_lshlrev_b32 v14, 7, v2", f"s_mul_i32 s16, s2, {896*RH}", "v_add_u32 v14, s16, v14",
            f"s_mov_b32 s31, {32*7168*RH}", f"s_mov_b32 s30, {PD*32*7168}", "s_cmp_eq_u32 s23, 0", "s_cbranch_scc1 G1_T0",
            *([f"s_mov_b32 s30, {PX*32*7168}", "v_bfe_u32 v2, v1, 2, 2", "s_lshl_b32 s16, s22, 2", "v_add_u32 v2, s16, v2", "v_mul_u32_u24 v14, 7168, v2",
               "v_and_b32 v2, 3, v1", "v_min_u32 v2, 2, v2", "v_mul_u32_u24 v2, 104, v2", "s_mul_i32 s16, s21, 224", "v_add3_u32 v14, v14, v2, s16",
               "s_cmp_eq_u32 s23, 2", "s_cbranch_scc1 G1_T0"] if PX else []),
            "s_mov_b32 s30, 0x7f000000", "s_mov_b32 s31, 0", "s_cmp_ge_u32 s20, 4", "s_cbranch_scc1 G1_T0", "s_waitcnt lgkmcnt(0)",
            "s_cmp_eq_u32 s20, 1", "s_cbranch_scc0 G1_T2")
        srd(a, 24, 4, 1024 * 1024 * 2)
        a.I("v_and_b32 v2, 1, v1", "v_lshlrev_b32 v14, 7, v2", "s_lshl_b32 s16, s2, 8", "v_add_u32 v14, s16, v14",
            f"s_mov_b32 s31, {32*2048}", f"s_mov_b32 s30, {PD*32*2048}", "s_branch G1_T0")
        a.L("G1_T2")
        if "nolate" not in EXP:
            a.I("s_cmp_eq_u32 s20, 2", "s_cbranch_scc0 G1_T3")
            srd(a, 24, 6, 3584 * 1024 * 2)
            if "lwd" in EXP: a.I("v_min_u32 v2, 8, v1", "v_lshlrev_b32 v14, 7, v2", "s_mov_b32 s31, 1152", "s_mul_i32 s30, s2, 28672")
            a.I("s_branch G1_T0")
            a.L("G1_T3")
            srd(a, 24, 8, 1024 * 1024 * 2)
            a.I("v_min_u32 v2, 2, v1", "v_lshlrev_b32 v14, 7, v2", "s_mov_b32 s31, 384", "s_lshl_b32 s30, s2, 13")
        a.L("G1_T0")
    def touch(): return ["buffer_load_dword v16, v14, s[24:27], s30 offen" + OPT.get("tm", "").replace("+", " "), "s_add_u32 s30, s30, s31"] if PD else []
    def touch0(): return []
    if not EA: xn_poll(a)
    ts(a, 11)
    def adv(reg): return [f"s_add_u32 s{reg}, s{reg}, {SLOT}", f"s_cmp_eq_u32 s{reg}, {SLOT*R}", f"s_cselect_b32 s{reg}, 0, s{reg}"]
    def dma_act():
        return ["s_add_u32 m0, s47, s45", "s_nop 0", "buffer_load_dwordx4 v3, s[32:35], s44 offen lds",
                "buffer_load_dwordx4 v10, s[32:35], s44 offen offset:1024 lds", "s_add_u32 s44, s44, 1024"] + adv(47)
    def dma_w(): return w_dma(52) + adv(52)
    def rdaddr():
        return ["s_lshr_b32 s17, s20, 2", "s_lshl_b32 s16, s17, 13", "v_add_u32 v6, s16, v3",
                "s_and_b32 s19, s21, 1", "s_lshl_b32 s16, s23, 1", "s_add_u32 s40, s16, s19", "s_add_u32 s41, s40, 1",
                "s_mul_i32 s16, s19, 6", "s_sub_u32 s16, 6, s16", "s_cmp_eq_u32 s23, 3", "s_cselect_b32 s40, s16, s40", "s_cselect_b32 s41, 7, s41",
                "v_lshrrev_b32 v2, 4, v1", "v_lshlrev_b32 v7, 11, v2", "v_and_b32 v2, 1, v2", "v_lshlrev_b32 v12, 2, v2",
                "v_bfe_u32 v2, v1, 2, 2", "v_lshl_add_u32 v7, v2, 8, v7", "v_add_u32 v12, v12, v2",
                "v_and_b32 v2, 3, v1", "v_lshl_add_u32 v7, v2, 3, v7", "v_add_u32 v7, 16384, v7",
                "v_xor_b32 v2, s41, v12", "v_lshl_add_u32 v11, v2, 5, v7", "v_xor_b32 v2, s40, v12", "v_lshl_add_u32 v7, v2, 5, v7"]
    def reads():
        o = ["v_add_u32 v8, s50, v6", "v_add_u32 v9, s50, v7", "v_add_u32 v13, s50, v11"]
        for h in range(2):
            for u in range(2):
                for rd in range(2):
                    o.append(f"ds_read_b64_tr_b16 {vr(FW+(h*2+u)*4+2*rd,2)}, v{9 if u == 0 else 13} offset:{h*8192+rd*1024}")
        for t in range(8): o.append(f"ds_read_b128 {vr(FA+t*4,4)}, v8 offset:{t*1024}")
        return o + adv(50)
    def mm(first):
        return [mfma16(acc(h, u, t), FW + (h * 2 + u) * 4, FA + t * 4, "0" if first else None) for t in range(8) for h in range(2) for u in range(2)]
    a.I("s_cmp_ge_u32 s20, 4", "s_cbranch_scc1 G1_B")
    L = Log()
    NP0 = int(OPT.get("np0", 2))
    def proA(js): return [x for j in js for x in (L.note(dma_w(), j) if 0 < j < R - 1 else []) + (L.note(dma_act(), j) if j or not EA else [])]
    a.extend(proA(range(NP0)))
    def kv_flag():
        a.I("s_lshl_b32 s18, s2, 2", f"s_add_u32 s18, s18, {WS_FL+FL_KV}", "s_cmp_eq_u32 s20, 0", "s_cselect_b32 s18, s18, 0x7f000000")
        set_flag(a, 18); L.note(["buffer"], None)
    if not EA: kv_flag()
    a.extend(rdaddr())
    if EA: a.I("s_cmp_eq_u32 s20, 0", "s_cbranch_scc1 G1_W0")
    a.I(f"s_waitcnt vmcnt({L.cnt(0)})", "G1_W0:", "s_barrier")
    a.extend(mixmem(reads(), proA(range(NP0, R)), False))
    E0 = "noe0" not in EXP
    a.I("s_waitcnt lgkmcnt(0)" if E0 else f"s_waitcnt vmcnt({L.cnt(1)}) lgkmcnt(0)", "s_barrier")
    ts(a, 12)
    kv = kv_groups()
    def bodyA(k, first=False):
        o = mm(first)
        if first and E0: o += [f"s_waitcnt vmcnt({L.cnt(1)})", "s_barrier"]
        if first and EA:
            o += ["s_lshl_b32 s18, s2, 2", f"s_add_u32 s18, s18, {WS_FL+FL_KV}", "s_cmp_eq_u32 s20, 0", "s_cselect_b32 s18, s18, 0x7f000000",
                  "v_mov_b32 v17, s55", "v_mov_b32 v18, 0", "s_mov_b64 exec, 1"] + L.note(["buffer_store_dword v17, v18, s[32:35], s18 offen sc1"], None) + ["s_mov_b64 exec, -1"]
        dm = L.note([f"s_mov_b32 s18, {WS_FL+FL_KV}", poll_load(18, 3, 28, True)], None) if k == 27 else []
        dm += (L.note(dma_w(), k - 1 + R) if k - 1 + R < NST else []) + (L.note(dma_act() + touch(), k + R) if k + R < NST else [])
        if k + R < NST and PD: L.l[-1] = None
        if k == 28:
            o += poll(18, 64, 3, 28, True, preloaded=2)
            o += ["s_lshl_b32 s24, s20, 13", f"s_add_u32 s25, s24, {LKV}",
                  f"s_add_u32 s36, s32, {WS_KV}", "s_addc_u32 s37, s33, 0", "s_mov_b32 s38, 0x40000", "s_mov_b32 s39, 0x20000"]
            dm = L.note([x for g in kv for x in g], None)
        if k == 29: dm = L.note([x for g in kv for x in g], None)
        o += mixmem(reads() if k + 1 < NST else [], dm)
        if k + 1 < NST: o += [f"s_waitcnt vmcnt({L.cnt(k + 2)}) lgkmcnt(0)", "s_barrier"]
        return o
    emit_loop(a, "G1_A_LOOP", [bodyA(k, k == 0) for k in range(NST)])
    a.I("s_branch G1_EPI")
    a.L("G1_B")
    M = Log()
    def proB(js): return [x for j in js for x in (M.note(dma_w(), j) if j else []) + (M.note(dma_act(), j) if j or not EA else [])]
    a.extend(proB(range(min(NP0, R - 1))))
    a.extend(rdaddr())
    a.I(f"s_waitcnt vmcnt({M.cnt(0)})", "s_barrier")
    a.extend(proB(range(min(NP0, R - 1), R - 1)))
    a.I(*([] if E0 else [f"s_waitcnt vmcnt({M.cnt(1)})"]), "s_barrier")
    def bodyB(k, first=False):
        dm = M.note(dma_w() + dma_act(), k - 1 + R) + M.note(touch(), None) if k - 1 + R < NST else []
        o = mixmem(reads(), dm) + ([f"s_waitcnt vmcnt({M.cnt(1)})", "s_barrier"] if first and E0 else []) + ["s_waitcnt lgkmcnt(0)"] + mm(first)
        if k + 1 < NST: o += [f"s_waitcnt vmcnt({M.cnt(k + 2)})", "s_barrier"]
        return o
    emit_loop(a, "G1_B_LOOP", [bodyB(k, k == 0) for k in range(NST)])
    a.L("G1_EPI")
    jit(a, 6)
    ts(a, 1)
    a.I("s_lshl_b32 s16, s20, 8", f"s_add_u32 s16, s16, {LC}", "v_lshl_add_u32 v13, v1, 2, s16", "v_mov_b32 v12, 0", "ds_write_b32 v13, v12")
    wave_flag(a, 60, FL_H)
    a.I("s_lshl_b32 s16, s22, 4", "s_lshr_b32 s17, s20, 2", "s_lshl_b32 s17, s17, 3", "s_add_u32 s16, s16, s17", "s_mul_i32 s16, s16, 112",
        "s_mul_i32 s17, s21, 7", "s_add_u32 s17, s17, s40", "s_lshr_b32 s17, s17, 1", "s_add_u32 s16, s16, s17",
        "s_lshl_b32 s16, s16, 10", f"s_add_u32 s61, s16, {WS_H}", "s_cmp_lg_u32 s23, 3", "s_cbranch_scc1 G1_NQ")
    a.I(f"s_mov_b32 s18, {f32(QSCALE)}", "s_lshr_b32 s16, s20, 2", "s_lshl_b32 s16, s16, 13", f"s_add_u32 s16, s16, {LQ}",
        "v_add_u32 v9, s16, v3", "s_lshl_b32 s16, s19, 3", "s_add_u32 s61, s61, s16")
    for t in range(8):
        q0, q1 = acc(0, 1, t), acc(1, 1, t)
        for i in range(4): a.I(f"v_mul_f32 v{q0+i}, s18, v{q0+i}", f"v_mul_f32 v{q1+i}, s18, v{q1+i}")
        a.I(f"v_cvt_pk_bf16_f32 v{FA+4*t}, v{q0}, v{q0+1}", f"v_cvt_pk_bf16_f32 v{FA+4*t+1}, v{q0+2}, v{q0+3}",
            f"v_cvt_pk_bf16_f32 v{FA+4*t+2}, v{q1}, v{q1+1}", f"v_cvt_pk_bf16_f32 v{FA+4*t+3}, v{q1+2}, v{q1+3}",
            f"ds_write_b128 v9, {vr(FA+4*t,4)} offset:{t*1024}")
    a.L("G1_NQ")
    XE = "xlate" not in EXP
    if XE: a.I("s_cmp_lt_u32 s20, 4", "s_cbranch_scc1 G1_PK", "s_waitcnt lgkmcnt(0)", "s_barrier", "s_setprio 3", "G1_PK:")
    a.I("s_cmp_eq_u32 s23, 3", "s_cbranch_scc1 G1_EPQ")
    for t in reversed(range(8)):
        g, u = acc(0, 0, t), acc(1, 0, t)
        for i in range(8): a.I(f"v_max_f32 v{g+i}, 0, v{g+i}")
        for i in range(8): a.I(f"v_mul_f32 v{g+i}, v{g+i}, v{u+i}")
        for d in range(4): a.I(f"v_cvt_pk_bf16_f32 v{HP+4*t+d}, v{g+2*d}, v{g+2*d+1}")
    a.I("s_branch G1_X")
    a.L("G1_EPQ")
    for t in reversed(range(8)):
        g, u = acc(0, 0, t), acc(1, 0, t)
        for i in range(4): a.I(f"v_max_f32 v{g+i}, 0, v{g+i}")
        for i in range(4): a.I(f"v_mul_f32 v{g+i}, v{g+i}, v{u+i}")
        for d in range(2): a.I(f"v_cvt_pk_bf16_f32 v{HP+4*t+d}, v{g+2*d}, v{g+2*d+1}")
    a.L("G1_X")
    a.I("s_cmp_ge_u32 s20, 4", "s_cbranch_scc1 G1_X2", "s_lshl_b32 s16, s20, 11", "v_add_u32 v9, s16, v3")
    for t in range(8): a.I(f"ds_write_b128 v9, {vr(HP+4*t,4)} offset:{(t>>1)*8192+(t&1)*1024}")
    if XE: a.I("s_waitcnt lgkmcnt(0)", "s_barrier", "G1_X2:")
    else: a.I("G1_X2:", "s_waitcnt lgkmcnt(0)", "s_barrier")
    ts(a, 2)

def h_stores(a):
    _n[0] += 1; lab = f"HS{_n[0]}"
    a.I(f"s_sub_u32 s16, s61, {8*112*1024}", "s_cmp_eq_u32 s20, 3", f"s_cbranch_scc1 {lab}")
    for w, n in ((4, lab + "_D"), (2, None)):
        for t in range(8): a.I(f"buffer_store_dwordx{w} {vr(HP+4*t,w)}, v3, s[32:35], s61 offen{SC1}", f"s_add_u32 s61, s61, {112*1024}")
        a.I("s_waitcnt lgkmcnt(0)")
        for t in range(8): a.I(f"buffer_store_dwordx{w} {vr(192+4*t,w)}, v3, s[32:35], s16 offen{SC1}", f"s_add_u32 s16, s16, {112*1024}")
        if n: a.I(f"s_branch {n}"); a.L(lab)
    a.L(lab + "_D")

def attention(a):
    QR = [16, 24]; KB = [32, 48]; VB = [40, 56]; P = 64; SEL = 72; Lr = [76, 80]; S = [96, 112]; O = [128, 144]; C = [160, 176]
    a.I(f"s_add_u32 s36, s32, {WS_KV}", "s_addc_u32 s37, s33, 0", "s_mov_b32 s38, 0x40000", "s_mov_b32 s39, 0x20000")
    a.I("v_bfe_u32 v2, v1, 4, 1", "v_lshlrev_b32 v4, 10, v2", "v_lshrrev_b32 v2, 5, v1", "v_lshl_add_u32 v4, v2, 8, v4",
        "v_and_b32 v2, 15, v1", "v_lshl_add_u32 v4, v2, 4, v4",
        "s_lshl_b32 s16, s20, 12", f"s_add_u32 s16, s16, {LQ}", "v_add_u32 v5, s16, v4")
    for b in range(2):
        for ks in range(2): a.I(f"ds_read_b128 {vr(QR[b]+4*ks,4)}, v5 offset:{b*2048+ks*512}")
    a.I(f"v_add_u32 v6, {LKV}, v4", f"v_add_u32 v7, {LKV+2048}, v3")
    sync_setup(a, LC, 13, 14, 12)
    a.I("s_waitcnt vmcnt(8)")
    sync_block(a, 13, 14, 12, 15)
    def rdK(buf, off): return [f"ds_read_b128 {vr(KB[buf]+4*ks,4)}, v6 offset:{off+ks*512}" for ks in range(2)]
    def rdV(buf, off): return [f"ds_read_b128 {vr(VB[buf]+4*ks,4)}, v7 offset:{off+ks*1024}" for ks in range(2)]
    a.extend(rdK(0, 0) + rdV(0, 0))
    def rsum(b): return f"v_smfmac_f32_16x16x64_bf16 {vr(Lr[b],4)}, {vr(SEL,4)}, {vr(P,8)}, v84"
    a.I("v_and_b32 v2, 4, v1", "v_cmp_eq_u32 vcc, 0, v2", "v_mov_b32 v5, 0x3f803f80", "s_mov_b32 s28, 0", "v_and_b32 v2, 1, v1",
        f"v_cndmask_b32 v{SEL}, 0, v5, vcc", f"v_cndmask_b32 v{SEL+2}, v5, 0, vcc" if False else f"v_xor_b32 v{SEL+2}, v5, v{SEL}",
        f"v_mov_b32 v{SEL+1}, v{SEL}", f"v_mov_b32 v{SEL+3}, v{SEL+2}",
        "s_mov_b32 s16, 0xaaaaaaaa", "v_mul_lo_u32 v84, v2, s16", "v_or_b32 v84, 0x44444444, v84")
    a.I("s_waitcnt lgkmcnt(0)")
    ts(a, 3)
    for b in range(2):
        a.I(mfma32(S[b], KB[0], QR[b], "0"), mfma32(S[b], KB[0] + 4, QR[b] + 4))
    for b in range(2):
        for i in range(16): a.I(f"v_mov_b32 v{O[b]+i}, 0")
        for i in range(4): a.I(f"v_mov_b32 v{Lr[b]+i}, 0")
    for i in range(4): a.I(f"v_mov_b32 v{P+i}, 0", f"v_mov_b32 v{P+4+i}, 0", f"v_mov_b32 v{VB[1]+4+i}, 0")
    for b in range(2):
        s0 = S[b]; m = 8 + 2 * b
        a.I(f"v_max3_f32 v{m}, v{s0}, v{s0+1}, v{s0+2}")
        for i in range(3, 15, 2): a.I(f"v_max3_f32 v{m}, v{m}, v{s0+i}, v{s0+i+1}")
        a.I(f"v_max_f32 v{m}, v{m}, v{s0+15}", f"v_mov_b32 v{m+1}, v{m}")
    for b in range(2):
        m = 8 + 2 * b
        a.I(f"v_permlane32_swap_b32 v{m}, v{m+1}", f"v_max_f32 v{m}, v{m}, v{m+1}", f"v_sub_f32 v{C[b]}, 0, v{m}")
        for i in range(1, 16): a.I(f"v_mov_b32 v{C[b]+i}, v{C[b]}")
    a.I(mfma32(S[0], KB[0], QR[0], C[0]), mfma32(S[0], KB[0] + 4, QR[0] + 4))
    def tile(b, kbuf_next, vbuf, vprev, extra, dg):
        nb = 1 - b; s0 = S[b]
        ex = [f"v_exp_f32 v{s0+i}, v{s0+i}" for i in range(16)]
        cv = [f"v_cvt_pk_bf16_f32 v{P+d}, v{s0+2*d}, v{s0+2*d+1}" for d in range(8)]
        e = list(extra) + [None] * 4
        if "twow" not in EXP:
            o = [mfma32(S[nb], KB[kbuf_next], QR[nb], C[nb]), e[0]] + ex[0:2] + [e[1], ex[2]]
            o += [mfma32(O[nb], VB[vprev] + 4, P + 4), e[2]] + ex[3:6]
            o += [rsum(nb), e[3]] + ex[6:8]
            o += [mfma32(S[nb], KB[kbuf_next] + 4, QR[nb] + 4), cv[0], cv[1], ex[8], cv[2], cv[3], ex[9], ex[10]]
            o += [mfma32(O[b], VB[vbuf], P)] + ex[11:14]
        else:
            o = [mfma32(S[nb], KB[kbuf_next], QR[nb], C[nb]), e[0]] + ex[0:3]
            o += [mfma32(O[nb], VB[vprev] + 4, P + 4), e[1]] + ex[3:6]
            o += [rsum(nb)] + ex[6:8]
            o += [mfma32(S[nb], KB[kbuf_next] + 4, QR[nb] + 4), e[2], cv[0], cv[1], ex[8], cv[2], cv[3], ex[9], ex[10]]
            o += [mfma32(O[b], VB[vbuf], P), e[3]] + ex[11:14]
        o += (dg or []) + [ex[14], ex[15]] + cv[4:8]
        return [x for x in o if x]
    a.I(f"s_setprio {int(OPT.get('ap', 2))}", "s_nop 11")
    dg = kv_groups()
    ONEW = "twow" not in EXP
    def trip(first, sfx):
        def chk(tag):
            return ["v_cmp_gt_u32 vcc, s53, v15", "s_nop 0", f"s_cbranch_vccnz ATT_SP{tag}{sfx}", f"ATT_CT{tag}{sfx}:"]
        for kb in range(8):
            cur = kb & 1; nxt = 1 - cur
            arrive = ["ds_add_u32 v13, v12", "s_add_u32 s53, s53, 1"]
            if kb == 0 and not first: a.extend(chk(0))
            if kb == 6: a.I("s_waitcnt vmcnt(0)", *arrive)
            if kb == 7: a.extend(chk(7) + arrive)
            if kb == 7: a.I("v_xor_b32 v6, 0x8000, v6", "v_xor_b32 v7, 0x8000, v7")
            off = ((kb + 1) & 7) * 4096
            g0, g1 = (dg[2 * kb], dg[2 * kb + 1]) if kb < 4 and not first else (None, ["ds_read_b32 v15, v14"] if kb >= 6 else None)
            a.extend(tile(0, cur, cur, nxt, rdK(nxt, off) + rdV(nxt, off), g0))
            a.I("s_waitcnt lgkmcnt(0)" if ONEW else "s_waitcnt lgkmcnt(2)")
            a.extend(tile(1, nxt, cur, cur, [], g1))
            if kb == 7 and not first: a.I("s_add_u32 s28, s28, 1", "s_cmp_lg_u32 s28, 7")
            if not ONEW or kb >= 6: a.I("s_waitcnt lgkmcnt(0)")
    trip(True, "F")
    a.L("ATT_LOOP")
    jit(a, 8)
    trip(False, "")
    a.I("s_cbranch_scc1 ATT_LOOP")
    a.I(mfma32(O[1], VB[1] + 4, P + 4), rsum(1))
    ts(a, 4)
    for b in range(2): a.I(f"v_add_f32 v{Lr[b]}, v{Lr[b]}, v{Lr[b]+1}")
    a.I("s_setprio 3", f"s_mov_b32 s16, {f32(2.0**100)}")
    for b in range(2):
        a.I(f"v_max3_f32 v{8+b}, abs(v{O[b]}), abs(v{O[b]+1}), v{Lr[b]}", f"v_add_f32 v{10+b}, v{O[b]}, v{O[b]+1}")
    for i in range(2, 16, 2):
        for b in range(2):
            a.I(f"v_max3_f32 v{8+b}, v{8+b}, abs(v{O[b]+i}), abs(v{O[b]+i+1})", f"v_add3_u32 v2, v2, v2, v2" if False else f"v_add_f32 v{10+b}, v{10+b}, v{O[b]+i}",
                f"v_add_f32 v{86+b}, v{O[b]+i+1}, v{Lr[b]}" if i == 2 else f"v_add_f32 v{86+b}, v{86+b}, v{O[b]+i+1}")
    a.I("v_max_f32 v8, v8, v9", "v_add_f32 v10, v10, v11", "v_add_f32 v86, v86, v87", "v_add_f32 v9, v10, v86")
    a.I("v_cmp_nlt_f32 vcc, v8, s16", "v_cmp_u_f32 s[18:19], v9, v9", "s_or_b64 vcc, vcc, s[18:19]")
    if "force" in EXP: a.I("s_mov_b64 vcc, -1")
    a.I("s_cbranch_vccz ATT_FIN")
    for b in range(2):
        M = 10; AL = 11
        for i in range(16): a.I(f"v_mov_b32 v{O[b]+i}, 0")
        for i in range(4): a.I(f"v_mov_b32 v{Lr[b]+i}, 0")
        a.I(f"v_mov_b32 v{M}, {f32(-3.0e38)}", f"s_mov_b32 s29, 0")
        a.L(f"ATT_FB{b}")
        for ks in range(2):
            a.I(f"buffer_load_dwordx4 {vr(KB[0]+4*ks,4)}, v4, s[36:39], s29 offen offset:{ks*512}",
                f"buffer_load_dwordx4 {vr(VB[0]+4*ks,4)}, v3, s[36:39], s29 offen offset:{2048+ks*1024}")
        a.I("s_waitcnt vmcnt(0)")
        s0 = S[0]
        a.I(mfma32(s0, KB[0], QR[b], "0"), mfma32(s0, KB[0] + 4, QR[b] + 4))
        a.I(f"v_max3_f32 v8, v{s0}, v{s0+1}, v{M}")
        for i in range(2, 16, 2): a.I(f"v_max3_f32 v8, v8, v{s0+i}, v{s0+i+1}")
        a.I("v_mov_b32 v9, v8", "v_permlane32_swap_b32 v8, v9", "v_max_f32 v8, v8, v9",
            f"v_sub_f32 v{AL}, v{M}, v8", f"v_exp_f32 v{AL}, v{AL}", f"v_mov_b32 v{M}, v8")
        for i in range(16): a.I(f"v_sub_f32 v{s0+i}, v{s0+i}, v8")
        for i in range(16): a.I(f"v_exp_f32 v{s0+i}, v{s0+i}")
        for i in range(16): a.I(f"v_mul_f32 v{O[b]+i}, v{O[b]+i}, v{AL}")
        for i in range(4): a.I(f"v_mul_f32 v{Lr[b]+i}, v{Lr[b]+i}, v{AL}")
        for d in range(8): a.I(f"v_cvt_pk_bf16_f32 v{P+d}, v{s0+2*d}, v{s0+2*d+1}")
        a.I(mfma32(O[b], VB[0], P), mfma32(O[b], VB[0] + 4, P + 4), rsum(b))
        a.I("s_add_u32 s29, s29, 4096", f"s_cmp_lg_u32 s29, {64*4096}", f"s_cbranch_scc1 ATT_FB{b}")
        a.I(f"v_add_f32 v{Lr[b]}, v{Lr[b]}, v{Lr[b]+1}")
    a.L("ATT_FIN")
    a.I("v_mov_b32 v23, v13", "v_mov_b32 v24, v14", "v_mov_b32 v25, v12")
    a.I("v_bfe_u32 v2, v1, 4, 1", "v_lshlrev_b32 v5, 15, v2", "v_lshrrev_b32 v2, 5, v1", "v_lshl_add_u32 v5, v2, 8, v5",
        "v_and_b32 v2, 15, v1", "v_lshl_add_u32 v5, v2, 4, v5",
        "s_lshl_b32 s16, s22, 2", "s_add_u32 s16, s16, s20", "s_lshl_b32 s16, s16, 7", "s_add_u32 s16, s16, s21", "s_lshl_b32 s16, s16, 10",
        f"s_add_u32 s16, s16, {WS_O}", "s_add_u32 s17, s16, 65536")
    for b in range(2): a.I(f"v_rcp_f32 v{8+b}, v{Lr[b]}")
    for b in range(2):
        for i in range(16): a.I(f"v_mul_f32 v{O[b]+i}, v{O[b]+i}, v{8+b}")
        for d in range(8): a.I(f"v_cvt_pk_bf16_f32 v{S[b]+d}, v{O[b]+2*d}, v{O[b]+2*d+1}")
        for ks in range(2):
            a.I(f"buffer_store_dwordx4 {vr(S[b]+4*ks,4)}, v5, s[32:35], s{16+b} offen offset:{ks*512}{SC1}")

def down(a):
    R = 8; SLOT = 8192; NH_ = 56; NST = NH_ + 16 - NPA
    FW_ = [32, 64]; AR = 192; ACC = 128
    M32 = "d32" in EXP
    a.I(f"s_setprio {int(OPT.get('bp', 0))}", "s_lshl_b32 s16, s20, 11", "v_add_u32 v9, s16, v3")
    for t in range(8): a.I(f"ds_read_b128 {vr(192+4*t,4)}, v9 offset:{(t>>1)*8192+(t&1)*1024}")
    h_stores(a)
    a.I(f"s_load_dwordx2 s[8:9], s[0:1], {KA_WD}", f"s_load_dwordx2 s[4:5], s[0:1], {KA_WO}",
        "s_and_b32 s21, s2, 1",
        "s_bfe_u32 s16, s2, 0x10001", "s_lshl_b32 s16, s16, 3", "s_bfe_u32 s17, s2, 0x30003", "s_add_u32 s22, s16, s17",
        "s_bfe_u32 s16, s2, 0x10002", "s_lshl_b32 s16, s16, 2", "s_bfe_u32 s17, s2, 0x20006", "s_add_u32 s23, s16, s17",
        "s_lshl_b32 s46, s20, 11",
        "v_lshrrev_b32 v2, 4, v1", "s_lshl_b32 s16, s20, 3", "v_add_u32 v4, s16, v2", "v_lshlrev_b32 v4, 11, v4",
        "v_bfe_u32 v5, v1, 1, 3", *(["v_lshlrev_b32 v6, 1, v2", "v_xor_b32 v6, v6, v5", "v_mov_b32 v7, v6"] if M32 else ["v_xor_b32 v6, v2, v5", "v_xor_b32 v7, 4, v6"]),
        "v_and_b32 v2, 1, v1", "v_lshl_add_u32 v4, v2, 4, v4", "s_lshl_b32 s16, s23, 8", "v_add_u32 v4, s16, v4",
        f"v_add_u32 v5, {4*2048-1024}, v4",
        "v_lshl_add_u32 v4, v6, 5, v4", "v_lshl_add_u32 v5, v7, 5, v5",
        "s_mul_i32 s48, s21, %d" % (1792 * 2048), "s_waitcnt lgkmcnt(0)")
    srd(a, 24, 8, 3584 * 1024 * 2)
    def dma_w(st):
        sw = [*[f"s_mov_b32 s{24+i}, s{4+i}" for i in range(2)], "s_mov_b32 s26, 0x200000", "s_mov_b32 s48, s40"] if st == NH_ else []
        return sw + [f"s_add_u32 m0, s46, {(st % R) * SLOT}", "s_add_u32 s49, s48, 0",
                "buffer_load_dwordx4 v4, s[24:27], s49 offen lds", "s_add_u32 s48, s48, 65536",
                "buffer_load_dwordx4 v5, s[24:27], s49 offen offset:1024 lds"]
    def ld_a(st):
        r = AR + (st % R) * 8
        if st >= NH_:
            return (["s_mov_b32 s44, s41"] if st == NH_ else []) + [f"buffer_load_dwordx4 {vr(r,4)}, v3, s[32:35], s44 offen",
                    f"buffer_load_dwordx4 {vr(r+4,4)}, v27, s[32:35], s44 offen", "s_add_u32 s44, s44, 1024"]
        if M32: return [f"buffer_load_dwordx4 {vr(r,4)}, v10, s[32:35], s44 offen", f"buffer_load_dwordx4 {vr(r+4,4)}, v10, s[32:35], s44 offen offset:512",
                        "s_add_u32 s44, s44, 1024"]
        return [f"buffer_load_dwordx4 {vr(r,4)}, v3, s[32:35], s44 offen", f"buffer_load_dwordx4 {vr(r+4,4)}, v10, s[32:35], s44 offen",
                "s_add_u32 s44, s44, 1024"]
    L = Log()
    NW = int(OPT.get("nw", 2))
    for j in range(NW): a.extend(L.note(dma_w(j), ("w", j)))
    a.I(f"s_waitcnt vmcnt({2*NW})")
    set_flag(a, 60)
    LAG = int(OPT.get("lag", 2))
    for j in range(NW, R - LAG): a.extend(L.note(dma_w(j), ("w", j)))
    a.I("s_lshl_b32 s16, s22, 3", "s_lshl_b32 s17, s20, 1", "s_add_u32 s16, s16, s17", "s_mul_i32 s16, s16, 112",
        "s_mul_i32 s17, s21, 56", "s_add_u32 s16, s16, s17", "s_lshl_b32 s44, s16, 10", f"s_add_u32 s44, s44, {WS_H}",
        )
    if M32:
        a.I("v_bfe_u32 v2, v1, 4, 1", f"v_mul_u32_u24 v10, {112*1024}, v2", "v_lshrrev_b32 v8, 5, v1", "v_lshl_add_u32 v10, v8, 8, v10",
            "v_and_b32 v9, 15, v1", "v_lshl_add_u32 v10, v9, 4, v10",
            "v_lshlrev_b32 v12, 10, v8", "v_bfe_u32 v9, v1, 2, 2", "v_lshl_add_u32 v12, v9, 8, v12",
            "v_lshlrev_b32 v9, 1, v9", "v_xor_b32 v9, v9, v2", "v_lshl_add_u32 v12, v9, 5, v12",
            "v_and_b32 v9, 3, v1", "v_lshl_add_u32 v12, v9, 3, v12")
        for u in range(1, 4): a.I(f"v_xor_b32 v{12+u}, {64*u}, v12")
    else:
        a.I(f"v_add_u32 v10, {112*1024}, v3",
            "v_lshrrev_b32 v2, 4, v1", "v_lshlrev_b32 v12, 10, v2", "v_bfe_u32 v9, v1, 2, 2", "v_lshl_add_u32 v12, v9, 8, v12",
            "v_bfe_u32 v8, v1, 2, 3", "v_lshl_add_u32 v12, v8, 5, v12", "v_and_b32 v9, 3, v1", "v_lshl_add_u32 v12, v9, 3, v12")
        for u in range(1, 8): a.I(f"v_xor_b32 v{12+u}, {32*u}, v12")
    NT = 0
    if "wt2" in EXP:
        a.I("v_min_u32 v2, 55, v1", "v_lshlrev_b32 v24, 7, v2", "s_lshl_b32 s16, s2, 2", "s_add_u32 s16, s16, s20", "s_mul_i32 s16, s16, 7168",
            "buffer_load_dword v25, v24, s[24:27], s16 offen")
    if "wt" in EXP.split("_"):
        a.I("v_lshrrev_b32 v2, 1, v1", "v_lshlrev_b32 v24, 11, v2", "v_and_b32 v2, 1, v1", "v_lshl_add_u32 v24, v2, 7, v24",
            "s_and_b32 s16, s22, 7", "s_lshl_b32 s16, s16, 2", "s_add_u32 s16, s16, s20", "s_mul_i32 s16, s16, %d" % (56 * 2048),
            "s_mul_i32 s17, s21, %d" % (1792 * 2048), "s_add_u32 s16, s16, s17", "s_lshl_b32 s17, s23, 8", "s_add_u32 s16, s16, s17",
            f"s_add_u32 s17, s16, {24*2048}",
            "buffer_load_dword v25, v24, s[24:27], s16 offen", "buffer_load_dword v26, v24, s[24:27], s17 offen")
        NT = 2
    sync_setup(a, LC + 1024, 20, 21, 22)
    a.I("s_lshl_b32 s40, s21, 20", f"s_add_u32 s40, s40, {NPA*65536}", "s_and_b32 s16, s20, 1", "s_lshl_b32 s16, s16, 15", "s_add_u32 s40, s40, s16",
        "s_lshr_b32 s16, s20, 1", "s_lshl_b32 s16, s16, 14", "s_add_u32 s40, s40, s16", "s_lshl_b32 s16, s20, 14", "s_sub_u32 s40, s40, s16",
        "s_lshl_b32 s16, s22, 2", "s_add_u32 s16, s16, s20", "s_lshl_b32 s41, s16, 16", "s_lshl_b32 s16, s21, 14", "s_add_u32 s41, s41, s16",
        f"s_add_u32 s41, s41, {WS_O+NPA*1024}", "v_add_u32 v27, 0x8000, v3",
        f"v_add_u32 v2, {NPA}, v1", "v_and_b32 v8, 3, v2", "v_lshlrev_b32 v28, 8, v8", "v_bfe_u32 v8, v2, 2, 2", "v_lshl_add_u32 v28, v8, 5, v28",
        "s_lshr_b32 s16, s22, 1", "s_lshl_b32 s43, s16, 10", "s_and_b32 s16, s22, 1", "s_lshl_b32 s16, s16, 1", "s_lshr_b32 s17, s20, 1",
        "s_add_u32 s16, s16, s17", "s_lshl_b32 s16, s16, 2", "s_add_u32 s43, s43, s16", "s_lshl_b32 s16, s21, 7", "s_add_u32 s43, s43, s16",
        f"s_add_u32 s43, s43, {WS_FL+FL_O}")
    a.I("v_lshrrev_b32 v2, 4, v1", "v_bfe_u32 v8, v1, 2, 2", "v_lshl_add_u32 v9, v8, 3, v2", "v_lshlrev_b32 v9, 5, v9",
        "v_and_b32 v2, 3, v1", "v_lshl_add_u32 v9, v2, 2, v9",
        "s_lshr_b32 s18, s22, 1", "s_lshl_b32 s18, s18, 5", "s_lshl_b32 s16, s21, 2", "s_add_u32 s18, s18, s16", "s_lshl_b32 s18, s18, 5",
        f"s_add_u32 s18, s18, {WS_FL+FL_H+16}")
    PG = "nopg" not in EXP
    a.extend(poll(18, 8 if PG else 64, 9, sleep=int(OPT.get("hs", 2))))
    ts(a, 3)
    L.l = []
    for j in range(R - 1): a.extend(L.note(ld_a(j), ("a", j)))
    if PG: a.extend(L.note([poll_load(18, 9, 24), "s_mov_b32 s45, 44"], ("f", 0)))
    def need(k):
        last = max([i for i, t in enumerate(L.l) if (t[0] in "af" and t[1] <= k) or (t[0] == "w" and t[1] <= k + 1 + LAG)], default=-1)
        return len(L.l) - 1 - last
    def reads(st):
        if M32: return [f"ds_read_b64_tr_b16 {vr(FW_[st&1]+(ks*4+nb)*4+2*rd,2)}, v{12+nb} offset:{(st % R)*SLOT+ks*2048+rd*4096}"
                        for ks in range(2) for nb in range(4) for rd in range(2)]
        return [f"ds_read_b64_tr_b16 {vr(FW_[st&1]+u*4+2*rd,2)}, v{12+u} offset:{(st % R)*SLOT+rd*4096}" for u in range(8) for rd in range(2)]
    sync_block(a, 20, 21, 22, 23)
    a.extend(reads(0))
    a.I("ds_read_b32 v23, v21", f"s_mov_b32 s53, {2 - LAG}", f"s_setprio {int(OPT.get('dp', 1))}")
    def body(k):
        if M32: m = [mfma32(ACC + nb * 16, FW_[k & 1] + (ks * 4 + nb) * 4, AR + (k % R) * 8 + ks * 4, "0" if k + ks == 0 else None) for ks in range(2) for nb in range(4)]
        else: m = [mfma16(ACC + (t * 8 + u) * 4, FW_[k & 1] + u * 4, AR + (k % R) * 8 + t * 4, "0" if k == 0 else None) for u in range(8) for t in range(2)]
        if k + 1 >= NST: return [f"s_waitcnt vmcnt({need(k)}) lgkmcnt(0)"] + m
        h0, h1 = (1, 7) if M32 else (2, 14)
        CP = "nocp" not in EXP and not PT
        o = (["s_setprio 3"] if CP else []) + [f"s_waitcnt vmcnt({need(k)}) lgkmcnt(0)", "v_cmp_gt_i32 vcc, s53, v23"]
        o += ([f"s_setprio {int(OPT.get('dp', 1))}"] if CP else []) + ["ds_add_u32 v20, v22", "s_add_u32 s53, s53, 1"]
        if PT: o += [f"s_setprio {1 if (k % R) < PT else 0}"]
        o += m[:h0] + [f"s_nop {2 - h0 - (1 if PT else 0)}"] * (2 - h0 - (1 if PT else 0) >= 0) + (["s_cbranch_vccnz @SPIN"] if "nosync" not in EXP else []) + ["@CONT:"]
        if TH and k % 4 == 2:
            o += ["s_setprio 3", "v_cmp_gt_u32 vcc, s47, v25", f"s_setprio {int(OPT.get('dp', 1))}", f"s_add_u32 s47, s47, {TH}", "s_min_u32 s47, s47, 17",
                  "s_cbranch_vccnz @TSP", "@TCT:"]
        if PG and k % 8 == 0 and k <= 40:
            o += ["s_lshr_b64 s[28:29], -1, s45", "s_setprio 3", "v_cmp_ne_u32 vcc, s55, v24", f"s_setprio {int(OPT.get('dp', 1))}",
                  "s_sub_u32 s45, s45, 10", "s_max_i32 s45, s45, 0", "s_and_b64 vcc, vcc, s[28:29]", "s_cbranch_scc1 @FSP", "@FCT:"]
        dm = (L.note(dma_w(k - LAG + R), ("w", k - LAG + R)) if k - LAG + R < NST else []) + (L.note(ld_a(k - 1 + R), ("a", k - 1 + R)) if k - 1 + R < NH_ else [])
        OL = int(OPT.get("ol", 3))
        if k + OL + 2 == NH_: dm += L.note([poll_load(43, 28, 29)], ("f", k + 2))
        if k + OL == NH_:
            o += lanes(16 - NPA) + ["v_cmp_ne_u32 vcc, s55, v29", "s_mov_b64 exec, -1", "s_cbranch_vccnz DN_OS", "DN_OC:"]
        if NH_ <= k + OL < NST: dm += L.note(ld_a(k + OL), ("a", k + OL))
        if PG and k % 8 == 4 and k <= 44: dm += L.note([poll_load(18, 9, 24)], ("f", k + 4))
        if "dnodma" in EXP: dm = []
        fill = mixmem(reads(k + 1), dm, False)
        FR = int(OPT.get("fr", 5 if M32 else 10))
        rd = reads(k + 1) + ["ds_read_b32 v23, v21"] + (["ds_read_b32 v25, v26"] if TH and k % 4 == 1 else [])
        gs = groups_of(dm) if dm else []
        if "vend" in EXP:
            o += interleave(m[h0:FR], rd)
            rest = m[FR:]
            for i, x in enumerate(rest):
                o += [x] + [y for g in gs[(len(gs) * i) // len(rest):(len(gs) * (i + 1)) // len(rest)] for y in g]
            return o
        n = len(m) - h0; nr = FR - h0
        for i, x in enumerate(m[h0:]):
            o += [x] + (rd[(len(rd) * i) // nr:(len(rd) * (i + 1)) // nr] if i < nr else [])
            o += [y for g in gs[(len(gs) * i) // n:(len(gs) * (i + 1)) // n] for y in g]
        return o
    PT = int(OPT.get("pt", 0))
    TH = int(OPT.get("th", 0))
    if TH: a.I("v_subrev_u32 v26, 1024, v21", f"s_mov_b32 s47, {int(OPT.get('th0', 3))}")
    bodies = [body(k) for k in range(NST)]
    U = R
    for head in range(0, R + U + 1):
        nl = (NH_ - R - head) // U
        if all(bodies[k] == bodies[head + (k - head) % U] for k in range(head, head + nl * U)): break
    else: raise AssertionError
    spins = []
    def emit(k):
        spins.append(k)
        a.extend([x.replace("@SPIN", f"DN_SP{k}").replace("@CONT", f"DN_CT{k}").replace("@FSP", f"DN_FS{k}").replace("@FCT", f"DN_FC{k}").replace("@TSP", f"DN_TS{k}").replace("@TCT", f"DN_TC{k}") for x in bodies[k]])
    for k in range(head): emit(k)
    a.I(f"s_mov_b32 s51, {nl}")
    a.L("DN_LOOP")
    jit(a, 7)
    for k in range(head, head + U): emit(k)
    a.I("s_sub_u32 s51, s51, 1", "s_cmp_lg_u32 s51, 0", "s_cbranch_scc1 DN_LOOP")
    for k in range(head + nl * U, NST): emit(k)
    ts(a, 4)
    assert not M32
    jit(a, 5)
    XR = 32; PR = 64
    a.I("s_setprio 3", f"s_load_dwordx2 s[10:11], s[0:1], {KA_X}", f"s_load_dwordx2 s[12:13], s[0:1], {KA_OUT}",
        "s_lshl_b32 s16, s22, 2", "s_add_u32 s16, s16, s20", "s_lshl_b32 s16, s16, 16", "s_lshl_b32 s17, s23, 8", "s_add_u32 s42, s16, s17",
        "s_lshl_b32 s17, s23, 12", "s_add_u32 s43, s16, s17", f"s_add_u32 s43, s43, {WS_P}", "s_add_u32 s44, s43, 0x8000",
        "s_lshl_b32 s16, s20, 14", f"s_add_u32 s16, s16, {LKV}", "v_add_u32 v9, s16, v3", "v_subrev_u32 v26, 1024, v21",
        f"s_mov_b32 s53, {NA_END}", "s_mov_b32 s19, 0xffff0000", "s_lshr_b32 s40, s20, 1")
    xsel(a, 24)
    wave_flag(a, 60, FL_O)
    a.I("s_waitcnt lgkmcnt(0)")
    srd(a, 28, 10, 2048 * 2048); srd(a, 36, 12, 2048 * 2048)
    a.I("s_cmp_lg_u32 s40, s21", "s_cbranch_scc1 DN_NX", "s_add_u32 s17, s42, 0x8000")
    for t in range(2):
        for c in range(4): a.I(f"buffer_load_dwordx4 {vr(XR+16*t+4*c,4)}, v24, s[28:31], s{42 if t == 0 else 17} offen offset:{c*64}")
    a.L("DN_NX")
    a.I("ds_read_b32 v23, v26", "s_waitcnt lgkmcnt(0)", "v_cmp_gt_u32 vcc, s53, v23", "s_cbranch_vccz DN_AOK", "s_sleep 1", "s_branch DN_NX")
    a.L("DN_AOK")
    ts(a, 5)
    for i in range(16): a.I(f"ds_read_b128 {vr(192+4*i,4)}, v9 offset:{i*1024}")
    for i in range(16):
        if i % 4 == 0: a.I(f"s_waitcnt lgkmcnt({12 - i})")
        for j in range(4): a.I(f"v_add_f32 v{ACC+4*i+j}, v{ACC+4*i+j}, v{192+4*i+j}")
    a.I("s_cmp_eq_u32 s40, s21", "s_cbranch_scc1 DN_FIN")
    for t in range(2):
        for c in range(4):
            g = ACC + (t * 8 + c * 2) * 4; pk = 192 + (t * 4 + c) * 4
            for d in range(4): a.I(f"v_cvt_pk_bf16_f32 v{pk+d}, v{g+2*d}, v{g+2*d+1}")
            a.I(f"buffer_store_dwordx4 {vr(pk,4)}, v3, s[32:35], s{43+t} offen offset:{c*1024}{SC1}")
    a.I("s_waitcnt vmcnt(0)")
    set_flag(a, 60)
    tl_dump(a, 13)
    a.I("s_endpgm")
    a.L("DN_FIN")
    a.I("s_xor_b32 s18, s60, 32", "v_mov_b32 v25, 0", "s_waitcnt vmcnt(0)")
    for i in range(8): a.I(f"v_permlane16_swap_b32 v{XR+4*i}, v{XR+4*i+2}", f"v_permlane16_swap_b32 v{XR+4*i+1}, v{XR+4*i+3}")
    a.extend(lanes(1) + [poll_load(18, 25, 27), "s_mov_b64 exec, -1"])
    for i in range(32): a.I(f"v_lshlrev_b32 v{192+2*i}, 16, v{XR+i}", f"v_and_b32 v{193+2*i}, s19, v{XR+i}")
    for i in range(64): a.I(f"v_add_f32 v{ACC+i}, v{ACC+i}, v{192+i}")
    a.extend(poll(18, 1, 25, 27, preloaded=0, sleep=1))
    ts(a, 6)
    for t in range(2):
        for c in range(4): a.I(f"buffer_load_dwordx4 {vr(PR+16*t+4*c,4)}, v3, s[32:35], s{43+t} offen offset:{c*1024}")
    for i in range(8):
        g = ACC + 8 * i; pk = 32 + 4 * i
        a.I(f"s_waitcnt vmcnt({7 - i + i})")
        for d in range(4): a.I(f"v_lshlrev_b32 v{192+2*d}, 16, v{PR+4*i+d}", f"v_and_b32 v{193+2*d}, s19, v{PR+4*i+d}")
        for d in range(8): a.I(f"v_add_f32 v{g+d}, v{g+d}, v{192+d}")
        if "bias" in OPT and i == 0: a.I(f"v_add_f32 v{g}, {f32(float(OPT['bias']))}, v{g}")
        for d in range(4): a.I(f"v_cvt_pk_bf16_f32 v{pk+d}, v{g+2*d}, v{g+2*d+1}")
        a.I(f"v_permlane16_swap_b32 v{pk}, v{pk+2}", f"v_permlane16_swap_b32 v{pk+1}, v{pk+3}",
            f"buffer_store_dwordx4 {vr(pk,4)}, v24, s[36:39], s42 offen offset:{(i&3)*64}" + OPT.get("om", "").replace("+", " "))
        if i == 3: a.I("s_add_u32 s42, s42, 0x8000")
    tl_dump(a, 13)
    a.I("s_endpgm")
    a.L("DN_OS")
    a.extend(poll(43, 16 - NPA, 28, 29, sleep=2))
    a.I("s_branch DN_OC")
    for k in spins:
        if k + 1 >= NST: continue
        if any("@TSP" in x for x in bodies[k]):
            a.L(f"DN_TS{k}")
            a.I("s_sleep 4", "ds_read_b32 v25, v26", "s_waitcnt lgkmcnt(0)", f"v_add_u32 v25, {TH}, v25", "v_cmp_gt_u32 vcc, s47, v25",
                f"s_cbranch_vccnz DN_TS{k}", f"s_branch DN_TC{k}")
        if any("@FSP" in x for x in bodies[k]):
            a.L(f"DN_FS{k}")
            a.I("s_mov_b32 s17, 0x40000")
            a.L(f"DN_FL{k}")
            a.I(poll_load(18, 9, 24), "s_waitcnt vmcnt(0)", "v_cmp_ne_u32 vcc, s55, v24", "s_and_b64 vcc, vcc, s[28:29]",
                f"s_cbranch_scc0 DN_FC{k}", "s_sleep 2", "s_sub_u32 s17, s17, 1", "s_cmp_lg_u32 s17, 0", f"s_cbranch_scc1 DN_FL{k}", f"s_branch DN_FC{k}")
        a.L(f"DN_SP{k}")
        a.I("ds_read_b32 v23, v21", "s_waitcnt lgkmcnt(0)", "v_add_u32 v23, 1, v23", "v_cmp_gt_i32 vcc, s53, v23",
            f"s_cbranch_vccnz DN_SP{k}", f"s_branch DN_CT{k}")

NPA = 10
NA_END = 1 + 16 + 4
def wo(a):
    FW = [32, 128]; ACC = 64; OA = 160; D = 12; NP = NPA; SW = 99
    a.I(f"s_load_dwordx2 s[8:9], s[0:1], {KA_WO}",
        "s_and_b32 s21, s2, 1",
        "s_bfe_u32 s16, s2, 0x10001", "s_lshl_b32 s16, s16, 3", "s_bfe_u32 s17, s2, 0x30003", "s_add_u32 s22, s16, s17",
        "s_bfe_u32 s16, s2, 0x10002", "s_lshl_b32 s16, s16, 2", "s_bfe_u32 s17, s2, 0x20006", "s_add_u32 s23, s16, s17",
        "v_lshrrev_b32 v2, 4, v1", "s_lshl_b32 s16, s20, 3", "v_add_u32 v4, s16, v2", "v_lshlrev_b32 v4, 11, v4",
        "v_bfe_u32 v5, v1, 1, 3", "v_lshlrev_b32 v6, 1, v2", "v_xor_b32 v6, v6, v5", "v_mov_b32 v7, v6",
        "v_and_b32 v2, 1, v1", "v_lshl_add_u32 v4, v2, 4, v4", "s_lshl_b32 s16, s23, 8", "v_add_u32 v4, s16, v4",
        f"v_add_u32 v5, {4*2048-1024}, v4", "v_lshl_add_u32 v4, v6, 5, v4", "v_lshl_add_u32 v5, v7, 5, v5",
        "s_lshl_b32 s48, s21, 20", "s_lshl_b32 s46, s20, 11", f"s_add_u32 s46, s46, {LKV}",
        "s_lshl_b32 s16, s22, 2", "s_add_u32 s16, s16, s20", "s_lshl_b32 s44, s16, 16", "s_lshl_b32 s16, s21, 14", "s_add_u32 s44, s44, s16",
        f"s_add_u32 s44, s44, {WS_O}",
        "v_bfe_u32 v2, v1, 4, 1", "v_lshlrev_b32 v10, 15, v2", "v_lshrrev_b32 v2, 5, v1", "v_lshl_add_u32 v10, v2, 8, v10",
        "v_and_b32 v2, 15, v1", "v_lshl_add_u32 v10, v2, 4, v10")
    wave_flag(a, 60, FL_O)
    a.I("s_waitcnt vmcnt(0) lgkmcnt(0)")
    set_flag(a, 60)
    srd(a, 24, 8, 1024 * 1024 * 2)
    RT = int(OPT.get("rt", 0))
    a.I("s_and_b32 s16, s23, 3", f"s_mul_i32 s50, s16, {RT}", "s_mov_b32 s51, s50")
    def step(r): return [f"s_add_u32 s{r}, s{r}, 1", f"s_cmp_eq_u32 s{r}, {NP}", f"s_cselect_b32 s{r}, 0, s{r}"]
    def w_dma3(p):
        return [f"s_add_u32 m0, s46, {p * 8192}", "s_lshl_b32 s49, s50, 16", "s_add_u32 s49, s49, s48", "buffer_load_dwordx4 v4, s[24:27], s49 offen lds"] + \
               step(50) + ["buffer_load_dwordx4 v5, s[24:27], s49 offen offset:1024 lds"]
    def o_load(p):
        r = OA + (p % D) * 8
        return ["s_lshl_b32 s45, s51, 10", "s_add_u32 s45, s45, s44", f"buffer_load_dwordx4 {vr(r,4)}, v10, s[32:35], s45 offen"] + step(51) + \
               [f"buffer_load_dwordx4 {vr(r+4,4)}, v10, s[32:35], s45 offen offset:512"]
    sync_block(a, 23, 24, 25, 26)
    for p in range(NP): a.extend(w_dma3(p))
    a.I("v_lshrrev_b32 v2, 5, v1", "v_lshlrev_b32 v12, 10, v2", "v_bfe_u32 v9, v1, 2, 2", "v_lshl_add_u32 v12, v9, 8, v12",
        "v_lshlrev_b32 v9, 1, v9", "v_bfe_u32 v2, v1, 4, 1", "v_xor_b32 v9, v9, v2", "v_lshl_add_u32 v12, v9, 5, v12",
        "v_and_b32 v9, 3, v1", "v_lshl_add_u32 v12, v9, 3, v12", f"v_add_u32 v12, {LKV}, v12")
    for u in range(1, 4): a.I(f"v_xor_b32 v{12+u}, {64*u}, v12")
    for u in range(4): a.I(f"v_add_u32 v{16+u}, 0x10000, v{12+u}")
    a.I("v_and_b32 v2, 3, v1", "v_lshlrev_b32 v9, 8, v2", "v_bfe_u32 v2, v1, 2, 2", "v_lshl_add_u32 v9, v2, 5, v9",
        "v_bfe_u32 v2, v1, 4, 1", "v_lshl_add_u32 v9, v2, 2, v9",
        "s_lshr_b32 s16, s22, 1", "s_lshl_b32 s18, s16, 10", "s_and_b32 s16, s22, 1", "s_lshl_b32 s16, s16, 3", "s_add_u32 s18, s18, s16",
        "s_lshl_b32 s16, s21, 7", "s_add_u32 s18, s18, s16", f"s_add_u32 s18, s18, {WS_FL+FL_O}")
    a.I("s_cmp_lg_u32 s20, 0", "s_cbranch_scc1 WO_NPL")
    a.I(f"s_mov_b32 exec_lo, {((1 << NP) - 1) * 0x10001:#x}", "s_mov_b32 exec_hi, 0")
    a.extend(poll(18, 64, 9, sleep=int(OPT.get("os", 4))))
    a.I("s_mov_b64 exec, -1")
    a.I("WO_NPL:", "s_waitcnt vmcnt(0)")
    sync_block(a, 23, 24, 25, 26, sleep=True)
    ts(a, 5)
    L = Log()
    nxt = int(OPT.get("o0", 4))
    for p in range(nxt): a.extend(L.note(o_load(p), p))
    a.I(f"s_setprio {int(OPT.get('wp', 0))}")
    def reads(p):
        sl = p % 10
        return [f"ds_read_b64_tr_b16 {vr(FW[p&1]+(ks*4+nb)*4+2*rd,2)}, v{(12 if sl < 8 else 16)+nb} offset:{(sl&7)*8192+ks*4096+rd*2048}"
                for ks in range(2) for nb in range(4) for rd in range(2)]
    a.extend(reads(0))
    for p in range(NP):
        wc = L.cnt(p)
        a.I(f"s_waitcnt vmcnt({wc}) lgkmcnt(0)")
        if "wost" in EXP and p in (0, 4): ts(a, {0: 9, 4: 10}[p])
        if "wost" in EXP and p == 9: ts(a, 11)
        if "wost" in EXP and p == SW: ts(a, 6)
        extra = L.note([x for q in range(10, NP) for x in w_dma3(q)], 99) if p == SW else []
        for _ in range(3):
            if nxt < NP and nxt < p + D: extra += L.note(o_load(nxt), nxt); nxt += 1
        m = [mfma32(ACC + nb * 16, FW[p & 1] + (ks * 4 + nb) * 4, OA + (p % D) * 8 + 4 * ks, "0" if p + ks == 0 else None) for ks in range(2) for nb in range(4)]
        rd = reads(p + 1) if p + 1 < NP else []
        gs = groups_of(extra) if extra else []
        for i, x in enumerate(m):
            a.I(x); a.extend(rd[3 * i:3 * i + 3])
            a.extend([y for g in gs[(len(gs) * i) // 8:(len(gs) * (i + 1)) // 8] for y in g])
    a.I("s_setprio 3")
    sync_block(a, 23, 24, 25, 26)
    a.I("s_lshl_b32 s16, s20, 14", f"s_add_u32 s16, s16, {LKV}", "v_bfe_u32 v2, v1, 4, 1", "v_lshlrev_b32 v9, 13, v2",
        "v_lshrrev_b32 v2, 5, v1", "v_lshl_add_u32 v9, v2, 8, v9", "v_and_b32 v2, 15, v1", "v_lshl_add_u32 v9, v2, 4, v9", "v_add_u32 v9, s16, v9")
    for nb in range(4):
        for j in range(4): a.I(f"ds_write_b128 v9, {vr(ACC+16*nb+4*j,4)} offset:{(2*nb+(j>>1))*1024+(j&1)*512}")
    a.I("ds_add_u32 v23, v25", "s_waitcnt lgkmcnt(0)")

def fused():
    a = Asm()
    ts(a, 0)
    a.I("s_cmp_ge_u32 s2, 256", "s_cbranch_scc1 F_END",
        f"s_load_dwordx8 s[4:11], s[0:1], {KA_X}", f"s_load_dwordx4 s[40:43], s[0:1], {KA_WG}",
        f"s_load_dwordx4 s[12:15], s[0:1], {KA_DBG}", "s_memrealtime s[48:49]",
        "v_lshrrev_b32 v2, 6, v0", "v_and_b32 v1, 63, v0", "v_readfirstlane_b32 s20, v2", "v_lshlrev_b32 v3, 4, v1",
        "s_lshr_b32 s21, s2, 4", "s_lshl_b32 s21, s21, 3", "s_and_b32 s16, s2, 7", "s_add_u32 s45, s21, s16", "s_lshl_b32 s23, s45, 15",
        "s_mov_b32 s54, s20", "s_lshl_b32 s16, s20, 12", "s_add_u32 s19, s23, s16", "s_waitcnt lgkmcnt(0)")
    srd(a, 32, 14, WS_SIZE); srd(a, 56, 12, 256)
    a.I("s_or_b32 s16, s2, s20", "s_cmp_lg_u32 s16, 0", "s_cbranch_scc1 F_NT",
        "s_or_b32 s16, s48, 1", "v_mov_b32 v2, s16", "v_mov_b32 v8, 0", "s_mov_b64 exec, 1",
        "buffer_store_dword v2, v8, s[56:59], 0 offen sc1", "s_mov_b64 exec, -1")
    a.L("F_NT")
    jit(a, 0)
    phase0(a)
    jit(a, 1)
    ts(a, 8)
    if "p0st" in EXP:
        tl_dump(a, 13); a.I("s_endpgm")
    g1(a)
    a.I("s_and_b32 s20, s54, 3", "s_cmp_ge_u32 s54, 4", "s_cbranch_scc1 F_B")
    jit(a, 2)
    attention(a)
    jit(a, 3)
    wo(a)
    tl_dump(a, 13)
    a.I("s_endpgm")
    if "ablock" not in EXP:
        for tag in ("0", "7", "7F"):
            a.L(f"ATT_SP{tag}")
            a.I("ds_read_b32 v15, v14", "s_waitcnt lgkmcnt(0)", "v_cmp_gt_u32 vcc, s53, v15", f"s_cbranch_vccnz ATT_SP{tag}", f"s_branch ATT_CT{tag}")
    a.L("F_B")
    jit(a, 4)
    down(a)
    a.L("F_END")
    a.I("s_endpgm")
    return a, dict(grid=256, block=512, lds=163840, vgpr=256)

if __name__ == "__main__":
    path = sys.argv[1] if len(sys.argv) > 1 else "cdna_kernels/" + NAME + ".s"
    opts = dict(o.split("=") for o in sys.argv[2:])
    NPA = int(opts.get("npa", 8))
    OPT = opts; EXP = opts.get("exp", ""); TL = bool(int(opts.get("tl", 0)))
    G.VERB = bool(int(opts.get("verb", 0)))
    SC1 = opts.get("sm", "+sc1").replace("+", " ")
    G.build([(NAME if int(opts.get("single", 0)) else "fused8", fused())], path)
```

```python
import sys
from asmlib import *
import gen as G
from gen import (NAME, KA_X, KA_WQ, KA_WK, KA_WV, KA_WO, KA_WG, KA_WU, KA_WD, KA_OUT, KA_DBG, KA_WS,
                 WS_XN, WS_KV, WS_O, WS_H, WS_P, WS_SIZE, f32, vr, srd, mfma32, mfma16, QSCALE, mix2, front_pattern)
WS_FL = 0x0480000
FL_KV, FL_X, FL_H, FL_O, FL_P = 0, 4096, 12288, 20480, 24576
WS_TL = 0x3F10000
LKV = 65536
LQ = 131072
LC = 147456
HP = 224
TL = False; EXP = ""; OPT = {}
SC1 = " sc1"

def ts(a, i):
    if TL: a.I(f"s_mem{'' if 'cyc' in EXP else 'real'}time s[{62+2*i}:{63+2*i}]")
def tl_dump(a, n):
    if not TL: return
    a.I("s_waitcnt vmcnt(0) lgkmcnt(0)")
    ts(a, 7)
    if "hd" in EXP.split("_"):
        a.I("s_waitcnt lgkmcnt(0)", "s_and_b32 s90, s54, 3", "s_cmp_lg_u32 s90, 0", "s_cbranch_scc1 F_END", "s_sleep 127", "s_sleep 127", "s_sleep 127",
            "v_mov_b32 v1, 0", "s_mov_b64 exec, 1", "s_not_b32 s90, s62", "v_mov_b32 v2, s90",
            "buffer_atomic_umax v2, v1, s[56:59], 0 offen offset:4", "s_lshr_b32 s90, s54, 2", "s_mul_i32 s90, s90, 0")
        lab = f"HD{len(a.items)}"
        for j, i in enumerate((0, 8, 11, 12, 1, 2, 3, 4, 5, 7)):
            if j == 6: a.I("s_cmp_ge_u32 s54, 4", f"s_cbranch_scc1 {lab}")
            if j in (2, 3): a.I("s_cmp_ge_u32 s54, 4", f"s_cselect_b32 s{62+2*i}, 0, s{62+2*i}")
            a.I(f"v_mov_b32 v2, s{62+2*i}", f"buffer_atomic_umax v2, v1, s[56:59], 0 offen offset:{8+4*j}")
        a.I("s_endpgm")
        a.L(lab)
        for j, i in enumerate((3, 4, 7)):
            a.I(f"v_mov_b32 v2, s{62+2*i}", f"buffer_atomic_umax v2, v1, s[56:59], 0 offen offset:{48+4*j}")
        return
    a.I("s_waitcnt lgkmcnt(0)", "s_lshl_b32 s90, s2, 3", "s_add_u32 s90, s90, s54", "s_lshl_b32 s90, s90, 6",
        f"s_add_u32 s90, s90, {WS_TL}", "v_mov_b32 v1, 0", "s_mov_b64 exec, 1")
    for i in range(n):
        a.I(f"v_mov_b32 v2, s{62+2*i}", f"buffer_store_dword v2, v1, s[32:35], s90 offen offset:{4*i}")

_n = [0]
def jit(a, k):
    J = int(OPT.get("jit", 0))
    if not J: return
    _n[0] += 1; lab = f"JIT{_n[0]}"
    a.I(f"s_mul_i32 s93, s2, {0x9e37 + 2 * k + 64 * J}", "s_mul_i32 s94, s54, 0x1b5", "s_add_u32 s93, s93, s94", "s_bfe_u32 s93, s93, 0x30004", lab + ":",
        "s_cmp_eq_u32 s93, 0", f"s_cbranch_scc1 {lab}_D", f"s_sleep {8 * J}", "s_sub_u32 s93, s93, 1", f"s_branch {lab}", lab + "_D:")
def lanes(n): return [f"s_mov_b32 exec_lo, {((1 << n) - 1) & 0xffffffff:#x}", f"s_mov_b32 exec_hi, {((1 << n) - 1) >> 32:#x}"] if n < 64 else []
def poll_load(soff, voff, dst, wide=False):
    return f"buffer_load_dword{'x4' if wide else ''} {vr(dst, 4 if wide else 1)}, v{voff}, s[32:35], s{soff} offen sc1"
def poll_test(dst, wide):
    if wide:
        return [f"v_xor_b32 v{dst+i}, s55, v{dst+i}" for i in range(4)] + \
               [f"v_or3_b32 v{dst}, v{dst}, v{dst+1}, v{dst+2}", f"v_or_b32 v{dst}, v{dst}, v{dst+3}", f"v_cmp_ne_u32 vcc, 0, v{dst}"]
    return [f"v_cmp_ne_u32 vcc, s55, v{dst}"]
def poll(soff, n, voff, dst=2, wide=False, preloaded=None, sleep=2):
    _n[0] += 1; lab = f"POLL{_n[0]}"
    o = lanes(n)
    if preloaded is not None:
        o += [f"s_waitcnt vmcnt({preloaded})"] + poll_test(dst, wide) + [f"s_cbranch_vccz {lab}_D"]
    o += ["s_mov_b32 s17, 0x40000", lab + ":", poll_load(soff, voff, dst, wide), "s_waitcnt vmcnt(0)"] + poll_test(dst, wide)
    o += [f"s_cbranch_vccz {lab}_D", f"s_sleep {sleep}", "s_sub_u32 s17, s17, 1", "s_cmp_lg_u32 s17, 0", f"s_cbranch_scc1 {lab}", lab + "_D:"]
    if n < 64: o += ["s_mov_b64 exec, -1"]
    return o
def set_flag(a, soff):
    a.I("v_mov_b32 v2, s55", "v_mov_b32 v8, 0", "s_mov_b64 exec, 1",
        f"buffer_store_dword v2, v8, s[32:35], s{soff} offen sc1", "s_mov_b64 exec, -1")
def wave_flag(a, reg, base):
    a.I(f"s_lshl_b32 s{reg}, s2, 3", f"s_add_u32 s{reg}, s{reg}, s54", f"s_lshl_b32 s{reg}, s{reg}, 2", f"s_add_u32 s{reg}, s{reg}, {WS_FL+base}")
def sync_setup(a, base, own, chk, one):
    a.I("s_lshl_b32 s16, s20, 8", f"s_add_u32 s16, s16, {base}", f"v_lshl_add_u32 v{own}, v1, 2, s16",
        "v_and_b32 v2, 3, v1", f"v_lshlrev_b32 v{chk}, 8, v2", f"v_lshl_add_u32 v{chk}, v1, 2, v{chk}", f"v_add_u32 v{chk}, {base}, v{chk}",
        f"v_mov_b32 v{one}, 1", "s_mov_b32 s53, 0")
def sync_block(a, own, chk, one, tmp, sleep=False):
    _n[0] += 1; lab = f"SY{_n[0]}"
    a.I(f"ds_add_u32 v{own}, v{one}", "s_add_u32 s53, s53, 1")
    a.L(lab)
    if sleep: a.I("s_sleep 1")
    a.I(f"ds_read_b32 v{tmp}, v{chk}", "s_waitcnt lgkmcnt(0)", f"v_cmp_gt_u32 vcc, s53, v{tmp}", f"s_cbranch_vccnz {lab}")
def xsel(a, dst):
    a.I("v_and_b32 v2, 15, v1", f"v_lshlrev_b32 v{dst}, 11, v2", "v_bfe_u32 v2, v1, 4, 1", f"v_lshl_add_u32 v{dst}, v2, 5, v{dst}",
        "v_lshrrev_b32 v2, 5, v1", f"v_lshl_add_u32 v{dst}, v2, 4, v{dst}")
def is_vm(x): return x.startswith("buffer") or x.startswith("global")
def groups_of(dm):
    gs = []; cur = []
    for x in dm:
        cur.append(x)
        if is_vm(x): gs.append(cur); cur = []
    gs[-1] += cur
    return gs
def mixmem(rd, dm, dma_first=True):
    if not rd or not dm: return rd + dm
    gs = groups_of(dm)
    pre = [x for x in rd if x.startswith("v_")]; ds = [x for x in rd if x.startswith("ds_")]; post = [x for x in rd if x.startswith("s_")]
    o = list(pre); n = len(gs); per = len(ds) // n
    for g in range(n):
        part = ds[g * per:(g + 1) * per if g < n - 1 else len(ds)]
        o += (gs[g] + part) if dma_first else (part + gs[g])
    return o + post
class Log:
    def __init__(self): self.l = []
    def note(self, instrs, st): self.l += [st] * sum(map(is_vm, instrs)); return instrs
    def cnt(self, st):
        last = max([i for i, s_ in enumerate(self.l) if s_ is not None and s_ <= st], default=-1)
        return len(self.l) - 1 - last

WA0, WA1, WST = 116, 118, 120
def w_dma(slotreg):
    return [f"s_add_u32 m0, s{slotreg}, s46", "s_nop 0",
            f"global_load_lds_dwordx4 {vr(WA0,2)}, off" + OPT.get("wm", "").replace("+", " "), f"global_load_lds_dwordx4 {vr(WA1,2)}, off offset:1024" + OPT.get("wm", "").replace("+", " "),
            f"v_lshl_add_u64 {vr(WA0,2)}, {vr(WST,2)}, 0, {vr(WA0,2)}", f"v_lshl_add_u64 {vr(WA1,2)}, {vr(WST,2)}, 0, {vr(WA1,2)}"]

def tag_check(a, x):
    a.I("s_mov_b32 s17, 0x40000")
    a.L("P0_TAG" + x)
    a.I("s_cmp_eq_u32 s55, 0", "s_cbranch_scc1 P0_TAGLD" + x,
        "s_sub_u32 s16, s48, s55", "s_add_u32 s16, s16, 3000", "s_cmp_lt_u32 s16, 6000", "s_cbranch_scc1 P0_TAGOK" + x,
        "s_cmp_lt_u32 s17, 0x3f800", "s_cbranch_scc1 P0_TAGOK" + x)
    a.L("P0_TAGLD" + x)
    a.I("buffer_load_dword v6, v7, s[56:59], 0 offen sc1", "s_waitcnt vmcnt(0)", "v_readfirstlane_b32 s55, v6",
        "s_sub_u32 s17, s17, 1", "s_cmp_lg_u32 s17, 0", "s_cbranch_scc1 P0_TAG" + x)
    a.L("P0_TAGOK" + x)

STREAM = ["buffer_load_dword v122, v114, s[88:91], s100 offen", "buffer_load_dword v123, v114, s[92:95], s100 offen",
          "buffer_load_dword v124, v115, s[96:99], s101 offen"]
def phase0(a):
    LW, LX, LR = 49152, 114688, 147456
    srd(a, 24, 4, 2048 * 2048)
    for i in range(4): a.I(f"buffer_load_dwordx4 {vr(8+4*i,4)}, v3, s[24:27], s19 offen offset:{i*1024}")
    a.I("v_mov_b32 v7, 0", "buffer_load_dword v6, v7, s[56:59], 0 offen sc1")
    NH = int(OPT.get("nh", 5))
    a.I("s_cmp_eq_u32 s20, 0", "s_cselect_b64 s[12:13], s[40:41], s[42:43]", f"s_mov_b32 s16, {NH*896}",
        "s_cmp_eq_u32 s20, 2", "s_cselect_b64 s[12:13], s[6:7], s[12:13]", f"s_cselect_b32 s16, {NH*256}, s16")
    srd(a, 88, 12, 1024 * 1024 * 2)
    a.I("v_lshlrev_b32 v114, 7, v1", "s_sub_u32 s17, s16, 128", "v_min_u32 v114, s17, v114", "s_mul_i32 s92, s16, s2")
    a.I("s_cmp_lg_u32 s20, 3", "s_cbranch_scc1 P0_N7", "s_bitcmp1_b32 s2, 3", "s_cselect_b64 s[88:89], s[10:11], s[8:9]", "s_mov_b32 s90, 0x10000",
        "v_and_b32 v114, 0xf80, v114", "s_lshr_b32 s92, s2, 4", "s_lshl_b32 s92, s92, 12")
    a.L("P0_N7")
    a.I("s_bfe_u32 s22, s2, 0x10003", "s_cmp_eq_u32 s22, 0", "s_cselect_b64 s[12:13], s[8:9], s[10:11]")
    srd(a, 28, 12, 65536)
    a.I("s_lshl_b32 s17, s20, 13")
    a.I("s_and_b32 s16, s2, 7", "s_lshl_b32 s16, s16, 2", "s_bfe_u32 s21, s2, 0x20003", "s_add_u32 s21, s21, s16",
        "s_and_b32 s23, s20, 3", "s_cmp_lt_u32 s20, 4", "s_cselect_b64 s[12:13], s[42:43], s[40:41]", "s_cselect_b32 s18, 32, 0",
        "s_cselect_b32 s46, 8192, 0", "s_lshl_b32 s16, s23, 11", "s_add_u32 s46, s46, s16", "s_add_u32 s46, s46, 16384",
        "v_lshrrev_b32 v2, 4, v1", "s_lshl_b32 s16, s23, 3", "v_add_u32 v4, s16, v2",
        "s_and_b32 s16, s23, 1", "s_lshl_b32 s16, s16, 2", "v_add_u32 v2, s16, v2", "v_bfe_u32 v5, v1, 1, 3", "v_xor_b32 v2, v2, v5",
        "v_cmp_eq_u32 vcc, 7, v2", "v_mov_b32 v5, 7168", "v_mov_b32 v112, 2048", f"v_cndmask_b32 v{WST}, v5, v112, vcc",
        f"v_mul_lo_u32 v4, v4, v{WST}",
        "s_mul_i32 s16, s21, 224", "v_lshl_add_u32 v5, v2, 5, s16", "s_lshl_b32 s16, s21, 6", "s_add_u32 s16, s16, s18",
        "v_mov_b32 v112, s16", "v_cndmask_b32 v5, v5, v112, vcc", "v_add_u32 v4, v4, v5",
        "v_and_b32 v2, 1, v1", "v_lshl_add_u32 v4, v2, 4, v4",
        "v_mov_b32 v5, s12", "v_mov_b32 v112, s6", f"v_cndmask_b32 v{WA0}, v5, v112, vcc",
        "v_mov_b32 v5, s13", "v_mov_b32 v112, s7", f"v_cndmask_b32 v{WA0+1}, v5, v112, vcc",
        "v_mov_b32 v5, 0", f"v_lshl_add_u64 {vr(WA0,2)}, v[4:5], 0, {vr(WA0,2)}",
        f"v_lshlrev_b32 v4, 2, v{WST}", "v_add_u32 v4, -1024, v4" if False else "v_subrev_u32 v4, 1024, v4",
        f"v_lshl_add_u64 {vr(WA1,2)}, v[4:5], 0, {vr(WA0,2)}",
        f"v_lshlrev_b32 v{WST}, 5, v{WST}", f"v_mov_b32 v{WST+1}, 0", "s_mov_b32 s47, 0")
    srd(a, 24, 12, 1024 * 3584 * 2)
    a.I("s_mov_b32 s21, s45", "s_lshl_b32 s23, s21, 15", "s_mov_b32 s36, 0xffff0000",
        "s_waitcnt vmcnt(1)", "s_cmp_ge_u32 s20, 4", "s_cbranch_scc1 P0_NS", "buffer_load_dword v122, v114, s[88:91], s92 offen", "P0_NS:")
    ts(a, 9)
    for r in range(2):
        for d in range(8):
            src = 8 + 8 * r + d
            a.I(f"v_lshlrev_b32 v{32+16*r+2*d}, 16, v{src}", f"v_and_b32 v{33+16*r+2*d}, s36, v{src}")
    def tree2(bases, sq):
        T_ = [(24 + i, bases[i], 64 + 8 * i) for i in range(2)]
        for dst, base, t in T_:
            for i in range(8):
                a.I(f"v_mul_f32 v{t+i}, v{base+2*i}, v{base+2*i}" if sq else f"v_add_f32 v{t+i}, v{base+2*i}, v{base+2*i+1}")
        if sq:
            for dst, base, t in T_:
                for i in range(8): a.I(f"v_fmac_f32 v{t+i}, v{base+2*i+1}, v{base+2*i+1}")
        for s_ in (4, 2):
            for dst, base, t in T_:
                for i in range(s_): a.I(f"v_add_f32 v{t+i}, v{t+i}, v{t+i+s_}")
        for dst, base, t in T_: a.I(f"v_add_f32 v{dst}, v{t}, v{t+1}")
    def wavered(rs, ss):
        for mod in ("row_shr:1 row_mask:0xf bank_mask:0xf bound_ctrl:0", "row_shr:2 row_mask:0xf bank_mask:0xf bound_ctrl:0",
                    "row_shr:4 row_mask:0xf bank_mask:0xf bound_ctrl:0", "row_shr:8 row_mask:0xf bank_mask:0xf bound_ctrl:0",
                    "row_bcast:15 row_mask:0xa bank_mask:0xf", "row_bcast:31 row_mask:0xc bank_mask:0xf"):
            for r in rs: a.I(f"v_add_f32_dpp v{r}, v{r}, v{r} {mod}")
        for r, s_ in zip(rs, ss): a.I(f"v_readlane_b32 s{s_}, v{r}, 63")
    if "p0st" in EXP: ts(a, 1)
    tree2((32, 48), False)
    wavered((24, 25), (40, 41))
    if "p0st" in EXP: ts(a, 2)
    a.I(f"s_mov_b32 s37, {f32(1.0/1024)}")
    a.I("v_mov_b32 v26, s40", "v_mov_b32 v27, s41", "v_mul_f32 v26, s37, v26", "v_mul_f32 v27, s37, v27")
    for r in range(2):
        for i in range(16): a.I(f"v_sub_f32 v{80+16*r+i}, v{32+16*r+i}, v{26+r}")
    tree2((80, 96), True)
    wavered((24, 25), (42, 43))
    a.I("v_mov_b32 v28, s42", "v_mov_b32 v29, s43", "v_mul_f32 v28, s37, v28", "v_mul_f32 v29, s37, v29")
    def rnd(*rs):
        for r in rs: a.I(f"v_cvt_pk_bf16_f32 v{r}, v{r}, v{r}")
        for r in rs: a.I(f"v_lshlrev_b32 v{r}, 16, v{r}")
    a.I(f"s_mov_b32 s38, {f32(1e-5)}")
    rnd(28, 29, 26, 27)
    a.I("v_add_f32 v28, s38, v28", "v_add_f32 v29, s38, v29"); rnd(28, 29)
    a.I("v_sqrt_f32 v28, v28", "v_sqrt_f32 v29, v29"); rnd(28, 29)
    a.I("v_rcp_f32 v28, v28", "v_rcp_f32 v29, v29")
    if "p0st" in EXP: ts(a, 3)
    P_ = [(r, d, 32 + 16 * r + 2 * d) for r in range(2) for d in range(8)]
    if "ln1" in EXP:
        a.I("v_mul_f32 v26, v26, v28", "v_mul_f32 v27, v27, v29")
        for r, d, b in P_: a.I(f"v_fma_f32 v{b}, v{b}, v{28+r}, -v{26+r}", f"v_fma_f32 v{b+1}, v{b+1}, v{28+r}, -v{26+r}")
    else:
        for r, d, b in P_: a.I(f"v_sub_f32 v{b}, v{b}, v{26+r}", f"v_sub_f32 v{b+1}, v{b+1}, v{26+r}")
        for r, d, b in P_: a.I(f"v_cvt_pk_bf16_f32 v{80+8*r+d}, v{b}, v{b+1}")
        for r, d, b in P_: a.I(f"v_lshlrev_b32 v{b}, 16, v{80+8*r+d}", f"v_and_b32 v{b+1}, s36, v{80+8*r+d}")
        for r, d, b in P_: a.I(f"v_mul_f32 v{b}, v{b}, v{28+r}", f"v_mul_f32 v{b+1}, v{b+1}, v{28+r}")
    for r, d, b in P_: a.I(f"v_cvt_pk_bf16_f32 v{8+8*r+d}, v{b}, v{b+1}")
    if "p0st" in EXP: ts(a, 4)
    a.I("s_lshl_b32 s16, s20, 1", "v_and_b32 v2, 15, v1", "v_xor_b32 v2, s16, v2", "v_lshlrev_b32 v4, 8, v1", "v_lshl_add_u32 v4, v2, 4, v4",
        f"v_add_u32 v4, {LX}, v4", "v_xor_b32 v25, 16, v4")
    for r in range(2):
        for p in range(2): a.I(f"ds_write_b128 v{25 if r else 4}, {vr(8+8*r+4*p,4)} offset:{p*16384}")
    a.I("v_lshrrev_b32 v5, 4, v1", "v_lshlrev_b32 v2, 4, v5", "v_xor_b32 v26, v2, v3",
        "s_lshl_b32 s16, s20, 12", f"s_add_u32 s16, s16, {LX}", "v_add_u32 v30, s16, v26",
        "v_xor_b32 v27, 64, v30", "v_xor_b32 v28, 0x80, v30", "v_xor_b32 v29, 0xc0, v30",
        "v_lshlrev_b32 v31, 9, v5", "v_bfe_u32 v2, v1, 2, 2", "v_lshl_add_u32 v31, v2, 6, v31",
        "v_and_b32 v2, 3, v1", "v_lshl_add_u32 v31, v2, 3, v31", f"s_add_u32 s16, s17, {LW}", "v_add_u32 v31, s16, v31",
        "s_lshl_b32 s16, s22, 14", "s_and_b32 s18, s20, 3", "s_lshl_b32 s18, s18, 12", "s_add_u32 s16, s16, s18",
        "s_add_u32 s39, s23, s16", f"s_add_u32 s16, s16, {LX}", "v_add_u32 v24, s16, v26",
        "v_xor_b32 v25, 64, v24", "v_xor_b32 v4, 0x80, v24", "v_xor_b32 v26, 0xc0, v24",
        "s_cmp_ge_u32 s20, 4", "s_cbranch_scc1 P0_B")
    a.I("s_lshl_b32 s18, s20, 14")
    for g in range(4):
        a.I(f"s_add_u32 m0, s18, {LW+g*4096}", f"s_add_u32 s16, s18, {g*4096}")
        for i in range(4): a.I(f"buffer_load_dwordx4 v3, s[28:31], s16 offen offset:{i*1024} lds")
    a.extend(w_dma(47))
    a.I("s_waitcnt lgkmcnt(0)", "s_barrier", "s_waitcnt vmcnt(2)", "v_readfirstlane_b32 s55, v6")
    tag_check(a, "A")
    a.I("s_branch P0_C")
    a.L("P0_B")
    a.I("s_waitcnt lgkmcnt(0)", "s_barrier")
    ts(a, 10)
    for i, r in enumerate((24, 25, 4, 26)): a.I(f"ds_read_b128 {vr(8+4*i,4)}, v{r} offset:{i*1024}")
    for i in range(4): a.I(f"s_waitcnt lgkmcnt({3-i})", f"buffer_store_dwordx4 {vr(8+4*i,4)}, v3, s[32:35], s39 offen offset:{i*1024} sc1")
    a.extend(w_dma(47))
    a.I("s_waitcnt vmcnt(6)", "v_readfirstlane_b32 s55, v6")
    tag_check(a, "B")
    wave_flag(a, 18, FL_X)
    a.I("s_waitcnt vmcnt(2)")
    set_flag(a, 18)
    a.L("P0_C")
    a.I("s_barrier")
    for j in range(4):
        a.I(f"ds_read_b128 {vr(32+4*j,4)}, v{(30, 27, 28, 29)[j]} offset:{j*1024}")
        for d in range(2):
            for rd in range(2):
                a.I(f"ds_read_b64_tr_b16 {vr(64+8*j+4*d+2*rd,2)}, v31 offset:{j*2048+rd*256+d*32}")
    a.I("s_waitcnt lgkmcnt(0)", "s_cmp_eq_u32 s22, 0", "s_cbranch_scc0 P0_V")
    for j in range(4):
        for d in range(2): a.I(mfma16(96 + 4 * d, 64 + 8 * j + 4 * d, 32 + 4 * j, "0" if j == 0 else None))
    a.I("s_branch P0_R")
    a.L("P0_V")
    for j in range(4):
        for d in range(2): a.I(mfma16(96 + 4 * d, 32 + 4 * j, 64 + 8 * j + 4 * d, "0" if j == 0 else None))
    a.L("P0_R")
    a.I("s_lshl_b32 s16, s20, 11", f"s_add_u32 s16, s16, {LR}", "v_add_u32 v4, s16, v3")
    for d in range(2): a.I(f"ds_write_b128 v4, {vr(96+4*d,4)} offset:{d*1024}")
    a.I("s_waitcnt lgkmcnt(0)", "s_barrier")
    a.I("s_cmp_lg_u32 s20, 0", "s_cbranch_scc1 P0_END")
    a.I(f"v_add_u32 v4, {LR}, v3")
    for w in range(8):
        a.I(f"ds_read_b128 {vr(32+8*w,4)}, v4 offset:{w*2048}", f"ds_read_b128 {vr(36+8*w,4)}, v4 offset:{w*2048+1024}")
    a.I("s_waitcnt lgkmcnt(0)")
    for s_ in (4, 2, 1):
        for w in range(s_):
            for i in range(8): a.I(f"v_add_f32 v{32+8*w+i}, v{32+8*w+i}, v{32+8*(w+s_)+i}")
    for d in range(4): a.I(f"v_cvt_pk_bf16_f32 v{8+d}, v{32+2*d}, v{33+2*d}")
    a.I("s_lshr_b32 s16, s21, 1", "s_lshl_b32 s19, s16, 12", f"s_add_u32 s19, s19, {WS_KV}",
        "s_and_b32 s16, s21, 1", "s_lshl_b32 s16, s16, 10", "s_add_u32 s19, s19, s16",
        "s_cmp_eq_u32 s22, 0", "s_cbranch_scc0 P0_SV",
        "buffer_store_dwordx4 v[8:11], v3, s[32:35], s19 offen sc1", "s_branch P0_KF")
    a.L("P0_SV")
    a.I("v_and_b32 v2, 1, v5", "v_lshlrev_b32 v4, 9, v2", "v_and_b32 v2, 15, v1", "v_lshl_add_u32 v4, v2, 4, v4",
        "v_lshrrev_b32 v2, 1, v5", "v_lshl_add_u32 v4, v2, 3, v4",
        "buffer_store_dwordx2 v[8:9], v4, s[32:35], s19 offen offset:2048 sc1",
        "buffer_store_dwordx2 v[10:11], v4, s[32:35], s19 offen offset:2304 sc1")
    a.L("P0_KF")
    if "kvearly" in EXP:
        a.I("s_lshl_b32 s18, s2, 2", f"s_add_u32 s18, s18, {WS_FL+FL_KV}", "s_waitcnt vmcnt(0)")
        set_flag(a, 18)
    a.L("P0_END")

def kv_groups():
    gs = []
    for g in range(2):
        for i in range(4):
            o = [f"s_add_u32 m0, s25, {g*4096}", f"s_add_u32 s26, s24, {g*4096}"] if i == 0 else []
            gs.append(o + [f"buffer_load_dwordx4 v3, s[36:39], s26 offen offset:{i*1024} lds"])
    gs[-1] += ["s_add_u32 s24, s24, 32768", "s_xor_b32 s25, s25, 32768"]
    return gs

def emit_loop(a, label, bodies):
    best = (0, 1)
    i = 0
    while i < len(bodies):
        j = i
        while j < len(bodies) and bodies[j] == bodies[i]: j += 1
        if j - i > best[1] - best[0]: best = (i, j)
        i = j
    for k in range(best[0]): a.extend(bodies[k])
    a.I(f"s_mov_b32 s51, {best[1]-best[0]}")
    a.L(label)
    a.extend(bodies[best[0]])
    a.I("s_sub_u32 s51, s51, 1", "s_cmp_lg_u32 s51, 0", f"s_cbranch_scc1 {label}")
    for k in range(best[1], len(bodies)): a.extend(bodies[k])

def xn_poll(a):
    a.I("s_and_b32 s18, s2, 0xe0", "s_lshr_b32 s16, s20, 2", "s_lshl_b32 s16, s16, 4", "s_add_u32 s18, s18, s16",
        "s_and_b32 s16, s20, 3", "s_lshl_b32 s16, s16, 1", "s_add_u32 s18, s18, s16", "s_lshl_b32 s18, s18, 5", f"s_add_u32 s18, s18, {WS_FL+FL_X+16}",
        "v_and_b32 v2, 3, v1", "v_lshlrev_b32 v8, 2, v2", "v_bfe_u32 v2, v1, 2, 1", "v_lshl_add_u32 v8, v2, 5, v8",
        "v_lshrrev_b32 v2, 3, v1", "v_lshl_add_u32 v8, v2, 8, v8")
    if int(OPT.get("xs", 0)):
        a.extend(poll(18, 16, 8, 17, sleep=int(OPT.get("xs"))))
        return
    a.extend(lanes(16) + ["s_mov_b32 s17, 0x20000", poll_load(18, 8, 17), "s_sleep 3", "G1_PP:", poll_load(18, 8, 18), "s_waitcnt vmcnt(1)",
             "v_cmp_ne_u32 vcc, s55, v17", "s_cbranch_vccz G1_PD", poll_load(18, 8, 17), "s_waitcnt vmcnt(1)",
             "v_cmp_ne_u32 vcc, s55, v18", "s_cbranch_vccz G1_PD", "s_sub_u32 s17, s17, 1", "s_cmp_lg_u32 s17, 0", "s_cbranch_scc1 G1_PP",
             "G1_PD:", "s_mov_b64 exec, -1"])

def g1(a):
    EA = "ea" in EXP.split("_")
    NST = 32; R = 5; SLOT = 32768
    ACC = 128; FA = 64; FW = 96
    def acc(h, u, t): return ACC + (t * 4 + h * 2 + u) * 4
    a.I("s_and_b32 s16, s2, 7", "s_lshl_b32 s16, s16, 2", "s_bfe_u32 s21, s2, 0x20003", "s_add_u32 s21, s21, s16",
        "s_lshr_b32 s22, s2, 5", "s_and_b32 s23, s20, 3", "v_add_u32 v10, 31744, v3",
        "s_lshl_b32 s16, s22, 4", "s_lshl_b32 s17, s20, 1", "s_add_u32 s16, s16, s17", "s_lshl_b32 s44, s16, 15",
        "s_lshl_b32 s45, s20, 11", "s_mov_b32 s47, 0", "s_mov_b32 s50, 0", f"s_mov_b32 s52, {SLOT}",
        *([f"s_mov_b32 s47, {SLOT}", "s_add_u32 s44, s44, 1024"] if EA else []))
    PD = int(OPT.get("pd", 5))
    RH = int(OPT.get("rh", 1)); PX = int(OPT.get("px", 0))
    if PD:
        a.I(f"s_load_dwordx2 s[4:5], s[0:1], {KA_WQ}", f"s_load_dwordx2 s[6:7], s[0:1], {KA_WD}", f"s_load_dwordx2 s[8:9], s[0:1], {KA_WO}",
            f"v_min_u32 v2, {7*RH-1}, v1", "v_lshlrev_b32 v14, 7, v2", f"s_mul_i32 s16, s2, {896*RH}", "v_add_u32 v14, s16, v14",
            f"s_mov_b32 s31, {32*7168*RH}", f"s_mov_b32 s30, {PD*32*7168}", "s_cmp_eq_u32 s23, 0", "s_cbranch_scc1 G1_T0",
            *([f"s_mov_b32 s30, {PX*32*7168}", "v_bfe_u32 v2, v1, 2, 2", "s_lshl_b32 s16, s22, 2", "v_add_u32 v2, s16, v2", "v_mul_u32_u24 v14, 7168, v2",
               "v_and_b32 v2, 3, v1", "v_min_u32 v2, 2, v2", "v_mul_u32_u24 v2, 104, v2", "s_mul_i32 s16, s21, 224", "v_add3_u32 v14, v14, v2, s16",
               "s_cmp_eq_u32 s23, 2", "s_cbranch_scc1 G1_T0"] if PX else []),
            "s_mov_b32 s30, 0x7f000000", "s_mov_b32 s31, 0", "s_cmp_ge_u32 s20, 4", "s_cbranch_scc1 G1_T0", "s_waitcnt lgkmcnt(0)",
            "s_cmp_eq_u32 s20, 1", "s_cbranch_scc0 G1_T2")
        srd(a, 24, 4, 1024 * 1024 * 2)
        a.I("v_and_b32 v2, 1, v1", "v_lshlrev_b32 v14, 7, v2", "s_lshl_b32 s16, s2, 8", "v_add_u32 v14, s16, v14",
            f"s_mov_b32 s31, {32*2048}", f"s_mov_b32 s30, {PD*32*2048}", "s_branch G1_T0")
        a.L("G1_T2")
        if "nolate" not in EXP:
            a.I("s_cmp_eq_u32 s20, 2", "s_cbranch_scc0 G1_T3")
            srd(a, 24, 6, 3584 * 1024 * 2)
            if "lwd" in EXP: a.I("v_min_u32 v2, 8, v1", "v_lshlrev_b32 v14, 7, v2", "s_mov_b32 s31, 1152", "s_mul_i32 s30, s2, 28672")
            a.I("s_branch G1_T0")
            a.L("G1_T3")
            srd(a, 24, 8, 1024 * 1024 * 2)
            a.I("v_min_u32 v2, 2, v1", "v_lshlrev_b32 v14, 7, v2", "s_mov_b32 s31, 384", "s_lshl_b32 s30, s2, 13")
        a.L("G1_T0")
    def touch(): return ["buffer_load_dword v16, v14, s[24:27], s30 offen" + OPT.get("tm", "").replace("+", " "), "s_add_u32 s30, s30, s31"] if PD else []
    def touch0(): return []
    if not EA: xn_poll(a)
    ts(a, 11)
    def adv(reg): return [f"s_add_u32 s{reg}, s{reg}, {SLOT}", f"s_cmp_eq_u32 s{reg}, {SLOT*R}", f"s_cselect_b32 s{reg}, 0, s{reg}"]
    def dma_act():
        return ["s_add_u32 m0, s47, s45", "s_nop 0", "buffer_load_dwordx4 v3, s[32:35], s44 offen lds",
                "buffer_load_dwordx4 v10, s[32:35], s44 offen offset:1024 lds", "s_add_u32 s44, s44, 1024"] + adv(47)
    def dma_w(): return w_dma(52) + adv(52)
    def rdaddr():
        return ["s_lshr_b32 s17, s20, 2", "s_lshl_b32 s16, s17, 13", "v_add_u32 v6, s16, v3",
                "s_and_b32 s19, s21, 1", "s_lshl_b32 s16, s23, 1", "s_add_u32 s40, s16, s19", "s_add_u32 s41, s40, 1",
                "s_mul_i32 s16, s19, 6", "s_sub_u32 s16, 6, s16", "s_cmp_eq_u32 s23, 3", "s_cselect_b32 s40, s16, s40", "s_cselect_b32 s41, 7, s41",
                "v_lshrrev_b32 v2, 4, v1", "v_lshlrev_b32 v7, 11, v2", "v_and_b32 v2, 1, v2", "v_lshlrev_b32 v12, 2, v2",
                "v_bfe_u32 v2, v1, 2, 2", "v_lshl_add_u32 v7, v2, 8, v7", "v_add_u32 v12, v12, v2",
                "v_and_b32 v2, 3, v1", "v_lshl_add_u32 v7, v2, 3, v7", "v_add_u32 v7, 16384, v7",
                "v_xor_b32 v2, s41, v12", "v_lshl_add_u32 v11, v2, 5, v7", "v_xor_b32 v2, s40, v12", "v_lshl_add_u32 v7, v2, 5, v7"]
    def reads():
        o = ["v_add_u32 v8, s50, v6", "v_add_u32 v9, s50, v7", "v_add_u32 v13, s50, v11"]
        for h in range(2):
            for u in range(2):
                for rd in range(2):
                    o.append(f"ds_read_b64_tr_b16 {vr(FW+(h*2+u)*4+2*rd,2)}, v{9 if u == 0 else 13} offset:{h*8192+rd*1024}")
        for t in range(8): o.append(f"ds_read_b128 {vr(FA+t*4,4)}, v8 offset:{t*1024}")
        return o + adv(50)
    def mm(first):
        return [mfma16(acc(h, u, t), FW + (h * 2 + u) * 4, FA + t * 4, "0" if first else None) for t in range(8) for h in range(2) for u in range(2)]
    a.I("s_cmp_ge_u32 s20, 4", "s_cbranch_scc1 G1_B")
    L = Log()
    NP0 = int(OPT.get("np0", 2))
    def proA(js): return [x for j in js for x in (L.note(dma_w(), j) if 0 < j < R - 1 else []) + (L.note(dma_act(), j) if j or not EA else [])]
    a.extend(proA(range(NP0)))
    def kv_flag():
        a.I("s_lshl_b32 s18, s2, 2", f"s_add_u32 s18, s18, {WS_FL+FL_KV}", "s_cmp_eq_u32 s20, 0", "s_cselect_b32 s18, s18, 0x7f000000")
        set_flag(a, 18); L.note(["buffer"], None)
    if not EA: kv_flag()
    a.extend(rdaddr())
    if EA: a.I("s_cmp_eq_u32 s20, 0", "s_cbranch_scc1 G1_W0")
    a.I(f"s_waitcnt vmcnt({L.cnt(0)})", "G1_W0:", "s_barrier")
    a.extend(mixmem(reads(), proA(range(NP0, R)), False))
    E0 = "noe0" not in EXP
    a.I("s_waitcnt lgkmcnt(0)" if E0 else f"s_waitcnt vmcnt({L.cnt(1)}) lgkmcnt(0)", "s_barrier")
    ts(a, 12)
    kv = kv_groups()
    def bodyA(k, first=False):
        o = mm(first)
        if first and E0: o += [f"s_waitcnt vmcnt({L.cnt(1)})", "s_barrier"]
        if first and EA:
            o += ["s_lshl_b32 s18, s2, 2", f"s_add_u32 s18, s18, {WS_FL+FL_KV}", "s_cmp_eq_u32 s20, 0", "s_cselect_b32 s18, s18, 0x7f000000",
                  "v_mov_b32 v17, s55", "v_mov_b32 v18, 0", "s_mov_b64 exec, 1"] + L.note(["buffer_store_dword v17, v18, s[32:35], s18 offen sc1"], None) + ["s_mov_b64 exec, -1"]
        dm = L.note([f"s_mov_b32 s18, {WS_FL+FL_KV}", poll_load(18, 3, 28, True)], None) if k == 27 else []
        dm += (L.note(dma_w(), k - 1 + R) if k - 1 + R < NST else []) + (L.note(dma_act() + touch(), k + R) if k + R < NST else [])
        if k + R < NST and PD: L.l[-1] = None
        if k == 28:
            o += poll(18, 64, 3, 28, True, preloaded=2)
            o += ["s_lshl_b32 s24, s20, 13", f"s_add_u32 s25, s24, {LKV}",
                  f"s_add_u32 s36, s32, {WS_KV}", "s_addc_u32 s37, s33, 0", "s_mov_b32 s38, 0x40000", "s_mov_b32 s39, 0x20000"]
            dm = L.note([x for g in kv for x in g], None)
        if k == 29: dm = L.note([x for g in kv for x in g], None)
        o += mixmem(reads() if k + 1 < NST else [], dm)
        if k + 1 < NST: o += [f"s_waitcnt vmcnt({L.cnt(k + 2)}) lgkmcnt(0)", "s_barrier"]
        return o
    emit_loop(a, "G1_A_LOOP", [bodyA(k, k == 0) for k in range(NST)])
    a.I("s_branch G1_EPI")
    a.L("G1_B")
    M = Log()
    def proB(js): return [x for j in js for x in (M.note(dma_w(), j) if j else []) + (M.note(dma_act(), j) if j or not EA else [])]
    a.extend(proB(range(min(NP0, R - 1))))
    a.extend(rdaddr())
    a.I(f"s_waitcnt vmcnt({M.cnt(0)})", "s_barrier")
    a.extend(proB(range(min(NP0, R - 1), R - 1)))
    a.I(*([] if E0 else [f"s_waitcnt vmcnt({M.cnt(1)})"]), "s_barrier")
    def bodyB(k, first=False):
        dm = M.note(dma_w() + dma_act(), k - 1 + R) + M.note(touch(), None) if k - 1 + R < NST else []
        o = mixmem(reads(), dm) + ([f"s_waitcnt vmcnt({M.cnt(1)})", "s_barrier"] if first and E0 else []) + ["s_waitcnt lgkmcnt(0)"] + mm(first)
        if k + 1 < NST: o += [f"s_waitcnt vmcnt({M.cnt(k + 2)})", "s_barrier"]
        return o
    emit_loop(a, "G1_B_LOOP", [bodyB(k, k == 0) for k in range(NST)])
    a.L("G1_EPI")
    jit(a, 6)
    ts(a, 1)
    a.I("s_lshl_b32 s16, s20, 8", f"s_add_u32 s16, s16, {LC}", "v_lshl_add_u32 v13, v1, 2, s16", "v_mov_b32 v12, 0", "ds_write_b32 v13, v12")
    wave_flag(a, 60, FL_H)
    a.I("s_lshl_b32 s16, s22, 4", "s_lshr_b32 s17, s20, 2", "s_lshl_b32 s17, s17, 3", "s_add_u32 s16, s16, s17", "s_mul_i32 s16, s16, 112",
        "s_mul_i32 s17, s21, 7", "s_add_u32 s17, s17, s40", "s_lshr_b32 s17, s17, 1", "s_add_u32 s16, s16, s17",
        "s_lshl_b32 s16, s16, 10", f"s_add_u32 s61, s16, {WS_H}", "s_cmp_lg_u32 s23, 3", "s_cbranch_scc1 G1_NQ")
    a.I(f"s_mov_b32 s18, {f32(QSCALE)}", "s_lshr_b32 s16, s20, 2", "s_lshl_b32 s16, s16, 13", f"s_add_u32 s16, s16, {LQ}",
        "v_add_u32 v9, s16, v3", "s_lshl_b32 s16, s19, 3", "s_add_u32 s61, s61, s16")
    for t in range(8):
        q0, q1 = acc(0, 1, t), acc(1, 1, t)
        for i in range(4): a.I(f"v_mul_f32 v{q0+i}, s18, v{q0+i}", f"v_mul_f32 v{q1+i}, s18, v{q1+i}")
        a.I(f"v_cvt_pk_bf16_f32 v{FA+4*t}, v{q0}, v{q0+1}", f"v_cvt_pk_bf16_f32 v{FA+4*t+1}, v{q0+2}, v{q0+3}",
            f"v_cvt_pk_bf16_f32 v{FA+4*t+2}, v{q1}, v{q1+1}", f"v_cvt_pk_bf16_f32 v{FA+4*t+3}, v{q1+2}, v{q1+3}",
            f"ds_write_b128 v9, {vr(FA+4*t,4)} offset:{t*1024}")
    a.L("G1_NQ")
    XE = "xlate" not in EXP
    if XE: a.I("s_cmp_lt_u32 s20, 4", "s_cbranch_scc1 G1_PK", "s_waitcnt lgkmcnt(0)", "s_barrier", "s_setprio 3", "G1_PK:")
    a.I("s_cmp_eq_u32 s23, 3", "s_cbranch_scc1 G1_EPQ")
    for t in reversed(range(8)):
        g, u = acc(0, 0, t), acc(1, 0, t)
        for i in range(8): a.I(f"v_max_f32 v{g+i}, 0, v{g+i}")
        for i in range(8): a.I(f"v_mul_f32 v{g+i}, v{g+i}, v{u+i}")
        for d in range(4): a.I(f"v_cvt_pk_bf16_f32 v{HP+4*t+d}, v{g+2*d}, v{g+2*d+1}")
    a.I("s_branch G1_X")
    a.L("G1_EPQ")
    for t in reversed(range(8)):
        g, u = acc(0, 0, t), acc(1, 0, t)
        for i in range(4): a.I(f"v_max_f32 v{g+i}, 0, v{g+i}")
        for i in range(4): a.I(f"v_mul_f32 v{g+i}, v{g+i}, v{u+i}")
        for d in range(2): a.I(f"v_cvt_pk_bf16_f32 v{HP+4*t+d}, v{g+2*d}, v{g+2*d+1}")
    a.L("G1_X")
    a.I("s_cmp_ge_u32 s20, 4", "s_cbranch_scc1 G1_X2", "s_lshl_b32 s16, s20, 11", "v_add_u32 v9, s16, v3")
    for t in range(8): a.I(f"ds_write_b128 v9, {vr(HP+4*t,4)} offset:{(t>>1)*8192+(t&1)*1024}")
    if XE: a.I("s_waitcnt lgkmcnt(0)", "s_barrier", "G1_X2:")
    else: a.I("G1_X2:", "s_waitcnt lgkmcnt(0)", "s_barrier")
    ts(a, 2)

def h_stores(a):
    _n[0] += 1; lab = f"HS{_n[0]}"
    a.I(f"s_sub_u32 s16, s61, {8*112*1024}", "s_cmp_eq_u32 s20, 3", f"s_cbranch_scc1 {lab}")
    for w, n in ((4, lab + "_D"), (2, None)):
        for t in range(8): a.I(f"buffer_store_dwordx{w} {vr(HP+4*t,w)}, v3, s[32:35], s61 offen{SC1}", f"s_add_u32 s61, s61, {112*1024}")
        a.I("s_waitcnt lgkmcnt(0)")
        for t in range(8): a.I(f"buffer_store_dwordx{w} {vr(192+4*t,w)}, v3, s[32:35], s16 offen{SC1}", f"s_add_u32 s16, s16, {112*1024}")
        if n: a.I(f"s_branch {n}"); a.L(lab)
    a.L(lab + "_D")

def attention(a):
    QR = [16, 24]; KB = [32, 48]; VB = [40, 56]; P = 64; SEL = 72; Lr = [76, 80]; S = [96, 112]; O = [128, 144]; C = [160, 176]
    a.I(f"s_add_u32 s36, s32, {WS_KV}", "s_addc_u32 s37, s33, 0", "s_mov_b32 s38, 0x40000", "s_mov_b32 s39, 0x20000")
    a.I("v_bfe_u32 v2, v1, 4, 1", "v_lshlrev_b32 v4, 10, v2", "v_lshrrev_b32 v2, 5, v1", "v_lshl_add_u32 v4, v2, 8, v4",
        "v_and_b32 v2, 15, v1", "v_lshl_add_u32 v4, v2, 4, v4",
        "s_lshl_b32 s16, s20, 12", f"s_add_u32 s16, s16, {LQ}", "v_add_u32 v5, s16, v4")
    for b in range(2):
        for ks in range(2): a.I(f"ds_read_b128 {vr(QR[b]+4*ks,4)}, v5 offset:{b*2048+ks*512}")
    a.I(f"v_add_u32 v6, {LKV}, v4", f"v_add_u32 v7, {LKV+2048}, v3")
    sync_setup(a, LC, 13, 14, 12)
    a.I("s_waitcnt vmcnt(8)")
    sync_block(a, 13, 14, 12, 15)
    def rdK(buf, off): return [f"ds_read_b128 {vr(KB[buf]+4*ks,4)}, v6 offset:{off+ks*512}" for ks in range(2)]
    def rdV(buf, off): return [f"ds_read_b128 {vr(VB[buf]+4*ks,4)}, v7 offset:{off+ks*1024}" for ks in range(2)]
    a.extend(rdK(0, 0) + rdV(0, 0))
    def rsum(b): return f"v_smfmac_f32_16x16x64_bf16 {vr(Lr[b],4)}, {vr(SEL,4)}, {vr(P,8)}, v84"
    a.I("v_and_b32 v2, 4, v1", "v_cmp_eq_u32 vcc, 0, v2", "v_mov_b32 v5, 0x3f803f80", "s_mov_b32 s28, 0", "v_and_b32 v2, 1, v1",
        f"v_cndmask_b32 v{SEL}, 0, v5, vcc", f"v_cndmask_b32 v{SEL+2}, v5, 0, vcc" if False else f"v_xor_b32 v{SEL+2}, v5, v{SEL}",
        f"v_mov_b32 v{SEL+1}, v{SEL}", f"v_mov_b32 v{SEL+3}, v{SEL+2}",
        "s_mov_b32 s16, 0xaaaaaaaa", "v_mul_lo_u32 v84, v2, s16", "v_or_b32 v84, 0x44444444, v84")
    a.I("s_waitcnt lgkmcnt(0)")
    ts(a, 3)
    for b in range(2):
        a.I(mfma32(S[b], KB[0], QR[b], "0"), mfma32(S[b], KB[0] + 4, QR[b] + 4))
    for b in range(2):
        for i in range(16): a.I(f"v_mov_b32 v{O[b]+i}, 0")
        for i in range(4): a.I(f"v_mov_b32 v{Lr[b]+i}, 0")
    for i in range(4): a.I(f"v_mov_b32 v{P+i}, 0", f"v_mov_b32 v{P+4+i}, 0", f"v_mov_b32 v{VB[1]+4+i}, 0")
    for b in range(2):
        s0 = S[b]; m = 8 + 2 * b
        a.I(f"v_max3_f32 v{m}, v{s0}, v{s0+1}, v{s0+2}")
        for i in range(3, 15, 2): a.I(f"v_max3_f32 v{m}, v{m}, v{s0+i}, v{s0+i+1}")
        a.I(f"v_max_f32 v{m}, v{m}, v{s0+15}", f"v_mov_b32 v{m+1}, v{m}")
    for b in range(2):
        m = 8 + 2 * b
        a.I(f"v_permlane32_swap_b32 v{m}, v{m+1}", f"v_max_f32 v{m}, v{m}, v{m+1}", f"v_sub_f32 v{C[b]}, 0, v{m}")
        for i in range(1, 16): a.I(f"v_mov_b32 v{C[b]+i}, v{C[b]}")
    a.I(mfma32(S[0], KB[0], QR[0], C[0]), mfma32(S[0], KB[0] + 4, QR[0] + 4))
    def tile(b, kbuf_next, vbuf, vprev, extra, dg):
        nb = 1 - b; s0 = S[b]
        ex = [f"v_exp_f32 v{s0+i}, v{s0+i}" for i in range(16)]
        cv = [f"v_cvt_pk_bf16_f32 v{P+d}, v{s0+2*d}, v{s0+2*d+1}" for d in range(8)]
        e = list(extra) + [None] * 4
        if "twow" not in EXP:
            o = [mfma32(S[nb], KB[kbuf_next], QR[nb], C[nb]), e[0]] + ex[0:2] + [e[1], ex[2]]
            o += [mfma32(O[nb], VB[vprev] + 4, P + 4), e[2]] + ex[3:6]
            o += [rsum(nb), e[3]] + ex[6:8]
            o += [mfma32(S[nb], KB[kbuf_next] + 4, QR[nb] + 4), cv[0], cv[1], ex[8], cv[2], cv[3], ex[9], ex[10]]
            o += [mfma32(O[b], VB[vbuf], P)] + ex[11:14]
        else:
            o = [mfma32(S[nb], KB[kbuf_next], QR[nb], C[nb]), e[0]] + ex[0:3]
            o += [mfma32(O[nb], VB[vprev] + 4, P + 4), e[1]] + ex[3:6]
            o += [rsum(nb)] + ex[6:8]
            o += [mfma32(S[nb], KB[kbuf_next] + 4, QR[nb] + 4), e[2], cv[0], cv[1], ex[8], cv[2], cv[3], ex[9], ex[10]]
            o += [mfma32(O[b], VB[vbuf], P), e[3]] + ex[11:14]
        o += (dg or []) + [ex[14], ex[15]] + cv[4:8]
        return [x for x in o if x]
    a.I(f"s_setprio {int(OPT.get('ap', 2))}", "s_nop 11")
    dg = kv_groups()
    ONEW = "twow" not in EXP
    def trip(first, sfx):
        def chk(tag):
            return ["v_cmp_gt_u32 vcc, s53, v15", "s_nop 0", f"s_cbranch_vccnz ATT_SP{tag}{sfx}", f"ATT_CT{tag}{sfx}:"]
        for kb in range(8):
            cur = kb & 1; nxt = 1 - cur
            arrive = ["ds_add_u32 v13, v12", "s_add_u32 s53, s53, 1"]
            if kb == 0 and not first: a.extend(chk(0))
            if kb == 6: a.I("s_waitcnt vmcnt(0)", *arrive)
            if kb == 7: a.extend(chk(7) + arrive)
            if kb == 7: a.I("v_xor_b32 v6, 0x8000, v6", "v_xor_b32 v7, 0x8000, v7")
            off = ((kb + 1) & 7) * 4096
            g0, g1 = (dg[2 * kb], dg[2 * kb + 1]) if kb < 4 and not first else (None, ["ds_read_b32 v15, v14"] if kb >= 6 else None)
            a.extend(tile(0, cur, cur, nxt, rdK(nxt, off) + rdV(nxt, off), g0))
            a.I("s_waitcnt lgkmcnt(0)" if ONEW else "s_waitcnt lgkmcnt(2)")
            a.extend(tile(1, nxt, cur, cur, [], g1))
            if kb == 7 and not first: a.I("s_add_u32 s28, s28, 1", "s_cmp_lg_u32 s28, 7")
            if not ONEW or kb >= 6: a.I("s_waitcnt lgkmcnt(0)")
    trip(True, "F")
    a.L("ATT_LOOP")
    jit(a, 8)
    trip(False, "")
    a.I("s_cbranch_scc1 ATT_LOOP")
    a.I(mfma32(O[1], VB[1] + 4, P + 4), rsum(1))
    ts(a, 4)
    for b in range(2): a.I(f"v_add_f32 v{Lr[b]}, v{Lr[b]}, v{Lr[b]+1}")
    a.I("s_setprio 3", f"s_mov_b32 s16, {f32(2.0**100)}")
    for b in range(2):
        a.I(f"v_max3_f32 v{8+b}, abs(v{O[b]}), abs(v{O[b]+1}), v{Lr[b]}", f"v_add_f32 v{10+b}, v{O[b]}, v{O[b]+1}")
    for i in range(2, 16, 2):
        for b in range(2):
            a.I(f"v_max3_f32 v{8+b}, v{8+b}, abs(v{O[b]+i}), abs(v{O[b]+i+1})", f"v_add3_u32 v2, v2, v2, v2" if False else f"v_add_f32 v{10+b}, v{10+b}, v{O[b]+i}",
                f"v_add_f32 v{86+b}, v{O[b]+i+1}, v{Lr[b]}" if i == 2 else f"v_add_f32 v{86+b}, v{86+b}, v{O[b]+i+1}")
    a.I("v_max_f32 v8, v8, v9", "v_add_f32 v10, v10, v11", "v_add_f32 v86, v86, v87", "v_add_f32 v9, v10, v86")
    a.I("v_cmp_nlt_f32 vcc, v8, s16", "v_cmp_u_f32 s[18:19], v9, v9", "s_or_b64 vcc, vcc, s[18:19]")
    if "force" in EXP: a.I("s_mov_b64 vcc, -1")
    a.I("s_cbranch_vccz ATT_FIN")
    for b in range(2):
        M = 10; AL = 11
        for i in range(16): a.I(f"v_mov_b32 v{O[b]+i}, 0")
        for i in range(4): a.I(f"v_mov_b32 v{Lr[b]+i}, 0")
        a.I(f"v_mov_b32 v{M}, {f32(-3.0e38)}", f"s_mov_b32 s29, 0")
        a.L(f"ATT_FB{b}")
        for ks in range(2):
            a.I(f"buffer_load_dwordx4 {vr(KB[0]+4*ks,4)}, v4, s[36:39], s29 offen offset:{ks*512}",
                f"buffer_load_dwordx4 {vr(VB[0]+4*ks,4)}, v3, s[36:39], s29 offen offset:{2048+ks*1024}")
        a.I("s_waitcnt vmcnt(0)")
        s0 = S[0]
        a.I(mfma32(s0, KB[0], QR[b], "0"), mfma32(s0, KB[0] + 4, QR[b] + 4))
        a.I(f"v_max3_f32 v8, v{s0}, v{s0+1}, v{M}")
        for i in range(2, 16, 2): a.I(f"v_max3_f32 v8, v8, v{s0+i}, v{s0+i+1}")
        a.I("v_mov_b32 v9, v8", "v_permlane32_swap_b32 v8, v9", "v_max_f32 v8, v8, v9",
            f"v_sub_f32 v{AL}, v{M}, v8", f"v_exp_f32 v{AL}, v{AL}", f"v_mov_b32 v{M}, v8")
        for i in range(16): a.I(f"v_sub_f32 v{s0+i}, v{s0+i}, v8")
        for i in range(16): a.I(f"v_exp_f32 v{s0+i}, v{s0+i}")
        for i in range(16): a.I(f"v_mul_f32 v{O[b]+i}, v{O[b]+i}, v{AL}")
        for i in range(4): a.I(f"v_mul_f32 v{Lr[b]+i}, v{Lr[b]+i}, v{AL}")
        for d in range(8): a.I(f"v_cvt_pk_bf16_f32 v{P+d}, v{s0+2*d}, v{s0+2*d+1}")
        a.I(mfma32(O[b], VB[0], P), mfma32(O[b], VB[0] + 4, P + 4), rsum(b))
        a.I("s_add_u32 s29, s29, 4096", f"s_cmp_lg_u32 s29, {64*4096}", f"s_cbranch_scc1 ATT_FB{b}")
        a.I(f"v_add_f32 v{Lr[b]}, v{Lr[b]}, v{Lr[b]+1}")
    a.L("ATT_FIN")
    a.I("v_mov_b32 v23, v13", "v_mov_b32 v24, v14", "v_mov_b32 v25, v12")
    a.I("v_bfe_u32 v2, v1, 4, 1", "v_lshlrev_b32 v5, 15, v2", "v_lshrrev_b32 v2, 5, v1", "v_lshl_add_u32 v5, v2, 8, v5",
        "v_and_b32 v2, 15, v1", "v_lshl_add_u32 v5, v2, 4, v5",
        "s_lshl_b32 s16, s22, 2", "s_add_u32 s16, s16, s20", "s_lshl_b32 s16, s16, 7", "s_add_u32 s16, s16, s21", "s_lshl_b32 s16, s16, 10",
        f"s_add_u32 s16, s16, {WS_O}", "s_add_u32 s17, s16, 65536")
    for b in range(2): a.I(f"v_rcp_f32 v{8+b}, v{Lr[b]}")
    for b in range(2):
        for i in range(16): a.I(f"v_mul_f32 v{O[b]+i}, v{O[b]+i}, v{8+b}")
        for d in range(8): a.I(f"v_cvt_pk_bf16_f32 v{S[b]+d}, v{O[b]+2*d}, v{O[b]+2*d+1}")
        for ks in range(2):
            a.I(f"buffer_store_dwordx4 {vr(S[b]+4*ks,4)}, v5, s[32:35], s{16+b} offen offset:{ks*512}{SC1}")

def down(a):
    R = 8; SLOT = 8192; NH_ = 56; NST = NH_ + 16 - NPA
    FW_ = [32, 64]; AR = 192; ACC = 128
    M32 = "d32" in EXP
    a.I(f"s_setprio {int(OPT.get('bp', 0))}", "s_lshl_b32 s16, s20, 11", "v_add_u32 v9, s16, v3")
    for t in range(8): a.I(f"ds_read_b128 {vr(192+4*t,4)}, v9 offset:{(t>>1)*8192+(t&1)*1024}")
    h_stores(a)
    a.I(f"s_load_dwordx2 s[8:9], s[0:1], {KA_WD}", f"s_load_dwordx2 s[4:5], s[0:1], {KA_WO}",
        "s_and_b32 s21, s2, 1",
        "s_bfe_u32 s16, s2, 0x10001", "s_lshl_b32 s16, s16, 3", "s_bfe_u32 s17, s2, 0x30003", "s_add_u32 s22, s16, s17",
        "s_bfe_u32 s16, s2, 0x10002", "s_lshl_b32 s16, s16, 2", "s_bfe_u32 s17, s2, 0x20006", "s_add_u32 s23, s16, s17",
        "s_lshl_b32 s46, s20, 11",
        "v_lshrrev_b32 v2, 4, v1", "s_lshl_b32 s16, s20, 3", "v_add_u32 v4, s16, v2", "v_lshlrev_b32 v4, 11, v4",
        "v_bfe_u32 v5, v1, 1, 3", *(["v_lshlrev_b32 v6, 1, v2", "v_xor_b32 v6, v6, v5", "v_mov_b32 v7, v6"] if M32 else ["v_xor_b32 v6, v2, v5", "v_xor_b32 v7, 4, v6"]),
        "v_and_b32 v2, 1, v1", "v_lshl_add_u32 v4, v2, 4, v4", "s_lshl_b32 s16, s23, 8", "v_add_u32 v4, s16, v4",
        f"v_add_u32 v5, {4*2048-1024}, v4",
        "v_lshl_add_u32 v4, v6, 5, v4", "v_lshl_add_u32 v5, v7, 5, v5",
        "s_mul_i32 s48, s21, %d" % (1792 * 2048), "s_waitcnt lgkmcnt(0)")
    srd(a, 24, 8, 3584 * 1024 * 2)
    def dma_w(st):
        sw = [*[f"s_mov_b32 s{24+i}, s{4+i}" for i in range(2)], "s_mov_b32 s26, 0x200000", "s_mov_b32 s48, s40"] if st == NH_ else []
        return sw + [f"s_add_u32 m0, s46, {(st % R) * SLOT}", "s_add_u32 s49, s48, 0",
                "buffer_load_dwordx4 v4, s[24:27], s49 offen lds", "s_add_u32 s48, s48, 65536",
                "buffer_load_dwordx4 v5, s[24:27], s49 offen offset:1024 lds"]
    def ld_a(st):
        r = AR + (st % R) * 8
        if st >= NH_:
            return (["s_mov_b32 s44, s41"] if st == NH_ else []) + [f"buffer_load_dwordx4 {vr(r,4)}, v3, s[32:35], s44 offen",
                    f"buffer_load_dwordx4 {vr(r+4,4)}, v27, s[32:35], s44 offen", "s_add_u32 s44, s44, 1024"]
        if M32: return [f"buffer_load_dwordx4 {vr(r,4)}, v10, s[32:35], s44 offen", f"buffer_load_dwordx4 {vr(r+4,4)}, v10, s[32:35], s44 offen offset:512",
                        "s_add_u32 s44, s44, 1024"]
        return [f"buffer_load_dwordx4 {vr(r,4)}, v3, s[32:35], s44 offen", f"buffer_load_dwordx4 {vr(r+4,4)}, v10, s[32:35], s44 offen",
                "s_add_u32 s44, s44, 1024"]
    L = Log()
    NW = int(OPT.get("nw", 2))
    for j in range(NW): a.extend(L.note(dma_w(j), ("w", j)))
    a.I(f"s_waitcnt vmcnt({2*NW})")
    set_flag(a, 60)
    LAG = int(OPT.get("lag", 2))
    for j in range(NW, R - LAG): a.extend(L.note(dma_w(j), ("w", j)))
    a.I("s_lshl_b32 s16, s22, 3", "s_lshl_b32 s17, s20, 1", "s_add_u32 s16, s16, s17", "s_mul_i32 s16, s16, 112",
        "s_mul_i32 s17, s21, 56", "s_add_u32 s16, s16, s17", "s_lshl_b32 s44, s16, 10", f"s_add_u32 s44, s44, {WS_H}",
        )
    if M32:
        a.I("v_bfe_u32 v2, v1, 4, 1", f"v_mul_u32_u24 v10, {112*1024}, v2", "v_lshrrev_b32 v8, 5, v1", "v_lshl_add_u32 v10, v8, 8, v10",
            "v_and_b32 v9, 15, v1", "v_lshl_add_u32 v10, v9, 4, v10",
            "v_lshlrev_b32 v12, 10, v8", "v_bfe_u32 v9, v1, 2, 2", "v_lshl_add_u32 v12, v9, 8, v12",
            "v_lshlrev_b32 v9, 1, v9", "v_xor_b32 v9, v9, v2", "v_lshl_add_u32 v12, v9, 5, v12",
            "v_and_b32 v9, 3, v1", "v_lshl_add_u32 v12, v9, 3, v12")
        for u in range(1, 4): a.I(f"v_xor_b32 v{12+u}, {64*u}, v12")
    else:
        a.I(f"v_add_u32 v10, {112*1024}, v3",
            "v_lshrrev_b32 v2, 4, v1", "v_lshlrev_b32 v12, 10, v2", "v_bfe_u32 v9, v1, 2, 2", "v_lshl_add_u32 v12, v9, 8, v12",
            "v_bfe_u32 v8, v1, 2, 3", "v_lshl_add_u32 v12, v8, 5, v12", "v_and_b32 v9, 3, v1", "v_lshl_add_u32 v12, v9, 3, v12")
        for u in range(1, 8): a.I(f"v_xor_b32 v{12+u}, {32*u}, v12")
    NT = 0
    if "wt2" in EXP:
        a.I("v_min_u32 v2, 55, v1", "v_lshlrev_b32 v24, 7, v2", "s_lshl_b32 s16, s2, 2", "s_add_u32 s16, s16, s20", "s_mul_i32 s16, s16, 7168",
            "buffer_load_dword v25, v24, s[24:27], s16 offen")
    if "wt" in EXP.split("_"):
        a.I("v_lshrrev_b32 v2, 1, v1", "v_lshlrev_b32 v24, 11, v2", "v_and_b32 v2, 1, v1", "v_lshl_add_u32 v24, v2, 7, v24",
            "s_and_b32 s16, s22, 7", "s_lshl_b32 s16, s16, 2", "s_add_u32 s16, s16, s20", "s_mul_i32 s16, s16, %d" % (56 * 2048),
            "s_mul_i32 s17, s21, %d" % (1792 * 2048), "s_add_u32 s16, s16, s17", "s_lshl_b32 s17, s23, 8", "s_add_u32 s16, s16, s17",
            f"s_add_u32 s17, s16, {24*2048}",
            "buffer_load_dword v25, v24, s[24:27], s16 offen", "buffer_load_dword v26, v24, s[24:27], s17 offen")
        NT = 2
    sync_setup(a, LC + 1024, 20, 21, 22)
    a.I("s_lshl_b32 s40, s21, 20", f"s_add_u32 s40, s40, {NPA*65536}", "s_and_b32 s16, s20, 1", "s_lshl_b32 s16, s16, 15", "s_add_u32 s40, s40, s16",
        "s_lshr_b32 s16, s20, 1", "s_lshl_b32 s16, s16, 14", "s_add_u32 s40, s40, s16", "s_lshl_b32 s16, s20, 14", "s_sub_u32 s40, s40, s16",
        "s_lshl_b32 s16, s22, 2", "s_add_u32 s16, s16, s20", "s_lshl_b32 s41, s16, 16", "s_lshl_b32 s16, s21, 14", "s_add_u32 s41, s41, s16",
        f"s_add_u32 s41, s41, {WS_O+NPA*1024}", "v_add_u32 v27, 0x8000, v3",
        f"v_add_u32 v2, {NPA}, v1", "v_and_b32 v8, 3, v2", "v_lshlrev_b32 v28, 8, v8", "v_bfe_u32 v8, v2, 2, 2", "v_lshl_add_u32 v28, v8, 5, v28",
        "s_lshr_b32 s16, s22, 1", "s_lshl_b32 s43, s16, 10", "s_and_b32 s16, s22, 1", "s_lshl_b32 s16, s16, 1", "s_lshr_b32 s17, s20, 1",
        "s_add_u32 s16, s16, s17", "s_lshl_b32 s16, s16, 2", "s_add_u32 s43, s43, s16", "s_lshl_b32 s16, s21, 7", "s_add_u32 s43, s43, s16",
        f"s_add_u32 s43, s43, {WS_FL+FL_O}")
    a.I("v_lshrrev_b32 v2, 4, v1", "v_bfe_u32 v8, v1, 2, 2", "v_lshl_add_u32 v9, v8, 3, v2", "v_lshlrev_b32 v9, 5, v9",
        "v_and_b32 v2, 3, v1", "v_lshl_add_u32 v9, v2, 2, v9",
        "s_lshr_b32 s18, s22, 1", "s_lshl_b32 s18, s18, 5", "s_lshl_b32 s16, s21, 2", "s_add_u32 s18, s18, s16", "s_lshl_b32 s18, s18, 5",
        f"s_add_u32 s18, s18, {WS_FL+FL_H+16}")
    PG = "nopg" not in EXP
    a.extend(poll(18, 8 if PG else 64, 9, sleep=int(OPT.get("hs", 2))))
    ts(a, 3)
    L.l = []
    for j in range(R - 1): a.extend(L.note(ld_a(j), ("a", j)))
    if PG: a.extend(L.note([poll_load(18, 9, 24), "s_mov_b32 s45, 44"], ("f", 0)))
    def need(k):
        last = max([i for i, t in enumerate(L.l) if (t[0] in "af" and t[1] <= k) or (t[0] == "w" and t[1] <= k + 1 + LAG)], default=-1)
        return len(L.l) - 1 - last
    def reads(st):
        if M32: return [f"ds_read_b64_tr_b16 {vr(FW_[st&1]+(ks*4+nb)*4+2*rd,2)}, v{12+nb} offset:{(st % R)*SLOT+ks*2048+rd*4096}"
                        for ks in range(2) for nb in range(4) for rd in range(2)]
        return [f"ds_read_b64_tr_b16 {vr(FW_[st&1]+u*4+2*rd,2)}, v{12+u} offset:{(st % R)*SLOT+rd*4096}" for u in range(8) for rd in range(2)]
    sync_block(a, 20, 21, 22, 23)
    a.extend(reads(0))
    a.I("ds_read_b32 v23, v21", f"s_mov_b32 s53, {2 - LAG}", f"s_setprio {int(OPT.get('dp', 1))}")
    def body(k):
        if M32: m = [mfma32(ACC + nb * 16, FW_[k & 1] + (ks * 4 + nb) * 4, AR + (k % R) * 8 + ks * 4, "0" if k + ks == 0 else None) for ks in range(2) for nb in range(4)]
        else: m = [mfma16(ACC + (t * 8 + u) * 4, FW_[k & 1] + u * 4, AR + (k % R) * 8 + t * 4, "0" if k == 0 else None) for u in range(8) for t in range(2)]
        if k + 1 >= NST: return [f"s_waitcnt vmcnt({need(k)}) lgkmcnt(0)"] + m
        h0, h1 = (1, 7) if M32 else (2, 14)
        CP = "nocp" not in EXP and not PT
        o = (["s_setprio 3"] if CP else []) + [f"s_waitcnt vmcnt({need(k)}) lgkmcnt(0)", "v_cmp_gt_i32 vcc, s53, v23"]
        o += ([f"s_setprio {int(OPT.get('dp', 1))}"] if CP else []) + ["ds_add_u32 v20, v22", "s_add_u32 s53, s53, 1"]
        if PT: o += [f"s_setprio {1 if (k % R) < PT else 0}"]
        o += m[:h0] + [f"s_nop {2 - h0 - (1 if PT else 0)}"] * (2 - h0 - (1 if PT else 0) >= 0) + (["s_cbranch_vccnz @SPIN"] if "nosync" not in EXP else []) + ["@CONT:"]
        if TH and k % 4 == 2:
            o += ["s_setprio 3", "v_cmp_gt_u32 vcc, s47, v25", f"s_setprio {int(OPT.get('dp', 1))}", f"s_add_u32 s47, s47, {TH}", "s_min_u32 s47, s47, 17",
                  "s_cbranch_vccnz @TSP", "@TCT:"]
        if PG and k % 8 == 0 and k <= 40:
            o += ["s_lshr_b64 s[28:29], -1, s45", "s_setprio 3", "v_cmp_ne_u32 vcc, s55, v24", f"s_setprio {int(OPT.get('dp', 1))}",
                  "s_sub_u32 s45, s45, 10", "s_max_i32 s45, s45, 0", "s_and_b64 vcc, vcc, s[28:29]", "s_cbranch_scc1 @FSP", "@FCT:"]
        dm = (L.note(dma_w(k - LAG + R), ("w", k - LAG + R)) if k - LAG + R < NST else []) + (L.note(ld_a(k - 1 + R), ("a", k - 1 + R)) if k - 1 + R < NH_ else [])
        OL = int(OPT.get("ol", 3))
        if k + OL + 2 == NH_: dm += L.note([poll_load(43, 28, 29)], ("f", k + 2))
        if k + OL == NH_:
            o += lanes(16 - NPA) + ["v_cmp_ne_u32 vcc, s55, v29", "s_mov_b64 exec, -1", "s_cbranch_vccnz DN_OS", "DN_OC:"]
        if NH_ <= k + OL < NST: dm += L.note(ld_a(k + OL), ("a", k + OL))
        if PG and k % 8 == 4 and k <= 44: dm += L.note([poll_load(18, 9, 24)], ("f", k + 4))
        if "dnodma" in EXP: dm = []
        fill = mixmem(reads(k + 1), dm, False)
        FR = int(OPT.get("fr", 5 if M32 else 10))
        rd = reads(k + 1) + ["ds_read_b32 v23, v21"] + (["ds_read_b32 v25, v26"] if TH and k % 4 == 1 else [])
        gs = groups_of(dm) if dm else []
        if "vend" in EXP:
            o += interleave(m[h0:FR], rd)
            rest = m[FR:]
            for i, x in enumerate(rest):
                o += [x] + [y for g in gs[(len(gs) * i) // len(rest):(len(gs) * (i + 1)) // len(rest)] for y in g]
            return o
        n = len(m) - h0; nr = FR - h0
        for i, x in enumerate(m[h0:]):
            o += [x] + (rd[(len(rd) * i) // nr:(len(rd) * (i + 1)) // nr] if i < nr else [])
            o += [y for g in gs[(len(gs) * i) // n:(len(gs) * (i + 1)) // n] for y in g]
        return o
    PT = int(OPT.get("pt", 0))
    TH = int(OPT.get("th", 0))
    if TH: a.I("v_subrev_u32 v26, 1024, v21", f"s_mov_b32 s47, {int(OPT.get('th0', 3))}")
    bodies = [body(k) for k in range(NST)]
    U = R
    for head in range(0, R + U + 1):
        nl = (NH_ - R - head) // U
        if all(bodies[k] == bodies[head + (k - head) % U] for k in range(head, head + nl * U)): break
    else: raise AssertionError
    spins = []
    def emit(k):
        spins.append(k)
        a.extend([x.replace("@SPIN", f"DN_SP{k}").replace("@CONT", f"DN_CT{k}").replace("@FSP", f"DN_FS{k}").replace("@FCT", f"DN_FC{k}").replace("@TSP", f"DN_TS{k}").replace("@TCT", f"DN_TC{k}") for x in bodies[k]])
    for k in range(head): emit(k)
    a.I(f"s_mov_b32 s51, {nl}")
    a.L("DN_LOOP")
    jit(a, 7)
    for k in range(head, head + U): emit(k)
    a.I("s_sub_u32 s51, s51, 1", "s_cmp_lg_u32 s51, 0", "s_cbranch_scc1 DN_LOOP")
    for k in range(head + nl * U, NST): emit(k)
    ts(a, 4)
    assert not M32
    jit(a, 5)
    XR = 32; PR = 64
    a.I("s_setprio 3", f"s_load_dwordx2 s[10:11], s[0:1], {KA_X}", f"s_load_dwordx2 s[12:13], s[0:1], {KA_OUT}",
        "s_lshl_b32 s16, s22, 2", "s_add_u32 s16, s16, s20", "s_lshl_b32 s16, s16, 16", "s_lshl_b32 s17, s23, 8", "s_add_u32 s42, s16, s17",
        "s_lshl_b32 s17, s23, 12", "s_add_u32 s43, s16, s17", f"s_add_u32 s43, s43, {WS_P}", "s_add_u32 s44, s43, 0x8000",
        "s_lshl_b32 s16, s20, 14", f"s_add_u32 s16, s16, {LKV}", "v_add_u32 v9, s16, v3", "v_subrev_u32 v26, 1024, v21",
        f"s_mov_b32 s53, {NA_END}", "s_mov_b32 s19, 0xffff0000", "s_lshr_b32 s40, s20, 1")
    xsel(a, 24)
    wave_flag(a, 60, FL_O)
    a.I("s_waitcnt lgkmcnt(0)")
    srd(a, 28, 10, 2048 * 2048); srd(a, 36, 12, 2048 * 2048)
    a.I("s_cmp_lg_u32 s40, s21", "s_cbranch_scc1 DN_NX", "s_add_u32 s17, s42, 0x8000")
    for t in range(2):
        for c in range(4): a.I(f"buffer_load_dwordx4 {vr(XR+16*t+4*c,4)}, v24, s[28:31], s{42 if t == 0 else 17} offen offset:{c*64}")
    a.L("DN_NX")
    a.I("ds_read_b32 v23, v26", "s_waitcnt lgkmcnt(0)", "v_cmp_gt_u32 vcc, s53, v23", "s_cbranch_vccz DN_AOK", "s_sleep 1", "s_branch DN_NX")
    a.L("DN_AOK")
    ts(a, 5)
    for i in range(16): a.I(f"ds_read_b128 {vr(192+4*i,4)}, v9 offset:{i*1024}")
    for i in range(16):
        if i % 4 == 0: a.I(f"s_waitcnt lgkmcnt({12 - i})")
        for j in range(4): a.I(f"v_add_f32 v{ACC+4*i+j}, v{ACC+4*i+j}, v{192+4*i+j}")
    a.I("s_cmp_eq_u32 s40, s21", "s_cbranch_scc1 DN_FIN")
    for t in range(2):
        for c in range(4):
            g = ACC + (t * 8 + c * 2) * 4; pk = 192 + (t * 4 + c) * 4
            for d in range(4): a.I(f"v_cvt_pk_bf16_f32 v{pk+d}, v{g+2*d}, v{g+2*d+1}")
            a.I(f"buffer_store_dwordx4 {vr(pk,4)}, v3, s[32:35], s{43+t} offen offset:{c*1024}{SC1}")
    a.I("s_waitcnt vmcnt(0)")
    set_flag(a, 60)
    tl_dump(a, 13)
    a.I("s_endpgm")
    a.L("DN_FIN")
    a.I("s_xor_b32 s18, s60, 32", "v_mov_b32 v25, 0", "s_waitcnt vmcnt(0)")
    for i in range(8): a.I(f"v_permlane16_swap_b32 v{XR+4*i}, v{XR+4*i+2}", f"v_permlane16_swap_b32 v{XR+4*i+1}, v{XR+4*i+3}")
    a.extend(lanes(1) + [poll_load(18, 25, 27), "s_mov_b64 exec, -1"])
    for i in range(32): a.I(f"v_lshlrev_b32 v{192+2*i}, 16, v{XR+i}", f"v_and_b32 v{193+2*i}, s19, v{XR+i}")
    for i in range(64): a.I(f"v_add_f32 v{ACC+i}, v{ACC+i}, v{192+i}")
    a.extend(poll(18, 1, 25, 27, preloaded=0, sleep=1))
    ts(a, 6)
    for t in range(2):
        for c in range(4): a.I(f"buffer_load_dwordx4 {vr(PR+16*t+4*c,4)}, v3, s[32:35], s{43+t} offen offset:{c*1024}")
    for i in range(8):
        g = ACC + 8 * i; pk = 32 + 4 * i
        a.I(f"s_waitcnt vmcnt({7 - i + i})")
        for d in range(4): a.I(f"v_lshlrev_b32 v{192+2*d}, 16, v{PR+4*i+d}", f"v_and_b32 v{193+2*d}, s19, v{PR+4*i+d}")
        for d in range(8): a.I(f"v_add_f32 v{g+d}, v{g+d}, v{192+d}")
        for d in range(4): a.I(f"v_cvt_pk_bf16_f32 v{pk+d}, v{g+2*d}, v{g+2*d+1}")
        a.I(f"v_permlane16_swap_b32 v{pk}, v{pk+2}", f"v_permlane16_swap_b32 v{pk+1}, v{pk+3}",
            f"buffer_store_dwordx4 {vr(pk,4)}, v24, s[36:39], s42 offen offset:{(i&3)*64}" + OPT.get("om", "").replace("+", " "))
        if i == 3: a.I("s_add_u32 s42, s42, 0x8000")
    tl_dump(a, 13)
    a.I("s_endpgm")
    a.L("DN_OS")
    a.extend(poll(43, 16 - NPA, 28, 29, sleep=2))
    a.I("s_branch DN_OC")
    for k in spins:
        if k + 1 >= NST: continue
        if any("@TSP" in x for x in bodies[k]):
            a.L(f"DN_TS{k}")
            a.I("s_sleep 4", "ds_read_b32 v25, v26", "s_waitcnt lgkmcnt(0)", f"v_add_u32 v25, {TH}, v25", "v_cmp_gt_u32 vcc, s47, v25",
                f"s_cbranch_vccnz DN_TS{k}", f"s_branch DN_TC{k}")
        if any("@FSP" in x for x in bodies[k]):
            a.L(f"DN_FS{k}")
            a.I("s_mov_b32 s17, 0x40000")
            a.L(f"DN_FL{k}")
            a.I(poll_load(18, 9, 24), "s_waitcnt vmcnt(0)", "v_cmp_ne_u32 vcc, s55, v24", "s_and_b64 vcc, vcc, s[28:29]",
                f"s_cbranch_scc0 DN_FC{k}", "s_sleep 2", "s_sub_u32 s17, s17, 1", "s_cmp_lg_u32 s17, 0", f"s_cbranch_scc1 DN_FL{k}", f"s_branch DN_FC{k}")
        a.L(f"DN_SP{k}")
        a.I("ds_read_b32 v23, v21", "s_waitcnt lgkmcnt(0)", "v_add_u32 v23, 1, v23", "v_cmp_gt_i32 vcc, s53, v23",
            f"s_cbranch_vccnz DN_SP{k}", f"s_branch DN_CT{k}")

NPA = 10
NA_END = 1 + 16 + 4
def wo(a):
    FW = [32, 128]; ACC = 64; OA = 160; D = 12; NP = NPA; SW = 99
    a.I(f"s_load_dwordx2 s[8:9], s[0:1], {KA_WO}",
        "s_and_b32 s21, s2, 1",
        "s_bfe_u32 s16, s2, 0x10001", "s_lshl_b32 s16, s16, 3", "s_bfe_u32 s17, s2, 0x30003", "s_add_u32 s22, s16, s17",
        "s_bfe_u32 s16, s2, 0x10002", "s_lshl_b32 s16, s16, 2", "s_bfe_u32 s17, s2, 0x20006", "s_add_u32 s23, s16, s17",
        "v_lshrrev_b32 v2, 4, v1", "s_lshl_b32 s16, s20, 3", "v_add_u32 v4, s16, v2", "v_lshlrev_b32 v4, 11, v4",
        "v_bfe_u32 v5, v1, 1, 3", "v_lshlrev_b32 v6, 1, v2", "v_xor_b32 v6, v6, v5", "v_mov_b32 v7, v6",
        "v_and_b32 v2, 1, v1", "v_lshl_add_u32 v4, v2, 4, v4", "s_lshl_b32 s16, s23, 8", "v_add_u32 v4, s16, v4",
        f"v_add_u32 v5, {4*2048-1024}, v4", "v_lshl_add_u32 v4, v6, 5, v4", "v_lshl_add_u32 v5, v7, 5, v5",
        "s_lshl_b32 s48, s21, 20", "s_lshl_b32 s46, s20, 11", f"s_add_u32 s46, s46, {LKV}",
        "s_lshl_b32 s16, s22, 2", "s_add_u32 s16, s16, s20", "s_lshl_b32 s44, s16, 16", "s_lshl_b32 s16, s21, 14", "s_add_u32 s44, s44, s16",
        f"s_add_u32 s44, s44, {WS_O}",
        "v_bfe_u32 v2, v1, 4, 1", "v_lshlrev_b32 v10, 15, v2", "v_lshrrev_b32 v2, 5, v1", "v_lshl_add_u32 v10, v2, 8, v10",
        "v_and_b32 v2, 15, v1", "v_lshl_add_u32 v10, v2, 4, v10")
    wave_flag(a, 60, FL_O)
    a.I("s_waitcnt vmcnt(0) lgkmcnt(0)")
    set_flag(a, 60)
    srd(a, 24, 8, 1024 * 1024 * 2)
    RT = int(OPT.get("rt", 0))
    a.I("s_and_b32 s16, s23, 3", f"s_mul_i32 s50, s16, {RT}", "s_mov_b32 s51, s50")
    def step(r): return [f"s_add_u32 s{r}, s{r}, 1", f"s_cmp_eq_u32 s{r}, {NP}", f"s_cselect_b32 s{r}, 0, s{r}"]
    def w_dma3(p):
        return [f"s_add_u32 m0, s46, {p * 8192}", "s_lshl_b32 s49, s50, 16", "s_add_u32 s49, s49, s48", "buffer_load_dwordx4 v4, s[24:27], s49 offen lds"] + \
               step(50) + ["buffer_load_dwordx4 v5, s[24:27], s49 offen offset:1024 lds"]
    def o_load(p):
        r = OA + (p % D) * 8
        return ["s_lshl_b32 s45, s51, 10", "s_add_u32 s45, s45, s44", f"buffer_load_dwordx4 {vr(r,4)}, v10, s[32:35], s45 offen"] + step(51) + \
               [f"buffer_load_dwordx4 {vr(r+4,4)}, v10, s[32:35], s45 offen offset:512"]
    sync_block(a, 23, 24, 25, 26)
    for p in range(NP): a.extend(w_dma3(p))
    a.I("v_lshrrev_b32 v2, 5, v1", "v_lshlrev_b32 v12, 10, v2", "v_bfe_u32 v9, v1, 2, 2", "v_lshl_add_u32 v12, v9, 8, v12",
        "v_lshlrev_b32 v9, 1, v9", "v_bfe_u32 v2, v1, 4, 1", "v_xor_b32 v9, v9, v2", "v_lshl_add_u32 v12, v9, 5, v12",
        "v_and_b32 v9, 3, v1", "v_lshl_add_u32 v12, v9, 3, v12", f"v_add_u32 v12, {LKV}, v12")
    for u in range(1, 4): a.I(f"v_xor_b32 v{12+u}, {64*u}, v12")
    for u in range(4): a.I(f"v_add_u32 v{16+u}, 0x10000, v{12+u}")
    a.I("v_and_b32 v2, 3, v1", "v_lshlrev_b32 v9, 8, v2", "v_bfe_u32 v2, v1, 2, 2", "v_lshl_add_u32 v9, v2, 5, v9",
        "v_bfe_u32 v2, v1, 4, 1", "v_lshl_add_u32 v9, v2, 2, v9",
        "s_lshr_b32 s16, s22, 1", "s_lshl_b32 s18, s16, 10", "s_and_b32 s16, s22, 1", "s_lshl_b32 s16, s16, 3", "s_add_u32 s18, s18, s16",
        "s_lshl_b32 s16, s21, 7", "s_add_u32 s18, s18, s16", f"s_add_u32 s18, s18, {WS_FL+FL_O}")
    a.I("s_cmp_lg_u32 s20, 0", "s_cbranch_scc1 WO_NPL")
    a.I(f"s_mov_b32 exec_lo, {((1 << NP) - 1) * 0x10001:#x}", "s_mov_b32 exec_hi, 0")
    a.extend(poll(18, 64, 9, sleep=int(OPT.get("os", 4))))
    a.I("s_mov_b64 exec, -1")
    a.I("WO_NPL:", "s_waitcnt vmcnt(0)")
    sync_block(a, 23, 24, 25, 26, sleep=True)
    ts(a, 5)
    L = Log()
    nxt = int(OPT.get("o0", 4))
    for p in range(nxt): a.extend(L.note(o_load(p), p))
    a.I(f"s_setprio {int(OPT.get('wp', 0))}")
    def reads(p):
        sl = p % 10
        return [f"ds_read_b64_tr_b16 {vr(FW[p&1]+(ks*4+nb)*4+2*rd,2)}, v{(12 if sl < 8 else 16)+nb} offset:{(sl&7)*8192+ks*4096+rd*2048}"
                for ks in range(2) for nb in range(4) for rd in range(2)]
    a.extend(reads(0))
    for p in range(NP):
        wc = L.cnt(p)
        a.I(f"s_waitcnt vmcnt({wc}) lgkmcnt(0)")
        if "wost" in EXP and p in (0, 4): ts(a, {0: 9, 4: 10}[p])
        if "wost" in EXP and p == 9: ts(a, 11)
        if "wost" in EXP and p == SW: ts(a, 6)
        extra = L.note([x for q in range(10, NP) for x in w_dma3(q)], 99) if p == SW else []
        for _ in range(3):
            if nxt < NP and nxt < p + D: extra += L.note(o_load(nxt), nxt); nxt += 1
        m = [mfma32(ACC + nb * 16, FW[p & 1] + (ks * 4 + nb) * 4, OA + (p % D) * 8 + 4 * ks, "0" if p + ks == 0 else None) for ks in range(2) for nb in range(4)]
        rd = reads(p + 1) if p + 1 < NP else []
        gs = groups_of(extra) if extra else []
        for i, x in enumerate(m):
            a.I(x); a.extend(rd[3 * i:3 * i + 3])
            a.extend([y for g in gs[(len(gs) * i) // 8:(len(gs) * (i + 1)) // 8] for y in g])
    a.I("s_setprio 3")
    sync_block(a, 23, 24, 25, 26)
    a.I("s_lshl_b32 s16, s20, 14", f"s_add_u32 s16, s16, {LKV}", "v_bfe_u32 v2, v1, 4, 1", "v_lshlrev_b32 v9, 13, v2",
        "v_lshrrev_b32 v2, 5, v1", "v_lshl_add_u32 v9, v2, 8, v9", "v_and_b32 v2, 15, v1", "v_lshl_add_u32 v9, v2, 4, v9", "v_add_u32 v9, s16, v9")
    for nb in range(4):
        for j in range(4): a.I(f"ds_write_b128 v9, {vr(ACC+16*nb+4*j,4)} offset:{(2*nb+(j>>1))*1024+(j&1)*512}")
    a.I("ds_add_u32 v23, v25", "s_waitcnt lgkmcnt(0)")

def fused():
    a = Asm()
    ts(a, 0)
    a.I("s_cmp_ge_u32 s2, 256", "s_cbranch_scc1 F_END",
        f"s_load_dwordx8 s[4:11], s[0:1], {KA_X}", f"s_load_dwordx4 s[40:43], s[0:1], {KA_WG}",
        f"s_load_dwordx4 s[12:15], s[0:1], {KA_DBG}", "s_memrealtime s[48:49]",
        "v_lshrrev_b32 v2, 6, v0", "v_and_b32 v1, 63, v0", "v_readfirstlane_b32 s20, v2", "v_lshlrev_b32 v3, 4, v1",
        "s_lshr_b32 s21, s2, 4", "s_lshl_b32 s21, s21, 3", "s_and_b32 s16, s2, 7", "s_add_u32 s45, s21, s16", "s_lshl_b32 s23, s45, 15",
        "s_mov_b32 s54, s20", "s_lshl_b32 s16, s20, 12", "s_add_u32 s19, s23, s16", "s_waitcnt lgkmcnt(0)")
    srd(a, 32, 14, WS_SIZE); srd(a, 56, 12, 256)
    a.I("s_or_b32 s16, s2, s20", "s_cmp_lg_u32 s16, 0", "s_cbranch_scc1 F_NT",
        "s_or_b32 s16, s48, 1", "v_mov_b32 v2, s16", "v_mov_b32 v8, 0", "s_mov_b64 exec, 1",
        "buffer_store_dword v2, v8, s[56:59], 0 offen sc1", "s_mov_b64 exec, -1")
    a.L("F_NT")
    jit(a, 0)
    phase0(a)
    jit(a, 1)
    ts(a, 8)
    if "p0st" in EXP:
        tl_dump(a, 13); a.I("s_endpgm")
    g1(a)
    a.I("s_and_b32 s20, s54, 3", "s_cmp_ge_u32 s54, 4", "s_cbranch_scc1 F_B")
    jit(a, 2)
    attention(a)
    jit(a, 3)
    wo(a)
    tl_dump(a, 13)
    a.I("s_endpgm")
    if "ablock" not in EXP:
        for tag in ("0", "7", "7F"):
            a.L(f"ATT_SP{tag}")
            a.I("ds_read_b32 v15, v14", "s_waitcnt lgkmcnt(0)", "v_cmp_gt_u32 vcc, s53, v15", f"s_cbranch_vccnz ATT_SP{tag}", f"s_branch ATT_CT{tag}")
    a.L("F_B")
    jit(a, 4)
    down(a)
    a.L("F_END")
    a.I("s_endpgm")
    return a, dict(grid=256, block=512, lds=163840, vgpr=256)

if __name__ == "__main__":
    path = sys.argv[1] if len(sys.argv) > 1 else "cdna_kernels/" + NAME + ".s"
    opts = dict(o.split("=") for o in sys.argv[2:])
    NPA = int(opts.get("npa", 8))
    OPT = opts; EXP = opts.get("exp", ""); TL = bool(int(opts.get("tl", 0)))
    G.VERB = bool(int(opts.get("verb", 0)))
    SC1 = opts.get("sm", "+sc1").replace("+", " ")
    G.build([(NAME if int(opts.get("single", 0)) else "fused8", fused())], path)
```

```python
import sys
from asmlib import *
import gen as G
from gen import (NAME, KA_X, KA_WQ, KA_WK, KA_WV, KA_WO, KA_WG, KA_WU, KA_WD, KA_OUT, KA_DBG, KA_WS,
                 WS_XN, WS_KV, WS_O, WS_H, WS_P, WS_SIZE, f32, vr, srd, mfma32, mfma16, QSCALE, mix2, front_pattern)
WS_FL = 0x0480000
FL_KV, FL_X, FL_H, FL_O, FL_P = 0, 4096, 12288, 20480, 24576
WS_TL = 0x3F10000
LKV = 65536
LQ = 131072
LC = 147456
HP = 224
TL = False; EXP = ""; OPT = {}
SC1 = " sc1"

def cm(a, *lines):
    for l in lines: a.items.append(Ins("; " + l))
def ts(a, i):
    if TL: a.I(f"s_mem{'' if 'cyc' in EXP else 'real'}time s[{62+2*i}:{63+2*i}]")
def tl_dump(a, n):
    if not TL: return
    a.I("s_waitcnt vmcnt(0) lgkmcnt(0)")
    ts(a, 7)
    if "hd" in EXP.split("_"):
        a.I("s_waitcnt lgkmcnt(0)", "s_and_b32 s90, s54, 3", "s_cmp_lg_u32 s90, 0", "s_cbranch_scc1 F_END", "s_sleep 127", "s_sleep 127", "s_sleep 127",
            "v_mov_b32 v1, 0", "s_mov_b64 exec, 1", "s_not_b32 s90, s62", "v_mov_b32 v2, s90",
            "buffer_atomic_umax v2, v1, s[56:59], 0 offen offset:4", "s_lshr_b32 s90, s54, 2", "s_mul_i32 s90, s90, 0")
        lab = f"HD{len(a.items)}"
        for j, i in enumerate((0, 8, 11, 12, 1, 2, 3, 4, 5, 7)):
            if j == 6: a.I("s_cmp_ge_u32 s54, 4", f"s_cbranch_scc1 {lab}")
            if j in (2, 3): a.I("s_cmp_ge_u32 s54, 4", f"s_cselect_b32 s{62+2*i}, 0, s{62+2*i}")
            a.I(f"v_mov_b32 v2, s{62+2*i}", f"buffer_atomic_umax v2, v1, s[56:59], 0 offen offset:{8+4*j}")
        a.I("s_endpgm")
        a.L(lab)
        for j, i in enumerate((3, 4, 7)):
            a.I(f"v_mov_b32 v2, s{62+2*i}", f"buffer_atomic_umax v2, v1, s[56:59], 0 offen offset:{48+4*j}")
        return
    a.I("s_waitcnt lgkmcnt(0)", "s_lshl_b32 s90, s2, 3", "s_add_u32 s90, s90, s54", "s_lshl_b32 s90, s90, 6",
        f"s_add_u32 s90, s90, {WS_TL}", "v_mov_b32 v1, 0", "s_mov_b64 exec, 1")
    for i in range(n):
        a.I(f"v_mov_b32 v2, s{62+2*i}", f"buffer_store_dword v2, v1, s[32:35], s90 offen offset:{4*i}")

_n = [0]
def jit(a, k):
    J = int(OPT.get("jit", 0))
    if not J: return
    _n[0] += 1; lab = f"JIT{_n[0]}"
    a.I(f"s_mul_i32 s93, s2, {0x9e37 + 2 * k + 64 * J}", "s_mul_i32 s94, s54, 0x1b5", "s_add_u32 s93, s93, s94", "s_bfe_u32 s93, s93, 0x30004", lab + ":",
        "s_cmp_eq_u32 s93, 0", f"s_cbranch_scc1 {lab}_D", f"s_sleep {8 * J}", "s_sub_u32 s93, s93, 1", f"s_branch {lab}", lab + "_D:")
def lanes(n): return [f"s_mov_b32 exec_lo, {((1 << n) - 1) & 0xffffffff:#x}", f"s_mov_b32 exec_hi, {((1 << n) - 1) >> 32:#x}"] if n < 64 else []
def poll_load(soff, voff, dst, wide=False):
    return f"buffer_load_dword{'x4' if wide else ''} {vr(dst, 4 if wide else 1)}, v{voff}, s[32:35], s{soff} offen sc1"
def poll_test(dst, wide):
    if wide:
        return [f"v_xor_b32 v{dst+i}, s55, v{dst+i}" for i in range(4)] + \
               [f"v_or3_b32 v{dst}, v{dst}, v{dst+1}, v{dst+2}", f"v_or_b32 v{dst}, v{dst}, v{dst+3}", f"v_cmp_ne_u32 vcc, 0, v{dst}"]
    return [f"v_cmp_ne_u32 vcc, s55, v{dst}"]
def poll(soff, n, voff, dst=2, wide=False, preloaded=None, sleep=2):
    _n[0] += 1; lab = f"POLL{_n[0]}"
    o = lanes(n)
    if preloaded is not None:
        o += [f"s_waitcnt vmcnt({preloaded})"] + poll_test(dst, wide) + [f"s_cbranch_vccz {lab}_D"]
    o += ["s_mov_b32 s17, 0x40000", lab + ":", poll_load(soff, voff, dst, wide), "s_waitcnt vmcnt(0)"] + poll_test(dst, wide)
    o += [f"s_cbranch_vccz {lab}_D", f"s_sleep {sleep}", "s_sub_u32 s17, s17, 1", "s_cmp_lg_u32 s17, 0", f"s_cbranch_scc1 {lab}", lab + "_D:"]
    if n < 64: o += ["s_mov_b64 exec, -1"]
    return o
def set_flag(a, soff):
    a.I("v_mov_b32 v2, s55", "v_mov_b32 v8, 0", "s_mov_b64 exec, 1",
        f"buffer_store_dword v2, v8, s[32:35], s{soff} offen sc1", "s_mov_b64 exec, -1")
def wave_flag(a, reg, base):
    a.I(f"s_lshl_b32 s{reg}, s2, 3", f"s_add_u32 s{reg}, s{reg}, s54", f"s_lshl_b32 s{reg}, s{reg}, 2", f"s_add_u32 s{reg}, s{reg}, {WS_FL+base}")
def sync_setup(a, base, own, chk, one):
    a.I("s_lshl_b32 s16, s20, 8", f"s_add_u32 s16, s16, {base}", f"v_lshl_add_u32 v{own}, v1, 2, s16",
        "v_and_b32 v2, 3, v1", f"v_lshlrev_b32 v{chk}, 8, v2", f"v_lshl_add_u32 v{chk}, v1, 2, v{chk}", f"v_add_u32 v{chk}, {base}, v{chk}",
        f"v_mov_b32 v{one}, 1", "s_mov_b32 s53, 0")
def sync_block(a, own, chk, one, tmp, sleep=False):
    _n[0] += 1; lab = f"SY{_n[0]}"
    a.I(f"ds_add_u32 v{own}, v{one}", "s_add_u32 s53, s53, 1")
    a.L(lab)
    if sleep: a.I("s_sleep 1")
    a.I(f"ds_read_b32 v{tmp}, v{chk}", "s_waitcnt lgkmcnt(0)", f"v_cmp_gt_u32 vcc, s53, v{tmp}", f"s_cbranch_vccnz {lab}")
def xsel(a, dst):
    a.I("v_and_b32 v2, 15, v1", f"v_lshlrev_b32 v{dst}, 11, v2", "v_bfe_u32 v2, v1, 4, 1", f"v_lshl_add_u32 v{dst}, v2, 5, v{dst}",
        "v_lshrrev_b32 v2, 5, v1", f"v_lshl_add_u32 v{dst}, v2, 4, v{dst}")
def is_vm(x): return x.startswith("buffer") or x.startswith("global")
def groups_of(dm):
    gs = []; cur = []
    for x in dm:
        cur.append(x)
        if is_vm(x): gs.append(cur); cur = []
    gs[-1] += cur
    return gs
def mixmem(rd, dm, dma_first=True):
    if not rd or not dm: return rd + dm
    gs = groups_of(dm)
    pre = [x for x in rd if x.startswith("v_")]; ds = [x for x in rd if x.startswith("ds_")]; post = [x for x in rd if x.startswith("s_")]
    o = list(pre); n = len(gs); per = len(ds) // n
    for g in range(n):
        part = ds[g * per:(g + 1) * per if g < n - 1 else len(ds)]
        o += (gs[g] + part) if dma_first else (part + gs[g])
    return o + post
class Log:
    def __init__(self): self.l = []
    def note(self, instrs, st): self.l += [st] * sum(map(is_vm, instrs)); return instrs
    def cnt(self, st):
        last = max([i for i, s_ in enumerate(self.l) if s_ is not None and s_ <= st], default=-1)
        return len(self.l) - 1 - last

WA0, WA1, WST = 116, 118, 120
def w_dma(slotreg):
    return [f"s_add_u32 m0, s{slotreg}, s46", "s_nop 0",
            f"global_load_lds_dwordx4 {vr(WA0,2)}, off" + OPT.get("wm", "").replace("+", " "), f"global_load_lds_dwordx4 {vr(WA1,2)}, off offset:1024" + OPT.get("wm", "").replace("+", " "),
            f"v_lshl_add_u64 {vr(WA0,2)}, {vr(WST,2)}, 0, {vr(WA0,2)}", f"v_lshl_add_u64 {vr(WA1,2)}, {vr(WST,2)}, 0, {vr(WA1,2)}"]

def tag_check(a, x):
    a.I("s_mov_b32 s17, 0x40000")
    a.L("P0_TAG" + x)
    a.I("s_cmp_eq_u32 s55, 0", "s_cbranch_scc1 P0_TAGLD" + x,
        "s_sub_u32 s16, s48, s55", "s_add_u32 s16, s16, 3000", "s_cmp_lt_u32 s16, 6000", "s_cbranch_scc1 P0_TAGOK" + x,
        "s_cmp_lt_u32 s17, 0x3f800", "s_cbranch_scc1 P0_TAGOK" + x)
    a.L("P0_TAGLD" + x)
    a.I("buffer_load_dword v6, v7, s[56:59], 0 offen sc1", "s_waitcnt vmcnt(0)", "v_readfirstlane_b32 s55, v6",
        "s_sub_u32 s17, s17, 1", "s_cmp_lg_u32 s17, 0", "s_cbranch_scc1 P0_TAG" + x)
    a.L("P0_TAGOK" + x)

STREAM = ["buffer_load_dword v122, v114, s[88:91], s100 offen", "buffer_load_dword v123, v114, s[92:95], s100 offen",
          "buffer_load_dword v124, v115, s[96:99], s101 offen"]
def phase0(a):
    LW, LX, LR = 49152, 114688, 147456
    srd(a, 24, 4, 2048 * 2048)
    for i in range(4): a.I(f"buffer_load_dwordx4 {vr(8+4*i,4)}, v3, s[24:27], s19 offen offset:{i*1024}")
    a.I("v_mov_b32 v7, 0", "buffer_load_dword v6, v7, s[56:59], 0 offen sc1")
    NH = int(OPT.get("nh", 5))
    a.I("s_cmp_eq_u32 s20, 0", "s_cselect_b64 s[12:13], s[40:41], s[42:43]", f"s_mov_b32 s16, {NH*896}",
        "s_cmp_eq_u32 s20, 2", "s_cselect_b64 s[12:13], s[6:7], s[12:13]", f"s_cselect_b32 s16, {NH*256}, s16")
    srd(a, 88, 12, 1024 * 1024 * 2)
    a.I("v_lshlrev_b32 v114, 7, v1", "s_sub_u32 s17, s16, 128", "v_min_u32 v114, s17, v114", "s_mul_i32 s92, s16, s2")
    a.I("s_cmp_lg_u32 s20, 3", "s_cbranch_scc1 P0_N7", "s_bitcmp1_b32 s2, 3", "s_cselect_b64 s[88:89], s[10:11], s[8:9]", "s_mov_b32 s90, 0x10000",
        "v_and_b32 v114, 0xf80, v114", "s_lshr_b32 s92, s2, 4", "s_lshl_b32 s92, s92, 12")
    a.L("P0_N7")
    a.I("s_bfe_u32 s22, s2, 0x10003", "s_cmp_eq_u32 s22, 0", "s_cselect_b64 s[12:13], s[8:9], s[10:11]")
    srd(a, 28, 12, 65536)
    a.I("s_lshl_b32 s17, s20, 13")
    a.I("s_and_b32 s16, s2, 7", "s_lshl_b32 s16, s16, 2", "s_bfe_u32 s21, s2, 0x20003", "s_add_u32 s21, s21, s16",
        "s_and_b32 s23, s20, 3", "s_cmp_lt_u32 s20, 4", "s_cselect_b64 s[12:13], s[42:43], s[40:41]", "s_cselect_b32 s18, 32, 0",
        "s_cselect_b32 s46, 8192, 0", "s_lshl_b32 s16, s23, 11", "s_add_u32 s46, s46, s16", "s_add_u32 s46, s46, 16384",
        "v_lshrrev_b32 v2, 4, v1", "s_lshl_b32 s16, s23, 3", "v_add_u32 v4, s16, v2",
        "s_and_b32 s16, s23, 1", "s_lshl_b32 s16, s16, 2", "v_add_u32 v2, s16, v2", "v_bfe_u32 v5, v1, 1, 3", "v_xor_b32 v2, v2, v5",
        "v_cmp_eq_u32 vcc, 7, v2", "v_mov_b32 v5, 7168", "v_mov_b32 v112, 2048", f"v_cndmask_b32 v{WST}, v5, v112, vcc",
        f"v_mul_lo_u32 v4, v4, v{WST}",
        "s_mul_i32 s16, s21, 224", "v_lshl_add_u32 v5, v2, 5, s16", "s_lshl_b32 s16, s21, 6", "s_add_u32 s16, s16, s18",
        "v_mov_b32 v112, s16", "v_cndmask_b32 v5, v5, v112, vcc", "v_add_u32 v4, v4, v5",
        "v_and_b32 v2, 1, v1", "v_lshl_add_u32 v4, v2, 4, v4",
        "v_mov_b32 v5, s12", "v_mov_b32 v112, s6", f"v_cndmask_b32 v{WA0}, v5, v112, vcc",
        "v_mov_b32 v5, s13", "v_mov_b32 v112, s7", f"v_cndmask_b32 v{WA0+1}, v5, v112, vcc",
        "v_mov_b32 v5, 0", f"v_lshl_add_u64 {vr(WA0,2)}, v[4:5], 0, {vr(WA0,2)}",
        f"v_lshlrev_b32 v4, 2, v{WST}", "v_add_u32 v4, -1024, v4" if False else "v_subrev_u32 v4, 1024, v4",
        f"v_lshl_add_u64 {vr(WA1,2)}, v[4:5], 0, {vr(WA0,2)}",
        f"v_lshlrev_b32 v{WST}, 5, v{WST}", f"v_mov_b32 v{WST+1}, 0", "s_mov_b32 s47, 0")
    srd(a, 24, 12, 1024 * 3584 * 2)
    a.I("s_mov_b32 s21, s45", "s_lshl_b32 s23, s21, 15", "s_mov_b32 s36, 0xffff0000",
        "s_waitcnt vmcnt(1)", "s_cmp_ge_u32 s20, 4", "s_cbranch_scc1 P0_NS", "buffer_load_dword v122, v114, s[88:91], s92 offen", "P0_NS:")
    ts(a, 9)
    for r in range(2):
        for d in range(8):
            src = 8 + 8 * r + d
            a.I(f"v_lshlrev_b32 v{32+16*r+2*d}, 16, v{src}", f"v_and_b32 v{33+16*r+2*d}, s36, v{src}")
    def tree2(bases, sq):
        T_ = [(24 + i, bases[i], 64 + 8 * i) for i in range(2)]
        for dst, base, t in T_:
            for i in range(8):
                a.I(f"v_mul_f32 v{t+i}, v{base+2*i}, v{base+2*i}" if sq else f"v_add_f32 v{t+i}, v{base+2*i}, v{base+2*i+1}")
        if sq:
            for dst, base, t in T_:
                for i in range(8): a.I(f"v_fmac_f32 v{t+i}, v{base+2*i+1}, v{base+2*i+1}")
        for s_ in (4, 2):
            for dst, base, t in T_:
                for i in range(s_): a.I(f"v_add_f32 v{t+i}, v{t+i}, v{t+i+s_}")
        for dst, base, t in T_: a.I(f"v_add_f32 v{dst}, v{t}, v{t+1}")
    def wavered(rs, ss):
        for mod in ("row_shr:1 row_mask:0xf bank_mask:0xf bound_ctrl:0", "row_shr:2 row_mask:0xf bank_mask:0xf bound_ctrl:0",
                    "row_shr:4 row_mask:0xf bank_mask:0xf bound_ctrl:0", "row_shr:8 row_mask:0xf bank_mask:0xf bound_ctrl:0",
                    "row_bcast:15 row_mask:0xa bank_mask:0xf", "row_bcast:31 row_mask:0xc bank_mask:0xf"):
            for r in rs: a.I(f"v_add_f32_dpp v{r}, v{r}, v{r} {mod}")
        for r, s_ in zip(rs, ss): a.I(f"v_readlane_b32 s{s_}, v{r}, 63")
    if "p0st" in EXP: ts(a, 1)
    tree2((32, 48), False)
    wavered((24, 25), (40, 41))
    if "p0st" in EXP: ts(a, 2)
    a.I(f"s_mov_b32 s37, {f32(1.0/1024)}")
    a.I("v_mov_b32 v26, s40", "v_mov_b32 v27, s41", "v_mul_f32 v26, s37, v26", "v_mul_f32 v27, s37, v27")
    for r in range(2):
        for i in range(16): a.I(f"v_sub_f32 v{80+16*r+i}, v{32+16*r+i}, v{26+r}")
    tree2((80, 96), True)
    wavered((24, 25), (42, 43))
    a.I("v_mov_b32 v28, s42", "v_mov_b32 v29, s43", "v_mul_f32 v28, s37, v28", "v_mul_f32 v29, s37, v29")
    def rnd(*rs):
        for r in rs: a.I(f"v_cvt_pk_bf16_f32 v{r}, v{r}, v{r}")
        for r in rs: a.I(f"v_lshlrev_b32 v{r}, 16, v{r}")
    a.I(f"s_mov_b32 s38, {f32(1e-5)}")
    rnd(28, 29, 26, 27)
    a.I("v_add_f32 v28, s38, v28", "v_add_f32 v29, s38, v29"); rnd(28, 29)
    a.I("v_sqrt_f32 v28, v28", "v_sqrt_f32 v29, v29"); rnd(28, 29)
    a.I("v_rcp_f32 v28, v28", "v_rcp_f32 v29, v29")
    if "p0st" in EXP: ts(a, 3)
    P_ = [(r, d, 32 + 16 * r + 2 * d) for r in range(2) for d in range(8)]
    if "ln1" in EXP:
        a.I("v_mul_f32 v26, v26, v28", "v_mul_f32 v27, v27, v29")
        for r, d, b in P_: a.I(f"v_fma_f32 v{b}, v{b}, v{28+r}, -v{26+r}", f"v_fma_f32 v{b+1}, v{b+1}, v{28+r}, -v{26+r}")
    else:
        for r, d, b in P_: a.I(f"v_sub_f32 v{b}, v{b}, v{26+r}", f"v_sub_f32 v{b+1}, v{b+1}, v{26+r}")
        for r, d, b in P_: a.I(f"v_cvt_pk_bf16_f32 v{80+8*r+d}, v{b}, v{b+1}")
        for r, d, b in P_: a.I(f"v_lshlrev_b32 v{b}, 16, v{80+8*r+d}", f"v_and_b32 v{b+1}, s36, v{80+8*r+d}")
        for r, d, b in P_: a.I(f"v_mul_f32 v{b}, v{b}, v{28+r}", f"v_mul_f32 v{b+1}, v{b+1}, v{28+r}")
    for r, d, b in P_: a.I(f"v_cvt_pk_bf16_f32 v{8+8*r+d}, v{b}, v{b+1}")
    if "p0st" in EXP: ts(a, 4)
    a.I("s_lshl_b32 s16, s20, 1", "v_and_b32 v2, 15, v1", "v_xor_b32 v2, s16, v2", "v_lshlrev_b32 v4, 8, v1", "v_lshl_add_u32 v4, v2, 4, v4",
        f"v_add_u32 v4, {LX}, v4", "v_xor_b32 v25, 16, v4")
    for r in range(2):
        for p in range(2): a.I(f"ds_write_b128 v{25 if r else 4}, {vr(8+8*r+4*p,4)} offset:{p*16384}")
    a.I("v_lshrrev_b32 v5, 4, v1", "v_lshlrev_b32 v2, 4, v5", "v_xor_b32 v26, v2, v3",
        "s_lshl_b32 s16, s20, 12", f"s_add_u32 s16, s16, {LX}", "v_add_u32 v30, s16, v26",
        "v_xor_b32 v27, 64, v30", "v_xor_b32 v28, 0x80, v30", "v_xor_b32 v29, 0xc0, v30",
        "v_lshlrev_b32 v31, 9, v5", "v_bfe_u32 v2, v1, 2, 2", "v_lshl_add_u32 v31, v2, 6, v31",
        "v_and_b32 v2, 3, v1", "v_lshl_add_u32 v31, v2, 3, v31", f"s_add_u32 s16, s17, {LW}", "v_add_u32 v31, s16, v31",
        "s_lshl_b32 s16, s22, 14", "s_and_b32 s18, s20, 3", "s_lshl_b32 s18, s18, 12", "s_add_u32 s16, s16, s18",
        "s_add_u32 s39, s23, s16", f"s_add_u32 s16, s16, {LX}", "v_add_u32 v24, s16, v26",
        "v_xor_b32 v25, 64, v24", "v_xor_b32 v4, 0x80, v24", "v_xor_b32 v26, 0xc0, v24",
        "s_cmp_ge_u32 s20, 4", "s_cbranch_scc1 P0_B")
    a.I("s_lshl_b32 s18, s20, 14")
    for g in range(4):
        a.I(f"s_add_u32 m0, s18, {LW+g*4096}", f"s_add_u32 s16, s18, {g*4096}")
        for i in range(4): a.I(f"buffer_load_dwordx4 v3, s[28:31], s16 offen offset:{i*1024} lds")
    a.extend(w_dma(47))
    a.I("s_waitcnt lgkmcnt(0)", "s_barrier", "s_waitcnt vmcnt(2)", "v_readfirstlane_b32 s55, v6")
    tag_check(a, "A")
    a.I("s_branch P0_C")
    a.L("P0_B")
    a.I("s_waitcnt lgkmcnt(0)", "s_barrier")
    ts(a, 10)
    for i, r in enumerate((24, 25, 4, 26)): a.I(f"ds_read_b128 {vr(8+4*i,4)}, v{r} offset:{i*1024}")
    for i in range(4): a.I(f"s_waitcnt lgkmcnt({3-i})", f"buffer_store_dwordx4 {vr(8+4*i,4)}, v3, s[32:35], s39 offen offset:{i*1024} sc1")
    a.extend(w_dma(47))
    a.I("s_waitcnt vmcnt(6)", "v_readfirstlane_b32 s55, v6")
    tag_check(a, "B")
    wave_flag(a, 18, FL_X)
    a.I("s_waitcnt vmcnt(2)")
    set_flag(a, 18)
    a.L("P0_C")
    a.I("s_barrier")
    for j in range(4):
        a.I(f"ds_read_b128 {vr(32+4*j,4)}, v{(30, 27, 28, 29)[j]} offset:{j*1024}")
        for d in range(2):
            for rd in range(2):
                a.I(f"ds_read_b64_tr_b16 {vr(64+8*j+4*d+2*rd,2)}, v31 offset:{j*2048+rd*256+d*32}")
    a.I("s_waitcnt lgkmcnt(0)", "s_cmp_eq_u32 s22, 0", "s_cbranch_scc0 P0_V")
    for j in range(4):
        for d in range(2): a.I(mfma16(96 + 4 * d, 64 + 8 * j + 4 * d, 32 + 4 * j, "0" if j == 0 else None))
    a.I("s_branch P0_R")
    a.L("P0_V")
    for j in range(4):
        for d in range(2): a.I(mfma16(96 + 4 * d, 32 + 4 * j, 64 + 8 * j + 4 * d, "0" if j == 0 else None))
    a.L("P0_R")
    a.I("s_lshl_b32 s16, s20, 11", f"s_add_u32 s16, s16, {LR}", "v_add_u32 v4, s16, v3")
    for d in range(2): a.I(f"ds_write_b128 v4, {vr(96+4*d,4)} offset:{d*1024}")
    a.I("s_waitcnt lgkmcnt(0)", "s_barrier")
    a.I("s_cmp_lg_u32 s20, 0", "s_cbranch_scc1 P0_END")
    a.I(f"v_add_u32 v4, {LR}, v3")
    for w in range(8):
        a.I(f"ds_read_b128 {vr(32+8*w,4)}, v4 offset:{w*2048}", f"ds_read_b128 {vr(36+8*w,4)}, v4 offset:{w*2048+1024}")
    a.I("s_waitcnt lgkmcnt(0)")
    for s_ in (4, 2, 1):
        for w in range(s_):
            for i in range(8): a.I(f"v_add_f32 v{32+8*w+i}, v{32+8*w+i}, v{32+8*(w+s_)+i}")
    for d in range(4): a.I(f"v_cvt_pk_bf16_f32 v{8+d}, v{32+2*d}, v{33+2*d}")
    a.I("s_lshr_b32 s16, s21, 1", "s_lshl_b32 s19, s16, 12", f"s_add_u32 s19, s19, {WS_KV}",
        "s_and_b32 s16, s21, 1", "s_lshl_b32 s16, s16, 10", "s_add_u32 s19, s19, s16",
        "s_cmp_eq_u32 s22, 0", "s_cbranch_scc0 P0_SV",
        "buffer_store_dwordx4 v[8:11], v3, s[32:35], s19 offen sc1", "s_branch P0_KF")
    a.L("P0_SV")
    a.I("v_and_b32 v2, 1, v5", "v_lshlrev_b32 v4, 9, v2", "v_and_b32 v2, 15, v1", "v_lshl_add_u32 v4, v2, 4, v4",
        "v_lshrrev_b32 v2, 1, v5", "v_lshl_add_u32 v4, v2, 3, v4",
        "buffer_store_dwordx2 v[8:9], v4, s[32:35], s19 offen offset:2048 sc1",
        "buffer_store_dwordx2 v[10:11], v4, s[32:35], s19 offen offset:2304 sc1")
    a.L("P0_KF")
    if "kvearly" in EXP:
        a.I("s_lshl_b32 s18, s2, 2", f"s_add_u32 s18, s18, {WS_FL+FL_KV}", "s_waitcnt vmcnt(0)")
        set_flag(a, 18)
    a.L("P0_END")

def kv_groups():
    gs = []
    for g in range(2):
        for i in range(4):
            o = [f"s_add_u32 m0, s25, {g*4096}", f"s_add_u32 s26, s24, {g*4096}"] if i == 0 else []
            gs.append(o + [f"buffer_load_dwordx4 v3, s[36:39], s26 offen offset:{i*1024} lds"])
    gs[-1] += ["s_add_u32 s24, s24, 32768", "s_xor_b32 s25, s25, 32768"]
    return gs

def emit_loop(a, label, bodies):
    best = (0, 1)
    i = 0
    while i < len(bodies):
        j = i
        while j < len(bodies) and bodies[j] == bodies[i]: j += 1
        if j - i > best[1] - best[0]: best = (i, j)
        i = j
    for k in range(best[0]): a.extend(bodies[k])
    a.I(f"s_mov_b32 s51, {best[1]-best[0]}")
    a.L(label)
    a.extend(bodies[best[0]])
    a.I("s_sub_u32 s51, s51, 1", "s_cmp_lg_u32 s51, 0", f"s_cbranch_scc1 {label}")
    for k in range(best[1], len(bodies)): a.extend(bodies[k])

def xn_poll(a):
    a.I("s_and_b32 s18, s2, 0xe0", "s_lshr_b32 s16, s20, 2", "s_lshl_b32 s16, s16, 4", "s_add_u32 s18, s18, s16",
        "s_and_b32 s16, s20, 3", "s_lshl_b32 s16, s16, 1", "s_add_u32 s18, s18, s16", "s_lshl_b32 s18, s18, 5", f"s_add_u32 s18, s18, {WS_FL+FL_X+16}",
        "v_and_b32 v2, 3, v1", "v_lshlrev_b32 v8, 2, v2", "v_bfe_u32 v2, v1, 2, 1", "v_lshl_add_u32 v8, v2, 5, v8",
        "v_lshrrev_b32 v2, 3, v1", "v_lshl_add_u32 v8, v2, 8, v8")
    if int(OPT.get("xs", 0)):
        a.extend(poll(18, 16, 8, 17, sleep=int(OPT.get("xs"))))
        return
    a.extend(lanes(16) + ["s_mov_b32 s17, 0x20000", poll_load(18, 8, 17), "s_sleep 3", "G1_PP:", poll_load(18, 8, 18), "s_waitcnt vmcnt(1)",
             "v_cmp_ne_u32 vcc, s55, v17", "s_cbranch_vccz G1_PD", poll_load(18, 8, 17), "s_waitcnt vmcnt(1)",
             "v_cmp_ne_u32 vcc, s55, v18", "s_cbranch_vccz G1_PD", "s_sub_u32 s17, s17, 1", "s_cmp_lg_u32 s17, 0", "s_cbranch_scc1 G1_PP",
             "G1_PD:", "s_mov_b64 exec, -1"])

def g1(a):
    EA = "ea" in EXP.split("_")
    NST = 32; R = 5; SLOT = 32768
    ACC = 128; FA = 64; FW = 96
    def acc(h, u, t): return ACC + (t * 4 + h * 2 + u) * 4
    a.I("s_and_b32 s16, s2, 7", "s_lshl_b32 s16, s16, 2", "s_bfe_u32 s21, s2, 0x20003", "s_add_u32 s21, s21, s16",
        "s_lshr_b32 s22, s2, 5", "s_and_b32 s23, s20, 3", "v_add_u32 v10, 31744, v3",
        "s_lshl_b32 s16, s22, 4", "s_lshl_b32 s17, s20, 1", "s_add_u32 s16, s16, s17", "s_lshl_b32 s44, s16, 15",
        "s_lshl_b32 s45, s20, 11", "s_mov_b32 s47, 0", "s_mov_b32 s50, 0", f"s_mov_b32 s52, {SLOT}",
        *([f"s_mov_b32 s47, {SLOT}", "s_add_u32 s44, s44, 1024"] if EA else []))
    PD = int(OPT.get("pd", 5))
    RH = int(OPT.get("rh", 1)); PX = int(OPT.get("px", 0))
    if PD:
        a.I(f"s_load_dwordx2 s[4:5], s[0:1], {KA_WQ}", f"s_load_dwordx2 s[6:7], s[0:1], {KA_WD}", f"s_load_dwordx2 s[8:9], s[0:1], {KA_WO}",
            f"v_min_u32 v2, {7*RH-1}, v1", "v_lshlrev_b32 v14, 7, v2", f"s_mul_i32 s16, s2, {896*RH}", "v_add_u32 v14, s16, v14",
            f"s_mov_b32 s31, {32*7168*RH}", f"s_mov_b32 s30, {PD*32*7168}", "s_cmp_eq_u32 s23, 0", "s_cbranch_scc1 G1_T0",
            *([f"s_mov_b32 s30, {PX*32*7168}", "v_bfe_u32 v2, v1, 2, 2", "s_lshl_b32 s16, s22, 2", "v_add_u32 v2, s16, v2", "v_mul_u32_u24 v14, 7168, v2",
               "v_and_b32 v2, 3, v1", "v_min_u32 v2, 2, v2", "v_mul_u32_u24 v2, 104, v2", "s_mul_i32 s16, s21, 224", "v_add3_u32 v14, v14, v2, s16",
               "s_cmp_eq_u32 s23, 2", "s_cbranch_scc1 G1_T0"] if PX else []),
            "s_mov_b32 s30, 0x7f000000", "s_mov_b32 s31, 0", "s_cmp_ge_u32 s20, 4", "s_cbranch_scc1 G1_T0", "s_waitcnt lgkmcnt(0)",
            "s_cmp_eq_u32 s20, 1", "s_cbranch_scc0 G1_T2")
        srd(a, 24, 4, 1024 * 1024 * 2)
        a.I("v_and_b32 v2, 1, v1", "v_lshlrev_b32 v14, 7, v2", "s_lshl_b32 s16, s2, 8", "v_add_u32 v14, s16, v14",
            f"s_mov_b32 s31, {32*2048}", f"s_mov_b32 s30, {PD*32*2048}", "s_branch G1_T0")
        a.L("G1_T2")
        if "nolate" not in EXP:
            a.I("s_cmp_eq_u32 s20, 2", "s_cbranch_scc0 G1_T3")
            srd(a, 24, 6, 3584 * 1024 * 2)
            if "lwd" in EXP: a.I("v_min_u32 v2, 8, v1", "v_lshlrev_b32 v14, 7, v2", "s_mov_b32 s31, 1152", "s_mul_i32 s30, s2, 28672")
            a.I("s_branch G1_T0")
            a.L("G1_T3")
            srd(a, 24, 8, 1024 * 1024 * 2)
            a.I("v_min_u32 v2, 2, v1", "v_lshlrev_b32 v14, 7, v2", "s_mov_b32 s31, 384", "s_lshl_b32 s30, s2, 13")
        a.L("G1_T0")
    def touch(): return ["buffer_load_dword v16, v14, s[24:27], s30 offen" + OPT.get("tm", "").replace("+", " "), "s_add_u32 s30, s30, s31"] if PD else []
    def touch0(): return []
    if not EA: xn_poll(a)
    ts(a, 11)
    def adv(reg): return [f"s_add_u32 s{reg}, s{reg}, {SLOT}", f"s_cmp_eq_u32 s{reg}, {SLOT*R}", f"s_cselect_b32 s{reg}, 0, s{reg}"]
    def dma_act():
        return ["s_add_u32 m0, s47, s45", "s_nop 0", "buffer_load_dwordx4 v3, s[32:35], s44 offen lds",
                "buffer_load_dwordx4 v10, s[32:35], s44 offen offset:1024 lds", "s_add_u32 s44, s44, 1024"] + adv(47)
    def dma_w(): return w_dma(52) + adv(52)
    def rdaddr():
        return ["s_lshr_b32 s17, s20, 2", "s_lshl_b32 s16, s17, 13", "v_add_u32 v6, s16, v3",
                "s_and_b32 s19, s21, 1", "s_lshl_b32 s16, s23, 1", "s_add_u32 s40, s16, s19", "s_add_u32 s41, s40, 1",
                "s_mul_i32 s16, s19, 6", "s_sub_u32 s16, 6, s16", "s_cmp_eq_u32 s23, 3", "s_cselect_b32 s40, s16, s40", "s_cselect_b32 s41, 7, s41",
                "v_lshrrev_b32 v2, 4, v1", "v_lshlrev_b32 v7, 11, v2", "v_and_b32 v2, 1, v2", "v_lshlrev_b32 v12, 2, v2",
                "v_bfe_u32 v2, v1, 2, 2", "v_lshl_add_u32 v7, v2, 8, v7", "v_add_u32 v12, v12, v2",
                "v_and_b32 v2, 3, v1", "v_lshl_add_u32 v7, v2, 3, v7", "v_add_u32 v7, 16384, v7",
                "v_xor_b32 v2, s41, v12", "v_lshl_add_u32 v11, v2, 5, v7", "v_xor_b32 v2, s40, v12", "v_lshl_add_u32 v7, v2, 5, v7"]
    def reads():
        o = ["v_add_u32 v8, s50, v6", "v_add_u32 v9, s50, v7", "v_add_u32 v13, s50, v11"]
        for h in range(2):
            for u in range(2):
                for rd in range(2):
                    o.append(f"ds_read_b64_tr_b16 {vr(FW+(h*2+u)*4+2*rd,2)}, v{9 if u == 0 else 13} offset:{h*8192+rd*1024}")
        for t in range(8): o.append(f"ds_read_b128 {vr(FA+t*4,4)}, v8 offset:{t*1024}")
        return o + adv(50)
    def mm(first):
        return [mfma16(acc(h, u, t), FW + (h * 2 + u) * 4, FA + t * 4, "0" if first else None) for t in range(8) for h in range(2) for u in range(2)]
    a.I("s_cmp_ge_u32 s20, 4", "s_cbranch_scc1 G1_B")
    L = Log()
    NP0 = int(OPT.get("np0", 2))
    def proA(js): return [x for j in js for x in (L.note(dma_w(), j) if 0 < j < R - 1 else []) + (L.note(dma_act(), j) if j or not EA else [])]
    a.extend(proA(range(NP0)))
    def kv_flag():
        a.I("s_lshl_b32 s18, s2, 2", f"s_add_u32 s18, s18, {WS_FL+FL_KV}", "s_cmp_eq_u32 s20, 0", "s_cselect_b32 s18, s18, 0x7f000000")
        set_flag(a, 18); L.note(["buffer"], None)
    if not EA: kv_flag()
    a.extend(rdaddr())
    if EA: a.I("s_cmp_eq_u32 s20, 0", "s_cbranch_scc1 G1_W0")
    a.I(f"s_waitcnt vmcnt({L.cnt(0)})", "G1_W0:", "s_barrier")
    a.extend(mixmem(reads(), proA(range(NP0, R)), False))
    E0 = "noe0" not in EXP
    a.I("s_waitcnt lgkmcnt(0)" if E0 else f"s_waitcnt vmcnt({L.cnt(1)}) lgkmcnt(0)", "s_barrier")
    ts(a, 12)
    kv = kv_groups()
    def bodyA(k, first=False):
        o = mm(first)
        if first and E0: o += [f"s_waitcnt vmcnt({L.cnt(1)})", "s_barrier"]
        if first and EA:
            o += ["s_lshl_b32 s18, s2, 2", f"s_add_u32 s18, s18, {WS_FL+FL_KV}", "s_cmp_eq_u32 s20, 0", "s_cselect_b32 s18, s18, 0x7f000000",
                  "v_mov_b32 v17, s55", "v_mov_b32 v18, 0", "s_mov_b64 exec, 1"] + L.note(["buffer_store_dword v17, v18, s[32:35], s18 offen sc1"], None) + ["s_mov_b64 exec, -1"]
        dm = L.note([f"s_mov_b32 s18, {WS_FL+FL_KV}", poll_load(18, 3, 28, True)], None) if k == 27 else []
        dm += (L.note(dma_w(), k - 1 + R) if k - 1 + R < NST else []) + (L.note(dma_act() + touch(), k + R) if k + R < NST else [])
        if k + R < NST and PD: L.l[-1] = None
        if k == 28:
            o += poll(18, 64, 3, 28, True, preloaded=2)
            o += ["s_lshl_b32 s24, s20, 13", f"s_add_u32 s25, s24, {LKV}",
                  f"s_add_u32 s36, s32, {WS_KV}", "s_addc_u32 s37, s33, 0", "s_mov_b32 s38, 0x40000", "s_mov_b32 s39, 0x20000"]
            dm = L.note([x for g in kv for x in g], None)
        if k == 29: dm = L.note([x for g in kv for x in g], None)
        o += mixmem(reads() if k + 1 < NST else [], dm)
        if k + 1 < NST: o += [f"s_waitcnt vmcnt({L.cnt(k + 2)}) lgkmcnt(0)", "s_barrier"]
        return o
    emit_loop(a, "G1_A_LOOP", [bodyA(k, k == 0) for k in range(NST)])
    a.I("s_branch G1_EPI")
    a.L("G1_B")
    M = Log()
    def proB(js): return [x for j in js for x in (M.note(dma_w(), j) if j else []) + (M.note(dma_act(), j) if j or not EA else [])]
    a.extend(proB(range(min(NP0, R - 1))))
    a.extend(rdaddr())
    a.I(f"s_waitcnt vmcnt({M.cnt(0)})", "s_barrier")
    a.extend(proB(range(min(NP0, R - 1), R - 1)))
    a.I(*([] if E0 else [f"s_waitcnt vmcnt({M.cnt(1)})"]), "s_barrier")
    def bodyB(k, first=False):
        dm = M.note(dma_w() + dma_act(), k - 1 + R) + M.note(touch(), None) if k - 1 + R < NST else []
        o = mixmem(reads(), dm) + ([f"s_waitcnt vmcnt({M.cnt(1)})", "s_barrier"] if first and E0 else []) + ["s_waitcnt lgkmcnt(0)"] + mm(first)
        if k + 1 < NST: o += [f"s_waitcnt vmcnt({M.cnt(k + 2)})", "s_barrier"]
        return o
    emit_loop(a, "G1_B_LOOP", [bodyB(k, k == 0) for k in range(NST)])
    a.L("G1_EPI")
    jit(a, 6)
    ts(a, 1)
    a.I("s_lshl_b32 s16, s20, 8", f"s_add_u32 s16, s16, {LC}", "v_lshl_add_u32 v13, v1, 2, s16", "v_mov_b32 v12, 0", "ds_write_b32 v13, v12")
    wave_flag(a, 60, FL_H)
    a.I("s_lshl_b32 s16, s22, 4", "s_lshr_b32 s17, s20, 2", "s_lshl_b32 s17, s17, 3", "s_add_u32 s16, s16, s17", "s_mul_i32 s16, s16, 112",
        "s_mul_i32 s17, s21, 7", "s_add_u32 s17, s17, s40", "s_lshr_b32 s17, s17, 1", "s_add_u32 s16, s16, s17",
        "s_lshl_b32 s16, s16, 10", f"s_add_u32 s61, s16, {WS_H}", "s_cmp_lg_u32 s23, 3", "s_cbranch_scc1 G1_NQ")
    a.I(f"s_mov_b32 s18, {f32(QSCALE)}", "s_lshr_b32 s16, s20, 2", "s_lshl_b32 s16, s16, 13", f"s_add_u32 s16, s16, {LQ}",
        "v_add_u32 v9, s16, v3", "s_lshl_b32 s16, s19, 3", "s_add_u32 s61, s61, s16")
    for t in range(8):
        q0, q1 = acc(0, 1, t), acc(1, 1, t)
        for i in range(4): a.I(f"v_mul_f32 v{q0+i}, s18, v{q0+i}", f"v_mul_f32 v{q1+i}, s18, v{q1+i}")
        a.I(f"v_cvt_pk_bf16_f32 v{FA+4*t}, v{q0}, v{q0+1}", f"v_cvt_pk_bf16_f32 v{FA+4*t+1}, v{q0+2}, v{q0+3}",
            f"v_cvt_pk_bf16_f32 v{FA+4*t+2}, v{q1}, v{q1+1}", f"v_cvt_pk_bf16_f32 v{FA+4*t+3}, v{q1+2}, v{q1+3}",
            f"ds_write_b128 v9, {vr(FA+4*t,4)} offset:{t*1024}")
    a.L("G1_NQ")
    XE = "xlate" not in EXP
    if XE: a.I("s_cmp_lt_u32 s20, 4", "s_cbranch_scc1 G1_PK", "s_waitcnt lgkmcnt(0)", "s_barrier", "s_setprio 3", "G1_PK:")
    a.I("s_cmp_eq_u32 s23, 3", "s_cbranch_scc1 G1_EPQ")
    for t in reversed(range(8)):
        g, u = acc(0, 0, t), acc(1, 0, t)
        for i in range(8): a.I(f"v_max_f32 v{g+i}, 0, v{g+i}")
        for i in range(8): a.I(f"v_mul_f32 v{g+i}, v{g+i}, v{u+i}")
        for d in range(4): a.I(f"v_cvt_pk_bf16_f32 v{HP+4*t+d}, v{g+2*d}, v{g+2*d+1}")
    a.I("s_branch G1_X")
    a.L("G1_EPQ")
    for t in reversed(range(8)):
        g, u = acc(0, 0, t), acc(1, 0, t)
        for i in range(4): a.I(f"v_max_f32 v{g+i}, 0, v{g+i}")
        for i in range(4): a.I(f"v_mul_f32 v{g+i}, v{g+i}, v{u+i}")
        for d in range(2): a.I(f"v_cvt_pk_bf16_f32 v{HP+4*t+d}, v{g+2*d}, v{g+2*d+1}")
    a.L("G1_X")
    a.I("s_cmp_ge_u32 s20, 4", "s_cbranch_scc1 G1_X2", "s_lshl_b32 s16, s20, 11", "v_add_u32 v9, s16, v3")
    for t in range(8): a.I(f"ds_write_b128 v9, {vr(HP+4*t,4)} offset:{(t>>1)*8192+(t&1)*1024}")
    if XE: a.I("s_waitcnt lgkmcnt(0)", "s_barrier", "G1_X2:")
    else: a.I("G1_X2:", "s_waitcnt lgkmcnt(0)", "s_barrier")
    ts(a, 2)

def h_stores(a):
    _n[0] += 1; lab = f"HS{_n[0]}"
    a.I(f"s_sub_u32 s16, s61, {8*112*1024}", "s_cmp_eq_u32 s20, 3", f"s_cbranch_scc1 {lab}")
    for w, n in ((4, lab + "_D"), (2, None)):
        for t in range(8): a.I(f"buffer_store_dwordx{w} {vr(HP+4*t,w)}, v3, s[32:35], s61 offen{SC1}", f"s_add_u32 s61, s61, {112*1024}")
        a.I("s_waitcnt lgkmcnt(0)")
        for t in range(8): a.I(f"buffer_store_dwordx{w} {vr(192+4*t,w)}, v3, s[32:35], s16 offen{SC1}", f"s_add_u32 s16, s16, {112*1024}")
        if n: a.I(f"s_branch {n}"); a.L(lab)
    a.L(lab + "_D")

def attention(a):
    QR = [16, 24]; KB = [32, 48]; VB = [40, 56]; P = 64; SEL = 72; Lr = [76, 80]; S = [96, 112]; O = [128, 144]; C = [160, 176]
    a.I(f"s_add_u32 s36, s32, {WS_KV}", "s_addc_u32 s37, s33, 0", "s_mov_b32 s38, 0x40000", "s_mov_b32 s39, 0x20000")
    a.I("v_bfe_u32 v2, v1, 4, 1", "v_lshlrev_b32 v4, 10, v2", "v_lshrrev_b32 v2, 5, v1", "v_lshl_add_u32 v4, v2, 8, v4",
        "v_and_b32 v2, 15, v1", "v_lshl_add_u32 v4, v2, 4, v4",
        "s_lshl_b32 s16, s20, 12", f"s_add_u32 s16, s16, {LQ}", "v_add_u32 v5, s16, v4")
    for b in range(2):
        for ks in range(2): a.I(f"ds_read_b128 {vr(QR[b]+4*ks,4)}, v5 offset:{b*2048+ks*512}")
    a.I(f"v_add_u32 v6, {LKV}, v4", f"v_add_u32 v7, {LKV+2048}, v3")
    sync_setup(a, LC, 13, 14, 12)
    a.I("s_waitcnt vmcnt(8)")
    sync_block(a, 13, 14, 12, 15)
    def rdK(buf, off): return [f"ds_read_b128 {vr(KB[buf]+4*ks,4)}, v6 offset:{off+ks*512}" for ks in range(2)]
    def rdV(buf, off): return [f"ds_read_b128 {vr(VB[buf]+4*ks,4)}, v7 offset:{off+ks*1024}" for ks in range(2)]
    a.extend(rdK(0, 0) + rdV(0, 0))
    def rsum(b): return f"v_smfmac_f32_16x16x64_bf16 {vr(Lr[b],4)}, {vr(SEL,4)}, {vr(P,8)}, v84"
    a.I("v_and_b32 v2, 4, v1", "v_cmp_eq_u32 vcc, 0, v2", "v_mov_b32 v5, 0x3f803f80", "s_mov_b32 s28, 0", "v_and_b32 v2, 1, v1",
        f"v_cndmask_b32 v{SEL}, 0, v5, vcc", f"v_cndmask_b32 v{SEL+2}, v5, 0, vcc" if False else f"v_xor_b32 v{SEL+2}, v5, v{SEL}",
        f"v_mov_b32 v{SEL+1}, v{SEL}", f"v_mov_b32 v{SEL+3}, v{SEL+2}",
        "s_mov_b32 s16, 0xaaaaaaaa", "v_mul_lo_u32 v84, v2, s16", "v_or_b32 v84, 0x44444444, v84")
    a.I("s_waitcnt lgkmcnt(0)")
    ts(a, 3)
    for b in range(2):
        a.I(mfma32(S[b], KB[0], QR[b], "0"), mfma32(S[b], KB[0] + 4, QR[b] + 4))
    for b in range(2):
        for i in range(16): a.I(f"v_mov_b32 v{O[b]+i}, 0")
        for i in range(4): a.I(f"v_mov_b32 v{Lr[b]+i}, 0")
    for i in range(4): a.I(f"v_mov_b32 v{P+i}, 0", f"v_mov_b32 v{P+4+i}, 0", f"v_mov_b32 v{VB[1]+4+i}, 0")
    for b in range(2):
        s0 = S[b]; m = 8 + 2 * b
        a.I(f"v_max3_f32 v{m}, v{s0}, v{s0+1}, v{s0+2}")
        for i in range(3, 15, 2): a.I(f"v_max3_f32 v{m}, v{m}, v{s0+i}, v{s0+i+1}")
        a.I(f"v_max_f32 v{m}, v{m}, v{s0+15}", f"v_mov_b32 v{m+1}, v{m}")
    for b in range(2):
        m = 8 + 2 * b
        a.I(f"v_permlane32_swap_b32 v{m}, v{m+1}", f"v_max_f32 v{m}, v{m}, v{m+1}", f"v_sub_f32 v{C[b]}, 0, v{m}")
        for i in range(1, 16): a.I(f"v_mov_b32 v{C[b]+i}, v{C[b]}")
    a.I(mfma32(S[0], KB[0], QR[0], C[0]), mfma32(S[0], KB[0] + 4, QR[0] + 4))
    def tile(b, kbuf_next, vbuf, vprev, extra, dg):
        nb = 1 - b; s0 = S[b]
        ex = [f"v_exp_f32 v{s0+i}, v{s0+i}" for i in range(16)]
        cv = [f"v_cvt_pk_bf16_f32 v{P+d}, v{s0+2*d}, v{s0+2*d+1}" for d in range(8)]
        e = list(extra) + [None] * 4
        if "twow" not in EXP:
            o = [mfma32(S[nb], KB[kbuf_next], QR[nb], C[nb]), e[0]] + ex[0:2] + [e[1], ex[2]]
            o += [mfma32(O[nb], VB[vprev] + 4, P + 4), e[2]] + ex[3:6]
            o += [rsum(nb), e[3]] + ex[6:8]
            o += [mfma32(S[nb], KB[kbuf_next] + 4, QR[nb] + 4), cv[0], cv[1], ex[8], cv[2], cv[3], ex[9], ex[10]]
            o += [mfma32(O[b], VB[vbuf], P)] + ex[11:14]
        else:
            o = [mfma32(S[nb], KB[kbuf_next], QR[nb], C[nb]), e[0]] + ex[0:3]
            o += [mfma32(O[nb], VB[vprev] + 4, P + 4), e[1]] + ex[3:6]
            o += [rsum(nb)] + ex[6:8]
            o += [mfma32(S[nb], KB[kbuf_next] + 4, QR[nb] + 4), e[2], cv[0], cv[1], ex[8], cv[2], cv[3], ex[9], ex[10]]
            o += [mfma32(O[b], VB[vbuf], P), e[3]] + ex[11:14]
        o += (dg or []) + [ex[14], ex[15]] + cv[4:8]
        return [x for x in o if x]
    a.I(f"s_setprio {int(OPT.get('ap', 2))}", "s_nop 11")
    dg = kv_groups()
    ONEW = "twow" not in EXP
    def trip(first, sfx):
        def chk(tag):
            return ["v_cmp_gt_u32 vcc, s53, v15", "s_nop 0", f"s_cbranch_vccnz ATT_SP{tag}{sfx}", f"ATT_CT{tag}{sfx}:"]
        for kb in range(8):
            cur = kb & 1; nxt = 1 - cur
            arrive = ["ds_add_u32 v13, v12", "s_add_u32 s53, s53, 1"]
            if kb == 0 and not first: a.extend(chk(0))
            if kb == 6: a.I("s_waitcnt vmcnt(0)", *arrive)
            if kb == 7: a.extend(chk(7) + arrive)
            if kb == 7: a.I("v_xor_b32 v6, 0x8000, v6", "v_xor_b32 v7, 0x8000, v7")
            off = ((kb + 1) & 7) * 4096
            g0, g1 = (dg[2 * kb], dg[2 * kb + 1]) if kb < 4 and not first else (None, ["ds_read_b32 v15, v14"] if kb >= 6 else None)
            a.extend(tile(0, cur, cur, nxt, rdK(nxt, off) + rdV(nxt, off), g0))
            a.I("s_waitcnt lgkmcnt(0)" if ONEW else "s_waitcnt lgkmcnt(2)")
            a.extend(tile(1, nxt, cur, cur, [], g1))
            if kb == 7 and not first: a.I("s_add_u32 s28, s28, 1", "s_cmp_lg_u32 s28, 7")
            if not ONEW or kb >= 6: a.I("s_waitcnt lgkmcnt(0)")
    trip(True, "F")
    a.L("ATT_LOOP")
    jit(a, 8)
    trip(False, "")
    a.I("s_cbranch_scc1 ATT_LOOP")
    a.I(mfma32(O[1], VB[1] + 4, P + 4), rsum(1))
    ts(a, 4)
    for b in range(2): a.I(f"v_add_f32 v{Lr[b]}, v{Lr[b]}, v{Lr[b]+1}")
    a.I("s_setprio 3", f"s_mov_b32 s16, {f32(2.0**100)}")
    for b in range(2):
        a.I(f"v_max3_f32 v{8+b}, abs(v{O[b]}), abs(v{O[b]+1}), v{Lr[b]}", f"v_add_f32 v{10+b}, v{O[b]}, v{O[b]+1}")
    for i in range(2, 16, 2):
        for b in range(2):
            a.I(f"v_max3_f32 v{8+b}, v{8+b}, abs(v{O[b]+i}), abs(v{O[b]+i+1})", f"v_add3_u32 v2, v2, v2, v2" if False else f"v_add_f32 v{10+b}, v{10+b}, v{O[b]+i}",
                f"v_add_f32 v{86+b}, v{O[b]+i+1}, v{Lr[b]}" if i == 2 else f"v_add_f32 v{86+b}, v{86+b}, v{O[b]+i+1}")
    a.I("v_max_f32 v8, v8, v9", "v_add_f32 v10, v10, v11", "v_add_f32 v86, v86, v87", "v_add_f32 v9, v10, v86")
    a.I("v_cmp_nlt_f32 vcc, v8, s16", "v_cmp_u_f32 s[18:19], v9, v9", "s_or_b64 vcc, vcc, s[18:19]")
    if "force" in EXP: a.I("s_mov_b64 vcc, -1")
    a.I("s_cbranch_vccz ATT_FIN")
    cm(a, "fallback: online softmax with the true running max")
    for b in range(2):
        M = 10; AL = 11
        for i in range(16): a.I(f"v_mov_b32 v{O[b]+i}, 0")
        for i in range(4): a.I(f"v_mov_b32 v{Lr[b]+i}, 0")
        a.I(f"v_mov_b32 v{M}, {f32(-3.0e38)}", f"s_mov_b32 s29, 0")
        a.L(f"ATT_FB{b}")
        for ks in range(2):
            a.I(f"buffer_load_dwordx4 {vr(KB[0]+4*ks,4)}, v4, s[36:39], s29 offen offset:{ks*512}",
                f"buffer_load_dwordx4 {vr(VB[0]+4*ks,4)}, v3, s[36:39], s29 offen offset:{2048+ks*1024}")
        a.I("s_waitcnt vmcnt(0)")
        s0 = S[0]
        a.I(mfma32(s0, KB[0], QR[b], "0"), mfma32(s0, KB[0] + 4, QR[b] + 4))
        a.I(f"v_max3_f32 v8, v{s0}, v{s0+1}, v{M}")
        for i in range(2, 16, 2): a.I(f"v_max3_f32 v8, v8, v{s0+i}, v{s0+i+1}")
        a.I("v_mov_b32 v9, v8", "v_permlane32_swap_b32 v8, v9", "v_max_f32 v8, v8, v9",
            f"v_sub_f32 v{AL}, v{M}, v8", f"v_exp_f32 v{AL}, v{AL}", f"v_mov_b32 v{M}, v8")
        for i in range(16): a.I(f"v_sub_f32 v{s0+i}, v{s0+i}, v8")
        for i in range(16): a.I(f"v_exp_f32 v{s0+i}, v{s0+i}")
        for i in range(16): a.I(f"v_mul_f32 v{O[b]+i}, v{O[b]+i}, v{AL}")
        for i in range(4): a.I(f"v_mul_f32 v{Lr[b]+i}, v{Lr[b]+i}, v{AL}")
        for d in range(8): a.I(f"v_cvt_pk_bf16_f32 v{P+d}, v{s0+2*d}, v{s0+2*d+1}")
        a.I(mfma32(O[b], VB[0], P), mfma32(O[b], VB[0] + 4, P + 4), rsum(b))
        a.I("s_add_u32 s29, s29, 4096", f"s_cmp_lg_u32 s29, {64*4096}", f"s_cbranch_scc1 ATT_FB{b}")
        a.I(f"v_add_f32 v{Lr[b]}, v{Lr[b]}, v{Lr[b]+1}")
    a.L("ATT_FIN")
    a.I("v_mov_b32 v23, v13", "v_mov_b32 v24, v14", "v_mov_b32 v25, v12")
    a.I("v_bfe_u32 v2, v1, 4, 1", "v_lshlrev_b32 v5, 15, v2", "v_lshrrev_b32 v2, 5, v1", "v_lshl_add_u32 v5, v2, 8, v5",
        "v_and_b32 v2, 15, v1", "v_lshl_add_u32 v5, v2, 4, v5",
        "s_lshl_b32 s16, s22, 2", "s_add_u32 s16, s16, s20", "s_lshl_b32 s16, s16, 7", "s_add_u32 s16, s16, s21", "s_lshl_b32 s16, s16, 10",
        f"s_add_u32 s16, s16, {WS_O}", "s_add_u32 s17, s16, 65536")
    for b in range(2): a.I(f"v_rcp_f32 v{8+b}, v{Lr[b]}")
    for b in range(2):
        for i in range(16): a.I(f"v_mul_f32 v{O[b]+i}, v{O[b]+i}, v{8+b}")
        for d in range(8): a.I(f"v_cvt_pk_bf16_f32 v{S[b]+d}, v{O[b]+2*d}, v{O[b]+2*d+1}")
        for ks in range(2):
            a.I(f"buffer_store_dwordx4 {vr(S[b]+4*ks,4)}, v5, s[32:35], s{16+b} offen offset:{ks*512}{SC1}")

def down(a):
    R = 8; SLOT = 8192; NH_ = 56; NST = NH_ + 16 - NPA
    FW_ = [32, 64]; AR = 192; ACC = 128
    M32 = "d32" in EXP
    a.I(f"s_setprio {int(OPT.get('bp', 0))}", "s_lshl_b32 s16, s20, 11", "v_add_u32 v9, s16, v3")
    for t in range(8): a.I(f"ds_read_b128 {vr(192+4*t,4)}, v9 offset:{(t>>1)*8192+(t&1)*1024}")
    h_stores(a)
    a.I(f"s_load_dwordx2 s[8:9], s[0:1], {KA_WD}", f"s_load_dwordx2 s[4:5], s[0:1], {KA_WO}",
        "s_and_b32 s21, s2, 1",
        "s_bfe_u32 s16, s2, 0x10001", "s_lshl_b32 s16, s16, 3", "s_bfe_u32 s17, s2, 0x30003", "s_add_u32 s22, s16, s17",
        "s_bfe_u32 s16, s2, 0x10002", "s_lshl_b32 s16, s16, 2", "s_bfe_u32 s17, s2, 0x20006", "s_add_u32 s23, s16, s17",
        "s_lshl_b32 s46, s20, 11",
        "v_lshrrev_b32 v2, 4, v1", "s_lshl_b32 s16, s20, 3", "v_add_u32 v4, s16, v2", "v_lshlrev_b32 v4, 11, v4",
        "v_bfe_u32 v5, v1, 1, 3", *(["v_lshlrev_b32 v6, 1, v2", "v_xor_b32 v6, v6, v5", "v_mov_b32 v7, v6"] if M32 else ["v_xor_b32 v6, v2, v5", "v_xor_b32 v7, 4, v6"]),
        "v_and_b32 v2, 1, v1", "v_lshl_add_u32 v4, v2, 4, v4", "s_lshl_b32 s16, s23, 8", "v_add_u32 v4, s16, v4",
        f"v_add_u32 v5, {4*2048-1024}, v4",
        "v_lshl_add_u32 v4, v6, 5, v4", "v_lshl_add_u32 v5, v7, 5, v5",
        "s_mul_i32 s48, s21, %d" % (1792 * 2048), "s_waitcnt lgkmcnt(0)")
    srd(a, 24, 8, 3584 * 1024 * 2)
    def dma_w(st):
        sw = [*[f"s_mov_b32 s{24+i}, s{4+i}" for i in range(2)], "s_mov_b32 s26, 0x200000", "s_mov_b32 s48, s40"] if st == NH_ else []
        return sw + [f"s_add_u32 m0, s46, {(st % R) * SLOT}", "s_add_u32 s49, s48, 0",
                "buffer_load_dwordx4 v4, s[24:27], s49 offen lds", "s_add_u32 s48, s48, 65536",
                "buffer_load_dwordx4 v5, s[24:27], s49 offen offset:1024 lds"]
    def ld_a(st):
        r = AR + (st % R) * 8
        if st >= NH_:
            return (["s_mov_b32 s44, s41"] if st == NH_ else []) + [f"buffer_load_dwordx4 {vr(r,4)}, v3, s[32:35], s44 offen",
                    f"buffer_load_dwordx4 {vr(r+4,4)}, v27, s[32:35], s44 offen", "s_add_u32 s44, s44, 1024"]
        if M32: return [f"buffer_load_dwordx4 {vr(r,4)}, v10, s[32:35], s44 offen", f"buffer_load_dwordx4 {vr(r+4,4)}, v10, s[32:35], s44 offen offset:512",
                        "s_add_u32 s44, s44, 1024"]
        return [f"buffer_load_dwordx4 {vr(r,4)}, v3, s[32:35], s44 offen", f"buffer_load_dwordx4 {vr(r+4,4)}, v10, s[32:35], s44 offen",
                "s_add_u32 s44, s44, 1024"]
    L = Log()
    NW = int(OPT.get("nw", 2))
    for j in range(NW): a.extend(L.note(dma_w(j), ("w", j)))
    a.I(f"s_waitcnt vmcnt({2*NW})")
    set_flag(a, 60)
    LAG = int(OPT.get("lag", 2))
    for j in range(NW, R - LAG): a.extend(L.note(dma_w(j), ("w", j)))
    a.I("s_lshl_b32 s16, s22, 3", "s_lshl_b32 s17, s20, 1", "s_add_u32 s16, s16, s17", "s_mul_i32 s16, s16, 112",
        "s_mul_i32 s17, s21, 56", "s_add_u32 s16, s16, s17", "s_lshl_b32 s44, s16, 10", f"s_add_u32 s44, s44, {WS_H}",
        )
    if M32:
        a.I("v_bfe_u32 v2, v1, 4, 1", f"v_mul_u32_u24 v10, {112*1024}, v2", "v_lshrrev_b32 v8, 5, v1", "v_lshl_add_u32 v10, v8, 8, v10",
            "v_and_b32 v9, 15, v1", "v_lshl_add_u32 v10, v9, 4, v10",
            "v_lshlrev_b32 v12, 10, v8", "v_bfe_u32 v9, v1, 2, 2", "v_lshl_add_u32 v12, v9, 8, v12",
            "v_lshlrev_b32 v9, 1, v9", "v_xor_b32 v9, v9, v2", "v_lshl_add_u32 v12, v9, 5, v12",
            "v_and_b32 v9, 3, v1", "v_lshl_add_u32 v12, v9, 3, v12")
        for u in range(1, 4): a.I(f"v_xor_b32 v{12+u}, {64*u}, v12")
    else:
        a.I(f"v_add_u32 v10, {112*1024}, v3",
            "v_lshrrev_b32 v2, 4, v1", "v_lshlrev_b32 v12, 10, v2", "v_bfe_u32 v9, v1, 2, 2", "v_lshl_add_u32 v12, v9, 8, v12",
            "v_bfe_u32 v8, v1, 2, 3", "v_lshl_add_u32 v12, v8, 5, v12", "v_and_b32 v9, 3, v1", "v_lshl_add_u32 v12, v9, 3, v12")
        for u in range(1, 8): a.I(f"v_xor_b32 v{12+u}, {32*u}, v12")
    NT = 0
    if "wt2" in EXP:
        a.I("v_min_u32 v2, 55, v1", "v_lshlrev_b32 v24, 7, v2", "s_lshl_b32 s16, s2, 2", "s_add_u32 s16, s16, s20", "s_mul_i32 s16, s16, 7168",
            "buffer_load_dword v25, v24, s[24:27], s16 offen")
    if "wt" in EXP.split("_"):
        a.I("v_lshrrev_b32 v2, 1, v1", "v_lshlrev_b32 v24, 11, v2", "v_and_b32 v2, 1, v1", "v_lshl_add_u32 v24, v2, 7, v24",
            "s_and_b32 s16, s22, 7", "s_lshl_b32 s16, s16, 2", "s_add_u32 s16, s16, s20", "s_mul_i32 s16, s16, %d" % (56 * 2048),
            "s_mul_i32 s17, s21, %d" % (1792 * 2048), "s_add_u32 s16, s16, s17", "s_lshl_b32 s17, s23, 8", "s_add_u32 s16, s16, s17",
            f"s_add_u32 s17, s16, {24*2048}",
            "buffer_load_dword v25, v24, s[24:27], s16 offen", "buffer_load_dword v26, v24, s[24:27], s17 offen")
        NT = 2
    sync_setup(a, LC + 1024, 20, 21, 22)
    a.I("s_lshl_b32 s40, s21, 20", f"s_add_u32 s40, s40, {NPA*65536}", "s_and_b32 s16, s20, 1", "s_lshl_b32 s16, s16, 15", "s_add_u32 s40, s40, s16",
        "s_lshr_b32 s16, s20, 1", "s_lshl_b32 s16, s16, 14", "s_add_u32 s40, s40, s16", "s_lshl_b32 s16, s20, 14", "s_sub_u32 s40, s40, s16",
        "s_lshl_b32 s16, s22, 2", "s_add_u32 s16, s16, s20", "s_lshl_b32 s41, s16, 16", "s_lshl_b32 s16, s21, 14", "s_add_u32 s41, s41, s16",
        f"s_add_u32 s41, s41, {WS_O+NPA*1024}", "v_add_u32 v27, 0x8000, v3",
        f"v_add_u32 v2, {NPA}, v1", "v_and_b32 v8, 3, v2", "v_lshlrev_b32 v28, 8, v8", "v_bfe_u32 v8, v2, 2, 2", "v_lshl_add_u32 v28, v8, 5, v28",
        "s_lshr_b32 s16, s22, 1", "s_lshl_b32 s43, s16, 10", "s_and_b32 s16, s22, 1", "s_lshl_b32 s16, s16, 1", "s_lshr_b32 s17, s20, 1",
        "s_add_u32 s16, s16, s17", "s_lshl_b32 s16, s16, 2", "s_add_u32 s43, s43, s16", "s_lshl_b32 s16, s21, 7", "s_add_u32 s43, s43, s16",
        f"s_add_u32 s43, s43, {WS_FL+FL_O}")
    a.I("v_lshrrev_b32 v2, 4, v1", "v_bfe_u32 v8, v1, 2, 2", "v_lshl_add_u32 v9, v8, 3, v2", "v_lshlrev_b32 v9, 5, v9",
        "v_and_b32 v2, 3, v1", "v_lshl_add_u32 v9, v2, 2, v9",
        "s_lshr_b32 s18, s22, 1", "s_lshl_b32 s18, s18, 5", "s_lshl_b32 s16, s21, 2", "s_add_u32 s18, s18, s16", "s_lshl_b32 s18, s18, 5",
        f"s_add_u32 s18, s18, {WS_FL+FL_H+16}")
    PG = "nopg" not in EXP
    a.extend(poll(18, 8 if PG else 64, 9, sleep=int(OPT.get("hs", 2))))
    ts(a, 3)
    L.l = []
    for j in range(R - 1): a.extend(L.note(ld_a(j), ("a", j)))
    if PG: a.extend(L.note([poll_load(18, 9, 24), "s_mov_b32 s45, 44"], ("f", 0)))
    def need(k):
        last = max([i for i, t in enumerate(L.l) if (t[0] in "af" and t[1] <= k) or (t[0] == "w" and t[1] <= k + 1 + LAG)], default=-1)
        return len(L.l) - 1 - last
    def reads(st):
        if M32: return [f"ds_read_b64_tr_b16 {vr(FW_[st&1]+(ks*4+nb)*4+2*rd,2)}, v{12+nb} offset:{(st % R)*SLOT+ks*2048+rd*4096}"
                        for ks in range(2) for nb in range(4) for rd in range(2)]
        return [f"ds_read_b64_tr_b16 {vr(FW_[st&1]+u*4+2*rd,2)}, v{12+u} offset:{(st % R)*SLOT+rd*4096}" for u in range(8) for rd in range(2)]
    sync_block(a, 20, 21, 22, 23)
    a.extend(reads(0))
    a.I("ds_read_b32 v23, v21", f"s_mov_b32 s53, {2 - LAG}", f"s_setprio {int(OPT.get('dp', 1))}")
    def body(k):
        if M32: m = [mfma32(ACC + nb * 16, FW_[k & 1] + (ks * 4 + nb) * 4, AR + (k % R) * 8 + ks * 4, "0" if k + ks == 0 else None) for ks in range(2) for nb in range(4)]
        else: m = [mfma16(ACC + (t * 8 + u) * 4, FW_[k & 1] + u * 4, AR + (k % R) * 8 + t * 4, "0" if k == 0 else None) for u in range(8) for t in range(2)]
        if k + 1 >= NST: return [f"s_waitcnt vmcnt({need(k)}) lgkmcnt(0)"] + m
        h0, h1 = (1, 7) if M32 else (2, 14)
        CP = "nocp" not in EXP and not PT
        o = (["s_setprio 3"] if CP else []) + [f"s_waitcnt vmcnt({need(k)}) lgkmcnt(0)", "v_cmp_gt_i32 vcc, s53, v23"]
        o += ([f"s_setprio {int(OPT.get('dp', 1))}"] if CP else []) + ["ds_add_u32 v20, v22", "s_add_u32 s53, s53, 1"]
        if PT: o += [f"s_setprio {1 if (k % R) < PT else 0}"]
        o += m[:h0] + [f"s_nop {2 - h0 - (1 if PT else 0)}"] * (2 - h0 - (1 if PT else 0) >= 0) + (["s_cbranch_vccnz @SPIN"] if "nosync" not in EXP else []) + ["@CONT:"]
        if TH and k % 4 == 2:
            o += ["s_setprio 3", "v_cmp_gt_u32 vcc, s47, v25", f"s_setprio {int(OPT.get('dp', 1))}", f"s_add_u32 s47, s47, {TH}", "s_min_u32 s47, s47, 17",
                  "s_cbranch_vccnz @TSP", "@TCT:"]
        if PG and k % 8 == 0 and k <= 40:
            o += ["s_lshr_b64 s[28:29], -1, s45", "s_setprio 3", "v_cmp_ne_u32 vcc, s55, v24", f"s_setprio {int(OPT.get('dp', 1))}",
                  "s_sub_u32 s45, s45, 10", "s_max_i32 s45, s45, 0", "s_and_b64 vcc, vcc, s[28:29]", "s_cbranch_scc1 @FSP", "@FCT:"]
        dm = (L.note(dma_w(k - LAG + R), ("w", k - LAG + R)) if k - LAG + R < NST else []) + (L.note(ld_a(k - 1 + R), ("a", k - 1 + R)) if k - 1 + R < NH_ else [])
        OL = int(OPT.get("ol", 3))
        if k + OL + 2 == NH_: dm += L.note([poll_load(43, 28, 29)], ("f", k + 2))
        if k + OL == NH_:
            o += lanes(16 - NPA) + ["v_cmp_ne_u32 vcc, s55, v29", "s_mov_b64 exec, -1", "s_cbranch_vccnz DN_OS", "DN_OC:"]
        if NH_ <= k + OL < NST: dm += L.note(ld_a(k + OL), ("a", k + OL))
        if PG and k % 8 == 4 and k <= 44: dm += L.note([poll_load(18, 9, 24)], ("f", k + 4))
        if "dnodma" in EXP: dm = []
        fill = mixmem(reads(k + 1), dm, False)
        FR = int(OPT.get("fr", 5 if M32 else 10))
        rd = reads(k + 1) + ["ds_read_b32 v23, v21"] + (["ds_read_b32 v25, v26"] if TH and k % 4 == 1 else [])
        gs = groups_of(dm) if dm else []
        if "vend" in EXP:
            o += interleave(m[h0:FR], rd)
            rest = m[FR:]
            for i, x in enumerate(rest):
                o += [x] + [y for g in gs[(len(gs) * i) // len(rest):(len(gs) * (i + 1)) // len(rest)] for y in g]
            return o
        n = len(m) - h0; nr = FR - h0
        for i, x in enumerate(m[h0:]):
            o += [x] + (rd[(len(rd) * i) // nr:(len(rd) * (i + 1)) // nr] if i < nr else [])
            o += [y for g in gs[(len(gs) * i) // n:(len(gs) * (i + 1)) // n] for y in g]
        return o
    PT = int(OPT.get("pt", 0))
    TH = int(OPT.get("th", 0))
    if TH: a.I("v_subrev_u32 v26, 1024, v21", f"s_mov_b32 s47, {int(OPT.get('th0', 3))}")
    bodies = [body(k) for k in range(NST)]
    U = R
    for head in range(0, R + U + 1):
        nl = (NH_ - R - head) // U
        if all(bodies[k] == bodies[head + (k - head) % U] for k in range(head, head + nl * U)): break
    else: raise AssertionError
    spins = []
    def emit(k):
        spins.append(k)
        a.extend([x.replace("@SPIN", f"DN_SP{k}").replace("@CONT", f"DN_CT{k}").replace("@FSP", f"DN_FS{k}").replace("@FCT", f"DN_FC{k}").replace("@TSP", f"DN_TS{k}").replace("@TCT", f"DN_TC{k}") for x in bodies[k]])
    for k in range(head): emit(k)
    a.I(f"s_mov_b32 s51, {nl}")
    a.L("DN_LOOP")
    jit(a, 7)
    for k in range(head, head + U): emit(k)
    a.I("s_sub_u32 s51, s51, 1", "s_cmp_lg_u32 s51, 0", "s_cbranch_scc1 DN_LOOP")
    for k in range(head + nl * U, NST): emit(k)
    ts(a, 4)
    assert not M32
    jit(a, 5)
    XR = 32; PR = 64
    a.I("s_setprio 3", f"s_load_dwordx2 s[10:11], s[0:1], {KA_X}", f"s_load_dwordx2 s[12:13], s[0:1], {KA_OUT}",
        "s_lshl_b32 s16, s22, 2", "s_add_u32 s16, s16, s20", "s_lshl_b32 s16, s16, 16", "s_lshl_b32 s17, s23, 8", "s_add_u32 s42, s16, s17",
        "s_lshl_b32 s17, s23, 12", "s_add_u32 s43, s16, s17", f"s_add_u32 s43, s43, {WS_P}", "s_add_u32 s44, s43, 0x8000",
        "s_lshl_b32 s16, s20, 14", f"s_add_u32 s16, s16, {LKV}", "v_add_u32 v9, s16, v3", "v_subrev_u32 v26, 1024, v21",
        f"s_mov_b32 s53, {NA_END}", "s_mov_b32 s19, 0xffff0000", "s_lshr_b32 s40, s20, 1")
    xsel(a, 24)
    wave_flag(a, 60, FL_O)
    a.I("s_waitcnt lgkmcnt(0)")
    srd(a, 28, 10, 2048 * 2048); srd(a, 36, 12, 2048 * 2048)
    a.I("s_cmp_lg_u32 s40, s21", "s_cbranch_scc1 DN_NX", "s_add_u32 s17, s42, 0x8000")
    for t in range(2):
        for c in range(4): a.I(f"buffer_load_dwordx4 {vr(XR+16*t+4*c,4)}, v24, s[28:31], s{42 if t == 0 else 17} offen offset:{c*64}")
    a.L("DN_NX")
    a.I("ds_read_b32 v23, v26", "s_waitcnt lgkmcnt(0)", "v_cmp_gt_u32 vcc, s53, v23", "s_cbranch_vccz DN_AOK", "s_sleep 1", "s_branch DN_NX")
    a.L("DN_AOK")
    ts(a, 5)
    for i in range(16): a.I(f"ds_read_b128 {vr(192+4*i,4)}, v9 offset:{i*1024}")
    for i in range(16):
        if i % 4 == 0: a.I(f"s_waitcnt lgkmcnt({12 - i})")
        for j in range(4): a.I(f"v_add_f32 v{ACC+4*i+j}, v{ACC+4*i+j}, v{192+4*i+j}")
    a.I("s_cmp_eq_u32 s40, s21", "s_cbranch_scc1 DN_FIN")
    for t in range(2):
        for c in range(4):
            g = ACC + (t * 8 + c * 2) * 4; pk = 192 + (t * 4 + c) * 4
            for d in range(4): a.I(f"v_cvt_pk_bf16_f32 v{pk+d}, v{g+2*d}, v{g+2*d+1}")
            a.I(f"buffer_store_dwordx4 {vr(pk,4)}, v3, s[32:35], s{43+t} offen offset:{c*1024}{SC1}")
    a.I("s_waitcnt vmcnt(0)")
    set_flag(a, 60)
    tl_dump(a, 13)
    a.I("s_endpgm")
    a.L("DN_FIN")
    a.I("s_xor_b32 s18, s60, 32", "v_mov_b32 v25, 0", "s_waitcnt vmcnt(0)")
    for i in range(8): a.I(f"v_permlane16_swap_b32 v{XR+4*i}, v{XR+4*i+2}", f"v_permlane16_swap_b32 v{XR+4*i+1}, v{XR+4*i+3}")
    a.extend(lanes(1) + [poll_load(18, 25, 27), "s_mov_b64 exec, -1"])
    for i in range(32): a.I(f"v_lshlrev_b32 v{192+2*i}, 16, v{XR+i}", f"v_and_b32 v{193+2*i}, s19, v{XR+i}")
    for i in range(64): a.I(f"v_add_f32 v{ACC+i}, v{ACC+i}, v{192+i}")
    a.extend(poll(18, 1, 25, 27, preloaded=0, sleep=1))
    ts(a, 6)
    for t in range(2):
        for c in range(4): a.I(f"buffer_load_dwordx4 {vr(PR+16*t+4*c,4)}, v3, s[32:35], s{43+t} offen offset:{c*1024}")
    for i in range(8):
        g = ACC + 8 * i; pk = 32 + 4 * i
        a.I(f"s_waitcnt vmcnt({7 - i + i})")
        for d in range(4): a.I(f"v_lshlrev_b32 v{192+2*d}, 16, v{PR+4*i+d}", f"v_and_b32 v{193+2*d}, s19, v{PR+4*i+d}")
        for d in range(8): a.I(f"v_add_f32 v{g+d}, v{g+d}, v{192+d}")
        for d in range(4): a.I(f"v_cvt_pk_bf16_f32 v{pk+d}, v{g+2*d}, v{g+2*d+1}")
        a.I(f"v_permlane16_swap_b32 v{pk}, v{pk+2}", f"v_permlane16_swap_b32 v{pk+1}, v{pk+3}",
            f"buffer_store_dwordx4 {vr(pk,4)}, v24, s[36:39], s42 offen offset:{(i&3)*64}" + OPT.get("om", "").replace("+", " "))
        if i == 3: a.I("s_add_u32 s42, s42, 0x8000")
    tl_dump(a, 13)
    a.I("s_endpgm")
    a.L("DN_OS")
    a.extend(poll(43, 16 - NPA, 28, 29, sleep=2))
    a.I("s_branch DN_OC")
    for k in spins:
        if k + 1 >= NST: continue
        if any("@TSP" in x for x in bodies[k]):
            a.L(f"DN_TS{k}")
            a.I("s_sleep 4", "ds_read_b32 v25, v26", "s_waitcnt lgkmcnt(0)", f"v_add_u32 v25, {TH}, v25", "v_cmp_gt_u32 vcc, s47, v25",
                f"s_cbranch_vccnz DN_TS{k}", f"s_branch DN_TC{k}")
        if any("@FSP" in x for x in bodies[k]):
            a.L(f"DN_FS{k}")
            a.I("s_mov_b32 s17, 0x40000")
            a.L(f"DN_FL{k}")
            a.I(poll_load(18, 9, 24), "s_waitcnt vmcnt(0)", "v_cmp_ne_u32 vcc, s55, v24", "s_and_b64 vcc, vcc, s[28:29]",
                f"s_cbranch_scc0 DN_FC{k}", "s_sleep 2", "s_sub_u32 s17, s17, 1", "s_cmp_lg_u32 s17, 0", f"s_cbranch_scc1 DN_FL{k}", f"s_branch DN_FC{k}")
        a.L(f"DN_SP{k}")
        a.I("ds_read_b32 v23, v21", "s_waitcnt lgkmcnt(0)", "v_add_u32 v23, 1, v23", "v_cmp_gt_i32 vcc, s53, v23",
            f"s_cbranch_vccnz DN_SP{k}", f"s_branch DN_CT{k}")

NPA = 10
NA_END = 1 + 16 + 4
def wo(a):
    FW = [32, 128]; ACC = 64; OA = 160; D = 12; NP = NPA; SW = 99
    a.I(f"s_load_dwordx2 s[8:9], s[0:1], {KA_WO}",
        "s_and_b32 s21, s2, 1",
        "s_bfe_u32 s16, s2, 0x10001", "s_lshl_b32 s16, s16, 3", "s_bfe_u32 s17, s2, 0x30003", "s_add_u32 s22, s16, s17",
        "s_bfe_u32 s16, s2, 0x10002", "s_lshl_b32 s16, s16, 2", "s_bfe_u32 s17, s2, 0x20006", "s_add_u32 s23, s16, s17",
        "v_lshrrev_b32 v2, 4, v1", "s_lshl_b32 s16, s20, 3", "v_add_u32 v4, s16, v2", "v_lshlrev_b32 v4, 11, v4",
        "v_bfe_u32 v5, v1, 1, 3", "v_lshlrev_b32 v6, 1, v2", "v_xor_b32 v6, v6, v5", "v_mov_b32 v7, v6",
        "v_and_b32 v2, 1, v1", "v_lshl_add_u32 v4, v2, 4, v4", "s_lshl_b32 s16, s23, 8", "v_add_u32 v4, s16, v4",
        f"v_add_u32 v5, {4*2048-1024}, v4", "v_lshl_add_u32 v4, v6, 5, v4", "v_lshl_add_u32 v5, v7, 5, v5",
        "s_lshl_b32 s48, s21, 20", "s_lshl_b32 s46, s20, 11", f"s_add_u32 s46, s46, {LKV}",
        "s_lshl_b32 s16, s22, 2", "s_add_u32 s16, s16, s20", "s_lshl_b32 s44, s16, 16", "s_lshl_b32 s16, s21, 14", "s_add_u32 s44, s44, s16",
        f"s_add_u32 s44, s44, {WS_O}",
        "v_bfe_u32 v2, v1, 4, 1", "v_lshlrev_b32 v10, 15, v2", "v_lshrrev_b32 v2, 5, v1", "v_lshl_add_u32 v10, v2, 8, v10",
        "v_and_b32 v2, 15, v1", "v_lshl_add_u32 v10, v2, 4, v10")
    wave_flag(a, 60, FL_O)
    a.I("s_waitcnt vmcnt(0) lgkmcnt(0)")
    set_flag(a, 60)
    srd(a, 24, 8, 1024 * 1024 * 2)
    RT = int(OPT.get("rt", 0))
    a.I("s_and_b32 s16, s23, 3", f"s_mul_i32 s50, s16, {RT}", "s_mov_b32 s51, s50")
    def step(r): return [f"s_add_u32 s{r}, s{r}, 1", f"s_cmp_eq_u32 s{r}, {NP}", f"s_cselect_b32 s{r}, 0, s{r}"]
    def w_dma3(p):
        return [f"s_add_u32 m0, s46, {p * 8192}", "s_lshl_b32 s49, s50, 16", "s_add_u32 s49, s49, s48", "buffer_load_dwordx4 v4, s[24:27], s49 offen lds"] + \
               step(50) + ["buffer_load_dwordx4 v5, s[24:27], s49 offen offset:1024 lds"]
    def o_load(p):
        r = OA + (p % D) * 8
        return ["s_lshl_b32 s45, s51, 10", "s_add_u32 s45, s45, s44", f"buffer_load_dwordx4 {vr(r,4)}, v10, s[32:35], s45 offen"] + step(51) + \
               [f"buffer_load_dwordx4 {vr(r+4,4)}, v10, s[32:35], s45 offen offset:512"]
    sync_block(a, 23, 24, 25, 26)
    for p in range(NP): a.extend(w_dma3(p))
    a.I("v_lshrrev_b32 v2, 5, v1", "v_lshlrev_b32 v12, 10, v2", "v_bfe_u32 v9, v1, 2, 2", "v_lshl_add_u32 v12, v9, 8, v12",
        "v_lshlrev_b32 v9, 1, v9", "v_bfe_u32 v2, v1, 4, 1", "v_xor_b32 v9, v9, v2", "v_lshl_add_u32 v12, v9, 5, v12",
        "v_and_b32 v9, 3, v1", "v_lshl_add_u32 v12, v9, 3, v12", f"v_add_u32 v12, {LKV}, v12")
    for u in range(1, 4): a.I(f"v_xor_b32 v{12+u}, {64*u}, v12")
    for u in range(4): a.I(f"v_add_u32 v{16+u}, 0x10000, v{12+u}")
    a.I("v_and_b32 v2, 3, v1", "v_lshlrev_b32 v9, 8, v2", "v_bfe_u32 v2, v1, 2, 2", "v_lshl_add_u32 v9, v2, 5, v9",
        "v_bfe_u32 v2, v1, 4, 1", "v_lshl_add_u32 v9, v2, 2, v9",
        "s_lshr_b32 s16, s22, 1", "s_lshl_b32 s18, s16, 10", "s_and_b32 s16, s22, 1", "s_lshl_b32 s16, s16, 3", "s_add_u32 s18, s18, s16",
        "s_lshl_b32 s16, s21, 7", "s_add_u32 s18, s18, s16", f"s_add_u32 s18, s18, {WS_FL+FL_O}")
    a.I("s_cmp_lg_u32 s20, 0", "s_cbranch_scc1 WO_NPL")
    a.I(f"s_mov_b32 exec_lo, {((1 << NP) - 1) * 0x10001:#x}", "s_mov_b32 exec_hi, 0")
    a.extend(poll(18, 64, 9, sleep=int(OPT.get("os", 4))))
    a.I("s_mov_b64 exec, -1")
    a.I("WO_NPL:", "s_waitcnt vmcnt(0)")
    sync_block(a, 23, 24, 25, 26, sleep=True)
    ts(a, 5)
    L = Log()
    nxt = int(OPT.get("o0", 4))
    for p in range(nxt): a.extend(L.note(o_load(p), p))
    a.I(f"s_setprio {int(OPT.get('wp', 0))}")
    def reads(p):
        sl = p % 10
        return [f"ds_read_b64_tr_b16 {vr(FW[p&1]+(ks*4+nb)*4+2*rd,2)}, v{(12 if sl < 8 else 16)+nb} offset:{(sl&7)*8192+ks*4096+rd*2048}"
                for ks in range(2) for nb in range(4) for rd in range(2)]
    a.extend(reads(0))
    for p in range(NP):
        wc = L.cnt(p)
        a.I(f"s_waitcnt vmcnt({wc}) lgkmcnt(0)")
        if "wost" in EXP and p in (0, 4): ts(a, {0: 9, 4: 10}[p])
        if "wost" in EXP and p == 9: ts(a, 11)
        if "wost" in EXP and p == SW: ts(a, 6)
        extra = L.note([x for q in range(10, NP) for x in w_dma3(q)], 99) if p == SW else []
        for _ in range(3):
            if nxt < NP and nxt < p + D: extra += L.note(o_load(nxt), nxt); nxt += 1
        m = [mfma32(ACC + nb * 16, FW[p & 1] + (ks * 4 + nb) * 4, OA + (p % D) * 8 + 4 * ks, "0" if p + ks == 0 else None) for ks in range(2) for nb in range(4)]
        rd = reads(p + 1) if p + 1 < NP else []
        gs = groups_of(extra) if extra else []
        for i, x in enumerate(m):
            a.I(x); a.extend(rd[3 * i:3 * i + 3])
            a.extend([y for g in gs[(len(gs) * i) // 8:(len(gs) * (i + 1)) // 8] for y in g])
    a.I("s_setprio 3")
    sync_block(a, 23, 24, 25, 26)
    a.I("s_lshl_b32 s16, s20, 14", f"s_add_u32 s16, s16, {LKV}", "v_bfe_u32 v2, v1, 4, 1", "v_lshlrev_b32 v9, 13, v2",
        "v_lshrrev_b32 v2, 5, v1", "v_lshl_add_u32 v9, v2, 8, v9", "v_and_b32 v2, 15, v1", "v_lshl_add_u32 v9, v2, 4, v9", "v_add_u32 v9, s16, v9")
    for nb in range(4):
        for j in range(4): a.I(f"ds_write_b128 v9, {vr(ACC+16*nb+4*j,4)} offset:{(2*nb+(j>>1))*1024+(j&1)*512}")
    a.I("ds_add_u32 v23, v25", "s_waitcnt lgkmcnt(0)")

def fused():
    a = Asm()
    cm(a, "One persistent launch, 256 workgroups x 8 waves (one per CU, all resident).  Workgroups hand data to each other through d_ws:",
          "write-through (sc1) stores, s_waitcnt vmcnt(0), then a flag word holding this launch's tag; consumers poll the flags (sc1 loads,",
          "bounded spins with a short back-off) and never touch a hand-off line before its flag is up.",
          "phase 0: layernorm + K/V projection | G1: gate, up and one head of q per tile | attention (waves 0-3) beside the down projection",
          "(waves 4-7) | o @ wo on the same output tile, summed through LDS | halves exchanged between the two K halves, + x, stored.")
    ts(a, 0)
    a.I("s_cmp_ge_u32 s2, 256", "s_cbranch_scc1 F_END",
        f"s_load_dwordx8 s[4:11], s[0:1], {KA_X}", f"s_load_dwordx4 s[40:43], s[0:1], {KA_WG}",
        f"s_load_dwordx4 s[12:15], s[0:1], {KA_DBG}", "s_memrealtime s[48:49]",
        "v_lshrrev_b32 v2, 6, v0", "v_and_b32 v1, 63, v0", "v_readfirstlane_b32 s20, v2", "v_lshlrev_b32 v3, 4, v1",
        "s_lshr_b32 s21, s2, 4", "s_lshl_b32 s21, s21, 3", "s_and_b32 s16, s2, 7", "s_add_u32 s45, s21, s16", "s_lshl_b32 s23, s45, 15",
        "s_mov_b32 s54, s20", "s_lshl_b32 s16, s20, 12", "s_add_u32 s19, s23, s16", "s_waitcnt lgkmcnt(0)")
    srd(a, 32, 14, WS_SIZE); srd(a, 56, 12, 256)
    cm(a, "workgroup 0 publishes the launch tag in d_debug[0]; it only tells this launch's flags from those an earlier launch left in d_ws")
    a.I("s_or_b32 s16, s2, s20", "s_cmp_lg_u32 s16, 0", "s_cbranch_scc1 F_NT",
        "s_or_b32 s16, s48, 1", "v_mov_b32 v2, s16", "v_mov_b32 v8, 0", "s_mov_b64 exec, 1",
        "buffer_store_dword v2, v8, s[56:59], 0 offen sc1", "s_mov_b64 exec, -1")
    a.L("F_NT")
    cm(a, "---- phase 0: layernorm of 16 tokens (rounded like the reference), K or V of those tokens")
    jit(a, 0)
    phase0(a)
    jit(a, 1)
    ts(a, 8)
    if "p0st" in EXP:
        tl_dump(a, 13); a.I("s_endpgm")
    cm(a, "---- G1: 256 tokens x (112 gate + 112 up + 32 q columns), 5-slot LDS ring, waves 0-3 / 4-7 alternate MFMA and memory phases")
    g1(a)
    a.I("s_and_b32 s20, s54, 3", "s_cmp_ge_u32 s54, 4", "s_cbranch_scc1 F_B")
    cm(a, "---- attention: one head, 64 queries per wave.  Shift = row max of the first key block (enters as the C operand);",
          "after the loop a run-time check (sums and outputs finite, < 2^100) falls back to an online softmax with the true running max")
    jit(a, 2)
    attention(a)
    cm(a, "---- o @ wo, first heads of this tile's K half")
    jit(a, 3)
    wo(a)
    tl_dump(a, 13)
    a.I("s_endpgm")
    if "ablock" not in EXP:
        for tag in ("0", "7", "7F"):
            a.L(f"ATT_SP{tag}")
            a.I("ds_read_b32 v15, v14", "s_waitcnt lgkmcnt(0)", "v_cmp_gt_u32 vcc, s53, v15", f"s_cbranch_vccnz ATT_SP{tag}", f"s_branch ATT_CT{tag}")
    a.L("F_B")
    cm(a, "---- down projection (K half) + remaining heads of o @ wo, then the final sum")
    jit(a, 4)
    down(a)
    a.L("F_END")
    a.I("s_endpgm")
    return a, dict(grid=256, block=512, lds=163840, vgpr=256)

if __name__ == "__main__":
    path = sys.argv[1] if len(sys.argv) > 1 else "cdna_kernels/" + NAME + ".s"
    opts = dict(o.split("=") for o in sys.argv[2:])
    NPA = int(opts.get("npa", 8))
    OPT = opts; EXP = opts.get("exp", ""); TL = bool(int(opts.get("tl", 0)))
    G.VERB = bool(int(opts.get("verb", 0)))
    SC1 = opts.get("sm", "+sc1").replace("+", " ")
    G.build([(NAME if int(opts.get("single", 0)) else "fused8", fused())], path)
```

```python
import sys
from asmlib import *
import gen as G
from gen import (NAME, KA_X, KA_WQ, KA_WK, KA_WV, KA_WO, KA_WG, KA_WU, KA_WD, KA_OUT, KA_DBG, KA_WS,
                 WS_XN, WS_KV, WS_O, WS_H, WS_P, WS_SIZE, f32, vr, srd, mfma32, mfma16, QSCALE, mix2, front_pattern)
WS_FL = 0x0480000
FL_KV, FL_X, FL_H, FL_O, FL_P = 0, 4096, 12288, 20480, 24576
WS_TL = 0x3F10000
LKV = 65536
LQ = 131072
LC = 147456
HP = 224
TL = False; EXP = ""; OPT = {}
SC1 = " sc1"

def cm(a, *lines):
    for l in lines: a.items.append(Ins("; " + l))
def ts(a, i):
    if TL: a.I(f"s_mem{'' if 'cyc' in EXP else 'real'}time s[{62+2*i}:{63+2*i}]")
def tl_dump(a, n):
    if not TL: return
    a.I("s_waitcnt vmcnt(0) lgkmcnt(0)")
    ts(a, 7)
    if "hd" in EXP.split("_"):
        a.I("s_waitcnt lgkmcnt(0)", "s_and_b32 s90, s54, 3", "s_cmp_lg_u32 s90, 0", "s_cbranch_scc1 F_END", "s_sleep 127", "s_sleep 127", "s_sleep 127",
            "v_mov_b32 v1, 0", "s_mov_b64 exec, 1", "s_not_b32 s90, s62", "v_mov_b32 v2, s90",
            "buffer_atomic_umax v2, v1, s[56:59], 0 offen offset:4", "s_lshr_b32 s90, s54, 2", "s_mul_i32 s90, s90, 0")
        lab = f"HD{len(a.items)}"
        for j, i in enumerate((0, 8, 11, 12, 1, 2, 3, 4, 5, 7)):
            if j == 6: a.I("s_cmp_ge_u32 s54, 4", f"s_cbranch_scc1 {lab}")
            if j in (2, 3): a.I("s_cmp_ge_u32 s54, 4", f"s_cselect_b32 s{62+2*i}, 0, s{62+2*i}")
            a.I(f"v_mov_b32 v2, s{62+2*i}", f"buffer_atomic_umax v2, v1, s[56:59], 0 offen offset:{8+4*j}")
        a.I("s_endpgm")
        a.L(lab)
        for j, i in enumerate((3, 4, 7)):
            a.I(f"v_mov_b32 v2, s{62+2*i}", f"buffer_atomic_umax v2, v1, s[56:59], 0 offen offset:{48+4*j}")
        return
    a.I("s_waitcnt lgkmcnt(0)", "s_lshl_b32 s90, s2, 3", "s_add_u32 s90, s90, s54", "s_lshl_b32 s90, s90, 6",
        f"s_add_u32 s90, s90, {WS_TL}", "v_mov_b32 v1, 0", "s_mov_b64 exec, 1")
    for i in range(n):
        a.I(f"v_mov_b32 v2, s{62+2*i}", f"buffer_store_dword v2, v1, s[32:35], s90 offen offset:{4*i}")

_n = [0]
def jit(a, k):
    J = int(OPT.get("jit", 0))
    if not J: return
    _n[0] += 1; lab = f"JIT{_n[0]}"
    a.I(f"s_mul_i32 s93, s2, {0x9e37 + 2 * k + 64 * J}", "s_mul_i32 s94, s54, 0x1b5", "s_add_u32 s93, s93, s94", "s_bfe_u32 s93, s93, 0x30004", lab + ":",
        "s_cmp_eq_u32 s93, 0", f"s_cbranch_scc1 {lab}_D", f"s_sleep {8 * J}", "s_sub_u32 s93, s93, 1", f"s_branch {lab}", lab + "_D:")
def lanes(n): return [f"s_mov_b32 exec_lo, {((1 << n) - 1) & 0xffffffff:#x}", f"s_mov_b32 exec_hi, {((1 << n) - 1) >> 32:#x}"] if n < 64 else []
def poll_load(soff, voff, dst, wide=False):
    return f"buffer_load_dword{'x4' if wide else ''} {vr(dst, 4 if wide else 1)}, v{voff}, s[32:35], s{soff} offen sc1"
def poll_test(dst, wide):
    if wide:
        return [f"v_xor_b32 v{dst+i}, s55, v{dst+i}" for i in range(4)] + \
               [f"v_or3_b32 v{dst}, v{dst}, v{dst+1}, v{dst+2}", f"v_or_b32 v{dst}, v{dst}, v{dst+3}", f"v_cmp_ne_u32 vcc, 0, v{dst}"]
    return [f"v_cmp_ne_u32 vcc, s55, v{dst}"]
def poll(soff, n, voff, dst=2, wide=False, preloaded=None, sleep=2):
    _n[0] += 1; lab = f"POLL{_n[0]}"
    o = lanes(n)
    if preloaded is not None:
        o += [f"s_waitcnt vmcnt({preloaded})"] + poll_test(dst, wide) + [f"s_cbranch_vccz {lab}_D"]
    o += ["s_mov_b32 s17, 0x40000", lab + ":", poll_load(soff, voff, dst, wide), "s_waitcnt vmcnt(0)"] + poll_test(dst, wide)
    o += [f"s_cbranch_vccz {lab}_D", f"s_sleep {sleep}", "s_sub_u32 s17, s17, 1", "s_cmp_lg_u32 s17, 0", f"s_cbranch_scc1 {lab}", lab + "_D:"]
    if n < 64: o += ["s_mov_b64 exec, -1"]
    return o
def set_flag(a, soff):
    a.I("v_mov_b32 v2, s55", "v_mov_b32 v8, 0", "s_mov_b64 exec, 1",
        f"buffer_store_dword v2, v8, s[32:35], s{soff} offen sc1", "s_mov_b64 exec, -1")
def wave_flag(a, reg, base):
    a.I(f"s_lshl_b32 s{reg}, s2, 3", f"s_add_u32 s{reg}, s{reg}, s54", f"s_lshl_b32 s{reg}, s{reg}, 2", f"s_add_u32 s{reg}, s{reg}, {WS_FL+base}")
def sync_setup(a, base, own, chk, one):
    a.I("s_lshl_b32 s16, s20, 8", f"s_add_u32 s16, s16, {base}", f"v_lshl_add_u32 v{own}, v1, 2, s16",
        "v_and_b32 v2, 3, v1", f"v_lshlrev_b32 v{chk}, 8, v2", f"v_lshl_add_u32 v{chk}, v1, 2, v{chk}", f"v_add_u32 v{chk}, {base}, v{chk}",
        f"v_mov_b32 v{one}, 1", "s_mov_b32 s53, 0")
def sync_block(a, own, chk, one, tmp, sleep=False):
    _n[0] += 1; lab = f"SY{_n[0]}"
    a.I(f"ds_add_u32 v{own}, v{one}", "s_add_u32 s53, s53, 1")
    a.L(lab)
    if sleep: a.I("s_sleep 1")
    a.I(f"ds_read_b32 v{tmp}, v{chk}", "s_waitcnt lgkmcnt(0)", f"v_cmp_gt_u32 vcc, s53, v{tmp}", f"s_cbranch_vccnz {lab}")
def xsel(a, dst):
    a.I("v_and_b32 v2, 15, v1", f"v_lshlrev_b32 v{dst}, 11, v2", "v_bfe_u32 v2, v1, 4, 1", f"v_lshl_add_u32 v{dst}, v2, 5, v{dst}",
        "v_lshrrev_b32 v2, 5, v1", f"v_lshl_add_u32 v{dst}, v2, 4, v{dst}")
def is_vm(x): return x.startswith("buffer") or x.startswith("global")
def groups_of(dm):
    gs = []; cur = []
    for x in dm:
        cur.append(x)
        if is_vm(x): gs.append(cur); cur = []
    gs[-1] += cur
    return gs
def mixmem(rd, dm, dma_first=True):
    if not rd or not dm: return rd + dm
    gs = groups_of(dm)
    pre = [x for x in rd if x.startswith("v_")]; ds = [x for x in rd if x.startswith("ds_")]; post = [x for x in rd if x.startswith("s_")]
    o = list(pre); n = len(gs); per = len(ds) // n
    for g in range(n):
        part = ds[g * per:(g + 1) * per if g < n - 1 else len(ds)]
        o += (gs[g] + part) if dma_first else (part + gs[g])
    return o + post
class Log:
    def __init__(self): self.l = []
    def note(self, instrs, st): self.l += [st] * sum(map(is_vm, instrs)); return instrs
    def cnt(self, st):
        last = max([i for i, s_ in enumerate(self.l) if s_ is not None and s_ <= st], default=-1)
        return len(self.l) - 1 - last

WA0, WA1, WST = 116, 118, 120
def w_dma(slotreg):
    return [f"s_add_u32 m0, s{slotreg}, s46", "s_nop 0",
            f"global_load_lds_dwordx4 {vr(WA0,2)}, off" + OPT.get("wm", "").replace("+", " "), f"global_load_lds_dwordx4 {vr(WA1,2)}, off offset:1024" + OPT.get("wm", "").replace("+", " "),
            f"v_lshl_add_u64 {vr(WA0,2)}, {vr(WST,2)}, 0, {vr(WA0,2)}", f"v_lshl_add_u64 {vr(WA1,2)}, {vr(WST,2)}, 0, {vr(WA1,2)}"]

def tag_check(a, x):
    a.I("s_mov_b32 s17, 0x40000")
    a.L("P0_TAG" + x)
    a.I("s_cmp_eq_u32 s55, 0", "s_cbranch_scc1 P0_TAGLD" + x,
        "s_sub_u32 s16, s48, s55", "s_add_u32 s16, s16, 3000", "s_cmp_lt_u32 s16, 6000", "s_cbranch_scc1 P0_TAGOK" + x,
        "s_cmp_lt_u32 s17, 0x3f800", "s_cbranch_scc1 P0_TAGOK" + x)
    a.L("P0_TAGLD" + x)
    a.I("buffer_load_dword v6, v7, s[56:59], 0 offen sc1", "s_waitcnt vmcnt(0)", "v_readfirstlane_b32 s55, v6",
        "s_sub_u32 s17, s17, 1", "s_cmp_lg_u32 s17, 0", "s_cbranch_scc1 P0_TAG" + x)
    a.L("P0_TAGOK" + x)

STREAM = ["buffer_load_dword v122, v114, s[88:91], s100 offen", "buffer_load_dword v123, v114, s[92:95], s100 offen",
          "buffer_load_dword v124, v115, s[96:99], s101 offen"]
def phase0(a):
    LW, LX, LR = 49152, 114688, 147456
    srd(a, 24, 4, 2048 * 2048)
    for i in range(4): a.I(f"buffer_load_dwordx4 {vr(8+4*i,4)}, v3, s[24:27], s19 offen offset:{i*1024}")
    a.I("v_mov_b32 v7, 0", "buffer_load_dword v6, v7, s[56:59], 0 offen sc1")
    NH = int(OPT.get("nh", 5))
    a.I("s_cmp_eq_u32 s20, 0", "s_cselect_b64 s[12:13], s[40:41], s[42:43]", f"s_mov_b32 s16, {NH*896}",
        "s_cmp_eq_u32 s20, 2", "s_cselect_b64 s[12:13], s[6:7], s[12:13]", f"s_cselect_b32 s16, {NH*256}, s16")
    srd(a, 88, 12, 1024 * 1024 * 2)
    a.I("v_lshlrev_b32 v114, 7, v1", "s_sub_u32 s17, s16, 128", "v_min_u32 v114, s17, v114", "s_mul_i32 s92, s16, s2")
    a.I("s_cmp_lg_u32 s20, 3", "s_cbranch_scc1 P0_N7", "s_bitcmp1_b32 s2, 3", "s_cselect_b64 s[88:89], s[10:11], s[8:9]", "s_mov_b32 s90, 0x10000",
        "v_and_b32 v114, 0xf80, v114", "s_lshr_b32 s92, s2, 4", "s_lshl_b32 s92, s92, 12")
    a.L("P0_N7")
    a.I("s_bfe_u32 s22, s2, 0x10003", "s_cmp_eq_u32 s22, 0", "s_cselect_b64 s[12:13], s[8:9], s[10:11]")
    srd(a, 28, 12, 65536)
    a.I("s_lshl_b32 s17, s20, 13")
    a.I("s_and_b32 s16, s2, 7", "s_lshl_b32 s16, s16, 2", "s_bfe_u32 s21, s2, 0x20003", "s_add_u32 s21, s21, s16",
        "s_and_b32 s23, s20, 3", "s_cmp_lt_u32 s20, 4", "s_cselect_b64 s[12:13], s[42:43], s[40:41]", "s_cselect_b32 s18, 32, 0",
        "s_cselect_b32 s46, 8192, 0", "s_lshl_b32 s16, s23, 11", "s_add_u32 s46, s46, s16", "s_add_u32 s46, s46, 16384",
        "v_lshrrev_b32 v2, 4, v1", "s_lshl_b32 s16, s23, 3", "v_add_u32 v4, s16, v2",
        "s_and_b32 s16, s23, 1", "s_lshl_b32 s16, s16, 2", "v_add_u32 v2, s16, v2", "v_bfe_u32 v5, v1, 1, 3", "v_xor_b32 v2, v2, v5",
        "v_cmp_eq_u32 vcc, 7, v2", "v_mov_b32 v5, 7168", "v_mov_b32 v112, 2048", f"v_cndmask_b32 v{WST}, v5, v112, vcc",
        f"v_mul_lo_u32 v4, v4, v{WST}",
        "s_mul_i32 s16, s21, 224", "v_lshl_add_u32 v5, v2, 5, s16", "s_lshl_b32 s16, s21, 6", "s_add_u32 s16, s16, s18",
        "v_mov_b32 v112, s16", "v_cndmask_b32 v5, v5, v112, vcc", "v_add_u32 v4, v4, v5",
        "v_and_b32 v2, 1, v1", "v_lshl_add_u32 v4, v2, 4, v4",
        "v_mov_b32 v5, s12", "v_mov_b32 v112, s6", f"v_cndmask_b32 v{WA0}, v5, v112, vcc",
        "v_mov_b32 v5, s13", "v_mov_b32 v112, s7", f"v_cndmask_b32 v{WA0+1}, v5, v112, vcc",
        "v_mov_b32 v5, 0", f"v_lshl_add_u64 {vr(WA0,2)}, v[4:5], 0, {vr(WA0,2)}",
        f"v_lshlrev_b32 v4, 2, v{WST}", "v_add_u32 v4, -1024, v4" if False else "v_subrev_u32 v4, 1024, v4",
        f"v_lshl_add_u64 {vr(WA1,2)}, v[4:5], 0, {vr(WA0,2)}",
        f"v_lshlrev_b32 v{WST}, 5, v{WST}", f"v_mov_b32 v{WST+1}, 0", "s_mov_b32 s47, 0")
    srd(a, 24, 12, 1024 * 3584 * 2)
    a.I("s_mov_b32 s21, s45", "s_lshl_b32 s23, s21, 15", "s_mov_b32 s36, 0xffff0000",
        "s_waitcnt vmcnt(1)", "s_cmp_ge_u32 s20, 4", "s_cbranch_scc1 P0_NS", "buffer_load_dword v122, v114, s[88:91], s92 offen")
    CT = int(OPT.get("ct", 0))
    if CT:
        a.I("s_getpc_b64 s[94:95]", "P0_PC:", "s_mov_b32 s93, F_END-P0_PC", "s_lshr_b32 s16, s2, 3", "s_lshl_b32 s16, s16, 2", "s_add_u32 s16, s16, s20", f"s_mul_i32 s16, s16, {CT*128}",
            f"v_min_u32 v2, {CT-1}, v1", "v_lshlrev_b32 v123, 7, v2", "v_add_u32 v123, s16, v123", "v_min_u32 v123, s93, v123", "global_load_dword v124, v123, s[94:95]")
    a.I("P0_NS:")
    ts(a, 9)
    for r in range(2):
        for d in range(8):
            src = 8 + 8 * r + d
            a.I(f"v_lshlrev_b32 v{32+16*r+2*d}, 16, v{src}", f"v_and_b32 v{33+16*r+2*d}, s36, v{src}")
    def tree2(bases, sq):
        T_ = [(24 + i, bases[i], 64 + 8 * i) for i in range(2)]
        for dst, base, t in T_:
            for i in range(8):
                a.I(f"v_mul_f32 v{t+i}, v{base+2*i}, v{base+2*i}" if sq else f"v_add_f32 v{t+i}, v{base+2*i}, v{base+2*i+1}")
        if sq:
            for dst, base, t in T_:
                for i in range(8): a.I(f"v_fmac_f32 v{t+i}, v{base+2*i+1}, v{base+2*i+1}")
        for s_ in (4, 2):
            for dst, base, t in T_:
                for i in range(s_): a.I(f"v_add_f32 v{t+i}, v{t+i}, v{t+i+s_}")
        for dst, base, t in T_: a.I(f"v_add_f32 v{dst}, v{t}, v{t+1}")
    def wavered(rs, ss):
        for mod in ("row_shr:1 row_mask:0xf bank_mask:0xf bound_ctrl:0", "row_shr:2 row_mask:0xf bank_mask:0xf bound_ctrl:0",
                    "row_shr:4 row_mask:0xf bank_mask:0xf bound_ctrl:0", "row_shr:8 row_mask:0xf bank_mask:0xf bound_ctrl:0",
                    "row_bcast:15 row_mask:0xa bank_mask:0xf", "row_bcast:31 row_mask:0xc bank_mask:0xf"):
            for r in rs: a.I(f"v_add_f32_dpp v{r}, v{r}, v{r} {mod}")
        for r, s_ in zip(rs, ss): a.I(f"v_readlane_b32 s{s_}, v{r}, 63")
    if "p0st" in EXP: ts(a, 1)
    tree2((32, 48), False)
    wavered((24, 25), (40, 41))
    if "p0st" in EXP: ts(a, 2)
    a.I(f"s_mov_b32 s37, {f32(1.0/1024)}")
    a.I("v_mov_b32 v26, s40", "v_mov_b32 v27, s41", "v_mul_f32 v26, s37, v26", "v_mul_f32 v27, s37, v27")
    for r in range(2):
        for i in range(16): a.I(f"v_sub_f32 v{80+16*r+i}, v{32+16*r+i}, v{26+r}")
    tree2((80, 96), True)
    wavered((24, 25), (42, 43))
    a.I("v_mov_b32 v28, s42", "v_mov_b32 v29, s43", "v_mul_f32 v28, s37, v28", "v_mul_f32 v29, s37, v29")
    def rnd(*rs):
        for r in rs: a.I(f"v_cvt_pk_bf16_f32 v{r}, v{r}, v{r}")
        for r in rs: a.I(f"v_lshlrev_b32 v{r}, 16, v{r}")
    a.I(f"s_mov_b32 s38, {f32(1e-5)}")
    rnd(28, 29, 26, 27)
    a.I("v_add_f32 v28, s38, v28", "v_add_f32 v29, s38, v29"); rnd(28, 29)
    a.I("v_sqrt_f32 v28, v28", "v_sqrt_f32 v29, v29"); rnd(28, 29)
    a.I("v_rcp_f32 v28, v28", "v_rcp_f32 v29, v29")
    if "p0st" in EXP: ts(a, 3)
    P_ = [(r, d, 32 + 16 * r + 2 * d) for r in range(2) for d in range(8)]
    if "ln1" in EXP:
        a.I("v_mul_f32 v26, v26, v28", "v_mul_f32 v27, v27, v29")
        for r, d, b in P_: a.I(f"v_fma_f32 v{b}, v{b}, v{28+r}, -v{26+r}", f"v_fma_f32 v{b+1}, v{b+1}, v{28+r}, -v{26+r}")
    else:
        for r, d, b in P_: a.I(f"v_sub_f32 v{b}, v{b}, v{26+r}", f"v_sub_f32 v{b+1}, v{b+1}, v{26+r}")
        for r, d, b in P_: a.I(f"v_cvt_pk_bf16_f32 v{80+8*r+d}, v{b}, v{b+1}")
        for r, d, b in P_: a.I(f"v_lshlrev_b32 v{b}, 16, v{80+8*r+d}", f"v_and_b32 v{b+1}, s36, v{80+8*r+d}")
        for r, d, b in P_: a.I(f"v_mul_f32 v{b}, v{b}, v{28+r}", f"v_mul_f32 v{b+1}, v{b+1}, v{28+r}")
    for r, d, b in P_: a.I(f"v_cvt_pk_bf16_f32 v{8+8*r+d}, v{b}, v{b+1}")
    if "p0st" in EXP: ts(a, 4)
    a.I("s_lshl_b32 s16, s20, 1", "v_and_b32 v2, 15, v1", "v_xor_b32 v2, s16, v2", "v_lshlrev_b32 v4, 8, v1", "v_lshl_add_u32 v4, v2, 4, v4",
        f"v_add_u32 v4, {LX}, v4", "v_xor_b32 v25, 16, v4")
    for r in range(2):
        for p in range(2): a.I(f"ds_write_b128 v{25 if r else 4}, {vr(8+8*r+4*p,4)} offset:{p*16384}")
    a.I("v_lshrrev_b32 v5, 4, v1", "v_lshlrev_b32 v2, 4, v5", "v_xor_b32 v26, v2, v3",
        "s_lshl_b32 s16, s20, 12", f"s_add_u32 s16, s16, {LX}", "v_add_u32 v30, s16, v26",
        "v_xor_b32 v27, 64, v30", "v_xor_b32 v28, 0x80, v30", "v_xor_b32 v29, 0xc0, v30",
        "v_lshlrev_b32 v31, 9, v5", "v_bfe_u32 v2, v1, 2, 2", "v_lshl_add_u32 v31, v2, 6, v31",
        "v_and_b32 v2, 3, v1", "v_lshl_add_u32 v31, v2, 3, v31", f"s_add_u32 s16, s17, {LW}", "v_add_u32 v31, s16, v31",
        "s_lshl_b32 s16, s22, 14", "s_and_b32 s18, s20, 3", "s_lshl_b32 s18, s18, 12", "s_add_u32 s16, s16, s18",
        "s_add_u32 s39, s23, s16", f"s_add_u32 s16, s16, {LX}", "v_add_u32 v24, s16, v26",
        "v_xor_b32 v25, 64, v24", "v_xor_b32 v4, 0x80, v24", "v_xor_b32 v26, 0xc0, v24",
        "s_cmp_ge_u32 s20, 4", "s_cbranch_scc1 P0_B")
    a.I("s_lshl_b32 s18, s20, 14")
    for g in range(4):
        a.I(f"s_add_u32 m0, s18, {LW+g*4096}", f"s_add_u32 s16, s18, {g*4096}")
        for i in range(4): a.I(f"buffer_load_dwordx4 v3, s[28:31], s16 offen offset:{i*1024} lds")
    a.extend(w_dma(47))
    a.I("s_waitcnt lgkmcnt(0)", "s_barrier", "s_waitcnt vmcnt(2)", "v_readfirstlane_b32 s55, v6")
    tag_check(a, "A")
    a.I("s_branch P0_C")
    a.L("P0_B")
    a.I("s_waitcnt lgkmcnt(0)", "s_barrier")
    ts(a, 10)
    for i, r in enumerate((24, 25, 4, 26)): a.I(f"ds_read_b128 {vr(8+4*i,4)}, v{r} offset:{i*1024}")
    for i in range(4): a.I(f"s_waitcnt lgkmcnt({3-i})", f"buffer_store_dwordx4 {vr(8+4*i,4)}, v3, s[32:35], s39 offen offset:{i*1024} sc1")
    a.extend(w_dma(47))
    a.I("s_waitcnt vmcnt(6)", "v_readfirstlane_b32 s55, v6")
    tag_check(a, "B")
    wave_flag(a, 18, FL_X)
    a.I("s_waitcnt vmcnt(2)")
    set_flag(a, 18)
    a.L("P0_C")
    a.I("s_barrier")
    for j in range(4):
        a.I(f"ds_read_b128 {vr(32+4*j,4)}, v{(30, 27, 28, 29)[j]} offset:{j*1024}")
        for d in range(2):
            for rd in range(2):
                a.I(f"ds_read_b64_tr_b16 {vr(64+8*j+4*d+2*rd,2)}, v31 offset:{j*2048+rd*256+d*32}")
    a.I("s_waitcnt lgkmcnt(0)", "s_cmp_eq_u32 s22, 0", "s_cbranch_scc0 P0_V")
    for j in range(4):
        for d in range(2): a.I(mfma16(96 + 4 * d, 64 + 8 * j + 4 * d, 32 + 4 * j, "0" if j == 0 else None))
    a.I("s_branch P0_R")
    a.L("P0_V")
    for j in range(4):
        for d in range(2): a.I(mfma16(96 + 4 * d, 32 + 4 * j, 64 + 8 * j + 4 * d, "0" if j == 0 else None))
    a.L("P0_R")
    a.I("s_lshl_b32 s16, s20, 11", f"s_add_u32 s16, s16, {LR}", "v_add_u32 v4, s16, v3")
    for d in range(2): a.I(f"ds_write_b128 v4, {vr(96+4*d,4)} offset:{d*1024}")
    a.I("s_waitcnt lgkmcnt(0)", "s_barrier")
    a.I("s_cmp_lg_u32 s20, 0", "s_cbranch_scc1 P0_END")
    a.I(f"v_add_u32 v4, {LR}, v3")
    for w in range(8):
        a.I(f"ds_read_b128 {vr(32+8*w,4)}, v4 offset:{w*2048}", f"ds_read_b128 {vr(36+8*w,4)}, v4 offset:{w*2048+1024}")
    a.I("s_waitcnt lgkmcnt(0)")
    for s_ in (4, 2, 1):
        for w in range(s_):
            for i in range(8): a.I(f"v_add_f32 v{32+8*w+i}, v{32+8*w+i}, v{32+8*(w+s_)+i}")
    for d in range(4): a.I(f"v_cvt_pk_bf16_f32 v{8+d}, v{32+2*d}, v{33+2*d}")
    a.I("s_lshr_b32 s16, s21, 1", "s_lshl_b32 s19, s16, 12", f"s_add_u32 s19, s19, {WS_KV}",
        "s_and_b32 s16, s21, 1", "s_lshl_b32 s16, s16, 10", "s_add_u32 s19, s19, s16",
        "s_cmp_eq_u32 s22, 0", "s_cbranch_scc0 P0_SV",
        "buffer_store_dwordx4 v[8:11], v3, s[32:35], s19 offen sc1", "s_branch P0_KF")
    a.L("P0_SV")
    a.I("v_and_b32 v2, 1, v5", "v_lshlrev_b32 v4, 9, v2", "v_and_b32 v2, 15, v1", "v_lshl_add_u32 v4, v2, 4, v4",
        "v_lshrrev_b32 v2, 1, v5", "v_lshl_add_u32 v4, v2, 3, v4",
        "buffer_store_dwordx2 v[8:9], v4, s[32:35], s19 offen offset:2048 sc1",
        "buffer_store_dwordx2 v[10:11], v4, s[32:35], s19 offen offset:2304 sc1")
    a.L("P0_KF")
    if "kvearly" in EXP:
        a.I("s_lshl_b32 s18, s2, 2", f"s_add_u32 s18, s18, {WS_FL+FL_KV}", "s_waitcnt vmcnt(0)")
        set_flag(a, 18)
    a.L("P0_END")

def kv_groups():
    gs = []
    for g in range(2):
        for i in range(4):
            o = [f"s_add_u32 m0, s25, {g*4096}", f"s_add_u32 s26, s24, {g*4096}"] if i == 0 else []
            gs.append(o + [f"buffer_load_dwordx4 v3, s[36:39], s26 offen offset:{i*1024} lds"])
    gs[-1] += ["s_add_u32 s24, s24, 32768", "s_xor_b32 s25, s25, 32768"]
    return gs

def emit_loop(a, label, bodies):
    best = (0, 1)
    i = 0
    while i < len(bodies):
        j = i
        while j < len(bodies) and bodies[j] == bodies[i]: j += 1
        if j - i > best[1] - best[0]: best = (i, j)
        i = j
    for k in range(best[0]): a.extend(bodies[k])
    a.I(f"s_mov_b32 s51, {best[1]-best[0]}")
    a.L(label)
    a.extend(bodies[best[0]])
    a.I("s_sub_u32 s51, s51, 1", "s_cmp_lg_u32 s51, 0", f"s_cbranch_scc1 {label}")
    for k in range(best[1], len(bodies)): a.extend(bodies[k])

def xn_poll(a):
    a.I("s_and_b32 s18, s2, 0xe0", "s_lshr_b32 s16, s20, 2", "s_lshl_b32 s16, s16, 4", "s_add_u32 s18, s18, s16",
        "s_and_b32 s16, s20, 3", "s_lshl_b32 s16, s16, 1", "s_add_u32 s18, s18, s16", "s_lshl_b32 s18, s18, 5", f"s_add_u32 s18, s18, {WS_FL+FL_X+16}",
        "v_and_b32 v2, 3, v1", "v_lshlrev_b32 v8, 2, v2", "v_bfe_u32 v2, v1, 2, 1", "v_lshl_add_u32 v8, v2, 5, v8",
        "v_lshrrev_b32 v2, 3, v1", "v_lshl_add_u32 v8, v2, 8, v8")
    if int(OPT.get("xs", 0)):
        a.extend(poll(18, 16, 8, 17, sleep=int(OPT.get("xs"))))
        return
    a.extend(lanes(16) + ["s_mov_b32 s17, 0x20000", poll_load(18, 8, 17), "s_sleep 3", "G1_PP:", poll_load(18, 8, 18), "s_waitcnt vmcnt(1)",
             "v_cmp_ne_u32 vcc, s55, v17", "s_cbranch_vccz G1_PD", poll_load(18, 8, 17), "s_waitcnt vmcnt(1)",
             "v_cmp_ne_u32 vcc, s55, v18", "s_cbranch_vccz G1_PD", "s_sub_u32 s17, s17, 1", "s_cmp_lg_u32 s17, 0", "s_cbranch_scc1 G1_PP",
             "G1_PD:", "s_mov_b64 exec, -1"])

def g1(a):
    EA = "ea" in EXP.split("_")
    NST = 32; R = 5; SLOT = 32768
    ACC = 128; FA = 64; FW = 96
    def acc(h, u, t): return ACC + (t * 4 + h * 2 + u) * 4
    a.I("s_and_b32 s16, s2, 7", "s_lshl_b32 s16, s16, 2", "s_bfe_u32 s21, s2, 0x20003", "s_add_u32 s21, s21, s16",
        "s_lshr_b32 s22, s2, 5", "s_and_b32 s23, s20, 3", "v_add_u32 v10, 31744, v3",
        "s_lshl_b32 s16, s22, 4", "s_lshl_b32 s17, s20, 1", "s_add_u32 s16, s16, s17", "s_lshl_b32 s44, s16, 15",
        "s_lshl_b32 s45, s20, 11", "s_mov_b32 s47, 0", "s_mov_b32 s50, 0", f"s_mov_b32 s52, {SLOT}",
        *([f"s_mov_b32 s47, {SLOT}", "s_add_u32 s44, s44, 1024"] if EA else []))
    PD = int(OPT.get("pd", 5))
    RH = int(OPT.get("rh", 1)); PX = int(OPT.get("px", 0))
    if PD:
        a.I(f"s_load_dwordx2 s[4:5], s[0:1], {KA_WQ}", f"s_load_dwordx2 s[6:7], s[0:1], {KA_WD}", f"s_load_dwordx2 s[8:9], s[0:1], {KA_WO}",
            f"v_min_u32 v2, {7*RH-1}, v1", "v_lshlrev_b32 v14, 7, v2", f"s_mul_i32 s16, s2, {896*RH}", "v_add_u32 v14, s16, v14",
            f"s_mov_b32 s31, {32*7168*RH}", f"s_mov_b32 s30, {PD*32*7168}", "s_cmp_eq_u32 s23, 0", "s_cbranch_scc1 G1_T0",
            *([f"s_mov_b32 s30, {PX*32*7168}", "v_bfe_u32 v2, v1, 2, 2", "s_lshl_b32 s16, s22, 2", "v_add_u32 v2, s16, v2", "v_mul_u32_u24 v14, 7168, v2",
               "v_and_b32 v2, 3, v1", "v_min_u32 v2, 2, v2", "v_mul_u32_u24 v2, 104, v2", "s_mul_i32 s16, s21, 224", "v_add3_u32 v14, v14, v2, s16",
               "s_cmp_eq_u32 s23, 2", "s_cbranch_scc1 G1_T0"] if PX else []),
            "s_mov_b32 s30, 0x7f000000", "s_mov_b32 s31, 0", "s_cmp_ge_u32 s20, 4", "s_cbranch_scc1 G1_T0", "s_waitcnt lgkmcnt(0)",
            "s_cmp_eq_u32 s20, 1", "s_cbranch_scc0 G1_T2")
        srd(a, 24, 4, 1024 * 1024 * 2)
        a.I("v_and_b32 v2, 1, v1", "v_lshlrev_b32 v14, 7, v2", "s_lshl_b32 s16, s2, 8", "v_add_u32 v14, s16, v14",
            f"s_mov_b32 s31, {32*2048}", f"s_mov_b32 s30, {PD*32*2048}", "s_branch G1_T0")
        a.L("G1_T2")
        if "nolate" not in EXP:
            a.I("s_cmp_eq_u32 s20, 2", "s_cbranch_scc0 G1_T3")
            srd(a, 24, 6, 3584 * 1024 * 2)
            if "lwd" in EXP: a.I("v_min_u32 v2, 8, v1", "v_lshlrev_b32 v14, 7, v2", "s_mov_b32 s31, 1152", "s_mul_i32 s30, s2, 28672")
            a.I("s_branch G1_T0")
            a.L("G1_T3")
            srd(a, 24, 8, 1024 * 1024 * 2)
            a.I("v_min_u32 v2, 2, v1", "v_lshlrev_b32 v14, 7, v2", "s_mov_b32 s31, 384", "s_lshl_b32 s30, s2, 13")
        a.L("G1_T0")
    def touch(): return ["buffer_load_dword v16, v14, s[24:27], s30 offen" + OPT.get("tm", "").replace("+", " "), "s_add_u32 s30, s30, s31"] if PD else []
    def touch0(): return []
    if not EA: xn_poll(a)
    ts(a, 11)
    def adv(reg): return [f"s_add_u32 s{reg}, s{reg}, {SLOT}", f"s_cmp_eq_u32 s{reg}, {SLOT*R}", f"s_cselect_b32 s{reg}, 0, s{reg}"]
    def dma_act():
        return ["s_add_u32 m0, s47, s45", "s_nop 0", "buffer_load_dwordx4 v3, s[32:35], s44 offen lds",
                "buffer_load_dwordx4 v10, s[32:35], s44 offen offset:1024 lds", "s_add_u32 s44, s44, 1024"] + adv(47)
    def dma_w(): return w_dma(52) + adv(52)
    def rdaddr():
        return ["s_lshr_b32 s17, s20, 2", "s_lshl_b32 s16, s17, 13", "v_add_u32 v6, s16, v3",
                "s_and_b32 s19, s21, 1", "s_lshl_b32 s16, s23, 1", "s_add_u32 s40, s16, s19", "s_add_u32 s41, s40, 1",
                "s_mul_i32 s16, s19, 6", "s_sub_u32 s16, 6, s16", "s_cmp_eq_u32 s23, 3", "s_cselect_b32 s40, s16, s40", "s_cselect_b32 s41, 7, s41",
                "v_lshrrev_b32 v2, 4, v1", "v_lshlrev_b32 v7, 11, v2", "v_and_b32 v2, 1, v2", "v_lshlrev_b32 v12, 2, v2",
                "v_bfe_u32 v2, v1, 2, 2", "v_lshl_add_u32 v7, v2, 8, v7", "v_add_u32 v12, v12, v2",
                "v_and_b32 v2, 3, v1", "v_lshl_add_u32 v7, v2, 3, v7", "v_add_u32 v7, 16384, v7",
                "v_xor_b32 v2, s41, v12", "v_lshl_add_u32 v11, v2, 5, v7", "v_xor_b32 v2, s40, v12", "v_lshl_add_u32 v7, v2, 5, v7"]
    def reads():
        o = ["v_add_u32 v8, s50, v6", "v_add_u32 v9, s50, v7", "v_add_u32 v13, s50, v11"]
        for h in range(2):
            for u in range(2):
                for rd in range(2):
                    o.append(f"ds_read_b64_tr_b16 {vr(FW+(h*2+u)*4+2*rd,2)}, v{9 if u == 0 else 13} offset:{h*8192+rd*1024}")
        for t in range(8): o.append(f"ds_read_b128 {vr(FA+t*4,4)}, v8 offset:{t*1024}")
        return o + adv(50)
    def mm(first):
        return [mfma16(acc(h, u, t), FW + (h * 2 + u) * 4, FA + t * 4, "0" if first else None) for t in range(8) for h in range(2) for u in range(2)]
    a.I("s_cmp_ge_u32 s20, 4", "s_cbranch_scc1 G1_B")
    L = Log()
    NP0 = int(OPT.get("np0", 2))
    def proA(js): return [x for j in js for x in (L.note(dma_w(), j) if 0 < j < R - 1 else []) + (L.note(dma_act(), j) if j or not EA else [])]
    a.extend(proA(range(NP0)))
    def kv_flag():
        a.I("s_lshl_b32 s18, s2, 2", f"s_add_u32 s18, s18, {WS_FL+FL_KV}", "s_cmp_eq_u32 s20, 0", "s_cselect_b32 s18, s18, 0x7f000000")
        set_flag(a, 18); L.note(["buffer"], None)
    if not EA: kv_flag()
    a.extend(rdaddr())
    if EA: a.I("s_cmp_eq_u32 s20, 0", "s_cbranch_scc1 G1_W0")
    a.I(f"s_waitcnt vmcnt({L.cnt(0)})", "G1_W0:", "s_barrier")
    a.extend(mixmem(reads(), proA(range(NP0, R)), False))
    E0 = "noe0" not in EXP
    a.I("s_waitcnt lgkmcnt(0)" if E0 else f"s_waitcnt vmcnt({L.cnt(1)}) lgkmcnt(0)", "s_barrier")
    ts(a, 12)
    kv = kv_groups()
    def bodyA(k, first=False):
        o = mm(first)
        if first and E0: o += [f"s_waitcnt vmcnt({L.cnt(1)})", "s_barrier"]
        if first and EA:
            o += ["s_lshl_b32 s18, s2, 2", f"s_add_u32 s18, s18, {WS_FL+FL_KV}", "s_cmp_eq_u32 s20, 0", "s_cselect_b32 s18, s18, 0x7f000000",
                  "v_mov_b32 v17, s55", "v_mov_b32 v18, 0", "s_mov_b64 exec, 1"] + L.note(["buffer_store_dword v17, v18, s[32:35], s18 offen sc1"], None) + ["s_mov_b64 exec, -1"]
        dm = L.note([f"s_mov_b32 s18, {WS_FL+FL_KV}", poll_load(18, 3, 28, True)], None) if k == 27 else []
        dm += (L.note(dma_w(), k - 1 + R) if k - 1 + R < NST else []) + (L.note(dma_act() + touch(), k + R) if k + R < NST else [])
        if k + R < NST and PD: L.l[-1] = None
        if k == 28:
            o += poll(18, 64, 3, 28, True, preloaded=2)
            o += ["s_lshl_b32 s24, s20, 13", f"s_add_u32 s25, s24, {LKV}",
                  f"s_add_u32 s36, s32, {WS_KV}", "s_addc_u32 s37, s33, 0", "s_mov_b32 s38, 0x40000", "s_mov_b32 s39, 0x20000"]
            dm = L.note([x for g in kv for x in g], None)
        if k == 29: dm = L.note([x for g in kv for x in g], None)
        o += mixmem(reads() if k + 1 < NST else [], dm)
        if k + 1 < NST: o += [f"s_waitcnt vmcnt({L.cnt(k + 2)}) lgkmcnt(0)", "s_barrier"]
        return o
    emit_loop(a, "G1_A_LOOP", [bodyA(k, k == 0) for k in range(NST)])
    a.I("s_branch G1_EPI")
    a.L("G1_B")
    M = Log()
    def proB(js): return [x for j in js for x in (M.note(dma_w(), j) if j else []) + (M.note(dma_act(), j) if j or not EA else [])]
    a.extend(proB(range(min(NP0, R - 1))))
    a.extend(rdaddr())
    a.I(f"s_waitcnt vmcnt({M.cnt(0)})", "s_barrier")
    a.extend(proB(range(min(NP0, R - 1), R - 1)))
    a.I(*([] if E0 else [f"s_waitcnt vmcnt({M.cnt(1)})"]), "s_barrier")
    def bodyB(k, first=False):
        dm = M.note(dma_w() + dma_act(), k - 1 + R) + M.note(touch(), None) if k - 1 + R < NST else []
        o = mixmem(reads(), dm) + ([f"s_waitcnt vmcnt({M.cnt(1)})", "s_barrier"] if first and E0 else []) + ["s_waitcnt lgkmcnt(0)"] + mm(first)
        if k + 1 < NST: o += [f"s_waitcnt vmcnt({M.cnt(k + 2)})", "s_barrier"]
        return o
    emit_loop(a, "G1_B_LOOP", [bodyB(k, k == 0) for k in range(NST)])
    a.L("G1_EPI")
    jit(a, 6)
    ts(a, 1)
    a.I("s_lshl_b32 s16, s20, 8", f"s_add_u32 s16, s16, {LC}", "v_lshl_add_u32 v13, v1, 2, s16", "v_mov_b32 v12, 0", "ds_write_b32 v13, v12")
    wave_flag(a, 60, FL_H)
    a.I("s_lshl_b32 s16, s22, 4", "s_lshr_b32 s17, s20, 2", "s_lshl_b32 s17, s17, 3", "s_add_u32 s16, s16, s17", "s_mul_i32 s16, s16, 112",
        "s_mul_i32 s17, s21, 7", "s_add_u32 s17, s17, s40", "s_lshr_b32 s17, s17, 1", "s_add_u32 s16, s16, s17",
        "s_lshl_b32 s16, s16, 10", f"s_add_u32 s61, s16, {WS_H}", "s_cmp_lg_u32 s23, 3", "s_cbranch_scc1 G1_NQ")
    a.I(f"s_mov_b32 s18, {f32(QSCALE)}", "s_lshr_b32 s16, s20, 2", "s_lshl_b32 s16, s16, 13", f"s_add_u32 s16, s16, {LQ}",
        "v_add_u32 v9, s16, v3", "s_lshl_b32 s16, s19, 3", "s_add_u32 s61, s61, s16")
    for t in range(8):
        q0, q1 = acc(0, 1, t), acc(1, 1, t)
        for i in range(4): a.I(f"v_mul_f32 v{q0+i}, s18, v{q0+i}", f"v_mul_f32 v{q1+i}, s18, v{q1+i}")
        a.I(f"v_cvt_pk_bf16_f32 v{FA+4*t}, v{q0}, v{q0+1}", f"v_cvt_pk_bf16_f32 v{FA+4*t+1}, v{q0+2}, v{q0+3}",
            f"v_cvt_pk_bf16_f32 v{FA+4*t+2}, v{q1}, v{q1+1}", f"v_cvt_pk_bf16_f32 v{FA+4*t+3}, v{q1+2}, v{q1+3}",
            f"ds_write_b128 v9, {vr(FA+4*t,4)} offset:{t*1024}")
    a.L("G1_NQ")
    XE = "xlate" not in EXP
    if XE: a.I("s_cmp_lt_u32 s20, 4", "s_cbranch_scc1 G1_PK", "s_waitcnt lgkmcnt(0)", "s_barrier", "s_setprio 3", "G1_PK:")
    a.I("s_cmp_eq_u32 s23, 3", "s_cbranch_scc1 G1_EPQ")
    for t in reversed(range(8)):
        g, u = acc(0, 0, t), acc(1, 0, t)
        for i in range(8): a.I(f"v_max_f32 v{g+i}, 0, v{g+i}")
        for i in range(8): a.I(f"v_mul_f32 v{g+i}, v{g+i}, v{u+i}")
        for d in range(4): a.I(f"v_cvt_pk_bf16_f32 v{HP+4*t+d}, v{g+2*d}, v{g+2*d+1}")
    a.I("s_branch G1_X")
    a.L("G1_EPQ")
    for t in reversed(range(8)):
        g, u = acc(0, 0, t), acc(1, 0, t)
        for i in range(4): a.I(f"v_max_f32 v{g+i}, 0, v{g+i}")
        for i in range(4): a.I(f"v_mul_f32 v{g+i}, v{g+i}, v{u+i}")
        for d in range(2): a.I(f"v_cvt_pk_bf16_f32 v{HP+4*t+d}, v{g+2*d}, v{g+2*d+1}")
    a.L("G1_X")
    a.I("s_cmp_ge_u32 s20, 4", "s_cbranch_scc1 G1_X2", "s_lshl_b32 s16, s20, 11", "v_add_u32 v9, s16, v3")
    for t in range(8): a.I(f"ds_write_b128 v9, {vr(HP+4*t,4)} offset:{(t>>1)*8192+(t&1)*1024}")
    if XE: a.I("s_waitcnt lgkmcnt(0)", "s_barrier", "G1_X2:")
    else: a.I("G1_X2:", "s_waitcnt lgkmcnt(0)", "s_barrier")
    ts(a, 2)

def h_stores(a):
    _n[0] += 1; lab = f"HS{_n[0]}"
    a.I(f"s_sub_u32 s16, s61, {8*112*1024}", "s_cmp_eq_u32 s20, 3", f"s_cbranch_scc1 {lab}")
    for w, n in ((4, lab + "_D"), (2, None)):
        for t in range(8): a.I(f"buffer_store_dwordx{w} {vr(HP+4*t,w)}, v3, s[32:35], s61 offen{SC1}", f"s_add_u32 s61, s61, {112*1024}")
        a.I("s_waitcnt lgkmcnt(0)")
        for t in range(8): a.I(f"buffer_store_dwordx{w} {vr(192+4*t,w)}, v3, s[32:35], s16 offen{SC1}", f"s_add_u32 s16, s16, {112*1024}")
        if n: a.I(f"s_branch {n}"); a.L(lab)
    a.L(lab + "_D")

def attention(a):
    QR = [16, 24]; KB = [32, 48]; VB = [40, 56]; P = 64; SEL = 72; Lr = [76, 80]; S = [96, 112]; O = [128, 144]; C = [160, 176]
    a.I(f"s_add_u32 s36, s32, {WS_KV}", "s_addc_u32 s37, s33, 0", "s_mov_b32 s38, 0x40000", "s_mov_b32 s39, 0x20000")
    a.I("v_bfe_u32 v2, v1, 4, 1", "v_lshlrev_b32 v4, 10, v2", "v_lshrrev_b32 v2, 5, v1", "v_lshl_add_u32 v4, v2, 8, v4",
        "v_and_b32 v2, 15, v1", "v_lshl_add_u32 v4, v2, 4, v4",
        "s_lshl_b32 s16, s20, 12", f"s_add_u32 s16, s16, {LQ}", "v_add_u32 v5, s16, v4")
    for b in range(2):
        for ks in range(2): a.I(f"ds_read_b128 {vr(QR[b]+4*ks,4)}, v5 offset:{b*2048+ks*512}")
    a.I(f"v_add_u32 v6, {LKV}, v4", f"v_add_u32 v7, {LKV+2048}, v3")
    sync_setup(a, LC, 13, 14, 12)
    a.I("s_waitcnt vmcnt(8)")
    sync_block(a, 13, 14, 12, 15)
    def rdK(buf, off): return [f"ds_read_b128 {vr(KB[buf]+4*ks,4)}, v6 offset:{off+ks*512}" for ks in range(2)]
    def rdV(buf, off): return [f"ds_read_b128 {vr(VB[buf]+4*ks,4)}, v7 offset:{off+ks*1024}" for ks in range(2)]
    a.extend(rdK(0, 0) + rdV(0, 0))
    def rsum(b): return f"v_smfmac_f32_16x16x64_bf16 {vr(Lr[b],4)}, {vr(SEL,4)}, {vr(P,8)}, v84"
    a.I("v_and_b32 v2, 4, v1", "v_cmp_eq_u32 vcc, 0, v2", "v_mov_b32 v5, 0x3f803f80", "s_mov_b32 s28, 0", "v_and_b32 v2, 1, v1",
        f"v_cndmask_b32 v{SEL}, 0, v5, vcc", f"v_cndmask_b32 v{SEL+2}, v5, 0, vcc" if False else f"v_xor_b32 v{SEL+2}, v5, v{SEL}",
        f"v_mov_b32 v{SEL+1}, v{SEL}", f"v_mov_b32 v{SEL+3}, v{SEL+2}",
        "s_mov_b32 s16, 0xaaaaaaaa", "v_mul_lo_u32 v84, v2, s16", "v_or_b32 v84, 0x44444444, v84")
    a.I("s_waitcnt lgkmcnt(0)")
    ts(a, 3)
    for b in range(2):
        a.I(mfma32(S[b], KB[0], QR[b], "0"), mfma32(S[b], KB[0] + 4, QR[b] + 4))
    for b in range(2):
        for i in range(16): a.I(f"v_mov_b32 v{O[b]+i}, 0")
        for i in range(4): a.I(f"v_mov_b32 v{Lr[b]+i}, 0")
    for i in range(4): a.I(f"v_mov_b32 v{P+i}, 0", f"v_mov_b32 v{P+4+i}, 0", f"v_mov_b32 v{VB[1]+4+i}, 0")
    for b in range(2):
        s0 = S[b]; m = 8 + 2 * b
        a.I(f"v_max3_f32 v{m}, v{s0}, v{s0+1}, v{s0+2}")
        for i in range(3, 15, 2): a.I(f"v_max3_f32 v{m}, v{m}, v{s0+i}, v{s0+i+1}")
        a.I(f"v_max_f32 v{m}, v{m}, v{s0+15}", f"v_mov_b32 v{m+1}, v{m}")
    for b in range(2):
        m = 8 + 2 * b
        a.I(f"v_permlane32_swap_b32 v{m}, v{m+1}", f"v_max_f32 v{m}, v{m}, v{m+1}", f"v_sub_f32 v{C[b]}, 0, v{m}")
        for i in range(1, 16): a.I(f"v_mov_b32 v{C[b]+i}, v{C[b]}")
    a.I(mfma32(S[0], KB[0], QR[0], C[0]), mfma32(S[0], KB[0] + 4, QR[0] + 4))
    def tile(b, kbuf_next, vbuf, vprev, extra, dg):
        nb = 1 - b; s0 = S[b]
        ex = [f"v_exp_f32 v{s0+i}, v{s0+i}" for i in range(16)]
        cv = [f"v_cvt_pk_bf16_f32 v{P+d}, v{s0+2*d}, v{s0+2*d+1}" for d in range(8)]
        e = list(extra) + [None] * 4
        TV = int(OPT.get("tv", 0))
        QK0, QK1 = mfma32(S[nb], KB[kbuf_next], QR[nb], C[nb]), mfma32(S[nb], KB[kbuf_next] + 4, QR[nb] + 4)
        PV1, PV0 = mfma32(O[nb], VB[vprev] + 4, P + 4), mfma32(O[b], VB[vbuf], P)
        if TV == 1:
            o = [QK0, e[0]] + ex[0:2] + [e[1], ex[2], rsum(nb)] + ex[3:5] + [PV1, e[2], e[3]] + ex[5:8] + [cv[0], cv[1], QK1, cv[2], cv[3]] + ex[8:11] + [PV0] + ex[11:14]
        elif TV == 2:
            o = [PV1, e[0]] + ex[0:2] + [e[1], ex[2], rsum(nb), e[2]] + ex[3:5] + [QK0, e[3]] + ex[5:8] + [cv[0], cv[1], cv[2], cv[3], QK1] + ex[8:11] + [PV0] + ex[11:14]
        elif TV == 3:
            o = [QK0, e[0]] + ex[0:2] + [e[1]] + ex[2:4] + [PV1, e[2]] + ex[4:6] + [rsum(nb), e[3]] + ex[6:8] + [cv[0], cv[1], cv[2], cv[3], QK1] + ex[8:12] + [PV0] + ex[12:14]
        elif "twow" not in EXP:
            o = [mfma32(S[nb], KB[kbuf_next], QR[nb], C[nb]), e[0]] + ex[0:2] + [e[1], ex[2]]
            o += [mfma32(O[nb], VB[vprev] + 4, P + 4), e[2]] + ex[3:6]
            o += [rsum(nb), e[3]] + ex[6:8]
            o += [mfma32(S[nb], KB[kbuf_next] + 4, QR[nb] + 4), cv[0], cv[1], ex[8], cv[2], cv[3], ex[9], ex[10]]
            o += [mfma32(O[b], VB[vbuf], P)] + ex[11:14]
        else:
            o = [mfma32(S[nb], KB[kbuf_next], QR[nb], C[nb]), e[0]] + ex[0:3]
            o += [mfma32(O[nb], VB[vprev] + 4, P + 4), e[1]] + ex[3:6]
            o += [rsum(nb)] + ex[6:8]
            o += [mfma32(S[nb], KB[kbuf_next] + 4, QR[nb] + 4), e[2], cv[0], cv[1], ex[8], cv[2], cv[3], ex[9], ex[10]]
            o += [mfma32(O[b], VB[vbuf], P), e[3]] + ex[11:14]
        o += (dg or []) + [ex[14], ex[15]] + cv[4:8]
        return [x for x in o if x]
    a.I(f"s_setprio {int(OPT.get('ap', 2))}", "s_nop 11")
    dg = kv_groups()
    ONEW = "twow" not in EXP
    def trip(first, sfx):
        def chk(tag):
            return ["v_cmp_gt_u32 vcc, s53, v15", "s_nop 0", f"s_cbranch_vccnz ATT_SP{tag}{sfx}", f"ATT_CT{tag}{sfx}:"]
        for kb in range(8):
            cur = kb & 1; nxt = 1 - cur
            arrive = ["ds_add_u32 v13, v12", "s_add_u32 s53, s53, 1"]
            if kb == 0 and not first: a.extend(chk(0))
            if kb == 6: a.I("s_waitcnt vmcnt(0)", *arrive)
            if kb == 7: a.extend(chk(7) + arrive)
            if kb == 7: a.I("v_xor_b32 v6, 0x8000, v6", "v_xor_b32 v7, 0x8000, v7")
            off = ((kb + 1) & 7) * 4096
            g0, g1 = (dg[2 * kb], dg[2 * kb + 1]) if kb < 4 and not first else (None, ["ds_read_b32 v15, v14"] if kb >= 6 else None)
            a.extend(tile(0, cur, cur, nxt, rdK(nxt, off) + rdV(nxt, off), g0))
            a.I("s_waitcnt lgkmcnt(0)" if ONEW else "s_waitcnt lgkmcnt(2)")
            a.extend(tile(1, nxt, cur, cur, [], g1))
            if kb == 7 and not first: a.I("s_add_u32 s28, s28, 1", "s_cmp_lg_u32 s28, 7")
            if not ONEW or kb >= 6: a.I("s_waitcnt lgkmcnt(0)")
    trip(True, "F")
    a.L("ATT_LOOP")
    jit(a, 8)
    trip(False, "")
    a.I("s_cbranch_scc1 ATT_LOOP")
    a.I(mfma32(O[1], VB[1] + 4, P + 4), rsum(1))
    ts(a, 4)
    for b in range(2): a.I(f"v_add_f32 v{Lr[b]}, v{Lr[b]}, v{Lr[b]+1}")
    a.I("s_setprio 3", f"s_mov_b32 s16, {f32(2.0**100)}")
    for b in range(2):
        a.I(f"v_max3_f32 v{8+b}, abs(v{O[b]}), abs(v{O[b]+1}), v{Lr[b]}", f"v_add_f32 v{10+b}, v{O[b]}, v{O[b]+1}")
    for i in range(2, 16, 2):
        for b in range(2):
            a.I(f"v_max3_f32 v{8+b}, v{8+b}, abs(v{O[b]+i}), abs(v{O[b]+i+1})", f"v_add3_u32 v2, v2, v2, v2" if False else f"v_add_f32 v{10+b}, v{10+b}, v{O[b]+i}",
                f"v_add_f32 v{86+b}, v{O[b]+i+1}, v{Lr[b]}" if i == 2 else f"v_add_f32 v{86+b}, v{86+b}, v{O[b]+i+1}")
    a.I("v_max_f32 v8, v8, v9", "v_add_f32 v10, v10, v11", "v_add_f32 v86, v86, v87", "v_add_f32 v9, v10, v86")
    a.I("v_cmp_nlt_f32 vcc, v8, s16", "v_cmp_u_f32 s[18:19], v9, v9", "s_or_b64 vcc, vcc, s[18:19]")
    if "force" in EXP: a.I("s_mov_b64 vcc, -1")
    a.I("s_cbranch_vccz ATT_FIN")
    cm(a, "fallback: online softmax with the true running max")
    for b in range(2):
        M = 10; AL = 11
        for i in range(16): a.I(f"v_mov_b32 v{O[b]+i}, 0")
        for i in range(4): a.I(f"v_mov_b32 v{Lr[b]+i}, 0")
        a.I(f"v_mov_b32 v{M}, {f32(-3.0e38)}", f"s_mov_b32 s29, 0")
        a.L(f"ATT_FB{b}")
        for ks in range(2):
            a.I(f"buffer_load_dwordx4 {vr(KB[0]+4*ks,4)}, v4, s[36:39], s29 offen offset:{ks*512}",
                f"buffer_load_dwordx4 {vr(VB[0]+4*ks,4)}, v3, s[36:39], s29 offen offset:{2048+ks*1024}")
        a.I("s_waitcnt vmcnt(0)")
        s0 = S[0]
        a.I(mfma32(s0, KB[0], QR[b], "0"), mfma32(s0, KB[0] + 4, QR[b] + 4))
        a.I(f"v_max3_f32 v8, v{s0}, v{s0+1}, v{M}")
        for i in range(2, 16, 2): a.I(f"v_max3_f32 v8, v8, v{s0+i}, v{s0+i+1}")
        a.I("v_mov_b32 v9, v8", "v_permlane32_swap_b32 v8, v9", "v_max_f32 v8, v8, v9",
            f"v_sub_f32 v{AL}, v{M}, v8", f"v_exp_f32 v{AL}, v{AL}", f"v_mov_b32 v{M}, v8")
        for i in range(16): a.I(f"v_sub_f32 v{s0+i}, v{s0+i}, v8")
        for i in range(16): a.I(f"v_exp_f32 v{s0+i}, v{s0+i}")
        for i in range(16): a.I(f"v_mul_f32 v{O[b]+i}, v{O[b]+i}, v{AL}")
        for i in range(4): a.I(f"v_mul_f32 v{Lr[b]+i}, v{Lr[b]+i}, v{AL}")
        for d in range(8): a.I(f"v_cvt_pk_bf16_f32 v{P+d}, v{s0+2*d}, v{s0+2*d+1}")
        a.I(mfma32(O[b], VB[0], P), mfma32(O[b], VB[0] + 4, P + 4), rsum(b))
        a.I("s_add_u32 s29, s29, 4096", f"s_cmp_lg_u32 s29, {64*4096}", f"s_cbranch_scc1 ATT_FB{b}")
        a.I(f"v_add_f32 v{Lr[b]}, v{Lr[b]}, v{Lr[b]+1}")
    a.L("ATT_FIN")
    a.I("v_mov_b32 v23, v13", "v_mov_b32 v24, v14", "v_mov_b32 v25, v12")
    a.I("v_bfe_u32 v2, v1, 4, 1", "v_lshlrev_b32 v5, 15, v2", "v_lshrrev_b32 v2, 5, v1", "v_lshl_add_u32 v5, v2, 8, v5",
        "v_and_b32 v2, 15, v1", "v_lshl_add_u32 v5, v2, 4, v5",
        "s_lshl_b32 s16, s22, 2", "s_add_u32 s16, s16, s20", "s_lshl_b32 s16, s16, 7", "s_add_u32 s16, s16, s21", "s_lshl_b32 s16, s16, 10",
        f"s_add_u32 s16, s16, {WS_O}", "s_add_u32 s17, s16, 65536")
    for b in range(2): a.I(f"v_rcp_f32 v{8+b}, v{Lr[b]}")
    for b in range(2):
        for i in range(16): a.I(f"v_mul_f32 v{O[b]+i}, v{O[b]+i}, v{8+b}")
        for d in range(8): a.I(f"v_cvt_pk_bf16_f32 v{S[b]+d}, v{O[b]+2*d}, v{O[b]+2*d+1}")
        for ks in range(2):
            a.I(f"buffer_store_dwordx4 {vr(S[b]+4*ks,4)}, v5, s[32:35], s{16+b} offen offset:{ks*512}{SC1}")

def down(a):
    R = 8; SLOT = 8192; NH_ = 56; NST = NH_ + 16 - NPA
    FW_ = [32, 64]; AR = 192; ACC = 128
    M32 = "d32" in EXP
    a.I(f"s_setprio {int(OPT.get('bp', 0))}", "s_lshl_b32 s16, s20, 11", "v_add_u32 v9, s16, v3")
    for t in range(8): a.I(f"ds_read_b128 {vr(192+4*t,4)}, v9 offset:{(t>>1)*8192+(t&1)*1024}")
    h_stores(a)
    a.I(f"s_load_dwordx2 s[8:9], s[0:1], {KA_WD}", f"s_load_dwordx2 s[4:5], s[0:1], {KA_WO}",
        "s_and_b32 s21, s2, 1",
        "s_bfe_u32 s16, s2, 0x10001", "s_lshl_b32 s16, s16, 3", "s_bfe_u32 s17, s2, 0x30003", "s_add_u32 s22, s16, s17",
        "s_bfe_u32 s16, s2, 0x10002", "s_lshl_b32 s16, s16, 2", "s_bfe_u32 s17, s2, 0x20006", "s_add_u32 s23, s16, s17",
        "s_lshl_b32 s46, s20, 11",
        "v_lshrrev_b32 v2, 4, v1", "s_lshl_b32 s16, s20, 3", "v_add_u32 v4, s16, v2", "v_lshlrev_b32 v4, 11, v4",
        "v_bfe_u32 v5, v1, 1, 3", *(["v_lshlrev_b32 v6, 1, v2", "v_xor_b32 v6, v6, v5", "v_mov_b32 v7, v6"] if M32 else ["v_xor_b32 v6, v2, v5", "v_xor_b32 v7, 4, v6"]),
        "v_and_b32 v2, 1, v1", "v_lshl_add_u32 v4, v2, 4, v4", "s_lshl_b32 s16, s23, 8", "v_add_u32 v4, s16, v4",
        f"v_add_u32 v5, {4*2048-1024}, v4",
        "v_lshl_add_u32 v4, v6, 5, v4", "v_lshl_add_u32 v5, v7, 5, v5",
        "s_mul_i32 s48, s21, %d" % (1792 * 2048), "s_waitcnt lgkmcnt(0)")
    srd(a, 24, 8, 3584 * 1024 * 2)
    def dma_w(st):
        sw = [*[f"s_mov_b32 s{24+i}, s{4+i}" for i in range(2)], "s_mov_b32 s26, 0x200000", "s_mov_b32 s48, s40"] if st == NH_ else []
        return sw + [f"s_add_u32 m0, s46, {(st % R) * SLOT}", "s_add_u32 s49, s48, 0",
                "buffer_load_dwordx4 v4, s[24:27], s49 offen lds", "s_add_u32 s48, s48, 65536",
                "buffer_load_dwordx4 v5, s[24:27], s49 offen offset:1024 lds"]
    def ld_a(st):
        r = AR + (st % R) * 8
        if st >= NH_:
            return (["s_mov_b32 s44, s41"] if st == NH_ else []) + [f"buffer_load_dwordx4 {vr(r,4)}, v3, s[32:35], s44 offen",
                    f"buffer_load_dwordx4 {vr(r+4,4)}, v27, s[32:35], s44 offen", "s_add_u32 s44, s44, 1024"]
        if M32: return [f"buffer_load_dwordx4 {vr(r,4)}, v10, s[32:35], s44 offen", f"buffer_load_dwordx4 {vr(r+4,4)}, v10, s[32:35], s44 offen offset:512",
                        "s_add_u32 s44, s44, 1024"]
        return [f"buffer_load_dwordx4 {vr(r,4)}, v3, s[32:35], s44 offen", f"buffer_load_dwordx4 {vr(r+4,4)}, v10, s[32:35], s44 offen",
                "s_add_u32 s44, s44, 1024"]
    L = Log()
    NW = int(OPT.get("nw", 2))
    for j in range(NW): a.extend(L.note(dma_w(j), ("w", j)))
    a.I(f"s_waitcnt vmcnt({2*NW})")
    set_flag(a, 60)
    LAG = int(OPT.get("lag", 2))
    for j in range(NW, R - LAG): a.extend(L.note(dma_w(j), ("w", j)))
    a.I("s_lshl_b32 s16, s22, 3", "s_lshl_b32 s17, s20, 1", "s_add_u32 s16, s16, s17", "s_mul_i32 s16, s16, 112",
        "s_mul_i32 s17, s21, 56", "s_add_u32 s16, s16, s17", "s_lshl_b32 s44, s16, 10", f"s_add_u32 s44, s44, {WS_H}",
        )
    if M32:
        a.I("v_bfe_u32 v2, v1, 4, 1", f"v_mul_u32_u24 v10, {112*1024}, v2", "v_lshrrev_b32 v8, 5, v1", "v_lshl_add_u32 v10, v8, 8, v10",
            "v_and_b32 v9, 15, v1", "v_lshl_add_u32 v10, v9, 4, v10",
            "v_lshlrev_b32 v12, 10, v8", "v_bfe_u32 v9, v1, 2, 2", "v_lshl_add_u32 v12, v9, 8, v12",
            "v_lshlrev_b32 v9, 1, v9", "v_xor_b32 v9, v9, v2", "v_lshl_add_u32 v12, v9, 5, v12",
            "v_and_b32 v9, 3, v1", "v_lshl_add_u32 v12, v9, 3, v12")
        for u in range(1, 4): a.I(f"v_xor_b32 v{12+u}, {64*u}, v12")
    else:
        a.I(f"v_add_u32 v10, {112*1024}, v3",
            "v_lshrrev_b32 v2, 4, v1", "v_lshlrev_b32 v12, 10, v2", "v_bfe_u32 v9, v1, 2, 2", "v_lshl_add_u32 v12, v9, 8, v12",
            "v_bfe_u32 v8, v1, 2, 3", "v_lshl_add_u32 v12, v8, 5, v12", "v_and_b32 v9, 3, v1", "v_lshl_add_u32 v12, v9, 3, v12")
        for u in range(1, 8): a.I(f"v_xor_b32 v{12+u}, {32*u}, v12")
    NT = 0
    if "wt2" in EXP:
        a.I("v_min_u32 v2, 55, v1", "v_lshlrev_b32 v24, 7, v2", "s_lshl_b32 s16, s2, 2", "s_add_u32 s16, s16, s20", "s_mul_i32 s16, s16, 7168",
            "buffer_load_dword v25, v24, s[24:27], s16 offen")
    if "wt" in EXP.split("_"):
        a.I("v_lshrrev_b32 v2, 1, v1", "v_lshlrev_b32 v24, 11, v2", "v_and_b32 v2, 1, v1", "v_lshl_add_u32 v24, v2, 7, v24",
            "s_and_b32 s16, s22, 7", "s_lshl_b32 s16, s16, 2", "s_add_u32 s16, s16, s20", "s_mul_i32 s16, s16, %d" % (56 * 2048),
            "s_mul_i32 s17, s21, %d" % (1792 * 2048), "s_add_u32 s16, s16, s17", "s_lshl_b32 s17, s23, 8", "s_add_u32 s16, s16, s17",
            f"s_add_u32 s17, s16, {24*2048}",
            "buffer_load_dword v25, v24, s[24:27], s16 offen", "buffer_load_dword v26, v24, s[24:27], s17 offen")
        NT = 2
    sync_setup(a, LC + 1024, 20, 21, 22)
    a.I("s_lshl_b32 s40, s21, 20", f"s_add_u32 s40, s40, {NPA*65536}", "s_and_b32 s16, s20, 1", "s_lshl_b32 s16, s16, 15", "s_add_u32 s40, s40, s16",
        "s_lshr_b32 s16, s20, 1", "s_lshl_b32 s16, s16, 14", "s_add_u32 s40, s40, s16", "s_lshl_b32 s16, s20, 14", "s_sub_u32 s40, s40, s16",
        "s_lshl_b32 s16, s22, 2", "s_add_u32 s16, s16, s20", "s_lshl_b32 s41, s16, 16", "s_lshl_b32 s16, s21, 14", "s_add_u32 s41, s41, s16",
        f"s_add_u32 s41, s41, {WS_O+NPA*1024}", "v_add_u32 v27, 0x8000, v3",
        f"v_add_u32 v2, {NPA}, v1", "v_and_b32 v8, 3, v2", "v_lshlrev_b32 v28, 8, v8", "v_bfe_u32 v8, v2, 2, 2", "v_lshl_add_u32 v28, v8, 5, v28",
        "s_lshr_b32 s16, s22, 1", "s_lshl_b32 s43, s16, 10", "s_and_b32 s16, s22, 1", "s_lshl_b32 s16, s16, 1", "s_lshr_b32 s17, s20, 1",
        "s_add_u32 s16, s16, s17", "s_lshl_b32 s16, s16, 2", "s_add_u32 s43, s43, s16", "s_lshl_b32 s16, s21, 7", "s_add_u32 s43, s43, s16",
        f"s_add_u32 s43, s43, {WS_FL+FL_O}")
    a.I("v_lshrrev_b32 v2, 4, v1", "v_bfe_u32 v8, v1, 2, 2", "v_lshl_add_u32 v9, v8, 3, v2", "v_lshlrev_b32 v9, 5, v9",
        "v_and_b32 v2, 3, v1", "v_lshl_add_u32 v9, v2, 2, v9",
        "s_lshr_b32 s18, s22, 1", "s_lshl_b32 s18, s18, 5", "s_lshl_b32 s16, s21, 2", "s_add_u32 s18, s18, s16", "s_lshl_b32 s18, s18, 5",
        f"s_add_u32 s18, s18, {WS_FL+FL_H+16}")
    PG = "nopg" not in EXP
    a.extend(poll(18, 8 if PG else 64, 9, sleep=int(OPT.get("hs", 2))))
    ts(a, 3)
    L.l = []
    for j in range(R - 1): a.extend(L.note(ld_a(j), ("a", j)))
    if PG: a.extend(L.note([poll_load(18, 9, 24), "s_mov_b32 s45, 44"], ("f", 0)))
    def need(k):
        last = max([i for i, t in enumerate(L.l) if (t[0] in "af" and t[1] <= k) or (t[0] == "w" and t[1] <= k + 1 + LAG)], default=-1)
        return len(L.l) - 1 - last
    def reads(st):
        if M32: return [f"ds_read_b64_tr_b16 {vr(FW_[st&1]+(ks*4+nb)*4+2*rd,2)}, v{12+nb} offset:{(st % R)*SLOT+ks*2048+rd*4096}"
                        for ks in range(2) for nb in range(4) for rd in range(2)]
        return [f"ds_read_b64_tr_b16 {vr(FW_[st&1]+u*4+2*rd,2)}, v{12+u} offset:{(st % R)*SLOT+rd*4096}" for u in range(8) for rd in range(2)]
    sync_block(a, 20, 21, 22, 23)
    a.extend(reads(0))
    a.I("ds_read_b32 v23, v21", f"s_mov_b32 s53, {2 - LAG}", f"s_setprio {int(OPT.get('dp', 1))}")
    def body(k):
        if M32: m = [mfma32(ACC + nb * 16, FW_[k & 1] + (ks * 4 + nb) * 4, AR + (k % R) * 8 + ks * 4, "0" if k + ks == 0 else None) for ks in range(2) for nb in range(4)]
        else: m = [mfma16(ACC + (t * 8 + u) * 4, FW_[k & 1] + u * 4, AR + (k % R) * 8 + t * 4, "0" if k == 0 else None) for u in range(8) for t in range(2)]
        if k + 1 >= NST: return [f"s_waitcnt vmcnt({need(k)}) lgkmcnt(0)"] + m
        h0, h1 = (1, 7) if M32 else (2, 14)
        CP = "nocp" not in EXP and not PT
        o = (["s_setprio 3"] if CP else []) + [f"s_waitcnt vmcnt({need(k)}) lgkmcnt(0)", "v_cmp_gt_i32 vcc, s53, v23"]
        o += ([f"s_setprio {int(OPT.get('dp', 1))}"] if CP else []) + ["ds_add_u32 v20, v22", "s_add_u32 s53, s53, 1"]
        if PT: o += [f"s_setprio {1 if (k % R) < PT else 0}"]
        o += m[:h0] + [f"s_nop {2 - h0 - (1 if PT else 0)}"] * (2 - h0 - (1 if PT else 0) >= 0) + (["s_cbranch_vccnz @SPIN"] if "nosync" not in EXP else []) + ["@CONT:"]
        if TH and k % 4 == 2:
            o += ["s_setprio 3", "v_cmp_gt_u32 vcc, s47, v25", f"s_setprio {int(OPT.get('dp', 1))}", f"s_add_u32 s47, s47, {TH}", "s_min_u32 s47, s47, 17",
                  "s_cbranch_vccnz @TSP", "@TCT:"]
        if PG and k % 8 == 0 and k <= 40:
            o += ["s_lshr_b64 s[28:29], -1, s45", "s_setprio 3", "v_cmp_ne_u32 vcc, s55, v24", f"s_setprio {int(OPT.get('dp', 1))}",
                  "s_sub_u32 s45, s45, 10", "s_max_i32 s45, s45, 0", "s_and_b64 vcc, vcc, s[28:29]", "s_cbranch_scc1 @FSP", "@FCT:"]
        dm = (L.note(dma_w(k - LAG + R), ("w", k - LAG + R)) if k - LAG + R < NST else []) + (L.note(ld_a(k - 1 + R), ("a", k - 1 + R)) if k - 1 + R < NH_ else [])
        OL = int(OPT.get("ol", 3))
        if k + OL + 2 == NH_: dm += L.note([poll_load(43, 28, 29)], ("f", k + 2))
        if k + OL == NH_:
            o += lanes(16 - NPA) + ["v_cmp_ne_u32 vcc, s55, v29", "s_mov_b64 exec, -1", "s_cbranch_vccnz DN_OS", "DN_OC:"]
        if NH_ <= k + OL < NST: dm += L.note(ld_a(k + OL), ("a", k + OL))
        if PG and k % 8 == 4 and k <= 44: dm += L.note([poll_load(18, 9, 24)], ("f", k + 4))
        if "dnodma" in EXP: dm = []
        fill = mixmem(reads(k + 1), dm, False)
        FR = int(OPT.get("fr", 5 if M32 else 10))
        rd = reads(k + 1) + ["ds_read_b32 v23, v21"] + (["ds_read_b32 v25, v26"] if TH and k % 4 == 1 else [])
        gs = groups_of(dm) if dm else []
        if "vend" in EXP:
            o += interleave(m[h0:FR], rd)
            rest = m[FR:]
            for i, x in enumerate(rest):
                o += [x] + [y for g in gs[(len(gs) * i) // len(rest):(len(gs) * (i + 1)) // len(rest)] for y in g]
            return o
        n = len(m) - h0; nr = FR - h0
        for i, x in enumerate(m[h0:]):
            o += [x] + (rd[(len(rd) * i) // nr:(len(rd) * (i + 1)) // nr] if i < nr else [])
            o += [y for g in gs[(len(gs) * i) // n:(len(gs) * (i + 1)) // n] for y in g]
        return o
    PT = int(OPT.get("pt", 0))
    TH = int(OPT.get("th", 0))
    if TH: a.I("v_subrev_u32 v26, 1024, v21", f"s_mov_b32 s47, {int(OPT.get('th0', 3))}")
    bodies = [body(k) for k in range(NST)]
    U = R
    for head in range(0, R + U + 1):
        nl = (NH_ - R - head) // U
        if all(bodies[k] == bodies[head + (k - head) % U] for k in range(head, head + nl * U)): break
    else: raise AssertionError
    spins = []
    def emit(k):
        spins.append(k)
        a.extend([x.replace("@SPIN", f"DN_SP{k}").replace("@CONT", f"DN_CT{k}").replace("@FSP", f"DN_FS{k}").replace("@FCT", f"DN_FC{k}").replace("@TSP", f"DN_TS{k}").replace("@TCT", f"DN_TC{k}") for x in bodies[k]])
    for k in range(head): emit(k)
    a.I(f"s_mov_b32 s51, {nl}")
    a.L("DN_LOOP")
    jit(a, 7)
    for k in range(head, head + U): emit(k)
    a.I("s_sub_u32 s51, s51, 1", "s_cmp_lg_u32 s51, 0", "s_cbranch_scc1 DN_LOOP")
    for k in range(head + nl * U, NST): emit(k)
    ts(a, 4)
    assert not M32
    jit(a, 5)
    XR = 32; PR = 64
    a.I("s_setprio 3", f"s_load_dwordx2 s[10:11], s[0:1], {KA_X}", f"s_load_dwordx2 s[12:13], s[0:1], {KA_OUT}",
        "s_lshl_b32 s16, s22, 2", "s_add_u32 s16, s16, s20", "s_lshl_b32 s16, s16, 16", "s_lshl_b32 s17, s23, 8", "s_add_u32 s42, s16, s17",
        "s_lshl_b32 s17, s23, 12", "s_add_u32 s43, s16, s17", f"s_add_u32 s43, s43, {WS_P}", "s_add_u32 s44, s43, 0x8000",
        "s_lshl_b32 s16, s20, 14", f"s_add_u32 s16, s16, {LKV}", "v_add_u32 v9, s16, v3", "v_subrev_u32 v26, 1024, v21",
        f"s_mov_b32 s53, {NA_END}", "s_mov_b32 s19, 0xffff0000", "s_lshr_b32 s40, s20, 1")
    xsel(a, 24)
    wave_flag(a, 60, FL_O)
    a.I("s_waitcnt lgkmcnt(0)")
    srd(a, 28, 10, 2048 * 2048); srd(a, 36, 12, 2048 * 2048)
    a.I("s_cmp_lg_u32 s40, s21", "s_cbranch_scc1 DN_NX", "s_add_u32 s17, s42, 0x8000")
    for t in range(2):
        for c in range(4): a.I(f"buffer_load_dwordx4 {vr(XR+16*t+4*c,4)}, v24, s[28:31], s{42 if t == 0 else 17} offen offset:{c*64}")
    a.L("DN_NX")
    a.I("ds_read_b32 v23, v26", "s_waitcnt lgkmcnt(0)", "v_cmp_gt_u32 vcc, s53, v23", "s_cbranch_vccz DN_AOK", "s_sleep 1", "s_branch DN_NX")
    a.L("DN_AOK")
    ts(a, 5)
    for i in range(16): a.I(f"ds_read_b128 {vr(192+4*i,4)}, v9 offset:{i*1024}")
    for i in range(16):
        if i % 4 == 0: a.I(f"s_waitcnt lgkmcnt({12 - i})")
        for j in range(4): a.I(f"v_add_f32 v{ACC+4*i+j}, v{ACC+4*i+j}, v{192+4*i+j}")
    a.I("s_cmp_eq_u32 s40, s21", "s_cbranch_scc1 DN_FIN")
    for t in range(2):
        for c in range(4):
            g = ACC + (t * 8 + c * 2) * 4; pk = 192 + (t * 4 + c) * 4
            for d in range(4): a.I(f"v_cvt_pk_bf16_f32 v{pk+d}, v{g+2*d}, v{g+2*d+1}")
            a.I(f"buffer_store_dwordx4 {vr(pk,4)}, v3, s[32:35], s{43+t} offen offset:{c*1024}{SC1}")
    a.I("s_waitcnt vmcnt(0)")
    set_flag(a, 60)
    tl_dump(a, 13)
    a.I("s_endpgm")
    a.L("DN_FIN")
    a.I("s_xor_b32 s18, s60, 32", "v_mov_b32 v25, 0", "s_waitcnt vmcnt(0)")
    for i in range(8): a.I(f"v_permlane16_swap_b32 v{XR+4*i}, v{XR+4*i+2}", f"v_permlane16_swap_b32 v{XR+4*i+1}, v{XR+4*i+3}")
    a.extend(lanes(1) + [poll_load(18, 25, 27), "s_mov_b64 exec, -1"])
    for i in range(32): a.I(f"v_lshlrev_b32 v{192+2*i}, 16, v{XR+i}", f"v_and_b32 v{193+2*i}, s19, v{XR+i}")
    for i in range(64): a.I(f"v_add_f32 v{ACC+i}, v{ACC+i}, v{192+i}")
    a.extend(poll(18, 1, 25, 27, preloaded=0, sleep=1))
    ts(a, 6)
    for t in range(2):
        for c in range(4): a.I(f"buffer_load_dwordx4 {vr(PR+16*t+4*c,4)}, v3, s[32:35], s{43+t} offen offset:{c*1024}")
    for i in range(8):
        g = ACC + 8 * i; pk = 32 + 4 * i
        a.I(f"s_waitcnt vmcnt({7 - i + i})")
        for d in range(4): a.I(f"v_lshlrev_b32 v{192+2*d}, 16, v{PR+4*i+d}", f"v_and_b32 v{193+2*d}, s19, v{PR+4*i+d}")
        for d in range(8): a.I(f"v_add_f32 v{g+d}, v{g+d}, v{192+d}")
        for d in range(4): a.I(f"v_cvt_pk_bf16_f32 v{pk+d}, v{g+2*d}, v{g+2*d+1}")
        a.I(f"v_permlane16_swap_b32 v{pk}, v{pk+2}", f"v_permlane16_swap_b32 v{pk+1}, v{pk+3}",
            f"buffer_store_dwordx4 {vr(pk,4)}, v24, s[36:39], s42 offen offset:{(i&3)*64}" + OPT.get("om", "").replace("+", " "))
        if i == 3: a.I("s_add_u32 s42, s42, 0x8000")
    tl_dump(a, 13)
    a.I("s_endpgm")
    a.L("DN_OS")
    a.extend(poll(43, 16 - NPA, 28, 29, sleep=2))
    a.I("s_branch DN_OC")
    for k in spins:
        if k + 1 >= NST: continue
        if any("@TSP" in x for x in bodies[k]):
            a.L(f"DN_TS{k}")
            a.I("s_sleep 4", "ds_read_b32 v25, v26", "s_waitcnt lgkmcnt(0)", f"v_add_u32 v25, {TH}, v25", "v_cmp_gt_u32 vcc, s47, v25",
                f"s_cbranch_vccnz DN_TS{k}", f"s_branch DN_TC{k}")
        if any("@FSP" in x for x in bodies[k]):
            a.L(f"DN_FS{k}")
            a.I("s_mov_b32 s17, 0x40000")
            a.L(f"DN_FL{k}")
            a.I(poll_load(18, 9, 24), "s_waitcnt vmcnt(0)", "v_cmp_ne_u32 vcc, s55, v24", "s_and_b64 vcc, vcc, s[28:29]",
                f"s_cbranch_scc0 DN_FC{k}", "s_sleep 2", "s_sub_u32 s17, s17, 1", "s_cmp_lg_u32 s17, 0", f"s_cbranch_scc1 DN_FL{k}", f"s_branch DN_FC{k}")
        a.L(f"DN_SP{k}")
        a.I("ds_read_b32 v23, v21", "s_waitcnt lgkmcnt(0)", "v_add_u32 v23, 1, v23", "v_cmp_gt_i32 vcc, s53, v23",
            f"s_cbranch_vccnz DN_SP{k}", f"s_branch DN_CT{k}")

NPA = 10
NA_END = 1 + 16 + 4
def wo(a):
    FW = [32, 128]; ACC = 64; OA = 160; D = 12; NP = NPA; SW = 99
    a.I(f"s_load_dwordx2 s[8:9], s[0:1], {KA_WO}",
        "s_and_b32 s21, s2, 1",
        "s_bfe_u32 s16, s2, 0x10001", "s_lshl_b32 s16, s16, 3", "s_bfe_u32 s17, s2, 0x30003", "s_add_u32 s22, s16, s17",
        "s_bfe_u32 s16, s2, 0x10002", "s_lshl_b32 s16, s16, 2", "s_bfe_u32 s17, s2, 0x20006", "s_add_u32 s23, s16, s17",
        "v_lshrrev_b32 v2, 4, v1", "s_lshl_b32 s16, s20, 3", "v_add_u32 v4, s16, v2", "v_lshlrev_b32 v4, 11, v4",
        "v_bfe_u32 v5, v1, 1, 3", "v_lshlrev_b32 v6, 1, v2", "v_xor_b32 v6, v6, v5", "v_mov_b32 v7, v6",
        "v_and_b32 v2, 1, v1", "v_lshl_add_u32 v4, v2, 4, v4", "s_lshl_b32 s16, s23, 8", "v_add_u32 v4, s16, v4",
        f"v_add_u32 v5, {4*2048-1024}, v4", "v_lshl_add_u32 v4, v6, 5, v4", "v_lshl_add_u32 v5, v7, 5, v5",
        "s_lshl_b32 s48, s21, 20", "s_lshl_b32 s46, s20, 11", f"s_add_u32 s46, s46, {LKV}",
        "s_lshl_b32 s16, s22, 2", "s_add_u32 s16, s16, s20", "s_lshl_b32 s44, s16, 16", "s_lshl_b32 s16, s21, 14", "s_add_u32 s44, s44, s16",
        f"s_add_u32 s44, s44, {WS_O}",
        "v_bfe_u32 v2, v1, 4, 1", "v_lshlrev_b32 v10, 15, v2", "v_lshrrev_b32 v2, 5, v1", "v_lshl_add_u32 v10, v2, 8, v10",
        "v_and_b32 v2, 15, v1", "v_lshl_add_u32 v10, v2, 4, v10")
    wave_flag(a, 60, FL_O)
    a.I("s_waitcnt vmcnt(0) lgkmcnt(0)")
    set_flag(a, 60)
    srd(a, 24, 8, 1024 * 1024 * 2)
    RT = int(OPT.get("rt", 0))
    a.I("s_and_b32 s16, s23, 3", f"s_mul_i32 s50, s16, {RT}", "s_mov_b32 s51, s50")
    def step(r): return [f"s_add_u32 s{r}, s{r}, 1", f"s_cmp_eq_u32 s{r}, {NP}", f"s_cselect_b32 s{r}, 0, s{r}"]
    def w_dma3(p):
        return [f"s_add_u32 m0, s46, {p * 8192}", "s_lshl_b32 s49, s50, 16", "s_add_u32 s49, s49, s48", "buffer_load_dwordx4 v4, s[24:27], s49 offen lds"] + \
               step(50) + ["buffer_load_dwordx4 v5, s[24:27], s49 offen offset:1024 lds"]
    def o_load(p):
        r = OA + (p % D) * 8
        return ["s_lshl_b32 s45, s51, 10", "s_add_u32 s45, s45, s44", f"buffer_load_dwordx4 {vr(r,4)}, v10, s[32:35], s45 offen"] + step(51) + \
               [f"buffer_load_dwordx4 {vr(r+4,4)}, v10, s[32:35], s45 offen offset:512"]
    sync_block(a, 23, 24, 25, 26)
    for p in range(NP): a.extend(w_dma3(p))
    a.I("v_lshrrev_b32 v2, 5, v1", "v_lshlrev_b32 v12, 10, v2", "v_bfe_u32 v9, v1, 2, 2", "v_lshl_add_u32 v12, v9, 8, v12",
        "v_lshlrev_b32 v9, 1, v9", "v_bfe_u32 v2, v1, 4, 1", "v_xor_b32 v9, v9, v2", "v_lshl_add_u32 v12, v9, 5, v12",
        "v_and_b32 v9, 3, v1", "v_lshl_add_u32 v12, v9, 3, v12", f"v_add_u32 v12, {LKV}, v12")
    for u in range(1, 4): a.I(f"v_xor_b32 v{12+u}, {64*u}, v12")
    for u in range(4): a.I(f"v_add_u32 v{16+u}, 0x10000, v{12+u}")
    a.I("v_and_b32 v2, 3, v1", "v_lshlrev_b32 v9, 8, v2", "v_bfe_u32 v2, v1, 2, 2", "v_lshl_add_u32 v9, v2, 5, v9",
        "v_bfe_u32 v2, v1, 4, 1", "v_lshl_add_u32 v9, v2, 2, v9",
        "s_lshr_b32 s16, s22, 1", "s_lshl_b32 s18, s16, 10", "s_and_b32 s16, s22, 1", "s_lshl_b32 s16, s16, 3", "s_add_u32 s18, s18, s16",
        "s_lshl_b32 s16, s21, 7", "s_add_u32 s18, s18, s16", f"s_add_u32 s18, s18, {WS_FL+FL_O}")
    a.I("s_cmp_lg_u32 s20, 0", "s_cbranch_scc1 WO_NPL")
    a.I(f"s_mov_b32 exec_lo, {((1 << NP) - 1) * 0x10001:#x}", "s_mov_b32 exec_hi, 0")
    a.extend(poll(18, 64, 9, sleep=int(OPT.get("os", 4))))
    a.I("s_mov_b64 exec, -1")
    a.I("WO_NPL:", "s_waitcnt vmcnt(0)")
    sync_block(a, 23, 24, 25, 26, sleep=True)
    ts(a, 5)
    L = Log()
    nxt = int(OPT.get("o0", 4))
    for p in range(nxt): a.extend(L.note(o_load(p), p))
    a.I(f"s_setprio {int(OPT.get('wp', 0))}")
    def reads(p):
        sl = p % 10
        return [f"ds_read_b64_tr_b16 {vr(FW[p&1]+(ks*4+nb)*4+2*rd,2)}, v{(12 if sl < 8 else 16)+nb} offset:{(sl&7)*8192+ks*4096+rd*2048}"
                for ks in range(2) for nb in range(4) for rd in range(2)]
    a.extend(reads(0))
    for p in range(NP):
        wc = L.cnt(p)
        a.I(f"s_waitcnt vmcnt({wc}) lgkmcnt(0)")
        if "wost" in EXP and p in (0, 4): ts(a, {0: 9, 4: 10}[p])
        if "wost" in EXP and p == 9: ts(a, 11)
        if "wost" in EXP and p == SW: ts(a, 6)
        extra = L.note([x for q in range(10, NP) for x in w_dma3(q)], 99) if p == SW else []
        for _ in range(3):
            if nxt < NP and nxt < p + D: extra += L.note(o_load(nxt), nxt); nxt += 1
        m = [mfma32(ACC + nb * 16, FW[p & 1] + (ks * 4 + nb) * 4, OA + (p % D) * 8 + 4 * ks, "0" if p + ks == 0 else None) for ks in range(2) for nb in range(4)]
        rd = reads(p + 1) if p + 1 < NP else []
        gs = groups_of(extra) if extra else []
        for i, x in enumerate(m):
            a.I(x); a.extend(rd[3 * i:3 * i + 3])
            a.extend([y for g in gs[(len(gs) * i) // 8:(len(gs) * (i + 1)) // 8] for y in g])
    a.I("s_setprio 3")
    sync_block(a, 23, 24, 25, 26)
    a.I("s_lshl_b32 s16, s20, 14", f"s_add_u32 s16, s16, {LKV}", "v_bfe_u32 v2, v1, 4, 1", "v_lshlrev_b32 v9, 13, v2",
        "v_lshrrev_b32 v2, 5, v1", "v_lshl_add_u32 v9, v2, 8, v9", "v_and_b32 v2, 15, v1", "v_lshl_add_u32 v9, v2, 4, v9", "v_add_u32 v9, s16, v9")
    for nb in range(4):
        for j in range(4): a.I(f"ds_write_b128 v9, {vr(ACC+16*nb+4*j,4)} offset:{(2*nb+(j>>1))*1024+(j&1)*512}")
    a.I("ds_add_u32 v23, v25", "s_waitcnt lgkmcnt(0)")

def fused():
    a = Asm()
    cm(a, "One persistent launch, 256 workgroups x 8 waves (one per CU, all resident).  Workgroups hand data to each other through d_ws:",
          "write-through (sc1) stores, s_waitcnt vmcnt(0), then a flag word holding this launch's tag; consumers poll the flags (sc1 loads,",
          "bounded spins with a short back-off) and never touch a hand-off line before its flag is up.",
          "phase 0: layernorm + K/V projection | G1: gate, up and one head of q per tile | attention (waves 0-3) beside the down projection",
          "(waves 4-7) | o @ wo on the same output tile, summed through LDS | halves exchanged between the two K halves, + x, stored.")
    ts(a, 0)
    a.I("s_cmp_ge_u32 s2, 256", "s_cbranch_scc1 F_END",
        f"s_load_dwordx8 s[4:11], s[0:1], {KA_X}", f"s_load_dwordx4 s[40:43], s[0:1], {KA_WG}",
        f"s_load_dwordx4 s[12:15], s[0:1], {KA_DBG}", "s_memrealtime s[48:49]",
        "v_lshrrev_b32 v2, 6, v0", "v_and_b32 v1, 63, v0", "v_readfirstlane_b32 s20, v2", "v_lshlrev_b32 v3, 4, v1",
        "s_lshr_b32 s21, s2, 4", "s_lshl_b32 s21, s21, 3", "s_and_b32 s16, s2, 7", "s_add_u32 s45, s21, s16", "s_lshl_b32 s23, s45, 15",
        "s_mov_b32 s54, s20", "s_lshl_b32 s16, s20, 12", "s_add_u32 s19, s23, s16", "s_waitcnt lgkmcnt(0)")
    srd(a, 32, 14, WS_SIZE); srd(a, 56, 12, 256)
    cm(a, "workgroup 0 publishes the launch tag in d_debug[0]; it only tells this launch's flags from those an earlier launch left in d_ws")
    a.I("s_or_b32 s16, s2, s20", "s_cmp_lg_u32 s16, 0", "s_cbranch_scc1 F_NT",
        "s_or_b32 s16, s48, 1", "v_mov_b32 v2, s16", "v_mov_b32 v8, 0", "s_mov_b64 exec, 1",
        "buffer_store_dword v2, v8, s[56:59], 0 offen sc1", "s_mov_b64 exec, -1")
    a.L("F_NT")
    cm(a, "---- phase 0: layernorm of 16 tokens (rounded like the reference), K or V of those tokens")
    jit(a, 0)
    phase0(a)
    jit(a, 1)
    ts(a, 8)
    if "p0st" in EXP:
        tl_dump(a, 13); a.I("s_endpgm")
    cm(a, "---- G1: 256 tokens x (112 gate + 112 up + 32 q columns), 5-slot LDS ring, waves 0-3 / 4-7 alternate MFMA and memory phases")
    g1(a)
    a.I("s_and_b32 s20, s54, 3", "s_cmp_ge_u32 s54, 4", "s_cbranch_scc1 F_B")
    cm(a, "---- attention: one head, 64 queries per wave.  Shift = row max of the first key block (enters as the C operand);",
          "after the loop a run-time check (sums and outputs finite, < 2^100) falls back to an online softmax with the true running max")
    jit(a, 2)
    attention(a)
    cm(a, "---- o @ wo, first heads of this tile's K half")
    jit(a, 3)
    wo(a)
    tl_dump(a, 13)
    a.I("s_endpgm")
    if "ablock" not in EXP:
        for tag in ("0", "7", "7F"):
            a.L(f"ATT_SP{tag}")
            a.I("ds_read_b32 v15, v14", "s_waitcnt lgkmcnt(0)", "v_cmp_gt_u32 vcc, s53, v15", f"s_cbranch_vccnz ATT_SP{tag}", f"s_branch ATT_CT{tag}")
    a.L("F_B")
    cm(a, "---- down projection (K half) + remaining heads of o @ wo, then the final sum")
    jit(a, 4)
    down(a)
    a.L("F_END")
    a.I("s_endpgm")
    return a, dict(grid=256, block=512, lds=163840, vgpr=256)

if __name__ == "__main__":
    path = sys.argv[1] if len(sys.argv) > 1 else "cdna_kernels/" + NAME + ".s"
    opts = dict(o.split("=") for o in sys.argv[2:])
    NPA = int(opts.get("npa", 8))
    OPT = opts; EXP = opts.get("exp", ""); TL = bool(int(opts.get("tl", 0)))
    G.VERB = bool(int(opts.get("verb", 0)))
    SC1 = opts.get("sm", "+sc1").replace("+", " ")
    G.build([(NAME if int(opts.get("single", 0)) else "fused8", fused())], path)
```

```python
import sys
from asmlib import *
import gen as G
from gen import (NAME, KA_X, KA_WQ, KA_WK, KA_WV, KA_WO, KA_WG, KA_WU, KA_WD, KA_OUT, KA_DBG, KA_WS,
                 WS_XN, WS_KV, WS_O, WS_H, WS_P, WS_SIZE, f32, vr, srd, mfma32, mfma16, QSCALE, mix2, front_pattern)
WS_FL = 0x0480000
FL_KV, FL_X, FL_H, FL_O, FL_P = 0, 4096, 12288, 20480, 24576
WS_TL = 0x3F10000
LKV = 65536
LQ = 131072
LC = 147456
HP = 224
TL = False; EXP = ""; OPT = {}
SC1 = " sc1"

def cm(a, *lines):
    for l in lines: a.items.append(Ins("; " + l))
def ts(a, i):
    if TL: a.I(f"s_mem{'' if 'cyc' in EXP else 'real'}time s[{62+2*i}:{63+2*i}]")
def tl_dump(a, n):
    if not TL: return
    a.I("s_waitcnt vmcnt(0) lgkmcnt(0)")
    ts(a, 7)
    if "hd" in EXP.split("_"):
        a.I("s_waitcnt lgkmcnt(0)", "s_and_b32 s90, s54, 3", "s_cmp_lg_u32 s90, 0", "s_cbranch_scc1 F_END", "s_sleep 127", "s_sleep 127", "s_sleep 127",
            "v_mov_b32 v1, 0", "s_mov_b64 exec, 1", "s_not_b32 s90, s62", "v_mov_b32 v2, s90",
            "buffer_atomic_umax v2, v1, s[56:59], 0 offen offset:4", "s_lshr_b32 s90, s54, 2", "s_mul_i32 s90, s90, 0")
        lab = f"HD{len(a.items)}"
        for j, i in enumerate((0, 8, 11, 12, 1, 2, 3, 4, 5, 7)):
            if j == 6: a.I("s_cmp_ge_u32 s54, 4", f"s_cbranch_scc1 {lab}")
            if j in (2, 3): a.I("s_cmp_ge_u32 s54, 4", f"s_cselect_b32 s{62+2*i}, 0, s{62+2*i}")
            a.I(f"v_mov_b32 v2, s{62+2*i}", f"buffer_atomic_umax v2, v1, s[56:59], 0 offen offset:{8+4*j}")
        a.I("s_endpgm")
        a.L(lab)
        for j, i in enumerate((3, 4, 7)):
            a.I(f"v_mov_b32 v2, s{62+2*i}", f"buffer_atomic_umax v2, v1, s[56:59], 0 offen offset:{48+4*j}")
        return
    a.I("s_waitcnt lgkmcnt(0)", "s_lshl_b32 s90, s2, 3", "s_add_u32 s90, s90, s54", "s_lshl_b32 s90, s90, 6",
        f"s_add_u32 s90, s90, {WS_TL}", "v_mov_b32 v1, 0", "s_mov_b64 exec, 1")
    for i in range(n):
        a.I(f"v_mov_b32 v2, s{62+2*i}", f"buffer_store_dword v2, v1, s[32:35], s90 offen offset:{4*i}")

_n = [0]
def jit(a, k):
    J = int(OPT.get("jit", 0))
    if not J: return
    _n[0] += 1; lab = f"JIT{_n[0]}"
    a.I(f"s_mul_i32 s93, s2, {0x9e37 + 2 * k + 64 * J}", "s_mul_i32 s94, s54, 0x1b5", "s_add_u32 s93, s93, s94", "s_bfe_u32 s93, s93, 0x30004", lab + ":",
        "s_cmp_eq_u32 s93, 0", f"s_cbranch_scc1 {lab}_D", f"s_sleep {8 * J}", "s_sub_u32 s93, s93, 1", f"s_branch {lab}", lab + "_D:")
def lanes(n): return [f"s_mov_b32 exec_lo, {((1 << n) - 1) & 0xffffffff:#x}", f"s_mov_b32 exec_hi, {((1 << n) - 1) >> 32:#x}"] if n < 64 else []
def poll_load(soff, voff, dst, wide=False):
    return f"buffer_load_dword{'x4' if wide else ''} {vr(dst, 4 if wide else 1)}, v{voff}, s[32:35], s{soff} offen sc1"
def poll_test(dst, wide):
    if wide:
        return [f"v_xor_b32 v{dst+i}, s55, v{dst+i}" for i in range(4)] + \
               [f"v_or3_b32 v{dst}, v{dst}, v{dst+1}, v{dst+2}", f"v_or_b32 v{dst}, v{dst}, v{dst+3}", f"v_cmp_ne_u32 vcc, 0, v{dst}"]
    return [f"v_cmp_ne_u32 vcc, s55, v{dst}"]
def poll(soff, n, voff, dst=2, wide=False, preloaded=None, sleep=2):
    _n[0] += 1; lab = f"POLL{_n[0]}"
    o = lanes(n)
    if preloaded is not None:
        o += [f"s_waitcnt vmcnt({preloaded})"] + poll_test(dst, wide) + [f"s_cbranch_vccz {lab}_D"]
    o += ["s_mov_b32 s17, 0x40000", lab + ":", poll_load(soff, voff, dst, wide), "s_waitcnt vmcnt(0)"] + poll_test(dst, wide)
    o += [f"s_cbranch_vccz {lab}_D", f"s_sleep {sleep}", "s_sub_u32 s17, s17, 1", "s_cmp_lg_u32 s17, 0", f"s_cbranch_scc1 {lab}", lab + "_D:"]
    if n < 64: o += ["s_mov_b64 exec, -1"]
    return o
def set_flag(a, soff):
    a.I("v_mov_b32 v2, s55", "v_mov_b32 v8, 0", "s_mov_b64 exec, 1",
        f"buffer_store_dword v2, v8, s[32:35], s{soff} offen sc1", "s_mov_b64 exec, -1")
def wave_flag(a, reg, base):
    a.I(f"s_lshl_b32 s{reg}, s2, 3", f"s_add_u32 s{reg}, s{reg}, s54", f"s_lshl_b32 s{reg}, s{reg}, 2", f"s_add_u32 s{reg}, s{reg}, {WS_FL+base}")
def sync_setup(a, base, own, chk, one):
    a.I("s_lshl_b32 s16, s20, 8", f"s_add_u32 s16, s16, {base}", f"v_lshl_add_u32 v{own}, v1, 2, s16",
        "v_and_b32 v2, 3, v1", f"v_lshlrev_b32 v{chk}, 8, v2", f"v_lshl_add_u32 v{chk}, v1, 2, v{chk}", f"v_add_u32 v{chk}, {base}, v{chk}",
        f"v_mov_b32 v{one}, 1", "s_mov_b32 s53, 0")
def sync_block(a, own, chk, one, tmp, sleep=False):
    _n[0] += 1; lab = f"SY{_n[0]}"
    a.I(f"ds_add_u32 v{own}, v{one}", "s_add_u32 s53, s53, 1")
    a.L(lab)
    if sleep: a.I("s_sleep 1")
    a.I(f"ds_read_b32 v{tmp}, v{chk}", "s_waitcnt lgkmcnt(0)", f"v_cmp_gt_u32 vcc, s53, v{tmp}", f"s_cbranch_vccnz {lab}")
def xsel(a, dst):
    a.I("v_and_b32 v2, 15, v1", f"v_lshlrev_b32 v{dst}, 11, v2", "v_bfe_u32 v2, v1, 4, 1", f"v_lshl_add_u32 v{dst}, v2, 5, v{dst}",
        "v_lshrrev_b32 v2, 5, v1", f"v_lshl_add_u32 v{dst}, v2, 4, v{dst}")
def is_vm(x): return x.startswith("buffer") or x.startswith("global")
def groups_of(dm):
    gs = []; cur = []
    for x in dm:
        cur.append(x)
        if is_vm(x): gs.append(cur); cur = []
    gs[-1] += cur
    return gs
def mixmem(rd, dm, dma_first=True):
    if not rd or not dm: return rd + dm
    gs = groups_of(dm)
    pre = [x for x in rd if x.startswith("v_")]; ds = [x for x in rd if x.startswith("ds_")]; post = [x for x in rd if x.startswith("s_")]
    o = list(pre); n = len(gs); per = len(ds) // n
    for g in range(n):
        part = ds[g * per:(g + 1) * per if g < n - 1 else len(ds)]
        o += (gs[g] + part) if dma_first else (part + gs[g])
    return o + post
class Log:
    def __init__(self): self.l = []
    def note(self, instrs, st): self.l += [st] * sum(map(is_vm, instrs)); return instrs
    def cnt(self, st):
        last = max([i for i, s_ in enumerate(self.l) if s_ is not None and s_ <= st], default=-1)
        return len(self.l) - 1 - last

WA0, WA1, WST = 116, 118, 120
def w_dma(slotreg):
    return [f"s_add_u32 m0, s{slotreg}, s46", "s_nop 0",
            f"global_load_lds_dwordx4 {vr(WA0,2)}, off" + OPT.get("wm", "").replace("+", " "), f"global_load_lds_dwordx4 {vr(WA1,2)}, off offset:1024" + OPT.get("wm", "").replace("+", " "),
            f"v_lshl_add_u64 {vr(WA0,2)}, {vr(WST,2)}, 0, {vr(WA0,2)}", f"v_lshl_add_u64 {vr(WA1,2)}, {vr(WST,2)}, 0, {vr(WA1,2)}"]

def tag_check(a, x):
    a.I("s_mov_b32 s17, 0x40000")
    a.L("P0_TAG" + x)
    a.I("s_cmp_eq_u32 s55, 0", "s_cbranch_scc1 P0_TAGLD" + x,
        "s_sub_u32 s16, s48, s55", "s_add_u32 s16, s16, 3000", "s_cmp_lt_u32 s16, 6000", "s_cbranch_scc1 P0_TAGOK" + x,
        "s_cmp_lt_u32 s17, 0x3f800", "s_cbranch_scc1 P0_TAGOK" + x)
    a.L("P0_TAGLD" + x)
    a.I("buffer_load_dword v6, v7, s[56:59], 0 offen sc1", "s_waitcnt vmcnt(0)", "v_readfirstlane_b32 s55, v6",
        "s_sub_u32 s17, s17, 1", "s_cmp_lg_u32 s17, 0", "s_cbranch_scc1 P0_TAG" + x)
    a.L("P0_TAGOK" + x)

STREAM = ["buffer_load_dword v122, v114, s[88:91], s100 offen", "buffer_load_dword v123, v114, s[92:95], s100 offen",
          "buffer_load_dword v124, v115, s[96:99], s101 offen"]
def phase0(a):
    LW, LX, LR = 49152, 114688, 147456
    srd(a, 24, 4, 2048 * 2048)
    for i in range(4): a.I(f"buffer_load_dwordx4 {vr(8+4*i,4)}, v3, s[24:27], s19 offen offset:{i*1024}")
    a.I("v_mov_b32 v7, 0", "buffer_load_dword v6, v7, s[56:59], 0 offen sc1")
    NH = int(OPT.get("nh", 5))
    a.I("s_cmp_eq_u32 s20, 0", "s_cselect_b64 s[12:13], s[40:41], s[42:43]", f"s_mov_b32 s16, {NH*896}",
        "s_cmp_eq_u32 s20, 2", "s_cselect_b64 s[12:13], s[6:7], s[12:13]", f"s_cselect_b32 s16, {NH*256}, s16")
    srd(a, 88, 12, 1024 * 1024 * 2)
    a.I("v_lshlrev_b32 v114, 7, v1", "s_sub_u32 s17, s16, 128", "v_min_u32 v114, s17, v114", "s_mul_i32 s92, s16, s2")
    a.I("s_cmp_lg_u32 s20, 3", "s_cbranch_scc1 P0_N7", "s_bitcmp1_b32 s2, 3", "s_cselect_b64 s[88:89], s[10:11], s[8:9]", "s_mov_b32 s90, 0x10000",
        "v_and_b32 v114, 0xf80, v114", "s_lshr_b32 s92, s2, 4", "s_lshl_b32 s92, s92, 12")
    a.L("P0_N7")
    a.I("s_bfe_u32 s22, s2, 0x10003", "s_cmp_eq_u32 s22, 0", "s_cselect_b64 s[12:13], s[8:9], s[10:11]")
    srd(a, 28, 12, 65536)
    a.I("s_lshl_b32 s17, s20, 13")
    a.I("s_and_b32 s16, s2, 7", "s_lshl_b32 s16, s16, 2", "s_bfe_u32 s21, s2, 0x20003", "s_add_u32 s21, s21, s16",
        "s_and_b32 s23, s20, 3", "s_cmp_lt_u32 s20, 4", "s_cselect_b64 s[12:13], s[42:43], s[40:41]", "s_cselect_b32 s18, 32, 0",
        "s_cselect_b32 s46, 8192, 0", "s_lshl_b32 s16, s23, 11", "s_add_u32 s46, s46, s16", "s_add_u32 s46, s46, 16384",
        "v_lshrrev_b32 v2, 4, v1", "s_lshl_b32 s16, s23, 3", "v_add_u32 v4, s16, v2",
        "s_and_b32 s16, s23, 1", "s_lshl_b32 s16, s16, 2", "v_add_u32 v2, s16, v2", "v_bfe_u32 v5, v1, 1, 3", "v_xor_b32 v2, v2, v5",
        "v_cmp_eq_u32 vcc, 7, v2", "v_mov_b32 v5, 7168", "v_mov_b32 v112, 2048", f"v_cndmask_b32 v{WST}, v5, v112, vcc",
        f"v_mul_lo_u32 v4, v4, v{WST}",
        "s_mul_i32 s16, s21, 224", "v_lshl_add_u32 v5, v2, 5, s16", "s_lshl_b32 s16, s21, 6", "s_add_u32 s16, s16, s18",
        "v_mov_b32 v112, s16", "v_cndmask_b32 v5, v5, v112, vcc", "v_add_u32 v4, v4, v5",
        "v_and_b32 v2, 1, v1", "v_lshl_add_u32 v4, v2, 4, v4",
        "v_mov_b32 v5, s12", "v_mov_b32 v112, s6", f"v_cndmask_b32 v{WA0}, v5, v112, vcc",
        "v_mov_b32 v5, s13", "v_mov_b32 v112, s7", f"v_cndmask_b32 v{WA0+1}, v5, v112, vcc",
        "v_mov_b32 v5, 0", f"v_lshl_add_u64 {vr(WA0,2)}, v[4:5], 0, {vr(WA0,2)}",
        f"v_lshlrev_b32 v4, 2, v{WST}", "v_add_u32 v4, -1024, v4" if False else "v_subrev_u32 v4, 1024, v4",
        f"v_lshl_add_u64 {vr(WA1,2)}, v[4:5], 0, {vr(WA0,2)}",
        f"v_lshlrev_b32 v{WST}, 5, v{WST}", f"v_mov_b32 v{WST+1}, 0", "s_mov_b32 s47, 0")
    srd(a, 24, 12, 1024 * 3584 * 2)
    a.I("s_mov_b32 s21, s45", "s_lshl_b32 s23, s21, 15", "s_mov_b32 s36, 0xffff0000",
        "s_waitcnt vmcnt(1)", "s_cmp_ge_u32 s20, 4", "s_cbranch_scc1 P0_NS", "buffer_load_dword v122, v114, s[88:91], s92 offen")
    CT = int(OPT.get("ct", 0))
    if CT:
        a.I("s_getpc_b64 s[94:95]", "P0_PC:", "s_mov_b32 s93, F_END-P0_PC", "s_lshr_b32 s16, s2, 3", "s_lshl_b32 s16, s16, 2", "s_add_u32 s16, s16, s20", f"s_mul_i32 s16, s16, {CT*128}",
            f"v_min_u32 v2, {CT-1}, v1", "v_lshlrev_b32 v123, 7, v2", "v_add_u32 v123, s16, v123", "v_min_u32 v123, s93, v123", "global_load_dword v124, v123, s[94:95]")
    a.I("P0_NS:")
    ts(a, 9)
    for r in range(2):
        for d in range(8):
            src = 8 + 8 * r + d
            a.I(f"v_lshlrev_b32 v{32+16*r+2*d}, 16, v{src}", f"v_and_b32 v{33+16*r+2*d}, s36, v{src}")
    def tree2(bases, sq):
        T_ = [(24 + i, bases[i], 64 + 8 * i) for i in range(2)]
        for dst, base, t in T_:
            for i in range(8):
                a.I(f"v_mul_f32 v{t+i}, v{base+2*i}, v{base+2*i}" if sq else f"v_add_f32 v{t+i}, v{base+2*i}, v{base+2*i+1}")
        if sq:
            for dst, base, t in T_:
                for i in range(8): a.I(f"v_fmac_f32 v{t+i}, v{base+2*i+1}, v{base+2*i+1}")
        for s_ in (4, 2):
            for dst, base, t in T_:
                for i in range(s_): a.I(f"v_add_f32 v{t+i}, v{t+i}, v{t+i+s_}")
        for dst, base, t in T_: a.I(f"v_add_f32 v{dst}, v{t}, v{t+1}")
    def wavered(rs, ss):
        for mod in ("row_shr:1 row_mask:0xf bank_mask:0xf bound_ctrl:0", "row_shr:2 row_mask:0xf bank_mask:0xf bound_ctrl:0",
                    "row_shr:4 row_mask:0xf bank_mask:0xf bound_ctrl:0", "row_shr:8 row_mask:0xf bank_mask:0xf bound_ctrl:0",
                    "row_bcast:15 row_mask:0xa bank_mask:0xf", "row_bcast:31 row_mask:0xc bank_mask:0xf"):
            for r in rs: a.I(f"v_add_f32_dpp v{r}, v{r}, v{r} {mod}")
        for r, s_ in zip(rs, ss): a.I(f"v_readlane_b32 s{s_}, v{r}, 63")
    if "p0st" in EXP: ts(a, 1)
    tree2((32, 48), False)
    wavered((24, 25), (40, 41))
    if "p0st" in EXP: ts(a, 2)
    a.I(f"s_mov_b32 s37, {f32(1.0/1024)}")
    a.I("v_mov_b32 v26, s40", "v_mov_b32 v27, s41", "v_mul_f32 v26, s37, v26", "v_mul_f32 v27, s37, v27")
    for r in range(2):
        for i in range(16): a.I(f"v_sub_f32 v{80+16*r+i}, v{32+16*r+i}, v{26+r}")
    tree2((80, 96), True)
    wavered((24, 25), (42, 43))
    a.I("v_mov_b32 v28, s42", "v_mov_b32 v29, s43", "v_mul_f32 v28, s37, v28", "v_mul_f32 v29, s37, v29")
    def rnd(*rs):
        for r in rs: a.I(f"v_cvt_pk_bf16_f32 v{r}, v{r}, v{r}")
        for r in rs: a.I(f"v_lshlrev_b32 v{r}, 16, v{r}")
    a.I(f"s_mov_b32 s38, {f32(1e-5)}")
    rnd(28, 29, 26, 27)
    a.I("v_add_f32 v28, s38, v28", "v_add_f32 v29, s38, v29"); rnd(28, 29)
    a.I("v_sqrt_f32 v28, v28", "v_sqrt_f32 v29, v29"); rnd(28, 29)
    a.I("v_rcp_f32 v28, v28", "v_rcp_f32 v29, v29")
    if "p0st" in EXP: ts(a, 3)
    P_ = [(r, d, 32 + 16 * r + 2 * d) for r in range(2) for d in range(8)]
    if "ln1" in EXP:
        a.I("v_mul_f32 v26, v26, v28", "v_mul_f32 v27, v27, v29")
        for r, d, b in P_: a.I(f"v_fma_f32 v{b}, v{b}, v{28+r}, -v{26+r}", f"v_fma_f32 v{b+1}, v{b+1}, v{28+r}, -v{26+r}")
    else:
        for r, d, b in P_: a.I(f"v_sub_f32 v{b}, v{b}, v{26+r}", f"v_sub_f32 v{b+1}, v{b+1}, v{26+r}")
        for r, d, b in P_: a.I(f"v_cvt_pk_bf16_f32 v{80+8*r+d}, v{b}, v{b+1}")
        for r, d, b in P_: a.I(f"v_lshlrev_b32 v{b}, 16, v{80+8*r+d}", f"v_and_b32 v{b+1}, s36, v{80+8*r+d}")
        for r, d, b in P_: a.I(f"v_mul_f32 v{b}, v{b}, v{28+r}", f"v_mul_f32 v{b+1}, v{b+1}, v{28+r}")
    for r, d, b in P_: a.I(f"v_cvt_pk_bf16_f32 v{8+8*r+d}, v{b}, v{b+1}")
    if "p0st" in EXP: ts(a, 4)
    a.I("s_lshl_b32 s16, s20, 1", "v_and_b32 v2, 15, v1", "v_xor_b32 v2, s16, v2", "v_lshlrev_b32 v4, 8, v1", "v_lshl_add_u32 v4, v2, 4, v4",
        f"v_add_u32 v4, {LX}, v4", "v_xor_b32 v25, 16, v4")
    for r in range(2):
        for p in range(2): a.I(f"ds_write_b128 v{25 if r else 4}, {vr(8+8*r+4*p,4)} offset:{p*16384}")
    a.I("v_lshrrev_b32 v5, 4, v1", "v_lshlrev_b32 v2, 4, v5", "v_xor_b32 v26, v2, v3",
        "s_lshl_b32 s16, s20, 12", f"s_add_u32 s16, s16, {LX}", "v_add_u32 v30, s16, v26",
        "v_xor_b32 v27, 64, v30", "v_xor_b32 v28, 0x80, v30", "v_xor_b32 v29, 0xc0, v30",
        "v_lshlrev_b32 v31, 9, v5", "v_bfe_u32 v2, v1, 2, 2", "v_lshl_add_u32 v31, v2, 6, v31",
        "v_and_b32 v2, 3, v1", "v_lshl_add_u32 v31, v2, 3, v31", f"s_add_u32 s16, s17, {LW}", "v_add_u32 v31, s16, v31",
        "s_lshl_b32 s16, s22, 14", "s_and_b32 s18, s20, 3", "s_lshl_b32 s18, s18, 12", "s_add_u32 s16, s16, s18",
        "s_add_u32 s39, s23, s16", f"s_add_u32 s16, s16, {LX}", "v_add_u32 v24, s16, v26",
        "v_xor_b32 v25, 64, v24", "v_xor_b32 v4, 0x80, v24", "v_xor_b32 v26, 0xc0, v24",
        "s_cmp_ge_u32 s20, 4", "s_cbranch_scc1 P0_B")
    a.I("s_lshl_b32 s18, s20, 14")
    for g in range(4):
        a.I(f"s_add_u32 m0, s18, {LW+g*4096}", f"s_add_u32 s16, s18, {g*4096}")
        for i in range(4): a.I(f"buffer_load_dwordx4 v3, s[28:31], s16 offen offset:{i*1024} lds")
    a.extend(w_dma(47))
    a.I("s_waitcnt lgkmcnt(0)", "s_barrier", "s_waitcnt vmcnt(2)", "v_readfirstlane_b32 s55, v6")
    tag_check(a, "A")
    a.I("s_branch P0_C")
    a.L("P0_B")
    a.I("s_waitcnt lgkmcnt(0)", "s_barrier")
    ts(a, 10)
    for i, r in enumerate((24, 25, 4, 26)): a.I(f"ds_read_b128 {vr(8+4*i,4)}, v{r} offset:{i*1024}")
    for i in range(4): a.I(f"s_waitcnt lgkmcnt({3-i})", f"buffer_store_dwordx4 {vr(8+4*i,4)}, v3, s[32:35], s39 offen offset:{i*1024} sc1")
    a.extend(w_dma(47))
    a.I("s_waitcnt vmcnt(6)", "v_readfirstlane_b32 s55, v6")
    tag_check(a, "B")
    wave_flag(a, 18, FL_X)
    a.I("s_waitcnt vmcnt(2)")
    set_flag(a, 18)
    a.L("P0_C")
    a.I("s_barrier")
    for j in range(4):
        a.I(f"ds_read_b128 {vr(32+4*j,4)}, v{(30, 27, 28, 29)[j]} offset:{j*1024}")
        for d in range(2):
            for rd in range(2):
                a.I(f"ds_read_b64_tr_b16 {vr(64+8*j+4*d+2*rd,2)}, v31 offset:{j*2048+rd*256+d*32}")
    a.I("s_waitcnt lgkmcnt(0)", "s_cmp_eq_u32 s22, 0", "s_cbranch_scc0 P0_V")
    for j in range(4):
        for d in range(2): a.I(mfma16(96 + 4 * d, 64 + 8 * j + 4 * d, 32 + 4 * j, "0" if j == 0 else None))
    a.I("s_branch P0_R")
    a.L("P0_V")
    for j in range(4):
        for d in range(2): a.I(mfma16(96 + 4 * d, 32 + 4 * j, 64 + 8 * j + 4 * d, "0" if j == 0 else None))
    a.L("P0_R")
    a.I("s_lshl_b32 s16, s20, 11", f"s_add_u32 s16, s16, {LR}", "v_add_u32 v4, s16, v3")
    for d in range(2): a.I(f"ds_write_b128 v4, {vr(96+4*d,4)} offset:{d*1024}")
    a.I("s_waitcnt lgkmcnt(0)", "s_barrier")
    a.I("s_cmp_lg_u32 s20, 0", "s_cbranch_scc1 P0_END")
    a.I(f"v_add_u32 v4, {LR}, v3")
    for w in range(8):
        a.I(f"ds_read_b128 {vr(32+8*w,4)}, v4 offset:{w*2048}", f"ds_read_b128 {vr(36+8*w,4)}, v4 offset:{w*2048+1024}")
    a.I("s_waitcnt lgkmcnt(0)")
    for s_ in (4, 2, 1):
        for w in range(s_):
            for i in range(8): a.I(f"v_add_f32 v{32+8*w+i}, v{32+8*w+i}, v{32+8*(w+s_)+i}")
    for d in range(4): a.I(f"v_cvt_pk_bf16_f32 v{8+d}, v{32+2*d}, v{33+2*d}")
    a.I("s_lshr_b32 s16, s21, 1", "s_lshl_b32 s19, s16, 12", f"s_add_u32 s19, s19, {WS_KV}",
        "s_and_b32 s16, s21, 1", "s_lshl_b32 s16, s16, 10", "s_add_u32 s19, s19, s16",
        "s_cmp_eq_u32 s22, 0", "s_cbranch_scc0 P0_SV",
        "buffer_store_dwordx4 v[8:11], v3, s[32:35], s19 offen sc1", "s_branch P0_KF")
    a.L("P0_SV")
    a.I("v_and_b32 v2, 1, v5", "v_lshlrev_b32 v4, 9, v2", "v_and_b32 v2, 15, v1", "v_lshl_add_u32 v4, v2, 4, v4",
        "v_lshrrev_b32 v2, 1, v5", "v_lshl_add_u32 v4, v2, 3, v4",
        "buffer_store_dwordx2 v[8:9], v4, s[32:35], s19 offen offset:2048 sc1",
        "buffer_store_dwordx2 v[10:11], v4, s[32:35], s19 offen offset:2304 sc1")
    a.L("P0_KF")
    if "kvearly" in EXP:
        a.I("s_lshl_b32 s18, s2, 2", f"s_add_u32 s18, s18, {WS_FL+FL_KV}", "s_waitcnt vmcnt(0)")
        set_flag(a, 18)
    a.L("P0_END")

def kv_groups():
    gs = []
    for g in range(2):
        for i in range(4):
            o = [f"s_add_u32 m0, s25, {g*4096}", f"s_add_u32 s26, s24, {g*4096}"] if i == 0 else []
            gs.append(o + [f"buffer_load_dwordx4 v3, s[36:39], s26 offen offset:{i*1024} lds"])
    gs[-1] += ["s_add_u32 s24, s24, 32768", "s_xor_b32 s25, s25, 32768"]
    return gs

def emit_loop(a, label, bodies):
    best = (0, 1)
    i = 0
    while i < len(bodies):
        j = i
        while j < len(bodies) and bodies[j] == bodies[i]: j += 1
        if j - i > best[1] - best[0]: best = (i, j)
        i = j
    for k in range(best[0]): a.extend(bodies[k])
    a.I(f"s_mov_b32 s51, {best[1]-best[0]}")
    a.L(label)
    a.extend(bodies[best[0]])
    a.I("s_sub_u32 s51, s51, 1", "s_cmp_lg_u32 s51, 0", f"s_cbranch_scc1 {label}")
    for k in range(best[1], len(bodies)): a.extend(bodies[k])

def xn_poll(a):
    a.I("s_and_b32 s18, s2, 0xe0", "s_lshr_b32 s16, s20, 2", "s_lshl_b32 s16, s16, 4", "s_add_u32 s18, s18, s16",
        "s_and_b32 s16, s20, 3", "s_lshl_b32 s16, s16, 1", "s_add_u32 s18, s18, s16", "s_lshl_b32 s18, s18, 5", f"s_add_u32 s18, s18, {WS_FL+FL_X+16}",
        "v_and_b32 v2, 3, v1", "v_lshlrev_b32 v8, 2, v2", "v_bfe_u32 v2, v1, 2, 1", "v_lshl_add_u32 v8, v2, 5, v8",
        "v_lshrrev_b32 v2, 3, v1", "v_lshl_add_u32 v8, v2, 8, v8")
    if int(OPT.get("xs", 0)):
        a.extend(poll(18, 16, 8, 17, sleep=int(OPT.get("xs"))))
        return
    a.extend(lanes(16) + ["s_mov_b32 s17, 0x20000", poll_load(18, 8, 17), "s_sleep 3", "G1_PP:", poll_load(18, 8, 18), "s_waitcnt vmcnt(1)",
             "v_cmp_ne_u32 vcc, s55, v17", "s_cbranch_vccz G1_PD", poll_load(18, 8, 17), "s_waitcnt vmcnt(1)",
             "v_cmp_ne_u32 vcc, s55, v18", "s_cbranch_vccz G1_PD", "s_sub_u32 s17, s17, 1", "s_cmp_lg_u32 s17, 0", "s_cbranch_scc1 G1_PP",
             "G1_PD:", "s_mov_b64 exec, -1"])

def g1(a):
    EA = "ea" in EXP.split("_")
    NST = 32; R = 5; SLOT = 32768
    ACC = 128; FA = 64; FW = 96
    def acc(h, u, t): return ACC + (t * 4 + h * 2 + u) * 4
    a.I("s_and_b32 s16, s2, 7", "s_lshl_b32 s16, s16, 2", "s_bfe_u32 s21, s2, 0x20003", "s_add_u32 s21, s21, s16",
        "s_lshr_b32 s22, s2, 5", "s_and_b32 s23, s20, 3", "v_add_u32 v10, 31744, v3",
        "s_lshl_b32 s16, s22, 4", "s_lshl_b32 s17, s20, 1", "s_add_u32 s16, s16, s17", "s_lshl_b32 s44, s16, 15",
        "s_lshl_b32 s45, s20, 11", "s_mov_b32 s47, 0", "s_mov_b32 s50, 0", f"s_mov_b32 s52, {SLOT}",
        *([f"s_mov_b32 s47, {SLOT}", "s_add_u32 s44, s44, 1024"] if EA else []))
    PD = int(OPT.get("pd", 5))
    RH = int(OPT.get("rh", 1)); PX = int(OPT.get("px", 0))
    if PD:
        a.I(f"s_load_dwordx2 s[4:5], s[0:1], {KA_WQ}", f"s_load_dwordx2 s[6:7], s[0:1], {KA_WD}", f"s_load_dwordx2 s[8:9], s[0:1], {KA_WO}",
            f"v_min_u32 v2, {7*RH-1}, v1", "v_lshlrev_b32 v14, 7, v2", f"s_mul_i32 s16, s2, {896*RH}", "v_add_u32 v14, s16, v14",
            f"s_mov_b32 s31, {32*7168*RH}", f"s_mov_b32 s30, {PD*32*7168}", "s_cmp_eq_u32 s23, 0", "s_cbranch_scc1 G1_T0",
            *([f"s_mov_b32 s30, {PX*32*7168}", "v_bfe_u32 v2, v1, 2, 2", "s_lshl_b32 s16, s22, 2", "v_add_u32 v2, s16, v2", "v_mul_u32_u24 v14, 7168, v2",
               "v_and_b32 v2, 3, v1", "v_min_u32 v2, 2, v2", "v_mul_u32_u24 v2, 104, v2", "s_mul_i32 s16, s21, 224", "v_add3_u32 v14, v14, v2, s16",
               "s_cmp_eq_u32 s23, 2", "s_cbranch_scc1 G1_T0"] if PX else []),
            "s_mov_b32 s30, 0x7f000000", "s_mov_b32 s31, 0", "s_cmp_ge_u32 s20, 4", "s_cbranch_scc1 G1_T0", "s_waitcnt lgkmcnt(0)",
            "s_cmp_eq_u32 s20, 1", "s_cbranch_scc0 G1_T2")
        srd(a, 24, 4, 1024 * 1024 * 2)
        a.I("v_and_b32 v2, 1, v1", "v_lshlrev_b32 v14, 7, v2", "s_lshl_b32 s16, s2, 8", "v_add_u32 v14, s16, v14",
            f"s_mov_b32 s31, {32*2048}", f"s_mov_b32 s30, {PD*32*2048}", "s_branch G1_T0")
        a.L("G1_T2")
        if "nolate" not in EXP:
            a.I("s_cmp_eq_u32 s20, 2", "s_cbranch_scc0 G1_T3")
            srd(a, 24, 6, 3584 * 1024 * 2)
            if "lwd" in EXP: a.I("v_min_u32 v2, 8, v1", "v_lshlrev_b32 v14, 7, v2", "s_mov_b32 s31, 1152", "s_mul_i32 s30, s2, 28672")
            a.I("s_branch G1_T0")
            a.L("G1_T3")
            srd(a, 24, 8, 1024 * 1024 * 2)
            a.I("v_min_u32 v2, 2, v1", "v_lshlrev_b32 v14, 7, v2", "s_mov_b32 s31, 384", "s_lshl_b32 s30, s2, 13")
        a.L("G1_T0")
    def touch(): return ["buffer_load_dword v16, v14, s[24:27], s30 offen" + OPT.get("tm", "").replace("+", " "), "s_add_u32 s30, s30, s31"] if PD else []
    def touch0(): return []
    if not EA: xn_poll(a)
    ts(a, 11)
    def adv(reg): return [f"s_add_u32 s{reg}, s{reg}, {SLOT}", f"s_cmp_eq_u32 s{reg}, {SLOT*R}", f"s_cselect_b32 s{reg}, 0, s{reg}"]
    def dma_act():
        return ["s_add_u32 m0, s47, s45", "s_nop 0", "buffer_load_dwordx4 v3, s[32:35], s44 offen lds",
                "buffer_load_dwordx4 v10, s[32:35], s44 offen offset:1024 lds", "s_add_u32 s44, s44, 1024"] + adv(47)
    def dma_w(): return w_dma(52) + adv(52)
    def rdaddr():
        return ["s_lshr_b32 s17, s20, 2", "s_lshl_b32 s16, s17, 13", "v_add_u32 v6, s16, v3",
                "s_and_b32 s19, s21, 1", "s_lshl_b32 s16, s23, 1", "s_add_u32 s40, s16, s19", "s_add_u32 s41, s40, 1",
                "s_mul_i32 s16, s19, 6", "s_sub_u32 s16, 6, s16", "s_cmp_eq_u32 s23, 3", "s_cselect_b32 s40, s16, s40", "s_cselect_b32 s41, 7, s41",
                "v_lshrrev_b32 v2, 4, v1", "v_lshlrev_b32 v7, 11, v2", "v_and_b32 v2, 1, v2", "v_lshlrev_b32 v12, 2, v2",
                "v_bfe_u32 v2, v1, 2, 2", "v_lshl_add_u32 v7, v2, 8, v7", "v_add_u32 v12, v12, v2",
                "v_and_b32 v2, 3, v1", "v_lshl_add_u32 v7, v2, 3, v7", "v_add_u32 v7, 16384, v7",
                "v_xor_b32 v2, s41, v12", "v_lshl_add_u32 v11, v2, 5, v7", "v_xor_b32 v2, s40, v12", "v_lshl_add_u32 v7, v2, 5, v7"]
    def reads():
        o = ["v_add_u32 v8, s50, v6", "v_add_u32 v9, s50, v7", "v_add_u32 v13, s50, v11"]
        for h in range(2):
            for u in range(2):
                for rd in range(2):
                    o.append(f"ds_read_b64_tr_b16 {vr(FW+(h*2+u)*4+2*rd,2)}, v{9 if u == 0 else 13} offset:{h*8192+rd*1024}")
        for t in range(8): o.append(f"ds_read_b128 {vr(FA+t*4,4)}, v8 offset:{t*1024}")
        return o + adv(50)
    def mm(first):
        MO = int(OPT.get("mo", 3))
        if MO == 1: idx = [(t, h, u) for h in range(2) for u in range(2) for t in range(8)]
        elif MO == 2: idx = [(t, hu >> 1, hu & 1) for t in range(8) for hu in (range(4) if t & 1 == 0 else range(3, -1, -1))]
        elif MO == 3: idx = [(t, hu >> 1, hu & 1) for hu in range(4) for t in (range(8) if hu & 1 == 0 else range(7, -1, -1))]
        else: idx = [(t, h, u) for t in range(8) for h in range(2) for u in range(2)]
        return [mfma16(acc(h, u, t), FW + (h * 2 + u) * 4, FA + t * 4, "0" if first else None) for t, h, u in idx]
    a.I("s_cmp_ge_u32 s20, 4", "s_cbranch_scc1 G1_B")
    L = Log()
    NP0 = int(OPT.get("np0", 2))
    def proA(js): return [x for j in js for x in (L.note(dma_w(), j) if 0 < j < R - 1 else []) + (L.note(dma_act(), j) if j or not EA else [])]
    a.extend(proA(range(NP0)))
    def kv_flag():
        a.I("s_lshl_b32 s18, s2, 2", f"s_add_u32 s18, s18, {WS_FL+FL_KV}", "s_cmp_eq_u32 s20, 0", "s_cselect_b32 s18, s18, 0x7f000000")
        set_flag(a, 18); L.note(["buffer"], None)
    if not EA: kv_flag()
    a.extend(rdaddr())
    if EA: a.I("s_cmp_eq_u32 s20, 0", "s_cbranch_scc1 G1_W0")
    a.I(f"s_waitcnt vmcnt({L.cnt(0)})", "G1_W0:", "s_barrier")
    a.extend(mixmem(reads(), proA(range(NP0, R)), False))
    E0 = "noe0" not in EXP
    a.I("s_waitcnt lgkmcnt(0)" if E0 else f"s_waitcnt vmcnt({L.cnt(1)}) lgkmcnt(0)", "s_barrier")
    ts(a, 12)
    kv = kv_groups()
    def bodyA(k, first=False):
        o = mm(first)
        if first and E0: o += [f"s_waitcnt vmcnt({L.cnt(1)})", "s_barrier"]
        if first and EA:
            o += ["s_lshl_b32 s18, s2, 2", f"s_add_u32 s18, s18, {WS_FL+FL_KV}", "s_cmp_eq_u32 s20, 0", "s_cselect_b32 s18, s18, 0x7f000000",
                  "v_mov_b32 v17, s55", "v_mov_b32 v18, 0", "s_mov_b64 exec, 1"] + L.note(["buffer_store_dword v17, v18, s[32:35], s18 offen sc1"], None) + ["s_mov_b64 exec, -1"]
        dm = L.note([f"s_mov_b32 s18, {WS_FL+FL_KV}", poll_load(18, 3, 28, True)], None) if k == 27 else []
        dm += (L.note(dma_w(), k - 1 + R) if k - 1 + R < NST else []) + (L.note(dma_act() + touch(), k + R) if k + R < NST else [])
        if k + R < NST and PD: L.l[-1] = None
        if k == 28:
            o += poll(18, 64, 3, 28, True, preloaded=2)
            o += ["s_lshl_b32 s24, s20, 13", f"s_add_u32 s25, s24, {LKV}",
                  f"s_add_u32 s36, s32, {WS_KV}", "s_addc_u32 s37, s33, 0", "s_mov_b32 s38, 0x40000", "s_mov_b32 s39, 0x20000"]
            dm = L.note([x for g in kv for x in g], None)
        if k == 29: dm = L.note([x for g in kv for x in g], None)
        o += mixmem(reads() if k + 1 < NST else [], dm)
        if k + 1 < NST: o += [f"s_waitcnt vmcnt({L.cnt(k + 2)}) lgkmcnt(0)", "s_barrier"]
        return o
    emit_loop(a, "G1_A_LOOP", [bodyA(k, k == 0) for k in range(NST)])
    a.I("s_branch G1_EPI")
    a.L("G1_B")
    M = Log()
    def proB(js): return [x for j in js for x in (M.note(dma_w(), j) if j else []) + (M.note(dma_act(), j) if j or not EA else [])]
    a.extend(proB(range(min(NP0, R - 1))))
    a.extend(rdaddr())
    a.I(f"s_waitcnt vmcnt({M.cnt(0)})", "s_barrier")
    a.extend(proB(range(min(NP0, R - 1), R - 1)))
    a.I(*([] if E0 else [f"s_waitcnt vmcnt({M.cnt(1)})"]), "s_barrier")
    def bodyB(k, first=False):
        dm = M.note(dma_w() + dma_act(), k - 1 + R) + M.note(touch(), None) if k - 1 + R < NST else []
        o = mixmem(reads(), dm) + ([f"s_waitcnt vmcnt({M.cnt(1)})", "s_barrier"] if first and E0 else []) + ["s_waitcnt lgkmcnt(0)"] + mm(first)
        if k + 1 < NST: o += [f"s_waitcnt vmcnt({M.cnt(k + 2)})", "s_barrier"]
        return o
    emit_loop(a, "G1_B_LOOP", [bodyB(k, k == 0) for k in range(NST)])
    a.L("G1_EPI")
    jit(a, 6)
    ts(a, 1)
    a.I("s_lshl_b32 s16, s20, 8", f"s_add_u32 s16, s16, {LC}", "v_lshl_add_u32 v13, v1, 2, s16", "v_mov_b32 v12, 0", "ds_write_b32 v13, v12")
    wave_flag(a, 60, FL_H)
    a.I("s_lshl_b32 s16, s22, 4", "s_lshr_b32 s17, s20, 2", "s_lshl_b32 s17, s17, 3", "s_add_u32 s16, s16, s17", "s_mul_i32 s16, s16, 112",
        "s_mul_i32 s17, s21, 7", "s_add_u32 s17, s17, s40", "s_lshr_b32 s17, s17, 1", "s_add_u32 s16, s16, s17",
        "s_lshl_b32 s16, s16, 10", f"s_add_u32 s61, s16, {WS_H}", "s_cmp_lg_u32 s23, 3", "s_cbranch_scc1 G1_NQ")
    a.I(f"s_mov_b32 s18, {f32(QSCALE)}", "s_lshr_b32 s16, s20, 2", "s_lshl_b32 s16, s16, 13", f"s_add_u32 s16, s16, {LQ}",
        "v_add_u32 v9, s16, v3", "s_lshl_b32 s16, s19, 3", "s_add_u32 s61, s61, s16")
    for t in range(8):
        q0, q1 = acc(0, 1, t), acc(1, 1, t)
        for i in range(4): a.I(f"v_mul_f32 v{q0+i}, s18, v{q0+i}", f"v_mul_f32 v{q1+i}, s18, v{q1+i}")
        a.I(f"v_cvt_pk_bf16_f32 v{FA+4*t}, v{q0}, v{q0+1}", f"v_cvt_pk_bf16_f32 v{FA+4*t+1}, v{q0+2}, v{q0+3}",
            f"v_cvt_pk_bf16_f32 v{FA+4*t+2}, v{q1}, v{q1+1}", f"v_cvt_pk_bf16_f32 v{FA+4*t+3}, v{q1+2}, v{q1+3}",
            f"ds_write_b128 v9, {vr(FA+4*t,4)} offset:{t*1024}")
    a.L("G1_NQ")
    XE = "xlate" not in EXP
    if XE: a.I("s_cmp_lt_u32 s20, 4", "s_cbranch_scc1 G1_PK", "s_waitcnt lgkmcnt(0)", "s_barrier", "s_setprio 3", "G1_PK:")
    a.I("s_cmp_eq_u32 s23, 3", "s_cbranch_scc1 G1_EPQ")
    for t in reversed(range(8)):
        g, u = acc(0, 0, t), acc(1, 0, t)
        for i in range(8): a.I(f"v_max_f32 v{g+i}, 0, v{g+i}")
        for i in range(8): a.I(f"v_mul_f32 v{g+i}, v{g+i}, v{u+i}")
        for d in range(4): a.I(f"v_cvt_pk_bf16_f32 v{HP+4*t+d}, v{g+2*d}, v{g+2*d+1}")
    a.I("s_branch G1_X")
    a.L("G1_EPQ")
    for t in reversed(range(8)):
        g, u = acc(0, 0, t), acc(1, 0, t)
        for i in range(4): a.I(f"v_max_f32 v{g+i}, 0, v{g+i}")
        for i in range(4): a.I(f"v_mul_f32 v{g+i}, v{g+i}, v{u+i}")
        for d in range(2): a.I(f"v_cvt_pk_bf16_f32 v{HP+4*t+d}, v{g+2*d}, v{g+2*d+1}")
    a.L("G1_X")
    a.I("s_cmp_ge_u32 s20, 4", "s_cbranch_scc1 G1_X2", "s_lshl_b32 s16, s20, 11", "v_add_u32 v9, s16, v3")
    for t in range(8): a.I(f"ds_write_b128 v9, {vr(HP+4*t,4)} offset:{(t>>1)*8192+(t&1)*1024}")
    if XE: a.I("s_waitcnt lgkmcnt(0)", "s_barrier", "G1_X2:")
    else: a.I("G1_X2:", "s_waitcnt lgkmcnt(0)", "s_barrier")
    ts(a, 2)

def h_stores(a):
    _n[0] += 1; lab = f"HS{_n[0]}"
    a.I(f"s_sub_u32 s16, s61, {8*112*1024}", "s_cmp_eq_u32 s20, 3", f"s_cbranch_scc1 {lab}")
    for w, n in ((4, lab + "_D"), (2, None)):
        for t in range(8): a.I(f"buffer_store_dwordx{w} {vr(HP+4*t,w)}, v3, s[32:35], s61 offen{SC1}", f"s_add_u32 s61, s61, {112*1024}")
        a.I("s_waitcnt lgkmcnt(0)")
        for t in range(8): a.I(f"buffer_store_dwordx{w} {vr(192+4*t,w)}, v3, s[32:35], s16 offen{SC1}", f"s_add_u32 s16, s16, {112*1024}")
        if n: a.I(f"s_branch {n}"); a.L(lab)
    a.L(lab + "_D")

def attention(a):
    QR = [16, 24]; KB = [32, 48]; VB = [40, 56]; P = 64; SEL = 72; Lr = [76, 80]; S = [96, 112]; O = [128, 144]; C = [160, 176]
    a.I(f"s_add_u32 s36, s32, {WS_KV}", "s_addc_u32 s37, s33, 0", "s_mov_b32 s38, 0x40000", "s_mov_b32 s39, 0x20000")
    a.I("v_bfe_u32 v2, v1, 4, 1", "v_lshlrev_b32 v4, 10, v2", "v_lshrrev_b32 v2, 5, v1", "v_lshl_add_u32 v4, v2, 8, v4",
        "v_and_b32 v2, 15, v1", "v_lshl_add_u32 v4, v2, 4, v4",
        "s_lshl_b32 s16, s20, 12", f"s_add_u32 s16, s16, {LQ}", "v_add_u32 v5, s16, v4")
    for b in range(2):
        for ks in range(2): a.I(f"ds_read_b128 {vr(QR[b]+4*ks,4)}, v5 offset:{b*2048+ks*512}")
    a.I(f"v_add_u32 v6, {LKV}, v4", f"v_add_u32 v7, {LKV+2048}, v3")
    sync_setup(a, LC, 13, 14, 12)
    a.I("s_waitcnt vmcnt(8)")
    sync_block(a, 13, 14, 12, 15)
    def rdK(buf, off): return [f"ds_read_b128 {vr(KB[buf]+4*ks,4)}, v6 offset:{off+ks*512}" for ks in range(2)]
    def rdV(buf, off): return [f"ds_read_b128 {vr(VB[buf]+4*ks,4)}, v7 offset:{off+ks*1024}" for ks in range(2)]
    a.extend(rdK(0, 0) + rdV(0, 0))
    def rsum(b): return f"v_smfmac_f32_16x16x64_bf16 {vr(Lr[b],4)}, {vr(SEL,4)}, {vr(P,8)}, v84"
    a.I("v_and_b32 v2, 4, v1", "v_cmp_eq_u32 vcc, 0, v2", "v_mov_b32 v5, 0x3f803f80", "s_mov_b32 s28, 0", "v_and_b32 v2, 1, v1",
        f"v_cndmask_b32 v{SEL}, 0, v5, vcc", f"v_cndmask_b32 v{SEL+2}, v5, 0, vcc" if False else f"v_xor_b32 v{SEL+2}, v5, v{SEL}",
        f"v_mov_b32 v{SEL+1}, v{SEL}", f"v_mov_b32 v{SEL+3}, v{SEL+2}",
        "s_mov_b32 s16, 0xaaaaaaaa", "v_mul_lo_u32 v84, v2, s16", "v_or_b32 v84, 0x44444444, v84")
    a.I("s_waitcnt lgkmcnt(0)")
    ts(a, 3)
    for b in range(2):
        a.I(mfma32(S[b], KB[0], QR[b], "0"), mfma32(S[b], KB[0] + 4, QR[b] + 4))
    for b in range(2):
        for i in range(16): a.I(f"v_mov_b32 v{O[b]+i}, 0")
        for i in range(4): a.I(f"v_mov_b32 v{Lr[b]+i}, 0")
    for i in range(4): a.I(f"v_mov_b32 v{P+i}, 0", f"v_mov_b32 v{P+4+i}, 0", f"v_mov_b32 v{VB[1]+4+i}, 0")
    for b in range(2):
        s0 = S[b]; m = 8 + 2 * b
        a.I(f"v_max3_f32 v{m}, v{s0}, v{s0+1}, v{s0+2}")
        for i in range(3, 15, 2): a.I(f"v_max3_f32 v{m}, v{m}, v{s0+i}, v{s0+i+1}")
        a.I(f"v_max_f32 v{m}, v{m}, v{s0+15}", f"v_mov_b32 v{m+1}, v{m}")
    for b in range(2):
        m = 8 + 2 * b
        a.I(f"v_permlane32_swap_b32 v{m}, v{m+1}", f"v_max_f32 v{m}, v{m}, v{m+1}", f"v_sub_f32 v{C[b]}, 0, v{m}")
        for i in range(1, 16): a.I(f"v_mov_b32 v{C[b]+i}, v{C[b]}")
    a.I(mfma32(S[0], KB[0], QR[0], C[0]), mfma32(S[0], KB[0] + 4, QR[0] + 4))
    def tile(b, kbuf_next, vbuf, vprev, extra, dg):
        nb = 1 - b; s0 = S[b]
        ex = [f"v_exp_f32 v{s0+i}, v{s0+i}" for i in range(16)]
        cv = [f"v_cvt_pk_bf16_f32 v{P+d}, v{s0+2*d}, v{s0+2*d+1}" for d in range(8)]
        e = list(extra) + [None] * 4
        TV = int(OPT.get("tv", 0))
        QK0, QK1 = mfma32(S[nb], KB[kbuf_next], QR[nb], C[nb]), mfma32(S[nb], KB[kbuf_next] + 4, QR[nb] + 4)
        PV1, PV0 = mfma32(O[nb], VB[vprev] + 4, P + 4), mfma32(O[b], VB[vbuf], P)
        if TV == 1:
            o = [QK0, e[0]] + ex[0:2] + [e[1], ex[2], rsum(nb)] + ex[3:5] + [PV1, e[2], e[3]] + ex[5:8] + [cv[0], cv[1], QK1, cv[2], cv[3]] + ex[8:11] + [PV0] + ex[11:14]
        elif TV == 2:
            o = [PV1, e[0]] + ex[0:2] + [e[1], ex[2], rsum(nb), e[2]] + ex[3:5] + [QK0, e[3]] + ex[5:8] + [cv[0], cv[1], cv[2], cv[3], QK1] + ex[8:11] + [PV0] + ex[11:14]
        elif TV == 3:
            o = [QK0, e[0]] + ex[0:2] + [e[1]] + ex[2:4] + [PV1, e[2]] + ex[4:6] + [rsum(nb), e[3]] + ex[6:8] + [cv[0], cv[1], cv[2], cv[3], QK1] + ex[8:12] + [PV0] + ex[12:14]
        elif "twow" not in EXP:
            o = [mfma32(S[nb], KB[kbuf_next], QR[nb], C[nb]), e[0]] + ex[0:2] + [e[1], ex[2]]
            o += [mfma32(O[nb], VB[vprev] + 4, P + 4), e[2]] + ex[3:6]
            o += [rsum(nb), e[3]] + ex[6:8]
            o += [mfma32(S[nb], KB[kbuf_next] + 4, QR[nb] + 4), cv[0], cv[1], ex[8], cv[2], cv[3], ex[9], ex[10]]
            o += [mfma32(O[b], VB[vbuf], P)] + ex[11:14]
        else:
            o = [mfma32(S[nb], KB[kbuf_next], QR[nb], C[nb]), e[0]] + ex[0:3]
            o += [mfma32(O[nb], VB[vprev] + 4, P + 4), e[1]] + ex[3:6]
            o += [rsum(nb)] + ex[6:8]
            o += [mfma32(S[nb], KB[kbuf_next] + 4, QR[nb] + 4), e[2], cv[0], cv[1], ex[8], cv[2], cv[3], ex[9], ex[10]]
            o += [mfma32(O[b], VB[vbuf], P), e[3]] + ex[11:14]
        o += (dg or []) + [ex[14], ex[15]] + cv[4:8]
        return [x for x in o if x]
    a.I(f"s_setprio {int(OPT.get('ap', 2))}", "s_nop 11")
    dg = kv_groups()
    ONEW = "twow" not in EXP
    def trip(first, sfx):
        def chk(tag):
            return ["v_cmp_gt_u32 vcc, s53, v15", "s_nop 0", f"s_cbranch_vccnz ATT_SP{tag}{sfx}", f"ATT_CT{tag}{sfx}:"]
        for kb in range(8):
            cur = kb & 1; nxt = 1 - cur
            arrive = ["ds_add_u32 v13, v12", "s_add_u32 s53, s53, 1"]
            if kb == 0 and not first: a.extend(chk(0))
            if kb == 6: a.I("s_waitcnt vmcnt(0)", *arrive)
            if kb == 7: a.extend(chk(7) + arrive)
            if kb == 7: a.I("v_xor_b32 v6, 0x8000, v6", "v_xor_b32 v7, 0x8000, v7")
            off = ((kb + 1) & 7) * 4096
            g0, g1 = (dg[2 * kb], dg[2 * kb + 1]) if kb < 4 and not first else (None, ["ds_read_b32 v15, v14"] if kb >= 6 else None)
            a.extend(tile(0, cur, cur, nxt, rdK(nxt, off) + rdV(nxt, off), g0))
            a.I("s_waitcnt lgkmcnt(0)" if ONEW else "s_waitcnt lgkmcnt(2)")
            a.extend(tile(1, nxt, cur, cur, [], g1))
            if kb == 7 and not first: a.I("s_add_u32 s28, s28, 1", "s_cmp_lg_u32 s28, 7")
            if not ONEW or kb >= 6: a.I("s_waitcnt lgkmcnt(0)")
    trip(True, "F")
    a.L("ATT_LOOP")
    jit(a, 8)
    trip(False, "")
    a.I("s_cbranch_scc1 ATT_LOOP")
    a.I(mfma32(O[1], VB[1] + 4, P + 4), rsum(1))
    ts(a, 4)
    for b in range(2): a.I(f"v_add_f32 v{Lr[b]}, v{Lr[b]}, v{Lr[b]+1}")
    a.I("s_setprio 3", f"s_mov_b32 s16, {f32(2.0**100)}")
    for b in range(2):
        a.I(f"v_max3_f32 v{8+b}, abs(v{O[b]}), abs(v{O[b]+1}), v{Lr[b]}", f"v_add_f32 v{10+b}, v{O[b]}, v{O[b]+1}")
    for i in range(2, 16, 2):
        for b in range(2):
            a.I(f"v_max3_f32 v{8+b}, v{8+b}, abs(v{O[b]+i}), abs(v{O[b]+i+1})", f"v_add3_u32 v2, v2, v2, v2" if False else f"v_add_f32 v{10+b}, v{10+b}, v{O[b]+i}",
                f"v_add_f32 v{86+b}, v{O[b]+i+1}, v{Lr[b]}" if i == 2 else f"v_add_f32 v{86+b}, v{86+b}, v{O[b]+i+1}")
    a.I("v_max_f32 v8, v8, v9", "v_add_f32 v10, v10, v11", "v_add_f32 v86, v86, v87", "v_add_f32 v9, v10, v86")
    a.I("v_cmp_nlt_f32 vcc, v8, s16", "v_cmp_u_f32 s[18:19], v9, v9", "s_or_b64 vcc, vcc, s[18:19]")
    if "force" in EXP: a.I("s_mov_b64 vcc, -1")
    a.I("s_cbranch_vccz ATT_FIN")
    cm(a, "fallback: online softmax with the true running max")
    for b in range(2):
        M = 10; AL = 11
        for i in range(16): a.I(f"v_mov_b32 v{O[b]+i}, 0")
        for i in range(4): a.I(f"v_mov_b32 v{Lr[b]+i}, 0")
        a.I(f"v_mov_b32 v{M}, {f32(-3.0e38)}", f"s_mov_b32 s29, 0")
        a.L(f"ATT_FB{b}")
        for ks in range(2):
            a.I(f"buffer_load_dwordx4 {vr(KB[0]+4*ks,4)}, v4, s[36:39], s29 offen offset:{ks*512}",
                f"buffer_load_dwordx4 {vr(VB[0]+4*ks,4)}, v3, s[36:39], s29 offen offset:{2048+ks*1024}")
        a.I("s_waitcnt vmcnt(0)")
        s0 = S[0]
        a.I(mfma32(s0, KB[0], QR[b], "0"), mfma32(s0, KB[0] + 4, QR[b] + 4))
        a.I(f"v_max3_f32 v8, v{s0}, v{s0+1}, v{M}")
        for i in range(2, 16, 2): a.I(f"v_max3_f32 v8, v8, v{s0+i}, v{s0+i+1}")
        a.I("v_mov_b32 v9, v8", "v_permlane32_swap_b32 v8, v9", "v_max_f32 v8, v8, v9",
            f"v_sub_f32 v{AL}, v{M}, v8", f"v_exp_f32 v{AL}, v{AL}", f"v_mov_b32 v{M}, v8")
        for i in range(16): a.I(f"v_sub_f32 v{s0+i}, v{s0+i}, v8")
        for i in range(16): a.I(f"v_exp_f32 v{s0+i}, v{s0+i}")
        for i in range(16): a.I(f"v_mul_f32 v{O[b]+i}, v{O[b]+i}, v{AL}")
        for i in range(4): a.I(f"v_mul_f32 v{Lr[b]+i}, v{Lr[b]+i}, v{AL}")
        for d in range(8): a.I(f"v_cvt_pk_bf16_f32 v{P+d}, v{s0+2*d}, v{s0+2*d+1}")
        a.I(mfma32(O[b], VB[0], P), mfma32(O[b], VB[0] + 4, P + 4), rsum(b))
        a.I("s_add_u32 s29, s29, 4096", f"s_cmp_lg_u32 s29, {64*4096}", f"s_cbranch_scc1 ATT_FB{b}")
        a.I(f"v_add_f32 v{Lr[b]}, v{Lr[b]}, v{Lr[b]+1}")
    a.L("ATT_FIN")
    a.I("v_mov_b32 v23, v13", "v_mov_b32 v24, v14", "v_mov_b32 v25, v12")
    a.I("v_bfe_u32 v2, v1, 4, 1", "v_lshlrev_b32 v5, 15, v2", "v_lshrrev_b32 v2, 5, v1", "v_lshl_add_u32 v5, v2, 8, v5",
        "v_and_b32 v2, 15, v1", "v_lshl_add_u32 v5, v2, 4, v5",
        "s_lshl_b32 s16, s22, 2", "s_add_u32 s16, s16, s20", "s_lshl_b32 s16, s16, 7", "s_add_u32 s16, s16, s21", "s_lshl_b32 s16, s16, 10",
        f"s_add_u32 s16, s16, {WS_O}", "s_add_u32 s17, s16, 65536")
    for b in range(2): a.I(f"v_rcp_f32 v{8+b}, v{Lr[b]}")
    for b in range(2):
        for i in range(16): a.I(f"v_mul_f32 v{O[b]+i}, v{O[b]+i}, v{8+b}")
        for d in range(8): a.I(f"v_cvt_pk_bf16_f32 v{S[b]+d}, v{O[b]+2*d}, v{O[b]+2*d+1}")
        for ks in range(2):
            a.I(f"buffer_store_dwordx4 {vr(S[b]+4*ks,4)}, v5, s[32:35], s{16+b} offen offset:{ks*512}{SC1}")

def down(a):
    R = 8; SLOT = 8192; NH_ = 56; NST = NH_ + 16 - NPA
    FW_ = [32, 64]; AR = 192; ACC = 128
    M32 = "d32" in EXP
    a.I(f"s_setprio {int(OPT.get('bp', 0))}", "s_lshl_b32 s16, s20, 11", "v_add_u32 v9, s16, v3")
    for t in range(8): a.I(f"ds_read_b128 {vr(192+4*t,4)}, v9 offset:{(t>>1)*8192+(t&1)*1024}")
    h_stores(a)
    a.I(f"s_load_dwordx2 s[8:9], s[0:1], {KA_WD}", f"s_load_dwordx2 s[4:5], s[0:1], {KA_WO}",
        "s_and_b32 s21, s2, 1",
        "s_bfe_u32 s16, s2, 0x10001", "s_lshl_b32 s16, s16, 3", "s_bfe_u32 s17, s2, 0x30003", "s_add_u32 s22, s16, s17",
        "s_bfe_u32 s16, s2, 0x10002", "s_lshl_b32 s16, s16, 2", "s_bfe_u32 s17, s2, 0x20006", "s_add_u32 s23, s16, s17",
        "s_lshl_b32 s46, s20, 11",
        "v_lshrrev_b32 v2, 4, v1", "s_lshl_b32 s16, s20, 3", "v_add_u32 v4, s16, v2", "v_lshlrev_b32 v4, 11, v4",
        "v_bfe_u32 v5, v1, 1, 3", *(["v_lshlrev_b32 v6, 1, v2", "v_xor_b32 v6, v6, v5", "v_mov_b32 v7, v6"] if M32 else ["v_xor_b32 v6, v2, v5", "v_xor_b32 v7, 4, v6"]),
        "v_and_b32 v2, 1, v1", "v_lshl_add_u32 v4, v2, 4, v4", "s_lshl_b32 s16, s23, 8", "v_add_u32 v4, s16, v4",
        f"v_add_u32 v5, {4*2048-1024}, v4",
        "v_lshl_add_u32 v4, v6, 5, v4", "v_lshl_add_u32 v5, v7, 5, v5",
        "s_mul_i32 s48, s21, %d" % (1792 * 2048), "s_waitcnt lgkmcnt(0)")
    srd(a, 24, 8, 3584 * 1024 * 2)
    def dma_w(st):
        sw = [*[f"s_mov_b32 s{24+i}, s{4+i}" for i in range(2)], "s_mov_b32 s26, 0x200000", "s_mov_b32 s48, s40"] if st == NH_ else []
        return sw + [f"s_add_u32 m0, s46, {(st % R) * SLOT}", "s_add_u32 s49, s48, 0",
                "buffer_load_dwordx4 v4, s[24:27], s49 offen lds", "s_add_u32 s48, s48, 65536",
                "buffer_load_dwordx4 v5, s[24:27], s49 offen offset:1024 lds"]
    def ld_a(st):
        r = AR + (st % R) * 8
        if st >= NH_:
            return (["s_mov_b32 s44, s41"] if st == NH_ else []) + [f"buffer_load_dwordx4 {vr(r,4)}, v3, s[32:35], s44 offen",
                    f"buffer_load_dwordx4 {vr(r+4,4)}, v27, s[32:35], s44 offen", "s_add_u32 s44, s44, 1024"]
        if M32: return [f"buffer_load_dwordx4 {vr(r,4)}, v10, s[32:35], s44 offen", f"buffer_load_dwordx4 {vr(r+4,4)}, v10, s[32:35], s44 offen offset:512",
                        "s_add_u32 s44, s44, 1024"]
        return [f"buffer_load_dwordx4 {vr(r,4)}, v3, s[32:35], s44 offen", f"buffer_load_dwordx4 {vr(r+4,4)}, v10, s[32:35], s44 offen",
                "s_add_u32 s44, s44, 1024"]
    L = Log()
    NW = int(OPT.get("nw", 2))
    for j in range(NW): a.extend(L.note(dma_w(j), ("w", j)))
    a.I(f"s_waitcnt vmcnt({2*NW})")
    set_flag(a, 60)
    LAG = int(OPT.get("lag", 2))
    for j in range(NW, R - LAG): a.extend(L.note(dma_w(j), ("w", j)))
    a.I("s_lshl_b32 s16, s22, 3", "s_lshl_b32 s17, s20, 1", "s_add_u32 s16, s16, s17", "s_mul_i32 s16, s16, 112",
        "s_mul_i32 s17, s21, 56", "s_add_u32 s16, s16, s17", "s_lshl_b32 s44, s16, 10", f"s_add_u32 s44, s44, {WS_H}",
        )
    if M32:
        a.I("v_bfe_u32 v2, v1, 4, 1", f"v_mul_u32_u24 v10, {112*1024}, v2", "v_lshrrev_b32 v8, 5, v1", "v_lshl_add_u32 v10, v8, 8, v10",
            "v_and_b32 v9, 15, v1", "v_lshl_add_u32 v10, v9, 4, v10",
            "v_lshlrev_b32 v12, 10, v8", "v_bfe_u32 v9, v1, 2, 2", "v_lshl_add_u32 v12, v9, 8, v12",
            "v_lshlrev_b32 v9, 1, v9", "v_xor_b32 v9, v9, v2", "v_lshl_add_u32 v12, v9, 5, v12",
            "v_and_b32 v9, 3, v1", "v_lshl_add_u32 v12, v9, 3, v12")
        for u in range(1, 4): a.I(f"v_xor_b32 v{12+u}, {64*u}, v12")
    else:
        a.I(f"v_add_u32 v10, {112*1024}, v3",
            "v_lshrrev_b32 v2, 4, v1", "v_lshlrev_b32 v12, 10, v2", "v_bfe_u32 v9, v1, 2, 2", "v_lshl_add_u32 v12, v9, 8, v12",
            "v_bfe_u32 v8, v1, 2, 3", "v_lshl_add_u32 v12, v8, 5, v12", "v_and_b32 v9, 3, v1", "v_lshl_add_u32 v12, v9, 3, v12")
        for u in range(1, 8): a.I(f"v_xor_b32 v{12+u}, {32*u}, v12")
    NT = 0
    if "wt2" in EXP:
        a.I("v_min_u32 v2, 55, v1", "v_lshlrev_b32 v24, 7, v2", "s_lshl_b32 s16, s2, 2", "s_add_u32 s16, s16, s20", "s_mul_i32 s16, s16, 7168",
            "buffer_load_dword v25, v24, s[24:27], s16 offen")
    if "wt" in EXP.split("_"):
        a.I("v_lshrrev_b32 v2, 1, v1", "v_lshlrev_b32 v24, 11, v2", "v_and_b32 v2, 1, v1", "v_lshl_add_u32 v24, v2, 7, v24",
            "s_and_b32 s16, s22, 7", "s_lshl_b32 s16, s16, 2", "s_add_u32 s16, s16, s20", "s_mul_i32 s16, s16, %d" % (56 * 2048),
            "s_mul_i32 s17, s21, %d" % (1792 * 2048), "s_add_u32 s16, s16, s17", "s_lshl_b32 s17, s23, 8", "s_add_u32 s16, s16, s17",
            f"s_add_u32 s17, s16, {24*2048}",
            "buffer_load_dword v25, v24, s[24:27], s16 offen", "buffer_load_dword v26, v24, s[24:27], s17 offen")
        NT = 2
    sync_setup(a, LC + 1024, 20, 21, 22)
    a.I("s_lshl_b32 s40, s21, 20", f"s_add_u32 s40, s40, {NPA*65536}", "s_and_b32 s16, s20, 1", "s_lshl_b32 s16, s16, 15", "s_add_u32 s40, s40, s16",
        "s_lshr_b32 s16, s20, 1", "s_lshl_b32 s16, s16, 14", "s_add_u32 s40, s40, s16", "s_lshl_b32 s16, s20, 14", "s_sub_u32 s40, s40, s16",
        "s_lshl_b32 s16, s22, 2", "s_add_u32 s16, s16, s20", "s_lshl_b32 s41, s16, 16", "s_lshl_b32 s16, s21, 14", "s_add_u32 s41, s41, s16",
        f"s_add_u32 s41, s41, {WS_O+NPA*1024}", "v_add_u32 v27, 0x8000, v3",
        f"v_add_u32 v2, {NPA}, v1", "v_and_b32 v8, 3, v2", "v_lshlrev_b32 v28, 8, v8", "v_bfe_u32 v8, v2, 2, 2", "v_lshl_add_u32 v28, v8, 5, v28",
        "s_lshr_b32 s16, s22, 1", "s_lshl_b32 s43, s16, 10", "s_and_b32 s16, s22, 1", "s_lshl_b32 s16, s16, 1", "s_lshr_b32 s17, s20, 1",
        "s_add_u32 s16, s16, s17", "s_lshl_b32 s16, s16, 2", "s_add_u32 s43, s43, s16", "s_lshl_b32 s16, s21, 7", "s_add_u32 s43, s43, s16",
        f"s_add_u32 s43, s43, {WS_FL+FL_O}")
    a.I("v_lshrrev_b32 v2, 4, v1", "v_bfe_u32 v8, v1, 2, 2", "v_lshl_add_u32 v9, v8, 3, v2", "v_lshlrev_b32 v9, 5, v9",
        "v_and_b32 v2, 3, v1", "v_lshl_add_u32 v9, v2, 2, v9",
        "s_lshr_b32 s18, s22, 1", "s_lshl_b32 s18, s18, 5", "s_lshl_b32 s16, s21, 2", "s_add_u32 s18, s18, s16", "s_lshl_b32 s18, s18, 5",
        f"s_add_u32 s18, s18, {WS_FL+FL_H+16}")
    PG = "nopg" not in EXP
    a.extend(poll(18, 8 if PG else 64, 9, sleep=int(OPT.get("hs", 2))))
    ts(a, 3)
    L.l = []
    for j in range(R - 1): a.extend(L.note(ld_a(j), ("a", j)))
    if PG: a.extend(L.note([poll_load(18, 9, 24), "s_mov_b32 s45, 44"], ("f", 0)))
    def need(k):
        last = max([i for i, t in enumerate(L.l) if (t[0] in "af" and t[1] <= k) or (t[0] == "w" and t[1] <= k + 1 + LAG)], default=-1)
        return len(L.l) - 1 - last
    def reads(st):
        if M32: return [f"ds_read_b64_tr_b16 {vr(FW_[st&1]+(ks*4+nb)*4+2*rd,2)}, v{12+nb} offset:{(st % R)*SLOT+ks*2048+rd*4096}"
                        for ks in range(2) for nb in range(4) for rd in range(2)]
        return [f"ds_read_b64_tr_b16 {vr(FW_[st&1]+u*4+2*rd,2)}, v{12+u} offset:{(st % R)*SLOT+rd*4096}" for u in range(8) for rd in range(2)]
    sync_block(a, 20, 21, 22, 23)
    a.extend(reads(0))
    a.I("ds_read_b32 v23, v21", f"s_mov_b32 s53, {2 - LAG}", f"s_setprio {int(OPT.get('dp', 1))}")
    def body(k):
        if M32: m = [mfma32(ACC + nb * 16, FW_[k & 1] + (ks * 4 + nb) * 4, AR + (k % R) * 8 + ks * 4, "0" if k + ks == 0 else None) for ks in range(2) for nb in range(4)]
        else: m = [mfma16(ACC + (t * 8 + u) * 4, FW_[k & 1] + u * 4, AR + (k % R) * 8 + t * 4, "0" if k == 0 else None)
                   for u, t in ([(u, t ^ (u & 1)) for u in range(8) for t in range(2)] if "dsn" in EXP else [(u, t) for u in range(8) for t in range(2)])]
        if k + 1 >= NST: return [f"s_waitcnt vmcnt({need(k)}) lgkmcnt(0)"] + m
        h0, h1 = (1, 7) if M32 else (2, 14)
        CP = "nocp" not in EXP and not PT
        o = (["s_setprio 3"] if CP else []) + [f"s_waitcnt vmcnt({need(k)}) lgkmcnt(0)", "v_cmp_gt_i32 vcc, s53, v23"]
        o += ([f"s_setprio {int(OPT.get('dp', 1))}"] if CP else []) + ["ds_add_u32 v20, v22", "s_add_u32 s53, s53, 1"]
        if PT: o += [f"s_setprio {1 if (k % R) < PT else 0}"]
        o += m[:h0] + [f"s_nop {2 - h0 - (1 if PT else 0)}"] * (2 - h0 - (1 if PT else 0) >= 0) + (["s_cbranch_vccnz @SPIN"] if "nosync" not in EXP else []) + ["@CONT:"]
        if TH and k % 4 == 2:
            o += ["s_setprio 3", "v_cmp_gt_u32 vcc, s47, v25", f"s_setprio {int(OPT.get('dp', 1))}", f"s_add_u32 s47, s47, {TH}", "s_min_u32 s47, s47, 17",
                  "s_cbranch_vccnz @TSP", "@TCT:"]
        if PG and k % 8 == 0 and k <= 40:
            o += ["s_lshr_b64 s[28:29], -1, s45", "s_setprio 3", "v_cmp_ne_u32 vcc, s55, v24", f"s_setprio {int(OPT.get('dp', 1))}",
                  "s_sub_u32 s45, s45, 10", "s_max_i32 s45, s45, 0", "s_and_b64 vcc, vcc, s[28:29]", "s_cbranch_scc1 @FSP", "@FCT:"]
        dm = (L.note(dma_w(k - LAG + R), ("w", k - LAG + R)) if k - LAG + R < NST else []) + (L.note(ld_a(k - 1 + R), ("a", k - 1 + R)) if k - 1 + R < NH_ else [])
        OL = int(OPT.get("ol", 3))
        if k + OL + 2 == NH_: dm += L.note([poll_load(43, 28, 29)], ("f", k + 2))
        if k + OL == NH_:
            o += lanes(16 - NPA) + ["v_cmp_ne_u32 vcc, s55, v29", "s_mov_b64 exec, -1", "s_cbranch_vccnz DN_OS", "DN_OC:"]
        if NH_ <= k + OL < NST: dm += L.note(ld_a(k + OL), ("a", k + OL))
        if PG and k % 8 == 4 and k <= 44: dm += L.note([poll_load(18, 9, 24)], ("f", k + 4))
        if "dnodma" in EXP: dm = []
        fill = mixmem(reads(k + 1), dm, False)
        FR = int(OPT.get("fr", 5 if M32 else 10))
        rd = reads(k + 1) + ["ds_read_b32 v23, v21"] + (["ds_read_b32 v25, v26"] if TH and k % 4 == 1 else [])
        gs = groups_of(dm) if dm else []
        if "vend" in EXP:
            o += interleave(m[h0:FR], rd)
            rest = m[FR:]
            for i, x in enumerate(rest):
                o += [x] + [y for g in gs[(len(gs) * i) // len(rest):(len(gs) * (i + 1)) // len(rest)] for y in g]
            return o
        n = len(m) - h0; nr = FR - h0
        for i, x in enumerate(m[h0:]):
            o += [x] + (rd[(len(rd) * i) // nr:(len(rd) * (i + 1)) // nr] if i < nr else [])
            o += [y for g in gs[(len(gs) * i) // n:(len(gs) * (i + 1)) // n] for y in g]
        return o
    PT = int(OPT.get("pt", 0))
    TH = int(OPT.get("th", 0))
    if TH: a.I("v_subrev_u32 v26, 1024, v21", f"s_mov_b32 s47, {int(OPT.get('th0', 3))}")
    bodies = [body(k) for k in range(NST)]
    U = R
    for head in range(0, R + U + 1):
        nl = (NH_ - R - head) // U
        if all(bodies[k] == bodies[head + (k - head) % U] for k in range(head, head + nl * U)): break
    else: raise AssertionError
    spins = []
    def emit(k):
        spins.append(k)
        a.extend([x.replace("@SPIN", f"DN_SP{k}").replace("@CONT", f"DN_CT{k}").replace("@FSP", f"DN_FS{k}").replace("@FCT", f"DN_FC{k}").replace("@TSP", f"DN_TS{k}").replace("@TCT", f"DN_TC{k}") for x in bodies[k]])
    for k in range(head): emit(k)
    a.I(f"s_mov_b32 s51, {nl}")
    a.L("DN_LOOP")
    jit(a, 7)
    for k in range(head, head + U): emit(k)
    a.I("s_sub_u32 s51, s51, 1", "s_cmp_lg_u32 s51, 0", "s_cbranch_scc1 DN_LOOP")
    for k in range(head + nl * U, NST): emit(k)
    ts(a, 4)
    assert not M32
    jit(a, 5)
    XR = 32; PR = 64
    a.I("s_setprio 3", f"s_load_dwordx2 s[10:11], s[0:1], {KA_X}", f"s_load_dwordx2 s[12:13], s[0:1], {KA_OUT}",
        "s_lshl_b32 s16, s22, 2", "s_add_u32 s16, s16, s20", "s_lshl_b32 s16, s16, 16", "s_lshl_b32 s17, s23, 8", "s_add_u32 s42, s16, s17",
        "s_lshl_b32 s17, s23, 12", "s_add_u32 s43, s16, s17", f"s_add_u32 s43, s43, {WS_P}", "s_add_u32 s44, s43, 0x8000",
        "s_lshl_b32 s16, s20, 14", f"s_add_u32 s16, s16, {LKV}", "v_add_u32 v9, s16, v3", "v_subrev_u32 v26, 1024, v21",
        f"s_mov_b32 s53, {NA_END}", "s_mov_b32 s19, 0xffff0000", "s_lshr_b32 s40, s20, 1")
    xsel(a, 24)
    wave_flag(a, 60, FL_O)
    a.I("s_waitcnt lgkmcnt(0)")
    srd(a, 28, 10, 2048 * 2048); srd(a, 36, 12, 2048 * 2048)
    a.I("s_cmp_lg_u32 s40, s21", "s_cbranch_scc1 DN_NX", "s_add_u32 s17, s42, 0x8000")
    for t in range(2):
        for c in range(4): a.I(f"buffer_load_dwordx4 {vr(XR+16*t+4*c,4)}, v24, s[28:31], s{42 if t == 0 else 17} offen offset:{c*64}")
    a.L("DN_NX")
    a.I("ds_read_b32 v23, v26", "s_waitcnt lgkmcnt(0)", "v_cmp_gt_u32 vcc, s53, v23", "s_cbranch_vccz DN_AOK", "s_sleep 1", "s_branch DN_NX")
    a.L("DN_AOK")
    ts(a, 5)
    for i in range(16): a.I(f"ds_read_b128 {vr(192+4*i,4)}, v9 offset:{i*1024}")
    for i in range(16):
        if i % 4 == 0: a.I(f"s_waitcnt lgkmcnt({12 - i})")
        for j in range(4): a.I(f"v_add_f32 v{ACC+4*i+j}, v{ACC+4*i+j}, v{192+4*i+j}")
    a.I("s_cmp_eq_u32 s40, s21", "s_cbranch_scc1 DN_FIN")
    for t in range(2):
        for c in range(4):
            g = ACC + (t * 8 + c * 2) * 4; pk = 192 + (t * 4 + c) * 4
            for d in range(4): a.I(f"v_cvt_pk_bf16_f32 v{pk+d}, v{g+2*d}, v{g+2*d+1}")
            a.I(f"buffer_store_dwordx4 {vr(pk,4)}, v3, s[32:35], s{43+t} offen offset:{c*1024}{SC1}")
    a.I("s_waitcnt vmcnt(0)")
    set_flag(a, 60)
    tl_dump(a, 13)
    a.I("s_endpgm")
    a.L("DN_FIN")
    a.I("s_xor_b32 s18, s60, 32", "v_mov_b32 v25, 0", "s_waitcnt vmcnt(0)")
    for i in range(8): a.I(f"v_permlane16_swap_b32 v{XR+4*i}, v{XR+4*i+2}", f"v_permlane16_swap_b32 v{XR+4*i+1}, v{XR+4*i+3}")
    a.extend(lanes(1) + [poll_load(18, 25, 27), "s_mov_b64 exec, -1"])
    for i in range(32): a.I(f"v_lshlrev_b32 v{192+2*i}, 16, v{XR+i}", f"v_and_b32 v{193+2*i}, s19, v{XR+i}")
    for i in range(64): a.I(f"v_add_f32 v{ACC+i}, v{ACC+i}, v{192+i}")
    a.extend(poll(18, 1, 25, 27, preloaded=0, sleep=1))
    ts(a, 6)
    for t in range(2):
        for c in range(4): a.I(f"buffer_load_dwordx4 {vr(PR+16*t+4*c,4)}, v3, s[32:35], s{43+t} offen offset:{c*1024}")
    for i in range(8):
        g = ACC + 8 * i; pk = 32 + 4 * i
        a.I(f"s_waitcnt vmcnt({7 - i + i})")
        for d in range(4): a.I(f"v_lshlrev_b32 v{192+2*d}, 16, v{PR+4*i+d}", f"v_and_b32 v{193+2*d}, s19, v{PR+4*i+d}")
        for d in range(8): a.I(f"v_add_f32 v{g+d}, v{g+d}, v{192+d}")
        for d in range(4): a.I(f"v_cvt_pk_bf16_f32 v{pk+d}, v{g+2*d}, v{g+2*d+1}")
        a.I(f"v_permlane16_swap_b32 v{pk}, v{pk+2}", f"v_permlane16_swap_b32 v{pk+1}, v{pk+3}",
            f"buffer_store_dwordx4 {vr(pk,4)}, v24, s[36:39], s42 offen offset:{(i&3)*64}" + OPT.get("om", "").replace("+", " "))
        if i == 3: a.I("s_add_u32 s42, s42, 0x8000")
    tl_dump(a, 13)
    a.I("s_endpgm")
    a.L("DN_OS")
    a.extend(poll(43, 16 - NPA, 28, 29, sleep=2))
    a.I("s_branch DN_OC")
    for k in spins:
        if k + 1 >= NST: continue
        if any("@TSP" in x for x in bodies[k]):
            a.L(f"DN_TS{k}")
            a.I("s_sleep 4", "ds_read_b32 v25, v26", "s_waitcnt lgkmcnt(0)", f"v_add_u32 v25, {TH}, v25", "v_cmp_gt_u32 vcc, s47, v25",
                f"s_cbranch_vccnz DN_TS{k}", f"s_branch DN_TC{k}")
        if any("@FSP" in x for x in bodies[k]):
            a.L(f"DN_FS{k}")
            a.I("s_mov_b32 s17, 0x40000")
            a.L(f"DN_FL{k}")
            a.I(poll_load(18, 9, 24), "s_waitcnt vmcnt(0)", "v_cmp_ne_u32 vcc, s55, v24", "s_and_b64 vcc, vcc, s[28:29]",
                f"s_cbranch_scc0 DN_FC{k}", "s_sleep 2", "s_sub_u32 s17, s17, 1", "s_cmp_lg_u32 s17, 0", f"s_cbranch_scc1 DN_FL{k}", f"s_branch DN_FC{k}")
        a.L(f"DN_SP{k}")
        a.I("ds_read_b32 v23, v21", "s_waitcnt lgkmcnt(0)", "v_add_u32 v23, 1, v23", "v_cmp_gt_i32 vcc, s53, v23",
            f"s_cbranch_vccnz DN_SP{k}", f"s_branch DN_CT{k}")

NPA = 10
NA_END = 1 + 16 + 4
def wo(a):
    FW = [32, 128]; ACC = 64; OA = 160; D = 12; NP = NPA; SW = 99
    a.I(f"s_load_dwordx2 s[8:9], s[0:1], {KA_WO}",
        "s_and_b32 s21, s2, 1",
        "s_bfe_u32 s16, s2, 0x10001", "s_lshl_b32 s16, s16, 3", "s_bfe_u32 s17, s2, 0x30003", "s_add_u32 s22, s16, s17",
        "s_bfe_u32 s16, s2, 0x10002", "s_lshl_b32 s16, s16, 2", "s_bfe_u32 s17, s2, 0x20006", "s_add_u32 s23, s16, s17",
        "v_lshrrev_b32 v2, 4, v1", "s_lshl_b32 s16, s20, 3", "v_add_u32 v4, s16, v2", "v_lshlrev_b32 v4, 11, v4",
        "v_bfe_u32 v5, v1, 1, 3", "v_lshlrev_b32 v6, 1, v2", "v_xor_b32 v6, v6, v5", "v_mov_b32 v7, v6",
        "v_and_b32 v2, 1, v1", "v_lshl_add_u32 v4, v2, 4, v4", "s_lshl_b32 s16, s23, 8", "v_add_u32 v4, s16, v4",
        f"v_add_u32 v5, {4*2048-1024}, v4", "v_lshl_add_u32 v4, v6, 5, v4", "v_lshl_add_u32 v5, v7, 5, v5",
        "s_lshl_b32 s48, s21, 20", "s_lshl_b32 s46, s20, 11", f"s_add_u32 s46, s46, {LKV}",
        "s_lshl_b32 s16, s22, 2", "s_add_u32 s16, s16, s20", "s_lshl_b32 s44, s16, 16", "s_lshl_b32 s16, s21, 14", "s_add_u32 s44, s44, s16",
        f"s_add_u32 s44, s44, {WS_O}",
        "v_bfe_u32 v2, v1, 4, 1", "v_lshlrev_b32 v10, 15, v2", "v_lshrrev_b32 v2, 5, v1", "v_lshl_add_u32 v10, v2, 8, v10",
        "v_and_b32 v2, 15, v1", "v_lshl_add_u32 v10, v2, 4, v10")
    wave_flag(a, 60, FL_O)
    a.I("s_waitcnt vmcnt(0) lgkmcnt(0)")
    set_flag(a, 60)
    srd(a, 24, 8, 1024 * 1024 * 2)
    RT = int(OPT.get("rt", 0))
    a.I("s_and_b32 s16, s23, 3", f"s_mul_i32 s50, s16, {RT}", "s_mov_b32 s51, s50")
    def step(r): return [f"s_add_u32 s{r}, s{r}, 1", f"s_cmp_eq_u32 s{r}, {NP}", f"s_cselect_b32 s{r}, 0, s{r}"]
    def w_dma3(p):
        return [f"s_add_u32 m0, s46, {p * 8192}", "s_lshl_b32 s49, s50, 16", "s_add_u32 s49, s49, s48", "buffer_load_dwordx4 v4, s[24:27], s49 offen lds"] + \
               step(50) + ["buffer_load_dwordx4 v5, s[24:27], s49 offen offset:1024 lds"]
    def o_load(p):
        r = OA + (p % D) * 8
        return ["s_lshl_b32 s45, s51, 10", "s_add_u32 s45, s45, s44", f"buffer_load_dwordx4 {vr(r,4)}, v10, s[32:35], s45 offen"] + step(51) + \
               [f"buffer_load_dwordx4 {vr(r+4,4)}, v10, s[32:35], s45 offen offset:512"]
    sync_block(a, 23, 24, 25, 26)
    for p in range(NP): a.extend(w_dma3(p))
    a.I("v_lshrrev_b32 v2, 5, v1", "v_lshlrev_b32 v12, 10, v2", "v_bfe_u32 v9, v1, 2, 2", "v_lshl_add_u32 v12, v9, 8, v12",
        "v_lshlrev_b32 v9, 1, v9", "v_bfe_u32 v2, v1, 4, 1", "v_xor_b32 v9, v9, v2", "v_lshl_add_u32 v12, v9, 5, v12",
        "v_and_b32 v9, 3, v1", "v_lshl_add_u32 v12, v9, 3, v12", f"v_add_u32 v12, {LKV}, v12")
    for u in range(1, 4): a.I(f"v_xor_b32 v{12+u}, {64*u}, v12")
    for u in range(4): a.I(f"v_add_u32 v{16+u}, 0x10000, v{12+u}")
    a.I("v_and_b32 v2, 3, v1", "v_lshlrev_b32 v9, 8, v2", "v_bfe_u32 v2, v1, 2, 2", "v_lshl_add_u32 v9, v2, 5, v9",
        "v_bfe_u32 v2, v1, 4, 1", "v_lshl_add_u32 v9, v2, 2, v9",
        "s_lshr_b32 s16, s22, 1", "s_lshl_b32 s18, s16, 10", "s_and_b32 s16, s22, 1", "s_lshl_b32 s16, s16, 3", "s_add_u32 s18, s18, s16",
        "s_lshl_b32 s16, s21, 7", "s_add_u32 s18, s18, s16", f"s_add_u32 s18, s18, {WS_FL+FL_O}")
    a.I("s_cmp_lg_u32 s20, 0", "s_cbranch_scc1 WO_NPL")
    a.I(f"s_mov_b32 exec_lo, {((1 << NP) - 1) * 0x10001:#x}", "s_mov_b32 exec_hi, 0")
    a.extend(poll(18, 64, 9, sleep=int(OPT.get("os", 4))))
    a.I("s_mov_b64 exec, -1")
    a.I("WO_NPL:", "s_waitcnt vmcnt(0)")
    sync_block(a, 23, 24, 25, 26, sleep=True)
    ts(a, 5)
    L = Log()
    nxt = int(OPT.get("o0", 4))
    for p in range(nxt): a.extend(L.note(o_load(p), p))
    a.I(f"s_setprio {int(OPT.get('wp', 0))}")
    def reads(p):
        sl = p % 10
        return [f"ds_read_b64_tr_b16 {vr(FW[p&1]+(ks*4+nb)*4+2*rd,2)}, v{(12 if sl < 8 else 16)+nb} offset:{(sl&7)*8192+ks*4096+rd*2048}"
                for ks in range(2) for nb in range(4) for rd in range(2)]
    a.extend(reads(0))
    for p in range(NP):
        wc = L.cnt(p)
        a.I(f"s_waitcnt vmcnt({wc}) lgkmcnt(0)")
        if "wost" in EXP and p in (0, 4): ts(a, {0: 9, 4: 10}[p])
        if "wost" in EXP and p == 9: ts(a, 11)
        if "wost" in EXP and p == SW: ts(a, 6)
        extra = L.note([x for q in range(10, NP) for x in w_dma3(q)], 99) if p == SW else []
        for _ in range(int(OPT.get("ob", 3))):
            if nxt < NP and nxt < p + D: extra += L.note(o_load(nxt), nxt); nxt += 1
        m = [mfma32(ACC + nb * 16, FW[p & 1] + (ks * 4 + nb) * 4, OA + (p % D) * 8 + 4 * ks, "0" if p + ks == 0 else None) for ks in range(2) for nb in range(4)]
        rd = reads(p + 1) if p + 1 < NP else []
        gs = groups_of(extra) if extra else []
        for i, x in enumerate(m):
            a.I(x); a.extend(rd[3 * i:3 * i + 3])
            a.extend([y for g in gs[(len(gs) * i) // 8:(len(gs) * (i + 1)) // 8] for y in g])
    a.I("s_setprio 3")
    sync_block(a, 23, 24, 25, 26)
    a.I("s_lshl_b32 s16, s20, 14", f"s_add_u32 s16, s16, {LKV}", "v_bfe_u32 v2, v1, 4, 1", "v_lshlrev_b32 v9, 13, v2",
        "v_lshrrev_b32 v2, 5, v1", "v_lshl_add_u32 v9, v2, 8, v9", "v_and_b32 v2, 15, v1", "v_lshl_add_u32 v9, v2, 4, v9", "v_add_u32 v9, s16, v9")
    for nb in range(4):
        for j in range(4): a.I(f"ds_write_b128 v9, {vr(ACC+16*nb+4*j,4)} offset:{(2*nb+(j>>1))*1024+(j&1)*512}")
    a.I("ds_add_u32 v23, v25", "s_waitcnt lgkmcnt(0)")

def fused():
    a = Asm()
    cm(a, "One persistent launch, 256 workgroups x 8 waves (one per CU, all resident).  Workgroups hand data to each other through d_ws:",
          "write-through (sc1) stores, s_waitcnt vmcnt(0), then a flag word holding this launch's tag; consumers poll the flags (sc1 loads,",
          "bounded spins with a short back-off) and never touch a hand-off line before its flag is up.",
          "phase 0: layernorm + K/V projection | G1: gate, up and one head of q per tile | attention (waves 0-3) beside the down projection",
          "(waves 4-7) | o @ wo on the same output tile, summed through LDS | halves exchanged between the two K halves, + x, stored.")
    ts(a, 0)
    a.I("s_cmp_ge_u32 s2, 256", "s_cbranch_scc1 F_END",
        f"s_load_dwordx8 s[4:11], s[0:1], {KA_X}", f"s_load_dwordx4 s[40:43], s[0:1], {KA_WG}",
        f"s_load_dwordx4 s[12:15], s[0:1], {KA_DBG}", "s_memrealtime s[48:49]",
        "v_lshrrev_b32 v2, 6, v0", "v_and_b32 v1, 63, v0", "v_readfirstlane_b32 s20, v2", "v_lshlrev_b32 v3, 4, v1",
        "s_lshr_b32 s21, s2, 4", "s_lshl_b32 s21, s21, 3", "s_and_b32 s16, s2, 7", "s_add_u32 s45, s21, s16", "s_lshl_b32 s23, s45, 15",
        "s_mov_b32 s54, s20", "s_lshl_b32 s16, s20, 12", "s_add_u32 s19, s23, s16", "s_waitcnt lgkmcnt(0)")
    srd(a, 32, 14, WS_SIZE); srd(a, 56, 12, 256)
    cm(a, "workgroup 0 publishes the launch tag in d_debug[0]; it only tells this launch's flags from those an earlier launch left in d_ws")
    a.I("s_or_b32 s16, s2, s20", "s_cmp_lg_u32 s16, 0", "s_cbranch_scc1 F_NT",
        "s_or_b32 s16, s48, 1", "v_mov_b32 v2, s16", "v_mov_b32 v8, 0", "s_mov_b64 exec, 1",
        "buffer_store_dword v2, v8, s[56:59], 0 offen sc1", "s_mov_b64 exec, -1")
    a.L("F_NT")
    cm(a, "---- phase 0: layernorm of 16 tokens (rounded like the reference), K or V of those tokens")
    jit(a, 0)
    phase0(a)
    jit(a, 1)
    ts(a, 8)
    if "p0st" in EXP:
        tl_dump(a, 13); a.I("s_endpgm")
    cm(a, "---- G1: 256 tokens x (112 gate + 112 up + 32 q columns), 5-slot LDS ring, waves 0-3 / 4-7 alternate MFMA and memory phases")
    g1(a)
    a.I("s_and_b32 s20, s54, 3", "s_cmp_ge_u32 s54, 4", "s_cbranch_scc1 F_B")
    cm(a, "---- attention: one head, 64 queries per wave.  Shift = row max of the first key block (enters as the C operand);",
          "after the loop a run-time check (sums and outputs finite, < 2^100) falls back to an online softmax with the true running max")
    jit(a, 2)
    attention(a)
    cm(a, "---- o @ wo, first heads of this tile's K half")
    jit(a, 3)
    wo(a)
    tl_dump(a, 13)
    a.I("s_endpgm")
    if "ablock" not in EXP:
        for tag in ("0", "7", "7F"):
            a.L(f"ATT_SP{tag}")
            a.I("ds_read_b32 v15, v14", "s_waitcnt lgkmcnt(0)", "v_cmp_gt_u32 vcc, s53, v15", f"s_cbranch_vccnz ATT_SP{tag}", f"s_branch ATT_CT{tag}")
    a.L("F_B")
    cm(a, "---- down projection (K half) + remaining heads of o @ wo, then the final sum")
    jit(a, 4)
    down(a)
    a.L("F_END")
    a.I("s_endpgm")
    return a, dict(grid=256, block=512, lds=163840, vgpr=256)

if __name__ == "__main__":
    path = sys.argv[1] if len(sys.argv) > 1 else "cdna_kernels/" + NAME + ".s"
    opts = dict(o.split("=") for o in sys.argv[2:])
    NPA = int(opts.get("npa", 8))
    OPT = opts; EXP = opts.get("exp", ""); TL = bool(int(opts.get("tl", 0)))
    G.VERB = bool(int(opts.get("verb", 0)))
    SC1 = opts.get("sm", "+sc1").replace("+", " ")
    G.build([(NAME if int(opts.get("single", 0)) else "fused8", fused())], path)
```

```python
import re

TRANS = ("v_exp_f32", "v_log_f32", "v_rcp_f32", "v_rsq_f32", "v_sqrt_f32", "v_sin_f32", "v_cos_f32",
         "v_exp_f16", "v_rcp_iflag_f32")

def regs_of(op):
    op = op.strip()
    neg = op.lstrip("-")
    m = re.fullmatch(r"abs\((.*)\)", neg) or re.fullmatch(r"\|(.*)\|", neg)
    if m: neg = m.group(1)
    m = re.fullmatch(r"([vsa])\[(\d+):(\d+)\]", neg)
    if m: return [f"{m.group(1)}{i}" for i in range(int(m.group(2)), int(m.group(3)) + 1)]
    m = re.fullmatch(r"([vsa])(\d+)", neg)
    if m: return [neg]
    if neg in ("vcc", "vcc_lo", "vcc_hi"): return ["vcc"]
    if neg in ("exec", "exec_lo", "exec_hi"): return ["exec"]
    if neg == "m0": return ["m0"]
    if neg == "scc": return ["scc"]
    return []

class Ins:
    __slots__ = ("text", "mn", "ops", "kind", "wr", "rd", "srcC", "srcAB", "passes", "label", "target", "ws", "dpp", "storedata", "lds_dma", "comment")
    def __init__(self, text):
        self.text = text
        self.label = None; self.target = None; self.srcC = []; self.srcAB = []; self.passes = 0
        self.dpp = False; self.storedata = []; self.lds_dma = False
        body = text.split(";")[0].strip()
        if body.endswith(":"):
            self.label = body[:-1]; self.kind = "label"; self.mn = ""; self.wr = []; self.rd = []; self.ws = 0; return
        if body.startswith(".") or body == "":
            self.kind = "dir"; self.mn = body; self.wr = []; self.rd = []; self.ws = 0; return
        parts = body.split(None, 1)
        mn = parts[0]; rest = parts[1] if len(parts) > 1 else ""
        self.mn = mn
        ops = []; depth = 0; cur = ""
        for ch in rest:
            if ch in "[(": depth += 1
            if ch in "])": depth -= 1
            if ch == "," and depth == 0: ops.append(cur.strip()); cur = ""
            else: cur += ch
        if cur.strip(): ops.append(cur.strip())
        mods = ""
        if ops:
            lp = ops[-1].split(None, 1)
            if len(lp) > 1 and not ops[-1].startswith("hwreg") and not mn.startswith("s_waitcnt"):
                ops[-1] = lp[0]; mods = lp[1]
        self.ops = ops
        self.ws = 1
        R = lambda i: regs_of(ops[i]) if i < len(ops) else []
        allfrom = lambda i: [r for o in ops[i:] for r in regs_of(o)]
        wr = []; rd = []
        if mn == "s_nop":
            self.kind = "nop"; self.ws = int(ops[0], 0) + 1
        elif mn.startswith("v_smfmac"):
            self.kind = "mfma"; wr = R(0); self.srcAB = R(1) + R(2) + R(3); self.srcC = R(0); rd = self.srcAB + self.srcC
            self.passes = 8
        elif mn.startswith("v_mfma"):
            self.kind = "mfma"; wr = R(0); self.srcAB = R(1) + R(2); self.srcC = R(3); rd = self.srcAB + self.srcC
            self.passes = 8 if "32x32x16" in mn else 4 if "16x16x32" in mn else None
            assert self.passes, mn
        elif mn.startswith("v_"):
            self.kind = "trans" if mn.replace("_e32", "").replace("_e64", "") in TRANS else "valu"
            if "dpp" in mn or re.search(r"(row_|quad_perm|wave_|bcast)", mods): self.dpp = True
            if mn.startswith("v_cmp"):
                wr = R(0); rd = allfrom(1)
                if mn.startswith("v_cmpx"): wr = wr + ["exec"]
            elif mn.startswith("v_readfirstlane") or mn.startswith("v_readlane"):
                wr = R(0); rd = allfrom(1)
            elif mn.startswith("v_permlane") and "swap" in mn:
                wr = R(0) + R(1); rd = R(0) + R(1)
            elif re.match(r"v_(add|sub|subrev|addc|subb|subbrev)_co_u32", mn):
                wr = R(0) + R(1); rd = allfrom(2)
            elif mn.startswith("v_fmac") or mn.startswith("v_dot2c") or mn.startswith("v_pk_fmac"):
                wr = R(0); rd = allfrom(0)
            elif mn.startswith("v_cndmask"):
                wr = R(0); rd = allfrom(1)
                if len(ops) < 4: rd = rd + ["vcc"]
            elif mn.startswith("v_nop"):
                pass
            else:
                wr = R(0); rd = allfrom(1)
                if self.dpp and "bound_ctrl" not in mods: rd = rd + R(0)
        elif mn.startswith("ds_"):
            self.kind = "ds"
            if mn.startswith("ds_read") or mn.startswith("ds_bpermute") or mn.startswith("ds_swizzle") or mn.startswith("ds_permute"):
                wr = R(0); rd = allfrom(1)
            else:
                rd = allfrom(0)
        elif mn.startswith("buffer_") or mn.startswith("global_"):
            self.kind = "vmem"
            toks = mods.split()
            if "lds" in toks or "_lds_" in mn:
                self.lds_dma = True; rd = allfrom(0) + ["m0"]
            elif "load" in mn:
                wr = R(0); rd = allfrom(1)
            elif "store" in mn:
                rd = allfrom(0)
                if mn.startswith("buffer_"): data = R(0)
                else: data = R(1)
                if len(data) >= 3: self.storedata = data
            elif "atomic" in mn:
                rd = allfrom(0)
                if "sc0" in toks: wr = R(0)
            else:
                rd = allfrom(0)
        elif mn.startswith("s_"):
            self.kind = "salu"
            if mn.startswith("s_cbranch") or mn == "s_branch":
                self.kind = "branch"; self.target = ops[0]
            elif mn.startswith("s_load") or mn.startswith("s_buffer_load") or mn in ("s_memtime", "s_memrealtime"):
                self.kind = "smem"; wr = R(0); rd = allfrom(1)
            elif mn.startswith("s_cmp") or mn.startswith("s_bitcmp"):
                rd = allfrom(0); wr = ["scc"]
            elif mn in ("s_waitcnt", "s_barrier", "s_endpgm", "s_setprio", "s_sleep", "s_sethalt"):
                pass
            elif "saveexec" in mn:
                wr = R(0) + ["exec"]; rd = allfrom(1) + ["exec"]
            else:
                wr = R(0); rd = allfrom(1)
        else:
            raise ValueError("unknown instr: " + text)
        self.wr = wr; self.rd = rd

def isv(r): return r[0] in "va" and r != "vcc"
def iss(r): return (r[0] == "s" and r != "scc") or r == "vcc"

def need(p, c):
    n = 0
    pw = set(p.wr); cr = set(c.rd); cw = set(c.wr)
    pv = p.kind in ("valu", "trans")
    cv = c.kind in ("valu", "trans")
    if pv:
        vw = {r for r in pw if isv(r)}
        sw = {r for r in pw if iss(r)}
        if c.kind == "mfma" and vw & cr: n = max(n, 2)
        if cv and vw & cr:
            if c.mn.startswith("v_readlane") or c.mn.startswith("v_readfirstlane"): n = max(n, 1)
            if c.dpp: n = max(n, 2)
            if c.mn.startswith("v_permlane"): n = max(n, 2)
            if p.kind == "trans": n = max(n, 1)
        if p.kind == "trans" and c.kind in ("ds", "vmem") and vw & cr: n = max(n, 1)
        if sw & cr:
            if cv:
                n = max(n, 4 if (c.mn.startswith("v_readlane") or c.mn.startswith("v_writelane")) else 2)
            if c.kind == "vmem": n = max(n, 5)
            if c.kind in ("salu", "smem", "branch"): n = max(n, 1)
        if "exec" in pw:
            if c.kind == "mfma": n = max(n, 4)
            if cv and (c.dpp): n = max(n, 5)
            if cv and (c.mn.startswith("v_read") or c.mn.startswith("v_permlane") or c.mn.startswith("v_writelane")): n = max(n, 4)
        if "vcc" in pw and c.kind == "branch" and "vcc" in c.mn: n = max(n, 1)
    if p.kind == "mfma":
        big = 12 if p.passes == 8 else 8
        if c.kind == "mfma":
            if pw & set(c.srcAB): n = max(n, big)
            if pw & set(c.srcC):
                if list(p.wr) == list(c.srcC) and p.passes == c.passes: pass
                else: n = max(n, big - 2)
            if pw & cw and not (pw & set(c.srcC)):
                if list(p.wr) != list(c.wr) or p.passes != c.passes: n = max(n, big - 2)
        elif cv or c.kind in ("ds", "vmem"):
            if pw & (cr | cw): n = max(n, big)
        if cv and set(p.srcC) & cw: n = max(n, 7 if p.passes == 8 else 3)
    if p.kind == "salu" and "m0" in pw and c.lds_dma: n = max(n, 1)
    if p.storedata and set(p.storedata) & cw: n = max(n, 2 if cv else 1)
    return n

class Asm:
    def __init__(self):
        self.items = []
    def I(self, *texts):
        for t in texts:
            for line in t.split("\n"):
                if line.strip(): self.items.append(Ins(line.strip()))
    def L(self, name): self.items.append(Ins(name + ":"))
    def extend(self, lst):
        for t in lst: self.I(t)
    def fix(self, verbose=True, name=""):
        W = 20
        inserted = 0
        changed = True
        start = 0; passes = 0
        while changed or start:
            if not changed: start = 0
            changed = False
            items = self.items
            lab = {it.label: i for i, it in enumerate(items) if it.label}
            br_to = {}
            for i, it in enumerate(items):
                if it.kind == "branch": br_to.setdefault(lab[it.target], []).append(i)
            def preds(i):
                res = []
                if i > 0:
                    p = items[i - 1]
                    if not (p.mn in ("s_branch", "s_endpgm")): res.append(i - 1)
                res += br_to.get(i, [])
                return res
            for i in range(start, len(items)):
                c = items[i]
                if c.kind in ("label", "dir", "nop"): continue
                worst = 0; who = None
                stack = [(j, 0) for j in preds(i)]
                seen = {}
                while stack:
                    j, d = stack.pop()
                    if d >= W: continue
                    if seen.get(j, 99) <= d: continue
                    seen[j] = d
                    p = items[j]
                    if p.kind not in ("label", "dir", "nop"):
                        r = need(p, c) - d
                        if r > worst: worst = r; who = p
                    nd = d + p.ws
                    for k in preds(j): stack.append((k, nd))
                if worst > 0:
                    if verbose: print(f"[{name}] nop {worst} before '{c.text}' (after '{who.text}')")
                    items.insert(i, Ins(f"s_nop {worst - 1}"))
                    inserted += 1; changed = True; start = max(i, 1)
                    break
        return inserted
    def text(self):
        out = []
        for it in self.items:
            out.append(it.text if it.kind == "label" else "  " + it.text)
        return "\n".join(out) + "\n"

def interleave(main, fill, pattern=None):
    out = []; n = len(main); fi = 0
    for i, m in enumerate(main):
        out.append(m)
        k = pattern[i] if pattern else (len(fill) * (i + 1)) // n - (len(fill) * i) // n
        out += fill[fi:fi + k]; fi += k
    out += fill[fi:]
    return out
```
